```python
import torch

def _softmax(x, axis=-1):
    return torch.softmax(x, dim=axis)
def _gelu(x):
    return torch.nn.functional.gelu(x, approximate="tanh")
def _silu(x):
    return torch.nn.functional.silu(x)
def _sigmoid(x):
    return torch.sigmoid(x)
def _layernorm(x, axis=-1, eps=1e-5):
    m = x.mean(dim=axis, keepdim=True)
    v = x.var(dim=axis, keepdim=True, unbiased=False)
    return (x - m) / torch.sqrt(v + eps)
def _scatter_add(tgt, idx, src, axis=0):
    return tgt.clone().index_add_(axis, idx, src)
def _segment_sum(src, seg, n):
    out = torch.zeros((n,) + src.shape[1:], dtype=src.dtype)
    return out.index_add_(0, seg, src)
def _pad(x, pw):
    flat = tuple(v for pair in reversed(pw) for v in pair)
    return torch.nn.functional.pad(x, flat)

kernel_name = 'concat_heads__sliding_local_dilated__grouped_kv_mqa__prompt'

def setup_inputs():

    _w = (lambda a: (lambda t: t.to(torch.bfloat16) if t.is_floating_point() else t)(torch.as_tensor(a)))
    def _A_setup():
        B, S, D = 1, 2048, 512
        return {
            "x": _w((lambda *s: torch.randn(*s, dtype=torch.bfloat16) * 0.1)(B, S, D)),
            "wqkv": _w((lambda *s: torch.randn(*s, dtype=torch.bfloat16) * 0.8)(D, 3 * D)),
            "wo": _w((lambda *s: torch.randn(*s, dtype=torch.bfloat16) * 0.8)(D, D)),
        }
    _A_in = _A_setup()

    def _B_setup():
        B, S, D, H = 1, 2048, 512, 32
        Dh = D // H
        return {
            "x": _w((lambda *s: torch.randn(*s, dtype=torch.bfloat16) * 0.05)(B, S, D)),
            "wq": _w((lambda *s: torch.randn(*s, dtype=torch.bfloat16) * 3.2)(D, H * Dh)),
            "wk": _w((lambda *s: torch.randn(*s, dtype=torch.bfloat16) * 3.2)(D, Dh)),
            "wv": _w((lambda *s: torch.randn(*s, dtype=torch.bfloat16) * 1.6)(D, Dh)),
            "wo": _w((lambda *s: torch.randn(*s, dtype=torch.bfloat16) * 1.6)(H * Dh, D)),
        }
    _B_in = _B_setup()

    return {
        "A_x": _A_in["x"],
        "A_wqkv": _A_in["wqkv"],
        "A_wo": _A_in["wo"],
        "B_x": _B_in["x"],
        "B_wq": _B_in["wq"],
        "B_wk": _B_in["wk"],
        "B_wv": _B_in["wv"],
        "B_wo": _B_in["wo"],
    }

def reference(A_x, A_wqkv, A_wo, B_x, B_wq, B_wk, B_wv, B_wo):
    def _A_ref(x, wqkv, wo):
        B, S, D = x.shape
        H = 32; Dh = D // H
        W, dil = 8, 2
        qkv = (lambda x, *d: x.permute(*d))((x @ wqkv).reshape(B, S, 3, H, Dh), 2, 0, 3, 1, 4)
        q, k, v = qkv[0], qkv[1], qkv[2]
        scale = Dh ** -0.5
        pos = torch.arange(S)
        off = torch.arange(W) * dil
        idx = pos[:, None] - off[None, :]
        mask = idx >= 0
        idx_c = torch.where(mask, idx, 0).reshape(-1)
        kg = k[:, :, idx_c, :].reshape(B, H, S, W, Dh)
        vg = v[:, :, idx_c, :].reshape(B, H, S, W, Dh)
        logits = torch.einsum("bhsd,bhswd->bhsw", q, kg) * scale
        logits = torch.where(mask[None, None, :, :], logits, -1e9)
        attn = _softmax(logits, axis=-1)
        o = torch.einsum("bhsw,bhswd->bhsd", attn, vg)
        return (lambda x, *d: x.permute(*d))(o, 0, 2, 1, 3).reshape(B, S, D) @ wo

    def _B_ref(x, wq, wk, wv, wo):
        B, S, D = x.shape
        H = 32
        Dh = D // H
        q = (lambda x, *d: x.permute(*d))((x @ wq).reshape(B, S, H, Dh), 0, 2, 1, 3)
        k = x @ wk
        v = x @ wv
        scores = torch.einsum("bhqd,bkd->bhqk", q, k) * (Dh ** -0.5)
        p = _softmax(scores, axis=-1)
        o = torch.einsum("bhqk,bkd->bhqd", p, v)
        return (lambda x, *d: x.permute(*d))(o, 0, 2, 1, 3).reshape(B, S, H * Dh) @ wo

    a = _A_ref(A_x, A_wqkv, A_wo)
    b = _B_ref(B_x, B_wq, B_wk, B_wv, B_wo)
    return torch.concatenate([a, b], axis=-1)
```

```python
import sys, struct

NAME = 'concat_heads__sliding_local_dilated__grouped_kv_mqa__prompt'
STAMPS = '--stamps' in sys.argv
args = [a for a in sys.argv[1:] if not a.startswith('--')]
OUT = args[0] if args else f'cdna_kernels/{NAME}.s'

L = []
def e(s):
    for line in s.strip('\n').split('\n'):
        L.append('    ' + line.strip() if not line.strip().endswith(':') else line.strip())
def lab(s): L.append(s + ':')
def cm(s): L.append('    ; ' + s)
def vr(i, n): return f'v[{i}:{i+n-1}]'
def sr(i, n): return f's[{i}:{i+n-1}]'
def f32(x): return '0x%08x' % struct.unpack('<I', struct.pack('<f', x))[0]

SLOT = 32768
R = 131072
WS_KV = 0
WS_OA = 0x100000
WS_OB = 0x300000
WS_STAMP = 0x500000
WS_SIZE = 0x600000
CSCALE = 0.25 * 1.4426950408889634
MOFF = 40.0
ONES = R + 16384 + 0

S_XA, S_WQKV, S_WOA, S_XB, S_WQ, S_WKV, S_WOB, S_OUT, S_WS = 8, 12, 16, 20, 24, 28, 32, 36, 40
S_DBG = 44
S_WV = 46
sW = 48
sRB, sHG = 49, 50
sT0, sT1, sT2, sT3 = 51, 52, 53, 54
sC = 55
sXbase, sXstep, sWbase = 56, 57, 58
sAx, sAw = 59, 60
sFill = 61
sKV = 62
sVM = 64
sOoff = 66
sOutOff = 67
sWoff = 68
sSpin = 69
sOAslot, sOBslot = 70, 71
sFB = 72
sHG128 = 73
sTail = 74
sST = 76

vL16, vW, vWA, vXA = 1, 2, 3, 4
vN, vH, vI = 5, 6, 7
vT0, vT1, vT2, vT3 = 8, 9, 10, 11
vA0, vA1, vA2, vA3, vA4, vA5 = 12, 13, 14, 15, 136, 137
vXl, vWl = 138, 139
vPoll = 140
vIdx = 141
vMask = 16
vQacc = 40
vAcc = 56
vFr = 88
vQ = 144
aS0, aS1, aC, aO = 16, 32, 48, 64
aK = 80
aV = 96
vOf = 160
NSTAMP = [0]
def stamp():
    if STAMPS:
        i = NSTAMP[0]; NSTAMP[0] += 1
        assert sST + 2*i + 1 <= 101
        e(f's_memrealtime {sr(sST+2*i,2)}')

def dma(voff, srd, soff, off=0, sc1=False):
    o = f' offset:{off}' if off else ''
    c = ' sc1' if sc1 else ''
    e(f'buffer_load_dwordx4 v{voff}, {sr(srd,4)}, {soff} offen{o}{c} lds')

lab(f'{NAME}_kernel')
stamp()
e('s_cmp_ge_u32 s2, 256')
e('s_cbranch_scc1 L_end')
for reg, off in ((S_XB,24),(S_WS,80),(S_WKV,40),(S_WV,48),(S_WQ,32),(S_XA,0),(S_WQKV,8),(S_WOA,16),(S_WOB,56),(S_OUT,64),(S_DBG,72)):
    e(f's_load_dwordx2 {sr(reg,2)}, s[0:1], {off}')
e(f'v_lshrrev_b32 v{vT0}, 6, v0')
e(f'v_and_b32 v0, 63, v0')
e(f'v_readfirstlane_b32 s{sW}, v{vT0}')
for reg, size in ((S_XB,0x200000),(S_WS,WS_SIZE),(S_WKV,0x4000),(S_WQ,0x80000),(S_XA,0x200000),(S_WQKV,0x180000),(S_WOA,0x80000),(S_WOB,0x80000),(S_OUT,0x400000)):
    e(f's_mov_b32 s{reg+2}, {hex(size)}')
    e(f's_mov_b32 s{reg+3}, 0x20000')
e(f's_and_b32 s{sT0}, s2, 7')
e(f's_lshr_b32 s{sT1}, s2, 3')
e(f's_lshl_b32 s{sRB}, s{sT0}, 2')
e(f's_and_b32 s{sT0}, s{sT1}, 3')
e(f's_add_u32 s{sRB}, s{sRB}, s{sT0}')
e(f's_lshr_b32 s{sHG}, s{sT1}, 2')
e(f's_lshl_b32 s{sHG128}, s{sHG}, 7')
e(f'v_lshlrev_b32 v{vL16}, 4, v0')
e(f'v_and_b32 v{vN}, 31, v0')
e(f'v_lshrrev_b32 v{vH}, 5, v0')
e(f'v_and_b32 v{vI}, 15, v0')
e(f'v_lshrrev_b32 v{vT0}, 4, v0')
e(f's_lshl_b32 s{sT0}, s{sW}, 3')
e(f'v_add_u32 v{vT1}, s{sT0}, v{vT0}')
e(f'v_and_b32 v{vT2}, 15, v{vT1}')
e(f'v_xor_b32 v{vT2}, v{vT2}, v{vI}')
e(f'v_lshlrev_b32 v{vT2}, 4, v{vT2}')
e(f'v_lshl_add_u32 v{vA0}, v{vT1}, 10, v{vT2}')
e(f'v_xor_b32 v{vA1}, 64, v{vA0}')
e(f'v_add_u32 v{vA1}, {4096-1024}, v{vA1}')
e(f'v_lshrrev_b32 v{vT1}, 3, v0')
e(f'v_and_b32 v{vT2}, 7, v0')
e(f'v_and_b32 v{vT3}, 1, v{vT0}')
e(f'v_lshlrev_b32 v{vT3}, 2, v{vT3}')
e(f'v_xor_b32 v{vT3}, v{vT3}, v{vT2}')
e(f'v_lshlrev_b32 v{vT3}, 4, v{vT3}')
e(f'v_lshl_add_u32 v{vW}, v{vT1}, 10, v{vT3}')
e(f'v_mul_u32_u24 v{vWA}, 3072, v{vT1}')
e(f'v_add_u32 v{vWA}, v{vWA}, v{vT3}')
e(f'v_xor_b32 v{vT3}, v{vT2}, v{vT0}')
e(f'v_lshlrev_b32 v{vT3}, 4, v{vT3}')
e(f'v_lshl_add_u32 v{vA2}, v{vT1}, 10, v{vT3}')
e(f'v_xor_b32 v{vA3}, 64, v{vA2}')
e(f's_and_b32 s{sT0}, s{sW}, 1')
e(f's_lshl_b32 s{sT0}, s{sT0}, 6')
e(f'v_xor_b32 v{vXA}, s{sT0}, v{vA2}')
e(f's_and_b32 s{sT0}, s{sW}, 1')
e(f's_lshl_b32 s{sT1}, s{sRB}, 1')
e(f's_add_u32 s{sT0}, s{sT0}, s{sT1}')
e(f's_lshl_b32 s{sT0}, s{sT0}, 5')
e(f's_lshr_b32 s{sT2}, s{sW}, 1')
e(f's_lshl_b32 s{sT3}, s{sT2}, 3')
e(f's_add_u32 s{sOoff}, s{sT0}, s{sT3}')
e(f's_lshl_b32 s{sOoff}, s{sOoff}, 10')
e(f's_add_u32 s{sOoff}, s{sOoff}, {hex(WS_OA)}')
e(f's_lshl_b32 s{sT1}, s{sHG}, 2')
e(f's_add_u32 s{sT0}, s{sT0}, s{sT1}')
e(f's_add_u32 s{sOAslot}, s{sT0}, s{sT2}')
e(f's_lshl_b32 s{sOAslot}, s{sOAslot}, 10')
e(f's_add_u32 s{sOAslot}, s{sOAslot}, {hex(WS_OA)}')
e(f's_and_b32 s{sT1}, s{sW}, 2')
e(f's_lshr_b32 s{sT3}, s{sW}, 2')
e(f's_add_u32 s{sT1}, s{sT1}, s{sT3}')
e(f's_add_u32 s{sOBslot}, s{sT0}, s{sT1}')
e(f's_lshl_b32 s{sOBslot}, s{sOBslot}, 10')
e(f's_add_u32 s{sOBslot}, s{sOBslot}, {hex(WS_OB)}')
for i in range(4): e(f'v_mov_b32 v{vFr+i}, -1')
e(f's_lshl_b32 s{sT0}, s{sRB}, 16')
e(f's_lshl_b32 s{sT1}, s{sW}, 11')
e(f's_bitcmp1_b32 s{sHG}, 0')
e('s_waitcnt lgkmcnt(0)')
e(f's_cselect_b32 s{S_WKV}, s{S_WV}, s{S_WKV}')
e(f's_cselect_b32 s{S_WKV+1}, s{S_WV+1}, s{S_WKV+1}')
cm('---- initial fills ----')
for c in range(4):
    e(f's_add_u32 m0, s{sT1}, {c*SLOT}')
    if c: e(f's_add_u32 s{sT0}, s{sT0}, 256')
    else: e('s_nop 0')
    dma(vA0, S_XB, f's{sT0}')
    dma(vA1, S_XB, f's{sT0}', 1024)
e(f'buffer_store_dwordx4 {vr(vFr,4)}, v{vL16}, {sr(S_WS,4)}, s{sOAslot} offen sc1')
e(f'buffer_store_dwordx4 {vr(vFr,4)}, v{vL16}, {sr(S_WS,4)}, s{sOBslot} offen sc1')
e(f's_add_u32 m0, s{sT1}, {R}')
e(f's_lshl_b32 s{sT2}, s{sW}, 14')
dma(vL16, S_WKV, f's{sT1}')
dma(vL16, S_WKV, f's{sT1}', 1024)
e(f's_add_u32 s{sT2}, s{sT2}, s{sHG128}')
e(f's_add_u32 s{sT3}, s{sT2}, {8192-1024}')
for c in range(4):
    e(f's_add_u32 m0, s{sT1}, {c*SLOT+16384}')
    if c:
        e(f's_add_u32 s{sT2}, s{sT2}, {128*1024}')
        e(f's_add_u32 s{sT3}, s{sT3}, {128*1024}')
    else: e('s_nop 0')
    dma(vW, S_WQ, f's{sT2}')
    dma(vW, S_WQ, f's{sT3}', 1024)
e(f's_lshl_b32 s{sT0}, s{sRB}, 16')
e(f's_sub_u32 s{sT2}, s{sT0}, 16384')
e(f's_max_i32 s{sT2}, s{sT2}, 0')
e(f's_lshl_b32 s{sT3}, s{sW}, 7')
e(f's_add_u32 s{sT2}, s{sT2}, s{sT3}')
e(f's_add_u32 m0, s{sT1}, {R+16384}')
e(f's_add_u32 s{sT3}, s{sT2}, {8192-1024}')
dma(vA2, S_XA, f's{sT2}')
dma(vA3, S_XA, f's{sT3}', 1024)
stamp()
cm('---- setup while loads fly ----')
e(f's_lshl_b32 s{sT1}, s{sW}, 13')
e(f's_add_u32 s{sAx}, s{sT0}, s{sT1}')
e(f's_mul_i32 s{sAw}, s{sW}, {8*3072}')
e(f's_add_u32 s{sAw}, s{sAw}, s{sHG128}')
e(f's_lshl_b32 s{sFill}, s{sW}, 10')
e(f's_lshl_b32 s{sKV}, s{sW}, 12')
e(f's_mov_b32 s{sVM}, 0xffff')
e(f's_mov_b32 s{sVM+1}, 0xffff')
e(f's_mov_b32 s{sFB}, 0')
e(f'v_mov_b32 v{vIdx}, 0xdddddddd')
e(f'v_lshlrev_b32 v{vT0}, 2, v{vH}')
e(f'v_sub_u32 v{vT0}, v{vN}, v{vT0}')
e(f'v_add_u32 v{vT0}, 18, v{vT0}')
e(f'v_mov_b32 v{vT2}, 0x5555')
e(f'v_mov_b32 v{vT3}, 0')
e(f'v_lshlrev_b64 {vr(vT2,2)}, v{vT0}, {vr(vT2,2)}')
e(f's_and_b32 s{sT1}, s{sW}, 1')
e(f's_or_b32 s{sT1}, s{sT1}, s{sRB}')
e(f's_cmp_eq_u32 s{sT1}, 0')
e(f's_cselect_b32 s{sT1}, 0, -1')
e(f'v_and_b32 v{vT2}, s{sT1}, v{vT2}')
e(f'v_not_b32 v{vT2}, v{vT2}')
e(f'v_not_b32 v{vT3}, v{vT3}')
e(f's_mov_b32 s{sT1}, 0xff800000')
for r in range(16):
    e(f'v_bfe_i32 v{vMask+r}, v{vT3}, {8*(r>>2)+(r&3)}, 1')
for r in range(8, 16):
    e(f'v_bfe_i32 v{vMask+8+r}, v{vT2}, {8*(r>>2)+(r&3)}, 1')
for r in range(24):
    e(f'v_and_b32 v{vMask+r}, s{sT1}, v{vMask+r}')
e(f'v_lshrrev_b32 v{vT0}, 2, v{vI}')
e(f'v_lshl_add_u32 v{vT0}, v{vH}, 3, v{vT0}')
e(f'v_lshlrev_b32 v{vT0}, 7, v{vT0}')
e(f'v_and_b32 v{vT1}, 8, v{vI}')
e(f'v_lshl_add_u32 v{vT0}, v{vT1}, 3, v{vT0}')
e(f'v_and_b32 v{vT1}, 16, v0')
e(f'v_lshl_add_u32 v{vT0}, v{vT1}, 1, v{vT0}')
e(f'v_and_b32 v{vT1}, 3, v0')
e(f'v_lshl_add_u32 v{vWl}, v{vT1}, 3, v{vT0}')
e(f's_lshr_b32 s{sT1}, s{sW}, 2')
e(f's_lshl_b32 s{sT2}, s{sT1}, 3')
e(f'v_add_u32 v{vT0}, s{sT2}, v{vH}')
e(f'v_xor_b32 v{vT0}, v{vT0}, v{vI}')
e(f'v_lshlrev_b32 v{vT0}, 4, v{vT0}')
e(f'v_lshl_add_u32 v{vT0}, v{vN}, 8, v{vT0}')
e(f's_and_b32 s{sT2}, s{sW}, 1')
e(f's_lshl_b32 s{sT2}, s{sT2}, 13')
e(f'v_add_u32 v{vA0}, s{sT2}, v{vT0}')
e(f'v_xor_b32 v{vA1}, 32, v{vA0}')
e(f'v_xor_b32 v{vA2}, 64, v{vA0}')
e(f'v_xor_b32 v{vA3}, 96, v{vA0}')
e(f's_lshl_b32 s{sT1}, s{sT1}, 13')
e(f's_add_u32 s{sT1}, s{sT1}, 16384')
e(f's_and_b32 s{sT2}, s{sW}, 2')
e(f's_lshl_b32 s{sT2}, s{sT2}, 5')
e(f'v_xor_b32 v{vA4}, s{sT2}, v{vWl}')
e(f'v_add_u32 v{vA4}, s{sT1}, v{vA4}')
e(f'v_lshrrev_b32 v{vT1}, 4, v0')
e(f's_and_b32 s{sT1}, s{sW}, 1')
e(f's_lshl_b32 s{sT1}, s{sT1}, 3')
e(f'v_add_u32 v{vT0}, s{sT1}, v{vT1}')
e(f'v_xor_b32 v{vT0}, v{vT0}, v{vI}')
e(f'v_lshlrev_b32 v{vT0}, 4, v{vT0}')
e(f'v_lshl_add_u32 v{vT0}, v{vI}, 8, v{vT0}')
e(f's_lshr_b32 s{sT1}, s{sW}, 1')
e(f's_lshl_b32 s{sT1}, s{sT1}, 15')
e(f's_lshr_b32 s{sT2}, s{sHG}, 1')
e(f's_lshl_b32 s{sT2}, s{sT2}, 12')
e(f's_add_u32 s{sT1}, s{sT1}, s{sT2}')
e(f'v_add_u32 v{vT0}, s{sT1}, v{vT0}')
e(f'v_xor_b32 v{vT2}, 64, v{vT0}')
e(f'v_lshlrev_b32 v{vT1}, 8, v{vT1}')
e(f'v_lshl_add_u32 v{vT1}, v{vI}, 3, v{vT1}')
e(f's_lshl_b32 s{sT1}, s{sW}, 11')
e(f's_add_u32 s{sT1}, s{sT1}, {R}')
e(f'v_add_u32 v{vT1}, s{sT1}, v{vT1}')
e(f'v_add_u32 v{vT3}, s{sT1}, v{vL16}')
e(f'v_bfe_u32 v{vXl}, v{vN}, 1, 3')
e(f'v_xor_b32 v{vXl}, v{vXl}, v{vH}')
e(f'v_lshlrev_b32 v{vXl}, 4, v{vXl}')
e(f's_cmp_ge_u32 s{sW}, 6')
e(f's_cselect_b32 s{sT1}, 15, 31')
e(f'v_and_b32 v{vA5}, s{sT1}, v{vN}')
e(f'v_lshl_add_u32 v{vXl}, v{vA5}, 7, v{vXl}')
e(f's_and_b32 s{sT1}, s{sW}, 1')
e(f's_lshl_b32 s{sT1}, s{sT1}, 12')
e(f's_cmp_ge_u32 s{sW}, 6')
e(f's_cselect_b32 s{sXbase}, {R+16384}, s{sT1}')
e(f's_cselect_b32 s{sXstep}, 1, 16')
e(f's_lshl_b32 s{sXstep}, s{sXstep}, 11')
e(f's_lshr_b32 s{sT1}, s{sW}, 1')
e(f's_sub_u32 s{sT2}, s{sW}, 5')
e(f's_cmp_ge_u32 s{sW}, 6')
e(f's_cselect_b32 s{sT1}, s{sT2}, s{sT1}')
e(f's_lshl_b32 s{sT1}, s{sT1}, 13')
e(f's_add_u32 s{sWbase}, s{sT1}, 8192')
for i in range(16): e(f'v_mov_b32 v{vQacc+i}, 0')
for i in range(32): e(f'v_mov_b32 v{vAcc+i}, 0')

def a_fill():
    e(f's_mov_b32 m0, s{sFill}')
    e(f's_add_u32 s{sT0}, s{sAw}, 1024')
    dma(vXA, S_XA, f's{sAx}')
    e(f's_add_u32 m0, s{sFill}, 8192')
    e(f's_add_u32 s{sT1}, s{sAw}, 2048')
    dma(vWA, S_WQKV, f's{sAw}')
    e(f's_add_u32 m0, s{sFill}, 16384')
    e(f's_add_u32 s{sAx}, s{sAx}, 128')
    dma(vWA, S_WQKV, f's{sT0}')
    e(f's_add_u32 m0, s{sFill}, 24576')
    e(f's_add_u32 s{sAw}, s{sAw}, {64*3072}')
    dma(vWA, S_WQKV, f's{sT1}')
    e(f's_add_u32 s{sFill}, s{sFill}, {SLOT}')
    e(f's_and_b32 s{sFill}, s{sFill}, {4*SLOT-1}')

def q_chunk(c):
    base = (c & 1) * SLOT
    for s in range(4):
        x = vFr + 8 * s
        e(f'ds_read_b128 {vr(x,4)}, v{[vA0,vA1,vA2,vA3][s]} offset:{base}')
        e(f'ds_read_b64_tr_b16 {vr(x+4,2)}, v{vA4} offset:{base+s*2048}')
        e(f'ds_read_b64_tr_b16 {vr(x+6,2)}, v{vA4} offset:{base+s*2048+512}')
    if c == 1:
        for a in (vA0, vA1, vA2, vA3, vA4): e(f'v_add_u32 v{a}, {2*SLOT}, v{a}')
    for s in range(4):
        x = vFr + 8 * s
        e(f's_waitcnt lgkmcnt({9-3*s})')
        e(f'v_mfma_f32_32x32x16_bf16 {vr(vQacc,16)}, {vr(x+4,4)}, {vr(x,4)}, {vr(vQacc,16)}')

cm('---- B projections ----')
e('s_waitcnt vmcnt(8)')
e('s_barrier')
stamp()
kx0, kx1, kw0, kw1, kd = vFr+32, vFr+36, vFr+40, vFr+44, vOf
e(f'ds_read_b128 {vr(kx0,4)}, v{vT0}')
e(f'ds_read_b64_tr_b16 {vr(kw0,2)}, v{vT1}')
e(f'ds_read_b64_tr_b16 {vr(kw0+2,2)}, v{vT1} offset:128')
e(f'ds_read_b128 {vr(kx1,4)}, v{vT2}')
e(f'ds_read_b64_tr_b16 {vr(kw1,2)}, v{vT1} offset:1024')
e(f'ds_read_b64_tr_b16 {vr(kw1+2,2)}, v{vT1} offset:1152')
e(f's_bitcmp1_b32 s{sHG}, 0')
e('s_waitcnt lgkmcnt(0)')
e('s_cbranch_scc1 L_kv_v')
e(f'v_mfma_f32_16x16x32_bf16 {vr(kd,4)}, {vr(kw0,4)}, {vr(kx0,4)}, 0')
e(f'v_mfma_f32_16x16x32_bf16 {vr(kd,4)}, {vr(kw1,4)}, {vr(kx1,4)}, {vr(kd,4)}')
e('s_branch L_kv_j')
lab('L_kv_v')
e(f'v_mfma_f32_16x16x32_bf16 {vr(kd,4)}, {vr(kx0,4)}, {vr(kw0,4)}, 0')
e(f'v_mfma_f32_16x16x32_bf16 {vr(kd,4)}, {vr(kx1,4)}, {vr(kw1,4)}, {vr(kd,4)}')
lab('L_kv_j')
q_chunk(0)
e(f'ds_write_b128 v{vT3}, {vr(kd,4)}')
e('s_waitcnt vmcnt(6) lgkmcnt(0)')
e('s_barrier')
e(f's_cmp_lg_u32 s{sW}, 0')
e('s_cbranch_scc1 L_kv_done')
for j in range(8):
    e(f'ds_read_b128 {vr(vOf+4*j,4)}, v{vT3} offset:{j*2048}')
e(f'v_lshrrev_b32 v{vT0}, 4, v0')
e(f'v_and_b32 v{vT1}, 1, v{vT0}')
e(f'v_lshrrev_b32 v{vT2}, 1, v{vT0}')
e(f's_lshr_b32 s{sT0}, s{sHG}, 2')
e(f's_lshl_b32 s{sT1}, s{sRB}, 1')
e(f's_add_u32 s{sT0}, s{sT0}, s{sT1}')
e(f's_lshl_b32 s{sT0}, s{sT0}, 11')
e(f's_bfe_u32 s{sT1}, s{sHG}, 0x10001')
e(f's_bitcmp1_b32 s{sHG}, 0')
e('s_cbranch_scc1 L_kv_av')
e(f'v_lshlrev_b32 v{vT1}, 9, v{vT1}')
e(f'v_lshl_add_u32 v{vT1}, v{vT2}, 3, v{vT1}')
e(f's_lshl_b32 s{sT1}, s{sT1}, 8')
e('s_branch L_kv_aj')
lab('L_kv_av')
e(f'v_lshlrev_b32 v{vT1}, 3, v{vT1}')
e(f'v_lshl_add_u32 v{vT1}, v{vT2}, 8, v{vT1}')
e(f's_lshl_b32 s{sT1}, s{sT1}, 9')
e(f's_add_u32 s{sT1}, s{sT1}, 1024')
lab('L_kv_aj')
e(f'v_lshl_add_u32 v{vT1}, v{vI}, 4, v{vT1}')
e(f's_add_u32 s{sT0}, s{sT0}, s{sT1}')
e('s_waitcnt lgkmcnt(0)')
for st in (4, 2, 1):
    for j in range(st):
        for p in (0, 2):
            a, b = vOf+4*j+p, vOf+4*(j+st)+p
            e(f'v_pk_add_f32 {vr(a,2)}, {vr(a,2)}, {vr(b,2)}')
e(f'v_cvt_pk_bf16_f32 v{vOf+4}, v{vOf}, v{vOf+1}')
e(f'v_cvt_pk_bf16_f32 v{vOf+5}, v{vOf+2}, v{vOf+3}')
e(f'buffer_store_dwordx2 {vr(vOf+4,2)}, v{vT1}, {sr(S_WS,4)}, s{sT0} offen sc1')
lab('L_kv_done')
a_fill()
q_chunk(1)
e('s_waitcnt vmcnt(8)')
e('s_barrier')
a_fill()
q_chunk(2)
e('s_waitcnt vmcnt(10)')
e('s_barrier')
a_fill()
q_chunk(3)
stamp()
e(f's_cmp_lg_u32 s{sW}, 0')
e('s_cbranch_scc1 L_flag_done')
e(f's_and_b32 s{sT0}, s2, 3')
e(f's_lshl_b32 s{sT0}, s{sT0}, 6')
e(f'v_mov_b32 v{vT0}, s{sT0}')
e(f'v_mov_b32 v{vT1}, 1')
e('s_mov_b64 exec, 1')
e('s_waitcnt vmcnt(12)')
e(f'global_atomic_add v{vT0}, v{vT1}, {sr(S_DBG,2)} sc1')
e('s_mov_b64 exec, -1')
lab('L_flag_done')
e(f's_cmp_ge_u32 s{sW}, 4')
e('s_nop 9')
e('s_cbranch_scc1 L_qx_hi')
e(f'ds_write_b128 v{vT3}, {vr(vQacc+8,4)}')
e(f'ds_write_b128 v{vT3}, {vr(vQacc+12,4)} offset:1024')
e('s_branch L_qx_j')
lab('L_qx_hi')
e(f'ds_write_b128 v{vT3}, {vr(vQacc,4)}')
e(f'ds_write_b128 v{vT3}, {vr(vQacc+4,4)} offset:1024')
e('s_waitcnt lgkmcnt(0)')
for i in range(8): e(f'v_mov_b32 v{vQacc+i}, v{vQacc+8+i}')
lab('L_qx_j')
e(f'v_xor_b32 v{vT3}, {4*2048}, v{vT3}')
e(f'v_and_b32 v{vPoll}, 3, v0')
e(f'v_lshlrev_b32 v{vT2}, 6, v{vPoll}')
e(f's_mov_b32 s{sC}, 0')

cm('---- A GEMM loop ----')
lab('L_aloop')
e(f'v_add_u32 v{vA0}, s{sXbase}, v{vXl}')
e(f'v_add_u32 v{vA4}, s{sWbase}, v{vWl}')
e(f'v_xor_b32 v{vA1}, 32, v{vA0}')
e(f'v_xor_b32 v{vA2}, 64, v{vA0}')
e(f'v_xor_b32 v{vA3}, 96, v{vA0}')
e(f'v_xor_b32 v{vA5}, 64, v{vA4}')
e('s_waitcnt vmcnt(8) lgkmcnt(0)')
e(f's_lshl_b32 s{sT0}, s{sC}, 3')
e(f's_add_u32 s{sT0}, s{sT0}, s{sW}')
e(f's_cmp_lg_u32 s{sT0}, {5*8+7}')
e('s_cbranch_scc1 L_nochk')
e(f's_mov_b32 s{sSpin}, 100000')
lab('L_chk')
e(f'v_cmp_ne_u32 vcc, 64, v{vPoll}')
e('s_cbranch_vccz L_nochk')
e(f's_sub_u32 s{sSpin}, s{sSpin}, 1')
e('s_cbranch_scc1 L_nochk')
e('s_sleep 2')
e(f'global_load_dword v{vPoll}, v{vT2}, {sr(S_DBG,2)} sc1')
e('s_waitcnt vmcnt(0)')
e('s_branch L_chk')
lab('L_nochk')
e('s_barrier')
def a_reads(s):
    x = vFr + 12 * s
    e(f'ds_read_b128 {vr(x,4)}, v{[vA0,vA1,vA2,vA3][s]}')
    e(f'ds_read_b64_tr_b16 {vr(x+4,2)}, v{vA4} offset:{s*2048}')
    e(f'ds_read_b64_tr_b16 {vr(x+6,2)}, v{vA4} offset:{s*2048+512}')
    e(f'ds_read_b64_tr_b16 {vr(x+8,2)}, v{vA5} offset:{s*2048}')
    e(f'ds_read_b64_tr_b16 {vr(x+10,2)}, v{vA5} offset:{s*2048+512}')
def a_mfma(s):
    x = vFr + 12 * s
    e(f'v_mfma_f32_32x32x16_bf16 {vr(vAcc,16)}, {vr(x+4,4)}, {vr(x,4)}, {vr(vAcc,16)}')
    e(f'v_mfma_f32_32x32x16_bf16 {vr(vAcc+16,16)}, {vr(x+8,4)}, {vr(x,4)}, {vr(vAcc+16,16)}')
a_reads(0); a_reads(1); a_reads(2)
e(f's_cmp_lg_u32 s{sT0}, {3*8+7}')
e('s_cbranch_scc1 L_nopoll')
e(f'global_load_dword v{vPoll}, v{vT2}, {sr(S_DBG,2)} sc1')
lab('L_nopoll')
e(f's_cmp_ge_u32 s{sC}, 5')
e('s_cbranch_scc1 L_kvfill')
a_fill()
e('s_branch L_filled')
lab('L_kvfill')
e(f's_cmp_eq_u32 s{sC}, 7')
e('s_cbranch_scc1 L_filled')
def kv_fill():
    e(f's_mov_b32 m0, s{sKV}')
    e('s_nop 0')
    for j in range(4): dma(vL16, S_WS, f's{sKV}', 1024*j, sc1=True)
    e(f's_add_u32 s{sKV}, s{sKV}, {SLOT}')
kv_fill()
lab('L_filled')
e('s_waitcnt lgkmcnt(10)')
a_mfma(0)
a_reads(3)
e('s_waitcnt lgkmcnt(10)')
a_mfma(1)
e(f's_add_u32 s{sXbase}, s{sXbase}, s{sXstep}')
e(f's_add_u32 s{sWbase}, s{sWbase}, {SLOT}')
e(f's_and_b32 s{sWbase}, s{sWbase}, {4*SLOT-1}')
e(f's_cmp_ge_u32 s{sW}, 6')
e(f's_cselect_b32 s{sT0}, -1, {4*SLOT-1}')
e(f's_and_b32 s{sXbase}, s{sXbase}, s{sT0}')
e('s_waitcnt lgkmcnt(5)')
a_mfma(2)
e(f's_add_u32 s{sC}, s{sC}, 1')
e(f's_cmp_lt_u32 s{sC}, 8')
e('s_waitcnt lgkmcnt(0)')
a_mfma(3)
e('s_cbranch_scc1 L_aloop')
stamp()

cm('---- finalize B Q ; write A frags ----')
e(f'ds_read_b128 {vr(vFr,4)}, v{vT3}')
e(f'ds_read_b128 {vr(vFr+4,4)}, v{vT3} offset:1024')
e(f's_mov_b32 s{sT0}, {f32(CSCALE)}')
e(f's_lshl_b32 s{sT1}, s{sW}, 12')
e(f's_add_u32 s{sT1}, s{sT1}, {2*SLOT}')
e(f'v_add_u32 v{vA0}, s{sT1}, v{vL16}')
e(f'v_mov_b32 v{vFr+8}, 0x3f803f80')
e(f'v_mov_b32 v{vFr+9}, 0x3f803f80')
e(f'v_lshlrev_b32 v{vA1}, 3, v0')
e(f's_cmp_ge_u32 s{sW}, 2')
e('s_waitcnt lgkmcnt(0)')
for i in range(8): e(f'v_add_f32 v{vQacc+i}, v{vQacc+i}, v{vFr+i}')
for i in range(8): e(f'v_mul_f32 v{vQacc+i}, s{sT0}, v{vQacc+i}')
for i in range(4): e(f'v_cvt_pk_bf16_f32 v{vQ+i}, v{vQacc+2*i}, v{vQacc+2*i+1}')
e('s_cbranch_scc1 L_noscale')
for i in range(32): e(f'v_mul_f32 v{vAcc+i}, s{sT0}, v{vAcc+i}')
lab('L_noscale')
for hd in range(4):
    for i in range(4):
        e(f'v_cvt_pk_bf16_f32 v{vAcc+8*hd+i}, v{vAcc+8*hd+2*i}, v{vAcc+8*hd+2*i+1}')
    e(f'ds_write_b128 v{vA0}, {vr(vAcc+8*hd,4)} offset:{hd*1024}')
e(f'v_sub_u32 v{vT3}, v{vT3}, v{vA1}')
e(f'ds_write_b64 v{vT3}, {vr(vFr+8,2)}')
e(f's_and_b32 s{sT0}, s{sW}, 1')
e(f's_lshr_b32 s{sT1}, s{sW}, 1')
e(f's_lshl_b32 s{sT1}, s{sT1}, 10')
e(f's_add_u32 s{sT1}, s{sT1}, {2*SLOT}')
e(f's_lshl_b32 s{sT2}, s{sT0}, 12')
e(f's_add_u32 s{sT2}, s{sT2}, s{sT1}')
e(f'v_add_u32 v{vA0}, s{sT2}, v{vL16}')
e(f's_cmp_eq_u32 s{sT0}, 0')
e(f's_cselect_b32 s{sT3}, 6, 2')
e(f's_lshl_b32 s{sT3}, s{sT3}, 12')
e(f's_add_u32 s{sT3}, s{sT3}, s{sT1}')
e(f'v_add_u32 v{vA1}, s{sT3}, v{vL16}')
e(f'v_and_b32 v{vT0}, 1, v0')
e(f'v_lshlrev_b32 v{vT0}, 5, v{vT0}')
e(f'v_lshl_add_u32 v{vT0}, v{vH}, 3, v{vT0}')
e(f'v_lshrrev_b32 v{vT1}, 2, v{vI}')
e(f'v_add_u32 v{vT0}, v{vT0}, v{vT1}')
e(f'v_lshlrev_b32 v{vT0}, 4, v{vT0}')
e(f'v_and_b32 v{vT1}, 2, v0')
e(f'v_lshl_add_u32 v{vT0}, v{vT1}, 2, v{vT0}')
e(f's_add_u32 s{sT2}, s{sT2}, {4*4096}')
e(f'v_add_u32 v{vA2}, s{sT2}, v{vT0}')
e(f's_cmp_eq_u32 s{sT0}, 0')
e(f's_cselect_b32 s{sT3}, 7, 4')
e(f's_lshl_b32 s{sT3}, s{sT3}, 12')
e(f's_add_u32 s{sT3}, s{sT3}, s{sT1}')
e(f'v_add_u32 v{vA3}, s{sT3}, v{vT0}')
e(f's_xor_b32 s{sT3}, s{sW}, 4')
e(f's_lshl_b32 s{sT3}, s{sT3}, 11')
e(f's_add_u32 s{sT3}, s{sT3}, {R}')
e(f'v_mov_b32 v{vT1}, s{sT3}')
e(f'v_and_b32 v{vT0}, 16, v0')
e(f'v_cmp_ne_u32 vcc, 0, v{vT0}')
e('s_nop 1')
e(f'v_cndmask_b32 v{vA2}, v{vA2}, v{vT1}, vcc')
e(f'v_cndmask_b32 v{vA3}, v{vA3}, v{vT1}, vcc')
e('s_waitcnt lgkmcnt(0)')
e('s_barrier')
stamp()
cm('---- A local attention ----')
lq, lk, lp, lv = vFr, vFr+4, vFr+8, vFr+12
lS, lP, lO = vAcc, vAcc+16, vQacc
e(f'ds_read_b128 {vr(lq,4)}, v{vA0}')
e(f'ds_read_b128 {vr(lk,4)}, v{vA0} offset:8192')
e(f'ds_read_b128 {vr(lp,4)}, v{vA1}')
e(f'ds_read_b64_tr_b16 {vr(lv,2)}, v{vA2}')
e(f'ds_read_b64_tr_b16 {vr(lv+2,2)}, v{vA2} offset:64')
e(f'ds_read_b64_tr_b16 {vr(lv+4,2)}, v{vA2} offset:256')
e(f'ds_read_b64_tr_b16 {vr(lv+6,2)}, v{vA2} offset:320')
e(f'ds_read_b64_tr_b16 {vr(lv+8,2)}, v{vA3} offset:256')
e(f'ds_read_b64_tr_b16 {vr(lv+10,2)}, v{vA3} offset:320')
e(f's_add_u32 s{sT0}, s{sKV}, {SLOT}')
e(f's_mov_b32 m0, s{sT0}')
for i in range(16): e(f'v_mov_b32 v{lO+i}, 0')
for j in range(4): dma(vL16, S_WS, f's{sT0}', 1024*j, sc1=True)
e('s_waitcnt lgkmcnt(6)')
e(f'v_mfma_f32_32x32x16_bf16 {vr(lS,16)}, {vr(lk,4)}, {vr(lq,4)}, {vr(vMask,16)}')
e(f'v_mfma_f32_32x32x16_bf16 {vr(lP,16)}, {vr(lp,4)}, {vr(lq,4)}, {vr(vMask+8,16)}')
e('s_nop 10')
regs = [lS+i for i in range(16)] + [lP+8+i for i in range(8)]
e(f'v_max3_f32 v{vT0}, v{regs[0]}, v{regs[1]}, v{regs[2]}')
e(f'v_max3_f32 v{vT1}, v{regs[3]}, v{regs[4]}, v{regs[5]}')
for k in range(6, 24, 4):
    e(f'v_max3_f32 v{vT0}, v{vT0}, v{regs[k]}, v{regs[k+1]}')
    if k + 3 < 24: e(f'v_max3_f32 v{vT1}, v{vT1}, v{regs[k+2]}, v{regs[k+3]}')
e(f'v_max_f32 v{vT0}, v{vT0}, v{vT1}')
e(f'v_mov_b32 v{vT1}, v{vT0}')
e('s_nop 1')
e(f'v_permlane32_swap_b32 v{vT0}, v{vT1}')
e(f'v_max_f32 v{vT0}, v{vT0}, v{vT1}')
for k in range(24): e(f'v_sub_f32 v{regs[k]}, v{regs[k]}, v{vT0}')
for k in range(24): e(f'v_exp_f32 v{regs[k]}, v{regs[k]}')
e('s_waitcnt lgkmcnt(0)')
e(f'v_smfmac_f32_32x32x32_bf16 {vr(lO,16)}, {vr(lv,4)}, {vr(lS,8)}, v{vIdx}')
e(f'v_smfmac_f32_32x32x32_bf16 {vr(lO,16)}, {vr(lv+4,4)}, {vr(lS+8,8)}, v{vIdx}')
e(f'v_smfmac_f32_32x32x32_bf16 {vr(lO,16)}, {vr(lv+8,4)}, {vr(lP+8,8)}, v{vIdx}')
vKa, vVa = vA0, vA1
e(f'v_mov_b32 v{vKa}, v{vL16}')
e(f'v_lshlrev_b32 v{vVa}, 4, v{vI}')
e(f'v_lshl_add_u32 v{vVa}, v{vH}, 8, v{vVa}')
e(f's_mov_b32 s{sT0}, 0xfffffffe')
e('s_waitcnt vmcnt(8)')
e('s_barrier')
e('s_nop 6')
def norm_store(O, slot, tmp):
    e(f'v_rcp_f32 v{tmp}, v{O+8}')
    e('s_nop 0')
    for i in range(8): e(f'v_mul_f32 v{O+i}, v{O+i}, v{tmp}')
    for i in range(4): e(f'v_cvt_pk_bf16_f32 v{O+i}, v{O+2*i}, v{O+2*i+1}')
    for i in range(4): e(f'v_min_u32 v{O+i}, s{sT0}, v{O+i}')
    e(f'buffer_store_dwordx4 {vr(O,4)}, v{vL16}, {sr(S_WS,4)}, s{slot} offen sc1')
for i in range(32): e(f'v_mov_b32 v{aV+i}, 0x3f803f80')
e(f'ds_read_b128 {vr(aK,4)}, v{vKa}')
e(f'ds_read_b128 {vr(aK+4,4)}, v{vKa} offset:2048')
e(f's_mov_b64 exec, {sr(sVM,2)}')
for j in range(4):
    e(f'ds_read_b128 {vr(aV+4*j,4)}, v{vVa} offset:{(j>>1)*2048+1024+(j&1)*512}')
e('s_mov_b64 exec, -1')
kv_fill()
norm_store(lO, sOAslot, vT0)
stamp()

cm('---- B attention ----')
e('s_waitcnt lgkmcnt(0)')
e(f'v_mfma_f32_32x32x16_bf16 {vr(aS0,16)}, {vr(aK,4)}, {vr(vQ,4)}, 0')
for i in range(16): e(f'v_mov_b32 v{aO+i}, 0')
e(f'v_max3_f32 v{vT0}, v{aS0}, v{aS0+1}, v{aS0+2}')
e(f'v_max3_f32 v{vT1}, v{aS0+3}, v{aS0+4}, v{aS0+5}')
for k in range(6, 16, 4):
    e(f'v_max3_f32 v{vT0}, v{vT0}, v{aS0+k}, v{aS0+k+1}')
    if k + 3 < 16: e(f'v_max3_f32 v{vT1}, v{vT1}, v{aS0+k+2}, v{aS0+k+3}')
e(f'v_max_f32 v{vT0}, v{vT0}, v{vT1}')
e(f'v_mov_b32 v{vT1}, v{vT0}')
e('s_nop 1')
e(f'v_permlane32_swap_b32 v{vT0}, v{vT1}')
e(f'v_max_f32 v{vT0}, v{vT0}, v{vT1}')
e(f'v_sub_f32 v{aC}, {f32(-MOFF)}, v{vT0}')
for i in range(1, 16): e(f'v_mov_b32 v{aC+i}, v{aC}')
for i in range(16): e(f'v_add_f32 v{aS0+i}, v{aS0+i}, v{aC}')
for i in range(8): e(f'v_mov_b32 v{aS1+8+i}, 0')
e(f's_lshl_b32 s{sWoff}, s{sW}, 15')
e(f's_add_u32 s{sWoff}, s{sWoff}, s{sHG128}')
e(f's_lshl_b32 s{sFill}, s{sW}, 12')
e(f's_mov_b32 s{sC}, 0')
e('s_branch L_att_entry')

def pair(par, ld_off):
    K = aK + 8 * par; Kn = aK + 8 * (par ^ 1)
    V = aV + 16 * par; Vn = aV + 16 * (par ^ 1)
    def ex(S, i): e(f'v_exp_f32 v{S+i}, v{S+i}')
    ex(aS0, 0); ex(aS0, 1)
    e(f'v_smfmac_f32_32x32x32_bf16 {vr(aO,16)}, {vr(Vn+12,4)}, {vr(aS1+8,8)}, v{vIdx}')
    e(f's_mov_b64 exec, {sr(sVM,2)}')
    for j in range(4):
        e(f'ds_read_b128 {vr(Vn+4*j,4)}, v{vVa} offset:{ld_off+(j>>1)*2048+1024+(j&1)*512}')
    e('s_mov_b64 exec, -1')
    for i in range(2, 5): ex(aS0, i)
    e(f'v_mfma_f32_32x32x16_bf16 {vr(aS1,16)}, {vr(K+4,4)}, {vr(vQ,4)}, {vr(aC,16)}')
    e(f'ds_read_b128 {vr(Kn,4)}, v{vKa} offset:{ld_off}')
    e(f'ds_read_b128 {vr(Kn+4,4)}, v{vKa} offset:{ld_off+2048}')
    for i in range(5, 10): ex(aS0, i)
    e(f'v_smfmac_f32_32x32x32_bf16 {vr(aO,16)}, {vr(V,4)}, {vr(aS0,8)}, v{vIdx}')
    for i in range(10, 16): ex(aS0, i)
    ex(aS1, 0); ex(aS1, 1)
    e(f'v_smfmac_f32_32x32x32_bf16 {vr(aO,16)}, {vr(V+4,4)}, {vr(aS0+8,8)}, v{vIdx}')
    e('s_waitcnt lgkmcnt(0)')
    for i in range(2, 5): ex(aS1, i)
    e(f'v_mfma_f32_32x32x16_bf16 {vr(aS0,16)}, {vr(Kn,4)}, {vr(vQ,4)}, {vr(aC,16)}')
    for i in range(5, 10): ex(aS1, i)
    e(f'v_smfmac_f32_32x32x32_bf16 {vr(aO,16)}, {vr(V+8,4)}, {vr(aS1,8)}, v{vIdx}')
    for i in range(10, 16): ex(aS1, i)

e('.p2align 6')
lab('L_att_top')
e(f'v_add_u32 v{vKa}, {SLOT}, v{vKa}')
e(f'v_add_u32 v{vVa}, {SLOT}, v{vVa}')
e('s_waitcnt vmcnt(0)')
e('s_barrier')
e(f's_mov_b32 m0, s{sFill}')
e(f's_add_u32 s{sT0}, s{sWoff}, {8192-1024}')
e(f's_add_u32 s{sT1}, s{sWoff}, {2*(8192-1024)}')
e(f's_add_u32 s{sT2}, s{sWoff}, {3*(8192-1024)}')
e(f's_cmp_ge_u32 s{sC}, 3')
e('s_cbranch_scc1 L_wob')
dma(vW, S_WOA, f's{sWoff}'); dma(vW, S_WOA, f's{sT0}', 1024); dma(vW, S_WOA, f's{sT1}', 2048); dma(vW, S_WOA, f's{sT2}', 3072)
e('s_branch L_woj')
lab('L_wob')
dma(vW, S_WOB, f's{sWoff}'); dma(vW, S_WOB, f's{sT0}', 1024); dma(vW, S_WOB, f's{sT1}', 2048); dma(vW, S_WOB, f's{sT2}', 3072)
e(f's_cmp_eq_u32 s{sC}, 3')
e('s_cbranch_scc0 L_woj')
def o_loads():
    e(f's_add_u32 s{sT0}, s{sOoff}, 4096')
    for j in range(8):
        so = f's{sOoff}' if j < 4 else f's{sT0}'
        o = f' offset:{(j&3)*1024}' if j & 3 else ''
        e(f'buffer_load_dwordx4 {vr(vOf+4*j,4)}, v{vL16}, {sr(S_WS,4)}, {so} offen{o} sc1')
o_loads()
lab('L_woj')
e(f's_xor_b32 s{sWoff}, s{sWoff}, {256*1024}')
e(f's_add_u32 s{sFill}, s{sFill}, {SLOT}')
pair(1, 0)
e(f's_cmp_eq_u32 s{sC}, 4')
e('s_cbranch_scc1 L_att_done')
lab('L_att_entry')
for p in range(7):
    pair(p & 1, (p + 1) * 4096)
e(f's_add_u32 s{sC}, s{sC}, 1')
e('s_branch L_att_top')
lab('L_att_done')
e('s_nop 1')
e(f'v_smfmac_f32_32x32x32_bf16 {vr(aO,16)}, {vr(aV+16+12,4)}, {vr(aS1+8,8)}, v{vIdx}')
stamp()
e(f'v_lshlrev_b32 v{vT0}, 9, v{vH}')
e(f'v_sub_u32 v{vA4}, v{vWl}, v{vT0}')
e(f's_lshr_b32 s{sT1}, s{sW}, 1')
e(f's_lshl_b32 s{sT2}, s{sT1}, 14')
e(f'v_add_u32 v{vA4}, s{sT2}, v{vA4}')
e(f'v_xor_b32 v{vA5}, 64, v{vA4}')
e(f'v_xor_b32 v{vT0}, v{vH}, v{vI}')
e(f'v_lshlrev_b32 v{vT0}, 4, v{vT0}')
e(f'v_lshl_add_u32 v{vT0}, v{vN}, 8, v{vT0}')
e(f's_lshl_b32 s{sT2}, s{sW}, 13')
e(f'v_add_u32 v{vA0}, s{sT2}, v{vT0}')
e(f's_mov_b32 s{sT0}, 0xfffffffe')
lab('L_att_check')
e(f'v_add_f32 v{vT1}, abs(v{aO}), abs(v{aO+1})')
e(f'v_add_f32 v{vT2}, abs(v{aO+2}), abs(v{aO+3})')
e(f'v_add_f32 v{vT1}, v{vT1}, abs(v{aO+4})')
e(f'v_add_f32 v{vT2}, v{vT2}, abs(v{aO+5})')
e(f'v_add_f32 v{vT1}, v{vT1}, abs(v{aO+6})')
e(f'v_add_f32 v{vT2}, v{vT2}, abs(v{aO+7})')
e(f'v_add_f32 v{vT1}, v{vT1}, v{aO+8}')
e(f'v_add_f32 v{vT1}, v{vT1}, v{vT2}')
e(f'v_mov_b32 v{vT2}, 0x7e000000')
e(f'v_cmp_nlt_f32 vcc, v{vT1}, v{vT2}')
e('s_cbranch_vccnz L_fallback')
lab('L_att_ok')
norm_store(aO, sOBslot, vT1)
e(f'v_lshrrev_b32 v{vT0}, 3, v0')
e(f's_lshl_b32 s{sT2}, s{sT1}, 3')
e(f'v_add_u32 v{vT0}, s{sT2}, v{vT0}')
e(f'v_and_b32 v{vT1}, 7, v0')
e(f'v_lshlrev_b32 v{vT2}, 1, v{vT1}')
e(f'v_and_b32 v{vT3}, 15, v{vT0}')
e(f'v_xor_b32 v{vT2}, v{vT2}, v{vT3}')
e(f'v_lshlrev_b32 v{vT2}, 4, v{vT2}')
e(f'v_lshl_add_u32 v{vT2}, v{vT0}, 8, v{vT2}')
e(f's_and_b32 s{sT2}, s{sW}, 1')
e(f's_lshl_b32 s{sT3}, s{sT2}, 13')
e(f'v_add_u32 v{vA1}, s{sT3}, v{vT2}')
e(f'v_xor_b32 v{vA2}, 16, v{vA1}')
e(f'v_lshlrev_b32 v{vT1}, 4, v{vT1}')
e(f'v_lshl_add_u32 v{vA3}, v{vT0}, 11, v{vT1}')
e(f's_lshl_b32 s{sOutOff}, s{sRB}, 17')
e(f's_lshl_b32 s{sT2}, s{sT2}, 16')
e(f's_add_u32 s{sOutOff}, s{sOutOff}, s{sT2}')
e(f's_add_u32 s{sOutOff}, s{sOutOff}, s{sHG128}')
e(f's_mov_b32 s{sTail}, 0')
e(f's_mov_b32 s{sSpin}, 100000')
e('s_branch L_tail_chk')

cm('---- tail: out projections ----')
tA, tW = 16, 48
lab('L_tail_retry')
e('s_sleep 1')
o_loads()
lab('L_tail_top')
e('s_waitcnt vmcnt(0)')
lab('L_tail_chk')
e(f'v_max3_u32 v{vT0}, v{vOf}, v{vOf+1}, v{vOf+2}')
e(f'v_max3_u32 v{vT1}, v{vOf+3}, v{vOf+4}, v{vOf+5}')
for k in range(6, 32, 4):
    e(f'v_max3_u32 v{vT0}, v{vT0}, v{vOf+k}, v{vOf+k+1}')
    if k + 3 < 32: e(f'v_max3_u32 v{vT1}, v{vT1}, v{vOf+k+2}, v{vOf+k+3}')
e(f'v_max_u32 v{vT0}, v{vT0}, v{vT1}')
e(f'v_cmp_eq_u32 vcc, -1, v{vT0}')
e(f's_sub_u32 s{sSpin}, s{sSpin}, 1')
e('s_cbranch_scc1 L_tail_go')
e('s_cbranch_vccnz L_tail_retry')
lab('L_tail_go')
def t_reads(s):
    x = tW + 8 * s
    e(f'ds_read_b64_tr_b16 {vr(x,2)}, v{vA4} offset:{s*2048}')
    e(f'ds_read_b64_tr_b16 {vr(x+2,2)}, v{vA4} offset:{s*2048+1024}')
    e(f'ds_read_b64_tr_b16 {vr(x+4,2)}, v{vA5} offset:{s*2048}')
    e(f'ds_read_b64_tr_b16 {vr(x+6,2)}, v{vA5} offset:{s*2048+1024}')
def t_mfma(s):
    x = tW + 8 * s
    c0 = '0' if s == 0 else vr(tA,16)
    c1 = '0' if s == 0 else vr(tA+16,16)
    e(f'v_mfma_f32_32x32x16_bf16 {vr(tA,16)}, {vr(x,4)}, {vr(vOf+4*s,4)}, {c0}')
    e(f'v_mfma_f32_32x32x16_bf16 {vr(tA+16,16)}, {vr(x+4,4)}, {vr(vOf+4*s,4)}, {c1}')
t_reads(0); t_reads(1); t_reads(2)
for s in range(8):
    nleft = min(8, s + 3) - (s + 1)
    e(f's_waitcnt lgkmcnt({4*nleft})')
    t_mfma(s)
    if s + 3 < 8: t_reads(s + 3)
e(f's_cmp_lg_u32 s{sTail}, 0')
e('s_cbranch_scc1 L_tail_nold')
e(f's_add_u32 s{sOoff}, s{sOoff}, {hex(WS_OB-WS_OA)}')
e('s_waitcnt vmcnt(0)')
o_loads()
lab('L_tail_nold')
e('s_barrier')
e('s_nop 8')
for ct in range(2):
    for j in range(4):
        xr = (ct*8 + 2*j) << 4
        if xr:
            e(f'v_xor_b32 v{vT0+j}, {xr}, v{vA0}')
            e(f'ds_write_b128 v{vT0+j}, {vr(tA+16*ct+4*j,4)}')
        else:
            e(f'ds_write_b128 v{vA0}, {vr(tA,4)}')
e('s_waitcnt lgkmcnt(0)')
e('s_barrier')
for kq in range(4):
    e(f'ds_read_b128 {vr(tW+8*kq,4)}, v{vA1} offset:{kq*16384}')
    e(f'ds_read_b128 {vr(tW+8*kq+4,4)}, v{vA2} offset:{kq*16384}')
for a in (vA0, vA1, vA2, vA4, vA5): e(f'v_add_u32 v{a}, {2*SLOT}, v{a}')
e('s_waitcnt lgkmcnt(4)')
for i in range(0, 8, 2): e(f'v_pk_add_f32 {vr(tW+i,2)}, {vr(tW+i,2)}, {vr(tW+8+i,2)}')
e('s_waitcnt lgkmcnt(0)')
for i in range(0, 8, 2): e(f'v_pk_add_f32 {vr(tW+16+i,2)}, {vr(tW+16+i,2)}, {vr(tW+24+i,2)}')
for i in range(0, 8, 2): e(f'v_pk_add_f32 {vr(tW+i,2)}, {vr(tW+i,2)}, {vr(tW+16+i,2)}')
for i in range(4): e(f'v_cvt_pk_bf16_f32 v{112+i}, v{tW+2*i}, v{tW+2*i+1}')
e(f'buffer_store_dwordx4 {vr(112,4)}, v{vA3}, {sr(S_OUT,4)}, s{sOutOff} offen')
e(f's_add_u32 s{sOutOff}, s{sOutOff}, 1024')
e(f's_add_u32 s{sTail}, s{sTail}, 1')
e(f's_cmp_lt_u32 s{sTail}, 2')
if STAMPS:
    e('s_cbranch_scc0 L_tail_fin')
    stamp()
    e('s_branch L_tail_top')
    lab('L_tail_fin')
    e('s_waitcnt vmcnt(0)')
    stamp()
    e('s_waitcnt lgkmcnt(0)')
    n = NSTAMP[0]
    for i in range(n): e(f'v_mov_b32 v{16+i}, s{sST+2*i}')
    for i in range(n, 12): e(f'v_mov_b32 v{16+i}, 0')
    e(f's_getreg_b32 s{sT0}, hwreg(HW_REG_XCC_ID)')
    e(f'v_mov_b32 v28, s{sT0}')
    e(f'v_mov_b32 v29, s{sSpin}')
    e(f'v_mov_b32 v30, s{sFB}')
    e(f'v_mov_b32 v31, 0')
    e(f's_lshl_b32 s{sT0}, s2, 3')
    e(f's_add_u32 s{sT0}, s{sT0}, s{sW}')
    e(f's_lshl_b32 s{sT0}, s{sT0}, 6')
    e(f's_add_u32 s{sT0}, s{sT0}, {hex(WS_STAMP)}')
    e('v_mov_b32 v0, 0')
    e('s_mov_b64 exec, 1')
    for i in range(4):
        e(f'buffer_store_dwordx4 {vr(16+4*i,4)}, v0, {sr(S_WS,4)}, s{sT0} offen offset:{16*i}')
else:
    e('s_cbranch_scc1 L_tail_top')
lab('L_end')
e('s_endpgm')

cm('---- fallback: true max, K/V from global ----')
lab('L_fallback')
e(f's_cmp_lg_u32 s{sFB}, 0')
e('s_cbranch_scc1 L_att_ok')
e(f's_mov_b32 s{sFB}, 1')
e(f'v_mov_b32 v{vT1}, 0xff800000')
e(f's_mov_b32 s{sT2}, 0')
lab('L_fb_max')
e(f'buffer_load_dwordx4 {vr(aK,4)}, v{vL16}, {sr(S_WS,4)}, s{sT2} offen sc1')
e('s_waitcnt vmcnt(0)')
e(f'v_mfma_f32_32x32x16_bf16 {vr(aS0,16)}, {vr(aK,4)}, {vr(vQ,4)}, 0')
e('s_nop 15')
for k in range(0, 16, 2): e(f'v_max3_f32 v{vT1}, v{vT1}, v{aS0+k}, v{aS0+k+1}')
e(f's_add_u32 s{sT2}, s{sT2}, 2048')
e(f's_cmp_lt_u32 s{sT2}, {64*2048}')
e('s_cbranch_scc1 L_fb_max')
e(f'v_mov_b32 v{vT2}, v{vT1}')
e('s_nop 1')
e(f'v_permlane32_swap_b32 v{vT1}, v{vT2}')
e(f'v_max_f32 v{vT1}, v{vT1}, v{vT2}')
for i in range(16): e(f'v_sub_f32 v{aC+i}, 0, v{vT1}')
for i in range(16): e(f'v_mov_b32 v{aO+i}, 0')
e(f'v_lshlrev_b32 v{vT2}, 4, v{vI}')
e(f'v_lshl_add_u32 v{vT2}, v{vH}, 8, v{vT2}')
e(f's_mov_b32 s{sT2}, 0')
lab('L_fb_pv')
e(f'buffer_load_dwordx4 {vr(aK,4)}, v{vL16}, {sr(S_WS,4)}, s{sT2} offen sc1')
e(f's_mov_b64 exec, {sr(sVM,2)}')
e(f'buffer_load_dwordx4 {vr(aV,4)}, v{vT2}, {sr(S_WS,4)}, s{sT2} offen offset:1024 sc1')
e(f'buffer_load_dwordx4 {vr(aV+4,4)}, v{vT2}, {sr(S_WS,4)}, s{sT2} offen offset:1536 sc1')
e('s_mov_b64 exec, -1')
e('s_waitcnt vmcnt(0)')
e(f'v_mfma_f32_32x32x16_bf16 {vr(aS0,16)}, {vr(aK,4)}, {vr(vQ,4)}, {vr(aC,16)}')
e('s_nop 15')
for i in range(16): e(f'v_exp_f32 v{aS0+i}, v{aS0+i}')
e('s_nop 1')
e(f'v_smfmac_f32_32x32x32_bf16 {vr(aO,16)}, {vr(aV,4)}, {vr(aS0,8)}, v{vIdx}')
e(f'v_smfmac_f32_32x32x32_bf16 {vr(aO,16)}, {vr(aV+4,4)}, {vr(aS0+8,8)}, v{vIdx}')
e(f's_add_u32 s{sT2}, s{sT2}, 2048')
e(f's_cmp_lt_u32 s{sT2}, {64*2048}')
e('s_cbranch_scc1 L_fb_pv')
e('s_nop 15')
e('s_branch L_att_ok')

HDR = open(f'cdna_kernels/{NAME}.s.ref').read().split('\n')
hdr = []
for line in HDR:
    if line.startswith('; @launch'): break
    hdr.append(line)
txt = '\n'.join(hdr) + '\n; @launch grid=(256,1,1) block=(512,1,1) lds=163840\n'
txt += f'''.amdgcn_target "amdgcn-amd-amdhsa--gfx950"
.text
.globl {NAME}_kernel
.p2align 8
.type {NAME}_kernel,@function
'''
txt += '\n'.join(L) + '\n'
txt += f'''.section .rodata,"a"
.p2align 6
.amdhsa_kernel {NAME}_kernel
  .amdhsa_next_free_vgpr 192
  .amdhsa_next_free_sgpr 102
  .amdhsa_accum_offset 192
  .amdhsa_group_segment_fixed_size 0
  .amdhsa_kernarg_size 88
  .amdhsa_user_sgpr_count 2
  .amdhsa_user_sgpr_kernarg_segment_ptr 1
  .amdhsa_system_sgpr_workgroup_id_x 1
.end_amdhsa_kernel
'''
open(OUT, 'w').write(txt)
print('wrote', OUT, len(L), 'lines')
```

```python
import sys, struct

NAME = 'concat_heads__sliding_local_dilated__grouped_kv_mqa__prompt'
STAMPS = '--stamps' in sys.argv
args = [a for a in sys.argv[1:] if not a.startswith('--')]
OUT = args[0] if args else f'cdna_kernels/{NAME}.s'

L = []
def e(s):
    for line in s.strip('\n').split('\n'):
        L.append('    ' + line.strip() if not line.strip().endswith(':') else line.strip())
def lab(s): L.append(s + ':')
def cm(s): L.append('    ; ' + s)
def vr(i, n): return f'v[{i}:{i+n-1}]'
def sr(i, n): return f's[{i}:{i+n-1}]'
def f32(x): return '0x%08x' % struct.unpack('<I', struct.pack('<f', x))[0]

SLOT = 32768
R = 131072
WS_KV = 0
WS_OA = 0x100000
WS_OB = 0x300000
WS_STAMP = 0x500000
WS_SIZE = 0x600000
CSCALE = 0.25 * 1.4426950408889634
MOFF = 40.0
ONES = R + 16384 + 0

S_XA, S_WQKV, S_WOA, S_XB, S_WQ, S_WKV, S_WOB, S_OUT, S_WS = 8, 12, 16, 20, 24, 28, 32, 36, 40
S_DBG = 44
S_WV = 46
sW = 48
sRB, sHG = 49, 50
sT0, sT1, sT2, sT3 = 51, 52, 53, 54
sC = 55
sXbase, sXstep, sWbase = 56, 57, 58
sAx, sAw = 59, 60
sFill = 61
sKV = 62
sVM = 64
sOoff = 66
sOutOff = 67
sWoff = 68
sSpin = 69
sOAslot, sOBslot = 70, 71
sFB = 72
sHG128 = 73
sTail = 74
sST = 76

vL16, vW, vWA, vXA = 1, 2, 3, 4
vN, vH, vI = 5, 6, 7
vT0, vT1, vT2, vT3 = 8, 9, 10, 11
vA0, vA1, vA2, vA3, vA4, vA5 = 12, 13, 14, 15, 136, 137
vXl, vWl = 138, 139
vPoll = 140
vIdx = 141
vMask = 16
vQacc = 40
vAcc = 56
vFr = 88
vQ = 144
aS0, aS1, aC, aO = 16, 32, 48, 64
aK = 80
aV = 96
vOf = 160
NSTAMP = [0]
STMODE = ([a[5:] for a in sys.argv if a.startswith('--st=')] + ['all'])[0]
def stamp2(i):
    e(f's_memrealtime {sr(sST+4*i,2)}')
    e(f's_memtime {sr(sST+4*i+2,2)}')
def stamp():
    if STAMPS and STMODE == 'all':
        i = NSTAMP[0]; NSTAMP[0] += 1
        assert sST + 2*i + 1 <= 101
        e(f's_memrealtime {sr(sST+2*i,2)}')

def cstamp(i):
    if STAMPS and STMODE == 'all': e(f's_memtime {sr(sST+2*i,2)}')
    if STAMPS and STMODE.startswith('att'): stamp2(0 if i == 10 else 5)

def dma(voff, srd, soff, off=0, sc1=False):
    o = f' offset:{off}' if off else ''
    c = ' sc1' if sc1 else ''
    e(f'buffer_load_dwordx4 v{voff}, {sr(srd,4)}, {soff} offen{o}{c} lds')

lab(f'{NAME}_kernel')
stamp()
e('s_cmp_ge_u32 s2, 256')
e('s_cbranch_scc1 L_end')
for reg, off in ((S_XB,24),(S_WS,80),(S_WKV,40),(S_WV,48),(S_WQ,32),(S_XA,0),(S_WQKV,8),(S_WOA,16),(S_WOB,56),(S_OUT,64),(S_DBG,72)):
    e(f's_load_dwordx2 {sr(reg,2)}, s[0:1], {off}')
e(f'v_lshrrev_b32 v{vT0}, 6, v0')
e(f'v_and_b32 v0, 63, v0')
e(f'v_readfirstlane_b32 s{sW}, v{vT0}')
for reg, size in ((S_XB,0x200000),(S_WS,WS_SIZE),(S_WKV,0x4000),(S_WQ,0x80000),(S_XA,0x200000),(S_WQKV,0x180000),(S_WOA,0x80000),(S_WOB,0x80000),(S_OUT,0x400000)):
    e(f's_mov_b32 s{reg+2}, {hex(size)}')
    e(f's_mov_b32 s{reg+3}, 0x20000')
e(f's_and_b32 s{sT0}, s2, 7')
e(f's_lshr_b32 s{sT1}, s2, 3')
e(f's_lshl_b32 s{sRB}, s{sT0}, 2')
e(f's_and_b32 s{sT0}, s{sT1}, 3')
e(f's_add_u32 s{sRB}, s{sRB}, s{sT0}')
e(f's_lshr_b32 s{sHG}, s{sT1}, 2')
e(f's_lshl_b32 s{sHG128}, s{sHG}, 7')
e(f'v_lshlrev_b32 v{vL16}, 4, v0')
e(f'v_and_b32 v{vN}, 31, v0')
e(f'v_lshrrev_b32 v{vH}, 5, v0')
e(f'v_and_b32 v{vI}, 15, v0')
e(f'v_lshrrev_b32 v{vT0}, 4, v0')
e(f's_lshl_b32 s{sT0}, s{sW}, 3')
e(f'v_add_u32 v{vT1}, s{sT0}, v{vT0}')
e(f'v_and_b32 v{vT2}, 15, v{vT1}')
e(f'v_xor_b32 v{vT2}, v{vT2}, v{vI}')
e(f'v_lshlrev_b32 v{vT2}, 4, v{vT2}')
e(f'v_lshl_add_u32 v{vA0}, v{vT1}, 10, v{vT2}')
e(f'v_xor_b32 v{vA1}, 64, v{vA0}')
e(f'v_add_u32 v{vA1}, {4096-1024}, v{vA1}')
e(f'v_lshrrev_b32 v{vT1}, 3, v0')
e(f'v_and_b32 v{vT2}, 7, v0')
e(f'v_and_b32 v{vT3}, 1, v{vT0}')
e(f'v_lshlrev_b32 v{vT3}, 2, v{vT3}')
e(f'v_xor_b32 v{vT3}, v{vT3}, v{vT2}')
e(f'v_lshlrev_b32 v{vT3}, 4, v{vT3}')
e(f'v_lshl_add_u32 v{vW}, v{vT1}, 10, v{vT3}')
e(f'v_mul_u32_u24 v{vWA}, 3072, v{vT1}')
e(f'v_add_u32 v{vWA}, v{vWA}, v{vT3}')
e(f'v_xor_b32 v{vT3}, v{vT2}, v{vT0}')
e(f'v_lshlrev_b32 v{vT3}, 4, v{vT3}')
e(f'v_lshl_add_u32 v{vA2}, v{vT1}, 10, v{vT3}')
e(f'v_xor_b32 v{vA3}, 64, v{vA2}')
e(f's_and_b32 s{sT0}, s{sW}, 1')
e(f's_lshl_b32 s{sT0}, s{sT0}, 6')
e(f'v_xor_b32 v{vXA}, s{sT0}, v{vA2}')
e(f's_and_b32 s{sT0}, s{sW}, 1')
e(f's_lshl_b32 s{sT1}, s{sRB}, 1')
e(f's_add_u32 s{sT0}, s{sT0}, s{sT1}')
e(f's_lshl_b32 s{sT0}, s{sT0}, 5')
e(f's_lshr_b32 s{sT2}, s{sW}, 1')
e(f's_lshl_b32 s{sT3}, s{sT2}, 3')
e(f's_add_u32 s{sOoff}, s{sT0}, s{sT3}')
e(f's_lshl_b32 s{sOoff}, s{sOoff}, 10')
e(f's_add_u32 s{sOoff}, s{sOoff}, {hex(WS_OA)}')
e(f's_lshl_b32 s{sT1}, s{sHG}, 2')
e(f's_add_u32 s{sT0}, s{sT0}, s{sT1}')
e(f's_add_u32 s{sOAslot}, s{sT0}, s{sT2}')
e(f's_lshl_b32 s{sOAslot}, s{sOAslot}, 10')
e(f's_add_u32 s{sOAslot}, s{sOAslot}, {hex(WS_OA)}')
e(f's_and_b32 s{sT1}, s{sW}, 2')
e(f's_lshr_b32 s{sT3}, s{sW}, 2')
e(f's_add_u32 s{sT1}, s{sT1}, s{sT3}')
e(f's_add_u32 s{sOBslot}, s{sT0}, s{sT1}')
e(f's_lshl_b32 s{sOBslot}, s{sOBslot}, 10')
e(f's_add_u32 s{sOBslot}, s{sOBslot}, {hex(WS_OB)}')
for i in range(4): e(f'v_mov_b32 v{vFr+i}, -1')
e(f's_lshl_b32 s{sT0}, s{sRB}, 16')
e(f's_lshl_b32 s{sT1}, s{sW}, 11')
e(f's_bitcmp1_b32 s{sHG}, 0')
e('s_waitcnt lgkmcnt(0)')
e(f's_cselect_b32 s{S_WKV}, s{S_WV}, s{S_WKV}')
e(f's_cselect_b32 s{S_WKV+1}, s{S_WV+1}, s{S_WKV+1}')
cm('---- initial fills ----')
for c in range(4):
    e(f's_add_u32 m0, s{sT1}, {c*SLOT}')
    if c: e(f's_add_u32 s{sT0}, s{sT0}, 256')
    else: e('s_nop 0')
    dma(vA0, S_XB, f's{sT0}')
    dma(vA1, S_XB, f's{sT0}', 1024)
e(f'buffer_store_dwordx4 {vr(vFr,4)}, v{vL16}, {sr(S_WS,4)}, s{sOAslot} offen sc1')
e(f'buffer_store_dwordx4 {vr(vFr,4)}, v{vL16}, {sr(S_WS,4)}, s{sOBslot} offen sc1')
e(f's_add_u32 m0, s{sT1}, {R}')
e(f's_lshl_b32 s{sT2}, s{sW}, 14')
dma(vL16, S_WKV, f's{sT1}')
dma(vL16, S_WKV, f's{sT1}', 1024)
e(f's_add_u32 s{sT2}, s{sT2}, s{sHG128}')
e(f's_add_u32 s{sT3}, s{sT2}, {8192-1024}')
for c in range(4):
    e(f's_add_u32 m0, s{sT1}, {c*SLOT+16384}')
    if c:
        e(f's_add_u32 s{sT2}, s{sT2}, {128*1024}')
        e(f's_add_u32 s{sT3}, s{sT3}, {128*1024}')
    else: e('s_nop 0')
    dma(vW, S_WQ, f's{sT2}')
    dma(vW, S_WQ, f's{sT3}', 1024)
e(f's_lshl_b32 s{sT0}, s{sRB}, 16')
e(f's_sub_u32 s{sT2}, s{sT0}, 16384')
e(f's_max_i32 s{sT2}, s{sT2}, 0')
e(f's_lshl_b32 s{sT3}, s{sW}, 7')
e(f's_add_u32 s{sT2}, s{sT2}, s{sT3}')
e(f's_add_u32 m0, s{sT1}, {R+16384}')
e(f's_add_u32 s{sT3}, s{sT2}, {8192-1024}')
dma(vA2, S_XA, f's{sT2}')
dma(vA3, S_XA, f's{sT3}', 1024)
stamp()
cm('---- setup while loads fly ----')
e(f's_lshl_b32 s{sT1}, s{sW}, 13')
e(f's_add_u32 s{sAx}, s{sT0}, s{sT1}')
e(f's_mul_i32 s{sAw}, s{sW}, {8*3072}')
e(f's_add_u32 s{sAw}, s{sAw}, s{sHG128}')
e(f's_lshl_b32 s{sFill}, s{sW}, 10')
e(f's_lshl_b32 s{sKV}, s{sW}, 12')
e(f's_mov_b32 s{sVM}, 0xffff')
e(f's_mov_b32 s{sVM+1}, 0xffff')
e(f's_mov_b32 s{sFB}, 0')
e(f'v_mov_b32 v{vIdx}, 0xdddddddd')
e(f'v_lshlrev_b32 v{vT0}, 2, v{vH}')
e(f'v_sub_u32 v{vT0}, v{vN}, v{vT0}')
e(f'v_add_u32 v{vT0}, 18, v{vT0}')
e(f'v_mov_b32 v{vT2}, 0x5555')
e(f'v_mov_b32 v{vT3}, 0')
e(f'v_lshlrev_b64 {vr(vT2,2)}, v{vT0}, {vr(vT2,2)}')
e(f's_and_b32 s{sT1}, s{sW}, 1')
e(f's_or_b32 s{sT1}, s{sT1}, s{sRB}')
e(f's_cmp_eq_u32 s{sT1}, 0')
e(f's_cselect_b32 s{sT1}, 0, -1')
e(f'v_and_b32 v{vT2}, s{sT1}, v{vT2}')
e(f'v_not_b32 v{vT2}, v{vT2}')
e(f'v_not_b32 v{vT3}, v{vT3}')
e(f's_mov_b32 s{sT1}, 0xff800000')
for r in range(16):
    e(f'v_bfe_i32 v{vMask+r}, v{vT3}, {8*(r>>2)+(r&3)}, 1')
for r in range(8, 16):
    e(f'v_bfe_i32 v{vMask+8+r}, v{vT2}, {8*(r>>2)+(r&3)}, 1')
for r in range(24):
    e(f'v_and_b32 v{vMask+r}, s{sT1}, v{vMask+r}')
e(f'v_lshrrev_b32 v{vT0}, 2, v{vI}')
e(f'v_lshl_add_u32 v{vT0}, v{vH}, 3, v{vT0}')
e(f'v_lshlrev_b32 v{vT0}, 7, v{vT0}')
e(f'v_and_b32 v{vT1}, 8, v{vI}')
e(f'v_lshl_add_u32 v{vT0}, v{vT1}, 3, v{vT0}')
e(f'v_and_b32 v{vT1}, 16, v0')
e(f'v_lshl_add_u32 v{vT0}, v{vT1}, 1, v{vT0}')
e(f'v_and_b32 v{vT1}, 3, v0')
e(f'v_lshl_add_u32 v{vWl}, v{vT1}, 3, v{vT0}')
e(f's_lshr_b32 s{sT1}, s{sW}, 2')
e(f's_lshl_b32 s{sT2}, s{sT1}, 3')
e(f'v_add_u32 v{vT0}, s{sT2}, v{vH}')
e(f'v_xor_b32 v{vT0}, v{vT0}, v{vI}')
e(f'v_lshlrev_b32 v{vT0}, 4, v{vT0}')
e(f'v_lshl_add_u32 v{vT0}, v{vN}, 8, v{vT0}')
e(f's_and_b32 s{sT2}, s{sW}, 1')
e(f's_lshl_b32 s{sT2}, s{sT2}, 13')
e(f'v_add_u32 v{vA0}, s{sT2}, v{vT0}')
e(f'v_xor_b32 v{vA1}, 32, v{vA0}')
e(f'v_xor_b32 v{vA2}, 64, v{vA0}')
e(f'v_xor_b32 v{vA3}, 96, v{vA0}')
e(f's_lshl_b32 s{sT1}, s{sT1}, 13')
e(f's_add_u32 s{sT1}, s{sT1}, 16384')
e(f's_and_b32 s{sT2}, s{sW}, 2')
e(f's_lshl_b32 s{sT2}, s{sT2}, 5')
e(f'v_xor_b32 v{vA4}, s{sT2}, v{vWl}')
e(f'v_add_u32 v{vA4}, s{sT1}, v{vA4}')
e(f'v_lshrrev_b32 v{vT1}, 4, v0')
e(f's_and_b32 s{sT1}, s{sW}, 1')
e(f's_lshl_b32 s{sT1}, s{sT1}, 3')
e(f'v_add_u32 v{vT0}, s{sT1}, v{vT1}')
e(f'v_xor_b32 v{vT0}, v{vT0}, v{vI}')
e(f'v_lshlrev_b32 v{vT0}, 4, v{vT0}')
e(f'v_lshl_add_u32 v{vT0}, v{vI}, 8, v{vT0}')
e(f's_lshr_b32 s{sT1}, s{sW}, 1')
e(f's_lshl_b32 s{sT1}, s{sT1}, 15')
e(f's_lshr_b32 s{sT2}, s{sHG}, 1')
e(f's_lshl_b32 s{sT2}, s{sT2}, 12')
e(f's_add_u32 s{sT1}, s{sT1}, s{sT2}')
e(f'v_add_u32 v{vT0}, s{sT1}, v{vT0}')
e(f'v_xor_b32 v{vT2}, 64, v{vT0}')
e(f'v_lshlrev_b32 v{vT1}, 8, v{vT1}')
e(f'v_lshl_add_u32 v{vT1}, v{vI}, 3, v{vT1}')
e(f's_lshl_b32 s{sT1}, s{sW}, 11')
e(f's_add_u32 s{sT1}, s{sT1}, {R}')
e(f'v_add_u32 v{vT1}, s{sT1}, v{vT1}')
e(f'v_add_u32 v{vT3}, s{sT1}, v{vL16}')
e(f'v_bfe_u32 v{vXl}, v{vN}, 1, 3')
e(f'v_xor_b32 v{vXl}, v{vXl}, v{vH}')
e(f'v_lshlrev_b32 v{vXl}, 4, v{vXl}')
e(f's_cmp_ge_u32 s{sW}, 6')
e(f's_cselect_b32 s{sT1}, 15, 31')
e(f'v_and_b32 v{vA5}, s{sT1}, v{vN}')
e(f'v_lshl_add_u32 v{vXl}, v{vA5}, 7, v{vXl}')
e(f's_and_b32 s{sT1}, s{sW}, 1')
e(f's_lshl_b32 s{sT1}, s{sT1}, 12')
e(f's_cmp_ge_u32 s{sW}, 6')
e(f's_cselect_b32 s{sXbase}, {R+16384}, s{sT1}')
e(f's_cselect_b32 s{sXstep}, 1, 16')
e(f's_lshl_b32 s{sXstep}, s{sXstep}, 11')
e(f's_lshr_b32 s{sT1}, s{sW}, 1')
e(f's_sub_u32 s{sT2}, s{sW}, 5')
e(f's_cmp_ge_u32 s{sW}, 6')
e(f's_cselect_b32 s{sT1}, s{sT2}, s{sT1}')
e(f's_lshl_b32 s{sT1}, s{sT1}, 13')
e(f's_add_u32 s{sWbase}, s{sT1}, 8192')
for i in range(16): e(f'v_mov_b32 v{vQacc+i}, 0')
for i in range(32): e(f'v_mov_b32 v{vAcc+i}, 0')

def a_fill():
    e(f's_mov_b32 m0, s{sFill}')
    e(f's_add_u32 s{sT0}, s{sAw}, 1024')
    dma(vXA, S_XA, f's{sAx}')
    e(f's_add_u32 m0, s{sFill}, 8192')
    e(f's_add_u32 s{sT1}, s{sAw}, 2048')
    dma(vWA, S_WQKV, f's{sAw}')
    e(f's_add_u32 m0, s{sFill}, 16384')
    e(f's_add_u32 s{sAx}, s{sAx}, 128')
    dma(vWA, S_WQKV, f's{sT0}')
    e(f's_add_u32 m0, s{sFill}, 24576')
    e(f's_add_u32 s{sAw}, s{sAw}, {64*3072}')
    dma(vWA, S_WQKV, f's{sT1}')
    e(f's_add_u32 s{sFill}, s{sFill}, {SLOT}')
    e(f's_and_b32 s{sFill}, s{sFill}, {4*SLOT-1}')

def q_chunk(c):
    base = (c & 1) * SLOT
    for s in range(4):
        x = vFr + 8 * s
        e(f'ds_read_b128 {vr(x,4)}, v{[vA0,vA1,vA2,vA3][s]} offset:{base}')
        e(f'ds_read_b64_tr_b16 {vr(x+4,2)}, v{vA4} offset:{base+s*2048}')
        e(f'ds_read_b64_tr_b16 {vr(x+6,2)}, v{vA4} offset:{base+s*2048+512}')
    if c == 1:
        for a in (vA0, vA1, vA2, vA3, vA4): e(f'v_add_u32 v{a}, {2*SLOT}, v{a}')
    for s in range(4):
        x = vFr + 8 * s
        e(f's_waitcnt lgkmcnt({9-3*s})')
        e(f'v_mfma_f32_32x32x16_bf16 {vr(vQacc,16)}, {vr(x+4,4)}, {vr(x,4)}, {vr(vQacc,16)}')

cm('---- B projections ----')
e('s_waitcnt vmcnt(8)')
e('s_barrier')
stamp()
kx0, kx1, kw0, kw1, kd = vFr+32, vFr+36, vFr+40, vFr+44, vOf
e(f'ds_read_b128 {vr(kx0,4)}, v{vT0}')
e(f'ds_read_b64_tr_b16 {vr(kw0,2)}, v{vT1}')
e(f'ds_read_b64_tr_b16 {vr(kw0+2,2)}, v{vT1} offset:128')
e(f'ds_read_b128 {vr(kx1,4)}, v{vT2}')
e(f'ds_read_b64_tr_b16 {vr(kw1,2)}, v{vT1} offset:1024')
e(f'ds_read_b64_tr_b16 {vr(kw1+2,2)}, v{vT1} offset:1152')
e(f's_bitcmp1_b32 s{sHG}, 0')
e('s_waitcnt lgkmcnt(0)')
e('s_cbranch_scc1 L_kv_v')
e(f'v_mfma_f32_16x16x32_bf16 {vr(kd,4)}, {vr(kw0,4)}, {vr(kx0,4)}, 0')
e(f'v_mfma_f32_16x16x32_bf16 {vr(kd,4)}, {vr(kw1,4)}, {vr(kx1,4)}, {vr(kd,4)}')
e('s_branch L_kv_j')
lab('L_kv_v')
e(f'v_mfma_f32_16x16x32_bf16 {vr(kd,4)}, {vr(kx0,4)}, {vr(kw0,4)}, 0')
e(f'v_mfma_f32_16x16x32_bf16 {vr(kd,4)}, {vr(kx1,4)}, {vr(kw1,4)}, {vr(kd,4)}')
lab('L_kv_j')
q_chunk(0)
e(f'ds_write_b128 v{vT3}, {vr(kd,4)}')
e('s_waitcnt vmcnt(6) lgkmcnt(0)')
e('s_barrier')
e(f's_cmp_lg_u32 s{sW}, 0')
e('s_cbranch_scc1 L_kv_done')
for j in range(8):
    e(f'ds_read_b128 {vr(vOf+4*j,4)}, v{vT3} offset:{j*2048}')
e(f'v_lshrrev_b32 v{vT0}, 4, v0')
e(f'v_and_b32 v{vT1}, 1, v{vT0}')
e(f'v_lshrrev_b32 v{vT2}, 1, v{vT0}')
e(f's_lshr_b32 s{sT0}, s{sHG}, 2')
e(f's_lshl_b32 s{sT1}, s{sRB}, 1')
e(f's_add_u32 s{sT0}, s{sT0}, s{sT1}')
e(f's_lshl_b32 s{sT0}, s{sT0}, 11')
e(f's_bfe_u32 s{sT1}, s{sHG}, 0x10001')
e(f's_bitcmp1_b32 s{sHG}, 0')
e('s_cbranch_scc1 L_kv_av')
e(f'v_lshlrev_b32 v{vT1}, 9, v{vT1}')
e(f'v_lshl_add_u32 v{vT1}, v{vT2}, 3, v{vT1}')
e(f's_lshl_b32 s{sT1}, s{sT1}, 8')
e('s_branch L_kv_aj')
lab('L_kv_av')
e(f'v_lshlrev_b32 v{vT1}, 3, v{vT1}')
e(f'v_lshl_add_u32 v{vT1}, v{vT2}, 8, v{vT1}')
e(f's_lshl_b32 s{sT1}, s{sT1}, 9')
e(f's_add_u32 s{sT1}, s{sT1}, 1024')
lab('L_kv_aj')
e(f'v_lshl_add_u32 v{vT1}, v{vI}, 4, v{vT1}')
e(f's_add_u32 s{sT0}, s{sT0}, s{sT1}')
e('s_waitcnt lgkmcnt(0)')
for st in (4, 2, 1):
    for j in range(st):
        for p in (0, 2):
            a, b = vOf+4*j+p, vOf+4*(j+st)+p
            e(f'v_pk_add_f32 {vr(a,2)}, {vr(a,2)}, {vr(b,2)}')
e(f'v_cvt_pk_bf16_f32 v{vOf+4}, v{vOf}, v{vOf+1}')
e(f'v_cvt_pk_bf16_f32 v{vOf+5}, v{vOf+2}, v{vOf+3}')
e(f'buffer_store_dwordx2 {vr(vOf+4,2)}, v{vT1}, {sr(S_WS,4)}, s{sT0} offen sc1')
lab('L_kv_done')
a_fill()
q_chunk(1)
e('s_waitcnt vmcnt(8)')
e('s_barrier')
a_fill()
q_chunk(2)
e('s_waitcnt vmcnt(10)')
e('s_barrier')
a_fill()
q_chunk(3)
stamp()
e(f's_cmp_lg_u32 s{sW}, 0')
e('s_cbranch_scc1 L_flag_done')
e(f's_and_b32 s{sT0}, s2, 3')
e(f's_lshl_b32 s{sT0}, s{sT0}, 6')
e(f'v_mov_b32 v{vT0}, s{sT0}')
e(f'v_mov_b32 v{vT1}, 1')
e('s_mov_b64 exec, 1')
e('s_waitcnt vmcnt(12)')
e(f'global_atomic_add v{vT0}, v{vT1}, {sr(S_DBG,2)} sc1')
e('s_mov_b64 exec, -1')
lab('L_flag_done')
e(f's_cmp_ge_u32 s{sW}, 4')
e('s_nop 9')
e('s_cbranch_scc1 L_qx_hi')
e(f'ds_write_b128 v{vT3}, {vr(vQacc+8,4)}')
e(f'ds_write_b128 v{vT3}, {vr(vQacc+12,4)} offset:1024')
e('s_branch L_qx_j')
lab('L_qx_hi')
e(f'ds_write_b128 v{vT3}, {vr(vQacc,4)}')
e(f'ds_write_b128 v{vT3}, {vr(vQacc+4,4)} offset:1024')
e('s_waitcnt lgkmcnt(0)')
for i in range(8): e(f'v_mov_b32 v{vQacc+i}, v{vQacc+8+i}')
lab('L_qx_j')
e(f'v_xor_b32 v{vT3}, {4*2048}, v{vT3}')
e(f'v_and_b32 v{vPoll}, 3, v0')
e(f'v_lshlrev_b32 v{vT2}, 6, v{vPoll}')
e(f's_mov_b32 s{sC}, 0')

cm('---- A GEMM loop ----')
lab('L_aloop')
e(f'v_add_u32 v{vA0}, s{sXbase}, v{vXl}')
e(f'v_add_u32 v{vA4}, s{sWbase}, v{vWl}')
e(f'v_xor_b32 v{vA1}, 32, v{vA0}')
e(f'v_xor_b32 v{vA2}, 64, v{vA0}')
e(f'v_xor_b32 v{vA3}, 96, v{vA0}')
e(f'v_xor_b32 v{vA5}, 64, v{vA4}')
e('s_waitcnt vmcnt(8) lgkmcnt(0)')
e(f's_lshl_b32 s{sT0}, s{sC}, 3')
e(f's_add_u32 s{sT0}, s{sT0}, s{sW}')
e(f's_cmp_lg_u32 s{sT0}, {5*8+7}')
e('s_cbranch_scc1 L_nochk')
e(f's_mov_b32 s{sSpin}, 100000')
lab('L_chk')
e(f'v_cmp_ne_u32 vcc, 64, v{vPoll}')
e('s_cbranch_vccz L_nochk')
e(f's_sub_u32 s{sSpin}, s{sSpin}, 1')
e('s_cbranch_scc1 L_nochk')
e('s_sleep 2')
e(f'global_load_dword v{vPoll}, v{vT2}, {sr(S_DBG,2)} sc1')
e('s_waitcnt vmcnt(0)')
e('s_branch L_chk')
lab('L_nochk')
e('s_barrier')
def a_reads(s):
    x = vFr + 12 * s
    e(f'ds_read_b128 {vr(x,4)}, v{[vA0,vA1,vA2,vA3][s]}')
    e(f'ds_read_b64_tr_b16 {vr(x+4,2)}, v{vA4} offset:{s*2048}')
    e(f'ds_read_b64_tr_b16 {vr(x+6,2)}, v{vA4} offset:{s*2048+512}')
    e(f'ds_read_b64_tr_b16 {vr(x+8,2)}, v{vA5} offset:{s*2048}')
    e(f'ds_read_b64_tr_b16 {vr(x+10,2)}, v{vA5} offset:{s*2048+512}')
def a_mfma(s):
    x = vFr + 12 * s
    e(f'v_mfma_f32_32x32x16_bf16 {vr(vAcc,16)}, {vr(x+4,4)}, {vr(x,4)}, {vr(vAcc,16)}')
    e(f'v_mfma_f32_32x32x16_bf16 {vr(vAcc+16,16)}, {vr(x+8,4)}, {vr(x,4)}, {vr(vAcc+16,16)}')
a_reads(0); a_reads(1); a_reads(2)
e(f's_cmp_lg_u32 s{sT0}, {3*8+7}')
e('s_cbranch_scc1 L_nopoll')
e(f'global_load_dword v{vPoll}, v{vT2}, {sr(S_DBG,2)} sc1')
lab('L_nopoll')
e(f's_cmp_ge_u32 s{sC}, 5')
e('s_cbranch_scc1 L_kvfill')
a_fill()
e('s_branch L_filled')
lab('L_kvfill')
e(f's_cmp_eq_u32 s{sC}, 7')
e('s_cbranch_scc1 L_filled')
def kv_fill():
    e(f's_mov_b32 m0, s{sKV}')
    e('s_nop 0')
    for j in range(4): dma(vL16, S_WS, f's{sKV}', 1024*j, sc1=True)
    e(f's_add_u32 s{sKV}, s{sKV}, {SLOT}')
kv_fill()
lab('L_filled')
e('s_waitcnt lgkmcnt(10)')
a_mfma(0)
a_reads(3)
e('s_waitcnt lgkmcnt(10)')
a_mfma(1)
e(f's_add_u32 s{sXbase}, s{sXbase}, s{sXstep}')
e(f's_add_u32 s{sWbase}, s{sWbase}, {SLOT}')
e(f's_and_b32 s{sWbase}, s{sWbase}, {4*SLOT-1}')
e(f's_cmp_ge_u32 s{sW}, 6')
e(f's_cselect_b32 s{sT0}, -1, {4*SLOT-1}')
e(f's_and_b32 s{sXbase}, s{sXbase}, s{sT0}')
e('s_waitcnt lgkmcnt(5)')
a_mfma(2)
e(f's_add_u32 s{sC}, s{sC}, 1')
e(f's_cmp_lt_u32 s{sC}, 8')
e('s_waitcnt lgkmcnt(0)')
a_mfma(3)
e('s_cbranch_scc1 L_aloop')
stamp()

cm('---- finalize B Q ; write A frags ----')
e(f'ds_read_b128 {vr(vFr,4)}, v{vT3}')
e(f'ds_read_b128 {vr(vFr+4,4)}, v{vT3} offset:1024')
e(f's_mov_b32 s{sT0}, {f32(CSCALE)}')
e(f's_lshl_b32 s{sT1}, s{sW}, 12')
e(f's_add_u32 s{sT1}, s{sT1}, {2*SLOT}')
e(f'v_add_u32 v{vA0}, s{sT1}, v{vL16}')
e(f'v_mov_b32 v{vFr+8}, 0x3f803f80')
e(f'v_mov_b32 v{vFr+9}, 0x3f803f80')
e(f'v_lshlrev_b32 v{vA1}, 3, v0')
e(f's_cmp_ge_u32 s{sW}, 2')
e('s_waitcnt lgkmcnt(0)')
for i in range(8): e(f'v_add_f32 v{vQacc+i}, v{vQacc+i}, v{vFr+i}')
for i in range(8): e(f'v_mul_f32 v{vQacc+i}, s{sT0}, v{vQacc+i}')
for i in range(4): e(f'v_cvt_pk_bf16_f32 v{vQ+i}, v{vQacc+2*i}, v{vQacc+2*i+1}')
e('s_cbranch_scc1 L_noscale')
for i in range(32): e(f'v_mul_f32 v{vAcc+i}, s{sT0}, v{vAcc+i}')
lab('L_noscale')
for hd in range(4):
    for i in range(4):
        e(f'v_cvt_pk_bf16_f32 v{vAcc+8*hd+i}, v{vAcc+8*hd+2*i}, v{vAcc+8*hd+2*i+1}')
    e(f'ds_write_b128 v{vA0}, {vr(vAcc+8*hd,4)} offset:{hd*1024}')
e(f'v_sub_u32 v{vT3}, v{vT3}, v{vA1}')
e(f'ds_write_b64 v{vT3}, {vr(vFr+8,2)}')
e(f's_and_b32 s{sT0}, s{sW}, 1')
e(f's_lshr_b32 s{sT1}, s{sW}, 1')
e(f's_lshl_b32 s{sT1}, s{sT1}, 10')
e(f's_add_u32 s{sT1}, s{sT1}, {2*SLOT}')
e(f's_lshl_b32 s{sT2}, s{sT0}, 12')
e(f's_add_u32 s{sT2}, s{sT2}, s{sT1}')
e(f'v_add_u32 v{vA0}, s{sT2}, v{vL16}')
e(f's_cmp_eq_u32 s{sT0}, 0')
e(f's_cselect_b32 s{sT3}, 6, 2')
e(f's_lshl_b32 s{sT3}, s{sT3}, 12')
e(f's_add_u32 s{sT3}, s{sT3}, s{sT1}')
e(f'v_add_u32 v{vA1}, s{sT3}, v{vL16}')
e(f'v_and_b32 v{vT0}, 1, v0')
e(f'v_lshlrev_b32 v{vT0}, 5, v{vT0}')
e(f'v_lshl_add_u32 v{vT0}, v{vH}, 3, v{vT0}')
e(f'v_lshrrev_b32 v{vT1}, 2, v{vI}')
e(f'v_add_u32 v{vT0}, v{vT0}, v{vT1}')
e(f'v_lshlrev_b32 v{vT0}, 4, v{vT0}')
e(f'v_and_b32 v{vT1}, 2, v0')
e(f'v_lshl_add_u32 v{vT0}, v{vT1}, 2, v{vT0}')
e(f's_add_u32 s{sT2}, s{sT2}, {4*4096}')
e(f'v_add_u32 v{vA2}, s{sT2}, v{vT0}')
e(f's_cmp_eq_u32 s{sT0}, 0')
e(f's_cselect_b32 s{sT3}, 7, 4')
e(f's_lshl_b32 s{sT3}, s{sT3}, 12')
e(f's_add_u32 s{sT3}, s{sT3}, s{sT1}')
e(f'v_add_u32 v{vA3}, s{sT3}, v{vT0}')
e(f's_xor_b32 s{sT3}, s{sW}, 4')
e(f's_lshl_b32 s{sT3}, s{sT3}, 11')
e(f's_add_u32 s{sT3}, s{sT3}, {R}')
e(f'v_mov_b32 v{vT1}, s{sT3}')
e(f'v_and_b32 v{vT0}, 16, v0')
e(f'v_cmp_ne_u32 vcc, 0, v{vT0}')
e('s_nop 1')
e(f'v_cndmask_b32 v{vA2}, v{vA2}, v{vT1}, vcc')
e(f'v_cndmask_b32 v{vA3}, v{vA3}, v{vT1}, vcc')
e('s_waitcnt lgkmcnt(0)')
e('s_barrier')
stamp()
cm('---- A local attention ----')
lq, lk, lp, lv = vFr, vFr+4, vFr+8, vFr+12
lS, lP, lO = vAcc, vAcc+16, vQacc
e(f'ds_read_b128 {vr(lq,4)}, v{vA0}')
e(f'ds_read_b128 {vr(lk,4)}, v{vA0} offset:8192')
e(f'ds_read_b128 {vr(lp,4)}, v{vA1}')
e(f'ds_read_b64_tr_b16 {vr(lv,2)}, v{vA2}')
e(f'ds_read_b64_tr_b16 {vr(lv+2,2)}, v{vA2} offset:64')
e(f'ds_read_b64_tr_b16 {vr(lv+4,2)}, v{vA2} offset:256')
e(f'ds_read_b64_tr_b16 {vr(lv+6,2)}, v{vA2} offset:320')
e(f'ds_read_b64_tr_b16 {vr(lv+8,2)}, v{vA3} offset:256')
e(f'ds_read_b64_tr_b16 {vr(lv+10,2)}, v{vA3} offset:320')
e(f's_add_u32 s{sT0}, s{sKV}, {SLOT}')
e(f's_mov_b32 m0, s{sT0}')
for i in range(16): e(f'v_mov_b32 v{lO+i}, 0')
for j in range(4): dma(vL16, S_WS, f's{sT0}', 1024*j, sc1=True)
e('s_waitcnt lgkmcnt(6)')
e(f'v_mfma_f32_32x32x16_bf16 {vr(lS,16)}, {vr(lk,4)}, {vr(lq,4)}, {vr(vMask,16)}')
e(f'v_mfma_f32_32x32x16_bf16 {vr(lP,16)}, {vr(lp,4)}, {vr(lq,4)}, {vr(vMask+8,16)}')
e('s_nop 10')
regs = [lS+i for i in range(16)] + [lP+8+i for i in range(8)]
e(f'v_max3_f32 v{vT0}, v{regs[0]}, v{regs[1]}, v{regs[2]}')
e(f'v_max3_f32 v{vT1}, v{regs[3]}, v{regs[4]}, v{regs[5]}')
for k in range(6, 24, 4):
    e(f'v_max3_f32 v{vT0}, v{vT0}, v{regs[k]}, v{regs[k+1]}')
    if k + 3 < 24: e(f'v_max3_f32 v{vT1}, v{vT1}, v{regs[k+2]}, v{regs[k+3]}')
e(f'v_max_f32 v{vT0}, v{vT0}, v{vT1}')
e(f'v_mov_b32 v{vT1}, v{vT0}')
e('s_nop 1')
e(f'v_permlane32_swap_b32 v{vT0}, v{vT1}')
e(f'v_max_f32 v{vT0}, v{vT0}, v{vT1}')
for k in range(24): e(f'v_sub_f32 v{regs[k]}, v{regs[k]}, v{vT0}')
for k in range(24): e(f'v_exp_f32 v{regs[k]}, v{regs[k]}')
e('s_waitcnt lgkmcnt(0)')
e(f'v_smfmac_f32_32x32x32_bf16 {vr(lO,16)}, {vr(lv,4)}, {vr(lS,8)}, v{vIdx}')
e(f'v_smfmac_f32_32x32x32_bf16 {vr(lO,16)}, {vr(lv+4,4)}, {vr(lS+8,8)}, v{vIdx}')
e(f'v_smfmac_f32_32x32x32_bf16 {vr(lO,16)}, {vr(lv+8,4)}, {vr(lP+8,8)}, v{vIdx}')
vKa, vVa = vA0, vA1
e(f'v_mov_b32 v{vKa}, v{vL16}')
e(f'v_lshlrev_b32 v{vVa}, 4, v{vI}')
e(f'v_lshl_add_u32 v{vVa}, v{vH}, 8, v{vVa}')
e(f's_mov_b32 s{sT0}, 0xfffffffe')
e('s_waitcnt vmcnt(8)')
e('s_barrier')
e('s_nop 6')
def norm_store(O, slot, tmp):
    e(f'v_rcp_f32 v{tmp}, v{O+8}')
    e('s_nop 0')
    for i in range(8): e(f'v_mul_f32 v{O+i}, v{O+i}, v{tmp}')
    for i in range(4): e(f'v_cvt_pk_bf16_f32 v{O+i}, v{O+2*i}, v{O+2*i+1}')
    for i in range(4): e(f'v_min_u32 v{O+i}, s{sT0}, v{O+i}')
    e(f'buffer_store_dwordx4 {vr(O,4)}, v{vL16}, {sr(S_WS,4)}, s{slot} offen sc1')
if '--x=zrows' in sys.argv:
    e(f'v_and_b32 v{vT1}, 27, v0')
    e(f'v_cmp_eq_u32 vcc, 16, v{vT1}')
    e(f'v_mov_b32 v{vT1}, 0x3f803f80')
    e('s_nop 0')
    e(f'v_cndmask_b32 v{aV}, 0, v{vT1}, vcc')
    for i in range(1,32): e(f'v_mov_b32 v{aV+i}, v{aV}')
else:
    for i in range(32): e(f'v_mov_b32 v{aV+i}, 0x3f803f80')
e(f'ds_read_b128 {vr(aK,4)}, v{vKa}')
e(f'ds_read_b128 {vr(aK+4,4)}, v{vKa} offset:2048')
e(f's_mov_b64 exec, {sr(sVM,2)}')
for j in range(4):
    e(f'ds_read_b128 {vr(aV+4*j,4)}, v{vVa} offset:{(j>>1)*2048+1024+(j&1)*512}')
e('s_mov_b64 exec, -1')
kv_fill()
norm_store(lO, sOAslot, vT0)
stamp()

cstamp(10)
cm('---- B attention ----')
e('s_waitcnt lgkmcnt(0)')
e(f'v_mfma_f32_32x32x16_bf16 {vr(aS0,16)}, {vr(aK,4)}, {vr(vQ,4)}, 0')
for i in range(16): e(f'v_mov_b32 v{aO+i}, 0')
e(f'v_max3_f32 v{vT0}, v{aS0}, v{aS0+1}, v{aS0+2}')
e(f'v_max3_f32 v{vT1}, v{aS0+3}, v{aS0+4}, v{aS0+5}')
for k in range(6, 16, 4):
    e(f'v_max3_f32 v{vT0}, v{vT0}, v{aS0+k}, v{aS0+k+1}')
    if k + 3 < 16: e(f'v_max3_f32 v{vT1}, v{vT1}, v{aS0+k+2}, v{aS0+k+3}')
e(f'v_max_f32 v{vT0}, v{vT0}, v{vT1}')
e(f'v_mov_b32 v{vT1}, v{vT0}')
e('s_nop 1')
e(f'v_permlane32_swap_b32 v{vT0}, v{vT1}')
e(f'v_max_f32 v{vT0}, v{vT0}, v{vT1}')
e(f'v_sub_f32 v{aC}, {f32(-MOFF)}, v{vT0}')
for i in range(1, 16): e(f'v_mov_b32 v{aC+i}, v{aC}')
for i in range(16): e(f'v_add_f32 v{aS0+i}, v{aS0+i}, v{aC}')
for i in range(8): e(f'v_mov_b32 v{aS1+8+i}, 0')
e(f's_lshl_b32 s{sWoff}, s{sW}, 15')
e(f's_add_u32 s{sWoff}, s{sWoff}, s{sHG128}')
e(f's_lshl_b32 s{sFill}, s{sW}, 12')
e(f's_mov_b32 s{sC}, 0')
e('s_branch L_att_entry')

XP = [a[4:] for a in sys.argv if a.startswith('--x=')]
_e = e
def pair(par, ld_off):
    def e(s):
        if 'nopv' in XP and 'smfmac' in s: return
        if 'noqk' in XP and 'v_mfma' in s: return
        if 'noexp' in XP and 'v_exp' in s: s = 's_nop 1'
        if 'nolds' in XP and ('ds_read' in s or 'exec' in s): return
        _e(s)
    K = aK + 8 * par; Kn = aK + 8 * (par ^ 1)
    V = aV + 16 * par; Vn = aV + 16 * (par ^ 1)
    def ex(S, i): e(f'v_exp_f32 v{S+i}, v{S+i}')
    ex(aS0, 0); ex(aS0, 1)
    e(f'v_smfmac_f32_32x32x32_bf16 {vr(aO,16)}, {vr(Vn+12,4)}, {vr(aS1+8,8)}, v{vIdx}')
    e(f's_mov_b64 exec, {sr(sVM,2)}')
    for j in range(4):
        e(f'ds_read_b128 {vr(Vn+4*j,4)}, v{vVa} offset:{ld_off+(j>>1)*2048+1024+(j&1)*512}')
    e('s_mov_b64 exec, -1')
    for i in range(2, 5): ex(aS0, i)
    e(f'v_mfma_f32_32x32x16_bf16 {vr(aS1,16)}, {vr(K+4,4)}, {vr(vQ,4)}, {vr(aC,16)}')
    e(f'ds_read_b128 {vr(Kn,4)}, v{vKa} offset:{ld_off}')
    e(f'ds_read_b128 {vr(Kn+4,4)}, v{vKa} offset:{ld_off+2048}')
    for i in range(5, 10): ex(aS0, i)
    e(f'v_smfmac_f32_32x32x32_bf16 {vr(aO,16)}, {vr(V,4)}, {vr(aS0,8)}, v{vIdx}')
    for i in range(10, 16): ex(aS0, i)
    ex(aS1, 0); ex(aS1, 1)
    e(f'v_smfmac_f32_32x32x32_bf16 {vr(aO,16)}, {vr(V+4,4)}, {vr(aS0+8,8)}, v{vIdx}')
    e('s_waitcnt lgkmcnt(0)')
    for i in range(2, 5): ex(aS1, i)
    e(f'v_mfma_f32_32x32x16_bf16 {vr(aS0,16)}, {vr(Kn,4)}, {vr(vQ,4)}, {vr(aC,16)}')
    for i in range(5, 10): ex(aS1, i)
    e(f'v_smfmac_f32_32x32x32_bf16 {vr(aO,16)}, {vr(V+8,4)}, {vr(aS1,8)}, v{vIdx}')
    for i in range(10, 16): ex(aS1, i)

e('.p2align 6')
lab('L_att_top')
e(f'v_add_u32 v{vKa}, {SLOT}, v{vKa}')
e(f'v_add_u32 v{vVa}, {SLOT}, v{vVa}')
def att_stamps():
    for j in range(1, 5):
        e(f's_cmp_eq_u32 s{sC}, {j}')
        e(f's_cbranch_scc0 L_st{j}')
        stamp2(j)
        lab(f'L_st{j}')
if STAMPS and STMODE == 'att0': att_stamps()
e('s_waitcnt vmcnt(0)')
e('s_barrier')
if STAMPS and STMODE == 'att1': att_stamps()
e(f's_mov_b32 m0, s{sFill}')
e(f's_add_u32 s{sT0}, s{sWoff}, {8192-1024}')
e(f's_add_u32 s{sT1}, s{sWoff}, {2*(8192-1024)}')
e(f's_add_u32 s{sT2}, s{sWoff}, {3*(8192-1024)}')
e(f's_cmp_ge_u32 s{sC}, 3')
e('s_cbranch_scc1 L_wob')
dma(vW, S_WOA, f's{sWoff}'); dma(vW, S_WOA, f's{sT0}', 1024); dma(vW, S_WOA, f's{sT1}', 2048); dma(vW, S_WOA, f's{sT2}', 3072)
e('s_branch L_woj')
lab('L_wob')
dma(vW, S_WOB, f's{sWoff}'); dma(vW, S_WOB, f's{sT0}', 1024); dma(vW, S_WOB, f's{sT1}', 2048); dma(vW, S_WOB, f's{sT2}', 3072)
e(f's_cmp_eq_u32 s{sC}, 3')
e('s_cbranch_scc0 L_woj')
def o_loads():
    e(f's_add_u32 s{sT0}, s{sOoff}, 4096')
    for j in range(8):
        so = f's{sOoff}' if j < 4 else f's{sT0}'
        o = f' offset:{(j&3)*1024}' if j & 3 else ''
        e(f'buffer_load_dwordx4 {vr(vOf+4*j,4)}, v{vL16}, {sr(S_WS,4)}, {so} offen{o} sc1')
o_loads()
lab('L_woj')
e(f's_xor_b32 s{sWoff}, s{sWoff}, {256*1024}')
e(f's_add_u32 s{sFill}, s{sFill}, {SLOT}')
pair(1, 0)
e(f's_cmp_eq_u32 s{sC}, 4')
e('s_cbranch_scc1 L_att_done')
lab('L_att_entry')
for p in range(7):
    pair(p & 1, (p + 1) * 4096)
e(f's_add_u32 s{sC}, s{sC}, 1')
e('s_branch L_att_top')
lab('L_att_done')
e('s_nop 1')
e(f'v_smfmac_f32_32x32x32_bf16 {vr(aO,16)}, {vr(aV+16+12,4)}, {vr(aS1+8,8)}, v{vIdx}')
stamp()
cstamp(11)
e(f'v_lshlrev_b32 v{vT0}, 9, v{vH}')
e(f'v_sub_u32 v{vA4}, v{vWl}, v{vT0}')
e(f's_lshr_b32 s{sT1}, s{sW}, 1')
e(f's_lshl_b32 s{sT2}, s{sT1}, 14')
e(f'v_add_u32 v{vA4}, s{sT2}, v{vA4}')
e(f'v_xor_b32 v{vA5}, 64, v{vA4}')
e(f'v_xor_b32 v{vT0}, v{vH}, v{vI}')
e(f'v_lshlrev_b32 v{vT0}, 4, v{vT0}')
e(f'v_lshl_add_u32 v{vT0}, v{vN}, 8, v{vT0}')
e(f's_lshl_b32 s{sT2}, s{sW}, 13')
e(f'v_add_u32 v{vA0}, s{sT2}, v{vT0}')
e(f's_mov_b32 s{sT0}, 0xfffffffe')
lab('L_att_check')
e(f'v_add_f32 v{vT1}, abs(v{aO}), abs(v{aO+1})')
e(f'v_add_f32 v{vT2}, abs(v{aO+2}), abs(v{aO+3})')
e(f'v_add_f32 v{vT1}, v{vT1}, abs(v{aO+4})')
e(f'v_add_f32 v{vT2}, v{vT2}, abs(v{aO+5})')
e(f'v_add_f32 v{vT1}, v{vT1}, abs(v{aO+6})')
e(f'v_add_f32 v{vT2}, v{vT2}, abs(v{aO+7})')
e(f'v_add_f32 v{vT1}, v{vT1}, v{aO+8}')
e(f'v_add_f32 v{vT1}, v{vT1}, v{vT2}')
e(f'v_mov_b32 v{vT2}, 0x7e000000')
e(f'v_cmp_nlt_f32 vcc, v{vT1}, v{vT2}')
e('s_cbranch_vccnz L_fallback')
lab('L_att_ok')
norm_store(aO, sOBslot, vT1)
e(f'v_lshrrev_b32 v{vT0}, 3, v0')
e(f's_lshl_b32 s{sT2}, s{sT1}, 3')
e(f'v_add_u32 v{vT0}, s{sT2}, v{vT0}')
e(f'v_and_b32 v{vT1}, 7, v0')
e(f'v_lshlrev_b32 v{vT2}, 1, v{vT1}')
e(f'v_and_b32 v{vT3}, 15, v{vT0}')
e(f'v_xor_b32 v{vT2}, v{vT2}, v{vT3}')
e(f'v_lshlrev_b32 v{vT2}, 4, v{vT2}')
e(f'v_lshl_add_u32 v{vT2}, v{vT0}, 8, v{vT2}')
e(f's_and_b32 s{sT2}, s{sW}, 1')
e(f's_lshl_b32 s{sT3}, s{sT2}, 13')
e(f'v_add_u32 v{vA1}, s{sT3}, v{vT2}')
e(f'v_xor_b32 v{vA2}, 16, v{vA1}')
e(f'v_lshlrev_b32 v{vT1}, 4, v{vT1}')
e(f'v_lshl_add_u32 v{vA3}, v{vT0}, 11, v{vT1}')
e(f's_lshl_b32 s{sOutOff}, s{sRB}, 17')
e(f's_lshl_b32 s{sT2}, s{sT2}, 16')
e(f's_add_u32 s{sOutOff}, s{sOutOff}, s{sT2}')
e(f's_add_u32 s{sOutOff}, s{sOutOff}, s{sHG128}')
e(f's_mov_b32 s{sTail}, 0')
e(f's_mov_b32 s{sSpin}, 100000')
e('s_branch L_tail_chk')

cm('---- tail: out projections ----')
tA, tW = 16, 48
lab('L_tail_retry')
e('s_sleep 1')
o_loads()
lab('L_tail_top')
e('s_waitcnt vmcnt(0)')
lab('L_tail_chk')
e(f'v_max3_u32 v{vT0}, v{vOf}, v{vOf+1}, v{vOf+2}')
e(f'v_max3_u32 v{vT1}, v{vOf+3}, v{vOf+4}, v{vOf+5}')
for k in range(6, 32, 4):
    e(f'v_max3_u32 v{vT0}, v{vT0}, v{vOf+k}, v{vOf+k+1}')
    if k + 3 < 32: e(f'v_max3_u32 v{vT1}, v{vT1}, v{vOf+k+2}, v{vOf+k+3}')
e(f'v_max_u32 v{vT0}, v{vT0}, v{vT1}')
e(f'v_cmp_eq_u32 vcc, -1, v{vT0}')
e(f's_sub_u32 s{sSpin}, s{sSpin}, 1')
e('s_cbranch_scc1 L_tail_go')
e('s_cbranch_vccnz L_tail_retry')
lab('L_tail_go')
def t_reads(s):
    x = tW + 8 * s
    e(f'ds_read_b64_tr_b16 {vr(x,2)}, v{vA4} offset:{s*2048}')
    e(f'ds_read_b64_tr_b16 {vr(x+2,2)}, v{vA4} offset:{s*2048+1024}')
    e(f'ds_read_b64_tr_b16 {vr(x+4,2)}, v{vA5} offset:{s*2048}')
    e(f'ds_read_b64_tr_b16 {vr(x+6,2)}, v{vA5} offset:{s*2048+1024}')
def t_mfma(s):
    x = tW + 8 * s
    c0 = '0' if s == 0 else vr(tA,16)
    c1 = '0' if s == 0 else vr(tA+16,16)
    e(f'v_mfma_f32_32x32x16_bf16 {vr(tA,16)}, {vr(x,4)}, {vr(vOf+4*s,4)}, {c0}')
    e(f'v_mfma_f32_32x32x16_bf16 {vr(tA+16,16)}, {vr(x+4,4)}, {vr(vOf+4*s,4)}, {c1}')
t_reads(0); t_reads(1); t_reads(2)
for s in range(8):
    nleft = min(8, s + 3) - (s + 1)
    e(f's_waitcnt lgkmcnt({4*nleft})')
    t_mfma(s)
    if s + 3 < 8: t_reads(s + 3)
e(f's_cmp_lg_u32 s{sTail}, 0')
e('s_cbranch_scc1 L_tail_nold')
e(f's_add_u32 s{sOoff}, s{sOoff}, {hex(WS_OB-WS_OA)}')
e('s_waitcnt vmcnt(0)')
o_loads()
lab('L_tail_nold')
e('s_barrier')
e('s_nop 8')
for ct in range(2):
    for j in range(4):
        xr = (ct*8 + 2*j) << 4
        if xr:
            e(f'v_xor_b32 v{vT0+j}, {xr}, v{vA0}')
            e(f'ds_write_b128 v{vT0+j}, {vr(tA+16*ct+4*j,4)}')
        else:
            e(f'ds_write_b128 v{vA0}, {vr(tA,4)}')
e('s_waitcnt lgkmcnt(0)')
e('s_barrier')
for kq in range(4):
    e(f'ds_read_b128 {vr(tW+8*kq,4)}, v{vA1} offset:{kq*16384}')
    e(f'ds_read_b128 {vr(tW+8*kq+4,4)}, v{vA2} offset:{kq*16384}')
for a in (vA0, vA1, vA2, vA4, vA5): e(f'v_add_u32 v{a}, {2*SLOT}, v{a}')
e('s_waitcnt lgkmcnt(4)')
for i in range(0, 8, 2): e(f'v_pk_add_f32 {vr(tW+i,2)}, {vr(tW+i,2)}, {vr(tW+8+i,2)}')
e('s_waitcnt lgkmcnt(0)')
for i in range(0, 8, 2): e(f'v_pk_add_f32 {vr(tW+16+i,2)}, {vr(tW+16+i,2)}, {vr(tW+24+i,2)}')
for i in range(0, 8, 2): e(f'v_pk_add_f32 {vr(tW+i,2)}, {vr(tW+i,2)}, {vr(tW+16+i,2)}')
for i in range(4): e(f'v_cvt_pk_bf16_f32 v{112+i}, v{tW+2*i}, v{tW+2*i+1}')
e(f'buffer_store_dwordx4 {vr(112,4)}, v{vA3}, {sr(S_OUT,4)}, s{sOutOff} offen')
e(f's_add_u32 s{sOutOff}, s{sOutOff}, 1024')
e(f's_add_u32 s{sTail}, s{sTail}, 1')
e(f's_cmp_lt_u32 s{sTail}, 2')
if STAMPS:
    e('s_cbranch_scc0 L_tail_fin')
    stamp()
    e('s_branch L_tail_top')
    lab('L_tail_fin')
    e('s_waitcnt vmcnt(0)')
    stamp()
    e('s_waitcnt lgkmcnt(0)')
    n = NSTAMP[0]
    assert n <= 10
    for i in range(12): e(f'v_mov_b32 v{16+i}, s{sST+2*i}')
    e(f's_getreg_b32 s{sT0}, hwreg(HW_REG_XCC_ID)')
    e(f'v_mov_b32 v28, s{sT0}')
    e(f'v_mov_b32 v29, s{sSpin}')
    e(f'v_mov_b32 v30, s{sFB}')
    e(f'v_mov_b32 v31, 0')
    e(f's_lshl_b32 s{sT0}, s2, 3')
    e(f's_add_u32 s{sT0}, s{sT0}, s{sW}')
    e(f's_lshl_b32 s{sT0}, s{sT0}, 6')
    e(f's_add_u32 s{sT0}, s{sT0}, {hex(WS_STAMP)}')
    e('v_mov_b32 v0, 0')
    e('s_mov_b64 exec, 1')
    if '--dbgst' in sys.argv:
        e(f's_lshl_b32 s{sT1}, s2, 3')
        e(f's_add_u32 s{sT1}, s{sT1}, s{sW}')
        e(f's_cmp_lg_u32 s{sT1}, {100*8+4}')
        e('s_cbranch_scc1 L_nodbg')
        for i in range(1,10):
            e(f'v_subrev_u32 v{32+i}, s{sST}, v{16+i}')
            e(f'global_store_dword v0, v{32+i}, {sr(S_DBG,2)} offset:{4*i}')
        e(f'v_sub_u32 v32, v27, v26')
        e(f'global_store_dword v0, v32, {sr(S_DBG,2)} offset:40')
        lab('L_nodbg')
    for i in range(4):
        e(f'buffer_store_dwordx4 {vr(16+4*i,4)}, v0, {sr(S_WS,4)}, s{sT0} offen offset:{16*i}')
else:
    e('s_cbranch_scc1 L_tail_top')
lab('L_end')
e('s_endpgm')

cm('---- fallback: true max, K/V from global ----')
lab('L_fallback')
e(f's_cmp_lg_u32 s{sFB}, 0')
e('s_cbranch_scc1 L_att_ok')
e(f's_mov_b32 s{sFB}, 1')
e(f'v_mov_b32 v{vT1}, 0xff800000')
e(f's_mov_b32 s{sT2}, 0')
lab('L_fb_max')
e(f'buffer_load_dwordx4 {vr(aK,4)}, v{vL16}, {sr(S_WS,4)}, s{sT2} offen sc1')
e('s_waitcnt vmcnt(0)')
e(f'v_mfma_f32_32x32x16_bf16 {vr(aS0,16)}, {vr(aK,4)}, {vr(vQ,4)}, 0')
e('s_nop 15')
for k in range(0, 16, 2): e(f'v_max3_f32 v{vT1}, v{vT1}, v{aS0+k}, v{aS0+k+1}')
e(f's_add_u32 s{sT2}, s{sT2}, 2048')
e(f's_cmp_lt_u32 s{sT2}, {64*2048}')
e('s_cbranch_scc1 L_fb_max')
e(f'v_mov_b32 v{vT2}, v{vT1}')
e('s_nop 1')
e(f'v_permlane32_swap_b32 v{vT1}, v{vT2}')
e(f'v_max_f32 v{vT1}, v{vT1}, v{vT2}')
for i in range(16): e(f'v_sub_f32 v{aC+i}, 0, v{vT1}')
for i in range(16): e(f'v_mov_b32 v{aO+i}, 0')
e(f'v_lshlrev_b32 v{vT2}, 4, v{vI}')
e(f'v_lshl_add_u32 v{vT2}, v{vH}, 8, v{vT2}')
e(f's_mov_b32 s{sT2}, 0')
lab('L_fb_pv')
e(f'buffer_load_dwordx4 {vr(aK,4)}, v{vL16}, {sr(S_WS,4)}, s{sT2} offen sc1')
e(f's_mov_b64 exec, {sr(sVM,2)}')
e(f'buffer_load_dwordx4 {vr(aV,4)}, v{vT2}, {sr(S_WS,4)}, s{sT2} offen offset:1024 sc1')
e(f'buffer_load_dwordx4 {vr(aV+4,4)}, v{vT2}, {sr(S_WS,4)}, s{sT2} offen offset:1536 sc1')
e('s_mov_b64 exec, -1')
e('s_waitcnt vmcnt(0)')
e(f'v_mfma_f32_32x32x16_bf16 {vr(aS0,16)}, {vr(aK,4)}, {vr(vQ,4)}, {vr(aC,16)}')
e('s_nop 15')
for i in range(16): e(f'v_exp_f32 v{aS0+i}, v{aS0+i}')
e('s_nop 1')
e(f'v_smfmac_f32_32x32x32_bf16 {vr(aO,16)}, {vr(aV,4)}, {vr(aS0,8)}, v{vIdx}')
e(f'v_smfmac_f32_32x32x32_bf16 {vr(aO,16)}, {vr(aV+4,4)}, {vr(aS0+8,8)}, v{vIdx}')
e(f's_add_u32 s{sT2}, s{sT2}, 2048')
e(f's_cmp_lt_u32 s{sT2}, {64*2048}')
e('s_cbranch_scc1 L_fb_pv')
e('s_nop 15')
e('s_branch L_att_ok')

HDR = open(f'cdna_kernels/{NAME}.s.ref').read().split('\n')
hdr = []
for line in HDR:
    if line.startswith('; @launch'): break
    hdr.append(line)
txt = '\n'.join(hdr) + '\n; @launch grid=(256,1,1) block=(512,1,1) lds=163840\n'
txt += f'''.amdgcn_target "amdgcn-amd-amdhsa--gfx950"
.text
.globl {NAME}_kernel
.p2align 8
.type {NAME}_kernel,@function
'''
txt += '\n'.join(L) + '\n'
txt += f'''.section .rodata,"a"
.p2align 6
.amdhsa_kernel {NAME}_kernel
  .amdhsa_next_free_vgpr 192
  .amdhsa_next_free_sgpr 102
  .amdhsa_accum_offset 192
  .amdhsa_group_segment_fixed_size 0
  .amdhsa_kernarg_size 88
  .amdhsa_user_sgpr_count 2
  .amdhsa_user_sgpr_kernarg_segment_ptr 1
  .amdhsa_system_sgpr_workgroup_id_x 1
.end_amdhsa_kernel
'''
open(OUT, 'w').write(txt)
print('wrote', OUT, len(L), 'lines')
```

```python
import sys, struct

NAME = 'concat_heads__sliding_local_dilated__grouped_kv_mqa__prompt'
STAMPS = '--stamps' in sys.argv
args = [a for a in sys.argv[1:] if not a.startswith('--')]
OUT = args[0] if args else f'cdna_kernels/{NAME}.s'

L = []
def e(s):
    for line in s.strip('\n').split('\n'):
        L.append('    ' + line.strip() if not line.strip().endswith(':') else line.strip())
def lab(s): L.append(s + ':')
def cm(s): L.append('    ; ' + s)
def vr(i, n): return f'v[{i}:{i+n-1}]'
def sr(i, n): return f's[{i}:{i+n-1}]'
def f32(x): return '0x%08x' % struct.unpack('<I', struct.pack('<f', x))[0]

SLOT = 32768
R = 131072
WS_KV = 0
WS_OA = 0x100000
WS_OB = 0x300000
WS_STAMP = 0x500000
WS_SIZE = 0x600000
CSCALE = 0.25 * 1.4426950408889634
MOFF = 40.0
ONES = R + 16384 + 0

S_XA, S_WQKV, S_WOA, S_XB, S_WQ, S_WKV, S_WOB, S_OUT, S_WS = 8, 12, 16, 20, 24, 28, 32, 36, 40
S_DBG = 44
S_WV = 46
sW = 48
sRB, sHG = 49, 50
sT0, sT1, sT2, sT3 = 51, 52, 53, 54
sC = 55
sXbase, sXstep, sWbase = 56, 57, 58
sAx, sAw = 59, 60
sFill = 61
sKV = 62
sVM = 64
sOoff = 66
sOutOff = 67
sWoff = 68
sSpin = 69
sOAslot, sOBslot = 70, 71
sFB = 72
sHG128 = 73
sTail = 74
sST = 76

vL16, vW, vWA, vXA = 1, 2, 3, 4
vN, vH, vI = 5, 6, 7
vT0, vT1, vT2, vT3 = 8, 9, 10, 11
vA0, vA1, vA2, vA3, vA4, vA5 = 12, 13, 14, 15, 136, 137
vXl, vWl = 138, 139
vPoll = 140
vIdx = 141
vMask = 16
vQacc = 40
vAcc = 56
vFr = 88
vQ = 144
aS0, aS1, aC, aO = 16, 32, 48, 64
aK = 80
aV = 96
vOf = 160
NSTAMP = [0]
STMODE = ([a[5:] for a in sys.argv if a.startswith('--st=')] + ['all'])[0]
def stamp2(i):
    e(f's_memrealtime {sr(sST+4*i,2)}')
    e(f's_memtime {sr(sST+4*i+2,2)}')
def stamp():
    if STAMPS and STMODE == 'all':
        i = NSTAMP[0]; NSTAMP[0] += 1
        assert sST + 2*i + 1 <= 101
        e(f's_memrealtime {sr(sST+2*i,2)}')

def cstamp(i):
    if STAMPS and STMODE == 'all': e(f's_memtime {sr(sST+2*i,2)}')
    if STAMPS and STMODE.startswith('att'): stamp2(0 if i == 10 else 5)

def dma(voff, srd, soff, off=0, sc1=False):
    o = f' offset:{off}' if off else ''
    c = ' sc1' if sc1 else ''
    e(f'buffer_load_dwordx4 v{voff}, {sr(srd,4)}, {soff} offen{o}{c} lds')

lab(f'{NAME}_kernel')
stamp()
e('s_cmp_ge_u32 s2, 256')
e('s_cbranch_scc1 L_end')
for reg, off in ((S_XB,24),(S_WS,80),(S_WKV,40),(S_WV,48),(S_WQ,32),(S_XA,0),(S_WQKV,8),(S_WOA,16),(S_WOB,56),(S_OUT,64),(S_DBG,72)):
    e(f's_load_dwordx2 {sr(reg,2)}, s[0:1], {off}')
e(f'v_lshrrev_b32 v{vT0}, 6, v0')
e(f'v_and_b32 v0, 63, v0')
e(f'v_readfirstlane_b32 s{sW}, v{vT0}')
for reg, size in ((S_XB,0x200000),(S_WS,WS_SIZE),(S_WKV,0x4000),(S_WQ,0x80000),(S_XA,0x200000),(S_WQKV,0x180000),(S_WOA,0x80000),(S_WOB,0x80000),(S_OUT,0x400000)):
    e(f's_mov_b32 s{reg+2}, {hex(size)}')
    e(f's_mov_b32 s{reg+3}, 0x20000')
e(f's_and_b32 s{sT0}, s2, 7')
e(f's_lshr_b32 s{sT1}, s2, 3')
e(f's_lshl_b32 s{sRB}, s{sT0}, 2')
e(f's_and_b32 s{sT0}, s{sT1}, 3')
e(f's_add_u32 s{sRB}, s{sRB}, s{sT0}')
e(f's_lshr_b32 s{sHG}, s{sT1}, 2')
e(f's_lshl_b32 s{sHG128}, s{sHG}, 7')
e(f'v_lshlrev_b32 v{vL16}, 4, v0')
e(f'v_and_b32 v{vN}, 31, v0')
e(f'v_lshrrev_b32 v{vH}, 5, v0')
e(f'v_and_b32 v{vI}, 15, v0')
e(f'v_lshrrev_b32 v{vT0}, 4, v0')
e(f's_lshl_b32 s{sT0}, s{sW}, 3')
e(f'v_add_u32 v{vT1}, s{sT0}, v{vT0}')
e(f'v_and_b32 v{vT2}, 15, v{vT1}')
e(f'v_xor_b32 v{vT2}, v{vT2}, v{vI}')
e(f'v_lshlrev_b32 v{vT2}, 4, v{vT2}')
e(f'v_lshl_add_u32 v{vA0}, v{vT1}, 10, v{vT2}')
e(f'v_xor_b32 v{vA1}, 64, v{vA0}')
e(f'v_add_u32 v{vA1}, {4096-1024}, v{vA1}')
e(f'v_lshrrev_b32 v{vT1}, 3, v0')
e(f'v_and_b32 v{vT2}, 7, v0')
e(f'v_and_b32 v{vT3}, 1, v{vT0}')
e(f'v_lshlrev_b32 v{vT3}, 2, v{vT3}')
e(f'v_xor_b32 v{vT3}, v{vT3}, v{vT2}')
e(f'v_lshlrev_b32 v{vT3}, 4, v{vT3}')
e(f'v_lshl_add_u32 v{vW}, v{vT1}, 10, v{vT3}')
e(f'v_mul_u32_u24 v{vWA}, 3072, v{vT1}')
e(f'v_add_u32 v{vWA}, v{vWA}, v{vT3}')
e(f'v_xor_b32 v{vT3}, v{vT2}, v{vT0}')
e(f'v_lshlrev_b32 v{vT3}, 4, v{vT3}')
e(f'v_lshl_add_u32 v{vA2}, v{vT1}, 10, v{vT3}')
e(f'v_xor_b32 v{vA3}, 64, v{vA2}')
e(f's_and_b32 s{sT0}, s{sW}, 1')
e(f's_lshl_b32 s{sT0}, s{sT0}, 6')
e(f'v_xor_b32 v{vXA}, s{sT0}, v{vA2}')
e(f's_and_b32 s{sT0}, s{sW}, 1')
e(f's_lshl_b32 s{sT1}, s{sRB}, 1')
e(f's_add_u32 s{sT0}, s{sT0}, s{sT1}')
e(f's_lshl_b32 s{sT0}, s{sT0}, 5')
e(f's_lshr_b32 s{sT2}, s{sW}, 1')
e(f's_lshl_b32 s{sT3}, s{sT2}, 3')
e(f's_add_u32 s{sOoff}, s{sT0}, s{sT3}')
e(f's_lshl_b32 s{sOoff}, s{sOoff}, 10')
e(f's_add_u32 s{sOoff}, s{sOoff}, {hex(WS_OA)}')
e(f's_lshl_b32 s{sT1}, s{sHG}, 2')
e(f's_add_u32 s{sT0}, s{sT0}, s{sT1}')
e(f's_add_u32 s{sOAslot}, s{sT0}, s{sT2}')
e(f's_lshl_b32 s{sOAslot}, s{sOAslot}, 10')
e(f's_add_u32 s{sOAslot}, s{sOAslot}, {hex(WS_OA)}')
e(f's_and_b32 s{sT1}, s{sW}, 2')
e(f's_lshr_b32 s{sT3}, s{sW}, 2')
e(f's_add_u32 s{sT1}, s{sT1}, s{sT3}')
e(f's_add_u32 s{sOBslot}, s{sT0}, s{sT1}')
e(f's_lshl_b32 s{sOBslot}, s{sOBslot}, 10')
e(f's_add_u32 s{sOBslot}, s{sOBslot}, {hex(WS_OB)}')
for i in range(4): e(f'v_mov_b32 v{vFr+i}, -1')
e(f's_lshl_b32 s{sT0}, s{sRB}, 16')
e(f's_lshl_b32 s{sT1}, s{sW}, 11')
e(f's_bitcmp1_b32 s{sHG}, 0')
e('s_waitcnt lgkmcnt(0)')
e(f's_cselect_b32 s{S_WKV}, s{S_WV}, s{S_WKV}')
e(f's_cselect_b32 s{S_WKV+1}, s{S_WV+1}, s{S_WKV+1}')
cm('---- initial fills ----')
for c in range(4):
    e(f's_add_u32 m0, s{sT1}, {c*SLOT}')
    if c: e(f's_add_u32 s{sT0}, s{sT0}, 256')
    else: e('s_nop 0')
    dma(vA0, S_XB, f's{sT0}')
    dma(vA1, S_XB, f's{sT0}', 1024)
e(f'buffer_store_dwordx4 {vr(vFr,4)}, v{vL16}, {sr(S_WS,4)}, s{sOAslot} offen sc1')
e(f'buffer_store_dwordx4 {vr(vFr,4)}, v{vL16}, {sr(S_WS,4)}, s{sOBslot} offen sc1')
e(f's_add_u32 m0, s{sT1}, {R}')
e(f's_lshl_b32 s{sT2}, s{sW}, 14')
dma(vL16, S_WKV, f's{sT1}')
dma(vL16, S_WKV, f's{sT1}', 1024)
e(f's_add_u32 s{sT2}, s{sT2}, s{sHG128}')
e(f's_add_u32 s{sT3}, s{sT2}, {8192-1024}')
for c in range(4):
    e(f's_add_u32 m0, s{sT1}, {c*SLOT+16384}')
    if c:
        e(f's_add_u32 s{sT2}, s{sT2}, {128*1024}')
        e(f's_add_u32 s{sT3}, s{sT3}, {128*1024}')
    else: e('s_nop 0')
    dma(vW, S_WQ, f's{sT2}')
    dma(vW, S_WQ, f's{sT3}', 1024)
e(f's_lshl_b32 s{sT0}, s{sRB}, 16')
e(f's_sub_u32 s{sT2}, s{sT0}, 16384')
e(f's_max_i32 s{sT2}, s{sT2}, 0')
e(f's_lshl_b32 s{sT3}, s{sW}, 7')
e(f's_add_u32 s{sT2}, s{sT2}, s{sT3}')
e(f's_add_u32 m0, s{sT1}, {R+16384}')
e(f's_add_u32 s{sT3}, s{sT2}, {8192-1024}')
dma(vA2, S_XA, f's{sT2}')
dma(vA3, S_XA, f's{sT3}', 1024)
stamp()
cm('---- setup while loads fly ----')
e(f's_lshl_b32 s{sT1}, s{sW}, 13')
e(f's_add_u32 s{sAx}, s{sT0}, s{sT1}')
e(f's_mul_i32 s{sAw}, s{sW}, {8*3072}')
e(f's_add_u32 s{sAw}, s{sAw}, s{sHG128}')
e(f's_lshl_b32 s{sFill}, s{sW}, 10')
e(f's_lshl_b32 s{sKV}, s{sW}, 12')
e(f's_mov_b32 s{sVM}, 0xffff')
e(f's_mov_b32 s{sVM+1}, 0xffff')
e(f's_mov_b32 s{sFB}, 0')
e(f'v_mov_b32 v{vIdx}, 0xdddddddd')
e(f'v_lshlrev_b32 v{vT0}, 2, v{vH}')
e(f'v_sub_u32 v{vT0}, v{vN}, v{vT0}')
e(f'v_add_u32 v{vT0}, 18, v{vT0}')
e(f'v_mov_b32 v{vT2}, 0x5555')
e(f'v_mov_b32 v{vT3}, 0')
e(f'v_lshlrev_b64 {vr(vT2,2)}, v{vT0}, {vr(vT2,2)}')
e(f's_and_b32 s{sT1}, s{sW}, 1')
e(f's_or_b32 s{sT1}, s{sT1}, s{sRB}')
e(f's_cmp_eq_u32 s{sT1}, 0')
e(f's_cselect_b32 s{sT1}, 0, -1')
e(f'v_and_b32 v{vT2}, s{sT1}, v{vT2}')
e(f'v_not_b32 v{vT2}, v{vT2}')
e(f'v_not_b32 v{vT3}, v{vT3}')
e(f's_mov_b32 s{sT1}, 0xff800000')
for r in range(16):
    e(f'v_bfe_i32 v{vMask+r}, v{vT3}, {8*(r>>2)+(r&3)}, 1')
for r in range(8, 16):
    e(f'v_bfe_i32 v{vMask+8+r}, v{vT2}, {8*(r>>2)+(r&3)}, 1')
for r in range(24):
    e(f'v_and_b32 v{vMask+r}, s{sT1}, v{vMask+r}')
e(f'v_lshrrev_b32 v{vT0}, 2, v{vI}')
e(f'v_lshl_add_u32 v{vT0}, v{vH}, 3, v{vT0}')
e(f'v_lshlrev_b32 v{vT0}, 7, v{vT0}')
e(f'v_and_b32 v{vT1}, 8, v{vI}')
e(f'v_lshl_add_u32 v{vT0}, v{vT1}, 3, v{vT0}')
e(f'v_and_b32 v{vT1}, 16, v0')
e(f'v_lshl_add_u32 v{vT0}, v{vT1}, 1, v{vT0}')
e(f'v_and_b32 v{vT1}, 3, v0')
e(f'v_lshl_add_u32 v{vWl}, v{vT1}, 3, v{vT0}')
e(f's_lshr_b32 s{sT1}, s{sW}, 2')
e(f's_lshl_b32 s{sT2}, s{sT1}, 3')
e(f'v_add_u32 v{vT0}, s{sT2}, v{vH}')
e(f'v_xor_b32 v{vT0}, v{vT0}, v{vI}')
e(f'v_lshlrev_b32 v{vT0}, 4, v{vT0}')
e(f'v_lshl_add_u32 v{vT0}, v{vN}, 8, v{vT0}')
e(f's_and_b32 s{sT2}, s{sW}, 1')
e(f's_lshl_b32 s{sT2}, s{sT2}, 13')
e(f'v_add_u32 v{vA0}, s{sT2}, v{vT0}')
e(f'v_xor_b32 v{vA1}, 32, v{vA0}')
e(f'v_xor_b32 v{vA2}, 64, v{vA0}')
e(f'v_xor_b32 v{vA3}, 96, v{vA0}')
e(f's_lshl_b32 s{sT1}, s{sT1}, 13')
e(f's_add_u32 s{sT1}, s{sT1}, 16384')
e(f's_and_b32 s{sT2}, s{sW}, 2')
e(f's_lshl_b32 s{sT2}, s{sT2}, 5')
e(f'v_xor_b32 v{vA4}, s{sT2}, v{vWl}')
e(f'v_add_u32 v{vA4}, s{sT1}, v{vA4}')
e(f'v_lshrrev_b32 v{vT1}, 4, v0')
e(f's_and_b32 s{sT1}, s{sW}, 1')
e(f's_lshl_b32 s{sT1}, s{sT1}, 3')
e(f'v_add_u32 v{vT0}, s{sT1}, v{vT1}')
e(f'v_xor_b32 v{vT0}, v{vT0}, v{vI}')
e(f'v_lshlrev_b32 v{vT0}, 4, v{vT0}')
e(f'v_lshl_add_u32 v{vT0}, v{vI}, 8, v{vT0}')
e(f's_lshr_b32 s{sT1}, s{sW}, 1')
e(f's_lshl_b32 s{sT1}, s{sT1}, 15')
e(f's_lshr_b32 s{sT2}, s{sHG}, 1')
e(f's_lshl_b32 s{sT2}, s{sT2}, 12')
e(f's_add_u32 s{sT1}, s{sT1}, s{sT2}')
e(f'v_add_u32 v{vT0}, s{sT1}, v{vT0}')
e(f'v_xor_b32 v{vT2}, 64, v{vT0}')
e(f'v_lshlrev_b32 v{vT1}, 8, v{vT1}')
e(f'v_lshl_add_u32 v{vT1}, v{vI}, 3, v{vT1}')
e(f's_lshl_b32 s{sT1}, s{sW}, 11')
e(f's_add_u32 s{sT1}, s{sT1}, {R}')
e(f'v_add_u32 v{vT1}, s{sT1}, v{vT1}')
e(f'v_add_u32 v{vT3}, s{sT1}, v{vL16}')
e(f'v_bfe_u32 v{vXl}, v{vN}, 1, 3')
e(f'v_xor_b32 v{vXl}, v{vXl}, v{vH}')
e(f'v_lshlrev_b32 v{vXl}, 4, v{vXl}')
e(f's_cmp_ge_u32 s{sW}, 6')
e(f's_cselect_b32 s{sT1}, 15, 31')
e(f'v_and_b32 v{vA5}, s{sT1}, v{vN}')
e(f'v_lshl_add_u32 v{vXl}, v{vA5}, 7, v{vXl}')
e(f's_and_b32 s{sT1}, s{sW}, 1')
e(f's_lshl_b32 s{sT1}, s{sT1}, 12')
e(f's_cmp_ge_u32 s{sW}, 6')
e(f's_cselect_b32 s{sXbase}, {R+16384}, s{sT1}')
e(f's_cselect_b32 s{sXstep}, 1, 16')
e(f's_lshl_b32 s{sXstep}, s{sXstep}, 11')
e(f's_lshr_b32 s{sT1}, s{sW}, 1')
e(f's_sub_u32 s{sT2}, s{sW}, 5')
e(f's_cmp_ge_u32 s{sW}, 6')
e(f's_cselect_b32 s{sT1}, s{sT2}, s{sT1}')
e(f's_lshl_b32 s{sT1}, s{sT1}, 13')
e(f's_add_u32 s{sWbase}, s{sT1}, 8192')
for i in range(16): e(f'v_mov_b32 v{vQacc+i}, 0')
for i in range(32): e(f'v_mov_b32 v{vAcc+i}, 0')

def a_fill():
    e(f's_mov_b32 m0, s{sFill}')
    e(f's_add_u32 s{sT0}, s{sAw}, 1024')
    dma(vXA, S_XA, f's{sAx}')
    e(f's_add_u32 m0, s{sFill}, 8192')
    e(f's_add_u32 s{sT1}, s{sAw}, 2048')
    dma(vWA, S_WQKV, f's{sAw}')
    e(f's_add_u32 m0, s{sFill}, 16384')
    e(f's_add_u32 s{sAx}, s{sAx}, 128')
    dma(vWA, S_WQKV, f's{sT0}')
    e(f's_add_u32 m0, s{sFill}, 24576')
    e(f's_add_u32 s{sAw}, s{sAw}, {64*3072}')
    dma(vWA, S_WQKV, f's{sT1}')
    e(f's_add_u32 s{sFill}, s{sFill}, {SLOT}')
    e(f's_and_b32 s{sFill}, s{sFill}, {4*SLOT-1}')

def q_chunk(c):
    base = (c & 1) * SLOT
    for s in range(4):
        x = vFr + 8 * s
        e(f'ds_read_b128 {vr(x,4)}, v{[vA0,vA1,vA2,vA3][s]} offset:{base}')
        e(f'ds_read_b64_tr_b16 {vr(x+4,2)}, v{vA4} offset:{base+s*2048}')
        e(f'ds_read_b64_tr_b16 {vr(x+6,2)}, v{vA4} offset:{base+s*2048+512}')
    if c == 1:
        for a in (vA0, vA1, vA2, vA3, vA4): e(f'v_add_u32 v{a}, {2*SLOT}, v{a}')
    for s in range(4):
        x = vFr + 8 * s
        e(f's_waitcnt lgkmcnt({9-3*s})')
        e(f'v_mfma_f32_32x32x16_bf16 {vr(vQacc,16)}, {vr(x+4,4)}, {vr(x,4)}, {vr(vQacc,16)}')

cm('---- B projections ----')
e('s_waitcnt vmcnt(8)')
e('s_barrier')
stamp()
kx0, kx1, kw0, kw1, kd = vFr+32, vFr+36, vFr+40, vFr+44, vOf
e(f'ds_read_b128 {vr(kx0,4)}, v{vT0}')
e(f'ds_read_b64_tr_b16 {vr(kw0,2)}, v{vT1}')
e(f'ds_read_b64_tr_b16 {vr(kw0+2,2)}, v{vT1} offset:128')
e(f'ds_read_b128 {vr(kx1,4)}, v{vT2}')
e(f'ds_read_b64_tr_b16 {vr(kw1,2)}, v{vT1} offset:1024')
e(f'ds_read_b64_tr_b16 {vr(kw1+2,2)}, v{vT1} offset:1152')
e(f's_bitcmp1_b32 s{sHG}, 0')
e('s_waitcnt lgkmcnt(0)')
e('s_cbranch_scc1 L_kv_v')
e(f'v_mfma_f32_16x16x32_bf16 {vr(kd,4)}, {vr(kw0,4)}, {vr(kx0,4)}, 0')
e(f'v_mfma_f32_16x16x32_bf16 {vr(kd,4)}, {vr(kw1,4)}, {vr(kx1,4)}, {vr(kd,4)}')
e('s_branch L_kv_j')
lab('L_kv_v')
e(f'v_mfma_f32_16x16x32_bf16 {vr(kd,4)}, {vr(kx0,4)}, {vr(kw0,4)}, 0')
e(f'v_mfma_f32_16x16x32_bf16 {vr(kd,4)}, {vr(kx1,4)}, {vr(kw1,4)}, {vr(kd,4)}')
lab('L_kv_j')
q_chunk(0)
e(f'ds_write_b128 v{vT3}, {vr(kd,4)}')
e('s_waitcnt vmcnt(6) lgkmcnt(0)')
e('s_barrier')
e(f's_cmp_lg_u32 s{sW}, 0')
e('s_cbranch_scc1 L_kv_done')
for j in range(8):
    e(f'ds_read_b128 {vr(vOf+4*j,4)}, v{vT3} offset:{j*2048}')
e(f'v_lshrrev_b32 v{vT0}, 4, v0')
e(f'v_and_b32 v{vT1}, 1, v{vT0}')
e(f'v_lshrrev_b32 v{vT2}, 1, v{vT0}')
e(f's_lshr_b32 s{sT0}, s{sHG}, 2')
e(f's_lshl_b32 s{sT1}, s{sRB}, 1')
e(f's_add_u32 s{sT0}, s{sT0}, s{sT1}')
e(f's_lshl_b32 s{sT0}, s{sT0}, 11')
e(f's_bfe_u32 s{sT1}, s{sHG}, 0x10001')
e(f's_bitcmp1_b32 s{sHG}, 0')
e('s_cbranch_scc1 L_kv_av')
e(f'v_lshlrev_b32 v{vT1}, 9, v{vT1}')
e(f'v_lshl_add_u32 v{vT1}, v{vT2}, 3, v{vT1}')
e(f's_lshl_b32 s{sT1}, s{sT1}, 8')
e('s_branch L_kv_aj')
lab('L_kv_av')
e(f'v_lshlrev_b32 v{vT1}, 3, v{vT1}')
e(f'v_lshl_add_u32 v{vT1}, v{vT2}, 8, v{vT1}')
e(f's_lshl_b32 s{sT1}, s{sT1}, 9')
e(f's_add_u32 s{sT1}, s{sT1}, 1024')
lab('L_kv_aj')
e(f'v_lshl_add_u32 v{vT1}, v{vI}, 4, v{vT1}')
e(f's_add_u32 s{sT0}, s{sT0}, s{sT1}')
e('s_waitcnt lgkmcnt(0)')
for st in (4, 2, 1):
    for j in range(st):
        for p in (0, 2):
            a, b = vOf+4*j+p, vOf+4*(j+st)+p
            e(f'v_pk_add_f32 {vr(a,2)}, {vr(a,2)}, {vr(b,2)}')
e(f'v_cvt_pk_bf16_f32 v{vOf+4}, v{vOf}, v{vOf+1}')
e(f'v_cvt_pk_bf16_f32 v{vOf+5}, v{vOf+2}, v{vOf+3}')
e(f'buffer_store_dwordx2 {vr(vOf+4,2)}, v{vT1}, {sr(S_WS,4)}, s{sT0} offen sc1')
lab('L_kv_done')
a_fill()
q_chunk(1)
e('s_waitcnt vmcnt(8)')
e('s_barrier')
a_fill()
q_chunk(2)
e('s_waitcnt vmcnt(10)')
e('s_barrier')
a_fill()
q_chunk(3)
stamp()
e(f's_cmp_lg_u32 s{sW}, 0')
e('s_cbranch_scc1 L_flag_done')
e(f's_and_b32 s{sT0}, s2, 3')
e(f's_lshl_b32 s{sT0}, s{sT0}, 6')
e(f'v_mov_b32 v{vT0}, s{sT0}')
e(f'v_mov_b32 v{vT1}, 1')
e('s_mov_b64 exec, 1')
e('s_waitcnt vmcnt(12)')
e(f'global_atomic_add v{vT0}, v{vT1}, {sr(S_DBG,2)} sc1')
e('s_mov_b64 exec, -1')
lab('L_flag_done')
e(f's_cmp_ge_u32 s{sW}, 4')
e('s_nop 9')
e('s_cbranch_scc1 L_qx_hi')
e(f'ds_write_b128 v{vT3}, {vr(vQacc+8,4)}')
e(f'ds_write_b128 v{vT3}, {vr(vQacc+12,4)} offset:1024')
e('s_branch L_qx_j')
lab('L_qx_hi')
e(f'ds_write_b128 v{vT3}, {vr(vQacc,4)}')
e(f'ds_write_b128 v{vT3}, {vr(vQacc+4,4)} offset:1024')
e('s_waitcnt lgkmcnt(0)')
for i in range(8): e(f'v_mov_b32 v{vQacc+i}, v{vQacc+8+i}')
lab('L_qx_j')
e(f'v_xor_b32 v{vT3}, {4*2048}, v{vT3}')
e(f'v_and_b32 v{vPoll}, 3, v0')
e(f'v_lshlrev_b32 v{vT2}, 6, v{vPoll}')
e(f's_mov_b32 s{sC}, 0')

cm('---- A GEMM loop ----')
lab('L_aloop')
e(f'v_add_u32 v{vA0}, s{sXbase}, v{vXl}')
e(f'v_add_u32 v{vA4}, s{sWbase}, v{vWl}')
e(f'v_xor_b32 v{vA1}, 32, v{vA0}')
e(f'v_xor_b32 v{vA2}, 64, v{vA0}')
e(f'v_xor_b32 v{vA3}, 96, v{vA0}')
e(f'v_xor_b32 v{vA5}, 64, v{vA4}')
e('s_waitcnt vmcnt(8) lgkmcnt(0)')
e(f's_lshl_b32 s{sT0}, s{sC}, 3')
e(f's_add_u32 s{sT0}, s{sT0}, s{sW}')
e(f's_cmp_lg_u32 s{sT0}, {5*8+7}')
e('s_cbranch_scc1 L_nochk')
e(f's_mov_b32 s{sSpin}, 100000')
lab('L_chk')
e(f'v_cmp_ne_u32 vcc, 64, v{vPoll}')
e('s_cbranch_vccz L_nochk')
e(f's_sub_u32 s{sSpin}, s{sSpin}, 1')
e('s_cbranch_scc1 L_nochk')
e('s_sleep 2')
e(f'global_load_dword v{vPoll}, v{vT2}, {sr(S_DBG,2)} sc1')
e('s_waitcnt vmcnt(0)')
e('s_branch L_chk')
lab('L_nochk')
e('s_barrier')
def a_reads(s):
    x = vFr + 12 * s
    e(f'ds_read_b128 {vr(x,4)}, v{[vA0,vA1,vA2,vA3][s]}')
    e(f'ds_read_b64_tr_b16 {vr(x+4,2)}, v{vA4} offset:{s*2048}')
    e(f'ds_read_b64_tr_b16 {vr(x+6,2)}, v{vA4} offset:{s*2048+512}')
    e(f'ds_read_b64_tr_b16 {vr(x+8,2)}, v{vA5} offset:{s*2048}')
    e(f'ds_read_b64_tr_b16 {vr(x+10,2)}, v{vA5} offset:{s*2048+512}')
def a_mfma(s):
    x = vFr + 12 * s
    e(f'v_mfma_f32_32x32x16_bf16 {vr(vAcc,16)}, {vr(x+4,4)}, {vr(x,4)}, {vr(vAcc,16)}')
    e(f'v_mfma_f32_32x32x16_bf16 {vr(vAcc+16,16)}, {vr(x+8,4)}, {vr(x,4)}, {vr(vAcc+16,16)}')
a_reads(0); a_reads(1); a_reads(2)
e(f's_cmp_lg_u32 s{sT0}, {3*8+7}')
e('s_cbranch_scc1 L_nopoll')
e(f'global_load_dword v{vPoll}, v{vT2}, {sr(S_DBG,2)} sc1')
lab('L_nopoll')
e(f's_cmp_ge_u32 s{sC}, 5')
e('s_cbranch_scc1 L_kvfill')
a_fill()
e('s_branch L_filled')
lab('L_kvfill')
e(f's_cmp_eq_u32 s{sC}, 7')
e('s_cbranch_scc1 L_filled')
def kv_fill():
    e(f's_mov_b32 m0, s{sKV}')
    e('s_nop 0')
    for j in range(4): dma(vL16, S_WS, f's{sKV}', 1024*j, sc1=True)
    e(f's_add_u32 s{sKV}, s{sKV}, {SLOT}')
kv_fill()
lab('L_filled')
e('s_waitcnt lgkmcnt(10)')
a_mfma(0)
a_reads(3)
e('s_waitcnt lgkmcnt(10)')
a_mfma(1)
e(f's_add_u32 s{sXbase}, s{sXbase}, s{sXstep}')
e(f's_add_u32 s{sWbase}, s{sWbase}, {SLOT}')
e(f's_and_b32 s{sWbase}, s{sWbase}, {4*SLOT-1}')
e(f's_cmp_ge_u32 s{sW}, 6')
e(f's_cselect_b32 s{sT0}, -1, {4*SLOT-1}')
e(f's_and_b32 s{sXbase}, s{sXbase}, s{sT0}')
e('s_waitcnt lgkmcnt(5)')
a_mfma(2)
e(f's_add_u32 s{sC}, s{sC}, 1')
e(f's_cmp_lt_u32 s{sC}, 8')
e('s_waitcnt lgkmcnt(0)')
a_mfma(3)
e('s_cbranch_scc1 L_aloop')
stamp()

cm('---- finalize B Q ; write A frags ----')
e(f'ds_read_b128 {vr(vFr,4)}, v{vT3}')
e(f'ds_read_b128 {vr(vFr+4,4)}, v{vT3} offset:1024')
e(f's_mov_b32 s{sT0}, {f32(CSCALE)}')
e(f's_lshl_b32 s{sT1}, s{sW}, 12')
e(f's_add_u32 s{sT1}, s{sT1}, {2*SLOT}')
e(f'v_add_u32 v{vA0}, s{sT1}, v{vL16}')
e(f'v_mov_b32 v{vFr+8}, 0x3f803f80')
e(f'v_mov_b32 v{vFr+9}, 0x3f803f80')
e(f'v_lshlrev_b32 v{vA1}, 3, v0')
e(f's_cmp_ge_u32 s{sW}, 2')
e('s_waitcnt lgkmcnt(0)')
for i in range(8): e(f'v_add_f32 v{vQacc+i}, v{vQacc+i}, v{vFr+i}')
for i in range(8): e(f'v_mul_f32 v{vQacc+i}, s{sT0}, v{vQacc+i}')
for i in range(4): e(f'v_cvt_pk_bf16_f32 v{vQ+i}, v{vQacc+2*i}, v{vQacc+2*i+1}')
e('s_cbranch_scc1 L_noscale')
for i in range(32): e(f'v_mul_f32 v{vAcc+i}, s{sT0}, v{vAcc+i}')
lab('L_noscale')
for hd in range(4):
    for i in range(4):
        e(f'v_cvt_pk_bf16_f32 v{vAcc+8*hd+i}, v{vAcc+8*hd+2*i}, v{vAcc+8*hd+2*i+1}')
    e(f'ds_write_b128 v{vA0}, {vr(vAcc+8*hd,4)} offset:{hd*1024}')
e(f'v_sub_u32 v{vT3}, v{vT3}, v{vA1}')
e(f'ds_write_b64 v{vT3}, {vr(vFr+8,2)}')
e(f's_and_b32 s{sT0}, s{sW}, 1')
e(f's_lshr_b32 s{sT1}, s{sW}, 1')
e(f's_lshl_b32 s{sT1}, s{sT1}, 10')
e(f's_add_u32 s{sT1}, s{sT1}, {2*SLOT}')
e(f's_lshl_b32 s{sT2}, s{sT0}, 12')
e(f's_add_u32 s{sT2}, s{sT2}, s{sT1}')
e(f'v_add_u32 v{vA0}, s{sT2}, v{vL16}')
e(f's_cmp_eq_u32 s{sT0}, 0')
e(f's_cselect_b32 s{sT3}, 6, 2')
e(f's_lshl_b32 s{sT3}, s{sT3}, 12')
e(f's_add_u32 s{sT3}, s{sT3}, s{sT1}')
e(f'v_add_u32 v{vA1}, s{sT3}, v{vL16}')
e(f'v_and_b32 v{vT0}, 1, v0')
e(f'v_lshlrev_b32 v{vT0}, 5, v{vT0}')
e(f'v_lshl_add_u32 v{vT0}, v{vH}, 3, v{vT0}')
e(f'v_lshrrev_b32 v{vT1}, 2, v{vI}')
e(f'v_add_u32 v{vT0}, v{vT0}, v{vT1}')
e(f'v_lshlrev_b32 v{vT0}, 4, v{vT0}')
e(f'v_and_b32 v{vT1}, 2, v0')
e(f'v_lshl_add_u32 v{vT0}, v{vT1}, 2, v{vT0}')
e(f's_add_u32 s{sT2}, s{sT2}, {4*4096}')
e(f'v_add_u32 v{vA2}, s{sT2}, v{vT0}')
e(f's_cmp_eq_u32 s{sT0}, 0')
e(f's_cselect_b32 s{sT3}, 7, 4')
e(f's_lshl_b32 s{sT3}, s{sT3}, 12')
e(f's_add_u32 s{sT3}, s{sT3}, s{sT1}')
e(f'v_add_u32 v{vA3}, s{sT3}, v{vT0}')
e(f's_xor_b32 s{sT3}, s{sW}, 4')
e(f's_lshl_b32 s{sT3}, s{sT3}, 11')
e(f's_add_u32 s{sT3}, s{sT3}, {R}')
e(f'v_mov_b32 v{vT1}, s{sT3}')
e(f'v_and_b32 v{vT0}, 16, v0')
e(f'v_cmp_ne_u32 vcc, 0, v{vT0}')
e('s_nop 1')
e(f'v_cndmask_b32 v{vA2}, v{vA2}, v{vT1}, vcc')
e(f'v_cndmask_b32 v{vA3}, v{vA3}, v{vT1}, vcc')
e('s_waitcnt lgkmcnt(0)')
e('s_barrier')
stamp()
cm('---- A local attention ----')
lq, lk, lp, lv = vFr, vFr+4, vFr+8, vFr+12
lS, lP, lO = vAcc, vAcc+16, vQacc
e(f'ds_read_b128 {vr(lq,4)}, v{vA0}')
e(f'ds_read_b128 {vr(lk,4)}, v{vA0} offset:8192')
e(f'ds_read_b128 {vr(lp,4)}, v{vA1}')
e(f'ds_read_b64_tr_b16 {vr(lv,2)}, v{vA2}')
e(f'ds_read_b64_tr_b16 {vr(lv+2,2)}, v{vA2} offset:64')
e(f'ds_read_b64_tr_b16 {vr(lv+4,2)}, v{vA2} offset:256')
e(f'ds_read_b64_tr_b16 {vr(lv+6,2)}, v{vA2} offset:320')
e(f'ds_read_b64_tr_b16 {vr(lv+8,2)}, v{vA3} offset:256')
e(f'ds_read_b64_tr_b16 {vr(lv+10,2)}, v{vA3} offset:320')
e(f's_add_u32 s{sT0}, s{sKV}, {SLOT}')
e(f's_mov_b32 m0, s{sT0}')
for i in range(16): e(f'v_mov_b32 v{lO+i}, 0')
for j in range(4): dma(vL16, S_WS, f's{sT0}', 1024*j, sc1=True)
e('s_waitcnt lgkmcnt(6)')
e(f'v_mfma_f32_32x32x16_bf16 {vr(lS,16)}, {vr(lk,4)}, {vr(lq,4)}, {vr(vMask,16)}')
e(f'v_mfma_f32_32x32x16_bf16 {vr(lP,16)}, {vr(lp,4)}, {vr(lq,4)}, {vr(vMask+8,16)}')
e('s_nop 10')
regs = [lS+i for i in range(16)] + [lP+8+i for i in range(8)]
e(f'v_max3_f32 v{vT0}, v{regs[0]}, v{regs[1]}, v{regs[2]}')
e(f'v_max3_f32 v{vT1}, v{regs[3]}, v{regs[4]}, v{regs[5]}')
for k in range(6, 24, 4):
    e(f'v_max3_f32 v{vT0}, v{vT0}, v{regs[k]}, v{regs[k+1]}')
    if k + 3 < 24: e(f'v_max3_f32 v{vT1}, v{vT1}, v{regs[k+2]}, v{regs[k+3]}')
e(f'v_max_f32 v{vT0}, v{vT0}, v{vT1}')
e(f'v_mov_b32 v{vT1}, v{vT0}')
e('s_nop 1')
e(f'v_permlane32_swap_b32 v{vT0}, v{vT1}')
e(f'v_max_f32 v{vT0}, v{vT0}, v{vT1}')
for k in range(24): e(f'v_sub_f32 v{regs[k]}, v{regs[k]}, v{vT0}')
for k in range(24): e(f'v_exp_f32 v{regs[k]}, v{regs[k]}')
e('s_waitcnt lgkmcnt(0)')
e(f'v_smfmac_f32_32x32x32_bf16 {vr(lO,16)}, {vr(lv,4)}, {vr(lS,8)}, v{vIdx}')
e(f'v_smfmac_f32_32x32x32_bf16 {vr(lO,16)}, {vr(lv+4,4)}, {vr(lS+8,8)}, v{vIdx}')
e(f'v_smfmac_f32_32x32x32_bf16 {vr(lO,16)}, {vr(lv+8,4)}, {vr(lP+8,8)}, v{vIdx}')
vKa, vVa = vA0, vA1
e(f'v_mov_b32 v{vKa}, v{vL16}')
e(f'v_lshlrev_b32 v{vVa}, 4, v{vI}')
e(f'v_lshl_add_u32 v{vVa}, v{vH}, 8, v{vVa}')
e(f's_mov_b32 s{sT0}, 0xfffffffe')
e('s_waitcnt vmcnt(8)')
e('s_barrier')
e('s_nop 6')
def norm_store(O, slot, tmp):
    e(f'v_rcp_f32 v{tmp}, v{O+8}')
    e('s_nop 0')
    for i in range(8): e(f'v_mul_f32 v{O+i}, v{O+i}, v{tmp}')
    for i in range(4): e(f'v_cvt_pk_bf16_f32 v{O+i}, v{O+2*i}, v{O+2*i+1}')
    for i in range(4): e(f'v_min_u32 v{O+i}, s{sT0}, v{O+i}')
    e(f'buffer_store_dwordx4 {vr(O,4)}, v{vL16}, {sr(S_WS,4)}, s{slot} offen sc1')
if '--x=zrows' in sys.argv:
    e(f'v_and_b32 v{vT1}, 27, v0')
    e(f'v_cmp_eq_u32 vcc, 16, v{vT1}')
    e(f'v_mov_b32 v{vT1}, 0x3f803f80')
    e('s_nop 0')
    e(f'v_cndmask_b32 v{aV}, 0, v{vT1}, vcc')
    for i in range(1,32): e(f'v_mov_b32 v{aV+i}, v{aV}')
else:
    for i in range(32): e(f'v_mov_b32 v{aV+i}, 0x3f803f80')
e(f'ds_read_b128 {vr(aK,4)}, v{vKa}')
e(f'ds_read_b128 {vr(aK+4,4)}, v{vKa} offset:2048')
e(f's_mov_b64 exec, {sr(sVM,2)}')
for j in range(4):
    e(f'ds_read_b128 {vr(aV+4*j,4)}, v{vVa} offset:{(j>>1)*2048+1024+(j&1)*512}')
e('s_mov_b64 exec, -1')
kv_fill()
norm_store(lO, sOAslot, vT0)
stamp()

cstamp(10)
cm('---- B attention ----')
e('s_waitcnt lgkmcnt(0)')
e(f'v_mfma_f32_32x32x16_bf16 {vr(aS0,16)}, {vr(aK,4)}, {vr(vQ,4)}, 0')
for i in range(16): e(f'v_mov_b32 v{aO+i}, 0')
e(f'v_max3_f32 v{vT0}, v{aS0}, v{aS0+1}, v{aS0+2}')
e(f'v_max3_f32 v{vT1}, v{aS0+3}, v{aS0+4}, v{aS0+5}')
for k in range(6, 16, 4):
    e(f'v_max3_f32 v{vT0}, v{vT0}, v{aS0+k}, v{aS0+k+1}')
    if k + 3 < 16: e(f'v_max3_f32 v{vT1}, v{vT1}, v{aS0+k+2}, v{aS0+k+3}')
e(f'v_max_f32 v{vT0}, v{vT0}, v{vT1}')
e(f'v_mov_b32 v{vT1}, v{vT0}')
e('s_nop 1')
e(f'v_permlane32_swap_b32 v{vT0}, v{vT1}')
e(f'v_max_f32 v{vT0}, v{vT0}, v{vT1}')
e(f'v_sub_f32 v{aC}, {f32(-MOFF)}, v{vT0}')
for i in range(1, 16): e(f'v_mov_b32 v{aC+i}, v{aC}')
for i in range(16): e(f'v_add_f32 v{aS0+i}, v{aS0+i}, v{aC}')
for i in range(8): e(f'v_mov_b32 v{aS1+8+i}, 0')
e(f's_lshl_b32 s{sWoff}, s{sW}, 15')
e(f's_add_u32 s{sWoff}, s{sWoff}, s{sHG128}')
e(f's_lshl_b32 s{sFill}, s{sW}, 12')
e(f's_mov_b32 s{sC}, 0')
e('s_branch L_att_entry')

XP = [a[4:] for a in sys.argv if a.startswith('--x=')]
_e = e
def pair(par, ld_off):
    def e(s):
        if 'nopv' in XP and 'smfmac' in s: return
        if 'noqk' in XP and 'v_mfma' in s: return
        if 'noexp' in XP and 'v_exp' in s: s = 's_nop 1'
        if 'nolds' in XP and ('ds_read' in s or 'exec' in s): return
        _e(s)
    K = aK + 8 * par; Kn = aK + 8 * (par ^ 1)
    V = aV + 16 * par; Vn = aV + 16 * (par ^ 1)
    def ex(S, i): e(f'v_exp_f32 v{S+i}, v{S+i}')
    ex(aS0, 0); ex(aS0, 1)
    e(f'v_smfmac_f32_32x32x32_bf16 {vr(aO,16)}, {vr(Vn+12,4)}, {vr(aS1+8,8)}, v{vIdx}')
    e(f's_mov_b64 exec, {sr(sVM,2)}')
    for j in range(4):
        e(f'ds_read_b128 {vr(Vn+4*j,4)}, v{vVa} offset:{ld_off+(j>>1)*2048+1024+(j&1)*512}')
    e('s_mov_b64 exec, -1')
    for i in range(2, 5): ex(aS0, i)
    e(f'v_mfma_f32_32x32x16_bf16 {vr(aS1,16)}, {vr(K+4,4)}, {vr(vQ,4)}, {vr(aC,16)}')
    e(f'ds_read_b128 {vr(Kn,4)}, v{vKa} offset:{ld_off}')
    e(f'ds_read_b128 {vr(Kn+4,4)}, v{vKa} offset:{ld_off+2048}')
    for i in range(5, 10): ex(aS0, i)
    e(f'v_smfmac_f32_32x32x32_bf16 {vr(aO,16)}, {vr(V,4)}, {vr(aS0,8)}, v{vIdx}')
    for i in range(10, 16): ex(aS0, i)
    ex(aS1, 0); ex(aS1, 1)
    e(f'v_smfmac_f32_32x32x32_bf16 {vr(aO,16)}, {vr(V+4,4)}, {vr(aS0+8,8)}, v{vIdx}')
    e('s_waitcnt lgkmcnt(0)')
    for i in range(2, 5): ex(aS1, i)
    e(f'v_mfma_f32_32x32x16_bf16 {vr(aS0,16)}, {vr(Kn,4)}, {vr(vQ,4)}, {vr(aC,16)}')
    for i in range(5, 10): ex(aS1, i)
    e(f'v_smfmac_f32_32x32x32_bf16 {vr(aO,16)}, {vr(V+8,4)}, {vr(aS1,8)}, v{vIdx}')
    for i in range(10, 16): ex(aS1, i)

e('.p2align 6')
lab('L_att_top')
e(f'v_add_u32 v{vKa}, {SLOT}, v{vKa}')
e(f'v_add_u32 v{vVa}, {SLOT}, v{vVa}')
def att_stamps():
    for j in range(1, 5):
        e(f's_cmp_eq_u32 s{sC}, {j}')
        e(f's_cbranch_scc0 L_st{j}')
        stamp2(j)
        lab(f'L_st{j}')
if STAMPS and STMODE == 'att0': att_stamps()
e('s_waitcnt vmcnt(0)')
e('s_barrier')
if STAMPS and STMODE == 'att1': att_stamps()
e(f's_mov_b32 m0, s{sFill}')
e(f's_add_u32 s{sT0}, s{sWoff}, {8192-1024}')
e(f's_add_u32 s{sT1}, s{sWoff}, {2*(8192-1024)}')
e(f's_add_u32 s{sT2}, s{sWoff}, {3*(8192-1024)}')
e(f's_cmp_ge_u32 s{sC}, 3')
e('s_cbranch_scc1 L_wob')
dma(vW, S_WOA, f's{sWoff}'); dma(vW, S_WOA, f's{sT0}', 1024); dma(vW, S_WOA, f's{sT1}', 2048); dma(vW, S_WOA, f's{sT2}', 3072)
e('s_branch L_woj')
lab('L_wob')
dma(vW, S_WOB, f's{sWoff}'); dma(vW, S_WOB, f's{sT0}', 1024); dma(vW, S_WOB, f's{sT1}', 2048); dma(vW, S_WOB, f's{sT2}', 3072)
e(f's_cmp_eq_u32 s{sC}, 3')
e('s_cbranch_scc0 L_woj')
def o_loads():
    e(f's_add_u32 s{sT0}, s{sOoff}, 4096')
    for j in range(8):
        so = f's{sOoff}' if j < 4 else f's{sT0}'
        o = f' offset:{(j&3)*1024}' if j & 3 else ''
        e(f'buffer_load_dwordx4 {vr(vOf+4*j,4)}, v{vL16}, {sr(S_WS,4)}, {so} offen{o} sc1')
o_loads()
lab('L_woj')
e(f's_xor_b32 s{sWoff}, s{sWoff}, {256*1024}')
e(f's_add_u32 s{sFill}, s{sFill}, {SLOT}')
pair(1, 0)
e(f's_cmp_eq_u32 s{sC}, 4')
e('s_cbranch_scc1 L_att_done')
lab('L_att_entry')
for p in range(7):
    pair(p & 1, (p + 1) * 4096)
e(f's_add_u32 s{sC}, s{sC}, 1')
e('s_branch L_att_top')
lab('L_att_done')
e('s_nop 1')
e(f'v_smfmac_f32_32x32x32_bf16 {vr(aO,16)}, {vr(aV+16+12,4)}, {vr(aS1+8,8)}, v{vIdx}')
stamp()
cstamp(11)
e(f'v_lshlrev_b32 v{vT0}, 9, v{vH}')
e(f'v_sub_u32 v{vA4}, v{vWl}, v{vT0}')
e(f's_lshr_b32 s{sT1}, s{sW}, 1')
e(f's_lshl_b32 s{sT2}, s{sT1}, 14')
e(f'v_add_u32 v{vA4}, s{sT2}, v{vA4}')
e(f'v_xor_b32 v{vA5}, 64, v{vA4}')
e(f'v_xor_b32 v{vT0}, v{vH}, v{vI}')
e(f'v_lshlrev_b32 v{vT0}, 4, v{vT0}')
e(f'v_lshl_add_u32 v{vT0}, v{vN}, 8, v{vT0}')
e(f's_lshl_b32 s{sT2}, s{sW}, 13')
e(f'v_add_u32 v{vA0}, s{sT2}, v{vT0}')
e(f's_mov_b32 s{sT0}, 0xfffffffe')
lab('L_att_check')
e(f'v_add_f32 v{vT1}, abs(v{aO}), abs(v{aO+1})')
e(f'v_add_f32 v{vT2}, abs(v{aO+2}), abs(v{aO+3})')
e(f'v_add_f32 v{vT1}, v{vT1}, abs(v{aO+4})')
e(f'v_add_f32 v{vT2}, v{vT2}, abs(v{aO+5})')
e(f'v_add_f32 v{vT1}, v{vT1}, abs(v{aO+6})')
e(f'v_add_f32 v{vT2}, v{vT2}, abs(v{aO+7})')
e(f'v_add_f32 v{vT1}, v{vT1}, v{aO+8}')
e(f'v_add_f32 v{vT1}, v{vT1}, v{vT2}')
e(f'v_mov_b32 v{vT2}, 0x7e000000')
e(f'v_cmp_nlt_f32 vcc, v{vT1}, v{vT2}')
e('s_cbranch_vccnz L_fallback')
lab('L_att_ok')
norm_store(aO, sOBslot, vT1)
e(f'v_lshrrev_b32 v{vT0}, 3, v0')
e(f's_lshl_b32 s{sT2}, s{sT1}, 3')
e(f'v_add_u32 v{vT0}, s{sT2}, v{vT0}')
e(f'v_and_b32 v{vT1}, 7, v0')
e(f'v_lshlrev_b32 v{vT2}, 1, v{vT1}')
e(f'v_and_b32 v{vT3}, 15, v{vT0}')
e(f'v_xor_b32 v{vT2}, v{vT2}, v{vT3}')
e(f'v_lshlrev_b32 v{vT2}, 4, v{vT2}')
e(f'v_lshl_add_u32 v{vT2}, v{vT0}, 8, v{vT2}')
e(f's_and_b32 s{sT2}, s{sW}, 1')
e(f's_lshl_b32 s{sT3}, s{sT2}, 13')
e(f'v_add_u32 v{vA1}, s{sT3}, v{vT2}')
e(f'v_xor_b32 v{vA2}, 16, v{vA1}')
e(f'v_lshlrev_b32 v{vT1}, 4, v{vT1}')
e(f'v_lshl_add_u32 v{vA3}, v{vT0}, 11, v{vT1}')
e(f's_lshl_b32 s{sOutOff}, s{sRB}, 17')
e(f's_lshl_b32 s{sT2}, s{sT2}, 16')
e(f's_add_u32 s{sOutOff}, s{sOutOff}, s{sT2}')
e(f's_add_u32 s{sOutOff}, s{sOutOff}, s{sHG128}')
e(f's_mov_b32 s{sTail}, 0')
e(f's_mov_b32 s{sSpin}, 100000')
e('s_branch L_tail_chk')

cm('---- tail: out projections ----')
tA, tW = 16, 48
lab('L_tail_retry')
e('s_sleep 1')
o_loads()
lab('L_tail_top')
e('s_waitcnt vmcnt(0)')
lab('L_tail_chk')
e(f'v_max3_u32 v{vT0}, v{vOf}, v{vOf+1}, v{vOf+2}')
e(f'v_max3_u32 v{vT1}, v{vOf+3}, v{vOf+4}, v{vOf+5}')
for k in range(6, 32, 4):
    e(f'v_max3_u32 v{vT0}, v{vT0}, v{vOf+k}, v{vOf+k+1}')
    if k + 3 < 32: e(f'v_max3_u32 v{vT1}, v{vT1}, v{vOf+k+2}, v{vOf+k+3}')
e(f'v_max_u32 v{vT0}, v{vT0}, v{vT1}')
e(f'v_cmp_eq_u32 vcc, -1, v{vT0}')
e(f's_sub_u32 s{sSpin}, s{sSpin}, 1')
e('s_cbranch_scc1 L_tail_go')
e('s_cbranch_vccnz L_tail_retry')
lab('L_tail_go')
def t_reads(s):
    x = tW + 8 * s
    e(f'ds_read_b64_tr_b16 {vr(x,2)}, v{vA4} offset:{s*2048}')
    e(f'ds_read_b64_tr_b16 {vr(x+2,2)}, v{vA4} offset:{s*2048+1024}')
    e(f'ds_read_b64_tr_b16 {vr(x+4,2)}, v{vA5} offset:{s*2048}')
    e(f'ds_read_b64_tr_b16 {vr(x+6,2)}, v{vA5} offset:{s*2048+1024}')
def t_mfma(s):
    x = tW + 8 * s
    c0 = '0' if s == 0 else vr(tA,16)
    c1 = '0' if s == 0 else vr(tA+16,16)
    e(f'v_mfma_f32_32x32x16_bf16 {vr(tA,16)}, {vr(x,4)}, {vr(vOf+4*s,4)}, {c0}')
    e(f'v_mfma_f32_32x32x16_bf16 {vr(tA+16,16)}, {vr(x+4,4)}, {vr(vOf+4*s,4)}, {c1}')
t_reads(0); t_reads(1); t_reads(2)
for s in range(8):
    nleft = min(8, s + 3) - (s + 1)
    e(f's_waitcnt lgkmcnt({4*nleft})')
    t_mfma(s)
    if s + 3 < 8: t_reads(s + 3)
e(f's_cmp_lg_u32 s{sTail}, 0')
e('s_cbranch_scc1 L_tail_nold')
e(f's_add_u32 s{sOoff}, s{sOoff}, {hex(WS_OB-WS_OA)}')
e('s_waitcnt vmcnt(0)')
o_loads()
lab('L_tail_nold')
e('s_barrier')
e('s_nop 8')
for ct in range(2):
    for j in range(4):
        xr = (ct*8 + 2*j) << 4
        if xr:
            e(f'v_xor_b32 v{vT0+j}, {xr}, v{vA0}')
            e(f'ds_write_b128 v{vT0+j}, {vr(tA+16*ct+4*j,4)}')
        else:
            e(f'ds_write_b128 v{vA0}, {vr(tA,4)}')
e('s_waitcnt lgkmcnt(0)')
e('s_barrier')
for kq in range(4):
    e(f'ds_read_b128 {vr(tW+8*kq,4)}, v{vA1} offset:{kq*16384}')
    e(f'ds_read_b128 {vr(tW+8*kq+4,4)}, v{vA2} offset:{kq*16384}')
for a in (vA0, vA1, vA2, vA4, vA5): e(f'v_add_u32 v{a}, {2*SLOT}, v{a}')
e('s_waitcnt lgkmcnt(4)')
for i in range(0, 8, 2): e(f'v_pk_add_f32 {vr(tW+i,2)}, {vr(tW+i,2)}, {vr(tW+8+i,2)}')
e('s_waitcnt lgkmcnt(0)')
for i in range(0, 8, 2): e(f'v_pk_add_f32 {vr(tW+16+i,2)}, {vr(tW+16+i,2)}, {vr(tW+24+i,2)}')
for i in range(0, 8, 2): e(f'v_pk_add_f32 {vr(tW+i,2)}, {vr(tW+i,2)}, {vr(tW+16+i,2)}')
for i in range(4): e(f'v_cvt_pk_bf16_f32 v{112+i}, v{tW+2*i}, v{tW+2*i+1}')
e(f'buffer_store_dwordx4 {vr(112,4)}, v{vA3}, {sr(S_OUT,4)}, s{sOutOff} offen')
e(f's_add_u32 s{sOutOff}, s{sOutOff}, 1024')
e(f's_add_u32 s{sTail}, s{sTail}, 1')
e(f's_cmp_lt_u32 s{sTail}, 2')
if STAMPS:
    e('s_cbranch_scc0 L_tail_fin')
    stamp()
    e('s_branch L_tail_top')
    lab('L_tail_fin')
    e('s_waitcnt vmcnt(0)')
    stamp()
    e('s_waitcnt lgkmcnt(0)')
    n = NSTAMP[0]
    ECHO = [a[7:] for a in sys.argv if a.startswith('--echo=')]
    if ECHO:
        a, b, mul = map(int, ECHO[0].split(','))
        e(f's_sub_u32 s{sT0}, s{sST+2*b}, s{sST+2*a}')
        e(f's_mul_i32 s{sT0}, s{sT0}, {mul}')
        lab('L_echo')
        e(f's_memrealtime {sr(4,2)}')
        e('s_waitcnt lgkmcnt(0)')
        e(f's_sub_u32 s{sT1}, s4, s{sST+18}')
        e(f's_cmp_lt_u32 s{sT1}, s{sT0}')
        e('s_cbranch_scc1 L_echo')
    assert n <= 10
    for i in range(12): e(f'v_mov_b32 v{16+i}, s{sST+2*i}')
    e(f's_getreg_b32 s{sT0}, hwreg(HW_REG_XCC_ID)')
    e(f'v_mov_b32 v28, s{sT0}')
    e(f'v_mov_b32 v29, s{sSpin}')
    e(f'v_mov_b32 v30, s{sFB}')
    e(f'v_mov_b32 v31, 0')
    e(f's_lshl_b32 s{sT0}, s2, 3')
    e(f's_add_u32 s{sT0}, s{sT0}, s{sW}')
    e(f's_lshl_b32 s{sT0}, s{sT0}, 6')
    e(f's_add_u32 s{sT0}, s{sT0}, {hex(WS_STAMP)}')
    e('v_mov_b32 v0, 0')
    e('s_mov_b64 exec, 1')
    if '--dbgst' in sys.argv:
        e(f's_lshl_b32 s{sT1}, s2, 3')
        e(f's_add_u32 s{sT1}, s{sT1}, s{sW}')
        e(f's_cmp_lg_u32 s{sT1}, {100*8+4}')
        e('s_cbranch_scc1 L_nodbg')
        for i in range(1,10):
            e(f'v_subrev_u32 v{32+i}, s{sST}, v{16+i}')
            e(f'global_store_dword v0, v{32+i}, {sr(S_DBG,2)} offset:{4*i}')
        e(f'v_sub_u32 v32, v27, v26')
        e(f'global_store_dword v0, v32, {sr(S_DBG,2)} offset:40')
        lab('L_nodbg')
    for i in range(4):
        e(f'buffer_store_dwordx4 {vr(16+4*i,4)}, v0, {sr(S_WS,4)}, s{sT0} offen offset:{16*i}')
else:
    e('s_cbranch_scc1 L_tail_top')
lab('L_end')
e('s_endpgm')

cm('---- fallback: true max, K/V from global ----')
lab('L_fallback')
e(f's_cmp_lg_u32 s{sFB}, 0')
e('s_cbranch_scc1 L_att_ok')
e(f's_mov_b32 s{sFB}, 1')
e(f'v_mov_b32 v{vT1}, 0xff800000')
e(f's_mov_b32 s{sT2}, 0')
lab('L_fb_max')
e(f'buffer_load_dwordx4 {vr(aK,4)}, v{vL16}, {sr(S_WS,4)}, s{sT2} offen sc1')
e('s_waitcnt vmcnt(0)')
e(f'v_mfma_f32_32x32x16_bf16 {vr(aS0,16)}, {vr(aK,4)}, {vr(vQ,4)}, 0')
e('s_nop 15')
for k in range(0, 16, 2): e(f'v_max3_f32 v{vT1}, v{vT1}, v{aS0+k}, v{aS0+k+1}')
e(f's_add_u32 s{sT2}, s{sT2}, 2048')
e(f's_cmp_lt_u32 s{sT2}, {64*2048}')
e('s_cbranch_scc1 L_fb_max')
e(f'v_mov_b32 v{vT2}, v{vT1}')
e('s_nop 1')
e(f'v_permlane32_swap_b32 v{vT1}, v{vT2}')
e(f'v_max_f32 v{vT1}, v{vT1}, v{vT2}')
for i in range(16): e(f'v_sub_f32 v{aC+i}, 0, v{vT1}')
for i in range(16): e(f'v_mov_b32 v{aO+i}, 0')
e(f'v_lshlrev_b32 v{vT2}, 4, v{vI}')
e(f'v_lshl_add_u32 v{vT2}, v{vH}, 8, v{vT2}')
e(f's_mov_b32 s{sT2}, 0')
lab('L_fb_pv')
e(f'buffer_load_dwordx4 {vr(aK,4)}, v{vL16}, {sr(S_WS,4)}, s{sT2} offen sc1')
e(f's_mov_b64 exec, {sr(sVM,2)}')
e(f'buffer_load_dwordx4 {vr(aV,4)}, v{vT2}, {sr(S_WS,4)}, s{sT2} offen offset:1024 sc1')
e(f'buffer_load_dwordx4 {vr(aV+4,4)}, v{vT2}, {sr(S_WS,4)}, s{sT2} offen offset:1536 sc1')
e('s_mov_b64 exec, -1')
e('s_waitcnt vmcnt(0)')
e(f'v_mfma_f32_32x32x16_bf16 {vr(aS0,16)}, {vr(aK,4)}, {vr(vQ,4)}, {vr(aC,16)}')
e('s_nop 15')
for i in range(16): e(f'v_exp_f32 v{aS0+i}, v{aS0+i}')
e('s_nop 1')
e(f'v_smfmac_f32_32x32x32_bf16 {vr(aO,16)}, {vr(aV,4)}, {vr(aS0,8)}, v{vIdx}')
e(f'v_smfmac_f32_32x32x32_bf16 {vr(aO,16)}, {vr(aV+4,4)}, {vr(aS0+8,8)}, v{vIdx}')
e(f's_add_u32 s{sT2}, s{sT2}, 2048')
e(f's_cmp_lt_u32 s{sT2}, {64*2048}')
e('s_cbranch_scc1 L_fb_pv')
e('s_nop 15')
e('s_branch L_att_ok')

HDR = open(f'cdna_kernels/{NAME}.s.ref').read().split('\n')
hdr = []
for line in HDR:
    if line.startswith('; @launch'): break
    hdr.append(line)
txt = '\n'.join(hdr) + '\n; @launch grid=(256,1,1) block=(512,1,1) lds=163840\n'
txt += f'''.amdgcn_target "amdgcn-amd-amdhsa--gfx950"
.text
.globl {NAME}_kernel
.p2align 8
.type {NAME}_kernel,@function
'''
txt += '\n'.join(L) + '\n'
txt += f'''.section .rodata,"a"
.p2align 6
.amdhsa_kernel {NAME}_kernel
  .amdhsa_next_free_vgpr 192
  .amdhsa_next_free_sgpr 102
  .amdhsa_accum_offset 192
  .amdhsa_group_segment_fixed_size 0
  .amdhsa_kernarg_size 88
  .amdhsa_user_sgpr_count 2
  .amdhsa_user_sgpr_kernarg_segment_ptr 1
  .amdhsa_system_sgpr_workgroup_id_x 1
.end_amdhsa_kernel
'''
open(OUT, 'w').write(txt)
print('wrote', OUT, len(L), 'lines')
```

```python
import sys, struct

NAME = 'concat_heads__sliding_local_dilated__grouped_kv_mqa__prompt'
STAMPS = '--stamps' in sys.argv
STMODE = ([a[5:] for a in sys.argv if a.startswith('--st=')] + ['all'])[0]
XP = [a[4:] for a in sys.argv if a.startswith('--x=')]
args = [a for a in sys.argv[1:] if not a.startswith('--')]
OUT = args[0] if args else f'cdna_kernels/{NAME}.s'

L = []
VMQ = []
NBAR = [0]
def e(s, tag=None):
    if tag is not None: VMQ.append(tag)
    if s == 's_barrier': NBAR[0] += 1
    L.append('    ' + s.strip())
def lab(s): L.append(s + ':')
def cm(s): L.append('    ; ' + s)
def vr(i, n): return f'v[{i}:{i+n-1}]'
def sr(i, n): return f's[{i}:{i+n-1}]'
def f32(x): return '0x%08x' % struct.unpack('<I', struct.pack('<f', x))[0]
def vmn(tag):
    idx = max(i for i, t in enumerate(VMQ) if t == tag)
    n = len(VMQ) - 1 - idx
    assert n <= 63
    return n
def E(*lines):
    for s in lines: e(s)

SLOT = 32768
R = 131072
KVB = 3 * SLOT
WS_OA = 0x100000
WS_OB = 0x300000
WS_STAMP = 0x500000
WS_FKV = 0x40000
WS_FOA = 0x48000
WS_SIZE = 0x600000
CSCALE = 0.25 * 1.4426950408889634
MOFF = 40.0
SPIN = 200000
NT = '' if 'nont' in XP else ' nt'

S_XA, S_WQKV, S_WOA, S_XB, S_WQ, S_WKV, S_WOB, S_OUT, S_WS = 8, 12, 16, 20, 24, 28, 32, 36, 40
S_DBG = 44
S_WV = 46
sW = 48
sRB, sHG = 49, 50
sT0, sT1, sT2, sT3 = 51, 52, 53, 54
sC = 55
sStepA, sStepB = 56, 57
sXo, sWo = 58, 59
sKVo = 60
sW4k = 61
sW8k = 62
sWq = 63
sVM = 64
sOoff = 66
sOutOff = 67
sWoff = 68
sSpin = 69
sOslot = 70
sOslot2 = 71
sFB = 72
sHG128 = 73
sCS = 74
sWqm = 75
sRot, sW2k = 4, 5
sF0, sF1, sF2 = 3, 6, 7
sST = 76
sP = 46
sNon = 100

vL16, vW, vWA, vXA = 1, 2, 3, 4
vN, vH, vI = 5, 6, 7
vT0, vT1, vT2, vT3 = 8, 9, 10, 11
vP0, vP1, vXx, vG = 12, 13, 14, 15
vQacc = 16
vFr = 96
(vB0, vB1, vBW, vWl, vPoll, vIdx, vPa, vQx, vW2, vTw0, vTw1, vTp, vTr0, vTr1, vTo, vPa2,
 vF0, vF1, vF2, vF3, vWA2, vXA2, vOw, vX23) = range(232, 256)
NVGPR = 256
vZero = vX23
vNon, vFl = 90, 92

NST = [0]
def stamp(i, *modes):
    if STAMPS and STMODE in modes:
        e(f's_memrealtime {sr(sST+2*i,2)}')
def cstamp(i):
    if STAMPS: e(f's_memtime {sr(sST+2*i,2)}')

def dma(voff, srd_, soff, off=0, fl='', tag='x'):
    o = f' offset:{off}' if off else ''
    e(f'buffer_load_dwordx4 v{voff}, {sr(srd_,4)}, {soff} offen{o}{fl} lds', tag)
def srd(reg, size):
    e(f's_mov_b32 s{reg+2}, {hex(size)}')
    e(f's_mov_b32 s{reg+3}, 0x20000')
def poll_issue(vaddr, soffs, regs):
    e(f'global_load_dwordx2 {vr(vNon,2)}, v{vZero}, {sr(S_DBG,2)} sc1')
    for so, r in zip(soffs, regs):
        e(f'buffer_load_dwordx2 {vr(r,2)}, v{vaddr}, {sr(S_WS,4)}, {so} offen sc1')
def poll_check(tag, vaddr, soffs, regs, issued):
    e(f's_mov_b32 s{sSpin}, {SPIN}')
    if issued: e(f's_branch L_chk_{tag}')
    lab(f'L_rep_{tag}')
    poll_issue(vaddr, soffs, regs)
    e('s_waitcnt vmcnt(0)')
    lab(f'L_chk_{tag}')
    e(f'v_cmp_eq_u32 vcc, 0, v{vNon}')
    for r in regs:
        e(f'v_cmp_ne_u64 {sr(sP,2)}, {vr(vNon,2)}, {vr(r,2)}')
        e('s_nop 1')
        e(f's_or_b64 vcc, vcc, {sr(sP,2)}')
    E(f's_cbranch_scc0 L_nochk_{tag}', f's_sub_u32 s{sSpin}, s{sSpin}, 1', f's_cbranch_scc0 L_rep_{tag}')
def flag_store(tag, base):
    E(f's_mov_b32 s{sSpin}, {SPIN}', f's_lshl_b32 s{sT0}, s{sRB}, 3', f's_add_u32 s{sT0}, s{sT0}, s{sHG}', f's_lshl_b32 s{sT0}, s{sT0}, 6', f's_add_u32 s{sT0}, s{sT0}, {hex(base)}')
    lab(f'L_fw_{tag}')
    E('s_waitcnt vmcnt(0)', f'v_cmp_eq_u32 vcc, 0, v{vNon}', f's_cbranch_vccz L_fs_{tag}',
      f'global_load_dwordx2 {vr(vNon,2)}, v{vZero}, {sr(S_DBG,2)} sc1', f's_sub_u32 s{sSpin}, s{sSpin}, 1', f's_cbranch_scc0 L_fw_{tag}')
    lab(f'L_fs_{tag}')
    E('s_mov_b64 exec, 1', f'buffer_store_dwordx2 {vr(vNon,2)}, v{vZero}, {sr(S_WS,4)}, s{sT0} offen sc1', 's_mov_b64 exec, -1')

lab(f'{NAME}_kernel')
if STAMPS:
    for i in range(12): E(f's_mov_b32 s{sST+2*i}, 0')
stamp(0, 'all', 'head', 'tail', 'x', 'crit')
for reg, off in ((S_XB,24),(S_WKV,40),(S_WV,48),(S_WQ,32),(S_WS,80),(S_XA,0),(S_WQKV,8),(S_DBG,72),(S_WOA,16),(S_WOB,56),(S_OUT,64)):
    e(f's_load_dwordx2 {sr(reg,2)}, s[0:1], {off}')
e(f's_memrealtime {sr(sNon,2)}')
E('s_cmp_ge_u32 s2, 256', 's_cbranch_scc1 L_end',
  f'v_lshrrev_b32 v{vT0}, 6, v0', 'v_and_b32 v0, 63, v0', f'v_readfirstlane_b32 s{sW}, v{vT0}',
  f's_and_b32 s{sT0}, s2, 7', f's_bfe_u32 s{sRot}, s2, 0x20003', f's_lshl_b32 s{sRB}, s{sT0}, 2',
  f's_add_u32 s{sRB}, s{sRB}, s{sRot}', f's_lshr_b32 s{sHG}, s2, 5')
srd(S_XB, 0x200000); srd(S_WKV, 0x4000)
E(f'v_lshlrev_b32 v{vL16}, 4, v0', f'v_lshrrev_b32 v{vG}, 4, v0', f'v_lshrrev_b32 v{vT1}, 3, v0', f'v_and_b32 v{vT2}, 7, v0',
  f'v_xor_b32 v{vT3}, v{vT2}, v{vG}', f'v_lshlrev_b32 v{vT3}, 4, v{vT3}', f'v_lshl_add_u32 v{vP0}, v{vT1}, 10, v{vT3}',
  f'v_xor_b32 v{vP1}, 64, v{vP0}', f'v_add_u32 v{vP1}, {8192-1024}, v{vP1}',
  f's_lshl_b32 s{sRot}, s{sRot}, 1', f's_add_u32 s{sC}, s{sW}, s{sRot}', f's_and_b32 s{sC}, s{sC}, 7',
  f's_lshr_b32 s{sT1}, s{sHG}, 1', f's_lshl_b32 s{sT2}, s{sW}, 14', f's_lshl_b32 s{sT3}, s{sRB}, 16',
  f's_lshl_b32 s{sT0}, s{sC}, 7', f's_add_u32 s{sT3}, s{sT3}, s{sT0}', f's_lshl_b32 s{sW2k}, s{sW}, 11', f's_lshl_b32 s{sC}, s{sC}, 11')
def xb_pair(first=False, tag='xb'):
    E(f's_lshl_b32 s{sT0}, s{sT1}, 11', f's_add_u32 m0, s{sT2}, s{sT0}', f's_lshl_b32 s{sT0}, s{sT1}, 14', f's_add_u32 s{sT0}, s{sT0}, s{sT3}')
    if first:
        E(f's_bitcmp1_b32 s{sHG}, 0', 's_waitcnt lgkmcnt(0)',
          f's_cselect_b32 s{S_WKV}, s{S_WV}, s{S_WKV}', f's_cselect_b32 s{S_WKV+1}, s{S_WV+1}, s{S_WKV+1}')
    dma(vP0, S_XB, f's{sT0}', 0, NT, tag)
    dma(vP1, S_XB, f's{sT0}', 1024, NT, tag)
    E(f's_add_u32 s{sT1}, s{sT1}, 1', f's_and_b32 s{sT1}, s{sT1}, 3')
xb_pair(True, 'kv')
E(f'v_mov_b32 v{vZero}, 0', f's_or_b32 s{sT0}, s2, s{sW}', f's_cbranch_scc1 L_nonon',
  f's_or_b32 s{sNon}, s{sNon}, 1', f'v_mov_b32 v{vNon}, s{sNon}', f'v_mov_b32 v{vNon+1}, s{sNon+1}', 's_mov_b64 exec, 1',
  f'global_store_dwordx2 v{vZero}, {vr(vNon,2)}, {sr(S_DBG,2)} sc1', 's_mov_b64 exec, -1')
lab('L_nonon')
e(f's_add_u32 m0, s{sW2k}, {R}')
srd(S_WQ, 0x80000)
dma(vL16, S_WKV, f's{sC}', 0, '', 'kv')
dma(vL16, S_WKV, f's{sC}', 1024, '', 'kv')
E(f'v_and_b32 v{vT3}, 1, v{vG}', f'v_lshlrev_b32 v{vT3}, 2, v{vT3}', f'v_xor_b32 v{vT3}, v{vT3}, v{vT2}', f'v_lshlrev_b32 v{vT3}, 4, v{vT3}',
  f'v_lshl_add_u32 v{vW}, v{vT1}, 10, v{vT3}', f'v_add_u32 v{vW2}, {8192-1024}, v{vW}', f's_lshl_b32 s{sHG128}, s{sHG}, 7',
  f's_lshl_b32 s{sWq}, s{sRot}, 16', f's_add_u32 s{sWq}, s{sWq}, s{sT2}', f's_add_u32 s{sWq}, s{sWq}, s{sHG128}',
  f's_lshr_b32 s{sWqm}, s{sW}, 2', f's_lshl_b32 s{sWqm}, s{sWqm}, 13', f's_add_u32 s{sWqm}, s{sWqm}, s{sW2k}')
def wq_pair(lds, adv, tag):
    E(f's_add_u32 m0, s{sWqm}, {lds}', f's_and_b32 s{sWq}, s{sWq}, 0x7ffff')
    dma(vW, S_WQ, f's{sWq}', 0, '', tag)
    dma(vW2, S_WQ, f's{sWq}', 1024, '', tag)
    if adv: e(f's_add_u32 s{sWq}, s{sWq}, {adv}')
wq_pair(8192, 128*1024, 'B0')
stamp(1, 'head')
cm('---- setup while first loads fly ----')
for reg, size in ((S_WS,WS_SIZE),(S_XA,0x200000),(S_WQKV,0x180000)):
    srd(reg, size)
E(f'v_and_b32 v{vN}, 31, v0', f'v_lshrrev_b32 v{vH}, 5, v0', f'v_and_b32 v{vI}, 15, v0',
  f'v_mul_u32_u24 v{vWA}, 3072, v{vT1}', f'v_add_u32 v{vWA}, v{vWA}, v{vT3}')
E(f'v_lshrrev_b32 v{vT1}, 1, v{vI}', f'v_xor_b32 v{vT1}, v{vT1}, v{vG}', f'v_lshlrev_b32 v{vT1}, 4, v{vT1}', f'v_lshl_add_u32 v{vT1}, v{vI}, 7, v{vT1}',
  f's_lshr_b32 s{sT0}, s{sHG}, 1', f's_lshl_b32 s{sT0}, s{sT0}, 11', f's_add_u32 s{sT0}, s{sT0}, s{sT2}',
  f'v_add_u32 v{vT1}, s{sT0}, v{vT1}', f'v_xor_b32 v{vT2}, 64, v{vT1}',
  f'v_lshlrev_b32 v{vT3}, 8, v{vG}', f'v_lshl_add_u32 v{vT3}, v{vI}, 3, v{vT3}', f's_add_u32 s{sT0}, s{sW2k}, {R}',
  f'v_add_u32 v{vT3}, s{sT0}, v{vT3}', f'v_add_u32 v{vQx}, s{sT0}, v{vL16}')
E(f'v_lshrrev_b32 v{vWl}, 2, v{vI}', f'v_lshl_add_u32 v{vWl}, v{vH}, 3, v{vWl}', f'v_lshlrev_b32 v{vWl}, 7, v{vWl}',
  f'v_and_b32 v{vT0}, 8, v{vI}', f'v_lshl_add_u32 v{vWl}, v{vT0}, 3, v{vWl}', f'v_and_b32 v{vT0}, 16, v0',
  f'v_lshl_add_u32 v{vWl}, v{vT0}, 1, v{vWl}', f'v_and_b32 v{vT0}, 3, v0', f'v_lshl_add_u32 v{vWl}, v{vT0}, 3, v{vWl}')
E(f'v_bfe_u32 v{vXx}, v{vN}, 1, 3', f'v_xor_b32 v{vXx}, v{vXx}, v{vH}', f'v_lshlrev_b32 v{vXx}, 4, v{vXx}')
E(f's_and_b32 s{sF0}, s{sW}, 1', f's_lshl_b32 s{sF0}, s{sF0}, 12', f'v_lshl_add_u32 v{vB0}, v{vN}, 7, v{vXx}', f'v_add_u32 v{vB0}, s{sF0}, v{vB0}',
  f's_lshr_b32 s{sF1}, s{sW}, 2', f's_lshl_b32 s{sF2}, s{sF1}, 6', f'v_xor_b32 v{vB0}, s{sF2}, v{vB0}', f'v_xor_b32 v{vB1}, 32, v{vB0}',
  f's_lshl_b32 s{sF1}, s{sF1}, 12', f's_add_u32 s{sF1}, s{sF1}, 8192', f's_and_b32 s{sF2}, s{sW}, 2', f's_lshl_b32 s{sF2}, s{sF2}, 5',
  f'v_xor_b32 v{vBW}, s{sF2}, v{vWl}', f'v_add_u32 v{vBW}, s{sF1}, v{vBW}')
e(f's_waitcnt vmcnt({vmn("kv")})')
stamp(2, 'head')
kx0, kx1, kw0, kw1, kd = vFr, vFr+4, vFr+8, vFr+12, vFr+16
E(f'ds_read_b128 {vr(kx0,4)}, v{vT1}', f'ds_read_b64_tr_b16 {vr(kw0,2)}, v{vT3}', f'ds_read_b64_tr_b16 {vr(kw0+2,2)}, v{vT3} offset:128',
  f'ds_read_b128 {vr(kx1,4)}, v{vT2}', f'ds_read_b64_tr_b16 {vr(kw1,2)}, v{vT3} offset:1024', f'ds_read_b64_tr_b16 {vr(kw1+2,2)}, v{vT3} offset:1152')
xb_pair(); xb_pair()
E(f's_bitcmp1_b32 s{sHG}, 0', 's_waitcnt lgkmcnt(0)', 's_cbranch_scc1 L_kv_v',
  f'v_mfma_f32_16x16x32_bf16 {vr(kd,4)}, {vr(kw0,4)}, {vr(kx0,4)}, 0',
  f'v_mfma_f32_16x16x32_bf16 {vr(kd,4)}, {vr(kw1,4)}, {vr(kx1,4)}, {vr(kd,4)}', 's_branch L_kv_j')
lab('L_kv_v')
E(f'v_mfma_f32_16x16x32_bf16 {vr(kd,4)}, {vr(kx0,4)}, {vr(kw0,4)}, 0',
  f'v_mfma_f32_16x16x32_bf16 {vr(kd,4)}, {vr(kx1,4)}, {vr(kw1,4)}, {vr(kd,4)}')
lab('L_kv_j')
E(f's_mov_b32 s{sCS}, {f32(CSCALE)}', f's_mov_b32 s{sVM}, 0xffff', f's_mov_b32 s{sVM+1}, 0xffff', f's_mov_b32 s{sFB}, 0',
  f'v_mov_b32 v{vIdx}, 0xdddddddd', 's_nop 2')
e(f'ds_write_b128 v{vQx}, {vr(kd,4)}')
E('s_waitcnt lgkmcnt(0)', 's_barrier')
stamp(3, 'head')
xb_pair()
wq_pair(SLOT+8192, 128*1024, 'B1')
E(f's_and_b32 s{sW4k}, s{sW}, 3', f's_lshl_b32 s{sW4k}, s{sW4k}, 12', f's_add_u32 s{sT0}, s{sW4k}, {R}', f'v_add_u32 v{vQx}, s{sT0}, v{vL16}')
E(f's_cmp_ge_u32 s{sW}, 4', 's_cbranch_scc1 L_Y')
VMQ_common = list(VMQ); NBAR_common = NBAR[0]

def q_reads(i):
    setb = vFr + 32 * (i & 1)
    base = (i & 1) * SLOT
    out = []
    for u in range(4):
        s, t = u >> 1, u & 1
        x = setb + 8 * u
        out.append(f'ds_read_b128 {vr(x,4)}, v{[vB0,vB1][t]} offset:{base+s*16384}')
        out.append(f'ds_read_b64_tr_b16 {vr(x+4,2)}, v{vBW} offset:{base+s*16384+t*2048}')
        out.append(f'ds_read_b64_tr_b16 {vr(x+6,2)}, v{vBW} offset:{base+s*16384+t*2048+512}')
    if i == 1: out += [f'v_xor_b32 v{a}, 65536, v{a}' for a in (vB0, vB1, vBW)]
    return out
def q_mfmas(i):
    setb = vFr + 32 * (i & 1)
    return [f'v_mfma_f32_32x32x16_bf16 {vr(vQacc,16)}, {vr(setb+8*u+4,4)}, {vr(setb+8*u,4)}, {"0" if (i == 0 and u == 0) else vr(vQacc,16)}' for u in range(4)]
oOf, oW, oAcc = 16, 96, 160
def tail_setup():
    E(f's_mov_b32 s{S_OUT+2}, 0x400000', f's_mov_b32 s{S_OUT+3}, 0x20000',
      f's_and_b32 s{sF0}, s{sW}, 3', f's_lshr_b32 s{sF2}, s{sW}, 2',
      f's_lshr_b32 s{sF1}, s{sF0}, 1', f's_add_u32 s{sF1}, s{sF1}, 2', f's_mul_i32 s{sF1}, s{sF1}, s{sF2}', f's_lshl_b32 s{sF1}, s{sF1}, 15',
      f's_lshl_b32 s{sT0}, s{sF0}, 14', f's_add_u32 s{sF1}, s{sF1}, s{sT0}',
      f'v_lshlrev_b32 v{vT0}, 9, v{vH}', f'v_sub_u32 v{vTw0}, v{vWl}, v{vT0}', f'v_add_u32 v{vTw0}, s{sF1}, v{vTw0}', f'v_xor_b32 v{vTw1}, 64, v{vTw0}',
      f'v_xor_b32 v{vT0}, v{vH}, v{vI}', f'v_lshlrev_b32 v{vT0}, 4, v{vT0}', f'v_lshl_add_u32 v{vT0}, v{vN}, 8, v{vT0}', f'v_add_u32 v{vTp}, s{sF1}, v{vT0}',
      f'v_lshrrev_b32 v{vT0}, 3, v0', f's_lshl_b32 s{sF1}, s{sF0}, 3', f'v_add_u32 v{vT0}, s{sF1}, v{vT0}', f'v_and_b32 v{vT1}, 7, v0', f'v_lshlrev_b32 v{vT2}, 1, v{vT1}',
      f'v_and_b32 v{vT3}, 15, v{vT0}', f'v_xor_b32 v{vT2}, v{vT2}, v{vT3}', f'v_lshlrev_b32 v{vT2}, 4, v{vT2}', f'v_lshl_add_u32 v{vT2}, v{vT0}, 8, v{vT2}',
      f's_lshl_b32 s{sF1}, s{sF2}, 16', f'v_add_u32 v{vTr0}, s{sF1}, v{vT2}',
      f's_mul_i32 s{sF1}, s{sF2}, {3*SLOT}', f's_add_u32 s{sF1}, s{sF1}, 32768', f'v_add_u32 v{vTr1}, s{sF1}, v{vT2}',
      f'v_lshlrev_b32 v{vT1}, 4, v{vT1}', f'v_lshl_add_u32 v{vTo}, v{vT0}, 11, v{vT1}',
      f's_lshl_b32 s{sOutOff}, s{sRB}, 17', f's_lshl_b32 s{sF1}, s{sF2}, 10', f's_add_u32 s{sOutOff}, s{sOutOff}, s{sF1}', f's_add_u32 s{sOutOff}, s{sOutOff}, s{sHG128}',
      f's_lshl_b32 s{sOoff}, s{sRB}, 16', f's_lshl_b32 s{sF1}, s{sF0}, 13', f's_add_u32 s{sOoff}, s{sOoff}, s{sF1}',
      f's_mul_i32 s{sF1}, s{sF2}, {hex(WS_OB-WS_OA)}', f's_add_u32 s{sOoff}, s{sOoff}, s{sF1}', f's_add_u32 s{sOoff}, s{sOoff}, {hex(WS_OA)}')
def w_reads():
    for s in range(8):
        x = oW + 8 * s
        E(f'ds_read_b64_tr_b16 {vr(x,2)}, v{vTw0} offset:{s*2048}', f'ds_read_b64_tr_b16 {vr(x+2,2)}, v{vTw0} offset:{s*2048+1024}',
          f'ds_read_b64_tr_b16 {vr(x+4,2)}, v{vTw1} offset:{s*2048}', f'ds_read_b64_tr_b16 {vr(x+6,2)}, v{vTw1} offset:{s*2048+1024}')
    for q in range(1, 8): e(f'v_xor_b32 v{80+q}, {(2*q)<<4}, v{vTp}')
    E(f'v_xor_b32 v88, 16, v{vTr0}', f'v_xor_b32 v89, 16, v{vTr1}')
def o_loads(tag=None):
    E(f's_add_u32 s{sT1}, s{sOoff}, 4096', f's_add_u32 s{sT2}, s{sOoff}, 32768', f's_add_u32 s{sT3}, s{sOoff}, {32768+4096}')
    for g, so in enumerate((sOoff, sT1, sT2, sT3)):
        for j in range(4):
            o = f' offset:{j*1024}' if j else ''
            e(f'buffer_load_dwordx4 {vr(oOf+16*g+4*j,4)}, v{vL16}, {sr(S_WS,4)}, s{so} offen{o} sc1', tag)
def maxtree(rs, t0, t1):
    e(f'v_max3_f32 v{t0}, v{rs[0]}, v{rs[1]}, v{rs[2]}')
    e(f'v_max3_f32 v{t1}, v{rs[3]}, v{rs[4]}, v{rs[5]}')
    for k in range(6, len(rs), 4):
        e(f'v_max3_f32 v{t0}, v{t0}, v{rs[k]}, v{rs[k+1]}')
        if k + 3 < len(rs): e(f'v_max3_f32 v{t1}, v{t1}, v{rs[k+2]}, v{rs[k+3]}')
    e(f'v_max_f32 v{t0}, v{t0}, v{t1}')
    e(f'v_mov_b32 v{t1}, v{t0}')

cm('================ X program (waves 0-3) ================')
xAcc = 96
xFr = 160
xMask = 32
xa, xb, xw = 56, 60, 64
(xFw, xLq, xLv, xLvp, xOne) = (72, 73, 74, 75, 76)
XV = int(([a[2:] for a in XP if a.startswith('xv')] + ['2'])[0])
XM = int(([a[2:] for a in XP if a.startswith('xm')] + ['0'])[0])
PACE = ([a[4:] for a in XP if a.startswith('pace')] + ['2'])[0]
wq_pair(2*SLOT+8192, 64*1024, 'B2'); wq_pair(2*SLOT+8192+16384, 64*1024, 'B2')
wq_pair(3*SLOT+8192, 64*1024, 'B3'); wq_pair(3*SLOT+8192+16384, 0, 'B3')
E(f's_add_u32 s{sXo}, s{sRot}, s{sHG}', f's_and_b32 s{sXo}, s{sXo}, 7', f's_lshl_b32 s{sXo}, s{sXo}, 7',
  f's_lshl_b32 s{sT3}, s{sRB}, 16', f's_sub_u32 s{sT2}, s{sT3}, 16384', f's_max_i32 s{sT2}, s{sT2}, 0',
  f's_lshl_b32 s{sT0}, s{sW}, 7', f's_add_u32 s{sT0}, s{sT0}, s{sXo}')
for j in range(2):
    E(f's_and_b32 s{sT0}, s{sT0}, 1023', f's_add_u32 m0, s{sW2k}, {R+16384+j*8192}', f's_add_u32 s{sT1}, s{sT2}, s{sT0}')
    dma(vP0, S_XA, f's{sT1}', 0, '', 'halo')
    dma(vP1, S_XA, f's{sT1}', 1024, '', 'halo')
    if j == 0: e(f's_add_u32 s{sT0}, s{sT0}, 512')
stamp(4, 'head')
E(f's_lshl_b32 s{sT0}, s{sW}, 14', f's_add_u32 s{sT0}, s{sT0}, s{sT3}', f'v_add_u32 v{vXA}, s{sT0}, v{vP0}', f'v_add_u32 v{vXA2}, s{sT0}, v{vP1}',
  f's_mul_i32 s{sT0}, s{sW}, {16*3072}', f's_add_u32 s{sT0}, s{sT0}, s{sHG128}', f'v_add_u32 v{vWA}, s{sT0}, v{vWA}', f'v_add_u32 v{vWA2}, {8*3072-1024}, v{vWA}')
def a_fill(c):
    slot = (c % 3) * SLOT
    t = f'A{c}'
    E(f's_add_u32 m0, s{sW2k}, {slot}', f's_mul_i32 s{sWo}, s{sXo}, 1536')
    dma(vXA, S_XA, f's{sXo}', 0, NT, t); dma(vXA2, S_XA, f's{sXo}', 1024, NT, t)
    for ty in range(3):
        E(f's_add_u32 m0, s{sW2k}, {slot+8192+ty*8192}', [f's_add_u32 s{sXo}, s{sXo}, 128', f's_add_u32 s{sWo}, s{sWo}, 1024', f's_add_u32 s{sWo}, s{sWo}, 1024'][ty])
        dma(vWA, S_WQKV, f's{sWo}', 0, '', t); dma(vWA2, S_WQKV, f's{sWo}', 1024, '', t)
    e(f's_and_b32 s{sXo}, s{sXo}, 1023')
def kv_fill(k):
    E(f's_add_u32 m0, s{sW4k}, {KVB+(k&1)*16384}', f's_and_b32 s{sKVo}, s{sKVo}, 0x1ffff')
    for j in range(4): dma(vL16, S_WS, f's{sKVo}', 1024*j, ' sc1', f'KV{k}')
    e(f's_add_u32 s{sKVo}, s{sKVo}, 16384')
def wo_fill(srd_, half, lds, tag):
    E(f's_add_u32 s{sT0}, s{sWoff}, {half*256*1024}', f's_add_u32 m0, s{sW8k}, {lds}', f's_add_u32 s{sT1}, s{sT0}, {2*7168}')
    dma(vW, srd_, f's{sT0}', 0, '', tag); dma(vW2, srd_, f's{sT0}', 1024, '', tag)
    dma(vW, srd_, f's{sT1}', 2048, '', tag); dma(vW2, srd_, f's{sT1}', 3072, '', tag)
    E(f's_add_u32 s{sT0}, s{sT0}, 32768', f's_add_u32 m0, s{sW8k}, {lds+4096}', f's_add_u32 s{sT1}, s{sT1}, 32768')
    dma(vW, srd_, f's{sT0}', 0, '', tag); dma(vW2, srd_, f's{sT0}', 1024, '', tag)
    dma(vW, srd_, f's{sT1}', 2048, '', tag); dma(vW2, srd_, f's{sT1}', 3072, '', tag)
def masks():
    E(f'v_lshlrev_b32 v{vT0}, 2, v{vH}', f'v_sub_u32 v{vT0}, v{vN}, v{vT0}', f'v_add_u32 v{vT0}, 18, v{vT0}',
      f'v_mov_b32 v{vT2}, 0x5555', f'v_mov_b32 v{vT3}, 0', f'v_lshlrev_b64 {vr(vT2,2)}, v{vT0}, {vr(vT2,2)}',
      f'v_not_b32 v{vT2}, v{vT2}', f'v_not_b32 v{vT3}, v{vT3}', f's_mov_b32 s{sF1}, 0xff800000')
    for r in range(16): E(f'v_bfe_i32 v{xMask+r}, v{vT3}, {8*(r>>2)+(r&3)}, 1', f'v_and_b32 v{xMask+r}, s{sF1}, v{xMask+r}')
    for r in range(8, 16): E(f'v_bfe_i32 v{xMask+8+r}, v{vT2}, {8*(r>>2)+(r&3)}, 1', f'v_and_b32 v{xMask+8+r}, s{sF1}, v{xMask+8+r}')
SC = 2 * SLOT
def local_setup():
    E(f's_add_u32 s{sT0}, s{sW8k}, {SC}', f'v_add_u32 v{xFw}, s{sT0}, v{vL16}', f'v_mov_b32 v{xOne}, 0x3f803f80', f'v_mov_b32 v{xOne+1}, 0x3f803f80',
      f's_lshl_b32 s{sT1}, s{sW}, 10', f's_add_u32 s{sT1}, s{sT1}, {SC}', f'v_add_u32 v{xLq}, s{sT1}, v{vL16}',
      f'v_and_b32 v{vT0}, 1, v0', f'v_lshlrev_b32 v{vT0}, 5, v{vT0}', f'v_lshl_add_u32 v{vT0}, v{vH}, 3, v{vT0}',
      f'v_lshrrev_b32 v{vT1}, 2, v{vI}', f'v_add_u32 v{vT0}, v{vT0}, v{vT1}', f'v_lshlrev_b32 v{vT0}, 4, v{vT0}', f'v_and_b32 v{vT1}, 2, v0', f'v_lshl_add_u32 v{vT0}, v{vT1}, 2, v{vT0}',
      f'v_add_u32 v{xLv}, s{sT1}, v{vT0}',
      f's_add_u32 s{sT2}, s{sW4k}, {R}', f'v_mov_b32 v{xLvp}, s{sT2}', f'v_lshl_add_u32 v{vOw}, v0, 3, v{xLvp}',
      f'v_and_b32 v{vT0}, 16, v0', f'v_cmp_ne_u32 vcc, 0, v{vT0}',
      f'v_add_u32 v78, {4*4096}, v{xLv}', f'v_add_u32 v79, {5*4096}, v{xLv}', f'v_add_u32 v80, {7*4096}, v{xLv}',
      f'v_cndmask_b32 v78, v78, v{xLvp}, vcc', f'v_cndmask_b32 v79, v79, v{xLvp}, vcc', f'v_cndmask_b32 v80, v80, v{xLvp}, vcc',
      f's_lshl_b32 s{sT0}, s{sRB}, 6', f's_lshl_b32 s{sT1}, s{sHG}, 2', f's_add_u32 s{sT0}, s{sT0}, s{sT1}', f's_add_u32 s{sT0}, s{sT0}, s{sW}',
      f's_lshl_b32 s{sT0}, s{sT0}, 10', f's_add_u32 s{sOslot}, s{sT0}, {hex(WS_OA)}', f's_add_u32 s{sOslot2}, s{sOslot}, 32768')
    for i in range(4): e(f'v_mov_b32 v{vF0+i}, -1')
def sentinels():
    E(f's_add_u32 s{sT0}, s{sOslot}, {hex(WS_OB-WS_OA)}', f's_add_u32 s{sT1}, s{sT0}, 32768', f'ds_write_b64 v{vOw}, {vr(xOne,2)}')
    e(f'buffer_store_dwordx4 {vr(vF0,4)}, v{vL16}, {sr(S_WS,4)}, s{sT0} offen sc1', 'sent')
    e(f'buffer_store_dwordx4 {vr(vF0,4)}, v{vL16}, {sr(S_WS,4)}, s{sT1} offen sc1', 'sent')
def setup_a():
    E(f's_cmp_eq_u32 s{sW}, 3', f's_cselect_b32 s{sT1}, 15, 31', f'v_and_b32 v{vT0}, s{sT1}, v{vN}', f'v_lshl_add_u32 v{xa}, v{vT0}, 7, v{vXx}',
      f's_cselect_b32 s{sT1}, {R+16384}, 0', f'v_add_u32 v{xa}, s{sT1}, v{xa}', f's_cselect_b32 s{sT1}, 0, 4096', f'v_add_u32 v{xb}, s{sT1}, v{xa}',
      f's_cselect_b32 s{sStepA}, 1, 16', f's_cselect_b32 s{sStepB}, 1, -32', f's_cselect_b32 s{sT1}, 1, s{sW}', f's_cselect_b32 s{sT2}, 2, s{sW}',
      f's_lshl_b32 s{sStepA}, s{sStepA}, 11', f's_lshl_b32 s{sStepB}, s{sStepB}, 11',
      f's_lshl_b32 s{sT1}, s{sT1}, 13', f's_add_u32 s{sT1}, s{sT1}, 8192', f'v_add_u32 v{xw}, s{sT1}, v{vWl}', f'v_xor_b32 v{xw+1}, 64, v{xw}',
      f's_lshl_b32 s{sT2}, s{sT2}, 13', f's_add_u32 s{sT2}, s{sT2}, 8192', f'v_add_u32 v{xw+2}, s{sT2}, v{vWl}', f'v_xor_b32 v{xw+3}, 64, v{xw+2}')
    for j in range(4): e(f'v_add_u32 v{xw+4+j}, 65536, v{xw+j}')
    for s_ in range(1, 4): E(f'v_xor_b32 v{xa+s_}, {32*s_}, v{xa}', f'v_xor_b32 v{xb+s_}, {32*s_}, v{xb}')
def setup_b():
    E(f's_lshr_b32 s{sT1}, s{sRB}, 3', f's_lshl_b32 s{sKVo}, s{sT1}, 15', f's_add_u32 s{sKVo}, s{sKVo}, s{sW4k}', f's_add_u32 s{sKVo}, s{sKVo}, 16384',
      f'v_lshlrev_b32 v{vPa}, 6, v0', f'v_add_u32 v{vPa}, {hex(WS_FKV)}, v{vPa}',
      f'v_and_b32 v{vPa2}, 7, v0', f'v_lshlrev_b32 v{vPa2}, 6, v{vPa2}', f's_lshl_b32 s{sT2}, s{sRB}, 9', f's_add_u32 s{sT2}, s{sT2}, {hex(WS_FOA)}', f'v_add_u32 v{vPa2}, s{sT2}, v{vPa2}',
      f's_mov_b32 s{sC}, 8192', f's_mov_b32 s{sWq}, 12288',
      f's_lshl_b32 s{sW8k}, s{sW}, 13', f's_lshl_b32 s{sWoff}, s{sW}, 16', f's_add_u32 s{sWoff}, s{sWoff}, s{sHG128}',
      f's_mov_b32 s{S_WOA+2}, 0x80000', f's_mov_b32 s{S_WOA+3}, 0x20000', f's_mov_b32 s{S_WOB+2}, 0x80000', f's_mov_b32 s{S_WOB+3}, 0x20000')
e(f's_waitcnt vmcnt({vmn("xb")})')
stamp(1, 'crit')
e('s_barrier')
stamp(5, 'head'); stamp(1, 'all', 'x')
E(*q_reads(0))
for i in range(4):
    if i < 3: e(f's_waitcnt vmcnt({vmn(f"B{i+1}")}) lgkmcnt(0)')
    else: e('s_waitcnt lgkmcnt(0)')
    stamp(2+i, 'crit')
    e('s_barrier')
    mf = q_mfmas(i)
    e(mf[0])
    if i < 3: E(*q_reads(i+1))
    E(*mf[1:])
    if i == 0: a_fill(0)
setup_b()
for j in range(4): e(f'ds_write_b128 v{vQx}, {vr(vQacc+4*j,4)} offset:{j*1024}')
E('s_waitcnt lgkmcnt(0)', 's_barrier')
stamp(6, 'head'); stamp(2, 'all', 'x')
a_fill(1)
stamp(6, 'crit')
setup_a(); masks(); local_setup(); tail_setup()
stamp(7, 'crit')
e(f's_waitcnt vmcnt({vmn("A0")})')
stamp(8, 'crit')
e('s_barrier')
stamp(7, 'head'); stamp(3, 'x')

def a_chunk(c):
    sl = c % 3
    base = sl * SLOT if sl < 2 else 0
    W = xw + (4 if sl == 2 else 0)
    def rd(s, half):
        x = xFr + 24 * (s % 3) + 12 * half
        a = (xb if half else xa) + s
        w0, w1 = W + 2 * half, W + 2 * half + 1
        return [f'ds_read_b128 {vr(x,4)}, v{a}',
                f'ds_read_b64_tr_b16 {vr(x+4,2)}, v{w0} offset:{base+s*2048}', f'ds_read_b64_tr_b16 {vr(x+6,2)}, v{w0} offset:{base+s*2048+512}',
                f'ds_read_b64_tr_b16 {vr(x+8,2)}, v{w1} offset:{base+s*2048}', f'ds_read_b64_tr_b16 {vr(x+10,2)}, v{w1} offset:{base+s*2048+512}']
    def mm(s, half, j):
        x = xFr + 24 * (s % 3) + 12 * half
        a = xAcc + 16 * (2 * half + j)
        return f'v_mfma_f32_32x32x16_bf16 {vr(a,16)}, {vr(x+4+4*j,4)}, {vr(x,4)}, {"0" if (c == 0 and s == 0) else vr(a,16)}'
    if XM != XV: e(f's_setprio {XM}')
    groups = [(s, h) for s in range(4) for h in range(2)]
    if c == 0 or PACE == '0':
        E(*rd(0,0), *rd(0,1), *rd(1,0))
        for g, (s, h) in enumerate(groups):
            ahead = min(len(groups), g + 3) - g - 1
            e(f's_waitcnt lgkmcnt({5*ahead})')
            E(mm(s,h,0), mm(s,h,1))
            if g + 3 < len(groups): E(*rd(*groups[g+3]))
    else:
        seq = []
        for (s, h) in groups:
            r = rd(s, h)
            seq.append((r[:3], mm(s,h,0))); seq.append((r[3:], mm(s,h,1)))
        if PACE == '1':
            for r, m in seq:
                E(*r); e('s_waitcnt lgkmcnt(0)'); e(m)
        else:
            E(*seq[0][0])
            for k_, (r, m) in enumerate(seq):
                if k_ + 1 < len(seq):
                    E(*seq[k_+1][0]); e(f's_waitcnt lgkmcnt({len(seq[k_+1][0])})')
                else: e('s_waitcnt lgkmcnt(0)')
                e(m)
    if XM != XV: e(f's_setprio {XV}')
    if c < 7:
        st = sStepB if sl == 2 else sStepA
        for j in range(8): e(f'v_add_u32 v{xa+j}, s{st}, v{xa+j}')
def write_frags():
    for blk in range(2):
        for hd in range(4):
            a = xAcc + 32 * blk + 8 * hd
            for i in range(4): e(f'v_cvt_pk_bf16_f32 v{a+i}, v{a+2*i}, v{a+2*i+1}')
            e(f'ds_write_b128 v{xFw}, {vr(a,4)} offset:{blk*4096+hd*1024}')
def local_task(t):
    lq, lk, lp, lv = xFr, xFr+4, xFr+8, xFr+12
    lS, lP, lO = xAcc, xAcc+16, xAcc+32
    kp = 6 if t == 0 else 2
    vc, vp = (78, 80) if t == 0 else (79, 78)
    E(f'ds_read_b128 {vr(lq,4)}, v{xLq} offset:{t*4096}', f'ds_read_b128 {vr(lk,4)}, v{xLq} offset:{(2+t)*4096}', f'ds_read_b128 {vr(lp,4)}, v{xLq} offset:{kp*4096}',
      f'ds_read_b64_tr_b16 {vr(lv,2)}, v{vc}', f'ds_read_b64_tr_b16 {vr(lv+2,2)}, v{vc} offset:64',
      f'ds_read_b64_tr_b16 {vr(lv+4,2)}, v{vc} offset:256', f'ds_read_b64_tr_b16 {vr(lv+6,2)}, v{vc} offset:320',
      f'ds_read_b64_tr_b16 {vr(lv+8,2)}, v{vp} offset:256', f'ds_read_b64_tr_b16 {vr(lv+10,2)}, v{vp} offset:320')
    if t == 0:
        E(f's_cmp_lg_u32 s{sRB}, 0', 's_cbranch_scc1 L_m0')
        for r in range(8): e(f'v_mov_b32 v{xMask+16+r}, 0xff800000')
        lab('L_m0')
    E('s_waitcnt lgkmcnt(6)', 's_nop 0',
      f'v_mfma_f32_32x32x16_bf16 {vr(lS,16)}, {vr(lk,4)}, {vr(lq,4)}, {vr(xMask,16)}',
      f'v_mfma_f32_32x32x16_bf16 {vr(lP,16)}, {vr(lp,4)}, {vr(lq,4)}, {vr(xMask+8,16)}')
    for i in range(16): e(f'v_mov_b32 v{lO+i}, 0')
    regs = [lS+i for i in range(16)] + [lP+8+i for i in range(8)]
    maxtree(regs, vT0, vT1)
    E('s_nop 1', f'v_permlane32_swap_b32 v{vT0}, v{vT1}', f'v_max_f32 v{vT0}, v{vT0}, v{vT1}', f'v_mul_f32 v{vT0}, {f32(-CSCALE)}, v{vT0}')
    for k in range(24): e(f'v_fma_f32 v{regs[k]}, v{regs[k]}, s{sCS}, v{vT0}')
    e('s_waitcnt lgkmcnt(0)')
    for k in range(24):
        e(f'v_exp_f32 v{regs[k]}, v{regs[k]}')
        if k == 9: e(f'v_smfmac_f32_32x32x32_bf16 {vr(lO,16)}, {vr(lv,4)}, {vr(lS,8)}, v{vIdx}')
        if k == 17: e(f'v_smfmac_f32_32x32x32_bf16 {vr(lO,16)}, {vr(lv+4,4)}, {vr(lS+8,8)}, v{vIdx}')
    E('s_nop 1', f'v_smfmac_f32_32x32x32_bf16 {vr(lO,16)}, {vr(lv+8,4)}, {vr(lP+8,8)}, v{vIdx}', 's_nop 11',
      f'v_rcp_f32 v{vT1}, v{lO+8}', 's_nop 0')
    for i in range(8): e(f'v_mul_f32 v{lO+i}, v{lO+i}, v{vT1}')
    d = xAcc + 48 + 4 * t
    for i in range(4): e(f'v_cvt_pk_bf16_f32 v{d+i}, v{lO+2*i}, v{lO+2*i+1}')
    e(f'buffer_store_dwordx4 {vr(d,4)}, v{vL16}, {sr(S_WS,4)}, s{sOslot2 if t else sOslot} offen sc1', 'oa')
def only_x0(name, lines):
    E(f's_cmp_lg_u32 s{sW}, 0', f's_cbranch_scc1 L_{name}')
    E(*lines)
    lab(f'L_{name}')

e(f's_setprio {XV}')
kv_fill(1)
a_fill(2)
a_chunk(0)
e(f's_waitcnt vmcnt({vmn("A1")})')
stamp(9, 'crit')
e('s_barrier')
stamp(8, 'head'); stamp(3, 'all'); stamp(4, 'x')

SH4 = ['0', f's{sWqm}', f's{sC}', f's{sWq}']; RG4 = [82, 84, 86, 88]
e(f's_mov_b32 s{sWqm}, 4096')
for n in range(16):
    cm(f'X interval {n}')
    if n in (2, 6, 8, 10, 12): stamp({2: 5, 6: 6, 8: 7, 10: 8, 12: 9}[n], 'x')
    waits = []
    k = n // 2
    if n % 2 == 0 and 1 <= k <= 6: kv_fill(k + 1)
    if n == 0:
        E(f's_cmp_lg_u32 s{sW}, 0', 's_cbranch_scc1 L_np2')
        poll_issue(vPa, SH4, RG4)
        lab('L_np2')
    if n <= 4: a_fill(n + 3)
    if n == 5: sentinels()
    if n == 6: wo_fill(S_WOA, 0, 0, 'woA')
    if n <= 6: a_chunk(n + 1)
    if n <= 5: waits.append(f'A{n+2}')
    if n == 7:
        wo_fill(S_WOA, 1, SLOT, 'woA')
        write_frags()
    if n == 8: local_task(1)
    if n == 9: local_task(0)
    if n == 10:
        wo_fill(S_WOB, 0, 2*SLOT, 'woB')
        waits.append('oa')
    if n == 11:
        E(f's_cmp_lg_u32 s{sW}, 0', 's_cbranch_scc1 L_fa')
        flag_store('oa', WS_FOA)
        lab('L_fa')
        wo_fill(S_WOB, 1, R, 'woB')
    if n == 12:
        w_reads()
    if n == 13:
        E(f's_cmp_lg_u32 s{sW}, 0', 's_cbranch_scc1 L_nochk_oa')
        poll_check('oa', vPa2, ['0'], [vFl], False)
        lab('L_nochk_oa')
    if n == 14: o_loads('oal')
    if n % 2 == 1 and k + 1 <= 7: waits.append(f'KV{k+1}')
    if n == 13: waits.append('woB')
    if waits: e(f's_waitcnt vmcnt({min(vmn(t) for t in waits)}) lgkmcnt(0)')
    else: e('s_waitcnt lgkmcnt(0)')
    if n == 1:
        E(f's_cmp_lg_u32 s{sW}, 0', 's_cbranch_scc1 L_nochk_kv2')
        poll_check('kv2', vPa, SH4, RG4, True)
        lab('L_nochk_kv2')
    e('s_barrier')
NBAR_X = NBAR[0]
E('s_setprio 0', 's_waitcnt vmcnt(0)', 's_barrier', 's_branch L_tail_go')

cm('================ Y program (waves 4-7) ================')
VMQ[:] = VMQ_common; NBAR[0] = NBAR_common
aSa, aSb, aCa, aCb, aOa, aOb = 96, 112, 128, 144, 160, 176
aK, aV = 192, 16
aV = 56
vQa, vQb = 208, 212
vKa, vVa = 216, 217
lab('L_Y')
E(f's_lshr_b32 s{sT0}, s{sRB}, 3', f's_lshl_b32 s{sT0}, s{sT0}, 12', f's_add_u32 s{sT0}, s{sT0}, {hex(WS_FKV)}', f'v_lshlrev_b32 v{vPa}, 6, v0', f'v_add_u32 v{vPa}, s{sT0}, v{vPa}')
E(f's_cmp_lg_u32 s{sW}, 7', 's_cbranch_scc1 L_kv_done', f'v_add_u32 v{vT1}, {R}, v{vL16}')
for j in range(8): e(f'ds_read_b128 {vr(aSa+4*j,4)}, v{vT1} offset:{j*2048}')
E(f'v_and_b32 v{vT1}, 1, v{vG}', f'v_lshrrev_b32 v{vT2}, 1, v{vG}',
  f's_lshr_b32 s{sT0}, s{sHG}, 2', f's_lshl_b32 s{sC}, s{sRB}, 1', f's_add_u32 s{sT0}, s{sT0}, s{sC}', f's_lshl_b32 s{sT0}, s{sT0}, 11',
  f's_bfe_u32 s{sC}, s{sHG}, 0x10001', f's_bitcmp1_b32 s{sHG}, 0', 's_cbranch_scc1 L_kv_av',
  f'v_lshlrev_b32 v{vT1}, 9, v{vT1}', f'v_lshl_add_u32 v{vT1}, v{vT2}, 3, v{vT1}', f's_lshl_b32 s{sC}, s{sC}, 8', 's_branch L_kv_aj')
lab('L_kv_av')
E(f'v_lshlrev_b32 v{vT1}, 3, v{vT1}', f'v_lshl_add_u32 v{vT1}, v{vT2}, 8, v{vT1}', f's_lshl_b32 s{sC}, s{sC}, 9', f's_add_u32 s{sC}, s{sC}, 1024')
lab('L_kv_aj')
E(f'v_lshl_add_u32 v{vT1}, v{vI}, 4, v{vT1}', f's_add_u32 s{sT0}, s{sT0}, s{sC}', 's_waitcnt lgkmcnt(0)')
for st in (4, 2, 1):
    for j in range(st):
        for p in (0, 2):
            a, b = aSa+4*j+p, aSa+4*(j+st)+p
            e(f'v_pk_add_f32 {vr(a,2)}, {vr(a,2)}, {vr(b,2)}')
E(f'v_cvt_pk_bf16_f32 v{vF0}, v{aSa}, v{aSa+1}', f'v_cvt_pk_bf16_f32 v{vF1}, v{aSa+2}, v{aSa+3}',
  f'buffer_store_dwordx2 {vr(vF0,2)}, v{vT1}, {sr(S_WS,4)}, s{sT0} offen sc1',
  f'global_load_dwordx2 {vr(vNon,2)}, v{vZero}, {sr(S_DBG,2)} sc1',
  f's_waitcnt vmcnt({vmn("xb")+2})', 's_branch L_kv_done2')
lab('L_kv_done')
e(f's_waitcnt vmcnt({vmn("xb")})')
lab('L_kv_done2')
stamp(4, 'head'); stamp(1, 'crit')
e('s_barrier')
stamp(5, 'head'); stamp(1, 'all', 'x')
E(*q_reads(0))
FLAG_AT = 1
for i in range(4):
    if i == 0:
        E(f's_cmp_eq_u32 s{sW}, 7', 's_cbranch_scc1 L_y0', 's_waitcnt vmcnt(0)')
        lab('L_y0')
        e('s_waitcnt vmcnt(2)')
    if i == FLAG_AT:
        E(f's_cmp_lg_u32 s{sW}, 7', 's_cbranch_scc1 L_flag_done')
        flag_store('kv', WS_FKV)
        lab('L_flag_done')
        stamp(7, 'crit')
    E('s_waitcnt lgkmcnt(0)', 's_barrier')
    stamp(2+i, 'crit')
    mf = q_mfmas(i)
    e(mf[0])
    if i < 3: E(*q_reads(i+1))
    E(*mf[1:])
    if i == 0:
        for j in range(32): e(f'v_mov_b32 v{aOa+j}, 0')
    if i == 2:
        E(f's_and_b32 s{sT0}, s{sW}, 1', f's_lshl_b32 s{sT1}, s{sRB}, 1', f's_add_u32 s{sT0}, s{sT0}, s{sT1}', f's_lshl_b32 s{sT0}, s{sT0}, 5',
          f's_lshl_b32 s{sT1}, s{sHG}, 2', f's_add_u32 s{sT0}, s{sT0}, s{sT1}', f's_and_b32 s{sT1}, s{sW}, 2', f's_add_u32 s{sT0}, s{sT0}, s{sT1}',
          f's_lshl_b32 s{sT0}, s{sT0}, 10', f's_add_u32 s{sOslot}, s{sT0}, {hex(WS_OB)}',
          f'v_add_u32 v{vKa}, {KVB}, v{vL16}', f'v_lshlrev_b32 v{vVa}, 4, v{vI}', f'v_lshl_add_u32 v{vVa}, v{vH}, 8, v{vVa}', f'v_add_u32 v{vVa}, {KVB}, v{vVa}')
tail_setup()
e('s_barrier')
stamp(6, 'head', 'crit'); stamp(2, 'all', 'x')
for j in range(4): e(f'ds_read_b128 {vr(aSa+4*j,4)}, v{vQx} offset:{j*1024}')
E(f'v_and_b32 v{vT1}, 27, v0', f'v_cmp_eq_u32 vcc, 16, v{vT1}', f'v_mov_b32 v{vT1}, 0x3f803f80', 's_nop 0', f'v_cndmask_b32 v{aV}, 0, v{vT1}, vcc')
for i in range(1, 32): e(f'v_mov_b32 v{aV+i}, v{aV}')
e('s_waitcnt lgkmcnt(0)')
for j in range(16): e(f'v_add_f32 v{vQacc+j}, v{vQacc+j}, v{aSa+j}')
for j in range(16): e(f'v_mul_f32 v{vQacc+j}, s{sCS}, v{vQacc+j}')
for j in range(8): e(f'v_cvt_pk_bf16_f32 v{vQa+j}, v{vQacc+2*j}, v{vQacc+2*j+1}')
E(f's_cmp_lg_u32 s{sW}, 4', 's_cbranch_scc1 L_y4')
poll_check('kv', vPa, ['0'], [vFl], False)
lab('L_nochk_kv')
stamp(8, 'crit')
E(f's_lshr_b32 s{sT0}, s{sRB}, 3', f's_lshl_b32 s{sT0}, s{sT0}, 15')
for g in range(4):
    E(f's_mov_b32 m0, {KVB+g*4096}', 's_nop 0')
    for j in range(4): dma(vL16, S_WS, f's{sT0}', 1024*j, ' sc1', None)
    if g < 3: e(f's_add_u32 s{sT0}, s{sT0}, 4096')
lab('L_y4')
stamp(9, 'x2')
e('s_barrier')
stamp(7, 'head'); stamp(3, 'x')
e('s_waitcnt vmcnt(0)')
stamp(9, 'crit')
YP = int(([a[2:] for a in XP if a.startswith('yp')] + ['1'])[0])
E(f's_mov_b32 s{sC}, 0', f's_setprio {YP}', 's_barrier')
stamp(8, 'head'); stamp(3, 'all'); stamp(4, 'x'); stamp(1, 'tail')
cstamp(10)
E(f'ds_read_b128 {vr(aK,4)}, v{vKa}', f'ds_read_b128 {vr(aK+4,4)}, v{vKa} offset:2048', f's_mov_b64 exec, {sr(sVM,2)}')
for j in range(4): e(f'ds_read_b128 {vr(aV+4*j,4)}, v{vVa} offset:{(j>>1)*2048+1024+(j&1)*512}')
E('s_mov_b64 exec, -1', 's_waitcnt lgkmcnt(5)',
  f'v_mfma_f32_32x32x16_bf16 {vr(aSa,16)}, {vr(aK,4)}, {vr(vQa,4)}, 0',
  f'v_mfma_f32_32x32x16_bf16 {vr(aSb,16)}, {vr(aK,4)}, {vr(vQb,4)}, 0', 's_nop 10')
maxtree([aSa+i for i in range(16)], vT0, vT1)
maxtree([aSb+i for i in range(16)], vT2, vT3)
E(f'v_permlane32_swap_b32 v{vT0}, v{vT1}', f'v_max_f32 v{vT0}, v{vT0}, v{vT1}', f'v_permlane32_swap_b32 v{vT2}, v{vT3}',
  f'v_sub_f32 v{aCa}, {f32(-MOFF)}, v{vT0}', f'v_max_f32 v{vT2}, v{vT2}, v{vT3}')
for i in range(1, 16): e(f'v_mov_b32 v{aCa+i}, v{aCa}')
E(f'v_sub_f32 v{aCb}, {f32(-MOFF)}, v{vT2}', f'v_mov_b32 v{aCb+1}, v{aCb}',
  f'v_mfma_f32_32x32x16_bf16 {vr(aSa,16)}, {vr(aK,4)}, {vr(vQa,4)}, {vr(aCa,16)}')
for i in range(2, 16): e(f'v_mov_b32 v{aCb+i}, v{aCb}')
E('s_waitcnt lgkmcnt(0)', f'v_exp_f32 v{aSa}, v{aSa}', f'v_exp_f32 v{aSa+1}, v{aSa+1}', 's_branch L_att_entry')

def dtile(par, ld_off, entry=False):
    K = aK + 8 * par; Kn = aK + 8 * (par ^ 1)
    V = aV + 16 * par; Vn = aV + 16 * (par ^ 1)
    def ex(S, a, b):
        for i in range(a, b): e(f'v_exp_f32 v{S+i}, v{S+i}')
    def pv(O, Vr, P): e(f'v_smfmac_f32_32x32x32_bf16 {vr(O,16)}, {vr(Vr,4)}, {vr(P,8)}, v{vIdx}')
    def qk(S, Kr, Q, C): e(f'v_mfma_f32_32x32x16_bf16 {vr(S,16)}, {vr(Kr,4)}, {vr(Q,4)}, {vr(C,16)}')
    ex(aSa, 0, 2); pv(aOb, Vn+12, aSb+8)
    if entry: lab('L_att_entry')
    e(f's_mov_b64 exec, {sr(sVM,2)}')
    for j in range(4): e(f'ds_read_b128 {vr(Vn+4*j,4)}, v{vVa} offset:{ld_off+(j>>1)*2048+1024+(j&1)*512}')
    e('s_mov_b64 exec, -1')
    ex(aSa, 2, 5); qk(aSb, K, vQb, aCb)
    E(f'ds_read_b128 {vr(Kn,4)}, v{vKa} offset:{ld_off}', f'ds_read_b128 {vr(Kn+4,4)}, v{vKa} offset:{ld_off+2048}')
    ex(aSa, 5, 10); pv(aOa, V, aSa); ex(aSa, 10, 16)
    ex(aSb, 0, 2); pv(aOa, V+4, aSa+8); ex(aSb, 2, 5); qk(aSa, K+4, vQa, aCa); ex(aSb, 5, 10); pv(aOb, V, aSb); ex(aSb, 10, 16)
    ex(aSa, 0, 2); pv(aOb, V+4, aSb+8); ex(aSa, 2, 5); qk(aSb, K+4, vQb, aCb); ex(aSa, 5, 10); pv(aOa, V+8, aSa); ex(aSa, 10, 16)
    ex(aSb, 0, 2); pv(aOa, V+12, aSa+8); e('s_waitcnt lgkmcnt(0)'); ex(aSb, 2, 5); qk(aSa, Kn, vQa, aCa); ex(aSb, 5, 10); pv(aOb, V+8, aSb); ex(aSb, 10, 16)

e('.p2align 6')
lab('L_att_top')
E(f'v_xor_b32 v{vKa}, 16384, v{vKa}', f'v_xor_b32 v{vVa}, 16384, v{vVa}', f's_cmp_eq_u32 s{sC}, 8', 's_barrier')
dtile(1, 0)
e('s_cbranch_scc1 L_att_done')
dtile(0, 4096, entry=True)
e('s_barrier')
dtile(1, 8192)
dtile(0, 12288)
E(f's_add_u32 s{sC}, s{sC}, 1', 's_branch L_att_top')
NBAR_Y = NBAR[0] - 2 + 16
assert NBAR_Y == NBAR_X, (NBAR_Y, NBAR_X)
lab('L_att_done')
E('s_nop 0', f'v_smfmac_f32_32x32x32_bf16 {vr(aOb,16)}, {vr(aV+16+12,4)}, {vr(aSb+8,8)}, v{vIdx}')
stamp(4, 'all'); stamp(2, 'tail')
cstamp(11)
def chk(O, t1, t2):
    E(f'v_add_f32 v{t1}, abs(v{O}), abs(v{O+1})', f'v_add_f32 v{t2}, abs(v{O+2}), abs(v{O+3})', f'v_add_f32 v{t1}, v{t1}, abs(v{O+4})', f'v_add_f32 v{t2}, v{t2}, abs(v{O+5})',
      f'v_add_f32 v{t1}, v{t1}, abs(v{O+6})', f'v_add_f32 v{t2}, v{t2}, abs(v{O+7})', f'v_add_f32 v{t1}, v{t1}, v{O+8}', f'v_add_f32 v{t1}, v{t1}, v{t2}')
chk(aOa, vT0, vT1)
E(f's_mov_b32 s{sT0}, 0xfffffffe', f'v_mov_b32 v{vT1}, 0x7e000000', 's_nop 1')
chk(aOb, vT2, vT3)
E(f'v_add_f32 v{vT0}, v{vT0}, v{vT2}', f'v_cmp_nlt_f32 vcc, v{vT0}, v{vT1}', 's_cbranch_vccnz L_fallback')
lab('L_att_ok')
E(f'v_rcp_f32 v{vT0}, v{aOa+8}', f'v_rcp_f32 v{vT1}, v{aOb+8}')
for O, t, d, off in ((aOa, vT0, 224, 0), (aOb, vT1, 228, 1024)):
    for i in range(8): e(f'v_mul_f32 v{O+i}, v{O+i}, v{t}')
    for i in range(4): e(f'v_cvt_pk_bf16_f32 v{d+i}, v{O+2*i}, v{O+2*i+1}')
    for i in range(4): e(f'v_min_u32 v{d+i}, s{sT0}, v{d+i}')
    e(f'buffer_store_dwordx4 {vr(d,4)}, v{vL16}, {sr(S_WS,4)}, s{sOslot} offen{" offset:1024" if off else ""} sc1')
E('s_setprio 0', 's_barrier')
stamp(3, 'tail')
w_reads()
e(f's_mov_b32 s{sSpin}, {SPIN}')
TS = 4
for a in XP:
    if a.startswith('tslp'): TS = int(a[4:])
if TS: e(f's_sleep {TS}')
stamp(4, 'tail')
lab('L_tail_retry')
o_loads()
for g in range(4):
    e(f's_waitcnt vmcnt({12-4*g})')
    b_ = oOf + 16 * g
    if g == 0:
        E(f'v_max3_u32 v{vT0}, v{b_}, v{b_+1}, v{b_+2}', f'v_max3_u32 v{vT1}, v{b_+3}, v{b_+4}, v{b_+5}')
        rest = list(range(b_+6, b_+16))
    else: rest = list(range(b_, b_+16))
    for k in range(0, len(rest), 2):
        t = vT0 if (k >> 1) & 1 == 0 else vT1
        e(f'v_max3_u32 v{t}, v{t}, v{rest[k]}, v{rest[k+1]}')
E(f'v_max_u32 v{vT0}, v{vT0}, v{vT1}', f'v_cmp_eq_u32 vcc, -1, v{vT0}', 's_cbranch_vccz L_tail_go',
  f's_sub_u32 s{sSpin}, s{sSpin}, 1', 's_cbranch_scc0 L_tail_retry')

cm('================ tail: out projections (X: branch A, Y: branch B) ================')
lab('L_tail_go')
stamp(5, 'tail', 'all')
e('s_waitcnt lgkmcnt(0)')
for rt in range(2):
    for s_ in range(8):
        for ct in range(2):
            a_ = oAcc + 32 * rt + 16 * ct
            e(f'v_mfma_f32_32x32x16_bf16 {vr(a_,16)}, {vr(oW+8*s_+4*ct,4)}, {vr(oOf+32*rt+4*s_,4)}, {"0" if s_ == 0 else vr(a_,16)}')
            m_ = 2 * s_ + ct
            if rt == 1 and 10 <= m_ <= 13:
                for q in (2*(m_-10), 2*(m_-10)+1):
                    e(f'ds_write_b128 v{80+q if q else vTp}, {vr(oAcc+4*q,4)}')
e('s_nop 10')
stamp(6, 'tail')
for q in range(8):
    e(f'ds_write_b128 v{80+q if q else vTp}, {vr(oAcc+32+4*q,4)} offset:8192')
E(f's_add_u32 s{sT1}, s{sOutOff}, 65536', 's_waitcnt lgkmcnt(0)', 's_barrier')
stamp(7, 'tail')
for rt in range(2):
    tR = 96 + 32 * rt
    for kq in range(4):
        a0, a1 = (vTr0, 88) if kq < 2 else (vTr1, 89)
        E(f'ds_read_b128 {vr(tR+8*kq,4)}, v{a0} offset:{(kq&1)*16384+rt*8192}', f'ds_read_b128 {vr(tR+8*kq+4,4)}, v{a1} offset:{(kq&1)*16384+rt*8192}')
for rt in range(2):
    tR = 96 + 32 * rt
    e(f's_waitcnt lgkmcnt({8 if rt == 0 else 0})')
    for a_, b_ in ((0, 8), (16, 24), (0, 16)):
        for i in range(0, 8, 2): e(f'v_pk_add_f32 {vr(tR+a_+i,2)}, {vr(tR+a_+i,2)}, {vr(tR+b_+i,2)}')
    d = 16 + 4 * rt
    for i in range(4): e(f'v_cvt_pk_bf16_f32 v{d+i}, v{tR+2*i}, v{tR+2*i+1}')
    e(f'buffer_store_dwordx4 {vr(d,4)}, v{vTo}, {sr(S_OUT,4)}, s{sT1 if rt else sOutOff} offen')
if STAMPS:
    stamp(8, 'tail')
    e('s_waitcnt vmcnt(0)')
    stamp(9, 'tail', 'head'); stamp(6, 'all')
    e('s_waitcnt lgkmcnt(0)')
    e('s_nop 1')
    for i in range(12): e(f'v_mov_b32 v{16+i}, s{sST+2*i}')
    E(f's_getreg_b32 s{sT0}, hwreg(HW_REG_XCC_ID)', f'v_mov_b32 v28, s{sT0}', f'v_mov_b32 v29, s{sSpin}', f'v_mov_b32 v30, s{sFB}', 'v_mov_b32 v31, 0',
      f's_lshl_b32 s{sT0}, s2, 3', f's_add_u32 s{sT0}, s{sT0}, s{sW}', f's_lshl_b32 s{sT0}, s{sT0}, 6', f's_add_u32 s{sT0}, s{sT0}, {hex(WS_STAMP)}',
      'v_mov_b32 v0, 0', 's_mov_b64 exec, 1')
    for i in range(4):
        e(f'buffer_store_dwordx4 {vr(16+4*i,4)}, v0, {sr(S_WS,4)}, s{sT0} offen offset:{16*i}')
lab('L_end')
e('s_endpgm')

cm('---- fallback (Y waves): true max, K/V from global ----')
lab('L_fallback')
E(f's_mov_b32 s{sFB}, 1', f'v_mov_b32 v{vT0}, 0xff800000', f'v_mov_b32 v{vT2}, 0xff800000', f's_mov_b32 s{sT2}, 0')
lab('L_fb_max')
E(f'buffer_load_dwordx4 {vr(aK,4)}, v{vL16}, {sr(S_WS,4)}, s{sT2} offen sc1', 's_waitcnt vmcnt(0)',
  f'v_mfma_f32_32x32x16_bf16 {vr(aSa,16)}, {vr(aK,4)}, {vr(vQa,4)}, 0', f'v_mfma_f32_32x32x16_bf16 {vr(aSb,16)}, {vr(aK,4)}, {vr(vQb,4)}, 0', 's_nop 15')
for k in range(0, 16, 2): e(f'v_max3_f32 v{vT0}, v{vT0}, v{aSa+k}, v{aSa+k+1}')
for k in range(0, 16, 2): e(f'v_max3_f32 v{vT2}, v{vT2}, v{aSb+k}, v{aSb+k+1}')
E(f's_add_u32 s{sT2}, s{sT2}, 2048', f's_cmp_lt_u32 s{sT2}, {64*2048}', 's_cbranch_scc1 L_fb_max',
  f'v_mov_b32 v{vT1}, v{vT0}', f'v_mov_b32 v{vT3}, v{vT2}', 's_nop 1',
  f'v_permlane32_swap_b32 v{vT0}, v{vT1}', f'v_permlane32_swap_b32 v{vT2}, v{vT3}', f'v_max_f32 v{vT0}, v{vT0}, v{vT1}', f'v_max_f32 v{vT2}, v{vT2}, v{vT3}')
for i in range(16): e(f'v_sub_f32 v{aCa+i}, 0, v{vT0}')
for i in range(16): e(f'v_sub_f32 v{aCb+i}, 0, v{vT2}')
for i in range(32): e(f'v_mov_b32 v{aOa+i}, 0')
E(f'v_lshlrev_b32 v{vT2}, 4, v{vI}', f'v_lshl_add_u32 v{vT2}, v{vH}, 8, v{vT2}', f's_mov_b32 s{sT2}, 0')
lab('L_fb_pv')
E(f'buffer_load_dwordx4 {vr(aK,4)}, v{vL16}, {sr(S_WS,4)}, s{sT2} offen sc1', f's_mov_b64 exec, {sr(sVM,2)}',
  f'buffer_load_dwordx4 {vr(aV,4)}, v{vT2}, {sr(S_WS,4)}, s{sT2} offen offset:1024 sc1',
  f'buffer_load_dwordx4 {vr(aV+4,4)}, v{vT2}, {sr(S_WS,4)}, s{sT2} offen offset:1536 sc1', 's_mov_b64 exec, -1', 's_waitcnt vmcnt(0)',
  f'v_mfma_f32_32x32x16_bf16 {vr(aSa,16)}, {vr(aK,4)}, {vr(vQa,4)}, {vr(aCa,16)}',
  f'v_mfma_f32_32x32x16_bf16 {vr(aSb,16)}, {vr(aK,4)}, {vr(vQb,4)}, {vr(aCb,16)}', 's_nop 15')
for i in range(32): e(f'v_exp_f32 v{aSa+i}, v{aSa+i}')
E('s_nop 1',
  f'v_smfmac_f32_32x32x32_bf16 {vr(aOa,16)}, {vr(aV,4)}, {vr(aSa,8)}, v{vIdx}', f'v_smfmac_f32_32x32x32_bf16 {vr(aOa,16)}, {vr(aV+4,4)}, {vr(aSa+8,8)}, v{vIdx}',
  f'v_smfmac_f32_32x32x32_bf16 {vr(aOb,16)}, {vr(aV,4)}, {vr(aSb,8)}, v{vIdx}', f'v_smfmac_f32_32x32x32_bf16 {vr(aOb,16)}, {vr(aV+4,4)}, {vr(aSb+8,8)}, v{vIdx}',
  f's_add_u32 s{sT2}, s{sT2}, 2048', f's_cmp_lt_u32 s{sT2}, {64*2048}', 's_cbranch_scc1 L_fb_pv', 's_nop 15', 's_branch L_att_ok')

HDR = open(f'cdna_kernels/{NAME}.s.ref').read().split('\n')
hdr = []
for line in HDR:
    if line.startswith('; @launch'): break
    hdr.append(line)
txt = '\n'.join(hdr) + '\n; @launch grid=(256,1,1) block=(512,1,1) lds=163840\n'
txt += f'''.amdgcn_target "amdgcn-amd-amdhsa--gfx950"
.text
.globl {NAME}_kernel
.p2align 8
.type {NAME}_kernel,@function
'''
txt += '\n'.join(L) + '\n'
txt += f'''.section .rodata,"a"
.p2align 6
.amdhsa_kernel {NAME}_kernel
  .amdhsa_next_free_vgpr {NVGPR}
  .amdhsa_next_free_sgpr 102
  .amdhsa_accum_offset {NVGPR}
  .amdhsa_group_segment_fixed_size 0
  .amdhsa_kernarg_size 88
  .amdhsa_user_sgpr_count 2
  .amdhsa_user_sgpr_kernarg_segment_ptr 1
  .amdhsa_system_sgpr_workgroup_id_x 1
.end_amdhsa_kernel
'''
open(OUT, 'w').write(txt)
print('wrote', OUT, len(L), 'lines; barriers', NBAR_X)
```

```python
import sys, struct

NAME = 'concat_heads__sliding_local_dilated__grouped_kv_mqa__prompt'
STAMPS = '--stamps' in sys.argv
STMODE = ([a[5:] for a in sys.argv if a.startswith('--st=')] + ['all'])[0]
XP = [a[4:] for a in sys.argv if a.startswith('--x=')]
args = [a for a in sys.argv[1:] if not a.startswith('--')]
OUT = args[0] if args else f'cdna_kernels/{NAME}.s'
def opt(name, default):
    for a in XP:
        if a.startswith(name): return type(default)(a[len(name):])
    return default

L = []
VMQ = []
NBAR = [0]
def e(s, tag=None):
    if tag is not None: VMQ.append(tag)
    if s == 's_barrier': NBAR[0] += 1
    L.append('    ' + s.strip())
def lab(s): L.append(s + ':')
def cm(s): L.append('    ; ' + s)
def vr(i, n): return f'v[{i}:{i+n-1}]'
def sr(i, n): return f's[{i}:{i+n-1}]'
def f32(x): return '0x%08x' % struct.unpack('<I', struct.pack('<f', x))[0]
def vmn(tag):
    idx = max(i for i, t in enumerate(VMQ) if t == tag)
    n = len(VMQ) - 1 - idx
    assert n <= 63
    return n
def E(*lines):
    for s in lines: e(s)

SLOT = 32768
R = 131072
HALO = 3 * SLOT
ONES = 3 * SLOT + 16384
SC = 2 * SLOT
WS_FKV = 0x40000
WS_FOA = 0x48000
WS_OA = 0x100000
WS_OB = 0x300000
WS_STAMP = 0x500000
WS_SIZE = 0x600000
CSCALE = 0.25 * 1.4426950408889634
MOFF = 40.0
SPIN = 200000
NT = '' if 'nont' in XP else ' nt'

S_XA, S_WQKV, S_WOA, S_XB, S_WQ, S_WKV, S_WOB, S_OUT, S_WS = 8, 12, 16, 20, 24, 28, 32, 36, 40
S_DBG = 44
S_WV = 46
sP = 46
sW = 48
sRB, sHG = 49, 50
sT0, sT1, sT2, sT3 = 51, 52, 53, 54
sC = 55
sStepA, sStepB = 56, 57
sXo, sWo = 58, 59
sKVo = 60
sW4k, sW8k, sW2k = 61, 62, 63
sVM = 64
sOoff, sOutOff, sWoff, sSpin = 66, 67, 68, 69
sOslot, sOslot2 = 70, 71
sFB, sHG128, sCS, sQ = 72, 73, 74, 75
sRot, sK1 = 4, 5
sF0, sF1, sF2 = 3, 6, 7
sST = 76
sNon = 100

vL16, vW, vWA, vXA = 1, 2, 3, 4
vN, vH, vI = 5, 6, 7
vT0, vT1, vT2, vT3 = 8, 9, 10, 11
vP0, vP1, vXx, vG = 12, 13, 14, 15
vQacc = 16
vFr = 96
(vB0, vB1, vBW, vWl, vIdx, vPa, vQx, vW2, vTw0, vTw1, vTp, vTr0, vTo, vPa2, vZero, vOw,
 vF0, vF1, vF2, vF3, vWA2, vXA2) = range(232, 254)
vNon, vFl = 90, 92
NVGPR = 256

def stamp(i, *modes):
    if STAMPS and STMODE in modes: e(f's_memrealtime {sr(sST+2*i,2)}')
def cstamp(i):
    if STAMPS and STMODE != 'xc': e(f's_memtime {sr(sST+2*i,2)}')
def dma(voff, srd_, soff, off=0, fl='', tag='x'):
    o = f' offset:{off}' if off else ''
    e(f'buffer_load_dwordx4 v{voff}, {sr(srd_,4)}, {soff} offen{o}{fl} lds', tag)
def srd(reg, size): E(f's_mov_b32 s{reg+2}, {hex(size)}', f's_mov_b32 s{reg+3}, 0x20000')
def nonce_load(tag=None): e(f'global_load_dwordx2 {vr(vNon,2)}, v{vZero}, {sr(S_DBG,2)} sc1', tag)
def poll_issue(vaddr, soffs, regs):
    nonce_load()
    for so, r in zip(soffs, regs):
        e(f'buffer_load_dwordx2 {vr(r,2)}, v{vaddr}, {sr(S_WS,4)}, {so} offen sc1')
def poll_check(tag, vaddr, soffs, regs, issued):
    e(f's_mov_b32 s{sSpin}, {SPIN}')
    if issued is not None: E(f's_waitcnt vmcnt({issued})', f's_branch L_chk_{tag}')
    lab(f'L_rep_{tag}')
    poll_issue(vaddr, soffs, regs)
    e('s_waitcnt vmcnt(0)')
    lab(f'L_chk_{tag}')
    e(f'v_cmp_eq_u32 vcc, 0, v{vNon}')
    for r in regs:
        E(f'v_cmp_ne_u64 {sr(sP,2)}, {vr(vNon,2)}, {vr(r,2)}', 's_nop 1', f's_or_b64 vcc, vcc, {sr(sP,2)}')
    E(f's_cbranch_scc0 L_nochk_{tag}', f's_sub_u32 s{sSpin}, s{sSpin}, 1', f's_cbranch_scc0 L_rep_{tag}')
    lab(f'L_nochk_{tag}')
def flag_store(tag, soff, first_wait='s_waitcnt vmcnt(0)'):
    e(f's_mov_b32 s{sSpin}, {SPIN}')
    e(first_wait)
    lab(f'L_fw_{tag}')
    E(f'v_cmp_eq_u32 vcc, 0, v{vNon}', f's_cbranch_vccz L_fs_{tag}')
    nonce_load()
    E('s_waitcnt vmcnt(0)', f's_sub_u32 s{sSpin}, s{sSpin}, 1', f's_cbranch_scc0 L_fw_{tag}')
    lab(f'L_fs_{tag}')
    E('s_mov_b64 exec, 1', f'buffer_store_dwordx2 {vr(vNon,2)}, v{vZero}, {sr(S_WS,4)}, {soff} offen sc1', 's_mov_b64 exec, -1')
def maxtree(rs, t0, t1):
    e(f'v_max3_f32 v{t0}, v{rs[0]}, v{rs[1]}, v{rs[2]}')
    e(f'v_max3_f32 v{t1}, v{rs[3]}, v{rs[4]}, v{rs[5]}')
    for k in range(6, len(rs), 4):
        e(f'v_max3_f32 v{t0}, v{t0}, v{rs[k]}, v{rs[k+1]}')
        if k + 3 < len(rs): e(f'v_max3_f32 v{t1}, v{t1}, v{rs[k+2]}, v{rs[k+3]}')
    e(f'v_max_f32 v{t0}, v{t0}, v{t1}')
    e(f'v_mov_b32 v{t1}, v{t0}')
def lane_setup():
    E(f'v_and_b32 v{vN}, 31, v0', f'v_lshrrev_b32 v{vH}, 5, v0', f'v_and_b32 v{vI}, 15, v0',
      f'v_lshrrev_b32 v{vWl}, 2, v{vI}', f'v_lshl_add_u32 v{vWl}, v{vH}, 3, v{vWl}', f'v_lshlrev_b32 v{vWl}, 7, v{vWl}',
      f'v_and_b32 v{vF0}, 8, v{vI}', f'v_lshl_add_u32 v{vWl}, v{vF0}, 3, v{vWl}', f'v_and_b32 v{vF0}, 16, v0',
      f'v_lshl_add_u32 v{vWl}, v{vF0}, 1, v{vWl}', f'v_and_b32 v{vF0}, 3, v0', f'v_lshl_add_u32 v{vWl}, v{vF0}, 3, v{vWl}',
      f's_lshl_b32 s{sW4k}, s{sQ}, 12', f's_add_u32 s{sF0}, s{sW4k}, {R}', f'v_add_u32 v{vQx}, s{sF0}, v{vL16}',
      f'v_mov_b32 v{vIdx}, 0xdddddddd', f's_mov_b32 s{sFB}, 0')
oOf, oW, oAcc = 16, 96, 160
def tail_setup():
    E(f's_mov_b32 s{S_OUT+2}, 0x400000', f's_mov_b32 s{S_OUT+3}, 0x20000',
      f's_lshr_b32 s{sF2}, s{sW}, 2', f's_lshl_b32 s{sF1}, s{sW}, 14',
      f'v_lshlrev_b32 v{vT0}, 9, v{vH}', f'v_sub_u32 v{vTw0}, v{vWl}, v{vT0}', f'v_add_u32 v{vTw0}, s{sF1}, v{vTw0}', f'v_xor_b32 v{vTw1}, 64, v{vTw0}',
      f'v_xor_b32 v{vT0}, v{vH}, v{vI}', f'v_lshlrev_b32 v{vT0}, 4, v{vT0}', f'v_lshl_add_u32 v{vT0}, v{vN}, 8, v{vT0}', f'v_add_u32 v{vTp}, s{sF1}, v{vT0}',
      f'v_lshrrev_b32 v{vT0}, 3, v0', f's_lshl_b32 s{sF1}, s{sQ}, 3', f'v_add_u32 v{vT0}, s{sF1}, v{vT0}', f'v_and_b32 v{vT1}, 7, v0', f'v_lshlrev_b32 v{vT2}, 1, v{vT1}',
      f'v_and_b32 v{vT3}, 15, v{vT0}', f'v_xor_b32 v{vT2}, v{vT2}, v{vT3}', f'v_lshlrev_b32 v{vT2}, 4, v{vT2}', f'v_lshl_add_u32 v{vT2}, v{vT0}, 8, v{vT2}',
      f's_lshl_b32 s{sF1}, s{sF2}, 16', f'v_add_u32 v{vTr0}, s{sF1}, v{vT2}',
      f'v_lshlrev_b32 v{vT1}, 4, v{vT1}', f'v_lshl_add_u32 v{vTo}, v{vT0}, 11, v{vT1}',
      f's_lshl_b32 s{sOutOff}, s{sRB}, 17', f's_lshl_b32 s{sF1}, s{sF2}, 10', f's_add_u32 s{sOutOff}, s{sOutOff}, s{sF1}', f's_add_u32 s{sOutOff}, s{sOutOff}, s{sHG128}',
      f's_lshl_b32 s{sOoff}, s{sRB}, 16', f's_lshl_b32 s{sF1}, s{sQ}, 13', f's_add_u32 s{sOoff}, s{sOoff}, s{sF1}',
      f's_lshl_b32 s{sF1}, s{sF2}, 21', f's_add_u32 s{sOoff}, s{sOoff}, s{sF1}', f's_add_u32 s{sOoff}, s{sOoff}, {hex(WS_OA)}')
assert WS_OB - WS_OA == 1 << 21
def w_reads():
    for s in range(8):
        x = oW + 8 * s
        E(f'ds_read_b64_tr_b16 {vr(x,2)}, v{vTw0} offset:{s*2048}', f'ds_read_b64_tr_b16 {vr(x+2,2)}, v{vTw0} offset:{s*2048+1024}',
          f'ds_read_b64_tr_b16 {vr(x+4,2)}, v{vTw1} offset:{s*2048}', f'ds_read_b64_tr_b16 {vr(x+6,2)}, v{vTw1} offset:{s*2048+1024}')
    for q in range(1, 8): e(f'v_xor_b32 v{80+q}, {(2*q)<<4}, v{vTp}')
    e(f'v_xor_b32 v88, 16, v{vTr0}')
def o_loads(tag=None):
    E(f's_add_u32 s{sT1}, s{sOoff}, 4096', f's_add_u32 s{sT2}, s{sOoff}, 32768', f's_add_u32 s{sT3}, s{sOoff}, {32768+4096}')
    for g, so in enumerate((sOoff, sT1, sT2, sT3)):
        for j in range(4):
            o = f' offset:{j*1024}' if j else ''
            e(f'buffer_load_dwordx4 {vr(oOf+16*g+4*j,4)}, v{vL16}, {sr(S_WS,4)}, s{so} offen{o} sc1', tag)

lab(f'{NAME}_kernel')
if STAMPS:
    for i in range(12): e(f's_mov_b32 s{sST+2*i}, 0')
stamp(0, 'all', 'head', 'tail', 'x')
for reg, off in ((S_XB,24),(S_WKV,40),(S_WV,48),(S_WQ,32),(S_DBG,72),(S_WS,80),(S_XA,0),(S_WQKV,8),(S_WOA,16),(S_WOB,56),(S_OUT,64)):
    e(f's_load_dwordx2 {sr(reg,2)}, s[0:1], {off}')
e(f's_memrealtime {sr(sNon,2)}')
E('s_cmp_ge_u32 s2, 256', 's_cbranch_scc1 L_end',
  f'v_lshrrev_b32 v{vT0}, 6, v0', 'v_and_b32 v0, 63, v0', f'v_readfirstlane_b32 s{sW}, v{vT0}',
  f's_and_b32 s{sT0}, s2, 7', f's_bfe_u32 s{sRot}, s2, 0x20003', f's_lshl_b32 s{sRB}, s{sT0}, 2',
  f's_add_u32 s{sRB}, s{sRB}, s{sRot}', f's_lshr_b32 s{sHG}, s2, 5',
  f'v_lshlrev_b32 v{vL16}, 4, v0', f'v_lshrrev_b32 v{vG}, 4, v0', f'v_lshrrev_b32 v{vT1}, 3, v0', f'v_and_b32 v{vT2}, 7, v0',
  f'v_xor_b32 v{vT3}, v{vT2}, v{vG}', f'v_lshlrev_b32 v{vT3}, 4, v{vT3}', f'v_lshl_add_u32 v{vP0}, v{vT1}, 10, v{vT3}',
  f'v_xor_b32 v{vP1}, 64, v{vP0}', f'v_add_u32 v{vP1}, {8192-1024}, v{vP1}', f'v_mov_b32 v{vZero}, 0',
  f's_xor_b32 s{sW}, s{sW}, 7', f's_lshl_b32 s{sRot}, s{sRot}, 1', f's_lshl_b32 s{sHG128}, s{sHG}, 7', f's_and_b32 s{sQ}, s{sW}, 3')
srd(S_WS, WS_SIZE)
E(f's_cmp_lt_u32 s{sW}, 4', 's_cbranch_scc1 L_X')

cm('================ Y program (waves 4-7) ================')
aSa, aSb, aCa, aCb, aOa, aOb = 96, 112, 128, 144, 160, 176
aK, aV = 192, 56
vQa, vQb = 208, 212
vKa, vVa = 216, 217
srd(S_XB, 0x200000); srd(S_WKV, 0x4000)
vD0, vD1 = 218, 219
E(f's_lshr_b32 s{sT1}, s{sHG}, 1', f's_add_u32 s{sT1}, s{sT1}, s{sW}', f's_add_u32 s{sT1}, s{sT1}, 1', f's_and_b32 s{sT1}, s{sT1}, 3',
  f's_lshl_b32 s{sT2}, s{sT1}, 11',
  f's_lshl_b32 s{sT3}, s{sRB}, 2', f's_add_u32 s{sT3}, s{sT3}, s{sT1}', f's_lshl_b32 s{sT3}, s{sT3}, 14',
  f'v_add_u32 v{vD0}, s{sT3}, v{vP0}', f'v_add_u32 v{vD1}, s{sT3}, v{vP1}',
  f's_lshl_b32 s{sXo}, s{sRot}, 7',
  f's_cmp_lg_u32 s{sW}, 7', 's_cbranch_scc1 L_Yset')
def x_sub(s, tag):
    E(f's_add_u32 m0, s{sT2}, {s*16384}', f's_and_b32 s{sXo}, s{sXo}, 1023')
    dma(vD0, S_XB, f's{sXo}', 0, NT, tag); dma(vD1, S_XB, f's{sXo}', 1024, NT, tag)
E(f's_bitcmp1_b32 s{sHG}, 0', 's_waitcnt lgkmcnt(0)',
  f's_cselect_b32 s{S_WKV}, s{S_WV}, s{S_WKV}', f's_cselect_b32 s{S_WKV+1}, s{S_WV+1}, s{S_WKV+1}')
for s_ in range(8):
    x_sub(s_, None)
    E(f's_mov_b32 m0, {R+s_*2048}', f's_lshl_b32 s{sWo}, s{sXo}, 4')
    dma(vL16, S_WKV, f's{sWo}', 0, '', None); dma(vL16, S_WKV, f's{sWo}', 1024, '', None)
    if s_ < 7: e(f's_add_u32 s{sXo}, s{sXo}, 128')
e('s_barrier'); NBAR[0] -= 1
stamp(1, 'head')
lab('L_Yset')
lane_setup()
tail_setup()
E(f's_mov_b32 s{sVM}, 0xffff', f's_mov_b32 s{sVM+1}, 0xffff',
  f's_and_b32 s{sT0}, s{sRB}, 28', f's_add_u32 s{sT0}, s{sT0}, s{sQ}', f's_lshl_b32 s{sKVo}, s{sT0}, 12',
  f's_lshl_b32 s{sT0}, s{sT0}, 9', f's_add_u32 s{sT0}, s{sT0}, {hex(WS_FKV)}',
  f'v_and_b32 v{vPa}, 7, v0', f'v_lshlrev_b32 v{vPa}, 6, v{vPa}', f'v_add_u32 v{vPa}, s{sT0}, v{vPa}',
  f's_and_b32 s{sT0}, s{sW}, 1', f's_lshl_b32 s{sT1}, s{sRB}, 1', f's_add_u32 s{sT0}, s{sT0}, s{sT1}', f's_lshl_b32 s{sT0}, s{sT0}, 5',
  f's_lshl_b32 s{sT1}, s{sHG}, 2', f's_add_u32 s{sT0}, s{sT0}, s{sT1}', f's_and_b32 s{sT1}, s{sW}, 2', f's_add_u32 s{sT0}, s{sT0}, s{sT1}',
  f's_lshl_b32 s{sT0}, s{sT0}, 10', f's_add_u32 s{sOslot}, s{sT0}, {hex(WS_OB)}',
  f'v_add_u32 v{vKa}, {R+16384}, v{vL16}', f'v_lshlrev_b32 v{vVa}, 4, v{vI}', f'v_lshl_add_u32 v{vVa}, v{vH}, 8, v{vVa}', f'v_add_u32 v{vVa}, {R+16384}, v{vVa}',
  f'v_and_b32 v{vT1}, 27, v0', f'v_cmp_eq_u32 vcc, 16, v{vT1}', f'v_mov_b32 v{vT1}, 0x3f803f80', f's_cmp_eq_u32 s{sW}, 7', f'v_cndmask_b32 v{aV}, 0, v{vT1}, vcc',
  's_cbranch_scc1 L_Y7', 's_waitcnt lgkmcnt(0)', 's_barrier')
for s_ in range(8):
    x_sub(s_, 'xb')
    if s_ < 7: e(f's_add_u32 s{sXo}, s{sXo}, 128')
stamp(1, 'head')
e('s_branch L_Yj')
lab('L_Y7')
E(f'v_lshrrev_b32 v{vT1}, 1, v{vI}', f'v_xor_b32 v{vT1}, v{vT1}, v{vG}', f'v_lshlrev_b32 v{vT1}, 4, v{vT1}', f'v_lshl_add_u32 v{vT1}, v{vI}, 7, v{vT1}',
  f'v_add_u32 v{vT0}, s{sT2}, v{vT1}', f'v_xor_b32 v{vT1}, 64, v{vT0}', f'v_add_u32 v{vT2}, 65536, v{vT0}', f'v_add_u32 v{vT3}, 65536, v{vT1}',
  f'v_lshlrev_b32 v{vF0}, 8, v{vG}', f'v_lshl_add_u32 v{vF0}, v{vI}, 3, v{vF0}', f'v_add_u32 v{vF0}, {R}, v{vF0}',
  f'v_and_b32 v{vF1}, 1, v{vG}', f'v_lshrrev_b32 v{vF2}, 1, v{vG}',
  f's_lshr_b32 s{sT0}, s{sHG}, 2', f's_lshl_b32 s{sC}, s{sRB}, 1', f's_add_u32 s{sT0}, s{sT0}, s{sC}', f's_lshl_b32 s{sT0}, s{sT0}, 11',
  f's_bfe_u32 s{sC}, s{sHG}, 0x10001',
  f's_lshl_b32 s{sT1}, s{sRB}, 3', f's_add_u32 s{sT1}, s{sT1}, s{sHG}', f's_lshl_b32 s{sT1}, s{sT1}, 6', f's_add_u32 s{sK1}, s{sT1}, {hex(WS_FKV)}')
kd = 16
KF = 88
KF = 96 - 8
def kfr(u): return (96 + 8 * u) if u < 15 else 24
def kv_reads(s):
    a0, a1 = (vT0, vT1) if s < 4 else (vT2, vT3)
    o = (s & 3) * 16384
    x, y = kfr(2*s), kfr(2*s+1)
    E(f's_waitcnt vmcnt({28-4*s})',
      f'ds_read_b128 {vr(x,4)}, v{a0} offset:{o}', f'ds_read_b64_tr_b16 {vr(x+4,2)}, v{vF0} offset:{s*2048}', f'ds_read_b64_tr_b16 {vr(x+6,2)}, v{vF0} offset:{s*2048+128}',
      f'ds_read_b128 {vr(y,4)}, v{a1} offset:{o}', f'ds_read_b64_tr_b16 {vr(y+4,2)}, v{vF0} offset:{s*2048+1024}', f'ds_read_b64_tr_b16 {vr(y+6,2)}, v{vF0} offset:{s*2048+1152}')
for s_ in range(8): kv_reads(s_)
nonce_load()
stamp(2, 'head')
E(f's_bitcmp1_b32 s{sHG}, 0', 's_cbranch_scc1 L_kv_v',
  f'v_lshlrev_b32 v{vF1}, 9, v{vF1}', f'v_lshl_add_u32 v{vF1}, v{vF2}, 3, v{vF1}', f's_lshl_b32 s{sC}, s{sC}, 8')
def kv_chain(swap):
    for u in range(16):
        x = kfr(u)
        if u == 0: e('s_waitcnt lgkmcnt(12)')
        if u == 12: e('s_waitcnt lgkmcnt(0)')
        a, b = (vr(x+4,4), vr(x,4))
        if swap: a, b = b, a
        d = kd + 4 * (u & 1)
        e(f'v_mfma_f32_16x16x32_bf16 {vr(d,4)}, {a}, {b}, {"0" if u < 2 else vr(d,4)}')
kv_chain(False)
e('s_branch L_kv_j')
lab('L_kv_v')
E(f'v_lshlrev_b32 v{vF1}, 3, v{vF1}', f'v_lshl_add_u32 v{vF1}, v{vF2}, 8, v{vF1}', f's_lshl_b32 s{sC}, s{sC}, 9', f's_add_u32 s{sC}, s{sC}, 1024')
kv_chain(True)
lab('L_kv_j')
E(f'v_lshl_add_u32 v{vF1}, v{vI}, 4, v{vF1}', f's_add_u32 s{sT0}, s{sT0}, s{sC}', 's_nop 5',
  f'v_pk_add_f32 {vr(kd,2)}, {vr(kd,2)}, {vr(kd+4,2)}', f'v_pk_add_f32 {vr(kd+2,2)}, {vr(kd+2,2)}, {vr(kd+6,2)}',
  f'v_cvt_pk_bf16_f32 v{vF2}, v{kd}, v{kd+1}', f'v_cvt_pk_bf16_f32 v{vF3}, v{kd+2}, v{kd+3}',
  f'buffer_store_dwordx2 {vr(vF2,2)}, v{vF1}, {sr(S_WS,4)}, s{sT0} offen sc1')
stamp(3, 'head')
lab('L_Yj')
for i in range(1, 32): e(f'v_mov_b32 v{aV+i}, v{aV}')
for j in range(32): e(f'v_mov_b32 v{aOa+j}, 0')
E('s_waitcnt vmcnt(0)', f's_cmp_lg_u32 s{sW}, 7', 's_cbranch_scc1 L_flag_done')
flag_store('kv', f's{sK1}')
stamp(4, 'head')
lab('L_flag_done')
e('s_barrier')
stamp(5, 'head'); stamp(1, 'all', 'x')
poll_check('kv', vPa, ['0'], [vFl], None)
stamp(6, 'head')
E(f's_add_u32 m0, s{sW4k}, {R+16384}', f's_mov_b32 s{sC}, 0')
for j in range(4): dma(vL16, S_WS, f's{sKVo}', 1024*j, ' sc1', None)
E(f's_setprio {opt("yp", 1)}', 's_waitcnt vmcnt(0)')
stamp(7, 'head'); stamp(2, 'all', 'x')
e('s_barrier')
stamp(8, 'head'); stamp(3, 'all', 'x'); stamp(1, 'tail')
cstamp(10)
E(f'ds_read_b128 {vr(vQa,4)}, v{vQx}', f'ds_read_b128 {vr(vQb,4)}, v{vQx} offset:1024',
  f'ds_read_b128 {vr(aK,4)}, v{vKa}', f'ds_read_b128 {vr(aK+4,4)}, v{vKa} offset:2048', f's_mov_b64 exec, {sr(sVM,2)}')
for j in range(4): e(f'ds_read_b128 {vr(aV+4*j,4)}, v{vVa} offset:{(j>>1)*2048+1024+(j&1)*512}')
E('s_mov_b64 exec, -1', 's_waitcnt lgkmcnt(5)',
  f'v_mfma_f32_32x32x16_bf16 {vr(aSa,16)}, {vr(aK,4)}, {vr(vQa,4)}, 0',
  f'v_mfma_f32_32x32x16_bf16 {vr(aSb,16)}, {vr(aK,4)}, {vr(vQb,4)}, 0', 's_nop 10')
maxtree([aSa+i for i in range(16)], vT0, vT1)
maxtree([aSb+i for i in range(16)], vT2, vT3)
E(f'v_permlane32_swap_b32 v{vT0}, v{vT1}', f'v_max_f32 v{vT0}, v{vT0}, v{vT1}', f'v_permlane32_swap_b32 v{vT2}, v{vT3}',
  f'v_sub_f32 v{aCa}, {f32(-MOFF)}, v{vT0}', f'v_max_f32 v{vT2}, v{vT2}, v{vT3}')
for i in range(1, 16): e(f'v_mov_b32 v{aCa+i}, v{aCa}')
E(f'v_sub_f32 v{aCb}, {f32(-MOFF)}, v{vT2}', f'v_mov_b32 v{aCb+1}, v{aCb}',
  f'v_mfma_f32_32x32x16_bf16 {vr(aSa,16)}, {vr(aK,4)}, {vr(vQa,4)}, {vr(aCa,16)}')
for i in range(2, 16): e(f'v_mov_b32 v{aCb+i}, v{aCb}')
E('s_waitcnt lgkmcnt(0)', f'v_exp_f32 v{aSa}, v{aSa}', f'v_exp_f32 v{aSa+1}, v{aSa+1}', 's_branch L_att_entry')

def dtile(par, ld_off, entry=False):
    K = aK + 8 * par; Kn = aK + 8 * (par ^ 1)
    V = aV + 16 * par; Vn = aV + 16 * (par ^ 1)
    def ex(S, a, b):
        for i in range(a, b): e(f'v_exp_f32 v{S+i}, v{S+i}')
    def pv(O, Vr, P): e(f'v_smfmac_f32_32x32x32_bf16 {vr(O,16)}, {vr(Vr,4)}, {vr(P,8)}, v{vIdx}')
    def qk(S, Kr, Q, C): e(f'v_mfma_f32_32x32x16_bf16 {vr(S,16)}, {vr(Kr,4)}, {vr(Q,4)}, {vr(C,16)}')
    ex(aSa, 0, 2); pv(aOb, Vn+12, aSb+8)
    if entry: lab('L_att_entry')
    e(f's_mov_b64 exec, {sr(sVM,2)}')
    for j in range(4): e(f'ds_read_b128 {vr(Vn+4*j,4)}, v{vVa} offset:{ld_off+(j>>1)*2048+1024+(j&1)*512}')
    e('s_mov_b64 exec, -1')
    ex(aSa, 2, 5); qk(aSb, K, vQb, aCb)
    E(f'ds_read_b128 {vr(Kn,4)}, v{vKa} offset:{ld_off}', f'ds_read_b128 {vr(Kn+4,4)}, v{vKa} offset:{ld_off+2048}')
    ex(aSa, 5, 10); pv(aOa, V, aSa); ex(aSa, 10, 16)
    ex(aSb, 0, 2); pv(aOa, V+4, aSa+8); ex(aSb, 2, 5); qk(aSa, K+4, vQa, aCa); ex(aSb, 5, 10); pv(aOb, V, aSb); ex(aSb, 10, 16)
    ex(aSa, 0, 2); pv(aOb, V+4, aSb+8); ex(aSa, 2, 5); qk(aSb, K+4, vQb, aCb); ex(aSa, 5, 10); pv(aOa, V+8, aSa); ex(aSa, 10, 16)
    ex(aSb, 0, 2); pv(aOa, V+12, aSa+8); e('s_waitcnt lgkmcnt(0)'); ex(aSb, 2, 5); qk(aSa, Kn, vQa, aCa); ex(aSb, 5, 10); pv(aOb, V+8, aSb); ex(aSb, 10, 16)

e('.p2align 6')
lab('L_att_top')
E(f'v_xor_b32 v{vKa}, 16384, v{vKa}', f'v_xor_b32 v{vVa}, 16384, v{vVa}', f's_cmp_eq_u32 s{sC}, 8', 's_barrier')
dtile(1, 0)
e('s_cbranch_scc1 L_att_done')
dtile(0, 4096, entry=True)
e('s_barrier')
dtile(1, 8192)
dtile(0, 12288)
E(f's_add_u32 s{sC}, s{sC}, 1', 's_branch L_att_top')
NBAR_Y = NBAR[0] - 2 + 16
lab('L_att_done')
E('s_nop 0', f'v_smfmac_f32_32x32x32_bf16 {vr(aOb,16)}, {vr(aV+16+12,4)}, {vr(aSb+8,8)}, v{vIdx}')
stamp(4, 'all'); stamp(2, 'tail')
cstamp(11)
def chk(O, t1, t2):
    E(f'v_add_f32 v{t1}, abs(v{O}), abs(v{O+1})', f'v_add_f32 v{t2}, abs(v{O+2}), abs(v{O+3})', f'v_add_f32 v{t1}, v{t1}, abs(v{O+4})', f'v_add_f32 v{t2}, v{t2}, abs(v{O+5})',
      f'v_add_f32 v{t1}, v{t1}, abs(v{O+6})', f'v_add_f32 v{t2}, v{t2}, abs(v{O+7})', f'v_add_f32 v{t1}, v{t1}, v{O+8}', f'v_add_f32 v{t1}, v{t1}, v{t2}')
chk(aOa, vT0, vT1)
E(f's_mov_b32 s{sT0}, 0xfffffffe', f'v_mov_b32 v{vT1}, 0x7e000000', 's_nop 1')
chk(aOb, vT2, vT3)
E(f'v_add_f32 v{vT0}, v{vT0}, v{vT2}', f'v_cmp_nlt_f32 vcc, v{vT0}, v{vT1}', 's_cbranch_vccnz L_fallback')
lab('L_att_ok')
E(f'v_rcp_f32 v{vT0}, v{aOa+8}', f'v_rcp_f32 v{vT1}, v{aOb+8}')
for O, t, d, off in ((aOa, vT0, 224, 0), (aOb, vT1, 228, 1024)):
    for i in range(8): e(f'v_mul_f32 v{O+i}, v{O+i}, v{t}')
    for i in range(4): e(f'v_cvt_pk_bf16_f32 v{d+i}, v{O+2*i}, v{O+2*i+1}')
    for i in range(4): e(f'v_min_u32 v{d+i}, s{sT0}, v{d+i}')
    e(f'buffer_store_dwordx4 {vr(d,4)}, v{vL16}, {sr(S_WS,4)}, s{sOslot} offen{" offset:1024" if off else ""} sc1')
e('s_barrier')
stamp(3, 'tail')
w_reads()
e(f's_mov_b32 s{sSpin}, {SPIN}')
if opt('tslp', 4): e(f's_sleep {opt("tslp", 4)}')
stamp(4, 'tail')
lab('L_tail_retry')
o_loads()
for g in range(4):
    e(f's_waitcnt vmcnt({12-4*g})')
    b_ = oOf + 16 * g
    if g == 0:
        E(f'v_max3_u32 v{vT0}, v{b_}, v{b_+1}, v{b_+2}', f'v_max3_u32 v{vT1}, v{b_+3}, v{b_+4}, v{b_+5}')
        rest = list(range(b_+6, b_+16))
    else: rest = list(range(b_, b_+16))
    for k in range(0, len(rest), 2):
        t = vT0 if (k >> 1) & 1 == 0 else vT1
        e(f'v_max3_u32 v{t}, v{t}, v{rest[k]}, v{rest[k+1]}')
E(f'v_max_u32 v{vT0}, v{vT0}, v{vT1}', f'v_cmp_eq_u32 vcc, -1, v{vT0}', 's_cbranch_vccz L_tail_go',
  f's_sub_u32 s{sSpin}, s{sSpin}, 1', 's_cbranch_scc0 L_tail_retry')

cm('================ tail: out projections (X: branch A, Y: branch B) ================')
lab('L_tail_go')
stamp(5, 'tail', 'all')
e('s_waitcnt lgkmcnt(0)')
for rt in range(2):
    for s_ in range(8):
        for ct in range(2):
            a_ = oAcc + 32 * rt + 16 * ct
            e(f'v_mfma_f32_32x32x16_bf16 {vr(a_,16)}, {vr(oW+8*s_+4*ct,4)}, {vr(oOf+32*rt+4*s_,4)}, {"0" if s_ == 0 else vr(a_,16)}')
            m_ = 2 * s_ + ct
            if rt == 1 and 10 <= m_ <= 13:
                for q in (2*(m_-10), 2*(m_-10)+1):
                    e(f'ds_write_b128 v{80+q if q else vTp}, {vr(oAcc+4*q,4)}')
e('s_nop 10')
stamp(6, 'tail')
for q in range(8):
    e(f'ds_write_b128 v{80+q if q else vTp}, {vr(oAcc+32+4*q,4)} offset:8192')
E(f's_add_u32 s{sT1}, s{sOutOff}, 65536', 's_waitcnt lgkmcnt(0)', 's_barrier')
stamp(7, 'tail')
for rt in range(2):
    tR = 96 + 32 * rt
    for kq in range(4):
        E(f'ds_read_b128 {vr(tR+8*kq,4)}, v{vTr0} offset:{kq*16384+rt*8192}', f'ds_read_b128 {vr(tR+8*kq+4,4)}, v88 offset:{kq*16384+rt*8192}')
for rt in range(2):
    tR = 96 + 32 * rt
    e(f's_waitcnt lgkmcnt({8 if rt == 0 else 0})')
    for a_, b_ in ((0, 8), (16, 24), (0, 16)):
        for i in range(0, 8, 2): e(f'v_pk_add_f32 {vr(tR+a_+i,2)}, {vr(tR+a_+i,2)}, {vr(tR+b_+i,2)}')
    d = 16 + 4 * rt
    for i in range(4): e(f'v_cvt_pk_bf16_f32 v{d+i}, v{tR+2*i}, v{tR+2*i+1}')
    e(f'buffer_store_dwordx4 {vr(d,4)}, v{vTo}, {sr(S_OUT,4)}, s{sT1 if rt else sOutOff} offen')
if STAMPS:
    stamp(8, 'tail')
    e('s_waitcnt vmcnt(0)')
    stamp(9, 'tail', 'head'); stamp(6, 'all')
    E('s_waitcnt lgkmcnt(0)', 's_nop 1')
    for i in range(12): e(f'v_mov_b32 v{16+i}, s{sST+2*i}')
    E(f's_getreg_b32 s{sT0}, hwreg(HW_REG_XCC_ID)', f'v_mov_b32 v28, s{sT0}', f'v_mov_b32 v29, s{sSpin}', f'v_mov_b32 v30, s{sFB}', 'v_mov_b32 v31, 0',
      f's_lshl_b32 s{sT0}, s2, 3', f's_add_u32 s{sT0}, s{sT0}, s{sW}', f's_lshl_b32 s{sT0}, s{sT0}, 6', f's_add_u32 s{sT0}, s{sT0}, {hex(WS_STAMP)}',
      'v_mov_b32 v0, 0', 's_mov_b64 exec, 1')
    for i in range(4):
        e(f'buffer_store_dwordx4 {vr(16+4*i,4)}, v0, {sr(S_WS,4)}, s{sT0} offen offset:{16*i}')
lab('L_end')
e('s_endpgm')

cm('================ X program (waves 0-3) ================')
VMQ[:] = []; NBAR[0] = 0
xAcc, xFr, xMask = 96, 160, 32
xa, xb, xw = 56, 60, 64
(xFw, xLq, xLv, xLvp, xOne) = (72, 73, 74, 75, 76)
XV, XM, PACE = opt('xv', 2), opt('xm', 0), opt('pace', 2)
e('.p2align 6')
lab('L_X')
srd(S_WQ, 0x80000); srd(S_XA, 0x200000); srd(S_WQKV, 0x180000)
E(f's_or_b32 s{sT1}, s2, s{sW}', 's_cbranch_scc1 L_nonon', 's_waitcnt lgkmcnt(0)',
  f's_or_b32 s{sNon}, s{sNon}, 1', f'v_mov_b32 v{vNon}, s{sNon}', f'v_mov_b32 v{vNon+1}, s{sNon+1}', 's_mov_b64 exec, 1',
  f'global_store_dwordx2 v{vZero}, {vr(vNon,2)}, {sr(S_DBG,2)} sc1', 's_mov_b64 exec, -1')
lab('L_nonon')
E(f'v_and_b32 v{vT3}, 1, v{vG}', f'v_lshlrev_b32 v{vT3}, 2, v{vT3}', f'v_xor_b32 v{vT3}, v{vT3}, v{vT2}', f'v_lshlrev_b32 v{vT3}, 4, v{vT3}',
  f'v_lshl_add_u32 v{vW}, v{vT1}, 10, v{vT3}', f'v_add_u32 v{vW2}, {8192-1024}, v{vW}',
  f'v_mul_u32_u24 v{vWA}, 3072, v{vT1}', f'v_add_u32 v{vWA}, v{vWA}, v{vT3}')
lane_setup()
qx, qw = 32, 40
E(f'v_bfe_u32 v{vXx}, v{vN}, 1, 3', f'v_xor_b32 v{vXx}, v{vXx}, v{vH}', f'v_lshlrev_b32 v{vXx}, 4, v{vXx}',
  f's_and_b32 s{sF0}, s{sW}, 1', f's_lshl_b32 s{sF0}, s{sF0}, 12', f'v_lshl_add_u32 v{qx}, v{vN}, 7, v{vXx}', f'v_add_u32 v{qx}, s{sF0}, v{qx}',
  f'v_xor_b32 v{qx+1}, 32, v{qx}', f'v_xor_b32 v{qx+2}, 64, v{qx}', f'v_xor_b32 v{qx+3}, 96, v{qx}',
  f's_and_b32 s{sF2}, s{sW}, 2', f's_lshl_b32 s{sF2}, s{sF2}, 5', f'v_xor_b32 v{qw}, s{sF2}, v{vWl}', f'v_add_u32 v{qw}, 8192, v{qw}', f'v_add_u32 v{qw+1}, 65536, v{qw}',
  f's_mov_b32 s{sCS}, {f32(CSCALE)}')
for j in range(4): e(f'v_add_u32 v{qx+4+j}, 65536, v{qx+j}')
E(f's_add_u32 s{sXo}, s{sRot}, s{sHG}', f's_and_b32 s{sXo}, s{sXo}, 7', f's_lshl_b32 s{sXo}, s{sXo}, 7', f's_lshl_b32 s{sW2k}, s{sW}, 11',
  f's_lshl_b32 s{sT3}, s{sRB}, 2', f's_add_u32 s{sT0}, s{sT3}, s{sW}', f's_lshl_b32 s{sT0}, s{sT0}, 14', f'v_add_u32 v{vXA}, s{sT0}, v{vP0}', f'v_add_u32 v{vXA2}, s{sT0}, v{vP1}',
  f's_mul_i32 s{sT0}, s{sW}, {16*3072}', f's_add_u32 s{sT0}, s{sT0}, s{sHG128}', f'v_add_u32 v{vWA}, s{sT0}, v{vWA}', f'v_add_u32 v{vWA2}, {8*3072-1024}, v{vWA}')
def w64(srd_, lds_base_sgpr, lds, tag):
    for hf in range(2):
        E(f's_add_u32 m0, s{lds_base_sgpr}, {lds+hf*4096}', f's_add_u32 s{sT1}, s{sT0}, {2*7168}')
        dma(vW, srd_, f's{sT0}', 0, '', tag); dma(vW2, srd_, f's{sT0}', 1024, '', tag)
        dma(vW, srd_, f's{sT1}', 2048, '', tag); dma(vW2, srd_, f's{sT1}', 3072, '', tag)
        if hf == 0: e(f's_add_u32 s{sT0}, s{sT0}, 32768')
def halo_fill():
    E(f's_lshl_b32 s{sT3}, s{sRB}, 16', f's_sub_u32 s{sT2}, s{sT3}, 16384', f's_max_i32 s{sT2}, s{sT2}, 0',
      f's_lshl_b32 s{sT0}, s{sW}, 7', f's_add_u32 s{sT0}, s{sT0}, s{sXo}')
    for j in range(2):
        E(f's_and_b32 s{sT0}, s{sT0}, 1023', f's_add_u32 m0, s{sW2k}, {HALO+j*8192}', f's_add_u32 s{sT1}, s{sT2}, s{sT0}')
        dma(vP0, S_XA, f's{sT1}', 0, '', 'halo'); dma(vP1, S_XA, f's{sT1}', 1024, '', 'halo')
        if j == 0: e(f's_add_u32 s{sT0}, s{sT0}, 512')
def a_fill(c):
    slot = (c % 3) * SLOT
    t = f'A{c}'
    E(f's_add_u32 m0, s{sW2k}, {slot}', f's_mul_i32 s{sWo}, s{sXo}, 1536')
    dma(vXA, S_XA, f's{sXo}', 0, NT, t); dma(vXA2, S_XA, f's{sXo}', 1024, NT, t)
    for ty in range(3):
        E(f's_add_u32 m0, s{sW2k}, {slot+8192+ty*8192}', [f's_add_u32 s{sXo}, s{sXo}, 128', f's_add_u32 s{sWo}, s{sWo}, 1024', f's_add_u32 s{sWo}, s{sWo}, 1024'][ty])
        dma(vWA, S_WQKV, f's{sWo}', 0, '', t); dma(vWA2, S_WQKV, f's{sWo}', 1024, '', t)
    e(f's_and_b32 s{sXo}, s{sXo}, 1023')
def kv_fill(k):
    E(f's_add_u32 m0, s{sW4k}, {R+((k&1)^1)*16384}', f's_and_b32 s{sKVo}, s{sKVo}, 0x1ffff')
    for j in range(4): dma(vL16, S_WS, f's{sKVo}', 1024*j, ' sc1', f'KV{k}')
    e(f's_add_u32 s{sKVo}, s{sKVo}, 16384')
def wo_fill(srd_, half, lds, tag):
    e(f's_add_u32 s{sT0}, s{sWoff}, {half*256*1024}')
    w64(srd_, sW8k, lds, tag)
def masks():
    E(f'v_lshlrev_b32 v{vT0}, 2, v{vH}', f'v_sub_u32 v{vT0}, v{vN}, v{vT0}', f'v_add_u32 v{vT0}, 18, v{vT0}',
      f'v_mov_b32 v{vT2}, 0x5555', f'v_mov_b32 v{vT3}, 0', f'v_lshlrev_b64 {vr(vT2,2)}, v{vT0}, {vr(vT2,2)}',
      f'v_not_b32 v{vT2}, v{vT2}', f'v_not_b32 v{vT3}, v{vT3}', f's_mov_b32 s{sF1}, 0xff800000')
    for r in range(16): E(f'v_bfe_i32 v{xMask+r}, v{vT3}, {8*(r>>2)+(r&3)}, 1', f'v_and_b32 v{xMask+r}, s{sF1}, v{xMask+r}')
    for r in range(8, 16): E(f'v_bfe_i32 v{xMask+8+r}, v{vT2}, {8*(r>>2)+(r&3)}, 1', f'v_and_b32 v{xMask+8+r}, s{sF1}, v{xMask+8+r}')
def local_setup():
    E(f's_add_u32 s{sT0}, s{sW8k}, {SC}', f'v_add_u32 v{xFw}, s{sT0}, v{vL16}', f'v_mov_b32 v{xOne}, 0x3f803f80', f'v_mov_b32 v{xOne+1}, 0x3f803f80',
      f's_lshl_b32 s{sT1}, s{sW}, 10', f's_add_u32 s{sT2}, s{sT1}, {ONES}', f's_add_u32 s{sT1}, s{sT1}, {SC}', f'v_add_u32 v{xLq}, s{sT1}, v{vL16}',
      f'v_and_b32 v{vT0}, 1, v0', f'v_lshlrev_b32 v{vT0}, 5, v{vT0}', f'v_lshl_add_u32 v{vT0}, v{vH}, 3, v{vT0}',
      f'v_lshrrev_b32 v{vT1}, 2, v{vI}', f'v_add_u32 v{vT0}, v{vT0}, v{vT1}', f'v_lshlrev_b32 v{vT0}, 4, v{vT0}', f'v_and_b32 v{vT1}, 2, v0', f'v_lshl_add_u32 v{vT0}, v{vT1}, 2, v{vT0}',
      f'v_add_u32 v{xLv}, s{sT1}, v{vT0}', f'v_mov_b32 v{xLvp}, s{sT2}', f'v_lshl_add_u32 v{vOw}, v0, 3, v{xLvp}',
      f'v_and_b32 v{vT0}, 16, v0', f'v_cmp_ne_u32 vcc, 0, v{vT0}',
      f'v_add_u32 v78, {4*4096}, v{xLv}', f'v_add_u32 v79, {5*4096}, v{xLv}', f'v_add_u32 v80, {7*4096}, v{xLv}',
      f'v_cndmask_b32 v78, v78, v{xLvp}, vcc', f'v_cndmask_b32 v79, v79, v{xLvp}, vcc', f'v_cndmask_b32 v80, v80, v{xLvp}, vcc',
      f's_lshl_b32 s{sT0}, s{sRB}, 6', f's_lshl_b32 s{sT1}, s{sHG}, 2', f's_add_u32 s{sT1}, s{sT1}, s{sW}', f's_add_u32 s{sT0}, s{sT0}, s{sT1}',
      f's_lshl_b32 s{sT0}, s{sT0}, 10', f's_add_u32 s{sOslot}, s{sT0}, {hex(WS_OA)}', f's_add_u32 s{sOslot2}, s{sOslot}, 32768',
      f's_lshl_b32 s{sT0}, s{sRB}, 5', f's_add_u32 s{sT0}, s{sT0}, s{sT1}', f's_lshl_b32 s{sT0}, s{sT0}, 6', f's_add_u32 s{sK1}, s{sT0}, {hex(WS_FOA)}')
    for i in range(4): e(f'v_mov_b32 v{vF0+i}, -1')
def sentinels():
    E(f's_add_u32 s{sT0}, s{sOslot}, {hex(WS_OB-WS_OA)}', f's_add_u32 s{sT1}, s{sT0}, 32768', f'ds_write_b64 v{vOw}, {vr(xOne,2)}')
    e(f'buffer_store_dwordx4 {vr(vF0,4)}, v{vL16}, {sr(S_WS,4)}, s{sT0} offen sc1', 'sent')
    e(f'buffer_store_dwordx4 {vr(vF0,4)}, v{vL16}, {sr(S_WS,4)}, s{sT1} offen sc1', 'sent')
    nonce_load('sent')
def setup_a():
    E(f's_cmp_eq_u32 s{sW}, 3', f's_cselect_b32 s{sT1}, 15, 31', f'v_and_b32 v{vT0}, s{sT1}, v{vN}', f'v_lshl_add_u32 v{xa}, v{vT0}, 7, v{vXx}',
      f's_cselect_b32 s{sT1}, {HALO}, 0', f'v_add_u32 v{xa}, s{sT1}, v{xa}', f's_cselect_b32 s{sT1}, 0, 4096', f'v_add_u32 v{xb}, s{sT1}, v{xa}',
      f's_cselect_b32 s{sStepA}, 1, 16', f's_cselect_b32 s{sStepB}, 1, -32', f's_cselect_b32 s{sT1}, 1, s{sW}', f's_cselect_b32 s{sT2}, 2, s{sW}',
      f's_lshl_b32 s{sStepA}, s{sStepA}, 11', f's_lshl_b32 s{sStepB}, s{sStepB}, 11',
      f's_lshl_b32 s{sT1}, s{sT1}, 13', f's_add_u32 s{sT1}, s{sT1}, 8192', f'v_add_u32 v{xw}, s{sT1}, v{vWl}', f'v_xor_b32 v{xw+1}, 64, v{xw}',
      f's_lshl_b32 s{sT2}, s{sT2}, 13', f's_add_u32 s{sT2}, s{sT2}, 8192', f'v_add_u32 v{xw+2}, s{sT2}, v{vWl}', f'v_xor_b32 v{xw+3}, 64, v{xw+2}')
    for j in range(4): e(f'v_add_u32 v{xw+4+j}, 65536, v{xw+j}')
    for s_ in range(1, 4): E(f'v_xor_b32 v{xa+s_}, {32*s_}, v{xa}', f'v_xor_b32 v{xb+s_}, {32*s_}, v{xb}')
def setup_b():
    E(f's_lshr_b32 s{sT1}, s{sRB}, 2', f's_lshl_b32 s{sKVo}, s{sT1}, 14', f's_add_u32 s{sKVo}, s{sKVo}, s{sW4k}', f's_add_u32 s{sKVo}, s{sKVo}, 16384',
      f'v_lshlrev_b32 v{vPa}, 6, v0', f'v_add_u32 v{vPa}, {hex(WS_FKV)}, v{vPa}',
      f'v_lshlrev_b32 v{vPa2}, 6, v{vN}', f's_lshl_b32 s{sT2}, s{sRB}, 11', f's_add_u32 s{sT2}, s{sT2}, {hex(WS_FOA)}', f'v_add_u32 v{vPa2}, s{sT2}, v{vPa2}',
      f's_mov_b32 s{sVM}, 4096', f's_mov_b32 s{sVM+1}, 8192', f's_mov_b32 s{sC}, 12288',
      f's_lshl_b32 s{sW8k}, s{sW}, 13', f's_lshl_b32 s{sWoff}, s{sW}, 16', f's_add_u32 s{sWoff}, s{sWoff}, s{sHG128}')
    srd(S_WOA, 0x80000); srd(S_WOB, 0x80000)
setup_b()
E(f's_add_u32 s{sT0}, s{sW}, s{sRot}', f's_lshl_b32 s{sT0}, s{sT0}, 16', f's_add_u32 s{sT0}, s{sT0}, s{sHG128}', f's_lshl_b32 s{sT2}, s{sW}, 14',
  f's_and_b32 s{sT0}, s{sT0}, 0x7ffff', 's_waitcnt lgkmcnt(0)', 's_barrier')
w64(S_WQ, sT2, 8192, 'B')
E(f's_add_u32 s{sT0}, s{sT0}, {4*65536-32768}', f's_and_b32 s{sT0}, s{sT0}, 0x7ffff')
w64(S_WQ, sT2, 65536+8192, 'B')
stamp(1, 'head')
setup_a(); local_setup(); tail_setup()
E('s_waitcnt vmcnt(0)', 's_barrier')
stamp(5, 'head'); stamp(1, 'all', 'x')
def qrd(u):
    sc, st = u >> 2, u & 3
    x = vFr + 8 * (u % 8)
    hi = sc >> 2
    o = (sc & 3) * 16384
    E(f'ds_read_b128 {vr(x,4)}, v{qx+4*hi+st} offset:{o}',
      f'ds_read_b64_tr_b16 {vr(x+4,2)}, v{qw+hi} offset:{o+st*2048}', f'ds_read_b64_tr_b16 {vr(x+6,2)}, v{qw+hi} offset:{o+st*2048+512}')
for u in range(5): qrd(u)
for u in range(32):
    x = vFr + 8 * (u % 8)
    issued = min(32, 5 + u)
    e(f's_waitcnt lgkmcnt({3*(issued-u-1)})')
    e(f'v_mfma_f32_32x32x16_bf16 {vr(vQacc,16)}, {vr(x+4,4)}, {vr(x,4)}, {"0" if u == 0 else vr(vQacc,16)}')
    if 5 + u < 32: qrd(5 + u)
e('s_nop 11')
stamp(6, 'head')
for j in range(16): e(f'v_mul_f32 v{vQacc+j}, s{sCS}, v{vQacc+j}')
for j in range(8): e(f'v_cvt_pk_bf16_f32 v{vQacc+j}, v{vQacc+2*j}, v{vQacc+2*j+1}')
E(f'ds_write_b128 v{vQx}, {vr(vQacc,4)}', f'ds_write_b128 v{vQx}, {vr(vQacc+4,4)} offset:1024',
  f's_setprio {XV}', 's_waitcnt lgkmcnt(0)')
stamp(7, 'head'); stamp(2, 'all', 'x')
e('s_barrier')
stamp(8, 'head'); stamp(3, 'all', 'x')

def a_chunk(c):
    sl = c % 3
    base = sl * SLOT if sl < 2 else 0
    W = xw + (4 if sl == 2 else 0)
    def rd(s, half):
        x = xFr + 24 * (s % 3) + 12 * half
        a = (xb if half else xa) + s
        w0, w1 = W + 2 * half, W + 2 * half + 1
        return [f'ds_read_b128 {vr(x,4)}, v{a}',
                f'ds_read_b64_tr_b16 {vr(x+4,2)}, v{w0} offset:{base+s*2048}', f'ds_read_b64_tr_b16 {vr(x+6,2)}, v{w0} offset:{base+s*2048+512}',
                f'ds_read_b64_tr_b16 {vr(x+8,2)}, v{w1} offset:{base+s*2048}', f'ds_read_b64_tr_b16 {vr(x+10,2)}, v{w1} offset:{base+s*2048+512}']
    def mm(s, half, j):
        x = xFr + 24 * (s % 3) + 12 * half
        a = xAcc + 16 * (2 * half + j)
        return f'v_mfma_f32_32x32x16_bf16 {vr(a,16)}, {vr(x+4+4*j,4)}, {vr(x,4)}, {"0" if (c == 0 and s == 0) else vr(a,16)}'
    if XM != XV: e(f's_setprio {XM}')
    groups = [(s, h) for s in range(4) for h in range(2)]
    if PACE == 0:
        E(*rd(0,0), *rd(0,1), *rd(1,0))
        for g, (s, h) in enumerate(groups):
            ahead = min(len(groups), g + 3) - g - 1
            e(f's_waitcnt lgkmcnt({5*ahead})')
            E(mm(s,h,0), mm(s,h,1))
            if g + 3 < len(groups): E(*rd(*groups[g+3]))
    else:
        seq = []
        for (s, h) in groups:
            r = rd(s, h)
            seq.append((r[:3], mm(s,h,0))); seq.append((r[3:], mm(s,h,1)))
        E(*seq[0][0])
        for k_, (r, m) in enumerate(seq):
            if k_ + 1 < len(seq):
                E(*seq[k_+1][0]); e(f's_waitcnt lgkmcnt({len(seq[k_+1][0])})')
            else: e('s_waitcnt lgkmcnt(0)')
            e(m)
    if XM != XV: e(f's_setprio {XV}')
    if c < 7:
        st = sStepB if sl == 2 else sStepA
        for j in range(8): e(f'v_add_u32 v{xa+j}, s{st}, v{xa+j}')
def write_frags():
    e('s_nop 4')
    for blk in range(2):
        for hd in range(4):
            a = xAcc + 32 * blk + 8 * hd
            for i in range(4): e(f'v_cvt_pk_bf16_f32 v{a+i}, v{a+2*i}, v{a+2*i+1}')
            e(f'ds_write_b128 v{xFw}, {vr(a,4)} offset:{blk*4096+hd*1024}')
def local_task(t):
    lq, lk, lp, lv = xFr, xFr+4, xFr+8, xFr+12
    lS, lP, lO = xAcc, xAcc+16, xAcc+32
    kp = 6 if t == 0 else 2
    vc, vp = (78, 80) if t == 0 else (79, 78)
    E(f'ds_read_b128 {vr(lq,4)}, v{xLq} offset:{t*4096}', f'ds_read_b128 {vr(lk,4)}, v{xLq} offset:{(2+t)*4096}', f'ds_read_b128 {vr(lp,4)}, v{xLq} offset:{kp*4096}',
      f'ds_read_b64_tr_b16 {vr(lv,2)}, v{vc}', f'ds_read_b64_tr_b16 {vr(lv+2,2)}, v{vc} offset:64',
      f'ds_read_b64_tr_b16 {vr(lv+4,2)}, v{vc} offset:256', f'ds_read_b64_tr_b16 {vr(lv+6,2)}, v{vc} offset:320',
      f'ds_read_b64_tr_b16 {vr(lv+8,2)}, v{vp} offset:256', f'ds_read_b64_tr_b16 {vr(lv+10,2)}, v{vp} offset:320')
    if t == 0:
        E(f's_cmp_lg_u32 s{sRB}, 0', 's_cbranch_scc1 L_m0')
        for r in range(8): e(f'v_mov_b32 v{xMask+16+r}, 0xff800000')
        lab('L_m0')
    E('s_waitcnt lgkmcnt(6)', 's_nop 0',
      f'v_mfma_f32_32x32x16_bf16 {vr(lS,16)}, {vr(lk,4)}, {vr(lq,4)}, {vr(xMask,16)}',
      f'v_mfma_f32_32x32x16_bf16 {vr(lP,16)}, {vr(lp,4)}, {vr(lq,4)}, {vr(xMask+8,16)}')
    for i in range(16): e(f'v_mov_b32 v{lO+i}, 0')
    regs = [lS+i for i in range(16)] + [lP+8+i for i in range(8)]
    maxtree(regs, vT0, vT1)
    E('s_nop 1', f'v_permlane32_swap_b32 v{vT0}, v{vT1}', f'v_max_f32 v{vT0}, v{vT0}, v{vT1}', f'v_mul_f32 v{vT0}, {f32(-CSCALE)}, v{vT0}')
    for k in range(24): e(f'v_fma_f32 v{regs[k]}, v{regs[k]}, s{sCS}, v{vT0}')
    e('s_waitcnt lgkmcnt(0)')
    for k in range(24):
        e(f'v_exp_f32 v{regs[k]}, v{regs[k]}')
        if k == 9: e(f'v_smfmac_f32_32x32x32_bf16 {vr(lO,16)}, {vr(lv,4)}, {vr(lS,8)}, v{vIdx}')
        if k == 17: e(f'v_smfmac_f32_32x32x32_bf16 {vr(lO,16)}, {vr(lv+4,4)}, {vr(lS+8,8)}, v{vIdx}')
    E('s_nop 1', f'v_smfmac_f32_32x32x32_bf16 {vr(lO,16)}, {vr(lv+8,4)}, {vr(lP+8,8)}, v{vIdx}', 's_nop 11',
      f'v_rcp_f32 v{vT1}, v{lO+8}', 's_nop 0')
    for i in range(8): e(f'v_mul_f32 v{lO+i}, v{lO+i}, v{vT1}')
    d = xAcc + 48 + 4 * t
    for i in range(4): e(f'v_cvt_pk_bf16_f32 v{d+i}, v{lO+2*i}, v{lO+2*i+1}')
    e(f'buffer_store_dwordx4 {vr(d,4)}, v{vL16}, {sr(S_WS,4)}, s{sOslot2 if t else sOslot} offen sc1', 'oa')

SH4 = ['0', f's{sVM}', f's{sVM+1}', f's{sC}']; RG4 = [82, 84, 86, 88]
for n in range(16):
    cm(f'X interval {n}')
    if n in (1, 2, 4, 10, 12, 14): stamp({1: 4, 2: 5, 4: 6, 10: 7, 12: 8, 14: 9}[n], 'x')
    if STAMPS and STMODE == 'xc' and n in (4, 8, 10, 12, 14, 15):
        i_ = (4, 8, 10, 12, 14, 15).index(n)
        E(f's_memrealtime {sr(sST+4*i_,2)}', f's_memtime {sr(sST+4*i_+2,2)}')
    waits = []
    k = n // 2
    if n == 0:
        E(f's_cmp_lg_u32 s{sW}, 0', 's_cbranch_scc1 L_np2')
        poll_issue(vPa, SH4, RG4)
        lab('L_np2')
        halo_fill(); a_fill(0)
        masks()
    if n == 1: kv_fill(1); a_fill(1)
    if n % 2 == 0 and 1 <= k <= 6: kv_fill(k + 1)
    if 2 <= n <= 7: a_fill(n)
    if n == 8: sentinels()
    if n == 9: wo_fill(S_WOA, 0, 0, 'woA')
    if 2 <= n <= 9: a_chunk(n - 2)
    if 1 <= n <= 8: waits.append(f'A{n-1}')
    if n == 9: write_frags()
    if n == 10:
        wo_fill(S_WOA, 1, SLOT, 'woA')
        local_task(1)
    if n == 11: local_task(0)
    if n == 12:
        flag_store('oa', f's{sK1}', f's_waitcnt vmcnt({vmn("oa")})')
        VMQ.append('fl')
        wo_fill(S_WOB, 0, 2*SLOT, 'woB')
    if n == 13:
        E(f's_cmp_lg_u32 s{sW}, 0', 's_cbranch_scc1 L_np3')
        poll_issue(vPa2, ['0'], [vFl])
        lab('L_np3')
        wo_fill(S_WOB, 1, 3*SLOT, 'woB')
        w_reads()
    if n == 14: o_loads('oal')
    if n % 2 == 1 and k + 1 <= 7: waits.append(f'KV{k+1}')
    if n == 15: waits.append('woB')
    if waits: e(f's_waitcnt vmcnt({min(vmn(t) for t in waits)}) lgkmcnt(0)')
    else: e('s_waitcnt lgkmcnt(0)')
    if n == 0:
        E(f's_cmp_lg_u32 s{sW}, 0', 's_cbranch_scc1 L_nochk_kv2')
        poll_check('kv2', vPa, SH4, RG4, 12)
    if n == 13:
        E(f's_cmp_lg_u32 s{sW}, 0', 's_cbranch_scc1 L_nochk_oa')
        poll_check('oa', vPa2, ['0'], [vFl], 8)
    e('s_barrier')
assert NBAR[0] == NBAR_Y, (NBAR[0], NBAR_Y)
E('s_setprio 0', 's_waitcnt vmcnt(0)', 's_barrier', 's_branch L_tail_go')

cm('---- fallback (Y waves): true max, K/V from global ----')
lab('L_fallback')
E(f's_mov_b32 s{sFB}, 1', f'v_mov_b32 v{vT0}, 0xff800000', f'v_mov_b32 v{vT2}, 0xff800000', f's_mov_b32 s{sT2}, 0')
lab('L_fb_max')
E(f'buffer_load_dwordx4 {vr(aK,4)}, v{vL16}, {sr(S_WS,4)}, s{sT2} offen sc1', 's_waitcnt vmcnt(0)',
  f'v_mfma_f32_32x32x16_bf16 {vr(aSa,16)}, {vr(aK,4)}, {vr(vQa,4)}, 0', f'v_mfma_f32_32x32x16_bf16 {vr(aSb,16)}, {vr(aK,4)}, {vr(vQb,4)}, 0', 's_nop 15')
for k in range(0, 16, 2): e(f'v_max3_f32 v{vT0}, v{vT0}, v{aSa+k}, v{aSa+k+1}')
for k in range(0, 16, 2): e(f'v_max3_f32 v{vT2}, v{vT2}, v{aSb+k}, v{aSb+k+1}')
E(f's_add_u32 s{sT2}, s{sT2}, 2048', f's_cmp_lt_u32 s{sT2}, {64*2048}', 's_cbranch_scc1 L_fb_max',
  f'v_mov_b32 v{vT1}, v{vT0}', f'v_mov_b32 v{vT3}, v{vT2}', 's_nop 1',
  f'v_permlane32_swap_b32 v{vT0}, v{vT1}', f'v_permlane32_swap_b32 v{vT2}, v{vT3}', f'v_max_f32 v{vT0}, v{vT0}, v{vT1}', f'v_max_f32 v{vT2}, v{vT2}, v{vT3}')
for i in range(16): e(f'v_sub_f32 v{aCa+i}, 0, v{vT0}')
for i in range(16): e(f'v_sub_f32 v{aCb+i}, 0, v{vT2}')
for i in range(32): e(f'v_mov_b32 v{aOa+i}, 0')
E(f'v_lshlrev_b32 v{vT2}, 4, v{vI}', f'v_lshl_add_u32 v{vT2}, v{vH}, 8, v{vT2}', f's_mov_b32 s{sT2}, 0')
lab('L_fb_pv')
E(f'buffer_load_dwordx4 {vr(aK,4)}, v{vL16}, {sr(S_WS,4)}, s{sT2} offen sc1', f's_mov_b64 exec, {sr(sVM,2)}',
  f'buffer_load_dwordx4 {vr(aV,4)}, v{vT2}, {sr(S_WS,4)}, s{sT2} offen offset:1024 sc1',
  f'buffer_load_dwordx4 {vr(aV+4,4)}, v{vT2}, {sr(S_WS,4)}, s{sT2} offen offset:1536 sc1', 's_mov_b64 exec, -1', 's_waitcnt vmcnt(0)',
  f'v_mfma_f32_32x32x16_bf16 {vr(aSa,16)}, {vr(aK,4)}, {vr(vQa,4)}, {vr(aCa,16)}',
  f'v_mfma_f32_32x32x16_bf16 {vr(aSb,16)}, {vr(aK,4)}, {vr(vQb,4)}, {vr(aCb,16)}', 's_nop 15')
for i in range(32): e(f'v_exp_f32 v{aSa+i}, v{aSa+i}')
E('s_nop 1',
  f'v_smfmac_f32_32x32x32_bf16 {vr(aOa,16)}, {vr(aV,4)}, {vr(aSa,8)}, v{vIdx}', f'v_smfmac_f32_32x32x32_bf16 {vr(aOa,16)}, {vr(aV+4,4)}, {vr(aSa+8,8)}, v{vIdx}',
  f'v_smfmac_f32_32x32x32_bf16 {vr(aOb,16)}, {vr(aV,4)}, {vr(aSb,8)}, v{vIdx}', f'v_smfmac_f32_32x32x32_bf16 {vr(aOb,16)}, {vr(aV+4,4)}, {vr(aSb+8,8)}, v{vIdx}',
  f's_add_u32 s{sT2}, s{sT2}, 2048', f's_cmp_lt_u32 s{sT2}, {64*2048}', 's_cbranch_scc1 L_fb_pv', 's_nop 15', 's_branch L_att_ok')
lab('L_code_end')

HDR = open(f'cdna_kernels/{NAME}.s.ref').read().split('\n')
hdr = []
for line in HDR:
    if line.startswith('; @launch'): break
    hdr.append(line)
txt = '\n'.join(hdr) + '\n; @launch grid=(256,1,1) block=(512,1,1) lds=163840\n'
txt += f'''.amdgcn_target "amdgcn-amd-amdhsa--gfx950"
.text
.globl {NAME}_kernel
.p2align 8
.type {NAME}_kernel,@function
'''
txt += '\n'.join(L) + '\n'
txt += f'''.section .rodata,"a"
.p2align 6
.amdhsa_kernel {NAME}_kernel
  .amdhsa_next_free_vgpr {NVGPR}
  .amdhsa_next_free_sgpr 102
  .amdhsa_accum_offset {NVGPR}
  .amdhsa_group_segment_fixed_size 0
  .amdhsa_kernarg_size 88
  .amdhsa_user_sgpr_count 2
  .amdhsa_user_sgpr_kernarg_segment_ptr 1
  .amdhsa_system_sgpr_workgroup_id_x 1
.end_amdhsa_kernel
'''
open(OUT, 'w').write(txt)
print('wrote', OUT, len(L), 'lines; barriers', NBAR_Y)
```

```python
import sys, struct

NAME = 'concat_heads__sliding_local_dilated__grouped_kv_mqa__prompt'
STAMPS = '--stamps' in sys.argv
STMODE = ([a[5:] for a in sys.argv if a.startswith('--st=')] + ['all'])[0]
XP = [a[4:] for a in sys.argv if a.startswith('--x=')]
args = [a for a in sys.argv[1:] if not a.startswith('--')]
OUT = args[0] if args else f'cdna_kernels/{NAME}.s'
def opt(name, default):
    for a in XP:
        if a.startswith(name): return type(default)(a[len(name):])
    return default

L = []
VMQ = []
NBAR = [0]
def e(s, tag=None):
    if tag is not None: VMQ.append(tag)
    if s == 's_barrier': NBAR[0] += 1
    L.append('    ' + s.strip())
def lab(s): L.append(s + ':')
def cm(s): L.append('    ; ' + s)
def vr(i, n): return f'v[{i}:{i+n-1}]'
def sr(i, n): return f's[{i}:{i+n-1}]'
def f32(x): return '0x%08x' % struct.unpack('<I', struct.pack('<f', x))[0]
def vmn(tag):
    idx = max(i for i, t in enumerate(VMQ) if t == tag)
    n = len(VMQ) - 1 - idx
    assert n <= 63
    return n
def E(*lines):
    for s in lines: e(s)

SLOT = 32768
R = 131072
HALO = 3 * SLOT
ONES = 3 * SLOT + 16384
SC = 2 * SLOT
WS_FKV = 0x40000
WS_FOA = 0x48000
WS_OA = 0x100000
WS_OB = 0x300000
WS_STAMP = 0x500000
WS_SIZE = 0x600000
CSCALE = 0.25 * 1.4426950408889634
MOFF = 40.0
SPIN = 200000
NT = '' if 'nont' in XP else ' nt'

S_XA, S_WQKV, S_WOA, S_XB, S_WQ, S_WKV, S_WOB, S_OUT, S_WS = 8, 12, 16, 20, 24, 28, 32, 36, 40
S_DBG = 44
S_WV = 46
sP = 46
sW = 48
sRB, sHG = 49, 50
sT0, sT1, sT2, sT3 = 51, 52, 53, 54
sC = 55
sStepA, sStepB = 56, 57
sXo, sWo = 58, 59
sKVo = 60
sW4k, sW8k, sW2k = 61, 62, 63
sVM = 64
sOoff, sOutOff, sWoff, sSpin = 66, 67, 68, 69
sOslot, sOslot2 = 70, 71
sFB, sHG128, sCS, sQ = 72, 73, 74, 75
sRot, sK1 = 4, 5
sF0, sF1, sF2 = 3, 6, 7
sST = 76
sNon = 100

vL16, vW, vWA, vXA = 1, 2, 3, 4
vN, vH, vI = 5, 6, 7
vT0, vT1, vT2, vT3 = 8, 9, 10, 11
vP0, vP1, vXx, vG = 12, 13, 14, 15
vQacc = 16
vFr = 96
(vB0, vB1, vBW, vWl, vIdx, vPa, vQx, vW2, vTw0, vTw1, vTp, vTr0, vTo, vPa2, vZero, vOw,
 vF0, vF1, vF2, vF3, vWA2, vXA2) = range(232, 254)
vNon, vFl = 90, 92
NVGPR = 256

def stamp(i, *modes):
    if STAMPS and STMODE in modes: e(f's_memrealtime {sr(sST+2*i,2)}')
def cstamp(i):
    if STAMPS and STMODE != 'xc': e(f's_memtime {sr(sST+2*i,2)}')
def dma(voff, srd_, soff, off=0, fl='', tag='x'):
    o = f' offset:{off}' if off else ''
    e(f'buffer_load_dwordx4 v{voff}, {sr(srd_,4)}, {soff} offen{o}{fl} lds', tag)
def srd(reg, size): E(f's_mov_b32 s{reg+2}, {hex(size)}', f's_mov_b32 s{reg+3}, 0x20000')
def nonce_load(tag=None): e(f'global_load_dwordx2 {vr(vNon,2)}, v{vZero}, {sr(S_DBG,2)} sc1', tag)
def poll_issue(vaddr, soffs, regs):
    nonce_load()
    for so, r in zip(soffs, regs):
        e(f'buffer_load_dwordx2 {vr(r,2)}, v{vaddr}, {sr(S_WS,4)}, {so} offen sc1')
def poll_check(tag, vaddr, soffs, regs, issued):
    e(f's_mov_b32 s{sSpin}, {SPIN}')
    if issued is not None: E(f's_waitcnt vmcnt({issued})', f's_branch L_chk_{tag}')
    lab(f'L_rep_{tag}')
    poll_issue(vaddr, soffs, regs)
    e('s_waitcnt vmcnt(0)')
    lab(f'L_chk_{tag}')
    e(f'v_cmp_eq_u32 vcc, 0, v{vNon}')
    for r in regs:
        E(f'v_cmp_ne_u64 {sr(sP,2)}, {vr(vNon,2)}, {vr(r,2)}', 's_nop 1', f's_or_b64 vcc, vcc, {sr(sP,2)}')
    E(f's_cbranch_scc0 L_nochk_{tag}', f's_sub_u32 s{sSpin}, s{sSpin}, 1', f's_cbranch_scc0 L_rep_{tag}')
    lab(f'L_nochk_{tag}')
def flag_store(tag, soff, first_wait='s_waitcnt vmcnt(0)'):
    e(f's_mov_b32 s{sSpin}, {SPIN}')
    e(first_wait)
    lab(f'L_fw_{tag}')
    E(f'v_cmp_eq_u32 vcc, 0, v{vNon}', f's_cbranch_vccz L_fs_{tag}')
    nonce_load()
    E('s_waitcnt vmcnt(0)', f's_sub_u32 s{sSpin}, s{sSpin}, 1', f's_cbranch_scc0 L_fw_{tag}')
    lab(f'L_fs_{tag}')
    E('s_mov_b64 exec, 1', f'buffer_store_dwordx2 {vr(vNon,2)}, v{vZero}, {sr(S_WS,4)}, {soff} offen sc1', 's_mov_b64 exec, -1')
def maxtree(rs, t0, t1):
    e(f'v_max3_f32 v{t0}, v{rs[0]}, v{rs[1]}, v{rs[2]}')
    e(f'v_max3_f32 v{t1}, v{rs[3]}, v{rs[4]}, v{rs[5]}')
    for k in range(6, len(rs), 4):
        e(f'v_max3_f32 v{t0}, v{t0}, v{rs[k]}, v{rs[k+1]}')
        if k + 3 < len(rs): e(f'v_max3_f32 v{t1}, v{t1}, v{rs[k+2]}, v{rs[k+3]}')
    e(f'v_max_f32 v{t0}, v{t0}, v{t1}')
    e(f'v_mov_b32 v{t1}, v{t0}')
def lane_setup():
    E(f'v_and_b32 v{vN}, 31, v0', f'v_lshrrev_b32 v{vH}, 5, v0', f'v_and_b32 v{vI}, 15, v0',
      f'v_lshrrev_b32 v{vWl}, 2, v{vI}', f'v_lshl_add_u32 v{vWl}, v{vH}, 3, v{vWl}', f'v_lshlrev_b32 v{vWl}, 7, v{vWl}',
      f'v_and_b32 v{vF0}, 8, v{vI}', f'v_lshl_add_u32 v{vWl}, v{vF0}, 3, v{vWl}', f'v_and_b32 v{vF0}, 16, v0',
      f'v_lshl_add_u32 v{vWl}, v{vF0}, 1, v{vWl}', f'v_and_b32 v{vF0}, 3, v0', f'v_lshl_add_u32 v{vWl}, v{vF0}, 3, v{vWl}',
      f's_lshl_b32 s{sW4k}, s{sQ}, 12', f's_add_u32 s{sF0}, s{sW4k}, {R}', f'v_add_u32 v{vQx}, s{sF0}, v{vL16}',
      f'v_mov_b32 v{vIdx}, 0xdddddddd', f's_mov_b32 s{sFB}, 0')
oOf, oW, oAcc = 16, 96, 160
def tail_setup():
    E(f's_mov_b32 s{S_OUT+2}, 0x400000', f's_mov_b32 s{S_OUT+3}, 0x20000',
      f's_lshr_b32 s{sF2}, s{sW}, 2', f's_lshl_b32 s{sF1}, s{sW}, 14',
      f'v_lshlrev_b32 v{vT0}, 9, v{vH}', f'v_sub_u32 v{vTw0}, v{vWl}, v{vT0}', f'v_add_u32 v{vTw0}, s{sF1}, v{vTw0}', f'v_xor_b32 v{vTw1}, 64, v{vTw0}',
      f'v_xor_b32 v{vT0}, v{vH}, v{vI}', f'v_lshlrev_b32 v{vT0}, 4, v{vT0}', f'v_lshl_add_u32 v{vT0}, v{vN}, 8, v{vT0}', f'v_add_u32 v{vTp}, s{sF1}, v{vT0}',
      f'v_lshrrev_b32 v{vT0}, 3, v0', f's_lshl_b32 s{sF1}, s{sQ}, 3', f'v_add_u32 v{vT0}, s{sF1}, v{vT0}', f'v_and_b32 v{vT1}, 7, v0', f'v_lshlrev_b32 v{vT2}, 1, v{vT1}',
      f'v_and_b32 v{vT3}, 15, v{vT0}', f'v_xor_b32 v{vT2}, v{vT2}, v{vT3}', f'v_lshlrev_b32 v{vT2}, 4, v{vT2}', f'v_lshl_add_u32 v{vT2}, v{vT0}, 8, v{vT2}',
      f's_lshl_b32 s{sF1}, s{sF2}, 16', f'v_add_u32 v{vTr0}, s{sF1}, v{vT2}',
      f'v_lshlrev_b32 v{vT1}, 4, v{vT1}', f'v_lshl_add_u32 v{vTo}, v{vT0}, 11, v{vT1}',
      f's_lshl_b32 s{sOutOff}, s{sRB}, 17', f's_lshl_b32 s{sF1}, s{sF2}, 10', f's_add_u32 s{sOutOff}, s{sOutOff}, s{sF1}', f's_add_u32 s{sOutOff}, s{sOutOff}, s{sHG128}',
      f's_lshl_b32 s{sOoff}, s{sRB}, 16', f's_lshl_b32 s{sF1}, s{sQ}, 13', f's_add_u32 s{sOoff}, s{sOoff}, s{sF1}',
      f's_lshl_b32 s{sF1}, s{sF2}, 21', f's_add_u32 s{sOoff}, s{sOoff}, s{sF1}', f's_add_u32 s{sOoff}, s{sOoff}, {hex(WS_OA)}')
assert WS_OB - WS_OA == 1 << 21
def w_reads():
    for s in range(8):
        x = oW + 8 * s
        E(f'ds_read_b64_tr_b16 {vr(x,2)}, v{vTw0} offset:{s*2048}', f'ds_read_b64_tr_b16 {vr(x+2,2)}, v{vTw0} offset:{s*2048+1024}',
          f'ds_read_b64_tr_b16 {vr(x+4,2)}, v{vTw1} offset:{s*2048}', f'ds_read_b64_tr_b16 {vr(x+6,2)}, v{vTw1} offset:{s*2048+1024}')
    for q in range(1, 8): e(f'v_xor_b32 v{80+q}, {(2*q)<<4}, v{vTp}')
    e(f'v_xor_b32 v88, 16, v{vTr0}')
def o_loads(tag=None):
    E(f's_add_u32 s{sT1}, s{sOoff}, 4096', f's_add_u32 s{sT2}, s{sOoff}, 32768', f's_add_u32 s{sT3}, s{sOoff}, {32768+4096}')
    for g, so in enumerate((sOoff, sT1, sT2, sT3)):
        for j in range(4):
            o = f' offset:{j*1024}' if j else ''
            e(f'buffer_load_dwordx4 {vr(oOf+16*g+4*j,4)}, v{vL16}, {sr(S_WS,4)}, s{so} offen{o} sc1', tag)

lab(f'{NAME}_kernel')
if STAMPS:
    for i in range(12): e(f's_mov_b32 s{sST+2*i}, 0')
stamp(0, 'all', 'head', 'tail', 'x')
for reg, off in ((S_XB,24),(S_WKV,40),(S_WV,48),(S_WQ,32),(S_DBG,72),(S_WS,80),(S_XA,0),(S_WQKV,8),(S_WOA,16),(S_WOB,56),(S_OUT,64)):
    e(f's_load_dwordx2 {sr(reg,2)}, s[0:1], {off}')
e(f's_memrealtime {sr(sNon,2)}')
E('s_cmp_ge_u32 s2, 256', 's_cbranch_scc1 L_end',
  f'v_lshrrev_b32 v{vT0}, 6, v0', 'v_and_b32 v0, 63, v0', f'v_readfirstlane_b32 s{sW}, v{vT0}',
  f's_and_b32 s{sT0}, s2, 7', f's_bfe_u32 s{sRot}, s2, 0x20003', f's_lshl_b32 s{sRB}, s{sT0}, 2',
  f's_add_u32 s{sRB}, s{sRB}, s{sRot}', f's_lshr_b32 s{sHG}, s2, 5',
  f'v_lshlrev_b32 v{vL16}, 4, v0', f'v_lshrrev_b32 v{vG}, 4, v0', f'v_lshrrev_b32 v{vT1}, 3, v0', f'v_and_b32 v{vT2}, 7, v0',
  f'v_xor_b32 v{vT3}, v{vT2}, v{vG}', f'v_lshlrev_b32 v{vT3}, 4, v{vT3}', f'v_lshl_add_u32 v{vP0}, v{vT1}, 10, v{vT3}',
  f'v_xor_b32 v{vP1}, 64, v{vP0}', f'v_add_u32 v{vP1}, {8192-1024}, v{vP1}', f'v_mov_b32 v{vZero}, 0',
  f's_xor_b32 s{sW}, s{sW}, 7', f's_lshl_b32 s{sRot}, s{sRot}, 1', f's_lshl_b32 s{sHG128}, s{sHG}, 7', f's_and_b32 s{sQ}, s{sW}, 3')
srd(S_WS, WS_SIZE)
E(f's_cmp_lt_u32 s{sW}, 4', 's_cbranch_scc1 L_X')

cm('================ Y program (waves 4-7) ================')
aSa, aSb, aCa, aCb, aOa, aOb = 96, 112, 128, 144, 160, 176
aK, aV = 192, 56
vQa, vQb = 208, 212
vKa, vVa = 216, 217
srd(S_XB, 0x200000); srd(S_WKV, 0x4000)
vD0, vD1 = 218, 219
E(f's_lshr_b32 s{sT1}, s{sHG}, 1', f's_add_u32 s{sT1}, s{sT1}, s{sW}', f's_add_u32 s{sT1}, s{sT1}, 1', f's_and_b32 s{sT1}, s{sT1}, 3',
  f's_lshl_b32 s{sT2}, s{sT1}, 11',
  f's_lshl_b32 s{sT3}, s{sRB}, 2', f's_add_u32 s{sT3}, s{sT3}, s{sT1}', f's_lshl_b32 s{sT3}, s{sT3}, 14',
  f'v_add_u32 v{vD0}, s{sT3}, v{vP0}', f'v_add_u32 v{vD1}, s{sT3}, v{vP1}',
  f's_lshl_b32 s{sXo}, s{sRot}, 7',
  f's_cmp_lg_u32 s{sW}, 7', 's_cbranch_scc1 L_Yset')
def x_sub(s, tag):
    E(f's_add_u32 m0, s{sT2}, {s*16384}', f's_and_b32 s{sXo}, s{sXo}, 1023')
    dma(vD0, S_XB, f's{sXo}', 0, NT, tag); dma(vD1, S_XB, f's{sXo}', 1024, NT, tag)
E(f's_bitcmp1_b32 s{sHG}, 0', 's_waitcnt lgkmcnt(0)',
  f's_cselect_b32 s{S_WKV}, s{S_WV}, s{S_WKV}', f's_cselect_b32 s{S_WKV+1}, s{S_WV+1}, s{S_WKV+1}')
for s_ in range(8):
    x_sub(s_, None)
    E(f's_mov_b32 m0, {R+s_*2048}', f's_lshl_b32 s{sWo}, s{sXo}, 4')
    dma(vL16, S_WKV, f's{sWo}', 0, '', None); dma(vL16, S_WKV, f's{sWo}', 1024, '', None)
    if s_ < 7: e(f's_add_u32 s{sXo}, s{sXo}, 128')
e('s_barrier'); NBAR[0] -= 1
stamp(1, 'head')
lab('L_Yset')
lane_setup()
tail_setup()
E(f's_mov_b32 s{sVM}, 0xffff', f's_mov_b32 s{sVM+1}, 0xffff',
  f's_and_b32 s{sT0}, s{sRB}, 28', f's_add_u32 s{sT0}, s{sT0}, s{sQ}', f's_lshl_b32 s{sKVo}, s{sT0}, 12',
  f's_lshl_b32 s{sT0}, s{sT0}, 9', f's_add_u32 s{sT0}, s{sT0}, {hex(WS_FKV)}',
  f'v_and_b32 v{vPa}, 7, v0', f'v_lshlrev_b32 v{vPa}, 6, v{vPa}', f'v_add_u32 v{vPa}, s{sT0}, v{vPa}',
  f's_and_b32 s{sT0}, s{sW}, 1', f's_lshl_b32 s{sT1}, s{sRB}, 1', f's_add_u32 s{sT0}, s{sT0}, s{sT1}', f's_lshl_b32 s{sT0}, s{sT0}, 5',
  f's_lshl_b32 s{sT1}, s{sHG}, 2', f's_add_u32 s{sT0}, s{sT0}, s{sT1}', f's_and_b32 s{sT1}, s{sW}, 2', f's_add_u32 s{sT0}, s{sT0}, s{sT1}',
  f's_lshl_b32 s{sT0}, s{sT0}, 10', f's_add_u32 s{sOslot}, s{sT0}, {hex(WS_OB)}',
  f'v_add_u32 v{vKa}, {R+16384}, v{vL16}', f'v_lshlrev_b32 v{vVa}, 4, v{vI}', f'v_lshl_add_u32 v{vVa}, v{vH}, 8, v{vVa}', f'v_add_u32 v{vVa}, {R+16384}, v{vVa}',
  f'v_and_b32 v{vT1}, 27, v0', f'v_cmp_eq_u32 vcc, 16, v{vT1}', f'v_mov_b32 v{vT1}, 0x3f803f80', f's_cmp_eq_u32 s{sW}, 7', f'v_cndmask_b32 v{aV}, 0, v{vT1}, vcc',
  's_cbranch_scc1 L_Y7', 's_waitcnt lgkmcnt(0)', 's_barrier')
for s_ in range(8):
    x_sub(s_, 'xb')
    if s_ < 7: e(f's_add_u32 s{sXo}, s{sXo}, 128')
stamp(1, 'head')
e('s_branch L_Yj')
lab('L_Y7')
E(f'v_lshrrev_b32 v{vT1}, 1, v{vI}', f'v_xor_b32 v{vT1}, v{vT1}, v{vG}', f'v_lshlrev_b32 v{vT1}, 4, v{vT1}', f'v_lshl_add_u32 v{vT1}, v{vI}, 7, v{vT1}',
  f'v_add_u32 v{vT0}, s{sT2}, v{vT1}', f'v_xor_b32 v{vT1}, 64, v{vT0}', f'v_add_u32 v{vT2}, 65536, v{vT0}', f'v_add_u32 v{vT3}, 65536, v{vT1}',
  f'v_lshlrev_b32 v{vF0}, 8, v{vG}', f'v_lshl_add_u32 v{vF0}, v{vI}, 3, v{vF0}', f'v_add_u32 v{vF0}, {R}, v{vF0}',
  f'v_and_b32 v{vF1}, 1, v{vG}', f'v_lshrrev_b32 v{vF2}, 1, v{vG}',
  f's_lshr_b32 s{sT0}, s{sHG}, 2', f's_lshl_b32 s{sC}, s{sRB}, 1', f's_add_u32 s{sT0}, s{sT0}, s{sC}', f's_lshl_b32 s{sT0}, s{sT0}, 11',
  f's_bfe_u32 s{sC}, s{sHG}, 0x10001',
  f's_lshl_b32 s{sT1}, s{sRB}, 3', f's_add_u32 s{sT1}, s{sT1}, s{sHG}', f's_lshl_b32 s{sT1}, s{sT1}, 6', f's_add_u32 s{sK1}, s{sT1}, {hex(WS_FKV)}')
kd = 16
KF = 88
KF = 96 - 8
def kfr(u): return (96 + 8 * u) if u < 15 else 24
def kv_reads(s):
    a0, a1 = (vT0, vT1) if s < 4 else (vT2, vT3)
    o = (s & 3) * 16384
    x, y = kfr(2*s), kfr(2*s+1)
    E(f's_waitcnt vmcnt({28-4*s})',
      f'ds_read_b128 {vr(x,4)}, v{a0} offset:{o}', f'ds_read_b64_tr_b16 {vr(x+4,2)}, v{vF0} offset:{s*2048}', f'ds_read_b64_tr_b16 {vr(x+6,2)}, v{vF0} offset:{s*2048+128}',
      f'ds_read_b128 {vr(y,4)}, v{a1} offset:{o}', f'ds_read_b64_tr_b16 {vr(y+4,2)}, v{vF0} offset:{s*2048+1024}', f'ds_read_b64_tr_b16 {vr(y+6,2)}, v{vF0} offset:{s*2048+1152}')
for s_ in range(8): kv_reads(s_)
nonce_load()
stamp(2, 'head')
E(f's_bitcmp1_b32 s{sHG}, 0', 's_cbranch_scc1 L_kv_v',
  f'v_lshlrev_b32 v{vF1}, 9, v{vF1}', f'v_lshl_add_u32 v{vF1}, v{vF2}, 3, v{vF1}', f's_lshl_b32 s{sC}, s{sC}, 8')
def kv_chain(swap):
    for u in range(16):
        x = kfr(u)
        if u == 0: e('s_waitcnt lgkmcnt(12)')
        if u == 12: e('s_waitcnt lgkmcnt(0)')
        a, b = (vr(x+4,4), vr(x,4))
        if swap: a, b = b, a
        d = kd + 4 * (u & 1)
        e(f'v_mfma_f32_16x16x32_bf16 {vr(d,4)}, {a}, {b}, {"0" if u < 2 else vr(d,4)}')
kv_chain(False)
e('s_branch L_kv_j')
lab('L_kv_v')
E(f'v_lshlrev_b32 v{vF1}, 3, v{vF1}', f'v_lshl_add_u32 v{vF1}, v{vF2}, 8, v{vF1}', f's_lshl_b32 s{sC}, s{sC}, 9', f's_add_u32 s{sC}, s{sC}, 1024')
kv_chain(True)
lab('L_kv_j')
E(f'v_lshl_add_u32 v{vF1}, v{vI}, 4, v{vF1}', f's_add_u32 s{sT0}, s{sT0}, s{sC}', 's_nop 5',
  f'v_pk_add_f32 {vr(kd,2)}, {vr(kd,2)}, {vr(kd+4,2)}', f'v_pk_add_f32 {vr(kd+2,2)}, {vr(kd+2,2)}, {vr(kd+6,2)}',
  f'v_cvt_pk_bf16_f32 v{vF2}, v{kd}, v{kd+1}', f'v_cvt_pk_bf16_f32 v{vF3}, v{kd+2}, v{kd+3}',
  f'buffer_store_dwordx2 {vr(vF2,2)}, v{vF1}, {sr(S_WS,4)}, s{sT0} offen sc1')
stamp(3, 'head')
lab('L_Yj')
for i in range(1, 32): e(f'v_mov_b32 v{aV+i}, v{aV}')
for j in range(32): e(f'v_mov_b32 v{aOa+j}, 0')
E('s_waitcnt vmcnt(0)', f's_cmp_lg_u32 s{sW}, 7', 's_cbranch_scc1 L_flag_done')
flag_store('kv', f's{sK1}')
stamp(4, 'head')
lab('L_flag_done')
e('s_barrier')
stamp(5, 'head'); stamp(1, 'all', 'x')
poll_check('kv', vPa, ['0'], [vFl], None)
stamp(6, 'head')
E(f's_add_u32 m0, s{sW4k}, {R+16384}', f's_mov_b32 s{sC}, 0')
for j in range(4): dma(vL16, S_WS, f's{sKVo}', 1024*j, ' sc1', None)
E(f's_setprio {opt("yp", 1)}', 's_waitcnt vmcnt(0)')
stamp(7, 'head'); stamp(2, 'all', 'x')
e('s_barrier')
stamp(8, 'head'); stamp(3, 'all', 'x'); stamp(1, 'tail')
cstamp(10)
E(f'ds_read_b128 {vr(vQa,4)}, v{vQx}', f'ds_read_b128 {vr(vQb,4)}, v{vQx} offset:1024',
  f'ds_read_b128 {vr(aK,4)}, v{vKa}', f'ds_read_b128 {vr(aK+4,4)}, v{vKa} offset:2048', f's_mov_b64 exec, {sr(sVM,2)}')
for j in range(4): e(f'ds_read_b128 {vr(aV+4*j,4)}, v{vVa} offset:{(j>>1)*2048+1024+(j&1)*512}')
E('s_mov_b64 exec, -1', 's_waitcnt lgkmcnt(5)',
  f'v_mfma_f32_32x32x16_bf16 {vr(aSa,16)}, {vr(aK,4)}, {vr(vQa,4)}, 0',
  f'v_mfma_f32_32x32x16_bf16 {vr(aSb,16)}, {vr(aK,4)}, {vr(vQb,4)}, 0', 's_nop 10')
maxtree([aSa+i for i in range(16)], vT0, vT1)
maxtree([aSb+i for i in range(16)], vT2, vT3)
E(f'v_permlane32_swap_b32 v{vT0}, v{vT1}', f'v_max_f32 v{vT0}, v{vT0}, v{vT1}', f'v_permlane32_swap_b32 v{vT2}, v{vT3}',
  f'v_sub_f32 v{aCa}, {f32(-MOFF)}, v{vT0}', f'v_max_f32 v{vT2}, v{vT2}, v{vT3}')
for i in range(1, 16): e(f'v_mov_b32 v{aCa+i}, v{aCa}')
E(f'v_sub_f32 v{aCb}, {f32(-MOFF)}, v{vT2}', f'v_mov_b32 v{aCb+1}, v{aCb}',
  f'v_mfma_f32_32x32x16_bf16 {vr(aSa,16)}, {vr(aK,4)}, {vr(vQa,4)}, {vr(aCa,16)}')
for i in range(2, 16): e(f'v_mov_b32 v{aCb+i}, v{aCb}')
E('s_waitcnt lgkmcnt(0)', f'v_exp_f32 v{aSa}, v{aSa}', f'v_exp_f32 v{aSa+1}, v{aSa+1}', 's_branch L_att_entry')

def dtile(par, ld_off, entry=False):
    K = aK + 8 * par; Kn = aK + 8 * (par ^ 1)
    V = aV + 16 * par; Vn = aV + 16 * (par ^ 1)
    def ex(S, a, b):
        for i in range(a, b): e(f'v_exp_f32 v{S+i}, v{S+i}')
    def pv(O, Vr, P): e(f'v_smfmac_f32_32x32x32_bf16 {vr(O,16)}, {vr(Vr,4)}, {vr(P,8)}, v{vIdx}')
    def qk(S, Kr, Q, C): e(f'v_mfma_f32_32x32x16_bf16 {vr(S,16)}, {vr(Kr,4)}, {vr(Q,4)}, {vr(C,16)}')
    ex(aSa, 0, 2); pv(aOb, Vn+12, aSb+8)
    if entry: lab('L_att_entry')
    e(f's_mov_b64 exec, {sr(sVM,2)}')
    for j in range(4): e(f'ds_read_b128 {vr(Vn+4*j,4)}, v{vVa} offset:{ld_off+(j>>1)*2048+1024+(j&1)*512}')
    e('s_mov_b64 exec, -1')
    ex(aSa, 2, 5); qk(aSb, K, vQb, aCb)
    E(f'ds_read_b128 {vr(Kn,4)}, v{vKa} offset:{ld_off}', f'ds_read_b128 {vr(Kn+4,4)}, v{vKa} offset:{ld_off+2048}')
    ex(aSa, 5, 10); pv(aOa, V, aSa); ex(aSa, 10, 16)
    ex(aSb, 0, 2); pv(aOa, V+4, aSa+8); ex(aSb, 2, 5); qk(aSa, K+4, vQa, aCa); ex(aSb, 5, 10); pv(aOb, V, aSb); ex(aSb, 10, 16)
    ex(aSa, 0, 2); pv(aOb, V+4, aSb+8); ex(aSa, 2, 5); qk(aSb, K+4, vQb, aCb); ex(aSa, 5, 10); pv(aOa, V+8, aSa); ex(aSa, 10, 16)
    ex(aSb, 0, 2); pv(aOa, V+12, aSa+8); e('s_waitcnt lgkmcnt(0)'); ex(aSb, 2, 5); qk(aSa, Kn, vQa, aCa); ex(aSb, 5, 10); pv(aOb, V+8, aSb); ex(aSb, 10, 16)

e('.p2align 6')
lab('L_att_top')
E(f'v_xor_b32 v{vKa}, 16384, v{vKa}', f'v_xor_b32 v{vVa}, 16384, v{vVa}', f's_cmp_eq_u32 s{sC}, 8', 's_barrier')
dtile(1, 0)
e('s_cbranch_scc1 L_att_done')
dtile(0, 4096, entry=True)
e('s_barrier')
dtile(1, 8192)
dtile(0, 12288)
E(f's_add_u32 s{sC}, s{sC}, 1', 's_branch L_att_top')
NBAR_Y = NBAR[0] - 2 + 16
lab('L_att_done')
E('s_nop 0', f'v_smfmac_f32_32x32x32_bf16 {vr(aOb,16)}, {vr(aV+16+12,4)}, {vr(aSb+8,8)}, v{vIdx}')
stamp(4, 'all'); stamp(2, 'tail')
cstamp(11)
def chk(O, t1, t2):
    E(f'v_add_f32 v{t1}, abs(v{O}), abs(v{O+1})', f'v_add_f32 v{t2}, abs(v{O+2}), abs(v{O+3})', f'v_add_f32 v{t1}, v{t1}, abs(v{O+4})', f'v_add_f32 v{t2}, v{t2}, abs(v{O+5})',
      f'v_add_f32 v{t1}, v{t1}, abs(v{O+6})', f'v_add_f32 v{t2}, v{t2}, abs(v{O+7})', f'v_add_f32 v{t1}, v{t1}, v{O+8}', f'v_add_f32 v{t1}, v{t1}, v{t2}')
chk(aOa, vT0, vT1)
E(f's_mov_b32 s{sT0}, 0xfffffffe', f'v_mov_b32 v{vT1}, 0x7e000000', 's_nop 1')
chk(aOb, vT2, vT3)
E(f'v_add_f32 v{vT0}, v{vT0}, v{vT2}', f'v_cmp_nlt_f32 vcc, v{vT0}, v{vT1}', 's_cbranch_vccnz L_fallback')
lab('L_att_ok')
E(f'v_rcp_f32 v{vT0}, v{aOa+8}', f'v_rcp_f32 v{vT1}, v{aOb+8}')
for O, t, d, off in ((aOa, vT0, 224, 0), (aOb, vT1, 228, 1024)):
    for i in range(8): e(f'v_mul_f32 v{O+i}, v{O+i}, v{t}')
    for i in range(4): e(f'v_cvt_pk_bf16_f32 v{d+i}, v{O+2*i}, v{O+2*i+1}')
    for i in range(4): e(f'v_min_u32 v{d+i}, s{sT0}, v{d+i}')
    e(f'buffer_store_dwordx4 {vr(d,4)}, v{vL16}, {sr(S_WS,4)}, s{sOslot} offen{" offset:1024" if off else ""} sc1')
e('s_barrier')
stamp(3, 'tail')
w_reads()
e(f's_mov_b32 s{sSpin}, {SPIN}')
if opt('tslp', 4): e(f's_sleep {opt("tslp", 4)}')
stamp(4, 'tail')
lab('L_tail_retry')
o_loads()
for g in range(4):
    e(f's_waitcnt vmcnt({12-4*g})')
    b_ = oOf + 16 * g
    if g == 0:
        E(f'v_max3_u32 v{vT0}, v{b_}, v{b_+1}, v{b_+2}', f'v_max3_u32 v{vT1}, v{b_+3}, v{b_+4}, v{b_+5}')
        rest = list(range(b_+6, b_+16))
    else: rest = list(range(b_, b_+16))
    for k in range(0, len(rest), 2):
        t = vT0 if (k >> 1) & 1 == 0 else vT1
        e(f'v_max3_u32 v{t}, v{t}, v{rest[k]}, v{rest[k+1]}')
E(f'v_max_u32 v{vT0}, v{vT0}, v{vT1}', f'v_cmp_eq_u32 vcc, -1, v{vT0}', 's_cbranch_vccz L_tail_go',
  f's_sub_u32 s{sSpin}, s{sSpin}, 1', 's_cbranch_scc0 L_tail_retry')

cm('================ tail: out projections (X: branch A, Y: branch B) ================')
lab('L_tail_go')
stamp(5, 'tail', 'all')
e('s_waitcnt lgkmcnt(0)')
for rt in range(2):
    for s_ in range(8):
        for ct in range(2):
            a_ = oAcc + 32 * rt + 16 * ct
            e(f'v_mfma_f32_32x32x16_bf16 {vr(a_,16)}, {vr(oW+8*s_+4*ct,4)}, {vr(oOf+32*rt+4*s_,4)}, {"0" if s_ == 0 else vr(a_,16)}')
            m_ = 2 * s_ + ct
            if rt == 1 and 10 <= m_ <= 13:
                for q in (2*(m_-10), 2*(m_-10)+1):
                    e(f'ds_write_b128 v{80+q if q else vTp}, {vr(oAcc+4*q,4)}')
e('s_nop 10')
stamp(6, 'tail')
for q in range(8):
    e(f'ds_write_b128 v{80+q if q else vTp}, {vr(oAcc+32+4*q,4)} offset:8192')
E(f's_add_u32 s{sT1}, s{sOutOff}, 65536', 's_waitcnt lgkmcnt(0)', 's_barrier')
stamp(7, 'tail')
for rt in range(2):
    tR = 96 + 32 * rt
    for kq in range(4):
        E(f'ds_read_b128 {vr(tR+8*kq,4)}, v{vTr0} offset:{kq*16384+rt*8192}', f'ds_read_b128 {vr(tR+8*kq+4,4)}, v88 offset:{kq*16384+rt*8192}')
for rt in range(2):
    tR = 96 + 32 * rt
    e(f's_waitcnt lgkmcnt({8 if rt == 0 else 0})')
    for a_, b_ in ((0, 8), (16, 24), (0, 16)):
        for i in range(0, 8, 2): e(f'v_pk_add_f32 {vr(tR+a_+i,2)}, {vr(tR+a_+i,2)}, {vr(tR+b_+i,2)}')
    d = 16 + 4 * rt
    for i in range(4): e(f'v_cvt_pk_bf16_f32 v{d+i}, v{tR+2*i}, v{tR+2*i+1}')
    e(f'buffer_store_dwordx4 {vr(d,4)}, v{vTo}, {sr(S_OUT,4)}, s{sT1 if rt else sOutOff} offen{opt("of", "").replace("_", " ")}')
if STAMPS:
    stamp(8, 'tail')
    e('s_waitcnt vmcnt(0)')
    stamp(9, 'tail', 'head'); stamp(6, 'all')
    E('s_waitcnt lgkmcnt(0)', 's_nop 1')
    ECHO = [a[7:] for a in sys.argv if a.startswith('--echo=')]
    if ECHO:
        a_, b_, mul = map(int, ECHO[0].split(','))
        E(f's_sub_u32 s{sT0}, s{sST+2*b_}, s{sST+2*a_}', f's_mul_i32 s{sT0}, s{sT0}, {mul}')
        lab('L_echo')
        E(f's_memrealtime {sr(4,2)}', 's_waitcnt lgkmcnt(0)', f's_sub_u32 s{sT1}, s4, s{sST+12}', f's_cmp_lt_u32 s{sT1}, s{sT0}', 's_cbranch_scc1 L_echo')
    for i in range(12): e(f'v_mov_b32 v{16+i}, s{sST+2*i}')
    E(f's_getreg_b32 s{sT0}, hwreg(HW_REG_XCC_ID)', f'v_mov_b32 v28, s{sT0}', f'v_mov_b32 v29, s{sSpin}', f'v_mov_b32 v30, s{sFB}', 'v_mov_b32 v31, 0',
      f's_lshl_b32 s{sT0}, s2, 3', f's_add_u32 s{sT0}, s{sT0}, s{sW}', f's_lshl_b32 s{sT0}, s{sT0}, 6', f's_add_u32 s{sT0}, s{sT0}, {hex(WS_STAMP)}',
      'v_mov_b32 v0, 0', 's_mov_b64 exec, 1')
    for i in range(4):
        e(f'buffer_store_dwordx4 {vr(16+4*i,4)}, v0, {sr(S_WS,4)}, s{sT0} offen offset:{16*i}')
lab('L_end')
e('s_endpgm')

cm('================ X program (waves 0-3) ================')
VMQ[:] = []; NBAR[0] = 0
xAcc, xFr, xMask = 96, 160, 32
xa, xb, xw = 56, 60, 64
(xFw, xLq, xLv, xLvp, xOne) = (72, 73, 74, 75, 76)
XV, XM, PACE = opt('xv', 2), opt('xm', 0), opt('pace', 2)
e('.p2align 6')
lab('L_X')
srd(S_WQ, 0x80000); srd(S_XA, 0x200000); srd(S_WQKV, 0x180000)
E(f's_or_b32 s{sT1}, s2, s{sW}', 's_cbranch_scc1 L_nonon', 's_waitcnt lgkmcnt(0)',
  f's_or_b32 s{sNon}, s{sNon}, 1', f'v_mov_b32 v{vNon}, s{sNon}', f'v_mov_b32 v{vNon+1}, s{sNon+1}', 's_mov_b64 exec, 1',
  f'global_store_dwordx2 v{vZero}, {vr(vNon,2)}, {sr(S_DBG,2)} sc1', 's_mov_b64 exec, -1')
lab('L_nonon')
E(f'v_and_b32 v{vT3}, 1, v{vG}', f'v_lshlrev_b32 v{vT3}, 2, v{vT3}', f'v_xor_b32 v{vT3}, v{vT3}, v{vT2}', f'v_lshlrev_b32 v{vT3}, 4, v{vT3}',
  f'v_lshl_add_u32 v{vW}, v{vT1}, 10, v{vT3}', f'v_add_u32 v{vW2}, {8192-1024}, v{vW}',
  f'v_mul_u32_u24 v{vWA}, 3072, v{vT1}', f'v_add_u32 v{vWA}, v{vWA}, v{vT3}')
lane_setup()
qx, qw = 32, 40
E(f'v_bfe_u32 v{vXx}, v{vN}, 1, 3', f'v_xor_b32 v{vXx}, v{vXx}, v{vH}', f'v_lshlrev_b32 v{vXx}, 4, v{vXx}',
  f's_and_b32 s{sF0}, s{sW}, 1', f's_lshl_b32 s{sF0}, s{sF0}, 12', f'v_lshl_add_u32 v{qx}, v{vN}, 7, v{vXx}', f'v_add_u32 v{qx}, s{sF0}, v{qx}',
  f'v_xor_b32 v{qx+1}, 32, v{qx}', f'v_xor_b32 v{qx+2}, 64, v{qx}', f'v_xor_b32 v{qx+3}, 96, v{qx}',
  f's_and_b32 s{sF2}, s{sW}, 2', f's_lshl_b32 s{sF2}, s{sF2}, 5', f'v_xor_b32 v{qw}, s{sF2}, v{vWl}', f'v_add_u32 v{qw}, 8192, v{qw}', f'v_add_u32 v{qw+1}, 65536, v{qw}',
  f's_mov_b32 s{sCS}, {f32(CSCALE)}')
for j in range(4): e(f'v_add_u32 v{qx+4+j}, 65536, v{qx+j}')
E(f's_add_u32 s{sXo}, s{sRot}, s{sHG}', f's_and_b32 s{sXo}, s{sXo}, 7', f's_lshl_b32 s{sXo}, s{sXo}, 7', f's_lshl_b32 s{sW2k}, s{sW}, 11',
  f's_lshl_b32 s{sT3}, s{sRB}, 2', f's_add_u32 s{sT0}, s{sT3}, s{sW}', f's_lshl_b32 s{sT0}, s{sT0}, 14', f'v_add_u32 v{vXA}, s{sT0}, v{vP0}', f'v_add_u32 v{vXA2}, s{sT0}, v{vP1}',
  f's_mul_i32 s{sT0}, s{sW}, {16*3072}', f's_add_u32 s{sT0}, s{sT0}, s{sHG128}', f'v_add_u32 v{vWA}, s{sT0}, v{vWA}', f'v_add_u32 v{vWA2}, {8*3072-1024}, v{vWA}')
def w64(srd_, lds_base_sgpr, lds, tag):
    for hf in range(2):
        E(f's_add_u32 m0, s{lds_base_sgpr}, {lds+hf*4096}', f's_add_u32 s{sT1}, s{sT0}, {2*7168}')
        dma(vW, srd_, f's{sT0}', 0, '', tag); dma(vW2, srd_, f's{sT0}', 1024, '', tag)
        dma(vW, srd_, f's{sT1}', 2048, '', tag); dma(vW2, srd_, f's{sT1}', 3072, '', tag)
        if hf == 0: e(f's_add_u32 s{sT0}, s{sT0}, 32768')
def halo_fill():
    E(f's_lshl_b32 s{sT3}, s{sRB}, 16', f's_sub_u32 s{sT2}, s{sT3}, 16384', f's_max_i32 s{sT2}, s{sT2}, 0',
      f's_lshl_b32 s{sT0}, s{sW}, 7', f's_add_u32 s{sT0}, s{sT0}, s{sXo}')
    for j in range(2):
        E(f's_and_b32 s{sT0}, s{sT0}, 1023', f's_add_u32 m0, s{sW2k}, {HALO+j*8192}', f's_add_u32 s{sT1}, s{sT2}, s{sT0}')
        dma(vP0, S_XA, f's{sT1}', 0, '', 'halo'); dma(vP1, S_XA, f's{sT1}', 1024, '', 'halo')
        if j == 0: e(f's_add_u32 s{sT0}, s{sT0}, 512')
def a_fill(c):
    slot = (c % 3) * SLOT
    t = f'A{c}'
    E(f's_add_u32 m0, s{sW2k}, {slot}', f's_mul_i32 s{sWo}, s{sXo}, 1536')
    dma(vXA, S_XA, f's{sXo}', 0, NT, t); dma(vXA2, S_XA, f's{sXo}', 1024, NT, t)
    for ty in range(3):
        E(f's_add_u32 m0, s{sW2k}, {slot+8192+ty*8192}', [f's_add_u32 s{sXo}, s{sXo}, 128', f's_add_u32 s{sWo}, s{sWo}, 1024', f's_add_u32 s{sWo}, s{sWo}, 1024'][ty])
        dma(vWA, S_WQKV, f's{sWo}', 0, '', t); dma(vWA2, S_WQKV, f's{sWo}', 1024, '', t)
    e(f's_and_b32 s{sXo}, s{sXo}, 1023')
def kv_fill(k):
    E(f's_add_u32 m0, s{sW4k}, {R+((k&1)^1)*16384}', f's_and_b32 s{sKVo}, s{sKVo}, 0x1ffff')
    for j in range(4): dma(vL16, S_WS, f's{sKVo}', 1024*j, ' sc1', f'KV{k}')
    e(f's_add_u32 s{sKVo}, s{sKVo}, 16384')
def wo_fill(srd_, half, lds, tag):
    e(f's_add_u32 s{sT0}, s{sWoff}, {half*256*1024}')
    w64(srd_, sW8k, lds, tag)
def masks():
    E(f'v_lshlrev_b32 v{vT0}, 2, v{vH}', f'v_sub_u32 v{vT0}, v{vN}, v{vT0}', f'v_add_u32 v{vT0}, 18, v{vT0}',
      f'v_mov_b32 v{vT2}, 0x5555', f'v_mov_b32 v{vT3}, 0', f'v_lshlrev_b64 {vr(vT2,2)}, v{vT0}, {vr(vT2,2)}',
      f'v_not_b32 v{vT2}, v{vT2}', f'v_not_b32 v{vT3}, v{vT3}', f's_mov_b32 s{sF1}, 0xff800000')
    for r in range(16): E(f'v_bfe_i32 v{xMask+r}, v{vT3}, {8*(r>>2)+(r&3)}, 1', f'v_and_b32 v{xMask+r}, s{sF1}, v{xMask+r}')
    for r in range(8, 16): E(f'v_bfe_i32 v{xMask+8+r}, v{vT2}, {8*(r>>2)+(r&3)}, 1', f'v_and_b32 v{xMask+8+r}, s{sF1}, v{xMask+8+r}')
def local_setup():
    E(f's_add_u32 s{sT0}, s{sW8k}, {SC}', f'v_add_u32 v{xFw}, s{sT0}, v{vL16}', f'v_mov_b32 v{xOne}, 0x3f803f80', f'v_mov_b32 v{xOne+1}, 0x3f803f80',
      f's_lshl_b32 s{sT1}, s{sW}, 10', f's_add_u32 s{sT2}, s{sT1}, {ONES}', f's_add_u32 s{sT1}, s{sT1}, {SC}', f'v_add_u32 v{xLq}, s{sT1}, v{vL16}',
      f'v_and_b32 v{vT0}, 1, v0', f'v_lshlrev_b32 v{vT0}, 5, v{vT0}', f'v_lshl_add_u32 v{vT0}, v{vH}, 3, v{vT0}',
      f'v_lshrrev_b32 v{vT1}, 2, v{vI}', f'v_add_u32 v{vT0}, v{vT0}, v{vT1}', f'v_lshlrev_b32 v{vT0}, 4, v{vT0}', f'v_and_b32 v{vT1}, 2, v0', f'v_lshl_add_u32 v{vT0}, v{vT1}, 2, v{vT0}',
      f'v_add_u32 v{xLv}, s{sT1}, v{vT0}', f'v_mov_b32 v{xLvp}, s{sT2}', f'v_lshl_add_u32 v{vOw}, v0, 3, v{xLvp}',
      f'v_and_b32 v{vT0}, 16, v0', f'v_cmp_ne_u32 vcc, 0, v{vT0}',
      f'v_add_u32 v78, {4*4096}, v{xLv}', f'v_add_u32 v79, {5*4096}, v{xLv}', f'v_add_u32 v80, {7*4096}, v{xLv}',
      f'v_cndmask_b32 v78, v78, v{xLvp}, vcc', f'v_cndmask_b32 v79, v79, v{xLvp}, vcc', f'v_cndmask_b32 v80, v80, v{xLvp}, vcc',
      f's_lshl_b32 s{sT0}, s{sRB}, 6', f's_lshl_b32 s{sT1}, s{sHG}, 2', f's_add_u32 s{sT1}, s{sT1}, s{sW}', f's_add_u32 s{sT0}, s{sT0}, s{sT1}',
      f's_lshl_b32 s{sT0}, s{sT0}, 10', f's_add_u32 s{sOslot}, s{sT0}, {hex(WS_OA)}', f's_add_u32 s{sOslot2}, s{sOslot}, 32768',
      f's_lshl_b32 s{sT0}, s{sRB}, 5', f's_add_u32 s{sT0}, s{sT0}, s{sT1}', f's_lshl_b32 s{sT0}, s{sT0}, 6', f's_add_u32 s{sK1}, s{sT0}, {hex(WS_FOA)}')
    for i in range(4): e(f'v_mov_b32 v{vF0+i}, -1')
def sentinels():
    E(f's_add_u32 s{sT0}, s{sOslot}, {hex(WS_OB-WS_OA)}', f's_add_u32 s{sT1}, s{sT0}, 32768', f'ds_write_b64 v{vOw}, {vr(xOne,2)}')
    e(f'buffer_store_dwordx4 {vr(vF0,4)}, v{vL16}, {sr(S_WS,4)}, s{sT0} offen sc1', 'sent')
    e(f'buffer_store_dwordx4 {vr(vF0,4)}, v{vL16}, {sr(S_WS,4)}, s{sT1} offen sc1', 'sent')
    nonce_load('sent')
def setup_a():
    E(f's_cmp_eq_u32 s{sW}, 3', f's_cselect_b32 s{sT1}, 15, 31', f'v_and_b32 v{vT0}, s{sT1}, v{vN}', f'v_lshl_add_u32 v{xa}, v{vT0}, 7, v{vXx}',
      f's_cselect_b32 s{sT1}, {HALO}, 0', f'v_add_u32 v{xa}, s{sT1}, v{xa}', f's_cselect_b32 s{sT1}, 0, 4096', f'v_add_u32 v{xb}, s{sT1}, v{xa}',
      f's_cselect_b32 s{sStepA}, 1, 16', f's_cselect_b32 s{sStepB}, 1, -32', f's_cselect_b32 s{sT1}, 1, s{sW}', f's_cselect_b32 s{sT2}, 2, s{sW}',
      f's_lshl_b32 s{sStepA}, s{sStepA}, 11', f's_lshl_b32 s{sStepB}, s{sStepB}, 11',
      f's_lshl_b32 s{sT1}, s{sT1}, 13', f's_add_u32 s{sT1}, s{sT1}, 8192', f'v_add_u32 v{xw}, s{sT1}, v{vWl}', f'v_xor_b32 v{xw+1}, 64, v{xw}',
      f's_lshl_b32 s{sT2}, s{sT2}, 13', f's_add_u32 s{sT2}, s{sT2}, 8192', f'v_add_u32 v{xw+2}, s{sT2}, v{vWl}', f'v_xor_b32 v{xw+3}, 64, v{xw+2}')
    for j in range(4): e(f'v_add_u32 v{xw+4+j}, 65536, v{xw+j}')
    for s_ in range(1, 4): E(f'v_xor_b32 v{xa+s_}, {32*s_}, v{xa}', f'v_xor_b32 v{xb+s_}, {32*s_}, v{xb}')
def setup_b():
    E(f's_lshr_b32 s{sT1}, s{sRB}, 2', f's_lshl_b32 s{sKVo}, s{sT1}, 14', f's_add_u32 s{sKVo}, s{sKVo}, s{sW4k}', f's_add_u32 s{sKVo}, s{sKVo}, 16384',
      f'v_lshlrev_b32 v{vPa}, 6, v0', f'v_add_u32 v{vPa}, {hex(WS_FKV)}, v{vPa}',
      f'v_lshlrev_b32 v{vPa2}, 6, v{vN}', f's_lshl_b32 s{sT2}, s{sRB}, 11', f's_add_u32 s{sT2}, s{sT2}, {hex(WS_FOA)}', f'v_add_u32 v{vPa2}, s{sT2}, v{vPa2}',
      f's_mov_b32 s{sVM}, 4096', f's_mov_b32 s{sVM+1}, 8192', f's_mov_b32 s{sC}, 12288',
      f's_lshl_b32 s{sW8k}, s{sW}, 13', f's_lshl_b32 s{sWoff}, s{sW}, 16', f's_add_u32 s{sWoff}, s{sWoff}, s{sHG128}')
    srd(S_WOA, 0x80000); srd(S_WOB, 0x80000)
setup_b()
E(f's_add_u32 s{sT0}, s{sW}, s{sRot}', f's_lshl_b32 s{sT0}, s{sT0}, 16', f's_add_u32 s{sT0}, s{sT0}, s{sHG128}', f's_lshl_b32 s{sT2}, s{sW}, 14',
  f's_and_b32 s{sT0}, s{sT0}, 0x7ffff', 's_waitcnt lgkmcnt(0)', 's_barrier')
w64(S_WQ, sT2, 8192, 'B')
E(f's_add_u32 s{sT0}, s{sT0}, {4*65536-32768}', f's_and_b32 s{sT0}, s{sT0}, 0x7ffff')
w64(S_WQ, sT2, 65536+8192, 'B')
stamp(1, 'head')
setup_a(); local_setup(); tail_setup()
E('s_waitcnt vmcnt(0)', 's_barrier')
stamp(5, 'head'); stamp(1, 'all', 'x')
def qrd(u):
    sc, st = u >> 2, u & 3
    x = vFr + 8 * (u % 8)
    hi = sc >> 2
    o = (sc & 3) * 16384
    E(f'ds_read_b128 {vr(x,4)}, v{qx+4*hi+st} offset:{o}',
      f'ds_read_b64_tr_b16 {vr(x+4,2)}, v{qw+hi} offset:{o+st*2048}', f'ds_read_b64_tr_b16 {vr(x+6,2)}, v{qw+hi} offset:{o+st*2048+512}')
for u in range(5): qrd(u)
for u in range(32):
    x = vFr + 8 * (u % 8)
    issued = min(32, 5 + u)
    e(f's_waitcnt lgkmcnt({3*(issued-u-1)})')
    e(f'v_mfma_f32_32x32x16_bf16 {vr(vQacc,16)}, {vr(x+4,4)}, {vr(x,4)}, {"0" if u == 0 else vr(vQacc,16)}')
    if 5 + u < 32: qrd(5 + u)
e('s_nop 11')
stamp(6, 'head')
for j in range(16): e(f'v_mul_f32 v{vQacc+j}, s{sCS}, v{vQacc+j}')
for j in range(8): e(f'v_cvt_pk_bf16_f32 v{vQacc+j}, v{vQacc+2*j}, v{vQacc+2*j+1}')
E(f'ds_write_b128 v{vQx}, {vr(vQacc,4)}', f'ds_write_b128 v{vQx}, {vr(vQacc+4,4)} offset:1024',
  f's_setprio {XV}', 's_waitcnt lgkmcnt(0)')
stamp(7, 'head'); stamp(2, 'all', 'x')
e('s_barrier')
stamp(8, 'head'); stamp(3, 'all', 'x')

def a_chunk(c):
    sl = c % 3
    base = sl * SLOT if sl < 2 else 0
    W = xw + (4 if sl == 2 else 0)
    def rd(s, half):
        x = xFr + 24 * (s % 3) + 12 * half
        a = (xb if half else xa) + s
        w0, w1 = W + 2 * half, W + 2 * half + 1
        return [f'ds_read_b128 {vr(x,4)}, v{a}',
                f'ds_read_b64_tr_b16 {vr(x+4,2)}, v{w0} offset:{base+s*2048}', f'ds_read_b64_tr_b16 {vr(x+6,2)}, v{w0} offset:{base+s*2048+512}',
                f'ds_read_b64_tr_b16 {vr(x+8,2)}, v{w1} offset:{base+s*2048}', f'ds_read_b64_tr_b16 {vr(x+10,2)}, v{w1} offset:{base+s*2048+512}']
    def mm(s, half, j):
        x = xFr + 24 * (s % 3) + 12 * half
        a = xAcc + 16 * (2 * half + j)
        return f'v_mfma_f32_32x32x16_bf16 {vr(a,16)}, {vr(x+4+4*j,4)}, {vr(x,4)}, {"0" if (c == 0 and s == 0) else vr(a,16)}'
    if XM != XV: e(f's_setprio {XM}')
    groups = [(s, h) for s in range(4) for h in range(2)]
    if PACE == 0:
        E(*rd(0,0), *rd(0,1), *rd(1,0))
        for g, (s, h) in enumerate(groups):
            ahead = min(len(groups), g + 3) - g - 1
            e(f's_waitcnt lgkmcnt({5*ahead})')
            E(mm(s,h,0), mm(s,h,1))
            if g + 3 < len(groups): E(*rd(*groups[g+3]))
    else:
        seq = []
        for (s, h) in groups:
            r = rd(s, h)
            seq.append((r[:3], mm(s,h,0))); seq.append((r[3:], mm(s,h,1)))
        E(*seq[0][0])
        for k_, (r, m) in enumerate(seq):
            if k_ + 1 < len(seq):
                E(*seq[k_+1][0]); e(f's_waitcnt lgkmcnt({len(seq[k_+1][0])})')
            else: e('s_waitcnt lgkmcnt(0)')
            e(m)
    if XM != XV: e(f's_setprio {XV}')
    if c < 7:
        st = sStepB if sl == 2 else sStepA
        for j in range(8): e(f'v_add_u32 v{xa+j}, s{st}, v{xa+j}')
def write_frags():
    e('s_nop 4')
    for blk in range(2):
        for hd in range(4):
            a = xAcc + 32 * blk + 8 * hd
            for i in range(4): e(f'v_cvt_pk_bf16_f32 v{a+i}, v{a+2*i}, v{a+2*i+1}')
            e(f'ds_write_b128 v{xFw}, {vr(a,4)} offset:{blk*4096+hd*1024}')
def local_task(t):
    lq, lk, lp, lv = xFr, xFr+4, xFr+8, xFr+12
    lS, lP, lO = xAcc, xAcc+16, xAcc+32
    kp = 6 if t == 0 else 2
    vc, vp = (78, 80) if t == 0 else (79, 78)
    E(f'ds_read_b128 {vr(lq,4)}, v{xLq} offset:{t*4096}', f'ds_read_b128 {vr(lk,4)}, v{xLq} offset:{(2+t)*4096}', f'ds_read_b128 {vr(lp,4)}, v{xLq} offset:{kp*4096}',
      f'ds_read_b64_tr_b16 {vr(lv,2)}, v{vc}', f'ds_read_b64_tr_b16 {vr(lv+2,2)}, v{vc} offset:64',
      f'ds_read_b64_tr_b16 {vr(lv+4,2)}, v{vc} offset:256', f'ds_read_b64_tr_b16 {vr(lv+6,2)}, v{vc} offset:320',
      f'ds_read_b64_tr_b16 {vr(lv+8,2)}, v{vp} offset:256', f'ds_read_b64_tr_b16 {vr(lv+10,2)}, v{vp} offset:320')
    if t == 0:
        E(f's_cmp_lg_u32 s{sRB}, 0', 's_cbranch_scc1 L_m0')
        for r in range(8): e(f'v_mov_b32 v{xMask+16+r}, 0xff800000')
        lab('L_m0')
    E('s_waitcnt lgkmcnt(6)', 's_nop 0',
      f'v_mfma_f32_32x32x16_bf16 {vr(lS,16)}, {vr(lk,4)}, {vr(lq,4)}, {vr(xMask,16)}',
      f'v_mfma_f32_32x32x16_bf16 {vr(lP,16)}, {vr(lp,4)}, {vr(lq,4)}, {vr(xMask+8,16)}')
    for i in range(16): e(f'v_mov_b32 v{lO+i}, 0')
    regs = [lS+i for i in range(16)] + [lP+8+i for i in range(8)]
    maxtree(regs, vT0, vT1)
    E('s_nop 1', f'v_permlane32_swap_b32 v{vT0}, v{vT1}', f'v_max_f32 v{vT0}, v{vT0}, v{vT1}', f'v_mul_f32 v{vT0}, {f32(-CSCALE)}, v{vT0}')
    for k in range(24): e(f'v_fma_f32 v{regs[k]}, v{regs[k]}, s{sCS}, v{vT0}')
    e('s_waitcnt lgkmcnt(0)')
    for k in range(24):
        e(f'v_exp_f32 v{regs[k]}, v{regs[k]}')
        if k == 9: e(f'v_smfmac_f32_32x32x32_bf16 {vr(lO,16)}, {vr(lv,4)}, {vr(lS,8)}, v{vIdx}')
        if k == 17: e(f'v_smfmac_f32_32x32x32_bf16 {vr(lO,16)}, {vr(lv+4,4)}, {vr(lS+8,8)}, v{vIdx}')
    E('s_nop 1', f'v_smfmac_f32_32x32x32_bf16 {vr(lO,16)}, {vr(lv+8,4)}, {vr(lP+8,8)}, v{vIdx}', 's_nop 11',
      f'v_rcp_f32 v{vT1}, v{lO+8}', 's_nop 0')
    for i in range(8): e(f'v_mul_f32 v{lO+i}, v{lO+i}, v{vT1}')
    d = xAcc + 48 + 4 * t
    for i in range(4): e(f'v_cvt_pk_bf16_f32 v{d+i}, v{lO+2*i}, v{lO+2*i+1}')
    e(f'buffer_store_dwordx4 {vr(d,4)}, v{vL16}, {sr(S_WS,4)}, s{sOslot2 if t else sOslot} offen sc1', 'oa')

SH4 = ['0', f's{sVM}', f's{sVM+1}', f's{sC}']; RG4 = [82, 84, 86, 88]
for n in range(16):
    cm(f'X interval {n}')
    if n in (1, 2, 4, 10, 12, 14): stamp({1: 4, 2: 5, 4: 6, 10: 7, 12: 8, 14: 9}[n], 'x')
    if STAMPS and STMODE == 'xc' and n in (4, 8, 10, 12, 14, 15):
        i_ = (4, 8, 10, 12, 14, 15).index(n)
        E(f's_memrealtime {sr(sST+4*i_,2)}', f's_memtime {sr(sST+4*i_+2,2)}')
    waits = []
    k = n // 2
    if n == 0:
        E(f's_cmp_lg_u32 s{sW}, 0', 's_cbranch_scc1 L_np2')
        poll_issue(vPa, SH4, RG4)
        lab('L_np2')
        halo_fill(); a_fill(0)
        masks()
    if n == 1: kv_fill(1); a_fill(1)
    if n % 2 == 0 and 1 <= k <= 6: kv_fill(k + 1)
    if 2 <= n <= 7: a_fill(n)
    if n == 8: sentinels()
    if n == 9: wo_fill(S_WOA, 0, 0, 'woA')
    if 2 <= n <= 9: a_chunk(n - 2)
    if 1 <= n <= 8: waits.append(f'A{n-1}')
    if n == 9: write_frags()
    if n == 10:
        wo_fill(S_WOA, 1, SLOT, 'woA')
        local_task(1)
    if n == 11: local_task(0)
    if n == 12:
        flag_store('oa', f's{sK1}', f's_waitcnt vmcnt({vmn("oa")})')
        VMQ.append('fl')
        wo_fill(S_WOB, 0, 2*SLOT, 'woB')
    if n == 13:
        E(f's_cmp_lg_u32 s{sW}, 0', 's_cbranch_scc1 L_np3')
        poll_issue(vPa2, ['0'], [vFl])
        lab('L_np3')
        wo_fill(S_WOB, 1, 3*SLOT, 'woB')
        w_reads()
    if n == 14: o_loads('oal')
    if n % 2 == 1 and k + 1 <= 7: waits.append(f'KV{k+1}')
    if n == 15: waits.append('woB')
    if waits: e(f's_waitcnt vmcnt({min(vmn(t) for t in waits)}) lgkmcnt(0)')
    else: e('s_waitcnt lgkmcnt(0)')
    if n == 0:
        E(f's_cmp_lg_u32 s{sW}, 0', 's_cbranch_scc1 L_nochk_kv2')
        poll_check('kv2', vPa, SH4, RG4, 12)
    if n == 13:
        E(f's_cmp_lg_u32 s{sW}, 0', 's_cbranch_scc1 L_nochk_oa')
        poll_check('oa', vPa2, ['0'], [vFl], 8)
    e('s_barrier')
assert NBAR[0] == NBAR_Y, (NBAR[0], NBAR_Y)
E('s_setprio 0', 's_waitcnt vmcnt(0)', 's_barrier', 's_branch L_tail_go')

cm('---- fallback (Y waves): true max, K/V from global ----')
lab('L_fallback')
E(f's_mov_b32 s{sFB}, 1', f'v_mov_b32 v{vT0}, 0xff800000', f'v_mov_b32 v{vT2}, 0xff800000', f's_mov_b32 s{sT2}, 0')
lab('L_fb_max')
E(f'buffer_load_dwordx4 {vr(aK,4)}, v{vL16}, {sr(S_WS,4)}, s{sT2} offen sc1', 's_waitcnt vmcnt(0)',
  f'v_mfma_f32_32x32x16_bf16 {vr(aSa,16)}, {vr(aK,4)}, {vr(vQa,4)}, 0', f'v_mfma_f32_32x32x16_bf16 {vr(aSb,16)}, {vr(aK,4)}, {vr(vQb,4)}, 0', 's_nop 15')
for k in range(0, 16, 2): e(f'v_max3_f32 v{vT0}, v{vT0}, v{aSa+k}, v{aSa+k+1}')
for k in range(0, 16, 2): e(f'v_max3_f32 v{vT2}, v{vT2}, v{aSb+k}, v{aSb+k+1}')
E(f's_add_u32 s{sT2}, s{sT2}, 2048', f's_cmp_lt_u32 s{sT2}, {64*2048}', 's_cbranch_scc1 L_fb_max',
  f'v_mov_b32 v{vT1}, v{vT0}', f'v_mov_b32 v{vT3}, v{vT2}', 's_nop 1',
  f'v_permlane32_swap_b32 v{vT0}, v{vT1}', f'v_permlane32_swap_b32 v{vT2}, v{vT3}', f'v_max_f32 v{vT0}, v{vT0}, v{vT1}', f'v_max_f32 v{vT2}, v{vT2}, v{vT3}')
for i in range(16): e(f'v_sub_f32 v{aCa+i}, 0, v{vT0}')
for i in range(16): e(f'v_sub_f32 v{aCb+i}, 0, v{vT2}')
for i in range(32): e(f'v_mov_b32 v{aOa+i}, 0')
E(f'v_lshlrev_b32 v{vT2}, 4, v{vI}', f'v_lshl_add_u32 v{vT2}, v{vH}, 8, v{vT2}', f's_mov_b32 s{sT2}, 0')
lab('L_fb_pv')
E(f'buffer_load_dwordx4 {vr(aK,4)}, v{vL16}, {sr(S_WS,4)}, s{sT2} offen sc1', f's_mov_b64 exec, {sr(sVM,2)}',
  f'buffer_load_dwordx4 {vr(aV,4)}, v{vT2}, {sr(S_WS,4)}, s{sT2} offen offset:1024 sc1',
  f'buffer_load_dwordx4 {vr(aV+4,4)}, v{vT2}, {sr(S_WS,4)}, s{sT2} offen offset:1536 sc1', 's_mov_b64 exec, -1', 's_waitcnt vmcnt(0)',
  f'v_mfma_f32_32x32x16_bf16 {vr(aSa,16)}, {vr(aK,4)}, {vr(vQa,4)}, {vr(aCa,16)}',
  f'v_mfma_f32_32x32x16_bf16 {vr(aSb,16)}, {vr(aK,4)}, {vr(vQb,4)}, {vr(aCb,16)}', 's_nop 15')
for i in range(32): e(f'v_exp_f32 v{aSa+i}, v{aSa+i}')
E('s_nop 1',
  f'v_smfmac_f32_32x32x32_bf16 {vr(aOa,16)}, {vr(aV,4)}, {vr(aSa,8)}, v{vIdx}', f'v_smfmac_f32_32x32x32_bf16 {vr(aOa,16)}, {vr(aV+4,4)}, {vr(aSa+8,8)}, v{vIdx}',
  f'v_smfmac_f32_32x32x32_bf16 {vr(aOb,16)}, {vr(aV,4)}, {vr(aSb,8)}, v{vIdx}', f'v_smfmac_f32_32x32x32_bf16 {vr(aOb,16)}, {vr(aV+4,4)}, {vr(aSb+8,8)}, v{vIdx}',
  f's_add_u32 s{sT2}, s{sT2}, 2048', f's_cmp_lt_u32 s{sT2}, {64*2048}', 's_cbranch_scc1 L_fb_pv', 's_nop 15', 's_branch L_att_ok')
lab('L_code_end')

HDR = open(f'cdna_kernels/{NAME}.s.ref').read().split('\n')
hdr = []
for line in HDR:
    if line.startswith('; @launch'): break
    hdr.append(line)
txt = '\n'.join(hdr) + '\n; @launch grid=(256,1,1) block=(512,1,1) lds=163840\n'
txt += f'''.amdgcn_target "amdgcn-amd-amdhsa--gfx950"
.text
.globl {NAME}_kernel
.p2align 8
.type {NAME}_kernel,@function
'''
txt += '\n'.join(L) + '\n'
txt += f'''.section .rodata,"a"
.p2align 6
.amdhsa_kernel {NAME}_kernel
  .amdhsa_next_free_vgpr {NVGPR}
  .amdhsa_next_free_sgpr 102
  .amdhsa_accum_offset {NVGPR}
  .amdhsa_group_segment_fixed_size 0
  .amdhsa_kernarg_size 88
  .amdhsa_user_sgpr_count 2
  .amdhsa_user_sgpr_kernarg_segment_ptr 1
  .amdhsa_system_sgpr_workgroup_id_x 1
.end_amdhsa_kernel
'''
open(OUT, 'w').write(txt)
print('wrote', OUT, len(L), 'lines; barriers', NBAR_Y)
```

```python
import sys, struct

NAME = 'concat_heads__sliding_local_dilated__grouped_kv_mqa__prompt'
STAMPS = '--stamps' in sys.argv
STMODE = ([a[5:] for a in sys.argv if a.startswith('--st=')] + ['all'])[0]
XP = [a[4:] for a in sys.argv if a.startswith('--x=')]
args = [a for a in sys.argv[1:] if not a.startswith('--')]
OUT = args[0] if args else f'cdna_kernels/{NAME}.s'
def opt(name, default):
    for a in XP:
        if a.startswith(name): return type(default)(a[len(name):])
    return default

L = []
VMQ = []
NBAR = [0]
def e(s, tag=None):
    if tag is not None: VMQ.append(tag)
    if s == 's_barrier': NBAR[0] += 1
    L.append('    ' + s.strip())
def lab(s): L.append(s + ':')
def cm(s): L.append('    ; ' + s)
def vr(i, n): return f'v[{i}:{i+n-1}]'
def sr(i, n): return f's[{i}:{i+n-1}]'
def f32(x): return '0x%08x' % struct.unpack('<I', struct.pack('<f', x))[0]
def vmn(tag):
    idx = max(i for i, t in enumerate(VMQ) if t == tag)
    n = len(VMQ) - 1 - idx
    assert n <= 63
    return n
def E(*lines):
    for s in lines: e(s)

SLOT = 32768
R = 131072
HALO = 3 * SLOT
ONES = 3 * SLOT
SC = 2 * SLOT
WS_FHX = 0x60000
WS_HX = 0x600000
WS_FKV = 0x40000
WS_FOA = 0x48000
WS_FD = 0x44000
WS_OA = 0x100000
WS_OB = 0x300000
WS_STAMP = 0x500000
WS_SIZE = 0x800000
CSCALE = 0.25 * 1.4426950408889634
MOFF = float(opt('moff', 100))
VSC = 2.0 ** 40
ONEB = 0x53805380
SPIN = 200000
NT = '' if 'nont' in XP else ' nt'
WNT = ' nt' if 'wnt' in XP else ''

S_XA, S_WQKV, S_WOA, S_XB, S_WQ, S_WKV, S_WOB, S_OUT, S_WS = 8, 12, 16, 20, 24, 28, 32, 36, 40
S_DBG = 44
S_WV = 46
sP = 46
sW = 48
sRB, sHG = 49, 50
sT0, sT1, sT2, sT3 = 51, 52, 53, 54
sC = 55
sStepA, sStepB = 56, 57
sXo, sWo = 58, 59
sKVo = 60
sW4k, sW8k, sW2k = 61, 62, 63
sVM = 64
sOoff, sOutOff, sWoff, sSpin = 66, 67, 68, 69
sOslot, sOslot2 = 70, 71
sFB, sHG128, sCS, sQ = 72, 73, 74, 75
sRot, sK1 = 4, 5
sF0, sF1, sF2 = 3, 6, 7
sST = 76
sNon = 100
sStepH = 31
sXcc = 30

vL16, vW, vWA, vXA = 1, 2, 3, 4
vN, vH, vI = 5, 6, 7
vT0, vT1, vT2, vT3 = 8, 9, 10, 11
vP0, vP1, vXx, vG = 12, 13, 14, 15
vQacc = 16
vFr = 96
(vB0, vB1, vBW, vWl, vIdx, vPa, vQx, vW2, vTw0, vTw1, vTp, vTr0, vTo, vPa2, vZero, vOw,
 vF0, vF1, vF2, vF3, vWA2, vXA2) = range(232, 254)
vNon, vFl = 90, 92
NVGPR = 256

def stamp(i, *modes):
    if STAMPS and STMODE in modes: e(f's_memrealtime {sr(sST+2*i,2)}')
def cstamp(i):
    if STAMPS and STMODE != 'xc': e(f's_memtime {sr(sST+2*i,2)}')
def dma(voff, srd_, soff, off=0, fl='', tag='x'):
    o = f' offset:{off}' if off else ''
    e(f'buffer_load_dwordx4 v{voff}, {sr(srd_,4)}, {soff} offen{o}{fl} lds', tag)
def srd(reg, size): E(f's_mov_b32 s{reg+2}, {hex(size)}', f's_mov_b32 s{reg+3}, 0x20000')
def nonce_load(tag=None): e(f'global_load_dwordx2 {vr(vNon,2)}, v{vZero}, {sr(S_DBG,2)} sc1', tag)
def poll_issue(vaddr, soffs, regs, non=True):
    if non: nonce_load()
    for so, r in zip(soffs, regs):
        e(f'buffer_load_dwordx2 {vr(r,2)}, v{vaddr}, {sr(S_WS,4)}, {so} offen sc1')
def poll_check(tag, vaddr, soffs, regs, issued, xcc=False):
    e(f's_mov_b32 s{sSpin}, {SPIN}')
    if issued is not None: E(f's_waitcnt vmcnt({issued})', f's_branch L_chk_{tag}')
    lab(f'L_rep_{tag}')
    poll_issue(vaddr, soffs, regs)
    e('s_waitcnt vmcnt(0)')
    lab(f'L_chk_{tag}')
    e(f'v_cmp_eq_u32 vcc, 0, v{vNon}')
    if xcc: E(f'v_mov_b32 v{vFl+2}, v{vFl}', f'v_and_b32 v{vFl}, 0xffffffe1, v{vFl}')
    for r in regs:
        E(f'v_cmp_ne_u64 {sr(sP,2)}, {vr(vNon,2)}, {vr(r,2)}', 's_nop 1', f's_or_b64 vcc, vcc, {sr(sP,2)}')
    E(f's_cbranch_scc0 L_nochk_{tag}', f's_sub_u32 s{sSpin}, s{sSpin}, 1', f's_cbranch_scc0 L_rep_{tag}')
    lab(f'L_nochk_{tag}')
def flag_store(tag, soff, first_wait='s_waitcnt vmcnt(0)', xcc=False, soff2=None):
    e(f's_mov_b32 s{sSpin}, {SPIN}')
    e(first_wait)
    lab(f'L_fw_{tag}')
    E(f'v_cmp_eq_u32 vcc, 0, v{vNon}', f's_cbranch_vccz L_fs_{tag}')
    nonce_load()
    E('s_waitcnt vmcnt(0)', f's_sub_u32 s{sSpin}, s{sSpin}, 1', f's_cbranch_scc0 L_fw_{tag}')
    lab(f'L_fs_{tag}')
    if xcc: e(f'v_or_b32 v{vNon}, s{sXcc}, v{vNon}')
    E('s_mov_b64 exec, 1', f'buffer_store_dwordx2 {vr(vNon,2)}, v{vZero}, {sr(S_WS,4)}, {soff} offen sc1')
    if soff2: e(f'buffer_store_dwordx2 {vr(vNon,2)}, v{vZero}, {sr(S_WS,4)}, {soff2} offen sc1')
    e('s_mov_b64 exec, -1')
def maxtree(rs, t0, t1):
    e(f'v_max3_f32 v{t0}, v{rs[0]}, v{rs[1]}, v{rs[2]}')
    e(f'v_max3_f32 v{t1}, v{rs[3]}, v{rs[4]}, v{rs[5]}')
    for k in range(6, len(rs), 4):
        e(f'v_max3_f32 v{t0}, v{t0}, v{rs[k]}, v{rs[k+1]}')
        if k + 3 < len(rs): e(f'v_max3_f32 v{t1}, v{t1}, v{rs[k+2]}, v{rs[k+3]}')
    e(f'v_max_f32 v{t0}, v{t0}, v{t1}')
    e(f'v_mov_b32 v{t1}, v{t0}')
def lane_setup():
    E(f'v_and_b32 v{vN}, 31, v0', f'v_lshrrev_b32 v{vH}, 5, v0', f'v_and_b32 v{vI}, 15, v0',
      f'v_lshrrev_b32 v{vWl}, 2, v{vI}', f'v_lshl_add_u32 v{vWl}, v{vH}, 3, v{vWl}', f'v_lshlrev_b32 v{vWl}, 7, v{vWl}',
      f'v_and_b32 v{vF0}, 8, v{vI}', f'v_lshl_add_u32 v{vWl}, v{vF0}, 3, v{vWl}', f'v_and_b32 v{vF0}, 16, v0',
      f'v_lshl_add_u32 v{vWl}, v{vF0}, 1, v{vWl}', f'v_and_b32 v{vF0}, 3, v0', f'v_lshl_add_u32 v{vWl}, v{vF0}, 3, v{vWl}',
      f's_lshl_b32 s{sW4k}, s{sQ}, 12', f's_add_u32 s{sF0}, s{sW4k}, {R}', f'v_add_u32 v{vQx}, s{sF0}, v{vL16}',
      f'v_mov_b32 v{vIdx}, 0xdddddddd', f's_mov_b32 s{sFB}, 0')
oOf, oW, oAcc = 16, 96, 160
def tail_setup():
    E(f's_mov_b32 s{S_OUT+2}, 0x400000', f's_mov_b32 s{S_OUT+3}, 0x20000',
      f's_lshr_b32 s{sF2}, s{sW}, 2', f's_lshl_b32 s{sF1}, s{sW}, 14',
      f'v_lshlrev_b32 v{vT0}, 9, v{vH}', f'v_sub_u32 v{vTw0}, v{vWl}, v{vT0}', f'v_add_u32 v{vTw0}, s{sF1}, v{vTw0}', f'v_xor_b32 v{vTw1}, 64, v{vTw0}',
      f'v_xor_b32 v{vT0}, v{vH}, v{vI}', f'v_lshlrev_b32 v{vT0}, 4, v{vT0}', f'v_lshl_add_u32 v{vT0}, v{vN}, 8, v{vT0}', f'v_add_u32 v{vTp}, s{sF1}, v{vT0}',
      f'v_lshrrev_b32 v{vT0}, 3, v0', f's_lshl_b32 s{sF1}, s{sQ}, 3', f'v_add_u32 v{vT0}, s{sF1}, v{vT0}', f'v_and_b32 v{vT1}, 7, v0', f'v_lshlrev_b32 v{vT2}, 1, v{vT1}',
      f'v_and_b32 v{vT3}, 15, v{vT0}', f'v_xor_b32 v{vT2}, v{vT2}, v{vT3}', f'v_lshlrev_b32 v{vT2}, 4, v{vT2}', f'v_lshl_add_u32 v{vT2}, v{vT0}, 8, v{vT2}',
      f's_lshl_b32 s{sF1}, s{sF2}, 16', f'v_add_u32 v{vTr0}, s{sF1}, v{vT2}',
      f'v_lshlrev_b32 v{vT1}, 4, v{vT1}', f'v_lshl_add_u32 v{vTo}, v{vT0}, 11, v{vT1}',
      f's_lshl_b32 s{sOutOff}, s{sRB}, 17', f's_lshl_b32 s{sF1}, s{sF2}, 10', f's_add_u32 s{sOutOff}, s{sOutOff}, s{sF1}', f's_add_u32 s{sOutOff}, s{sOutOff}, s{sHG128}',
      f's_lshl_b32 s{sOoff}, s{sRB}, 16', f's_lshl_b32 s{sF1}, s{sQ}, 13', f's_add_u32 s{sOoff}, s{sOoff}, s{sF1}',
      f's_lshl_b32 s{sF1}, s{sF2}, 21', f's_add_u32 s{sOoff}, s{sOoff}, s{sF1}', f's_add_u32 s{sOoff}, s{sOoff}, {hex(WS_OA)}')
assert WS_OB - WS_OA == 1 << 21
def w_reads():
    for s in range(8):
        x = oW + 8 * s
        E(f'ds_read_b64_tr_b16 {vr(x,2)}, v{vTw0} offset:{s*2048}', f'ds_read_b64_tr_b16 {vr(x+2,2)}, v{vTw0} offset:{s*2048+1024}',
          f'ds_read_b64_tr_b16 {vr(x+4,2)}, v{vTw1} offset:{s*2048}', f'ds_read_b64_tr_b16 {vr(x+6,2)}, v{vTw1} offset:{s*2048+1024}')
    for q in range(1, 8): e(f'v_xor_b32 v{80+q}, {(2*q)<<4}, v{vTp}')
    e(f'v_xor_b32 v88, 16, v{vTr0}')
def o_loads(tag=None, gs=(0, 1, 2, 3)):
    if 0 in gs: E(f's_add_u32 s{sT1}, s{sOoff}, 4096', f's_add_u32 s{sT2}, s{sOoff}, 32768', f's_add_u32 s{sT3}, s{sOoff}, {32768+4096}')
    for g, so in enumerate((sOoff, sT1, sT2, sT3)):
        if g not in gs: continue
        for j in range(4):
            o = f' offset:{j*1024}' if j else ''
            e(f'buffer_load_dwordx4 {vr(oOf+16*g+4*j,4)}, v{vL16}, {sr(S_WS,4)}, s{so} offen{o} sc1', tag)

lab(f'{NAME}_kernel')
if STAMPS:
    for i in range(12): e(f's_mov_b32 s{sST+2*i}, 0')
stamp(0, 'all', 'head', 'tail', 'x', 'i0', 'i1', 'j0', 'j1')
for reg, off in ((S_XB,24),(S_WKV,40),(S_WV,48),(S_WQ,32),(S_DBG,72),(S_WS,80),(S_XA,0),(S_WQKV,8),(S_WOA,16),(S_WOB,56),(S_OUT,64)):
    e(f's_load_dwordx2 {sr(reg,2)}, s[0:1], {off}')
e(f's_memrealtime {sr(sNon,2)}')
E('s_cmp_ge_u32 s2, 256', 's_cbranch_scc1 L_end',
  f'v_lshrrev_b32 v{vT0}, 6, v0', 'v_and_b32 v0, 63, v0', f'v_readfirstlane_b32 s{sW}, v{vT0}',
  f's_and_b32 s{sT0}, s2, 7', f's_bfe_u32 s{sRot}, s2, 0x20003', f's_lshl_b32 s{sRB}, s{sT0}, 2',
  f's_add_u32 s{sRB}, s{sRB}, s{sRot}', f's_lshr_b32 s{sHG}, s2, 5',
  f'v_lshlrev_b32 v{vL16}, 4, v0', f'v_lshrrev_b32 v{vG}, 4, v0', f'v_lshrrev_b32 v{vT1}, 3, v0', f'v_and_b32 v{vT2}, 7, v0',
  f'v_xor_b32 v{vT3}, v{vT2}, v{vG}', f'v_lshlrev_b32 v{vT3}, 4, v{vT3}', f'v_lshl_add_u32 v{vP0}, v{vT1}, 10, v{vT3}',
  f'v_xor_b32 v{vP1}, 64, v{vP0}', f'v_add_u32 v{vP1}, {8192-1024}, v{vP1}', f'v_mov_b32 v{vZero}, 0',
  f's_xor_b32 s{sW}, s{sW}, 7', f's_lshl_b32 s{sRot}, s{sRot}, 1', f's_lshl_b32 s{sHG128}, s{sHG}, 7', f's_and_b32 s{sQ}, s{sW}, 3')
srd(S_WS, WS_SIZE)
E(f's_cmp_lt_u32 s{sW}, 4', 's_cbranch_scc1 L_X')

cm('================ Y program (waves 4-7) ================')
aSa, aSb, aCa, aCb, aOa, aOb = 96, 112, 128, 144, 160, 176
aK, aV = 192, 56
vQa, vQb = 208, 212
vKa, vVa = 216, 217
srd(S_XB, 0x200000); srd(S_WKV, 0x4000)
vD0, vD1 = 218, 219
E(f's_lshr_b32 s{sT1}, s{sHG}, 1', f's_add_u32 s{sT1}, s{sT1}, s{sW}', f's_add_u32 s{sT1}, s{sT1}, 1', f's_and_b32 s{sT1}, s{sT1}, 3',
  f's_lshl_b32 s{sT2}, s{sT1}, 11',
  f's_lshl_b32 s{sT3}, s{sRB}, 2', f's_add_u32 s{sT3}, s{sT3}, s{sT1}', f's_lshl_b32 s{sT3}, s{sT3}, 14',
  f'v_add_u32 v{vD0}, s{sT3}, v{vP0}', f'v_add_u32 v{vD1}, s{sT3}, v{vP1}',
  f's_lshl_b32 s{sXo}, s{sRot}, 7',
  f's_cmp_lg_u32 s{sW}, 7', 's_cbranch_scc1 L_Yset')
def x_sub(s, tag):
    E(f's_add_u32 m0, s{sT2}, {s*16384}', f's_and_b32 s{sXo}, s{sXo}, 1023')
    dma(vD0, S_XB, f's{sXo}', 0, NT, tag); dma(vD1, S_XB, f's{sXo}', 1024, NT, tag)
E(f's_bitcmp1_b32 s{sHG}, 0', 's_waitcnt lgkmcnt(0)',
  f's_cselect_b32 s{S_WKV}, s{S_WV}, s{S_WKV}', f's_cselect_b32 s{S_WKV+1}, s{S_WV+1}, s{S_WKV+1}')
for s_ in range(8):
    x_sub(s_, None)
    E(f's_mov_b32 m0, {R+s_*2048}', f's_lshl_b32 s{sWo}, s{sXo}, 4')
    dma(vL16, S_WKV, f's{sWo}', 0, '', None); dma(vL16, S_WKV, f's{sWo}', 1024, '', None)
    if s_ < 7: e(f's_add_u32 s{sXo}, s{sXo}, 128')
e('s_barrier'); NBAR[0] -= 1
stamp(1, 'head')
lab('L_Yset')
lane_setup()
tail_setup()
E(f's_mov_b32 s{sVM}, 0xffff', f's_mov_b32 s{sVM+1}, 0xffff',
  f's_and_b32 s{sT0}, s{sRB}, 28', f's_add_u32 s{sT0}, s{sT0}, s{sQ}', f's_lshl_b32 s{sKVo}, s{sT0}, 12',
  f's_lshl_b32 s{sT0}, s{sT0}, 9', f's_add_u32 s{sT0}, s{sT0}, {hex(WS_FKV)}',
  f'v_and_b32 v{vPa}, 7, v0', f'v_lshlrev_b32 v{vPa}, 6, v{vPa}', f'v_add_u32 v{vPa}, s{sT0}, v{vPa}',
  f's_and_b32 s{sT0}, s{sW}, 1', f's_lshl_b32 s{sT1}, s{sRB}, 1', f's_add_u32 s{sT0}, s{sT0}, s{sT1}', f's_lshl_b32 s{sT0}, s{sT0}, 5',
  f's_lshl_b32 s{sT1}, s{sHG}, 2', f's_add_u32 s{sT0}, s{sT0}, s{sT1}', f's_and_b32 s{sT1}, s{sW}, 2', f's_add_u32 s{sT0}, s{sT0}, s{sT1}',
  f's_lshl_b32 s{sT0}, s{sT0}, 10', f's_add_u32 s{sOslot}, s{sT0}, {hex(WS_OB)}',
  f'v_add_u32 v{vKa}, {R+16384}, v{vL16}', f'v_lshlrev_b32 v{vVa}, 4, v{vI}', f'v_lshl_add_u32 v{vVa}, v{vH}, 8, v{vVa}', f'v_add_u32 v{vVa}, {R+16384}, v{vVa}',
  f'v_and_b32 v{vT1}, 27, v0', f'v_cmp_eq_u32 vcc, 16, v{vT1}', f'v_mov_b32 v{vT1}, {hex(ONEB)}', f's_cmp_eq_u32 s{sW}, 7', f'v_cndmask_b32 v{aV}, 0, v{vT1}, vcc',
  's_cbranch_scc1 L_Y7', 's_waitcnt lgkmcnt(0)')
if opt('cpf', 1):
    e('s_getpc_b64 s[0:1]')
    lab('L_pc')
    E(f's_sub_u32 s0, s0, L_pc-{NAME}_kernel', 's_subb_u32 s1, s1, 0',
      f's_lshr_b32 s{sT0}, s2, 3', f's_mul_i32 s{sT0}, s{sT0}, 3', f's_add_u32 s{sT0}, s{sT0}, s{sQ}', f's_lshl_b32 s{sT0}, s{sT0}, 8',
      f'v_lshlrev_b32 v{vF0}, 7, v0', f'v_add_u32 v{vF0}, s{sT0}, v{vF0}', f'v_min_u32 v{vF0}, L_code_end-{NAME}_kernel-4, v{vF0}', 's_mov_b64 exec, 3',
      f'global_load_dword v{vF1}, v{vF0}, s[0:1]', 's_mov_b64 exec, -1')
e('s_barrier')
for s_ in range(8):
    x_sub(s_, 'xb')
    if s_ < 7: e(f's_add_u32 s{sXo}, s{sXo}, 128')
stamp(1, 'head')
e('s_branch L_Yj')
lab('L_Y7')
E(f'v_lshrrev_b32 v{vT1}, 1, v{vI}', f'v_xor_b32 v{vT1}, v{vT1}, v{vG}', f'v_lshlrev_b32 v{vT1}, 4, v{vT1}', f'v_lshl_add_u32 v{vT1}, v{vI}, 7, v{vT1}',
  f'v_add_u32 v{vT0}, s{sT2}, v{vT1}', f'v_xor_b32 v{vT1}, 64, v{vT0}', f'v_add_u32 v{vT2}, 65536, v{vT0}', f'v_add_u32 v{vT3}, 65536, v{vT1}',
  f'v_lshlrev_b32 v{vF0}, 8, v{vG}', f'v_lshl_add_u32 v{vF0}, v{vI}, 3, v{vF0}', f'v_add_u32 v{vF0}, {R}, v{vF0}',
  f'v_and_b32 v{vF1}, 1, v{vG}', f'v_lshrrev_b32 v{vF2}, 1, v{vG}',
  f's_lshr_b32 s{sT0}, s{sHG}, 2', f's_lshl_b32 s{sC}, s{sRB}, 1', f's_add_u32 s{sT0}, s{sT0}, s{sC}', f's_lshl_b32 s{sT0}, s{sT0}, 11',
  f's_bfe_u32 s{sC}, s{sHG}, 0x10001',
  f's_lshl_b32 s{sT1}, s{sRB}, 3', f's_add_u32 s{sT1}, s{sT1}, s{sHG}', f's_lshl_b32 s{sOslot2}, s{sT1}, 3', f's_add_u32 s{sOslot2}, s{sOslot2}, {hex(WS_FD)}', f's_lshl_b32 s{sT1}, s{sT1}, 6', f's_add_u32 s{sK1}, s{sT1}, {hex(WS_FKV)}')
kd = 16
KF = 88
KF = 96 - 8
def kfr(u): return (96 + 8 * u) if u < 15 else 24
def kv_reads(s):
    a0, a1 = (vT0, vT1) if s < 4 else (vT2, vT3)
    o = (s & 3) * 16384
    x, y = kfr(2*s), kfr(2*s+1)
    E(f's_waitcnt vmcnt({28-4*s})',
      f'ds_read_b128 {vr(x,4)}, v{a0} offset:{o}', f'ds_read_b64_tr_b16 {vr(x+4,2)}, v{vF0} offset:{s*2048}', f'ds_read_b64_tr_b16 {vr(x+6,2)}, v{vF0} offset:{s*2048+128}',
      f'ds_read_b128 {vr(y,4)}, v{a1} offset:{o}', f'ds_read_b64_tr_b16 {vr(y+4,2)}, v{vF0} offset:{s*2048+1024}', f'ds_read_b64_tr_b16 {vr(y+6,2)}, v{vF0} offset:{s*2048+1152}')
for s_ in range(8): kv_reads(s_)
nonce_load()
stamp(2, 'head')
E(f's_bitcmp1_b32 s{sHG}, 0', f's_cselect_b32 s{sWo}, {f32(VSC)}, 1.0', 's_cbranch_scc1 L_kv_v',
  f'v_lshlrev_b32 v{vF1}, 9, v{vF1}', f'v_lshl_add_u32 v{vF1}, v{vF2}, 3, v{vF1}', f's_lshl_b32 s{sC}, s{sC}, 8')
def kv_chain(swap):
    for u in range(16):
        x = kfr(u)
        if u == 0: e('s_waitcnt lgkmcnt(12)')
        if u == 12: e('s_waitcnt lgkmcnt(0)')
        a, b = (vr(x+4,4), vr(x,4))
        if swap: a, b = b, a
        d = kd + 4 * (u & 1)
        e(f'v_mfma_f32_16x16x32_bf16 {vr(d,4)}, {a}, {b}, {"0" if u < 2 else vr(d,4)}')
kv_chain(False)
e('s_branch L_kv_j')
lab('L_kv_v')
E(f'v_lshlrev_b32 v{vF1}, 3, v{vF1}', f'v_lshl_add_u32 v{vF1}, v{vF2}, 8, v{vF1}', f's_lshl_b32 s{sC}, s{sC}, 9', f's_add_u32 s{sC}, s{sC}, 1024')
kv_chain(True)
lab('L_kv_j')
E(f'v_lshl_add_u32 v{vF1}, v{vI}, 4, v{vF1}', f's_add_u32 s{sT0}, s{sT0}, s{sC}', 's_nop 5',
  f'v_pk_add_f32 {vr(kd,2)}, {vr(kd,2)}, {vr(kd+4,2)}', f'v_pk_add_f32 {vr(kd+2,2)}, {vr(kd+2,2)}, {vr(kd+6,2)}',
  f'v_mul_f32 v{kd}, s{sWo}, v{kd}', f'v_mul_f32 v{kd+1}, s{sWo}, v{kd+1}', f'v_mul_f32 v{kd+2}, s{sWo}, v{kd+2}', f'v_mul_f32 v{kd+3}, s{sWo}, v{kd+3}',
  f'v_cvt_pk_bf16_f32 v{vF2}, v{kd}, v{kd+1}', f'v_cvt_pk_bf16_f32 v{vF3}, v{kd+2}, v{kd+3}',
  f'buffer_store_dwordx2 {vr(vF2,2)}, v{vF1}, {sr(S_WS,4)}, s{sT0} offen sc1')
stamp(3, 'head')
lab('L_Yj')
for i in range(1, 32): e(f'v_mov_b32 v{aV+i}, v{aV}')
for j in range(32): e(f'v_mov_b32 v{aOa+j}, 0')
E('s_waitcnt vmcnt(0)', f's_cmp_lg_u32 s{sW}, 7', 's_cbranch_scc1 L_flag_done')
flag_store('kv', f's{sK1}')
stamp(4, 'head')
lab('L_flag_done')
e('s_barrier')
stamp(5, 'head'); stamp(1, 'all', 'x')
EA = opt('ea', 20)
if EA: e('s_barrier')
if opt('psl', 0): e(f's_sleep {opt("psl", 0)}')
poll_check('kv', vPa, ['0'], [vFl], None)
stamp(6, 'head')
E(f's_add_u32 m0, s{sW4k}, {R+16384}', f's_mov_b32 s{sC}, 0')
for j in range(4): dma(vL16, S_WS, f's{sKVo}', 1024*j, ' sc1', None)
E(f's_setprio {opt("yp", 1)}', f's_cmp_lg_u32 s{sW}, 7', 's_waitcnt vmcnt(0)', 's_cbranch_scc1 L_nodense', 's_mov_b64 exec, 1',
  f'buffer_store_dwordx2 {vr(vNon,2)}, v{vZero}, {sr(S_WS,4)}, s{sOslot2} offen sc1', 's_mov_b64 exec, -1')
lab('L_nodense')
stamp(7, 'head'); stamp(2, 'all', 'x')
e('s_barrier')
stamp(8, 'head'); stamp(3, 'all', 'x'); stamp(1, 'tail')
cstamp(10)
E(f'ds_read_b128 {vr(vQa,4)}, v{vQx}', f'ds_read_b128 {vr(vQb,4)}, v{vQx} offset:1024',
  f'ds_read_b128 {vr(aK,4)}, v{vKa}', f'ds_read_b128 {vr(aK+4,4)}, v{vKa} offset:2048', f's_mov_b64 exec, {sr(sVM,2)}')
for j in range(4): e(f'ds_read_b128 {vr(aV+4*j,4)}, v{vVa} offset:{(j>>1)*2048+1024+(j&1)*512}')
E('s_mov_b64 exec, -1', 's_waitcnt lgkmcnt(5)',
  f'v_mfma_f32_32x32x16_bf16 {vr(aSa,16)}, {vr(aK,4)}, {vr(vQa,4)}, 0',
  f'v_mfma_f32_32x32x16_bf16 {vr(aSb,16)}, {vr(aK,4)}, {vr(vQb,4)}, 0', 's_nop 10')
maxtree([aSa+i for i in range(16)], vT0, vT1)
maxtree([aSb+i for i in range(16)], vT2, vT3)
E(f'v_permlane32_swap_b32 v{vT0}, v{vT1}', f'v_max_f32 v{vT0}, v{vT0}, v{vT1}', f'v_permlane32_swap_b32 v{vT2}, v{vT3}',
  f'v_sub_f32 v{aCa}, {f32(-MOFF)}, v{vT0}', f'v_max_f32 v{vT2}, v{vT2}, v{vT3}')
for i in range(1, 16): e(f'v_mov_b32 v{aCa+i}, v{aCa}')
E(f'v_sub_f32 v{aCb}, {f32(-MOFF)}, v{vT2}', f'v_mov_b32 v{aCb+1}, v{aCb}',
  f'v_mfma_f32_32x32x16_bf16 {vr(aSa,16)}, {vr(aK,4)}, {vr(vQa,4)}, {vr(aCa,16)}')
for i in range(2, 16): e(f'v_mov_b32 v{aCb+i}, v{aCb}')
E('s_waitcnt lgkmcnt(0)', f'v_exp_f32 v{aSa}, v{aSa}', f'v_exp_f32 v{aSa+1}, v{aSa+1}', 's_branch L_att_entry')

def dtile(par, ld_off, entry=False):
    K = aK + 8 * par; Kn = aK + 8 * (par ^ 1)
    V = aV + 16 * par; Vn = aV + 16 * (par ^ 1)
    def ex(S, a, b):
        for i in range(a, b): e(f'v_exp_f32 v{S+i}, v{S+i}')
    def pv(O, Vr, P): e(f'v_smfmac_f32_32x32x32_bf16 {vr(O,16)}, {vr(Vr,4)}, {vr(P,8)}, v{vIdx}')
    def qk(S, Kr, Q, C): e(f'v_mfma_f32_32x32x16_bf16 {vr(S,16)}, {vr(Kr,4)}, {vr(Q,4)}, {vr(C,16)}')
    ex(aSa, 0, 2); pv(aOb, Vn+12, aSb+8)
    if entry: lab('L_att_entry')
    e(f's_mov_b64 exec, {sr(sVM,2)}')
    for j in range(4): e(f'ds_read_b128 {vr(Vn+4*j,4)}, v{vVa} offset:{ld_off+(j>>1)*2048+1024+(j&1)*512}')
    e('s_mov_b64 exec, -1')
    ex(aSa, 2, 5); qk(aSb, K, vQb, aCb)
    E(f'ds_read_b128 {vr(Kn,4)}, v{vKa} offset:{ld_off}', f'ds_read_b128 {vr(Kn+4,4)}, v{vKa} offset:{ld_off+2048}')
    ex(aSa, 5, 10); pv(aOa, V, aSa); ex(aSa, 10, 16)
    ex(aSb, 0, 2); pv(aOa, V+4, aSa+8); ex(aSb, 2, 5); qk(aSa, K+4, vQa, aCa); ex(aSb, 5, 10); pv(aOb, V, aSb); ex(aSb, 10, 16)
    ex(aSa, 0, 2); pv(aOb, V+4, aSb+8); ex(aSa, 2, 5); qk(aSb, K+4, vQb, aCb); ex(aSa, 5, 10); pv(aOa, V+8, aSa); ex(aSa, 10, 16)
    ex(aSb, 0, 2); pv(aOa, V+12, aSa+8); e('s_waitcnt lgkmcnt(0)'); ex(aSb, 2, 5); qk(aSa, Kn, vQa, aCa); ex(aSb, 5, 10); pv(aOb, V+8, aSb); ex(aSb, 10, 16)

e('.p2align 6')
lab('L_att_top')
E(f'v_xor_b32 v{vKa}, 16384, v{vKa}', f'v_xor_b32 v{vVa}, 16384, v{vVa}', f's_cmp_eq_u32 s{sC}, 8', 's_barrier')
dtile(1, 0)
e('s_cbranch_scc1 L_att_done')
dtile(0, 4096, entry=True)
e('s_barrier')
dtile(1, 8192)
dtile(0, 12288)
E(f's_add_u32 s{sC}, s{sC}, 1', 's_branch L_att_top')
NBAR_Y = NBAR[0] - 2 + 16
lab('L_att_done')
E(f'ds_read_b32 v{vFl}, v{vKa}', f'v_smfmac_f32_32x32x32_bf16 {vr(aOb,16)}, {vr(aV+16+12,4)}, {vr(aSb+8,8)}, v{vIdx}')
stamp(4, 'all'); stamp(2, 'tail')
cstamp(11)
def chk(O, t1, t2):
    E(f'v_add_f32 v{t1}, abs(v{O}), abs(v{O+1})', f'v_add_f32 v{t2}, abs(v{O+2}), abs(v{O+3})', f'v_add_f32 v{t1}, v{t1}, abs(v{O+4})', f'v_add_f32 v{t2}, v{t2}, abs(v{O+5})',
      f'v_add_f32 v{t1}, v{t1}, abs(v{O+6})', f'v_add_f32 v{t2}, v{t2}, abs(v{O+7})', f'v_add_f32 v{t1}, v{t1}, v{O+8}', f'v_add_f32 v{t1}, v{t1}, v{t2}')
chk(aOa, vT0, vT1)
E(f's_mov_b32 s{sT0}, 0xfffffffe', f'v_mov_b32 v{vT1}, 0x7e000000', 's_nop 1')
chk(aOb, vT2, vT3)
E(f'v_add_f32 v{vT0}, v{vT0}, v{vT2}', f'v_cmp_nlt_f32 vcc, v{vT0}, v{vT1}', 's_cbranch_vccnz L_fallback')
lab('L_att_ok')
E(f'v_rcp_f32 v{vT0}, v{aOa+8}', f'v_rcp_f32 v{vT2}, v{aOb+8}', 's_waitcnt lgkmcnt(0)', f'v_readfirstlane_b32 s{sT1}, v{vFl}')
for O, t, d in ((aOa, vT0, 224), (aOb, vT2, 228)):
    for i in range(0, 8, 2): e(f'v_pk_mul_f32 {vr(O+i,2)}, {vr(O+i,2)}, {vr(t,2)} op_sel_hi:[1,0]')
    for i in range(4): e(f'v_cvt_pk_bf16_f32 v{d+i}, v{O+2*i}, v{O+2*i+1}')
    for i in range(4): e(f'v_min_u32 v{d+i}, s{sT0}, v{d+i}')
E(f's_cmp_eq_u32 s{sT1}, 1', 's_cbranch_scc1 L_st_fast',
  f'buffer_store_dwordx4 {vr(224,4)}, v{vL16}, {sr(S_WS,4)}, s{sOslot} offen sc1',
  f'buffer_store_dwordx4 {vr(228,4)}, v{vL16}, {sr(S_WS,4)}, s{sOslot} offen offset:1024 sc1', 's_branch L_st_j')
lab('L_st_fast')
E(f'buffer_store_dwordx4 {vr(224,4)}, v{vL16}, {sr(S_WS,4)}, s{sOslot} offen',
  f'buffer_store_dwordx4 {vr(228,4)}, v{vL16}, {sr(S_WS,4)}, s{sOslot} offen offset:1024')
lab('L_st_j')
stamp(3, 'tail')
w_reads()
e(f's_mov_b32 s{sSpin}, {SPIN}')
if opt('tslp', 0): e(f's_sleep {opt("tslp", 0)}')
stamp(4, 'tail')
NPRE = opt('npre', 2)
o_loads(None, range(NPRE))
e(f's_mov_b32 s{sC}, 2')

cm('================ tail: out projections (X: branch A, Y: branch B) ================')
lab('L_tail_go')
e('s_waitcnt lgkmcnt(0)')
for g in range(4):
    rt = g >> 1
    b_ = oOf + 16 * g
    e(f's_waitcnt vmcnt({4*(min(4, NPRE+g)-g-1)})')
    lab(f'L_tg{g}')
    E(f'v_max3_u32 v{vT0}, v{b_}, v{b_+1}, v{b_+2}', f'v_max3_u32 v{vT1}, v{b_+3}, v{b_+4}, v{b_+5}')
    for k in range(6, 16, 2):
        t = vT0 if (k >> 1) & 1 else vT1
        e(f'v_max3_u32 v{t}, v{t}, v{b_+k}, v{b_+k+1}')
    E(f'v_max_u32 v{vT0}, v{vT0}, v{vT1}', f'v_cmp_eq_u32 vcc, -1, v{vT0}', f's_cbranch_vccnz L_tr{g}')
    lab(f'L_tk{g}')
    if g == 0: stamp(5, 'tail', 'all')
    if NPRE + g < 4: o_loads(None, [NPRE + g])
    if g == 2: e('s_barrier')
    for s_ in range(4*(g&1), 4*(g&1)+4):
        for ct in range(2):
            a_ = oAcc + 32 * rt + 16 * ct
            e(f'v_mfma_f32_32x32x16_bf16 {vr(a_,16)}, {vr(oW+8*s_+4*ct,4)}, {vr(oOf+32*rt+4*s_,4)}, {"0" if s_ == 0 else vr(a_,16)}')
            m_ = 2 * s_ + ct
            if g == 2 and m_ >= 2 or g == 3 and m_ < 10:
                q = m_ - 2
                e(f'ds_write_b128 v{80+q if q else vTp}, {vr(oAcc+4*q,4)}')
lab('L_tail_wr')
e('s_nop 10')
stamp(6, 'tail')
for q in range(8):
    e(f'ds_write_b128 v{80+q if q else vTp}, {vr(oAcc+32+4*q,4)} offset:8192')
E('s_waitcnt lgkmcnt(0)', 's_barrier')
stamp(7, 'tail')
lab('L_red')
tR = 96
for kq in range(4):
    E(f'ds_read_b128 {vr(tR+8*kq,4)}, v{vTr0} offset:{kq*16384}', f'ds_read_b128 {vr(tR+8*kq+4,4)}, v88 offset:{kq*16384}')
e('s_waitcnt lgkmcnt(4)')
for i in range(0, 8, 2): e(f'v_pk_add_f32 {vr(tR+i,2)}, {vr(tR+i,2)}, {vr(tR+8+i,2)}')
e('s_waitcnt lgkmcnt(0)')
for a_, b_ in ((16, 24), (0, 16)):
    for i in range(0, 8, 2): e(f'v_pk_add_f32 {vr(tR+a_+i,2)}, {vr(tR+a_+i,2)}, {vr(tR+b_+i,2)}')
for i in range(4): e(f'v_cvt_pk_bf16_f32 v{16+i}, v{tR+2*i}, v{tR+2*i+1}')
e(f'buffer_store_dwordx4 {vr(16,4)}, v{vTo}, {sr(S_OUT,4)}, s{sOutOff} offen{opt("of", "_nt").replace("_", " ")}')
E(f's_cmp_eq_u32 s{sC}, 2', 's_cbranch_scc1 L_fin',
  f's_add_u32 s{sC}, s{sC}, 1', f's_cmp_eq_u32 s{sC}, 1', f's_cselect_b32 s{sT0}, 1, 8', f's_cselect_b32 s{sT1}, 64, 1', f's_lshl_b32 s{sT1}, s{sT1}, 10', f's_lshl_b32 s{sT0}, s{sT0}, 13',
  f'v_add_u32 v{vTr0}, s{sT0}, v{vTr0}', f'v_add_u32 v88, s{sT0}, v88', f's_add_u32 s{sOutOff}, s{sOutOff}, s{sT1}',
  f's_cmp_eq_u32 s{sC}, 1', 's_cbranch_scc1 L_red', 's_barrier', 's_branch L_red')
lab('L_fin')
if STAMPS:
    stamp(8, 'tail')
    e('s_waitcnt vmcnt(0)')
    stamp(9, 'tail', 'head'); stamp(6, 'all')
    E('s_waitcnt lgkmcnt(0)', 's_nop 1')
    ECHO = [a[7:] for a in sys.argv if a.startswith('--echo=')]
    if ECHO:
        a_, b_, mul = map(int, ECHO[0].split(','))
        E(f's_sub_u32 s{sT0}, s{sST+2*b_}, s{sST+2*a_}', f's_mul_i32 s{sT0}, s{sT0}, {mul}')
        lab('L_echo')
        E(f's_memrealtime {sr(4,2)}', 's_waitcnt lgkmcnt(0)', f's_sub_u32 s{sT1}, s4, s{sST+12}', f's_cmp_lt_u32 s{sT1}, s{sT0}', 's_cbranch_scc1 L_echo')
    for i in range(12): e(f'v_mov_b32 v{16+i}, s{sST+2*i}')
    E(f's_getreg_b32 s{sT0}, hwreg(HW_REG_XCC_ID)', f'v_mov_b32 v28, s{sT0}', f'v_mov_b32 v29, s{sSpin}', f'v_mov_b32 v30, s{sFB}', 'v_mov_b32 v31, 0',
      f's_lshl_b32 s{sT0}, s2, 3', f's_add_u32 s{sT0}, s{sT0}, s{sW}', f's_lshl_b32 s{sT0}, s{sT0}, 6', f's_add_u32 s{sT0}, s{sT0}, {hex(WS_STAMP)}',
      'v_mov_b32 v0, 0', 's_mov_b64 exec, 1')
    for i in range(4):
        e(f'buffer_store_dwordx4 {vr(16+4*i,4)}, v0, {sr(S_WS,4)}, s{sT0} offen offset:{16*i}')
lab('L_end')
e('s_endpgm')

cm('================ X program (waves 0-3) ================')
VMQ[:] = []; NBAR[0] = 0
xAcc, xFr, xMask = 96, 160, 32
xa, xb, xw = 56, 60, 64
(xFw, xLq, xLv, xLvp, xOne) = (72, 73, 74, 75, 76)
XV, XM, PACE = opt('xv', 2), opt('xm', 0), opt('pace', 2)
e('.p2align 6')
lab('L_X')
srd(S_WQ, 0x80000); srd(S_XA, 0x200000); srd(S_WQKV, 0x180000)
E(f's_or_b32 s{sT1}, s2, s{sW}', 's_cbranch_scc1 L_nonon', 's_waitcnt lgkmcnt(0)',
  f's_lshl_b64 {sr(sNon,2)}, {sr(sNon,2)}, 5', f's_or_b32 s{sNon}, s{sNon}, 1', f'v_mov_b32 v{vNon}, s{sNon}', f'v_mov_b32 v{vNon+1}, s{sNon+1}', 's_mov_b64 exec, 1',
  f'global_store_dwordx2 v{vZero}, {vr(vNon,2)}, {sr(S_DBG,2)} sc1', 's_mov_b64 exec, -1')
lab('L_nonon')
E(f'v_and_b32 v{vT3}, 1, v{vG}', f'v_lshlrev_b32 v{vT3}, 2, v{vT3}', f'v_xor_b32 v{vT3}, v{vT3}, v{vT2}', f'v_lshlrev_b32 v{vT3}, 4, v{vT3}',
  f'v_lshl_add_u32 v{vW}, v{vT1}, 10, v{vT3}', f'v_add_u32 v{vW2}, {8192-1024}, v{vW}',
  f'v_mul_u32_u24 v{vWA}, 3072, v{vT1}', f'v_add_u32 v{vWA}, v{vWA}, v{vT3}')
lane_setup()
SH4 = ['0', f's{sVM}', f's{sVM+1}', f's{sC}']; RG4 = [82, 84, 86, 88]
qx, qw = 56, 64
E(f'v_bfe_u32 v{vXx}, v{vN}, 1, 3', f'v_xor_b32 v{vXx}, v{vXx}, v{vH}', f'v_lshlrev_b32 v{vXx}, 4, v{vXx}',
  f's_and_b32 s{sF0}, s{sW}, 1', f's_lshl_b32 s{sF0}, s{sF0}, 12', f'v_lshl_add_u32 v{qx}, v{vN}, 7, v{vXx}', f'v_add_u32 v{qx}, s{sF0}, v{qx}',
  f'v_xor_b32 v{qx+1}, 32, v{qx}', f'v_xor_b32 v{qx+2}, 64, v{qx}', f'v_xor_b32 v{qx+3}, 96, v{qx}',
  f's_and_b32 s{sF2}, s{sW}, 2', f's_lshl_b32 s{sF2}, s{sF2}, 5', f'v_xor_b32 v{qw}, s{sF2}, v{vWl}', f'v_add_u32 v{qw}, 8192, v{qw}', f'v_add_u32 v{qw+1}, 65536, v{qw}',
  f's_mov_b32 s{sCS}, {f32(CSCALE)}')
for j in range(4): e(f'v_add_u32 v{qx+4+j}, 65536, v{qx+j}')
if opt('arot', 0): E(f's_add_u32 s{sXo}, s{sRot}, s{sHG}', f's_and_b32 s{sXo}, s{sXo}, 7', f's_lshl_b32 s{sXo}, s{sXo}, 7')
else: e(f's_mov_b32 s{sXo}, 0')
E(f's_lshl_b32 s{sW2k}, s{sW}, 11',
  f's_lshl_b32 s{sT3}, s{sRB}, 2', f's_add_u32 s{sT0}, s{sT3}, s{sW}', f's_lshl_b32 s{sT0}, s{sT0}, 14', f'v_add_u32 v{vXA}, s{sT0}, v{vP0}', f'v_add_u32 v{vXA2}, s{sT0}, v{vP1}',
  f's_mul_i32 s{sT0}, s{sW}, {16*3072}', f's_add_u32 s{sT0}, s{sT0}, s{sHG128}', f'v_add_u32 v{vWA}, s{sT0}, v{vWA}', f'v_add_u32 v{vWA2}, {8*3072-1024}, v{vWA}')
def w64(srd_, lds_base_sgpr, lds, tag):
    for hf in range(2):
        E(f's_add_u32 m0, s{lds_base_sgpr}, {lds+hf*4096}', f's_add_u32 s{sT1}, s{sT0}, {2*7168}')
        dma(vW, srd_, f's{sT0}', 0, '', tag); dma(vW2, srd_, f's{sT0}', 1024, '', tag)
        dma(vW, srd_, f's{sT1}', 2048, '', tag); dma(vW2, srd_, f's{sT1}', 3072, '', tag)
        if hf == 0: e(f's_add_u32 s{sT0}, s{sT0}, 32768')
def halo_fill():
    E(f's_lshl_b32 s{sT3}, s{sRB}, 16', f's_sub_u32 s{sT2}, s{sT3}, 16384', f's_max_i32 s{sT2}, s{sT2}, 0',
      f's_lshl_b32 s{sT0}, s{sW}, 7', f's_add_u32 s{sT0}, s{sT0}, s{sStepH}')
    for j in range(2):
        E(f's_and_b32 s{sT0}, s{sT0}, 1023', f's_add_u32 m0, s{sW2k}, {HALO+j*8192}', f's_add_u32 s{sT1}, s{sT2}, s{sT0}')
        dma(vP0, S_XA, f's{sT1}', 0, '', 'halo'); dma(vP1, S_XA, f's{sT1}', 1024, '', 'halo')
        if j == 0: e(f's_add_u32 s{sT0}, s{sT0}, 512')
def a_fill(c):
    slot = (c & 3) * SLOT
    t = f'A{c}'
    E(f's_add_u32 m0, s{sW2k}, {slot}', f's_mul_i32 s{sWo}, s{sXo}, 1536')
    dma(vXA, S_XA, f's{sXo}', 0, NT, t); dma(vXA2, S_XA, f's{sXo}', 1024, NT, t)
    for ty in range(3):
        E(f's_add_u32 m0, s{sW2k}, {slot+8192+ty*8192}', [f's_add_u32 s{sXo}, s{sXo}, 128', f's_add_u32 s{sWo}, s{sWo}, 1024', f's_add_u32 s{sWo}, s{sWo}, 1024'][ty])
        dma(vWA, S_WQKV, f's{sWo}', 0, WNT, t); dma(vWA2, S_WQKV, f's{sWo}', 1024, WNT, t)
    e(f's_and_b32 s{sXo}, s{sXo}, 1023')
def kv_fill(k):
    E(f's_add_u32 m0, s{sW4k}, {R+((k&1)^1)*16384}', f's_and_b32 s{sKVo}, s{sKVo}, 0x1ffff')
    for j in range(4): dma(vL16, S_WS, f's{sKVo}', 1024*j, ' sc1', f'KV{k}')
    e(f's_add_u32 s{sKVo}, s{sKVo}, 16384')
def wo_fill(srd_, half, lds, tag):
    e(f's_add_u32 s{sT0}, s{sWoff}, {half*256*1024}')
    w64(srd_, sW8k, lds, tag)
def masks():
    E(f'v_lshlrev_b32 v{vT0}, 2, v{vH}', f'v_sub_u32 v{vT0}, v{vN}, v{vT0}', f'v_add_u32 v{vT0}, 18, v{vT0}',
      f'v_mov_b32 v{vT2}, 0x5555', f'v_mov_b32 v{vT3}, 0', f'v_lshlrev_b64 {vr(vT2,2)}, v{vT0}, {vr(vT2,2)}',
      f'v_not_b32 v{vT2}, v{vT2}', f'v_not_b32 v{vT3}, v{vT3}', f's_mov_b32 s{sF1}, 0xff800000')
    for r in range(16): E(f'v_bfe_i32 v{xMask+r}, v{vT3}, {8*(r>>2)+(r&3)}, 1', f'v_and_b32 v{xMask+r}, s{sF1}, v{xMask+r}')
    for r in range(8, 16): E(f'v_bfe_i32 v{xMask+8+r}, v{vT2}, {8*(r>>2)+(r&3)}, 1', f'v_and_b32 v{xMask+8+r}, s{sF1}, v{xMask+8+r}')
def local_setup():
    E(f's_and_b32 s{sT0}, s{sW}, 1', f's_lshl_b32 s{sT0}, s{sT0}, 12', f's_lshr_b32 s{sT1}, s{sW}, 1', f's_lshl_b32 s{sT2}, s{sT1}, 11', f's_add_u32 s{sT0}, s{sT0}, s{sT2}', f's_add_u32 s{sT0}, s{sT0}, {SC}', f'v_add_u32 v{xFw}, s{sT0}, v{vL16}',
      f's_lshl_b32 s{sT0}, s{sRB}, 3', f's_add_u32 s{sT0}, s{sT0}, s{sHG}', f's_lshl_b32 s{sStepA}, s{sT0}, 13', f's_add_u32 s{sStepA}, s{sStepA}, s{sT2}', f's_add_u32 s{sStepA}, s{sStepA}, {hex(WS_HX)}',
      f's_lshl_b32 s{sStepB}, s{sT0}, 1', f's_add_u32 s{sStepB}, s{sStepB}, s{sT1}', f's_lshl_b32 s{sStepB}, s{sStepB}, 6', f's_add_u32 s{sStepB}, s{sStepB}, {hex(WS_FHX)}',
      f's_cmp_eq_u32 s{sRB}, 0', f's_cselect_b32 s{sT2}, 0, 8', f's_sub_u32 s{sT0}, s{sT0}, s{sT2}', f's_lshl_b32 s{sT2}, s{sT2}, 7', f's_sub_u32 s{sT2}, s{sStepB}, s{sT2}', f'v_mov_b32 v{vB1}, s{sT2}',
      f's_lshl_b32 s{sStepH}, s{sT0}, 13', f's_lshl_b32 s{sT2}, s{sW}, 10', f's_add_u32 s{sStepH}, s{sStepH}, s{sT2}', f's_add_u32 s{sStepH}, s{sStepH}, {hex(WS_HX)}',
      f'v_mov_b32 v{xOne}, 0x3f803f80', f'v_mov_b32 v{xOne+1}, 0x3f803f80',
      f's_lshl_b32 s{sT1}, s{sW}, 10', f's_add_u32 s{sT2}, s{sT1}, {ONES}', f's_add_u32 s{sT1}, s{sT1}, {SC}', f'v_add_u32 v{xLq}, s{sT1}, v{vL16}',
      f'v_and_b32 v{vT0}, 1, v0', f'v_lshlrev_b32 v{vT0}, 5, v{vT0}', f'v_lshl_add_u32 v{vT0}, v{vH}, 3, v{vT0}',
      f'v_lshrrev_b32 v{vT1}, 2, v{vI}', f'v_add_u32 v{vT0}, v{vT0}, v{vT1}', f'v_lshlrev_b32 v{vT0}, 4, v{vT0}', f'v_and_b32 v{vT1}, 2, v0', f'v_lshl_add_u32 v{vT0}, v{vT1}, 2, v{vT0}',
      f'v_add_u32 v{xLv}, s{sT1}, v{vT0}', f'v_mov_b32 v{xLvp}, s{sT2}', f'v_lshl_add_u32 v{vOw}, v0, 3, v{xLvp}',
      f'v_and_b32 v{vT0}, 16, v0', f'v_cmp_ne_u32 vcc, 0, v{vT0}',
      f'v_add_u32 v78, {4*4096}, v{xLv}', f'v_add_u32 v79, {5*4096}, v{xLv}', f'v_add_u32 v80, {7*4096}, v{xLv}',
      f'v_cndmask_b32 v78, v78, v{xLvp}, vcc', f'v_cndmask_b32 v79, v79, v{xLvp}, vcc', f'v_cndmask_b32 v80, v80, v{xLvp}, vcc',
      f's_lshl_b32 s{sT0}, s{sRB}, 6', f's_lshl_b32 s{sT1}, s{sHG}, 2', f's_add_u32 s{sT1}, s{sT1}, s{sW}', f's_add_u32 s{sT0}, s{sT0}, s{sT1}',
      f's_lshl_b32 s{sT0}, s{sT0}, 10', f's_add_u32 s{sOslot}, s{sT0}, {hex(WS_OA)}', f's_add_u32 s{sOslot2}, s{sOslot}, 32768',
      f's_lshl_b32 s{sT0}, s{sRB}, 5', f's_add_u32 s{sT0}, s{sT0}, s{sT1}', f's_lshl_b32 s{sT0}, s{sT0}, 6', f's_add_u32 s{sK1}, s{sT0}, {hex(WS_FOA)}')
    for i in range(4): e(f'v_mov_b32 v{vF0+i}, -1')
def sentinels():
    E(f's_add_u32 s{sT0}, s{sOslot}, {hex(WS_OB-WS_OA)}', f's_add_u32 s{sT1}, s{sT0}, 32768')
    e(f'buffer_store_dwordx4 {vr(vF0,4)}, v{vL16}, {sr(S_WS,4)}, s{sT0} offen sc1', 'sent')
    e(f'buffer_store_dwordx4 {vr(vF0,4)}, v{vL16}, {sr(S_WS,4)}, s{sT1} offen sc1', 'sent')
    nonce_load('sent')
def setup_a():
    E(f's_cmp_eq_u32 s{sW}, 3', f's_cselect_b32 s{sT1}, 15, 31', f'v_and_b32 v{vT0}, s{sT1}, v{vN}', f'v_lshl_add_u32 v{xa}, v{vT0}, 7, v{vXx}',
      f's_cselect_b32 s{sT1}, {HALO}, 0', f'v_add_u32 v{xa}, s{sT1}, v{xa}', f's_cselect_b32 s{sT1}, 0, 4096', f'v_add_u32 v{xb}, s{sT1}, v{xa}',
      f's_cselect_b32 s{sStepA}, 1, 16', f's_cselect_b32 s{sStepB}, 1, -32', f's_cselect_b32 s{sT1}, 1, s{sW}', f's_cselect_b32 s{sT2}, 2, s{sW}',
      f's_lshl_b32 s{sStepA}, s{sStepA}, 11', f's_lshl_b32 s{sStepB}, s{sStepB}, 11',
      f's_lshl_b32 s{sT1}, s{sT1}, 13', f's_add_u32 s{sT1}, s{sT1}, 8192', f'v_add_u32 v{xw}, s{sT1}, v{vWl}', f'v_xor_b32 v{xw+1}, 64, v{xw}',
      f's_lshl_b32 s{sT2}, s{sT2}, 13', f's_add_u32 s{sT2}, s{sT2}, 8192', f'v_add_u32 v{xw+2}, s{sT2}, v{vWl}', f'v_xor_b32 v{xw+3}, 64, v{xw+2}')
    for j in range(4): e(f'v_add_u32 v{xw+4+j}, 65536, v{xw+j}')
    for s_ in range(1, 4): E(f'v_xor_b32 v{xa+s_}, {32*s_}, v{xa}', f'v_xor_b32 v{xb+s_}, {32*s_}, v{xb}')
def setup_b():
    E(f's_lshr_b32 s{sT1}, s{sRB}, 2', f's_lshl_b32 s{sKVo}, s{sT1}, 14', f's_add_u32 s{sKVo}, s{sKVo}, s{sW4k}', f's_add_u32 s{sKVo}, s{sKVo}, 16384',
      f'v_lshlrev_b32 v{vPa}, 3, v0', f'v_add_u32 v{vPa}, {hex(WS_FD)}, v{vPa}',
      f'v_lshlrev_b32 v{vPa2}, 6, v{vN}', f's_lshl_b32 s{sT2}, s{sRB}, 11', f's_add_u32 s{sT2}, s{sT2}, {hex(WS_FOA)}', f'v_add_u32 v{vPa2}, s{sT2}, v{vPa2}',
      f's_add_u32 s{sT2}, s{sT1}, 1', f's_lshl_b32 s{sT2}, s{sT2}, 5', f'v_add_u32 v{vB0}, s{sT2}, v0', f'v_and_b32 v{vB0}, 255, v{vB0}',
      f'v_lshlrev_b32 v{vB0}, 6, v{vB0}', f'v_add_u32 v{vB0}, {hex(WS_FKV)}, v{vB0}',
      f's_mov_b32 s{sVM}, 512', f's_mov_b32 s{sVM+1}, 1024', f's_mov_b32 s{sC}, 1536',
      f's_lshl_b32 s{sW8k}, s{sW}, 13', f's_lshl_b32 s{sWoff}, s{sW}, 16', f's_add_u32 s{sWoff}, s{sWoff}, s{sHG128}')
    srd(S_WOA, 0x80000); srd(S_WOB, 0x80000)
    E(f's_getreg_b32 s{sXcc}, hwreg(HW_REG_XCC_ID, 0, 4)', f's_lshl_b32 s{sXcc}, s{sXcc}, 1')
setup_b()
E(f's_add_u32 s{sT0}, s{sW}, s{sRot}', f's_lshl_b32 s{sT0}, s{sT0}, 16', f's_add_u32 s{sT0}, s{sT0}, s{sHG128}', f's_lshl_b32 s{sT2}, s{sW}, 14',
  f's_and_b32 s{sT0}, s{sT0}, 0x7ffff', 's_waitcnt lgkmcnt(0)', 's_barrier')
w64(S_WQ, sT2, 8192, 'B')
E(f's_add_u32 s{sT0}, s{sT0}, {4*65536-32768}', f's_and_b32 s{sT0}, s{sT0}, 0x7ffff')
w64(S_WQ, sT2, 65536+8192, 'B')
stamp(1, 'head')
local_setup(); tail_setup(); masks()
for j in range(16): e(f'v_mov_b32 v{208+j}, 0')
E('s_waitcnt vmcnt(0)', 's_barrier')
stamp(5, 'head'); stamp(1, 'all', 'x')
def qrd(u):
    sc, st = u >> 2, u & 3
    x = vFr + 8 * (u % 8)
    hi = sc >> 2
    o = (sc & 3) * 16384
    E(f'ds_read_b128 {vr(x,4)}, v{qx+4*hi+st} offset:{o}',
      f'ds_read_b64_tr_b16 {vr(x+4,2)}, v{qw+hi} offset:{o+st*2048}', f'ds_read_b64_tr_b16 {vr(x+6,2)}, v{qw+hi} offset:{o+st*2048+512}')
for u in range(5): qrd(u)
for u in range(32):
    x = vFr + 8 * (u % 8)
    issued = min(32, 5 + u)
    e(f's_waitcnt lgkmcnt({3*(issued-u-1)})')
    e(f'v_mfma_f32_32x32x16_bf16 {vr(vQacc,16)}, {vr(x+4,4)}, {vr(x,4)}, {"0" if u == 0 else vr(vQacc,16)}')
    if 5 + u < 32: qrd(5 + u)
    if EA and u == 7: e('s_barrier')
    if EA and u == EA: a_fill(0)
E(f's_cmp_lg_u32 s{sW}, 0', 's_cbranch_scc1 L_np2')
poll_issue(vB0, ['0'], [vFl])
lab('L_np2')
e('s_nop 9')
stamp(6, 'head')
for j in range(16): e(f'v_mul_f32 v{vQacc+j}, s{sCS}, v{vQacc+j}')
for j in range(8): e(f'v_cvt_pk_bf16_f32 v{vQacc+j}, v{vQacc+2*j}, v{vQacc+2*j+1}')
E(f'ds_write_b128 v{vQx}, {vr(vQacc,4)}', f'ds_write_b128 v{vQx}, {vr(vQacc+4,4)} offset:1024',
  f's_setprio {XV}', 's_waitcnt lgkmcnt(0)')
stamp(7, 'head'); stamp(2, 'all', 'x')
e('s_barrier')
for j in range(16): e(f'v_mov_b32 v{16+j}, 0')
stamp(8, 'head'); stamp(3, 'all', 'x')

def a_chunk(cs):
    seq = []
    u = 0
    for c in cs:
        hi, base = (c >> 1) & 1, (c & 1) * SLOT
        for s in range(4):
            x = xFr + 16 * (u % 3); u += 1
            for ty in range(3):
                r = [f'ds_read_b128 {vr(x,4)}, v{qx+4*hi+s} offset:{base}'] if ty == 0 else []
                o = base + ty * 8192 + s * 2048
                r += [f'ds_read_b64_tr_b16 {vr(x+4+4*ty,2)}, v{qw+hi} offset:{o}', f'ds_read_b64_tr_b16 {vr(x+6+4*ty,2)}, v{qw+hi} offset:{o+512}']
                a = xAcc + 16 * ty
                seq.append((r, f'v_mfma_f32_32x32x16_bf16 {vr(a,16)}, {vr(x+4+4*ty,4)}, {vr(x,4)}, {"0" if (c == 0 and s == 0) else vr(a,16)}'))
    if XM != XV: e(f's_setprio {XM}')
    LA = opt('la', 1)
    for k_ in range(LA): E(*seq[k_][0])
    for k_, (r, m) in enumerate(seq):
        if k_ + LA < len(seq): E(*seq[k_+LA][0])
        e(f's_waitcnt lgkmcnt({sum(len(seq[j][0]) for j in range(k_+1, min(len(seq), k_+LA+1)))})')
        e(m)
    if XM != XV: e(f's_setprio {XV}')
def write_frags():
    e('s_nop 6')
    for ty in range(3):
        for hd in range(2):
            a = xAcc + 16 * ty + 8 * hd
            for i in range(4): e(f'v_cvt_pk_bf16_f32 v{a+i}, v{a+2*i}, v{a+2*i+1}')
            e(f'ds_write_b128 v{xFw}, {vr(a,4)} offset:{ty*8192+hd*1024}')
    E(f's_bitcmp1_b32 s{sW}, 0', 's_cbranch_scc0 L_nopub', f's_add_u32 s{sT0}, s{sStepA}, 4096',
      f'buffer_store_dwordx4 {vr(xAcc+16,4)}, v{vL16}, {sr(S_WS,4)}, s{sStepA} offen sc1',
      f'buffer_store_dwordx4 {vr(xAcc+24,4)}, v{vL16}, {sr(S_WS,4)}, s{sStepA} offen offset:1024 sc1',
      f'buffer_store_dwordx4 {vr(xAcc+32,4)}, v{vL16}, {sr(S_WS,4)}, s{sT0} offen sc1',
      f'buffer_store_dwordx4 {vr(xAcc+40,4)}, v{vL16}, {sr(S_WS,4)}, s{sT0} offen offset:1024 sc1')
    lab('L_nopub')
PUB = [0]
def halo_flag():
    E(f's_bitcmp1_b32 s{sW}, 0', 's_cbranch_scc0 L_nohf')
    flag_store('hx', f's{sStepB}', f's_waitcnt vmcnt({len(VMQ)-PUB[0]})')
    lab('L_nohf')
def halo_get():
    poll_check('hx', vB1, ['0'], [vFl], None)
    E(f's_lshl_b32 s{sT0}, s{sW}, 10', f's_add_u32 m0, s{sT0}, {SC+6*4096}', f's_add_u32 s{sT1}, s{sStepH}, 4096')
    dma(vL16, S_WS, f's{sStepH}', 0, ' sc1', 'hx')
    E(f's_add_u32 m0, s{sT0}, {SC+7*4096}', 's_nop 0')
    dma(vL16, S_WS, f's{sT1}', 0, ' sc1', 'hx')
def local_task(t):
    lq, lk, lp, lv = xFr, xFr+4, xFr+8, xFr+12
    lS, lP, lO = xAcc, xAcc+16, (16 if t else 208)
    kp = 6 if t == 0 else 2
    vc, vp = (78, 80) if t == 0 else (79, 78)
    E(f'ds_read_b128 {vr(lq,4)}, v{xLq} offset:{t*4096}', f'ds_read_b128 {vr(lk,4)}, v{xLq} offset:{(2+t)*4096}', f'ds_read_b128 {vr(lp,4)}, v{xLq} offset:{kp*4096}',
      f'ds_read_b64_tr_b16 {vr(lv,2)}, v{vc}', f'ds_read_b64_tr_b16 {vr(lv+2,2)}, v{vc} offset:64',
      f'ds_read_b64_tr_b16 {vr(lv+4,2)}, v{vc} offset:256', f'ds_read_b64_tr_b16 {vr(lv+6,2)}, v{vc} offset:320',
      f'ds_read_b64_tr_b16 {vr(lv+8,2)}, v{vp} offset:256', f'ds_read_b64_tr_b16 {vr(lv+10,2)}, v{vp} offset:320')
    if t == 0:
        E(f's_cmp_lg_u32 s{sRB}, 0', 's_cbranch_scc1 L_m0')
        for r in range(8): e(f'v_mov_b32 v{xMask+16+r}, 0xff800000')
        lab('L_m0')
    E('s_waitcnt lgkmcnt(6)', 's_nop 0',
      f'v_mfma_f32_32x32x16_bf16 {vr(lS,16)}, {vr(lk,4)}, {vr(lq,4)}, {vr(xMask,16)}',
      f'v_mfma_f32_32x32x16_bf16 {vr(lP,16)}, {vr(lp,4)}, {vr(lq,4)}, {vr(xMask+8,16)}')
    e('s_nop 10')
    regs = [lS+i for i in range(16)] + [lP+8+i for i in range(8)]
    maxtree(regs, vT0, vT1)
    E('s_nop 1', f'v_permlane32_swap_b32 v{vT0}, v{vT1}', f'v_max_f32 v{vT0}, v{vT0}, v{vT1}', f'v_mul_f32 v{vT0}, {f32(-CSCALE)}, v{vT0}')
    for k in range(0, 24, 2): e(f'v_pk_fma_f32 {vr(regs[k],2)}, {vr(regs[k],2)}, {sr(sCS,2)}, {vr(vT0,2)} op_sel_hi:[1,0,0]')
    e('s_waitcnt lgkmcnt(0)')
    for k in range(24):
        e(f'v_exp_f32 v{regs[k]}, v{regs[k]}')
        if k == 9: e(f'v_smfmac_f32_32x32x32_bf16 {vr(lO,16)}, {vr(lv,4)}, {vr(lS,8)}, v{vIdx}')
        if k == 17: e(f'v_smfmac_f32_32x32x32_bf16 {vr(lO,16)}, {vr(lv+4,4)}, {vr(lS+8,8)}, v{vIdx}')
    E('s_nop 1', f'v_smfmac_f32_32x32x32_bf16 {vr(lO,16)}, {vr(lv+8,4)}, {vr(lP+8,8)}, v{vIdx}', 's_nop 11',
      f'v_rcp_f32 v{vT2}, v{lO+8}', 's_nop 0')
    for i in range(0, 8, 2): e(f'v_pk_mul_f32 {vr(lO+i,2)}, {vr(lO+i,2)}, {vr(vT2,2)} op_sel_hi:[1,0]')
    d = xAcc + 48 + 4 * t
    for i in range(4): e(f'v_cvt_pk_bf16_f32 v{d+i}, v{lO+2*i}, v{lO+2*i+1}')
    e(f'buffer_store_dwordx4 {vr(d,4)}, v{vL16}, {sr(S_WS,4)}, s{sOslot2 if t else sOslot} offen sc1', 'oa')

def oa_mfma(rt, wr=False):
    for s_ in range(8):
        for ct in range(2):
            a_ = oAcc + 32 * rt + 16 * ct
            e(f'v_mfma_f32_32x32x16_bf16 {vr(a_,16)}, {vr(oW+8*s_+4*ct,4)}, {vr(oOf+32*rt+4*s_,4)}, {"0" if s_ == 0 else vr(a_,16)}')
            m_ = 2 * s_ + ct
            if wr and wr <= m_ < wr + 4:
                for q in (2*(m_-wr), 2*(m_-wr)+1): e(f'ds_write_b128 v{80+q if q else vTp}, {vr(oAcc+4*q,4)}')
PAT = opt('pat', 3)
if PAT == 3:
    CH = {n: [n-2] for n in range(2, 10)}; FILL = {n: [n] for n in range(8)}
else:
    CH = {2: [0], 3: [1], 4: [2], 5: [3, 4], 6: [5], 7: [6], 8: [7]}; FILL = {0: [0], 1: [1], 2: [2, 3], 3: [4], 4: [5], 5: [6], 6: [7]}
if EA:
    CH = {n: [n-1] for n in range(1, 9)}; FILL = {n: [n+1] for n in range(7)}
NG = max(CH)
LATE = opt('late', 1 if NG < 9 else 0)
AE = opt('aearly', 0)
for n in range(16):
    cm(f'X interval {n}')
    if n < 9: stamp(n + 1, 'i0')
    if n >= 8: stamp(n - 7, 'i1')
    if n in (1, 2, 4, 10, 12, 14): stamp({1: 4, 2: 5, 4: 6, 10: 7, 12: 8, 14: 9}[n], 'x')
    if STAMPS and STMODE == 'xc' and n in (4, 8, 10, 12, 14, 15):
        i_ = (4, 8, 10, 12, 14, 15).index(n)
        E(f's_memrealtime {sr(sST+4*i_,2)}', f's_memtime {sr(sST+4*i_+2,2)}')
    waits = []
    k = n // 2
    if n == 0:
        E(f's_cmp_lg_u32 s{sW}, 0', 's_cbranch_scc1 L_nochk_kv1')
        poll_check('kv1', vB0, ['0'], [vFl], 0)
    if n == 1: kv_fill(1)
    if n % 2 == 0 and 1 <= k <= 6: kv_fill(k + 1)
    if n == 3:
        E(f's_cmp_lg_u32 s{sW}, 0', 's_cbranch_scc1 L_np3')
        poll_issue(vPa, SH4, RG4)
        lab('L_np3')
        NP3 = len(VMQ)
    for c in FILL.get(n, []): a_fill(c)
    if n == NG - 1: sentinels(); wo_fill(S_WOA, 0, 0, 'woA')
    if n == NG: wo_fill(S_WOA, 1, SLOT, 'woA')
    if n in CH: a_chunk(CH[n])
    for c in CH.get(n + 1, []): waits.append(f'A{c}')
    if n == NG: write_frags(); PUB[0] = len(VMQ)
    if n == NG + 1:
        e(f'ds_write_b64 v{vOw}, {vr(xOne,2)}')
        if opt('hfe', 1): halo_flag()
        local_task(1)
        if not opt('hfe', 1): halo_flag()
    if n == NG + 2:
        halo_get(); waits.append('hx')
    if n == NG + 3: local_task(0)
    if n == NG + 4:
        flag_store('oa', f's{sK1}', f's_waitcnt vmcnt({vmn("oa")})', xcc=True)
        VMQ.append('fl')
        if LATE: wo_fill(S_WOB, 0, 2*SLOT, 'woB')
        w_reads()
    if LATE and n == NG + 5: wo_fill(S_WOB, 1, 3*SLOT, 'woB')
    if n == NG + 5 + LATE:
        E(f's_cmp_lg_u32 s{sW}, 0', 's_cbranch_scc1 L_skip_oa')
        poll_check('oa', vPa2, ['0'], [vFl], None, xcc=True)
        E(f'v_or_b32 v{vFl}, s{sXcc}, v{vNon}', f'v_cmp_ne_u32 vcc, v{vFl}, v{vFl+2}', 's_nop 1', 's_cmp_eq_u64 vcc, 0', f's_cselect_b32 s{sT0}, {opt("fast", 1)}, 0',
          f'v_mov_b32 v{vFl}, s{sT0}')
        lab('L_skip_oa')
        if not LATE: wo_fill(S_WOB, 0, 2*SLOT, 'woB'); wo_fill(S_WOB, 1, 3*SLOT, 'woB')
    if n == NG + 6 + LATE:
        E(f's_cmp_lg_u32 s{sW}, 0', 's_cbranch_scc1 L_skip_same', f'v_mov_b32 v{vFl+1}, {R+16384}', f'ds_write_b32 v{vFl+1}, v{vFl}')
        lab('L_skip_same')
        o_loads('oal')
    if n == 15 and AE:
        E('s_waitcnt vmcnt(8)', f's_setprio {XM}')
        oa_mfma(0)
        e(f's_setprio {XV}')
    if n % 2 == 1 and k + 1 <= 7: waits.append(f'KV{k+1}')
    if n == 15: waits.append('woB')
    if waits: e(f's_waitcnt vmcnt({min(vmn(t) for t in waits)}) lgkmcnt(0)')
    else: e('s_waitcnt lgkmcnt(0)')
    if n == 3:
        E(f's_cmp_lg_u32 s{sW}, 0', 's_cbranch_scc1 L_nochk_kv2')
        poll_check('kv2', vPa, SH4, RG4, len(VMQ) - NP3)
    if n < 9: stamp(n + 1, 'j0')
    if n >= 8: stamp(n - 7, 'j1')
    e('s_barrier')
assert NBAR[0] == NBAR_Y, (NBAR[0], NBAR_Y)
E('s_setprio 0', f's_mov_b32 s{sSpin}, 0', f's_mov_b32 s{sC}, 0')
stamp(9, 'i1')
e('s_waitcnt vmcnt(0)')
stamp(5, 'tail')
if not AE: oa_mfma(0)
oa_mfma(1, 10)
e('s_branch L_tail_wr')

cm('---- fallback (Y waves): true max, K/V from global ----')
lab('L_fallback')
E(f's_mov_b32 s{sFB}, 1', f'v_mov_b32 v{vT0}, 0xff800000', f'v_mov_b32 v{vT2}, 0xff800000', f's_mov_b32 s{sT2}, 0')
lab('L_fb_max')
E(f'buffer_load_dwordx4 {vr(aK,4)}, v{vL16}, {sr(S_WS,4)}, s{sT2} offen sc1', 's_waitcnt vmcnt(0)',
  f'v_mfma_f32_32x32x16_bf16 {vr(aSa,16)}, {vr(aK,4)}, {vr(vQa,4)}, 0', f'v_mfma_f32_32x32x16_bf16 {vr(aSb,16)}, {vr(aK,4)}, {vr(vQb,4)}, 0', 's_nop 15')
for k in range(0, 16, 2): e(f'v_max3_f32 v{vT0}, v{vT0}, v{aSa+k}, v{aSa+k+1}')
for k in range(0, 16, 2): e(f'v_max3_f32 v{vT2}, v{vT2}, v{aSb+k}, v{aSb+k+1}')
E(f's_add_u32 s{sT2}, s{sT2}, 2048', f's_cmp_lt_u32 s{sT2}, {64*2048}', 's_cbranch_scc1 L_fb_max',
  f'v_mov_b32 v{vT1}, v{vT0}', f'v_mov_b32 v{vT3}, v{vT2}', 's_nop 1',
  f'v_permlane32_swap_b32 v{vT0}, v{vT1}', f'v_permlane32_swap_b32 v{vT2}, v{vT3}', f'v_max_f32 v{vT0}, v{vT0}, v{vT1}', f'v_max_f32 v{vT2}, v{vT2}, v{vT3}')
for i in range(16): e(f'v_sub_f32 v{aCa+i}, 0, v{vT0}')
for i in range(16): e(f'v_sub_f32 v{aCb+i}, 0, v{vT2}')
for i in range(32): e(f'v_mov_b32 v{aOa+i}, 0')
E(f'v_lshlrev_b32 v{vT2}, 4, v{vI}', f'v_lshl_add_u32 v{vT2}, v{vH}, 8, v{vT2}', f's_mov_b32 s{sT2}, 0')
lab('L_fb_pv')
E(f'buffer_load_dwordx4 {vr(aK,4)}, v{vL16}, {sr(S_WS,4)}, s{sT2} offen sc1', f's_mov_b64 exec, {sr(sVM,2)}',
  f'buffer_load_dwordx4 {vr(aV,4)}, v{vT2}, {sr(S_WS,4)}, s{sT2} offen offset:1024 sc1',
  f'buffer_load_dwordx4 {vr(aV+4,4)}, v{vT2}, {sr(S_WS,4)}, s{sT2} offen offset:1536 sc1', 's_mov_b64 exec, -1', 's_waitcnt vmcnt(0)',
  f'v_mfma_f32_32x32x16_bf16 {vr(aSa,16)}, {vr(aK,4)}, {vr(vQa,4)}, {vr(aCa,16)}',
  f'v_mfma_f32_32x32x16_bf16 {vr(aSb,16)}, {vr(aK,4)}, {vr(vQb,4)}, {vr(aCb,16)}', 's_nop 15')
for i in range(32): e(f'v_exp_f32 v{aSa+i}, v{aSa+i}')
E('s_nop 1',
  f'v_smfmac_f32_32x32x32_bf16 {vr(aOa,16)}, {vr(aV,4)}, {vr(aSa,8)}, v{vIdx}', f'v_smfmac_f32_32x32x32_bf16 {vr(aOa,16)}, {vr(aV+4,4)}, {vr(aSa+8,8)}, v{vIdx}',
  f'v_smfmac_f32_32x32x32_bf16 {vr(aOb,16)}, {vr(aV,4)}, {vr(aSb,8)}, v{vIdx}', f'v_smfmac_f32_32x32x32_bf16 {vr(aOb,16)}, {vr(aV+4,4)}, {vr(aSb+8,8)}, v{vIdx}',
  f's_add_u32 s{sT2}, s{sT2}, 2048', f's_cmp_lt_u32 s{sT2}, {64*2048}', 's_cbranch_scc1 L_fb_pv', 's_nop 15', 's_branch L_att_ok')
for g, so in enumerate((sOoff, sT1, sT2, sT3)):
    lab(f'L_tr{g}')
    E(f's_sub_u32 s{sSpin}, s{sSpin}, 1', f's_cbranch_scc1 L_tk{g}')
    for j in range(4):
        o = f' offset:{j*1024}' if j else ''
        e(f'buffer_load_dwordx4 {vr(oOf+16*g+4*j,4)}, v{vL16}, {sr(S_WS,4)}, s{so} offen{o} sc1')
    E('s_waitcnt vmcnt(0)', f's_branch L_tg{g}')
lab('L_code_end')

HDR = open(f'cdna_kernels/{NAME}.s.ref').read().split('\n')
hdr = []
for line in HDR:
    if line.startswith('; @launch'): break
    hdr.append(line)
txt = '\n'.join(hdr) + '\n; @launch grid=(256,1,1) block=(512,1,1) lds=163840\n'
txt += f'''.amdgcn_target "amdgcn-amd-amdhsa--gfx950"
.text
.globl {NAME}_kernel
.p2align 8
.type {NAME}_kernel,@function
'''
txt += '\n'.join(L) + '\n'
txt += f'''.section .rodata,"a"
.p2align 6
.amdhsa_kernel {NAME}_kernel
  .amdhsa_next_free_vgpr {NVGPR}
  .amdhsa_next_free_sgpr 102
  .amdhsa_accum_offset {NVGPR}
  .amdhsa_group_segment_fixed_size 0
  .amdhsa_kernarg_size 88
  .amdhsa_user_sgpr_count 2
  .amdhsa_user_sgpr_kernarg_segment_ptr 1
  .amdhsa_system_sgpr_workgroup_id_x 1
.end_amdhsa_kernel
'''
open(OUT, 'w').write(txt)
print('wrote', OUT, len(L), 'lines; barriers', NBAR_Y)
```

```python
import sys, struct

NAME = 'concat_heads__sliding_local_dilated__grouped_kv_mqa__prompt'
STAMPS = '--stamps' in sys.argv
STMODE = ([a[5:] for a in sys.argv if a.startswith('--st=')] + ['all'])[0]
XP = [a[4:] for a in sys.argv if a.startswith('--x=')]
args = [a for a in sys.argv[1:] if not a.startswith('--')]
OUT = args[0] if args else f'cdna_kernels/{NAME}.s'
def opt(name, default):
    for a in XP:
        if a.startswith(name): return type(default)(a[len(name):])
    return default

L = []
VMQ = []
NBAR = [0]
def e(s, tag=None):
    if tag is not None: VMQ.append(tag)
    if s == 's_barrier': NBAR[0] += 1
    L.append('    ' + s.strip())
    if PADON[0]:
        PADCNT[0] += 4 if (s.startswith('s_') and '0x' not in s) else 8
        if PADCNT[0] >= PADON[0] and not s.startswith('v_cmp') and 'abs' not in s:
            PADCNT[0] = 0; pad()
PADS = [0]
PADON = [False]
PADCNT = [0]
def lab(s): L.append(s + ':')
def pad():
    i = PADS[0]; PADS[0] += 1
    L.append(f'L_pad{i}:'); L.append(f'    s_cbranch_execz L_pad{i+1}')
def cm(s): L.append('    ; ' + s)
def vr(i, n): return f'v[{i}:{i+n-1}]'
def sr(i, n): return f's[{i}:{i+n-1}]'
def f32(x): return '0x%08x' % struct.unpack('<I', struct.pack('<f', x))[0]
def vmn(tag):
    idx = max(i for i, t in enumerate(VMQ) if t == tag)
    n = len(VMQ) - 1 - idx
    assert n <= 63
    return n
def E(*lines):
    for s in lines: e(s)

SLOT = 32768
R = 131072
HALO = 3 * SLOT
ONES = 3 * SLOT
SC = 2 * SLOT
WS_FHX = 0x60000
WS_HX = 0x600000
WS_FKV = 0x40000
WS_FOA = 0x48000
WS_FD = 0x44000
WS_OA = 0x100000
WS_OB = 0x300000
WS_STAMP = 0x500000
WS_SIZE = 0x800000
CSCALE = 0.25 * 1.4426950408889634
MOFF = float(opt('moff', 100))
VSC = 2.0 ** 40
ONEB = 0x53805380
SPIN = 200000
NT = '' if 'nont' in XP else ' nt'
WNT = ' nt' if 'wnt' in XP else ''

S_XA, S_WQKV, S_WOA, S_XB, S_WQ, S_WKV, S_WOB, S_OUT, S_WS = 8, 12, 16, 20, 24, 28, 32, 36, 40
S_DBG = 44
S_WV = 46
sP = 46
sW = 48
sRB, sHG = 49, 50
sT0, sT1, sT2, sT3 = 51, 52, 53, 54
sC = 55
sStepA, sStepB = 56, 57
sXo, sWo = 58, 59
sKVo = 60
sW4k, sW8k, sW2k = 61, 62, 63
sVM = 64
sOoff, sOutOff, sWoff, sSpin = 66, 67, 68, 69
sOslot, sOslot2 = 70, 71
sFB, sHG128, sCS, sQ = 72, 73, 74, 75
sRot, sK1 = 4, 5
sF0, sF1, sF2 = 3, 6, 7
sST = 76
sNon = 100
sStepH = 31
sXcc = 30

vL16, vW, vWA, vXA = 1, 2, 3, 4
vN, vH, vI = 5, 6, 7
vT0, vT1, vT2, vT3 = 8, 9, 10, 11
vP0, vP1, vXx, vG = 12, 13, 14, 15
vQacc = 16
vFr = 96
(vB0, vB1, vBW, vWl, vIdx, vPa, vQx, vW2, vTw0, vTw1, vTp, vTr0, vTo, vPa2, vZero, vOw,
 vF0, vF1, vF2, vF3, vWA2, vXA2) = range(232, 254)
vNon, vFl = 90, 92
NVGPR = 256

def stamp(i, *modes):
    if STAMPS and STMODE in modes: e(f's_memrealtime {sr(sST+2*i,2)}')
def cstamp(i):
    if STAMPS and STMODE != 'xc': e(f's_memtime {sr(sST+2*i,2)}')
def dma(voff, srd_, soff, off=0, fl='', tag='x'):
    o = f' offset:{off}' if off else ''
    e(f'buffer_load_dwordx4 v{voff}, {sr(srd_,4)}, {soff} offen{o}{fl} lds', tag)
def srd(reg, size): E(f's_mov_b32 s{reg+2}, {hex(size)}', f's_mov_b32 s{reg+3}, 0x20000')
def nonce_load(tag=None): e(f'global_load_dwordx2 {vr(vNon,2)}, v{vZero}, {sr(S_DBG,2)} sc1', tag)
def poll_issue(vaddr, soffs, regs, non=True):
    if non: nonce_load()
    for so, r in zip(soffs, regs):
        e(f'buffer_load_dwordx2 {vr(r,2)}, v{vaddr}, {sr(S_WS,4)}, {so} offen sc1')
def poll_check(tag, vaddr, soffs, regs, issued, xcc=False):
    e(f's_mov_b32 s{sSpin}, {SPIN}')
    if issued is not None: E(f's_waitcnt vmcnt({issued})', f's_branch L_chk_{tag}')
    lab(f'L_rep_{tag}')
    poll_issue(vaddr, soffs, regs)
    e('s_waitcnt vmcnt(0)')
    lab(f'L_chk_{tag}')
    e(f'v_cmp_eq_u32 vcc, 0, v{vNon}')
    if xcc: E(f'v_mov_b32 v{vFl+2}, v{vFl}', f'v_and_b32 v{vFl}, 0xffffffe1, v{vFl}')
    for r in regs:
        E(f'v_cmp_ne_u64 {sr(sP,2)}, {vr(vNon,2)}, {vr(r,2)}', 's_nop 1', f's_or_b64 vcc, vcc, {sr(sP,2)}')
    E(f's_cbranch_scc0 L_nochk_{tag}', f's_sub_u32 s{sSpin}, s{sSpin}, 1', f's_cbranch_scc0 L_rep_{tag}')
    lab(f'L_nochk_{tag}')
def flag_store(tag, soff, first_wait='s_waitcnt vmcnt(0)', xcc=False, soff2=None):
    e(f's_mov_b32 s{sSpin}, {SPIN}')
    e(first_wait)
    lab(f'L_fw_{tag}')
    E(f'v_cmp_eq_u32 vcc, 0, v{vNon}', f's_cbranch_vccz L_fs_{tag}')
    nonce_load()
    E('s_waitcnt vmcnt(0)', f's_sub_u32 s{sSpin}, s{sSpin}, 1', f's_cbranch_scc0 L_fw_{tag}')
    lab(f'L_fs_{tag}')
    if xcc: e(f'v_or_b32 v{vNon}, s{sXcc}, v{vNon}')
    E('s_mov_b64 exec, 1', f'buffer_store_dwordx2 {vr(vNon,2)}, v{vZero}, {sr(S_WS,4)}, {soff} offen sc1')
    if soff2: e(f'buffer_store_dwordx2 {vr(vNon,2)}, v{vZero}, {sr(S_WS,4)}, {soff2} offen sc1')
    e('s_mov_b64 exec, -1')
def maxtree(rs, t0, t1):
    e(f'v_max3_f32 v{t0}, v{rs[0]}, v{rs[1]}, v{rs[2]}')
    e(f'v_max3_f32 v{t1}, v{rs[3]}, v{rs[4]}, v{rs[5]}')
    for k in range(6, len(rs), 4):
        e(f'v_max3_f32 v{t0}, v{t0}, v{rs[k]}, v{rs[k+1]}')
        if k + 3 < len(rs): e(f'v_max3_f32 v{t1}, v{t1}, v{rs[k+2]}, v{rs[k+3]}')
    e(f'v_max_f32 v{t0}, v{t0}, v{t1}')
    e(f'v_mov_b32 v{t1}, v{t0}')
def lane_setup():
    E(f'v_and_b32 v{vN}, 31, v0', f'v_lshrrev_b32 v{vH}, 5, v0', f'v_and_b32 v{vI}, 15, v0',
      f'v_lshrrev_b32 v{vWl}, 2, v{vI}', f'v_lshl_add_u32 v{vWl}, v{vH}, 3, v{vWl}', f'v_lshlrev_b32 v{vWl}, 7, v{vWl}',
      f'v_and_b32 v{vF0}, 8, v{vI}', f'v_lshl_add_u32 v{vWl}, v{vF0}, 3, v{vWl}', f'v_and_b32 v{vF0}, 16, v0',
      f'v_lshl_add_u32 v{vWl}, v{vF0}, 1, v{vWl}', f'v_and_b32 v{vF0}, 3, v0', f'v_lshl_add_u32 v{vWl}, v{vF0}, 3, v{vWl}',
      f's_lshl_b32 s{sW4k}, s{sQ}, 12', f's_add_u32 s{sF0}, s{sW4k}, {R}', f'v_add_u32 v{vQx}, s{sF0}, v{vL16}',
      f'v_mov_b32 v{vIdx}, 0xdddddddd', f's_mov_b32 s{sFB}, 0')
oOf, oW, oAcc = 16, 96, 160
def tail_setup():
    E(f's_mov_b32 s{S_OUT+2}, 0x400000', f's_mov_b32 s{S_OUT+3}, 0x20000',
      f's_lshr_b32 s{sF2}, s{sW}, 2', f's_lshl_b32 s{sF1}, s{sW}, 14',
      f'v_lshlrev_b32 v{vT0}, 9, v{vH}', f'v_sub_u32 v{vTw0}, v{vWl}, v{vT0}', f'v_add_u32 v{vTw0}, s{sF1}, v{vTw0}', f'v_xor_b32 v{vTw1}, 64, v{vTw0}',
      f'v_xor_b32 v{vT0}, v{vH}, v{vI}', f'v_lshlrev_b32 v{vT0}, 4, v{vT0}', f'v_lshl_add_u32 v{vT0}, v{vN}, 8, v{vT0}', f'v_add_u32 v{vTp}, s{sF1}, v{vT0}',
      f'v_lshrrev_b32 v{vT0}, 3, v0', f's_lshl_b32 s{sF1}, s{sQ}, 3', f'v_add_u32 v{vT0}, s{sF1}, v{vT0}', f'v_and_b32 v{vT1}, 7, v0', f'v_lshlrev_b32 v{vT2}, 1, v{vT1}',
      f'v_and_b32 v{vT3}, 15, v{vT0}', f'v_xor_b32 v{vT2}, v{vT2}, v{vT3}', f'v_lshlrev_b32 v{vT2}, 4, v{vT2}', f'v_lshl_add_u32 v{vT2}, v{vT0}, 8, v{vT2}',
      f's_lshl_b32 s{sF1}, s{sF2}, 16', f'v_add_u32 v{vTr0}, s{sF1}, v{vT2}',
      f'v_lshlrev_b32 v{vT1}, 4, v{vT1}', f'v_lshl_add_u32 v{vTo}, v{vT0}, 11, v{vT1}',
      f's_lshl_b32 s{sOutOff}, s{sRB}, 17', f's_lshl_b32 s{sF1}, s{sF2}, 10', f's_add_u32 s{sOutOff}, s{sOutOff}, s{sF1}', f's_add_u32 s{sOutOff}, s{sOutOff}, s{sHG128}',
      f's_lshl_b32 s{sOoff}, s{sRB}, 16', f's_lshl_b32 s{sF1}, s{sQ}, 13', f's_add_u32 s{sOoff}, s{sOoff}, s{sF1}',
      f's_lshl_b32 s{sF1}, s{sF2}, 21', f's_add_u32 s{sOoff}, s{sOoff}, s{sF1}', f's_add_u32 s{sOoff}, s{sOoff}, {hex(WS_OA)}')
assert WS_OB - WS_OA == 1 << 21
def w_reads():
    for s in range(8):
        x = oW + 8 * s
        E(f'ds_read_b64_tr_b16 {vr(x,2)}, v{vTw0} offset:{s*2048}', f'ds_read_b64_tr_b16 {vr(x+2,2)}, v{vTw0} offset:{s*2048+1024}',
          f'ds_read_b64_tr_b16 {vr(x+4,2)}, v{vTw1} offset:{s*2048}', f'ds_read_b64_tr_b16 {vr(x+6,2)}, v{vTw1} offset:{s*2048+1024}')
    for q in range(1, 8): e(f'v_xor_b32 v{80+q}, {(2*q)<<4}, v{vTp}')
    e(f'v_xor_b32 v88, 16, v{vTr0}')
def o_loads(tag=None, gs=(0, 1, 2, 3)):
    if 0 in gs: E(f's_add_u32 s{sT1}, s{sOoff}, 4096', f's_add_u32 s{sT2}, s{sOoff}, 32768', f's_add_u32 s{sT3}, s{sOoff}, {32768+4096}')
    for g, so in enumerate((sOoff, sT1, sT2, sT3)):
        if g not in gs: continue
        for j in range(4):
            o = f' offset:{j*1024}' if j else ''
            e(f'buffer_load_dwordx4 {vr(oOf+16*g+4*j,4)}, v{vL16}, {sr(S_WS,4)}, s{so} offen{o} sc1', tag)

lab(f'{NAME}_kernel')
if STAMPS:
    for i in range(12): e(f's_mov_b32 s{sST+2*i}, 0')
stamp(0, 'all', 'head', 'tail', 'x', 'i0', 'i1', 'j0', 'j1')
for reg, off in ((S_XB,24),(S_WKV,40),(S_WV,48),(S_WQ,32),(S_DBG,72),(S_WS,80),(S_XA,0),(S_WQKV,8),(S_WOA,16),(S_WOB,56),(S_OUT,64)):
    e(f's_load_dwordx2 {sr(reg,2)}, s[0:1], {off}')
e(f's_memrealtime {sr(sNon,2)}')
E('s_cmp_ge_u32 s2, 256', 's_cbranch_scc1 L_end',
  f'v_lshrrev_b32 v{vT0}, 6, v0', 'v_and_b32 v0, 63, v0', f'v_readfirstlane_b32 s{sW}, v{vT0}',
  f's_and_b32 s{sT0}, s2, 7', f's_bfe_u32 s{sRot}, s2, 0x20003', f's_lshl_b32 s{sRB}, s{sT0}, 2',
  f's_add_u32 s{sRB}, s{sRB}, s{sRot}', f's_lshr_b32 s{sHG}, s2, 5',
  f'v_lshlrev_b32 v{vL16}, 4, v0', f'v_lshrrev_b32 v{vG}, 4, v0', f'v_lshrrev_b32 v{vT1}, 3, v0', f'v_and_b32 v{vT2}, 7, v0',
  f'v_xor_b32 v{vT3}, v{vT2}, v{vG}', f'v_lshlrev_b32 v{vT3}, 4, v{vT3}', f'v_lshl_add_u32 v{vP0}, v{vT1}, 10, v{vT3}',
  f'v_xor_b32 v{vP1}, 64, v{vP0}', f'v_add_u32 v{vP1}, {8192-1024}, v{vP1}', f'v_mov_b32 v{vZero}, 0',
  f's_xor_b32 s{sW}, s{sW}, 7', f's_lshl_b32 s{sRot}, s{sRot}, 1', f's_lshl_b32 s{sHG128}, s{sHG}, 7', f's_and_b32 s{sQ}, s{sW}, 3')
if opt('hgx', 0): E(f's_xor_b32 s{sHG}, s{sHG}, {opt("hgx", 0)}', f's_lshl_b32 s{sHG128}, s{sHG}, 7')
srd(S_WS, WS_SIZE)
E(f's_cmp_lt_u32 s{sW}, 4', 's_cbranch_scc1 L_X')

cm('================ Y program (waves 4-7) ================')
aSa, aSb, aCa, aCb, aOa, aOb = 96, 112, 128, 144, 160, 176
aK, aV = 192, 56
vQa, vQb = 208, 212
vKa, vVa = 216, 217
srd(S_XB, 0x200000); srd(S_WKV, 0x4000)
vD0, vD1 = 218, 219
E(f's_lshr_b32 s{sT1}, s{sHG}, 1', f's_add_u32 s{sT1}, s{sT1}, s{sW}', f's_add_u32 s{sT1}, s{sT1}, 1', f's_and_b32 s{sT1}, s{sT1}, 3',
  f's_lshl_b32 s{sT2}, s{sT1}, 11',
  f's_lshl_b32 s{sT3}, s{sRB}, 2', f's_add_u32 s{sT3}, s{sT3}, s{sT1}', f's_lshl_b32 s{sT3}, s{sT3}, 14',
  f'v_add_u32 v{vD0}, s{sT3}, v{vP0}', f'v_add_u32 v{vD1}, s{sT3}, v{vP1}',
  f's_lshl_b32 s{sXo}, s{sRot}, 7',
  f's_cmp_lg_u32 s{sW}, 7', 's_cbranch_scc1 L_Yset')
def x_sub(s, tag):
    E(f's_add_u32 m0, s{sT2}, {s*16384}', f's_and_b32 s{sXo}, s{sXo}, 1023')
    dma(vD0, S_XB, f's{sXo}', 0, NT, tag); dma(vD1, S_XB, f's{sXo}', 1024, NT, tag)
E(f's_bitcmp1_b32 s{sHG}, 0', 's_waitcnt lgkmcnt(0)',
  f's_cselect_b32 s{S_WKV}, s{S_WV}, s{S_WKV}', f's_cselect_b32 s{S_WKV+1}, s{S_WV+1}, s{S_WKV+1}')
for s_ in range(8):
    x_sub(s_, None)
    E(f's_mov_b32 m0, {R+s_*2048}', f's_lshl_b32 s{sWo}, s{sXo}, 4')
    dma(vL16, S_WKV, f's{sWo}', 0, '', None); dma(vL16, S_WKV, f's{sWo}', 1024, '', None)
    if s_ < 7: e(f's_add_u32 s{sXo}, s{sXo}, 128')
e('s_barrier'); NBAR[0] -= 1
stamp(1, 'head')
lab('L_Yset')
lane_setup()
tail_setup()
E(f's_mov_b32 s{sVM}, 0xffff', f's_mov_b32 s{sVM+1}, 0xffff',
  f's_and_b32 s{sT0}, s{sRB}, 28', f's_add_u32 s{sT0}, s{sT0}, s{sQ}', f's_lshl_b32 s{sKVo}, s{sT0}, 12',
  f's_lshl_b32 s{sT0}, s{sT0}, 9', f's_add_u32 s{sT0}, s{sT0}, {hex(WS_FKV)}',
  f'v_and_b32 v{vPa}, 7, v0', f'v_lshlrev_b32 v{vPa}, 6, v{vPa}', f'v_add_u32 v{vPa}, s{sT0}, v{vPa}',
  f's_and_b32 s{sT0}, s{sW}, 1', f's_lshl_b32 s{sT1}, s{sRB}, 1', f's_add_u32 s{sT0}, s{sT0}, s{sT1}', f's_lshl_b32 s{sT0}, s{sT0}, 5',
  f's_lshl_b32 s{sT1}, s{sHG}, 2', f's_add_u32 s{sT0}, s{sT0}, s{sT1}', f's_and_b32 s{sT1}, s{sW}, 2', f's_add_u32 s{sT0}, s{sT0}, s{sT1}',
  f's_lshl_b32 s{sT0}, s{sT0}, 10', f's_add_u32 s{sOslot}, s{sT0}, {hex(WS_OB)}',
  f'v_add_u32 v{vKa}, {R+16384}, v{vL16}', f'v_lshlrev_b32 v{vVa}, 4, v{vI}', f'v_lshl_add_u32 v{vVa}, v{vH}, 8, v{vVa}', f'v_add_u32 v{vVa}, {R+16384}, v{vVa}',
  f'v_and_b32 v{vT1}, 27, v0', f'v_cmp_eq_u32 vcc, 16, v{vT1}', f'v_mov_b32 v{vT1}, {hex(ONEB)}', f's_cmp_eq_u32 s{sW}, 7', f'v_cndmask_b32 v{aV}, 0, v{vT1}, vcc',
  's_cbranch_scc1 L_Y7', 's_waitcnt lgkmcnt(0)')
if opt('cpf', 1):
    e('s_getpc_b64 s[0:1]')
    lab('L_pc')
    E(f's_sub_u32 s0, s0, L_pc-{NAME}_kernel', 's_subb_u32 s1, s1, 0',
      f's_lshr_b32 s{sT0}, s2, 3', f's_mul_i32 s{sT0}, s{sT0}, 3', f's_add_u32 s{sT0}, s{sT0}, s{sQ}', f's_lshl_b32 s{sT0}, s{sT0}, 8',
      f'v_lshlrev_b32 v{vF0}, 7, v0', f'v_add_u32 v{vF0}, s{sT0}, v{vF0}', f'v_min_u32 v{vF0}, L_code_end-{NAME}_kernel-4, v{vF0}', 's_mov_b64 exec, 3',
      f'global_load_dword v{vF1}, v{vF0}, s[0:1]', 's_mov_b64 exec, -1')
e('s_barrier')
for s_ in range(8):
    x_sub(s_, 'xb')
    if s_ < 7: e(f's_add_u32 s{sXo}, s{sXo}, 128')
stamp(1, 'head')
e('s_branch L_Yj')
lab('L_Y7')
E(f'v_lshrrev_b32 v{vT1}, 1, v{vI}', f'v_xor_b32 v{vT1}, v{vT1}, v{vG}', f'v_lshlrev_b32 v{vT1}, 4, v{vT1}', f'v_lshl_add_u32 v{vT1}, v{vI}, 7, v{vT1}',
  f'v_add_u32 v{vT0}, s{sT2}, v{vT1}', f'v_xor_b32 v{vT1}, 64, v{vT0}', f'v_add_u32 v{vT2}, 65536, v{vT0}', f'v_add_u32 v{vT3}, 65536, v{vT1}',
  f'v_lshlrev_b32 v{vF0}, 8, v{vG}', f'v_lshl_add_u32 v{vF0}, v{vI}, 3, v{vF0}', f'v_add_u32 v{vF0}, {R}, v{vF0}',
  f'v_and_b32 v{vF1}, 1, v{vG}', f'v_lshrrev_b32 v{vF2}, 1, v{vG}',
  f's_lshr_b32 s{sT0}, s{sHG}, 2', f's_lshl_b32 s{sC}, s{sRB}, 1', f's_add_u32 s{sT0}, s{sT0}, s{sC}', f's_lshl_b32 s{sT0}, s{sT0}, 11',
  f's_bfe_u32 s{sC}, s{sHG}, 0x10001',
  f's_lshl_b32 s{sT1}, s{sRB}, 3', f's_add_u32 s{sT1}, s{sT1}, s{sHG}', f's_lshl_b32 s{sOslot2}, s{sT1}, 3', f's_add_u32 s{sOslot2}, s{sOslot2}, {hex(WS_FD)}', f's_lshl_b32 s{sT1}, s{sT1}, 6', f's_add_u32 s{sK1}, s{sT1}, {hex(WS_FKV)}')
kd = 16
KF = 88
KF = 96 - 8
def kfr(u): return (96 + 8 * u) if u < 15 else 24
def kv_reads(s):
    a0, a1 = (vT0, vT1) if s < 4 else (vT2, vT3)
    o = (s & 3) * 16384
    x, y = kfr(2*s), kfr(2*s+1)
    E(f's_waitcnt vmcnt({28-4*s})',
      f'ds_read_b128 {vr(x,4)}, v{a0} offset:{o}', f'ds_read_b64_tr_b16 {vr(x+4,2)}, v{vF0} offset:{s*2048}', f'ds_read_b64_tr_b16 {vr(x+6,2)}, v{vF0} offset:{s*2048+128}',
      f'ds_read_b128 {vr(y,4)}, v{a1} offset:{o}', f'ds_read_b64_tr_b16 {vr(y+4,2)}, v{vF0} offset:{s*2048+1024}', f'ds_read_b64_tr_b16 {vr(y+6,2)}, v{vF0} offset:{s*2048+1152}')
for s_ in range(8): kv_reads(s_)
nonce_load()
stamp(2, 'head')
E(f's_bitcmp1_b32 s{sHG}, 0', f's_cselect_b32 s{sWo}, {f32(VSC)}, 1.0', 's_cbranch_scc1 L_kv_v',
  f'v_lshlrev_b32 v{vF1}, 9, v{vF1}', f'v_lshl_add_u32 v{vF1}, v{vF2}, 3, v{vF1}', f's_lshl_b32 s{sC}, s{sC}, 8')
def kv_chain(swap):
    for u in range(16):
        x = kfr(u)
        if u == 0: e('s_waitcnt lgkmcnt(12)')
        if u == 12: e('s_waitcnt lgkmcnt(0)')
        a, b = (vr(x+4,4), vr(x,4))
        if swap: a, b = b, a
        d = kd + 4 * (u & 1)
        e(f'v_mfma_f32_16x16x32_bf16 {vr(d,4)}, {a}, {b}, {"0" if u < 2 else vr(d,4)}')
kv_chain(False)
e('s_branch L_kv_j')
lab('L_kv_v')
E(f'v_lshlrev_b32 v{vF1}, 3, v{vF1}', f'v_lshl_add_u32 v{vF1}, v{vF2}, 8, v{vF1}', f's_lshl_b32 s{sC}, s{sC}, 9', f's_add_u32 s{sC}, s{sC}, 1024')
kv_chain(True)
lab('L_kv_j')
E(f'v_lshl_add_u32 v{vF1}, v{vI}, 4, v{vF1}', f's_add_u32 s{sT0}, s{sT0}, s{sC}', 's_nop 5',
  f'v_pk_add_f32 {vr(kd,2)}, {vr(kd,2)}, {vr(kd+4,2)}', f'v_pk_add_f32 {vr(kd+2,2)}, {vr(kd+2,2)}, {vr(kd+6,2)}',
  f'v_mul_f32 v{kd}, s{sWo}, v{kd}', f'v_mul_f32 v{kd+1}, s{sWo}, v{kd+1}', f'v_mul_f32 v{kd+2}, s{sWo}, v{kd+2}', f'v_mul_f32 v{kd+3}, s{sWo}, v{kd+3}',
  f'v_cvt_pk_bf16_f32 v{vF2}, v{kd}, v{kd+1}', f'v_cvt_pk_bf16_f32 v{vF3}, v{kd+2}, v{kd+3}',
  f'buffer_store_dwordx2 {vr(vF2,2)}, v{vF1}, {sr(S_WS,4)}, s{sT0} offen sc1')
stamp(3, 'head')
lab('L_Yj')
for i in range(1, 32): e(f'v_mov_b32 v{aV+i}, v{aV}')
for j in range(32): e(f'v_mov_b32 v{aOa+j}, 0')
E('s_waitcnt vmcnt(0)', f's_cmp_lg_u32 s{sW}, 7', 's_cbranch_scc1 L_flag_done')
flag_store('kv', f's{sK1}')
stamp(4, 'head')
lab('L_flag_done')
e('s_barrier')
stamp(5, 'head'); stamp(1, 'all', 'x')
EA = opt('ea', 20)
if EA: e('s_barrier')
if opt('psl', 0): e(f's_sleep {opt("psl", 0)}')
poll_check('kv', vPa, ['0'], [vFl], None)
stamp(6, 'head')
E(f's_add_u32 m0, s{sW4k}, {R+16384}', f's_mov_b32 s{sC}, 0')
for j in range(4): dma(vL16, S_WS, f's{sKVo}', 1024*j, ' sc1', None)
E(f's_setprio {opt("yp", 1)}', f's_cmp_lg_u32 s{sW}, 7', 's_waitcnt vmcnt(0)', 's_cbranch_scc1 L_nodense', 's_mov_b64 exec, 1',
  f'buffer_store_dwordx2 {vr(vNon,2)}, v{vZero}, {sr(S_WS,4)}, s{sOslot2} offen sc1', 's_mov_b64 exec, -1')
lab('L_nodense')
stamp(7, 'head'); stamp(2, 'all', 'x')
e('s_barrier')
stamp(8, 'head'); stamp(3, 'all', 'x'); stamp(1, 'tail')
cstamp(10)
E(f'ds_read_b128 {vr(vQa,4)}, v{vQx}', f'ds_read_b128 {vr(vQb,4)}, v{vQx} offset:1024',
  f'ds_read_b128 {vr(aK,4)}, v{vKa}', f'ds_read_b128 {vr(aK+4,4)}, v{vKa} offset:2048', f's_mov_b64 exec, {sr(sVM,2)}')
for j in range(4): e(f'ds_read_b128 {vr(aV+4*j,4)}, v{vVa} offset:{(j>>1)*2048+1024+(j&1)*512}')
E('s_mov_b64 exec, -1', 's_waitcnt lgkmcnt(5)',
  f'v_mfma_f32_32x32x16_bf16 {vr(aSa,16)}, {vr(aK,4)}, {vr(vQa,4)}, 0',
  f'v_mfma_f32_32x32x16_bf16 {vr(aSb,16)}, {vr(aK,4)}, {vr(vQb,4)}, 0', 's_nop 10')
maxtree([aSa+i for i in range(16)], vT0, vT1)
maxtree([aSb+i for i in range(16)], vT2, vT3)
E(f'v_permlane32_swap_b32 v{vT0}, v{vT1}', f'v_max_f32 v{vT0}, v{vT0}, v{vT1}', f'v_permlane32_swap_b32 v{vT2}, v{vT3}',
  f'v_sub_f32 v{aCa}, {f32(-MOFF)}, v{vT0}', f'v_max_f32 v{vT2}, v{vT2}, v{vT3}')
for i in range(1, 16): e(f'v_mov_b32 v{aCa+i}, v{aCa}')
E(f'v_sub_f32 v{aCb}, {f32(-MOFF)}, v{vT2}', f'v_mov_b32 v{aCb+1}, v{aCb}',
  f'v_mfma_f32_32x32x16_bf16 {vr(aSa,16)}, {vr(aK,4)}, {vr(vQa,4)}, {vr(aCa,16)}')
for i in range(2, 16): e(f'v_mov_b32 v{aCb+i}, v{aCb}')
E('s_waitcnt lgkmcnt(0)', f'v_exp_f32 v{aSa}, v{aSa}', f'v_exp_f32 v{aSa+1}, v{aSa+1}', 's_branch L_att_entry')

def dtile(par, ld_off, entry=False):
    K = aK + 8 * par; Kn = aK + 8 * (par ^ 1)
    V = aV + 16 * par; Vn = aV + 16 * (par ^ 1)
    def ex(S, a, b):
        for i in range(a, b): e(f'v_exp_f32 v{S+i}, v{S+i}')
    def pv(O, Vr, P): e(f'v_smfmac_f32_32x32x32_bf16 {vr(O,16)}, {vr(Vr,4)}, {vr(P,8)}, v{vIdx}')
    def qk(S, Kr, Q, C): e(f'v_mfma_f32_32x32x16_bf16 {vr(S,16)}, {vr(Kr,4)}, {vr(Q,4)}, {vr(C,16)}')
    ex(aSa, 0, 2); pv(aOb, Vn+12, aSb+8)
    if entry: lab('L_att_entry')
    e(f's_mov_b64 exec, {sr(sVM,2)}')
    for j in range(4): e(f'ds_read_b128 {vr(Vn+4*j,4)}, v{vVa} offset:{ld_off+(j>>1)*2048+1024+(j&1)*512}')
    e('s_mov_b64 exec, -1')
    ex(aSa, 2, 5); qk(aSb, K, vQb, aCb)
    E(f'ds_read_b128 {vr(Kn,4)}, v{vKa} offset:{ld_off}', f'ds_read_b128 {vr(Kn+4,4)}, v{vKa} offset:{ld_off+2048}')
    ex(aSa, 5, 10); pv(aOa, V, aSa); ex(aSa, 10, 16)
    ex(aSb, 0, 2); pv(aOa, V+4, aSa+8); ex(aSb, 2, 5); qk(aSa, K+4, vQa, aCa); ex(aSb, 5, 10); pv(aOb, V, aSb); ex(aSb, 10, 16)
    ex(aSa, 0, 2); pv(aOb, V+4, aSb+8); ex(aSa, 2, 5); qk(aSb, K+4, vQb, aCb); ex(aSa, 5, 10); pv(aOa, V+8, aSa); ex(aSa, 10, 16)
    ex(aSb, 0, 2); pv(aOa, V+12, aSa+8); e('s_waitcnt lgkmcnt(0)'); ex(aSb, 2, 5); qk(aSa, Kn, vQa, aCa); ex(aSb, 5, 10); pv(aOb, V+8, aSb); ex(aSb, 10, 16)

e('.p2align 6')
lab('L_att_top')
E(f'v_xor_b32 v{vKa}, 16384, v{vKa}', f'v_xor_b32 v{vVa}, 16384, v{vVa}', f's_cmp_eq_u32 s{sC}, 8', 's_barrier')
dtile(1, 0)
e('s_cbranch_scc1 L_att_done')
dtile(0, 4096, entry=True)
e('s_barrier')
dtile(1, 8192)
dtile(0, 12288)
E(f's_add_u32 s{sC}, s{sC}, 1', 's_branch L_att_top')
NBAR_Y = NBAR[0] - 2 + 16
lab('L_att_done')
E(f'ds_read_b32 v{vFl}, v{vKa}', f'v_smfmac_f32_32x32x32_bf16 {vr(aOb,16)}, {vr(aV+16+12,4)}, {vr(aSb+8,8)}, v{vIdx}')
stamp(4, 'all'); stamp(2, 'tail')
cstamp(11)
def chk(O, t):
    E(f'v_maximum3_f32 v{t}, abs(v{O}), abs(v{O+1}), abs(v{O+2})', f'v_maximum3_f32 v{t}, v{t}, abs(v{O+3}), abs(v{O+4})',
      f'v_maximum3_f32 v{t}, v{t}, abs(v{O+5}), abs(v{O+6})', f'v_maximum3_f32 v{t}, v{t}, abs(v{O+7}), v{O+8}')
def fin(O, t, d):
    for i in range(0, 8, 2): e(f'v_pk_mul_f32 {vr(d+4+i,2)}, {vr(O+i,2)}, {vr(t,2)} op_sel_hi:[1,0]')
    for i in range(4): e(f'v_cvt_pk_bf16_f32 v{d+i}, v{d+4+2*i}, v{d+4+2*i+1}')
lab('L_att_fin')
PADON[0] = opt('pad', 0); PADCNT[0] = 1000
E(f'v_rcp_f32 v{vT0}, v{aOa+8}', f's_mov_b32 s{sT0}, 0x7e000000')
chk(aOa, vT1)
fin(aOa, vT0, 16)
E(f'v_rcp_f32 v{vT2}, v{aOb+8}', 's_waitcnt lgkmcnt(0)', f'v_readfirstlane_b32 s{sT1}, v{vFl}')
chk(aOb, vT3)
fin(aOb, vT2, 28)
E(f'v_maximum3_f32 v{vT1}, v{vT1}, v{vT3}, v{vT3}', f'v_cmp_nle_f32 vcc, v{vT1}, s{sT0}'.replace('vcc, v', 'vcc, v'), f's_cmp_eq_u32 s{sT1}, 1', 's_cbranch_vccnz L_fallback')
lab('L_att_ok')
E('s_cbranch_scc0 L_st_slow',
  f'buffer_store_dwordx4 {vr(16,4)}, v{vL16}, {sr(S_WS,4)}, s{sOslot} offen',
  f'buffer_store_dwordx4 {vr(28,4)}, v{vL16}, {sr(S_WS,4)}, s{sOslot} offen offset:1024')
lab('L_st_j')
stamp(3, 'tail')
w_reads()
e(f's_mov_b32 s{sSpin}, {SPIN//10}')
if opt('tslp', 0): e(f's_sleep {opt("tslp", 0)}')
stamp(4, 'tail')
NPRE = opt('npre', 2)
o_loads(None, range(NPRE))
e(f's_mov_b32 s{sC}, 2')

cm('================ tail: out projections (X: branch A, Y: branch B) ================')
lab('L_tail_go')
e('s_waitcnt lgkmcnt(0)')
for g in range(4):
    rt = g >> 1
    b_ = oOf + 16 * g
    e(f's_waitcnt vmcnt({4*(min(4, NPRE+g)-g-1)})')
    lab(f'L_tg{g}')
    E(f'v_max3_u32 v{vT0}, v{b_}, v{b_+1}, v{b_+2}', f'v_max3_u32 v{vT1}, v{b_+3}, v{b_+4}, v{b_+5}')
    for k in range(6, 16, 2):
        t = vT0 if (k >> 1) & 1 else vT1
        e(f'v_max3_u32 v{t}, v{t}, v{b_+k}, v{b_+k+1}')
    E(f'v_max_u32 v{vT0}, v{vT0}, v{vT1}', f'v_cmp_eq_u32 vcc, -1, v{vT0}', f's_cbranch_vccnz L_tr{g}')
    lab(f'L_tk{g}')
    if g == 0: stamp(5, 'tail', 'all')
    if NPRE + g < 4: o_loads(None, [NPRE + g])
    if g == 2: e('s_barrier')
    order = [(s_, ct) for s_ in range(4*(g&1), 4*(g&1)+4) for ct in range(2)]
    if g == 3: order = sorted(order, key=lambda z: z[1])
    for m_, (s_, ct) in enumerate(order):
        a_ = oAcc + 32 * rt + 16 * ct
        e(f'v_mfma_f32_32x32x16_bf16 {vr(a_,16)}, {vr(oW+8*s_+4*ct,4)}, {vr(oOf+32*rt+4*s_,4)}, {"0" if s_ == 0 else vr(a_,16)}')
        if g == 2:
            e(f'ds_write_b128 v{80+m_ if m_ else vTp}, {vr(oAcc+4*m_,4)}')
e('s_nop 7')
PADON[0] = False
lab('L_tail_wr')
stamp(6, 'tail')
for q in range(8):
    e(f'ds_write_b128 v{80+q if q else vTp}, {vr(oAcc+32+4*q,4)} offset:8192')
E('s_waitcnt lgkmcnt(0)', 's_barrier')
stamp(7, 'tail')
lab('L_red')
tR = 96
for kq in range(4):
    E(f'ds_read_b128 {vr(tR+8*kq,4)}, v{vTr0} offset:{kq*16384}', f'ds_read_b128 {vr(tR+8*kq+4,4)}, v88 offset:{kq*16384}')
e('s_waitcnt lgkmcnt(4)')
for i in range(0, 8, 2): e(f'v_pk_add_f32 {vr(tR+i,2)}, {vr(tR+i,2)}, {vr(tR+8+i,2)}')
e('s_waitcnt lgkmcnt(0)')
for a_, b_ in ((16, 24), (0, 16)):
    for i in range(0, 8, 2): e(f'v_pk_add_f32 {vr(tR+a_+i,2)}, {vr(tR+a_+i,2)}, {vr(tR+b_+i,2)}')
for i in range(4): e(f'v_cvt_pk_bf16_f32 v{16+i}, v{tR+2*i}, v{tR+2*i+1}')
e(f'buffer_store_dwordx4 {vr(16,4)}, v{vTo}, {sr(S_OUT,4)}, s{sOutOff} offen{opt("of", "_nt").replace("_", " ")}')
E(f's_cmp_eq_u32 s{sC}, 2', 's_cbranch_scc1 L_fin',
  f's_add_u32 s{sC}, s{sC}, 1', f's_cmp_eq_u32 s{sC}, 1', f's_cselect_b32 s{sT0}, 1, 8', f's_cselect_b32 s{sT1}, 64, 1', f's_lshl_b32 s{sT1}, s{sT1}, 10', f's_lshl_b32 s{sT0}, s{sT0}, 13',
  f'v_add_u32 v{vTr0}, s{sT0}, v{vTr0}', f'v_add_u32 v88, s{sT0}, v88', f's_add_u32 s{sOutOff}, s{sOutOff}, s{sT1}',
  f's_cmp_eq_u32 s{sC}, 1', 's_cbranch_scc1 L_red', 's_barrier', 's_branch L_red')
lab('L_fin')
if STAMPS:
    stamp(8, 'tail')
    e('s_waitcnt vmcnt(0)')
    stamp(9, 'tail', 'head'); stamp(6, 'all')
    E('s_waitcnt lgkmcnt(0)', 's_nop 1')
    ECHO = [a[7:] for a in sys.argv if a.startswith('--echo=')]
    if ECHO:
        a_, b_, mul = map(int, ECHO[0].split(','))
        E(f's_sub_u32 s{sT0}, s{sST+2*b_}, s{sST+2*a_}', f's_mul_i32 s{sT0}, s{sT0}, {mul}')
        if opt('ehg', -1) >= 0:
            E(f's_cmp_eq_u32 s{sHG}, {opt("ehg", -1)}', f's_cselect_b32 s{sT0}, s{sT0}, 0', f's_cmp_ge_u32 s{sW}, 4', f's_cselect_b32 s{sT0}, s{sT0}, 0')
        lab('L_echo')
        E(f's_memrealtime {sr(4,2)}', 's_waitcnt lgkmcnt(0)', f's_sub_u32 s{sT1}, s4, s{sST+12}', f's_cmp_lt_u32 s{sT1}, s{sT0}', 's_cbranch_scc1 L_echo')
    for i in range(12): e(f'v_mov_b32 v{16+i}, s{sST+2*i}')
    E(f's_getreg_b32 s{sT0}, hwreg(HW_REG_XCC_ID)', f'v_mov_b32 v28, s{sT0}', f'v_mov_b32 v29, s{sSpin}', f'v_mov_b32 v30, s{sFB}', 'v_mov_b32 v31, 0',
      f's_lshl_b32 s{sT0}, s2, 3', f's_add_u32 s{sT0}, s{sT0}, s{sW}', f's_lshl_b32 s{sT0}, s{sT0}, 6', f's_add_u32 s{sT0}, s{sT0}, {hex(WS_STAMP)}',
      'v_mov_b32 v0, 0', 's_mov_b64 exec, 1')
    for i in range(4):
        e(f'buffer_store_dwordx4 {vr(16+4*i,4)}, v0, {sr(S_WS,4)}, s{sT0} offen offset:{16*i}')
lab('L_end')
e('s_endpgm')

cm('================ X program (waves 0-3) ================')
VMQ[:] = []; NBAR[0] = 0
xAcc, xFr, xMask = 96, 160, 32
xa, xb, xw = 56, 60, 64
(xFw, xLq, xLv, xLvp, xOne) = (72, 73, 74, 75, 76)
XV, XM, PACE = opt('xv', 2), opt('xm', 0), opt('pace', 2)
e('.p2align 6')
lab('L_X')
srd(S_WQ, 0x80000); srd(S_XA, 0x200000); srd(S_WQKV, 0x180000)
E(f's_or_b32 s{sT1}, s2, s{sW}', 's_cbranch_scc1 L_nonon', 's_waitcnt lgkmcnt(0)',
  f's_lshl_b64 {sr(sNon,2)}, {sr(sNon,2)}, 5', f's_or_b32 s{sNon}, s{sNon}, 1', f'v_mov_b32 v{vNon}, s{sNon}', f'v_mov_b32 v{vNon+1}, s{sNon+1}', 's_mov_b64 exec, 1',
  f'global_store_dwordx2 v{vZero}, {vr(vNon,2)}, {sr(S_DBG,2)} sc1', 's_mov_b64 exec, -1')
lab('L_nonon')
E(f'v_and_b32 v{vT3}, 1, v{vG}', f'v_lshlrev_b32 v{vT3}, 2, v{vT3}', f'v_xor_b32 v{vT3}, v{vT3}, v{vT2}', f'v_lshlrev_b32 v{vT3}, 4, v{vT3}',
  f'v_lshl_add_u32 v{vW}, v{vT1}, 10, v{vT3}', f'v_add_u32 v{vW2}, {8192-1024}, v{vW}',
  f'v_mul_u32_u24 v{vWA}, 3072, v{vT1}', f'v_add_u32 v{vWA}, v{vWA}, v{vT3}')
lane_setup()
SH4 = ['0', f's{sVM}', f's{sVM+1}', f's{sC}']; RG4 = [82, 84, 86, 88]
qx, qw = 56, 64
E(f'v_bfe_u32 v{vXx}, v{vN}, 1, 3', f'v_xor_b32 v{vXx}, v{vXx}, v{vH}', f'v_lshlrev_b32 v{vXx}, 4, v{vXx}',
  f's_and_b32 s{sF0}, s{sW}, 1', f's_lshl_b32 s{sF0}, s{sF0}, 12', f'v_lshl_add_u32 v{qx}, v{vN}, 7, v{vXx}', f'v_add_u32 v{qx}, s{sF0}, v{qx}',
  f'v_xor_b32 v{qx+1}, 32, v{qx}', f'v_xor_b32 v{qx+2}, 64, v{qx}', f'v_xor_b32 v{qx+3}, 96, v{qx}',
  f's_and_b32 s{sF2}, s{sW}, 2', f's_lshl_b32 s{sF2}, s{sF2}, 5', f'v_xor_b32 v{qw}, s{sF2}, v{vWl}', f'v_add_u32 v{qw}, 8192, v{qw}', f'v_add_u32 v{qw+1}, 65536, v{qw}',
  f's_mov_b32 s{sCS}, {f32(CSCALE)}')
for j in range(4): e(f'v_add_u32 v{qx+4+j}, 65536, v{qx+j}')
if opt('arot', 0): E(f's_add_u32 s{sXo}, s{sRot}, s{sHG}', f's_and_b32 s{sXo}, s{sXo}, 7', f's_lshl_b32 s{sXo}, s{sXo}, 7')
else: e(f's_mov_b32 s{sXo}, 0')
E(f's_lshl_b32 s{sW2k}, s{sW}, 11',
  f's_lshl_b32 s{sT3}, s{sRB}, 2', f's_add_u32 s{sT0}, s{sT3}, s{sW}', f's_lshl_b32 s{sT0}, s{sT0}, 14', f'v_add_u32 v{vXA}, s{sT0}, v{vP0}', f'v_add_u32 v{vXA2}, s{sT0}, v{vP1}',
  f's_mul_i32 s{sT0}, s{sW}, {16*3072}', f's_add_u32 s{sT0}, s{sT0}, s{sHG128}', f'v_add_u32 v{vWA}, s{sT0}, v{vWA}', f'v_add_u32 v{vWA2}, {8*3072-1024}, v{vWA}')
def w64(srd_, lds_base_sgpr, lds, tag):
    for hf in range(2):
        E(f's_add_u32 m0, s{lds_base_sgpr}, {lds+hf*4096}', f's_add_u32 s{sT1}, s{sT0}, {2*7168}')
        dma(vW, srd_, f's{sT0}', 0, '', tag); dma(vW2, srd_, f's{sT0}', 1024, '', tag)
        dma(vW, srd_, f's{sT1}', 2048, '', tag); dma(vW2, srd_, f's{sT1}', 3072, '', tag)
        if hf == 0: e(f's_add_u32 s{sT0}, s{sT0}, 32768')
vTc = 68
def touch_setup():
    E(f's_lshr_b32 s{sT0}, s2, 3', f's_lshl_b32 s{sT0}, s{sT0}, 2', f's_add_u32 s{sT0}, s{sT0}, s{sW}',
      f's_mul_i32 s{sT1}, s{sT0}, {12*128}', f'v_mul_u32_u24 v{vTc}, {196608}, v{vG}', f'v_lshl_add_u32 v{vTc}, v{vI}, 7, v{vTc}', f'v_add_u32 v{vTc}, s{sT1}, v{vTc}',
      f's_lshl_b32 s{sT1}, s{sT0}, 12', f'v_lshlrev_b32 v{vTc+1}, 7, v{vN}', f'v_add_u32 v{vTc+1}, s{sT1}, v{vTc+1}',
      f's_lshl_b32 s{sT1}, s{sHG}, 2', f's_add_u32 s{sT1}, s{sT1}, s{sW}', f's_lshl_b32 s{sT1}, s{sT1}, 11', f's_lshl_b32 s{sT2}, s{sRB}, 16', f's_add_u32 s{sT1}, s{sT1}, s{sT2}',
      f'v_lshlrev_b32 v{vTc+2}, 7, v{vI}', f'v_add_u32 v{vTc+2}, s{sT1}, v{vTc+2}')
def touch_w(j):
    E(f's_mov_b32 s{sT0}, {j*4*196608}', 's_mov_b32 exec_lo, 0x0fff0fff', 's_mov_b32 exec_hi, 0x0fff0fff')
    e(f'buffer_load_dword v{vTc+3}, v{vTc}, {sr(S_WQKV,4)}, s{sT0} offen', 'tc')
    e('s_mov_b64 exec, -1')
def touch_x():
    e('s_mov_b64 exec, 0xffff')
    e(f'buffer_load_dword v{vTc+3}, v{vTc+2}, {sr(S_XA,4)}, 0 offen{NT}', 'tc')
    e('s_mov_b64 exec, -1')
def touch_wo(srd_):
    e('s_mov_b32 exec_hi, 0')
    e(f'buffer_load_dword v{vTc+3}, v{vTc+1}, {sr(srd_,4)}, 0 offen', 'tc')
    e('s_mov_b64 exec, -1')
TC = opt('tc', 0)
def halo_fill():
    E(f's_lshl_b32 s{sT3}, s{sRB}, 16', f's_sub_u32 s{sT2}, s{sT3}, 16384', f's_max_i32 s{sT2}, s{sT2}, 0',
      f's_lshl_b32 s{sT0}, s{sW}, 7', f's_add_u32 s{sT0}, s{sT0}, s{sStepH}')
    for j in range(2):
        E(f's_and_b32 s{sT0}, s{sT0}, 1023', f's_add_u32 m0, s{sW2k}, {HALO+j*8192}', f's_add_u32 s{sT1}, s{sT2}, s{sT0}')
        dma(vP0, S_XA, f's{sT1}', 0, '', 'halo'); dma(vP1, S_XA, f's{sT1}', 1024, '', 'halo')
        if j == 0: e(f's_add_u32 s{sT0}, s{sT0}, 512')
def a_fill(c):
    slot = (c & 3) * SLOT
    t = f'A{c}'
    E(f's_add_u32 m0, s{sW2k}, {slot}', f's_mul_i32 s{sWo}, s{sXo}, 1536')
    dma(vXA, S_XA, f's{sXo}', 0, NT, t); dma(vXA2, S_XA, f's{sXo}', 1024, NT, t)
    for ty in range(3):
        E(f's_add_u32 m0, s{sW2k}, {slot+8192+ty*8192}', [f's_add_u32 s{sXo}, s{sXo}, 128', f's_add_u32 s{sWo}, s{sWo}, 1024', f's_add_u32 s{sWo}, s{sWo}, 1024'][ty])
        dma(vWA, S_WQKV, f's{sWo}', 0, WNT, t); dma(vWA2, S_WQKV, f's{sWo}', 1024, WNT, t)
    e(f's_and_b32 s{sXo}, s{sXo}, 1023')
def kv_fill(k):
    E(f's_add_u32 m0, s{sW4k}, {R+((k&1)^1)*16384}', f's_and_b32 s{sKVo}, s{sKVo}, 0x1ffff')
    for j in range(4): dma(vL16, S_WS, f's{sKVo}', 1024*j, ' sc1', f'KV{k}')
    e(f's_add_u32 s{sKVo}, s{sKVo}, 16384')
def wo_fill(srd_, half, lds, tag):
    e(f's_add_u32 s{sT0}, s{sWoff}, {half*256*1024}')
    w64(srd_, sW8k, lds, tag)
def masks():
    E(f'v_lshlrev_b32 v{vT0}, 2, v{vH}', f'v_sub_u32 v{vT0}, v{vN}, v{vT0}', f'v_add_u32 v{vT0}, 18, v{vT0}',
      f'v_mov_b32 v{vT2}, 0x5555', f'v_mov_b32 v{vT3}, 0', f'v_lshlrev_b64 {vr(vT2,2)}, v{vT0}, {vr(vT2,2)}',
      f'v_not_b32 v{vT2}, v{vT2}', f'v_not_b32 v{vT3}, v{vT3}', f's_mov_b32 s{sF1}, 0xff800000')
    for r in range(16): E(f'v_bfe_i32 v{xMask+r}, v{vT3}, {8*(r>>2)+(r&3)}, 1', f'v_and_b32 v{xMask+r}, s{sF1}, v{xMask+r}')
    for r in range(8, 16): E(f'v_bfe_i32 v{xMask+8+r}, v{vT2}, {8*(r>>2)+(r&3)}, 1', f'v_and_b32 v{xMask+8+r}, s{sF1}, v{xMask+8+r}')
def local_setup():
    E(f's_and_b32 s{sT0}, s{sW}, 1', f's_lshl_b32 s{sT0}, s{sT0}, 12', f's_lshr_b32 s{sT1}, s{sW}, 1', f's_lshl_b32 s{sT2}, s{sT1}, 11', f's_add_u32 s{sT0}, s{sT0}, s{sT2}', f's_add_u32 s{sT0}, s{sT0}, {SC}', f'v_add_u32 v{xFw}, s{sT0}, v{vL16}',
      f's_lshl_b32 s{sT0}, s{sRB}, 3', f's_add_u32 s{sT0}, s{sT0}, s{sHG}', f's_lshl_b32 s{sStepA}, s{sT0}, 13', f's_add_u32 s{sStepA}, s{sStepA}, s{sT2}', f's_add_u32 s{sStepA}, s{sStepA}, {hex(WS_HX)}',
      f's_lshl_b32 s{sStepB}, s{sT0}, 1', f's_add_u32 s{sStepB}, s{sStepB}, s{sT1}', f's_lshl_b32 s{sStepB}, s{sStepB}, 6', f's_add_u32 s{sStepB}, s{sStepB}, {hex(WS_FHX)}',
      f's_cmp_eq_u32 s{sRB}, 0', f's_cselect_b32 s{sT2}, 0, 8', f's_sub_u32 s{sT0}, s{sT0}, s{sT2}', f's_lshl_b32 s{sT2}, s{sT2}, 7', f's_sub_u32 s{sT2}, s{sStepB}, s{sT2}', f'v_mov_b32 v{vB1}, s{sT2}',
      f's_lshl_b32 s{sStepH}, s{sT0}, 13', f's_lshl_b32 s{sT2}, s{sW}, 10', f's_add_u32 s{sStepH}, s{sStepH}, s{sT2}', f's_add_u32 s{sStepH}, s{sStepH}, {hex(WS_HX)}',
      f'v_mov_b32 v{xOne}, 0x3f803f80', f'v_mov_b32 v{xOne+1}, 0x3f803f80',
      f's_lshl_b32 s{sT1}, s{sW}, 10', f's_add_u32 s{sT2}, s{sT1}, {ONES}', f's_add_u32 s{sT1}, s{sT1}, {SC}', f'v_add_u32 v{xLq}, s{sT1}, v{vL16}',
      f'v_and_b32 v{vT0}, 1, v0', f'v_lshlrev_b32 v{vT0}, 5, v{vT0}', f'v_lshl_add_u32 v{vT0}, v{vH}, 3, v{vT0}',
      f'v_lshrrev_b32 v{vT1}, 2, v{vI}', f'v_add_u32 v{vT0}, v{vT0}, v{vT1}', f'v_lshlrev_b32 v{vT0}, 4, v{vT0}', f'v_and_b32 v{vT1}, 2, v0', f'v_lshl_add_u32 v{vT0}, v{vT1}, 2, v{vT0}',
      f'v_add_u32 v{xLv}, s{sT1}, v{vT0}', f'v_mov_b32 v{xLvp}, s{sT2}', f'v_lshl_add_u32 v{vOw}, v0, 3, v{xLvp}',
      f'v_and_b32 v{vT0}, 16, v0', f'v_cmp_ne_u32 vcc, 0, v{vT0}',
      f'v_add_u32 v78, {4*4096}, v{xLv}', f'v_add_u32 v79, {5*4096}, v{xLv}', f'v_add_u32 v80, {7*4096}, v{xLv}',
      f'v_cndmask_b32 v78, v78, v{xLvp}, vcc', f'v_cndmask_b32 v79, v79, v{xLvp}, vcc', f'v_cndmask_b32 v80, v80, v{xLvp}, vcc',
      f's_lshl_b32 s{sT0}, s{sRB}, 6', f's_lshl_b32 s{sT1}, s{sHG}, 2', f's_add_u32 s{sT1}, s{sT1}, s{sW}', f's_add_u32 s{sT0}, s{sT0}, s{sT1}',
      f's_lshl_b32 s{sT0}, s{sT0}, 10', f's_add_u32 s{sOslot}, s{sT0}, {hex(WS_OA)}', f's_add_u32 s{sOslot2}, s{sOslot}, 32768',
      f's_lshl_b32 s{sT0}, s{sRB}, 5', f's_add_u32 s{sT0}, s{sT0}, s{sT1}', f's_lshl_b32 s{sT0}, s{sT0}, 6', f's_add_u32 s{sK1}, s{sT0}, {hex(WS_FOA)}')
    for i in range(4): e(f'v_mov_b32 v{vF0+i}, -1')
def sentinels():
    E(f's_add_u32 s{sT0}, s{sOslot}, {hex(WS_OB-WS_OA)}', f's_add_u32 s{sT1}, s{sT0}, 32768')
    e(f'buffer_store_dwordx4 {vr(vF0,4)}, v{vL16}, {sr(S_WS,4)}, s{sT0} offen sc1', 'sent')
    e(f'buffer_store_dwordx4 {vr(vF0,4)}, v{vL16}, {sr(S_WS,4)}, s{sT1} offen sc1', 'sent')
    nonce_load('sent')
def setup_a():
    E(f's_cmp_eq_u32 s{sW}, 3', f's_cselect_b32 s{sT1}, 15, 31', f'v_and_b32 v{vT0}, s{sT1}, v{vN}', f'v_lshl_add_u32 v{xa}, v{vT0}, 7, v{vXx}',
      f's_cselect_b32 s{sT1}, {HALO}, 0', f'v_add_u32 v{xa}, s{sT1}, v{xa}', f's_cselect_b32 s{sT1}, 0, 4096', f'v_add_u32 v{xb}, s{sT1}, v{xa}',
      f's_cselect_b32 s{sStepA}, 1, 16', f's_cselect_b32 s{sStepB}, 1, -32', f's_cselect_b32 s{sT1}, 1, s{sW}', f's_cselect_b32 s{sT2}, 2, s{sW}',
      f's_lshl_b32 s{sStepA}, s{sStepA}, 11', f's_lshl_b32 s{sStepB}, s{sStepB}, 11',
      f's_lshl_b32 s{sT1}, s{sT1}, 13', f's_add_u32 s{sT1}, s{sT1}, 8192', f'v_add_u32 v{xw}, s{sT1}, v{vWl}', f'v_xor_b32 v{xw+1}, 64, v{xw}',
      f's_lshl_b32 s{sT2}, s{sT2}, 13', f's_add_u32 s{sT2}, s{sT2}, 8192', f'v_add_u32 v{xw+2}, s{sT2}, v{vWl}', f'v_xor_b32 v{xw+3}, 64, v{xw+2}')
    for j in range(4): e(f'v_add_u32 v{xw+4+j}, 65536, v{xw+j}')
    for s_ in range(1, 4): E(f'v_xor_b32 v{xa+s_}, {32*s_}, v{xa}', f'v_xor_b32 v{xb+s_}, {32*s_}, v{xb}')
def setup_b():
    E(f's_lshr_b32 s{sT1}, s{sRB}, 2', f's_lshl_b32 s{sKVo}, s{sT1}, 14', f's_add_u32 s{sKVo}, s{sKVo}, s{sW4k}', f's_add_u32 s{sKVo}, s{sKVo}, 16384',
      f'v_lshlrev_b32 v{vPa}, 3, v0', f'v_add_u32 v{vPa}, {hex(WS_FD)}, v{vPa}',
      f'v_lshlrev_b32 v{vPa2}, 6, v{vN}', f's_lshl_b32 s{sT2}, s{sRB}, 11', f's_add_u32 s{sT2}, s{sT2}, {hex(WS_FOA)}', f'v_add_u32 v{vPa2}, s{sT2}, v{vPa2}',
      f's_add_u32 s{sT2}, s{sT1}, 1', f's_lshl_b32 s{sT2}, s{sT2}, 5', f'v_add_u32 v{vB0}, s{sT2}, v0', f'v_and_b32 v{vB0}, 255, v{vB0}',
      f'v_lshlrev_b32 v{vB0}, 6, v{vB0}', f'v_add_u32 v{vB0}, {hex(WS_FKV)}, v{vB0}',
      f's_mov_b32 s{sVM}, 512', f's_mov_b32 s{sVM+1}, 1024', f's_mov_b32 s{sC}, 1536',
      f's_lshl_b32 s{sW8k}, s{sW}, 13', f's_lshl_b32 s{sWoff}, s{sW}, 16', f's_add_u32 s{sWoff}, s{sWoff}, s{sHG128}')
    srd(S_WOA, 0x80000); srd(S_WOB, 0x80000)
    E(f's_getreg_b32 s{sXcc}, hwreg(HW_REG_XCC_ID, 0, 4)', f's_lshl_b32 s{sXcc}, s{sXcc}, 1')
setup_b()
E(f's_add_u32 s{sT0}, s{sW}, s{sRot}', f's_lshl_b32 s{sT0}, s{sT0}, 16', f's_add_u32 s{sT0}, s{sT0}, s{sHG128}', f's_lshl_b32 s{sT2}, s{sW}, 14',
  f's_and_b32 s{sT0}, s{sT0}, 0x7ffff', 's_waitcnt lgkmcnt(0)', 's_barrier')
w64(S_WQ, sT2, 8192, 'B')
E(f's_add_u32 s{sT0}, s{sT0}, {4*65536-32768}', f's_and_b32 s{sT0}, s{sT0}, 0x7ffff')
w64(S_WQ, sT2, 65536+8192, 'B')
stamp(1, 'head')
local_setup(); tail_setup(); masks()
if TC: touch_setup()
for j in range(16): e(f'v_mov_b32 v{208+j}, 0')
E('s_waitcnt vmcnt(0)', 's_barrier')
stamp(5, 'head'); stamp(1, 'all', 'x')
def qrd(u):
    sc, st = u >> 2, u & 3
    x = vFr + 8 * (u % 8)
    hi = sc >> 2
    o = (sc & 3) * 16384
    E(f'ds_read_b128 {vr(x,4)}, v{qx+4*hi+st} offset:{o}',
      f'ds_read_b64_tr_b16 {vr(x+4,2)}, v{qw+hi} offset:{o+st*2048}', f'ds_read_b64_tr_b16 {vr(x+6,2)}, v{qw+hi} offset:{o+st*2048+512}')
for u in range(5): qrd(u)
if TC & 8: touch_x(); touch_w(0)
for u in range(32):
    x = vFr + 8 * (u % 8)
    issued = min(32, 5 + u)
    e(f's_waitcnt lgkmcnt({3*(issued-u-1)})')
    e(f'v_mfma_f32_32x32x16_bf16 {vr(vQacc,16)}, {vr(x+4,4)}, {vr(x,4)}, {"0" if u == 0 else vr(vQacc,16)}')
    if 5 + u < 32: qrd(5 + u)
    if EA and u == 7: e('s_barrier')
    if EA and u == EA: a_fill(0)
E(f's_cmp_lg_u32 s{sW}, 0', 's_cbranch_scc1 L_np2')
poll_issue(vB0, ['0'], [vFl])
lab('L_np2')
e('s_nop 9')
stamp(6, 'head')
for j in range(16): e(f'v_mul_f32 v{vQacc+j}, s{sCS}, v{vQacc+j}')
for j in range(8): e(f'v_cvt_pk_bf16_f32 v{vQacc+j}, v{vQacc+2*j}, v{vQacc+2*j+1}')
E(f'ds_write_b128 v{vQx}, {vr(vQacc,4)}', f'ds_write_b128 v{vQx}, {vr(vQacc+4,4)} offset:1024',
  f's_setprio {XV}', 's_waitcnt lgkmcnt(0)')
stamp(7, 'head'); stamp(2, 'all', 'x')
e('s_barrier')
for j in range(16): e(f'v_mov_b32 v{16+j}, 0')
stamp(8, 'head'); stamp(3, 'all', 'x')

def a_chunk(cs):
    seq = []
    u = 0
    for c in cs:
        hi, base = (c >> 1) & 1, (c & 1) * SLOT
        for s in range(4):
            x = xFr + 16 * (u % 3); u += 1
            for ty in range(3):
                r = [f'ds_read_b128 {vr(x,4)}, v{qx+4*hi+s} offset:{base}'] if ty == 0 else []
                o = base + ty * 8192 + s * 2048
                r += [f'ds_read_b64_tr_b16 {vr(x+4+4*ty,2)}, v{qw+hi} offset:{o}', f'ds_read_b64_tr_b16 {vr(x+6+4*ty,2)}, v{qw+hi} offset:{o+512}']
                a = xAcc + 16 * ty
                seq.append((r, f'v_mfma_f32_32x32x16_bf16 {vr(a,16)}, {vr(x+4+4*ty,4)}, {vr(x,4)}, {"0" if (c == 0 and s == 0) else vr(a,16)}'))
    if XM != XV: e(f's_setprio {XM}')
    LA = opt('la', 1)
    for k_ in range(LA): E(*seq[k_][0])
    for k_, (r, m) in enumerate(seq):
        if k_ + LA < len(seq): E(*seq[k_+LA][0])
        e(f's_waitcnt lgkmcnt({sum(len(seq[j][0]) for j in range(k_+1, min(len(seq), k_+LA+1)))})')
        e(m)
    if XM != XV: e(f's_setprio {XV}')
def write_frags():
    e('s_nop 6')
    for ty in range(3):
        for hd in range(2):
            a = xAcc + 16 * ty + 8 * hd
            for i in range(4): e(f'v_cvt_pk_bf16_f32 v{a+i}, v{a+2*i}, v{a+2*i+1}')
            e(f'ds_write_b128 v{xFw}, {vr(a,4)} offset:{ty*8192+hd*1024}')
    E(f's_bitcmp1_b32 s{sW}, 0', 's_cbranch_scc0 L_nopub', f's_add_u32 s{sT0}, s{sStepA}, 4096',
      f'buffer_store_dwordx4 {vr(xAcc+16,4)}, v{vL16}, {sr(S_WS,4)}, s{sStepA} offen sc1',
      f'buffer_store_dwordx4 {vr(xAcc+24,4)}, v{vL16}, {sr(S_WS,4)}, s{sStepA} offen offset:1024 sc1',
      f'buffer_store_dwordx4 {vr(xAcc+32,4)}, v{vL16}, {sr(S_WS,4)}, s{sT0} offen sc1',
      f'buffer_store_dwordx4 {vr(xAcc+40,4)}, v{vL16}, {sr(S_WS,4)}, s{sT0} offen offset:1024 sc1')
    lab('L_nopub')
PUB = [0]
def halo_flag():
    E(f's_bitcmp1_b32 s{sW}, 0', 's_cbranch_scc0 L_nohf')
    flag_store('hx', f's{sStepB}', f's_waitcnt vmcnt({len(VMQ)-PUB[0]})')
    lab('L_nohf')
def halo_get():
    poll_check('hx', vB1, ['0'], [vFl], None)
    E(f's_lshl_b32 s{sT0}, s{sW}, 10', f's_add_u32 m0, s{sT0}, {SC+6*4096}', f's_add_u32 s{sT1}, s{sStepH}, 4096')
    dma(vL16, S_WS, f's{sStepH}', 0, ' sc1', 'hx')
    E(f's_add_u32 m0, s{sT0}, {SC+7*4096}', 's_nop 0')
    dma(vL16, S_WS, f's{sT1}', 0, ' sc1', 'hx')
def local_task(t):
    lq, lk, lp, lv = xFr, xFr+4, xFr+8, xFr+12
    lS, lP, lO = xAcc, xAcc+16, (16 if t else 208)
    kp = 6 if t == 0 else 2
    vc, vp = (78, 80) if t == 0 else (79, 78)
    E(f'ds_read_b128 {vr(lq,4)}, v{xLq} offset:{t*4096}', f'ds_read_b128 {vr(lk,4)}, v{xLq} offset:{(2+t)*4096}', f'ds_read_b128 {vr(lp,4)}, v{xLq} offset:{kp*4096}',
      f'ds_read_b64_tr_b16 {vr(lv,2)}, v{vc}', f'ds_read_b64_tr_b16 {vr(lv+2,2)}, v{vc} offset:64',
      f'ds_read_b64_tr_b16 {vr(lv+4,2)}, v{vc} offset:256', f'ds_read_b64_tr_b16 {vr(lv+6,2)}, v{vc} offset:320',
      f'ds_read_b64_tr_b16 {vr(lv+8,2)}, v{vp} offset:256', f'ds_read_b64_tr_b16 {vr(lv+10,2)}, v{vp} offset:320')
    if t == 0:
        E(f's_cmp_lg_u32 s{sRB}, 0', 's_cbranch_scc1 L_m0')
        for r in range(8): e(f'v_mov_b32 v{xMask+16+r}, 0xff800000')
        lab('L_m0')
    E('s_waitcnt lgkmcnt(6)', 's_nop 0',
      f'v_mfma_f32_32x32x16_bf16 {vr(lS,16)}, {vr(lk,4)}, {vr(lq,4)}, {vr(xMask,16)}',
      f'v_mfma_f32_32x32x16_bf16 {vr(lP,16)}, {vr(lp,4)}, {vr(lq,4)}, {vr(xMask+8,16)}')
    e('s_nop 10')
    regs = [lS+i for i in range(16)] + [lP+8+i for i in range(8)]
    maxtree(regs, vT0, vT1)
    E('s_nop 1', f'v_permlane32_swap_b32 v{vT0}, v{vT1}', f'v_max_f32 v{vT0}, v{vT0}, v{vT1}', f'v_mul_f32 v{vT0}, {f32(-CSCALE)}, v{vT0}')
    for k in range(0, 24, 2): e(f'v_pk_fma_f32 {vr(regs[k],2)}, {vr(regs[k],2)}, {sr(sCS,2)}, {vr(vT0,2)} op_sel_hi:[1,0,0]')
    e('s_waitcnt lgkmcnt(0)')
    for k in range(24):
        e(f'v_exp_f32 v{regs[k]}, v{regs[k]}')
        if k == 9: e(f'v_smfmac_f32_32x32x32_bf16 {vr(lO,16)}, {vr(lv,4)}, {vr(lS,8)}, v{vIdx}')
        if k == 17: e(f'v_smfmac_f32_32x32x32_bf16 {vr(lO,16)}, {vr(lv+4,4)}, {vr(lS+8,8)}, v{vIdx}')
    E('s_nop 1', f'v_smfmac_f32_32x32x32_bf16 {vr(lO,16)}, {vr(lv+8,4)}, {vr(lP+8,8)}, v{vIdx}', 's_nop 11',
      f'v_rcp_f32 v{vT2}, v{lO+8}', 's_nop 0')
    for i in range(0, 8, 2): e(f'v_pk_mul_f32 {vr(lO+i,2)}, {vr(lO+i,2)}, {vr(vT2,2)} op_sel_hi:[1,0]')
    d = xAcc + 48 + 4 * t
    for i in range(4): e(f'v_cvt_pk_bf16_f32 v{d+i}, v{lO+2*i}, v{lO+2*i+1}')
    e(f'buffer_store_dwordx4 {vr(d,4)}, v{vL16}, {sr(S_WS,4)}, s{sOslot2 if t else sOslot} offen sc1', 'oa')

def oa_mfma(rt, wr=False):
    for s_ in range(8):
        for ct in range(2):
            a_ = oAcc + 32 * rt + 16 * ct
            e(f'v_mfma_f32_32x32x16_bf16 {vr(a_,16)}, {vr(oW+8*s_+4*ct,4)}, {vr(oOf+32*rt+4*s_,4)}, {"0" if s_ == 0 else vr(a_,16)}')
            m_ = 2 * s_ + ct
            if wr and wr <= m_ < wr + 4:
                for q in (2*(m_-wr), 2*(m_-wr)+1): e(f'ds_write_b128 v{80+q if q else vTp}, {vr(oAcc+4*q,4)}')
PAT = opt('pat', 3)
if PAT == 3:
    CH = {n: [n-2] for n in range(2, 10)}; FILL = {n: [n] for n in range(8)}
else:
    CH = {2: [0], 3: [1], 4: [2], 5: [3, 4], 6: [5], 7: [6], 8: [7]}; FILL = {0: [0], 1: [1], 2: [2, 3], 3: [4], 4: [5], 5: [6], 6: [7]}
if EA:
    CH = {n: [n-1] for n in range(1, 9)}; FILL = {n: [n+1] for n in range(7)}
NG = max(CH)
LATE = opt('late', 1 if NG < 9 else 0)
AE = opt('aearly', 0)
for n in range(16):
    cm(f'X interval {n}')
    if n < 9: stamp(n + 1, 'i0')
    if n >= 8: stamp(n - 7, 'i1')
    if n in (1, 2, 4, 10, 12, 14): stamp({1: 4, 2: 5, 4: 6, 10: 7, 12: 8, 14: 9}[n], 'x')
    if STAMPS and STMODE == 'xc' and n in (4, 8, 10, 12, 14, 15):
        i_ = (4, 8, 10, 12, 14, 15).index(n)
        E(f's_memrealtime {sr(sST+4*i_,2)}', f's_memtime {sr(sST+4*i_+2,2)}')
    waits = []
    k = n // 2
    if n == 0:
        E(f's_cmp_lg_u32 s{sW}, 0', 's_cbranch_scc1 L_nochk_kv1')
        poll_check('kv1', vB0, ['0'], [vFl], 0)
    if n == 1: kv_fill(1)
    if n % 2 == 0 and 1 <= k <= 6: kv_fill(k + 1)
    if n == 3:
        E(f's_cmp_lg_u32 s{sW}, 0', 's_cbranch_scc1 L_np3')
        poll_issue(vPa, SH4, RG4)
        lab('L_np3')
        NP3 = len(VMQ)
    for c in FILL.get(n, []): a_fill(c)
    if n == NG - 1: sentinels(); wo_fill(S_WOA, 0, 0, 'woA')
    if n == NG: wo_fill(S_WOA, 1, SLOT, 'woA')
    if TC & 1 and n == 0: touch_x(); touch_w(0)
    if TC & 2 and n == 2: touch_w(1)
    if TC & 4 and n == 3: touch_wo(S_WOA)
    if TC & 4 and n == 5: touch_wo(S_WOB)
    if n in CH: a_chunk(CH[n])
    for c in CH.get(n + 1, []): waits.append(f'A{c}')
    if n == NG: write_frags(); PUB[0] = len(VMQ)
    if n == NG + 1:
        e(f'ds_write_b64 v{vOw}, {vr(xOne,2)}')
        if opt('hfe', 1): halo_flag()
        local_task(1)
        if not opt('hfe', 1): halo_flag()
    if n == NG + 2:
        halo_get(); waits.append('hx')
    if n == NG + 3: local_task(0)
    if n == NG + 4:
        flag_store('oa', f's{sK1}', f's_waitcnt vmcnt({vmn("oa")})', xcc=True)
        VMQ.append('fl')
        if LATE: wo_fill(S_WOB, 0, 2*SLOT, 'woB')
        w_reads()
    if LATE and n == NG + 5: wo_fill(S_WOB, 1, 3*SLOT, 'woB')
    if n == NG + 5 + LATE:
        E(f's_cmp_lg_u32 s{sW}, 0', 's_cbranch_scc1 L_skip_oa')
        poll_check('oa', vPa2, ['0'], [vFl], None, xcc=True)
        E(f'v_or_b32 v{vFl}, s{sXcc}, v{vNon}', f'v_cmp_ne_u32 vcc, v{vFl}, v{vFl+2}', 's_nop 1', 's_cmp_eq_u64 vcc, 0', f's_cselect_b32 s{sT0}, {opt("fast", 1)}, 0',
          f'v_mov_b32 v{vFl}, s{sT0}')
        lab('L_skip_oa')
        if not LATE: wo_fill(S_WOB, 0, 2*SLOT, 'woB'); wo_fill(S_WOB, 1, 3*SLOT, 'woB')
    if n == NG + 6 + LATE:
        E(f's_cmp_lg_u32 s{sW}, 0', 's_cbranch_scc1 L_skip_same', f'v_mov_b32 v{vFl+1}, {R+16384}', f'ds_write_b32 v{vFl+1}, v{vFl}')
        lab('L_skip_same')
        o_loads('oal')
    if n == 13 and opt('pad', 0):
        E('s_mov_b64 exec, 0', 's_branch L_pad0')
        lab(f'L_pad{PADS[0]}')
        e('s_mov_b64 exec, -1')
    if n == 15 and AE:
        E('s_waitcnt vmcnt(8)', f's_setprio {XM}')
        oa_mfma(0)
        e(f's_setprio {XV}')
    if n % 2 == 1 and k + 1 <= 7: waits.append(f'KV{k+1}')
    if n == 15: waits.append('woB')
    if waits: e(f's_waitcnt vmcnt({min(vmn(t) for t in waits)}) lgkmcnt(0)')
    else: e('s_waitcnt lgkmcnt(0)')
    if n == 3:
        E(f's_cmp_lg_u32 s{sW}, 0', 's_cbranch_scc1 L_nochk_kv2')
        poll_check('kv2', vPa, SH4, RG4, len(VMQ) - NP3)
    if n < 9: stamp(n + 1, 'j0')
    if n >= 8: stamp(n - 7, 'j1')
    e('s_barrier')
assert NBAR[0] == NBAR_Y, (NBAR[0], NBAR_Y)
E('s_setprio 0', f's_mov_b32 s{sSpin}, 0', f's_mov_b32 s{sC}, 0')
stamp(9, 'i1')
e('s_waitcnt vmcnt(0)')
stamp(5, 'tail')
if not AE: oa_mfma(0)
oa_mfma(1, 10)
E('s_nop 9', 's_branch L_tail_wr')

cm('---- fallback (Y waves): true max, K/V from global ----')
lab('L_fallback')
E(f's_cmp_eq_u32 s{sFB}, 0', 's_cbranch_scc1 L_fb_go', f's_cmp_eq_u32 s{sT1}, 1', 's_branch L_att_ok')
lab('L_fb_go')
E(f's_mov_b32 s{sFB}, 1', f'v_mov_b32 v{vT0}, 0xff800000', f'v_mov_b32 v{vT2}, 0xff800000', f's_mov_b32 s{sT2}, 0')
lab('L_fb_max')
E(f'buffer_load_dwordx4 {vr(aK,4)}, v{vL16}, {sr(S_WS,4)}, s{sT2} offen sc1', 's_waitcnt vmcnt(0)',
  f'v_mfma_f32_32x32x16_bf16 {vr(aSa,16)}, {vr(aK,4)}, {vr(vQa,4)}, 0', f'v_mfma_f32_32x32x16_bf16 {vr(aSb,16)}, {vr(aK,4)}, {vr(vQb,4)}, 0', 's_nop 15')
for k in range(0, 16, 2): e(f'v_max3_f32 v{vT0}, v{vT0}, v{aSa+k}, v{aSa+k+1}')
for k in range(0, 16, 2): e(f'v_max3_f32 v{vT2}, v{vT2}, v{aSb+k}, v{aSb+k+1}')
E(f's_add_u32 s{sT2}, s{sT2}, 2048', f's_cmp_lt_u32 s{sT2}, {64*2048}', 's_cbranch_scc1 L_fb_max',
  f'v_mov_b32 v{vT1}, v{vT0}', f'v_mov_b32 v{vT3}, v{vT2}', 's_nop 1',
  f'v_permlane32_swap_b32 v{vT0}, v{vT1}', f'v_permlane32_swap_b32 v{vT2}, v{vT3}', f'v_max_f32 v{vT0}, v{vT0}, v{vT1}', f'v_max_f32 v{vT2}, v{vT2}, v{vT3}')
for i in range(16): e(f'v_sub_f32 v{aCa+i}, 0, v{vT0}')
for i in range(16): e(f'v_sub_f32 v{aCb+i}, 0, v{vT2}')
for i in range(32): e(f'v_mov_b32 v{aOa+i}, 0')
E(f'v_lshlrev_b32 v{vT2}, 4, v{vI}', f'v_lshl_add_u32 v{vT2}, v{vH}, 8, v{vT2}', f's_mov_b32 s{sT2}, 0')
lab('L_fb_pv')
E(f'buffer_load_dwordx4 {vr(aK,4)}, v{vL16}, {sr(S_WS,4)}, s{sT2} offen sc1', f's_mov_b64 exec, {sr(sVM,2)}',
  f'buffer_load_dwordx4 {vr(aV,4)}, v{vT2}, {sr(S_WS,4)}, s{sT2} offen offset:1024 sc1',
  f'buffer_load_dwordx4 {vr(aV+4,4)}, v{vT2}, {sr(S_WS,4)}, s{sT2} offen offset:1536 sc1', 's_mov_b64 exec, -1', 's_waitcnt vmcnt(0)',
  f'v_mfma_f32_32x32x16_bf16 {vr(aSa,16)}, {vr(aK,4)}, {vr(vQa,4)}, {vr(aCa,16)}',
  f'v_mfma_f32_32x32x16_bf16 {vr(aSb,16)}, {vr(aK,4)}, {vr(vQb,4)}, {vr(aCb,16)}', 's_nop 15')
for i in range(32): e(f'v_exp_f32 v{aSa+i}, v{aSa+i}')
E('s_nop 1',
  f'v_smfmac_f32_32x32x32_bf16 {vr(aOa,16)}, {vr(aV,4)}, {vr(aSa,8)}, v{vIdx}', f'v_smfmac_f32_32x32x32_bf16 {vr(aOa,16)}, {vr(aV+4,4)}, {vr(aSa+8,8)}, v{vIdx}',
  f'v_smfmac_f32_32x32x32_bf16 {vr(aOb,16)}, {vr(aV,4)}, {vr(aSb,8)}, v{vIdx}', f'v_smfmac_f32_32x32x32_bf16 {vr(aOb,16)}, {vr(aV+4,4)}, {vr(aSb+8,8)}, v{vIdx}',
  f's_add_u32 s{sT2}, s{sT2}, 2048', f's_cmp_lt_u32 s{sT2}, {64*2048}', 's_cbranch_scc1 L_fb_pv', 's_nop 15', 's_branch L_att_fin')
for g, so in enumerate((sOoff, sT1, sT2, sT3)):
    lab(f'L_tr{g}')
    E(f's_sub_u32 s{sSpin}, s{sSpin}, 1', f's_cbranch_scc1 L_tk{g}')
    for j in range(4):
        o = f' offset:{j*1024}' if j else ''
        e(f'buffer_load_dwordx4 {vr(oOf+16*g+4*j,4)}, v{vL16}, {sr(S_WS,4)}, s{so} offen{o} sc1')
    E('s_waitcnt vmcnt(0)', f's_branch L_tg{g}')
lab('L_st_slow')
E(f'buffer_store_dwordx4 {vr(16,4)}, v{vL16}, {sr(S_WS,4)}, s{sOslot} offen sc1',
  f'buffer_store_dwordx4 {vr(28,4)}, v{vL16}, {sr(S_WS,4)}, s{sOslot} offen offset:1024 sc1', 's_branch L_st_j')
lab('L_code_end')

HDR = open(f'cdna_kernels/{NAME}.s.ref').read().split('\n')
hdr = []
for line in HDR:
    if line.startswith('; @launch'): break
    hdr.append(line)
txt = '\n'.join(hdr) + '\n; @launch grid=(256,1,1) block=(512,1,1) lds=163840\n'
txt += f'''.amdgcn_target "amdgcn-amd-amdhsa--gfx950"
.text
.globl {NAME}_kernel
.p2align 8
.type {NAME}_kernel,@function
'''
txt += '\n'.join(L) + '\n'
txt += f'''.section .rodata,"a"
.p2align 6
.amdhsa_kernel {NAME}_kernel
  .amdhsa_next_free_vgpr {NVGPR}
  .amdhsa_next_free_sgpr 102
  .amdhsa_accum_offset {NVGPR}
  .amdhsa_group_segment_fixed_size 0
  .amdhsa_kernarg_size 88
  .amdhsa_user_sgpr_count 2
  .amdhsa_user_sgpr_kernarg_segment_ptr 1
  .amdhsa_system_sgpr_workgroup_id_x 1
.end_amdhsa_kernel
'''
open(OUT, 'w').write(txt)
print('wrote', OUT, len(L), 'lines; barriers', NBAR_Y)
```

```python
import sys, struct

NAME = 'concat_heads__sliding_local_dilated__grouped_kv_mqa__prompt'
STAMPS = '--stamps' in sys.argv
STMODE = ([a[5:] for a in sys.argv if a.startswith('--st=')] + ['all'])[0]
XP = [a[4:] for a in sys.argv if a.startswith('--x=')]
args = [a for a in sys.argv[1:] if not a.startswith('--')]
OUT = args[0] if args else f'cdna_kernels/{NAME}.s'
def opt(name, default):
    for a in XP:
        if a.startswith(name): return type(default)(a[len(name):])
    return default

L = []
VMQ = []
NBAR = [0]
CAP = [None]
def e(s, tag=None):
    if CAP[0] is not None:
        CAP[0].append((s, tag)); return
    if tag is not None: VMQ.append(tag)
    if s == 's_barrier': NBAR[0] += 1
    L.append('    ' + s.strip())
    if PADON[0]:
        PADCNT[0] += 4 if (s.startswith('s_') and '0x' not in s) else 8
        if PADCNT[0] >= PADON[0] and not s.startswith('v_cmp') and 'abs' not in s:
            PADCNT[0] = 0; pad()
PADS = [0]
PADON = [False]
PADCNT = [0]
def lab(s): L.append(s + ':')
def pad():
    i = PADS[0]; PADS[0] += 1
    L.append(f'L_pad{i}:'); L.append(f'    s_cbranch_execz L_pad{i+1}')
def cm(s): L.append('    ; ' + s)
def vr(i, n): return f'v[{i}:{i+n-1}]'
def sr(i, n): return f's[{i}:{i+n-1}]'
def f32(x): return '0x%08x' % struct.unpack('<I', struct.pack('<f', x))[0]
def vmn(tag):
    idx = max(i for i, t in enumerate(VMQ) if t == tag)
    n = len(VMQ) - 1 - idx
    assert n <= 63
    return n
def E(*lines):
    for s in lines: e(s)

SLOT = 32768
R = 131072
HALO = 3 * SLOT
ONES = 3 * SLOT
SC = 2 * SLOT
WS_FHX = 0x60000
WS_HX = 0x600000
WS_FKV = 0x40000
WS_FOA = 0x48000
WS_FD = 0x44000
WS_OA = 0x100000
WS_OB = 0x300000
WS_STAMP = 0x500000
WS_SIZE = 0x800000
CSCALE = 0.25 * 1.4426950408889634
MOFF = float(opt('moff', 100))
VSC = 2.0 ** 40
ONEB = 0x53805380
SPIN = 200000
NT = '' if 'nont' in XP else ' nt'
WNT = ' nt' if 'wnt' in XP else ''

S_XA, S_WQKV, S_WOA, S_XB, S_WQ, S_WKV, S_WOB, S_OUT, S_WS = 8, 12, 16, 20, 24, 28, 32, 36, 40
S_DBG = 44
S_WV = 46
sP = 46
sW = 48
sRB, sHG = 49, 50
sT0, sT1, sT2, sT3 = 51, 52, 53, 54
sC = 55
sStepA, sStepB = 56, 57
sXo, sWo = 58, 59
sKVo = 60
sW4k, sW8k, sW2k = 61, 62, 63
sVM = 64
sOoff, sOutOff, sWoff, sSpin = 66, 67, 68, 69
sOslot, sOslot2 = 70, 71
sFB, sHG128, sCS, sQ = 72, 73, 74, 75
sRot, sK1 = 4, 5
sF0, sF1, sF2 = 3, 6, 7
sST = 76
sNon = 100
sStepH = 31
sXcc = 30

vL16, vW, vWA, vXA = 1, 2, 3, 4
vN, vH, vI = 5, 6, 7
vT0, vT1, vT2, vT3 = 8, 9, 10, 11
vP0, vP1, vXx, vG = 12, 13, 14, 15
vQacc = 16
vFr = 96
(vB0, vB1, vBW, vWl, vIdx, vPa, vQx, vW2, vTw0, vTw1, vTp, vTr0, vTo, vPa2, vZero, vOw,
 vF0, vF1, vF2, vF3, vWA2, vXA2) = range(232, 254)
vNon, vFl = 90, 92
NVGPR = 256

def stamp(i, *modes):
    if STAMPS and STMODE in modes: e(f's_memrealtime {sr(sST+2*i,2)}')
def cstamp(i):
    if STAMPS and STMODE != 'xc': e(f's_memtime {sr(sST+2*i,2)}')
def dma(voff, srd_, soff, off=0, fl='', tag='x'):
    o = f' offset:{off}' if off else ''
    e(f'buffer_load_dwordx4 v{voff}, {sr(srd_,4)}, {soff} offen{o}{fl} lds', tag)
def srd(reg, size): E(f's_mov_b32 s{reg+2}, {hex(size)}', f's_mov_b32 s{reg+3}, 0x20000')
def nonce_load(tag=None): e(f'global_load_dwordx2 {vr(vNon,2)}, v{vZero}, {sr(S_DBG,2)} sc1', tag)
def poll_issue(vaddr, soffs, regs, non=True):
    if non: nonce_load()
    for so, r in zip(soffs, regs):
        e(f'buffer_load_dwordx2 {vr(r,2)}, v{vaddr}, {sr(S_WS,4)}, {so} offen sc1')
def poll_check(tag, vaddr, soffs, regs, issued, xcc=False):
    e(f's_mov_b32 s{sSpin}, {SPIN}')
    if issued is not None: E(f's_waitcnt vmcnt({issued})', f's_branch L_chk_{tag}')
    lab(f'L_rep_{tag}')
    poll_issue(vaddr, soffs, regs)
    e('s_waitcnt vmcnt(0)')
    lab(f'L_chk_{tag}')
    e(f'v_cmp_eq_u32 vcc, 0, v{vNon}')
    if xcc: E(f'v_mov_b32 v{vFl+2}, v{vFl}', f'v_and_b32 v{vFl}, 0xffffffe1, v{vFl}')
    for r in regs:
        E(f'v_cmp_ne_u64 {sr(sP,2)}, {vr(vNon,2)}, {vr(r,2)}', 's_nop 1', f's_or_b64 vcc, vcc, {sr(sP,2)}')
    E(f's_cbranch_scc0 L_nochk_{tag}', f's_sub_u32 s{sSpin}, s{sSpin}, 1', f's_cbranch_scc0 L_rep_{tag}')
    lab(f'L_nochk_{tag}')
def flag_store(tag, soff, first_wait='s_waitcnt vmcnt(0)', xcc=False, soff2=None):
    e(f's_mov_b32 s{sSpin}, {SPIN}')
    e(first_wait)
    lab(f'L_fw_{tag}')
    E(f'v_cmp_eq_u32 vcc, 0, v{vNon}', f's_cbranch_vccz L_fs_{tag}')
    nonce_load()
    E('s_waitcnt vmcnt(0)', f's_sub_u32 s{sSpin}, s{sSpin}, 1', f's_cbranch_scc0 L_fw_{tag}')
    lab(f'L_fs_{tag}')
    if xcc: e(f'v_or_b32 v{vNon}, s{sXcc}, v{vNon}')
    E('s_mov_b64 exec, 1', f'buffer_store_dwordx2 {vr(vNon,2)}, v{vZero}, {sr(S_WS,4)}, {soff} offen sc1')
    if soff2: e(f'buffer_store_dwordx2 {vr(vNon,2)}, v{vZero}, {sr(S_WS,4)}, {soff2} offen sc1')
    e('s_mov_b64 exec, -1')
def maxtree(rs, t0, t1):
    e(f'v_max3_f32 v{t0}, v{rs[0]}, v{rs[1]}, v{rs[2]}')
    e(f'v_max3_f32 v{t1}, v{rs[3]}, v{rs[4]}, v{rs[5]}')
    for k in range(6, len(rs), 4):
        e(f'v_max3_f32 v{t0}, v{t0}, v{rs[k]}, v{rs[k+1]}')
        if k + 3 < len(rs): e(f'v_max3_f32 v{t1}, v{t1}, v{rs[k+2]}, v{rs[k+3]}')
    e(f'v_max_f32 v{t0}, v{t0}, v{t1}')
    e(f'v_mov_b32 v{t1}, v{t0}')
def lane_setup():
    E(f'v_and_b32 v{vN}, 31, v0', f'v_lshrrev_b32 v{vH}, 5, v0', f'v_and_b32 v{vI}, 15, v0',
      f'v_lshrrev_b32 v{vWl}, 2, v{vI}', f'v_lshl_add_u32 v{vWl}, v{vH}, 3, v{vWl}', f'v_lshlrev_b32 v{vWl}, 7, v{vWl}',
      f'v_and_b32 v{vF0}, 8, v{vI}', f'v_lshl_add_u32 v{vWl}, v{vF0}, 3, v{vWl}', f'v_and_b32 v{vF0}, 16, v0',
      f'v_lshl_add_u32 v{vWl}, v{vF0}, 1, v{vWl}', f'v_and_b32 v{vF0}, 3, v0', f'v_lshl_add_u32 v{vWl}, v{vF0}, 3, v{vWl}',
      f's_lshl_b32 s{sW4k}, s{sQ}, 12', f's_add_u32 s{sF0}, s{sW4k}, {R}', f'v_add_u32 v{vQx}, s{sF0}, v{vL16}',
      f'v_mov_b32 v{vIdx}, 0xdddddddd', f's_mov_b32 s{sFB}, 0')
oOf, oW, oAcc = 16, 96, 160
def tail_setup():
    E(f's_mov_b32 s{S_OUT+2}, 0x400000', f's_mov_b32 s{S_OUT+3}, 0x20000',
      f's_lshr_b32 s{sF2}, s{sW}, 2', f's_lshl_b32 s{sF1}, s{sW}, 14',
      f'v_lshlrev_b32 v{vT0}, 9, v{vH}', f'v_sub_u32 v{vTw0}, v{vWl}, v{vT0}', f'v_add_u32 v{vTw0}, s{sF1}, v{vTw0}', f'v_xor_b32 v{vTw1}, 64, v{vTw0}',
      f'v_xor_b32 v{vT0}, v{vH}, v{vI}', f'v_lshlrev_b32 v{vT0}, 4, v{vT0}', f'v_lshl_add_u32 v{vT0}, v{vN}, 8, v{vT0}', f'v_add_u32 v{vTp}, s{sF1}, v{vT0}',
      f'v_lshrrev_b32 v{vT0}, 3, v0', f's_lshl_b32 s{sF1}, s{sQ}, 3', f'v_add_u32 v{vT0}, s{sF1}, v{vT0}', f'v_and_b32 v{vT1}, 7, v0', f'v_lshlrev_b32 v{vT2}, 1, v{vT1}',
      f'v_and_b32 v{vT3}, 15, v{vT0}', f'v_xor_b32 v{vT2}, v{vT2}, v{vT3}', f'v_lshlrev_b32 v{vT2}, 4, v{vT2}', f'v_lshl_add_u32 v{vT2}, v{vT0}, 8, v{vT2}',
      f's_lshl_b32 s{sF1}, s{sF2}, 16', f'v_add_u32 v{vTr0}, s{sF1}, v{vT2}',
      f'v_lshlrev_b32 v{vT1}, 4, v{vT1}', f'v_lshl_add_u32 v{vTo}, v{vT0}, 11, v{vT1}',
      f's_lshl_b32 s{sOutOff}, s{sRB}, 17', f's_lshl_b32 s{sF1}, s{sF2}, 10', f's_add_u32 s{sOutOff}, s{sOutOff}, s{sF1}', f's_add_u32 s{sOutOff}, s{sOutOff}, s{sHG128}',
      f's_lshl_b32 s{sOoff}, s{sRB}, 16', f's_lshl_b32 s{sF1}, s{sQ}, 13', f's_add_u32 s{sOoff}, s{sOoff}, s{sF1}',
      f's_lshl_b32 s{sF1}, s{sF2}, 21', f's_add_u32 s{sOoff}, s{sOoff}, s{sF1}', f's_add_u32 s{sOoff}, s{sOoff}, {hex(WS_OA)}')
assert WS_OB - WS_OA == 1 << 21
def w_reads():
    for s in range(8):
        x = oW + 8 * s
        E(f'ds_read_b64_tr_b16 {vr(x,2)}, v{vTw0} offset:{s*2048}', f'ds_read_b64_tr_b16 {vr(x+2,2)}, v{vTw0} offset:{s*2048+1024}',
          f'ds_read_b64_tr_b16 {vr(x+4,2)}, v{vTw1} offset:{s*2048}', f'ds_read_b64_tr_b16 {vr(x+6,2)}, v{vTw1} offset:{s*2048+1024}')
    for q in range(1, 8): e(f'v_xor_b32 v{80+q}, {(2*q)<<4}, v{vTp}')
    e(f'v_xor_b32 v88, 16, v{vTr0}')
def o_loads(tag=None, gs=(0, 1, 2, 3)):
    if 0 in gs: E(f's_add_u32 s{sT1}, s{sOoff}, 4096', f's_add_u32 s{sT2}, s{sOoff}, 32768', f's_add_u32 s{sT3}, s{sOoff}, {32768+4096}')
    for g, so in enumerate((sOoff, sT1, sT2, sT3)):
        if g not in gs: continue
        for j in range(4):
            o = f' offset:{j*1024}' if j else ''
            e(f'buffer_load_dwordx4 {vr(oOf+16*g+4*j,4)}, v{vL16}, {sr(S_WS,4)}, s{so} offen{o} sc1', tag)

lab(f'{NAME}_kernel')
if STAMPS:
    for i in range(12): e(f's_mov_b32 s{sST+2*i}, 0')
stamp(0, 'all', 'head', 'tail', 'x', 'i0', 'i1', 'j0', 'j1', 'd')
for reg, off in ((S_XB,24),(S_WKV,40),(S_WV,48),(S_WQ,32),(S_DBG,72),(S_WS,80),(S_XA,0),(S_WQKV,8),(S_WOA,16),(S_WOB,56),(S_OUT,64)):
    e(f's_load_dwordx2 {sr(reg,2)}, s[0:1], {off}')
e(f's_memrealtime {sr(sNon,2)}')
E('s_cmp_ge_u32 s2, 256', 's_cbranch_scc1 L_end',
  f'v_lshrrev_b32 v{vT0}, 6, v0', 'v_and_b32 v0, 63, v0', f'v_readfirstlane_b32 s{sW}, v{vT0}',
  f's_and_b32 s{sT0}, s2, 7', f's_bfe_u32 s{sRot}, s2, 0x20003', f's_lshl_b32 s{sRB}, s{sT0}, 2',
  f's_add_u32 s{sRB}, s{sRB}, s{sRot}', f's_lshr_b32 s{sHG}, s2, 5',
  f'v_lshlrev_b32 v{vL16}, 4, v0', f'v_lshrrev_b32 v{vG}, 4, v0', f'v_lshrrev_b32 v{vT1}, 3, v0', f'v_and_b32 v{vT2}, 7, v0',
  f'v_xor_b32 v{vT3}, v{vT2}, v{vG}', f'v_lshlrev_b32 v{vT3}, 4, v{vT3}', f'v_lshl_add_u32 v{vP0}, v{vT1}, 10, v{vT3}',
  f'v_xor_b32 v{vP1}, 64, v{vP0}', f'v_add_u32 v{vP1}, {8192-1024}, v{vP1}', f'v_mov_b32 v{vZero}, 0',
  f's_xor_b32 s{sW}, s{sW}, 7', f's_lshl_b32 s{sRot}, s{sRot}, 1', f's_lshl_b32 s{sHG128}, s{sHG}, 7', f's_and_b32 s{sQ}, s{sW}, 3')
if opt('hgx', 0): E(f's_xor_b32 s{sHG}, s{sHG}, {opt("hgx", 0)}', f's_lshl_b32 s{sHG128}, s{sHG}, 7')
srd(S_WS, WS_SIZE)
E(f's_cmp_lt_u32 s{sW}, 4', 's_cbranch_scc1 L_X')

cm('================ Y program (waves 4-7) ================')
aSa, aSb, aCa, aCb, aOa, aOb = 96, 112, 128, 144, 160, 176
aK, aV = 192, 56
vQa, vQb = 208, 212
vKa, vVa = 216, 217
srd(S_XB, 0x200000); srd(S_WKV, 0x4000)
vD0, vD1 = 218, 219
E(f's_lshr_b32 s{sT1}, s{sHG}, 1', f's_add_u32 s{sT1}, s{sT1}, s{sW}', f's_add_u32 s{sT1}, s{sT1}, 1', f's_and_b32 s{sT1}, s{sT1}, 3',
  f's_lshl_b32 s{sT2}, s{sT1}, 11',
  f's_lshl_b32 s{sT3}, s{sRB}, 2', f's_add_u32 s{sT3}, s{sT3}, s{sT1}', f's_lshl_b32 s{sT3}, s{sT3}, 14',
  f'v_add_u32 v{vD0}, s{sT3}, v{vP0}', f'v_add_u32 v{vD1}, s{sT3}, v{vP1}',
  f's_lshl_b32 s{sXo}, s{sRot}, 7',
  f's_cmp_lg_u32 s{sW}, 7', 's_cbranch_scc1 L_Yset')
def x_sub(s, tag):
    E(f's_add_u32 m0, s{sT2}, {s*16384}', f's_and_b32 s{sXo}, s{sXo}, 1023')
    dma(vD0, S_XB, f's{sXo}', 0, NT, tag); dma(vD1, S_XB, f's{sXo}', 1024, NT, tag)
E(f's_bitcmp1_b32 s{sHG}, 0', 's_waitcnt lgkmcnt(0)',
  f's_cselect_b32 s{S_WKV}, s{S_WV}, s{S_WKV}', f's_cselect_b32 s{S_WKV+1}, s{S_WV+1}, s{S_WKV+1}')
for s_ in range(8):
    x_sub(s_, None)
    E(f's_mov_b32 m0, {R+s_*2048}', f's_lshl_b32 s{sWo}, s{sXo}, 4')
    dma(vL16, S_WKV, f's{sWo}', 0, '', None); dma(vL16, S_WKV, f's{sWo}', 1024, '', None)
    if s_ < 7: e(f's_add_u32 s{sXo}, s{sXo}, 128')
e('s_barrier'); NBAR[0] -= 1
stamp(1, 'head')
lab('L_Yset')
lane_setup()
tail_setup()
E(f's_mov_b32 s{sVM}, 0xffff', f's_mov_b32 s{sVM+1}, 0xffff',
  f's_and_b32 s{sT0}, s{sRB}, 28', f's_add_u32 s{sT0}, s{sT0}, s{sQ}', f's_lshl_b32 s{sKVo}, s{sT0}, 12',
  f's_lshl_b32 s{sT0}, s{sT0}, 9', f's_add_u32 s{sT0}, s{sT0}, {hex(WS_FKV)}',
  f'v_and_b32 v{vPa}, 7, v0', f'v_lshlrev_b32 v{vPa}, 6, v{vPa}', f'v_add_u32 v{vPa}, s{sT0}, v{vPa}',
  f's_and_b32 s{sT0}, s{sW}, 1', f's_lshl_b32 s{sT1}, s{sRB}, 1', f's_add_u32 s{sT0}, s{sT0}, s{sT1}', f's_lshl_b32 s{sT0}, s{sT0}, 5',
  f's_lshl_b32 s{sT1}, s{sHG}, 2', f's_add_u32 s{sT0}, s{sT0}, s{sT1}', f's_and_b32 s{sT1}, s{sW}, 2', f's_add_u32 s{sT0}, s{sT0}, s{sT1}',
  f's_lshl_b32 s{sT0}, s{sT0}, 10', f's_add_u32 s{sOslot}, s{sT0}, {hex(WS_OB)}',
  f'v_add_u32 v{vKa}, {R+16384}, v{vL16}', f'v_lshlrev_b32 v{vVa}, 4, v{vI}', f'v_lshl_add_u32 v{vVa}, v{vH}, 8, v{vVa}', f'v_add_u32 v{vVa}, {R+16384}, v{vVa}',
  f'v_and_b32 v{vT1}, 27, v0', f'v_cmp_eq_u32 vcc, 16, v{vT1}', f'v_mov_b32 v{vT1}, {hex(ONEB)}', f's_cmp_eq_u32 s{sW}, 7', f'v_cndmask_b32 v{aV}, 0, v{vT1}, vcc',
  's_cbranch_scc1 L_Y7', 's_waitcnt lgkmcnt(0)')
if opt('cpf', 1):
    e('s_getpc_b64 s[0:1]')
    lab('L_pc')
    E(f's_sub_u32 s0, s0, L_pc-{NAME}_kernel', 's_subb_u32 s1, s1, 0',
      f's_lshr_b32 s{sT0}, s2, 3', f's_mul_i32 s{sT0}, s{sT0}, 3', f's_add_u32 s{sT0}, s{sT0}, s{sQ}', f's_lshl_b32 s{sT0}, s{sT0}, 8',
      f'v_lshlrev_b32 v{vF0}, 7, v0', f'v_add_u32 v{vF0}, s{sT0}, v{vF0}', f'v_min_u32 v{vF0}, L_code_end-{NAME}_kernel-4, v{vF0}', 's_mov_b64 exec, 3',
      f'global_load_dword v{vF1}, v{vF0}, s[0:1]', 's_mov_b64 exec, -1')
e('s_barrier')
for s_ in range(8):
    x_sub(s_, 'xb')
    if s_ < 7: e(f's_add_u32 s{sXo}, s{sXo}, 128')
stamp(1, 'head')
e('s_branch L_Yj')
lab('L_Y7')
E(f'v_lshrrev_b32 v{vT1}, 1, v{vI}', f'v_xor_b32 v{vT1}, v{vT1}, v{vG}', f'v_lshlrev_b32 v{vT1}, 4, v{vT1}', f'v_lshl_add_u32 v{vT1}, v{vI}, 7, v{vT1}',
  f'v_add_u32 v{vT0}, s{sT2}, v{vT1}', f'v_xor_b32 v{vT1}, 64, v{vT0}', f'v_add_u32 v{vT2}, 65536, v{vT0}', f'v_add_u32 v{vT3}, 65536, v{vT1}',
  f'v_lshlrev_b32 v{vF0}, 8, v{vG}', f'v_lshl_add_u32 v{vF0}, v{vI}, 3, v{vF0}', f'v_add_u32 v{vF0}, {R}, v{vF0}',
  f'v_and_b32 v{vF1}, 1, v{vG}', f'v_lshrrev_b32 v{vF2}, 1, v{vG}',
  f's_lshr_b32 s{sT0}, s{sHG}, 2', f's_lshl_b32 s{sC}, s{sRB}, 1', f's_add_u32 s{sT0}, s{sT0}, s{sC}', f's_lshl_b32 s{sT0}, s{sT0}, 11',
  f's_bfe_u32 s{sC}, s{sHG}, 0x10001',
  f's_lshl_b32 s{sT1}, s{sRB}, 3', f's_add_u32 s{sT1}, s{sT1}, s{sHG}', f's_lshl_b32 s{sOslot2}, s{sT1}, 3', f's_add_u32 s{sOslot2}, s{sOslot2}, {hex(WS_FD)}', f's_lshl_b32 s{sT1}, s{sT1}, 6', f's_add_u32 s{sK1}, s{sT1}, {hex(WS_FKV)}')
kd = 16
KF = 88
KF = 96 - 8
def kfr(u): return (96 + 8 * u) if u < 15 else 24
def kv_reads(s):
    a0, a1 = (vT0, vT1) if s < 4 else (vT2, vT3)
    o = (s & 3) * 16384
    x, y = kfr(2*s), kfr(2*s+1)
    E(f's_waitcnt vmcnt({28-4*s})',
      f'ds_read_b128 {vr(x,4)}, v{a0} offset:{o}', f'ds_read_b64_tr_b16 {vr(x+4,2)}, v{vF0} offset:{s*2048}', f'ds_read_b64_tr_b16 {vr(x+6,2)}, v{vF0} offset:{s*2048+128}',
      f'ds_read_b128 {vr(y,4)}, v{a1} offset:{o}', f'ds_read_b64_tr_b16 {vr(y+4,2)}, v{vF0} offset:{s*2048+1024}', f'ds_read_b64_tr_b16 {vr(y+6,2)}, v{vF0} offset:{s*2048+1152}')
for s_ in range(8): kv_reads(s_)
nonce_load()
stamp(2, 'head')
E(f's_bitcmp1_b32 s{sHG}, 0', f's_cselect_b32 s{sWo}, {f32(VSC)}, 1.0', 's_cbranch_scc1 L_kv_v',
  f'v_lshlrev_b32 v{vF1}, 9, v{vF1}', f'v_lshl_add_u32 v{vF1}, v{vF2}, 3, v{vF1}', f's_lshl_b32 s{sC}, s{sC}, 8')
def kv_chain(swap):
    for u in range(16):
        x = kfr(u)
        if u == 0: e('s_waitcnt lgkmcnt(12)')
        if u == 12: e('s_waitcnt lgkmcnt(0)')
        a, b = (vr(x+4,4), vr(x,4))
        if swap: a, b = b, a
        d = kd + 4 * (u & 1)
        e(f'v_mfma_f32_16x16x32_bf16 {vr(d,4)}, {a}, {b}, {"0" if u < 2 else vr(d,4)}')
kv_chain(False)
e('s_branch L_kv_j')
lab('L_kv_v')
E(f'v_lshlrev_b32 v{vF1}, 3, v{vF1}', f'v_lshl_add_u32 v{vF1}, v{vF2}, 8, v{vF1}', f's_lshl_b32 s{sC}, s{sC}, 9', f's_add_u32 s{sC}, s{sC}, 1024')
kv_chain(True)
lab('L_kv_j')
E(f'v_lshl_add_u32 v{vF1}, v{vI}, 4, v{vF1}', f's_add_u32 s{sT0}, s{sT0}, s{sC}', 's_nop 5',
  f'v_pk_add_f32 {vr(kd,2)}, {vr(kd,2)}, {vr(kd+4,2)}', f'v_pk_add_f32 {vr(kd+2,2)}, {vr(kd+2,2)}, {vr(kd+6,2)}',
  f'v_mul_f32 v{kd}, s{sWo}, v{kd}', f'v_mul_f32 v{kd+1}, s{sWo}, v{kd+1}', f'v_mul_f32 v{kd+2}, s{sWo}, v{kd+2}', f'v_mul_f32 v{kd+3}, s{sWo}, v{kd+3}',
  f'v_cvt_pk_bf16_f32 v{vF2}, v{kd}, v{kd+1}', f'v_cvt_pk_bf16_f32 v{vF3}, v{kd+2}, v{kd+3}',
  f'buffer_store_dwordx2 {vr(vF2,2)}, v{vF1}, {sr(S_WS,4)}, s{sT0} offen sc1')
stamp(3, 'head')
lab('L_Yj')
for i in range(1, 32): e(f'v_mov_b32 v{aV+i}, v{aV}')
for j in range(32): e(f'v_mov_b32 v{aOa+j}, 0')
E('s_waitcnt vmcnt(0)', f's_cmp_lg_u32 s{sW}, 7', 's_cbranch_scc1 L_flag_done')
flag_store('kv', f's{sK1}')
stamp(4, 'head')
lab('L_flag_done')
e('s_barrier')
stamp(5, 'head'); stamp(1, 'all', 'x')
EA = opt('ea', 20)
if EA: e('s_barrier')
if opt('psl', 0): e(f's_sleep {opt("psl", 0)}')
poll_check('kv', vPa, ['0'], [vFl], None)
stamp(6, 'head')
E(f's_add_u32 m0, s{sW4k}, {R+16384}', f's_mov_b32 s{sC}, 0')
for j in range(4): dma(vL16, S_WS, f's{sKVo}', 1024*j, ' sc1', None)
E(f's_setprio {opt("yp", 1)}', f's_cmp_lg_u32 s{sW}, 7', 's_waitcnt vmcnt(0)', 's_cbranch_scc1 L_nodense', 's_mov_b64 exec, 1',
  f'buffer_store_dwordx2 {vr(vNon,2)}, v{vZero}, {sr(S_WS,4)}, s{sOslot2} offen sc1', 's_mov_b64 exec, -1')
lab('L_nodense')
stamp(7, 'head'); stamp(2, 'all', 'x')
e('s_barrier')
stamp(8, 'head'); stamp(3, 'all', 'x'); stamp(1, 'tail')
cstamp(10)
E(f'ds_read_b128 {vr(vQa,4)}, v{vQx}', f'ds_read_b128 {vr(vQb,4)}, v{vQx} offset:1024',
  f'ds_read_b128 {vr(aK,4)}, v{vKa}', f'ds_read_b128 {vr(aK+4,4)}, v{vKa} offset:2048', f's_mov_b64 exec, {sr(sVM,2)}')
for j in range(4): e(f'ds_read_b128 {vr(aV+4*j,4)}, v{vVa} offset:{(j>>1)*2048+1024+(j&1)*512}')
E('s_mov_b64 exec, -1', 's_waitcnt lgkmcnt(5)',
  f'v_mfma_f32_32x32x16_bf16 {vr(aSa,16)}, {vr(aK,4)}, {vr(vQa,4)}, 0',
  f'v_mfma_f32_32x32x16_bf16 {vr(aSb,16)}, {vr(aK,4)}, {vr(vQb,4)}, 0', 's_nop 10')
maxtree([aSa+i for i in range(16)], vT0, vT1)
maxtree([aSb+i for i in range(16)], vT2, vT3)
E(f'v_permlane32_swap_b32 v{vT0}, v{vT1}', f'v_max_f32 v{vT0}, v{vT0}, v{vT1}', f'v_permlane32_swap_b32 v{vT2}, v{vT3}',
  f'v_sub_f32 v{aCa}, {f32(-MOFF)}, v{vT0}', f'v_max_f32 v{vT2}, v{vT2}, v{vT3}')
for i in range(1, 16): e(f'v_mov_b32 v{aCa+i}, v{aCa}')
E(f'v_sub_f32 v{aCb}, {f32(-MOFF)}, v{vT2}', f'v_mov_b32 v{aCb+1}, v{aCb}',
  f'v_mfma_f32_32x32x16_bf16 {vr(aSa,16)}, {vr(aK,4)}, {vr(vQa,4)}, {vr(aCa,16)}')
for i in range(2, 16): e(f'v_mov_b32 v{aCb+i}, v{aCb}')
E('s_waitcnt lgkmcnt(0)', f'v_exp_f32 v{aSa}, v{aSa}', f'v_exp_f32 v{aSa+1}, v{aSa+1}', 's_branch L_att_entry')

def dtile(par, ld_off, entry=False):
    K = aK + 8 * par; Kn = aK + 8 * (par ^ 1)
    V = aV + 16 * par; Vn = aV + 16 * (par ^ 1)
    def ex(S, a, b):
        for i in range(a, b): e(f'v_exp_f32 v{S+i}, v{S+i}')
    def pv(O, Vr, P): e(f'v_smfmac_f32_32x32x32_bf16 {vr(O,16)}, {vr(Vr,4)}, {vr(P,8)}, v{vIdx}')
    def qk(S, Kr, Q, C): e(f'v_mfma_f32_32x32x16_bf16 {vr(S,16)}, {vr(Kr,4)}, {vr(Q,4)}, {vr(C,16)}')
    ex(aSa, 0, 2); pv(aOb, Vn+12, aSb+8)
    if entry: lab('L_att_entry')
    e(f's_mov_b64 exec, {sr(sVM,2)}')
    for j in range(4): e(f'ds_read_b128 {vr(Vn+4*j,4)}, v{vVa} offset:{ld_off+(j>>1)*2048+1024+(j&1)*512}')
    e('s_mov_b64 exec, -1')
    ex(aSa, 2, 5); qk(aSb, K, vQb, aCb)
    E(f'ds_read_b128 {vr(Kn,4)}, v{vKa} offset:{ld_off}', f'ds_read_b128 {vr(Kn+4,4)}, v{vKa} offset:{ld_off+2048}')
    ex(aSa, 5, 10); pv(aOa, V, aSa); ex(aSa, 10, 16)
    ex(aSb, 0, 2); pv(aOa, V+4, aSa+8); ex(aSb, 2, 5); qk(aSa, K+4, vQa, aCa); ex(aSb, 5, 10); pv(aOb, V, aSb); ex(aSb, 10, 16)
    ex(aSa, 0, 2); pv(aOb, V+4, aSb+8); ex(aSa, 2, 5); qk(aSb, K+4, vQb, aCb); ex(aSa, 5, 10); pv(aOa, V+8, aSa); ex(aSa, 10, 16)
    ex(aSb, 0, 2); pv(aOa, V+12, aSa+8); e('s_waitcnt lgkmcnt(0)'); ex(aSb, 2, 5); qk(aSa, Kn, vQa, aCa); ex(aSb, 5, 10); pv(aOb, V+8, aSb); ex(aSb, 10, 16)

e('.p2align 6')
lab('L_att_top')
E(f'v_xor_b32 v{vKa}, 16384, v{vKa}', f'v_xor_b32 v{vVa}, 16384, v{vVa}', f's_cmp_eq_u32 s{sC}, 8', 's_barrier')
dtile(1, 0)
e('s_cbranch_scc1 L_att_done')
dtile(0, 4096, entry=True)
e('s_barrier')
dtile(1, 8192)
dtile(0, 12288)
E(f's_add_u32 s{sC}, s{sC}, 1', 's_branch L_att_top')
NBAR_Y = NBAR[0] - 2 + 16
lab('L_att_done')
E(f'ds_read_b32 v{vFl}, v{vKa}', f'v_smfmac_f32_32x32x32_bf16 {vr(aOb,16)}, {vr(aV+16+12,4)}, {vr(aSb+8,8)}, v{vIdx}')
stamp(4, 'all'); stamp(2, 'tail')
cstamp(11)
def chk(O, t):
    E(f'v_maximum3_f32 v{t}, abs(v{O}), abs(v{O+1}), abs(v{O+2})', f'v_maximum3_f32 v{t}, v{t}, abs(v{O+3}), abs(v{O+4})',
      f'v_maximum3_f32 v{t}, v{t}, abs(v{O+5}), abs(v{O+6})', f'v_maximum3_f32 v{t}, v{t}, abs(v{O+7}), v{O+8}')
def fin(O, t, d):
    for i in range(0, 8, 2): e(f'v_pk_mul_f32 {vr(d+4+i,2)}, {vr(O+i,2)}, {vr(t,2)} op_sel_hi:[1,0]')
    for i in range(4): e(f'v_cvt_pk_bf16_f32 v{d+i}, v{d+4+2*i}, v{d+4+2*i+1}')
lab('L_att_fin')
PADON[0] = opt('pad', 0); PADCNT[0] = 1000
E(f'v_rcp_f32 v{vT0}, v{aOa+8}', f's_mov_b32 s{sT0}, 0x7e000000')
chk(aOa, vT1)
fin(aOa, vT0, 16)
E(f'v_rcp_f32 v{vT2}, v{aOb+8}', 's_waitcnt lgkmcnt(0)', f'v_readfirstlane_b32 s{sT1}, v{vFl}')
chk(aOb, vT3)
fin(aOb, vT2, 28)
E(f'v_maximum3_f32 v{vT1}, v{vT1}, v{vT3}, v{vT3}', f'v_cmp_nle_f32 vcc, v{vT1}, s{sT0}'.replace('vcc, v', 'vcc, v'), f's_cmp_eq_u32 s{sT1}, 1', 's_cbranch_vccnz L_fallback')
lab('L_att_ok')
E('s_cbranch_scc0 L_st_slow',
  f'buffer_store_dwordx4 {vr(16,4)}, v{vL16}, {sr(S_WS,4)}, s{sOslot} offen',
  f'buffer_store_dwordx4 {vr(28,4)}, v{vL16}, {sr(S_WS,4)}, s{sOslot} offen offset:1024')
lab('L_st_j')
stamp(3, 'tail')
w_reads()
e(f's_mov_b32 s{sSpin}, {SPIN//10}')
if opt('tslp', 0): e(f's_sleep {opt("tslp", 0)}')
stamp(4, 'tail')
NPRE = opt('npre', 2)
o_loads(None, range(NPRE))
e(f's_mov_b32 s{sC}, 2')

cm('================ tail: out projections (X: branch A, Y: branch B) ================')
lab('L_tail_go')
e('s_waitcnt lgkmcnt(0)')
for g in range(4):
    rt = g >> 1
    b_ = oOf + 16 * g
    e(f's_waitcnt vmcnt({4*(min(4, NPRE+g)-g-1)})')
    lab(f'L_tg{g}')
    E(f'v_max3_u32 v{vT0}, v{b_}, v{b_+1}, v{b_+2}', f'v_max3_u32 v{vT1}, v{b_+3}, v{b_+4}, v{b_+5}')
    for k in range(6, 16, 2):
        t = vT0 if (k >> 1) & 1 else vT1
        e(f'v_max3_u32 v{t}, v{t}, v{b_+k}, v{b_+k+1}')
    E(f'v_max_u32 v{vT0}, v{vT0}, v{vT1}', f'v_cmp_eq_u32 vcc, -1, v{vT0}', f's_cbranch_vccnz L_tr{g}')
    lab(f'L_tk{g}')
    if g == 0: stamp(5, 'tail', 'all')
    if NPRE + g < 4: o_loads(None, [NPRE + g])
    if g == 2: e('s_barrier')
    order = [(s_, ct) for s_ in range(4*(g&1), 4*(g&1)+4) for ct in range(2)]
    if g == 3: order = sorted(order, key=lambda z: z[1])
    for m_, (s_, ct) in enumerate(order):
        a_ = oAcc + 32 * rt + 16 * ct
        e(f'v_mfma_f32_32x32x16_bf16 {vr(a_,16)}, {vr(oW+8*s_+4*ct,4)}, {vr(oOf+32*rt+4*s_,4)}, {"0" if s_ == 0 else vr(a_,16)}')
        if g == 2:
            e(f'ds_write_b128 v{80+m_ if m_ else vTp}, {vr(oAcc+4*m_,4)}')
e('s_nop 7')
PADON[0] = False
lab('L_tail_wr')
stamp(6, 'tail')
for q in range(8):
    e(f'ds_write_b128 v{80+q if q else vTp}, {vr(oAcc+32+4*q,4)} offset:8192')
E('s_waitcnt lgkmcnt(0)', 's_barrier')
stamp(7, 'tail')
lab('L_red')
tR = 96
for kq in range(4):
    E(f'ds_read_b128 {vr(tR+8*kq,4)}, v{vTr0} offset:{kq*16384}', f'ds_read_b128 {vr(tR+8*kq+4,4)}, v88 offset:{kq*16384}')
e('s_waitcnt lgkmcnt(4)')
for i in range(0, 8, 2): e(f'v_pk_add_f32 {vr(tR+i,2)}, {vr(tR+i,2)}, {vr(tR+8+i,2)}')
e('s_waitcnt lgkmcnt(0)')
for a_, b_ in ((16, 24), (0, 16)):
    for i in range(0, 8, 2): e(f'v_pk_add_f32 {vr(tR+a_+i,2)}, {vr(tR+a_+i,2)}, {vr(tR+b_+i,2)}')
for i in range(4): e(f'v_cvt_pk_bf16_f32 v{16+i}, v{tR+2*i}, v{tR+2*i+1}')
e(f'buffer_store_dwordx4 {vr(16,4)}, v{vTo}, {sr(S_OUT,4)}, s{sOutOff} offen{opt("of", "_nt").replace("_", " ")}')
E(f's_cmp_eq_u32 s{sC}, 2', 's_cbranch_scc1 L_fin',
  f's_add_u32 s{sC}, s{sC}, 1', f's_cmp_eq_u32 s{sC}, 1', f's_cselect_b32 s{sT0}, 1, 8', f's_cselect_b32 s{sT1}, 64, 1', f's_lshl_b32 s{sT1}, s{sT1}, 10', f's_lshl_b32 s{sT0}, s{sT0}, 13',
  f'v_add_u32 v{vTr0}, s{sT0}, v{vTr0}', f'v_add_u32 v88, s{sT0}, v88', f's_add_u32 s{sOutOff}, s{sOutOff}, s{sT1}',
  f's_cmp_eq_u32 s{sC}, 1', 's_cbranch_scc1 L_red', 's_barrier', 's_branch L_red')
lab('L_fin')
if STAMPS:
    stamp(8, 'tail')
    e('s_waitcnt vmcnt(0)')
    stamp(9, 'tail', 'head'); stamp(6, 'all')
    E('s_waitcnt lgkmcnt(0)', 's_nop 1')
    ECHO = [a[7:] for a in sys.argv if a.startswith('--echo=')]
    if ECHO:
        a_, b_, mul = map(int, ECHO[0].split(','))
        E(f's_sub_u32 s{sT0}, s{sST+2*b_}, s{sST+2*a_}', f's_mul_i32 s{sT0}, s{sT0}, {mul}')
        if opt('ehg', -1) >= 0:
            E(f's_cmp_eq_u32 s{sHG}, {opt("ehg", -1)}', f's_cselect_b32 s{sT0}, s{sT0}, 0', f's_cmp_ge_u32 s{sW}, 4', f's_cselect_b32 s{sT0}, s{sT0}, 0')
        lab('L_echo')
        E(f's_memrealtime {sr(4,2)}', 's_waitcnt lgkmcnt(0)', f's_sub_u32 s{sT1}, s4, s{sST+12}', f's_cmp_lt_u32 s{sT1}, s{sT0}', 's_cbranch_scc1 L_echo')
    for i in range(12): e(f'v_mov_b32 v{16+i}, s{sST+2*i}')
    E(f's_getreg_b32 s{sT0}, hwreg(HW_REG_XCC_ID)', f'v_mov_b32 v28, s{sT0}', f'v_mov_b32 v29, s{sSpin}', f'v_mov_b32 v30, s{sFB}', 'v_mov_b32 v31, 0',
      f's_lshl_b32 s{sT0}, s2, 3', f's_add_u32 s{sT0}, s{sT0}, s{sW}', f's_lshl_b32 s{sT0}, s{sT0}, 6', f's_add_u32 s{sT0}, s{sT0}, {hex(WS_STAMP)}',
      'v_mov_b32 v0, 0', 's_mov_b64 exec, 1')
    for i in range(4):
        e(f'buffer_store_dwordx4 {vr(16+4*i,4)}, v0, {sr(S_WS,4)}, s{sT0} offen offset:{16*i}')
lab('L_end')
e('s_endpgm')

cm('================ X program (waves 0-3) ================')
VMQ[:] = []; NBAR[0] = 0
xAcc, xFr, xMask = 96, 160, 32
xa, xb, xw = 56, 60, 64
(xFw, xLq, xLv, xLvp, xOne) = (72, 73, 74, 75, 76)
XV, XM, PACE = opt('xv', 2), opt('xm', 0), opt('pace', 2)
e('.p2align 6')
lab('L_X')
srd(S_WQ, 0x80000); srd(S_XA, 0x200000); srd(S_WQKV, 0x180000)
E(f's_or_b32 s{sT1}, s2, s{sW}', 's_cbranch_scc1 L_nonon', 's_waitcnt lgkmcnt(0)',
  f's_lshl_b64 {sr(sNon,2)}, {sr(sNon,2)}, 5', f's_or_b32 s{sNon}, s{sNon}, 1', f'v_mov_b32 v{vNon}, s{sNon}', f'v_mov_b32 v{vNon+1}, s{sNon+1}', 's_mov_b64 exec, 1',
  f'global_store_dwordx2 v{vZero}, {vr(vNon,2)}, {sr(S_DBG,2)} sc1', 's_mov_b64 exec, -1')
lab('L_nonon')
E(f'v_and_b32 v{vT3}, 1, v{vG}', f'v_lshlrev_b32 v{vT3}, 2, v{vT3}', f'v_xor_b32 v{vT3}, v{vT3}, v{vT2}', f'v_lshlrev_b32 v{vT3}, 4, v{vT3}',
  f'v_lshl_add_u32 v{vW}, v{vT1}, 10, v{vT3}', f'v_add_u32 v{vW2}, {8192-1024}, v{vW}',
  f'v_mul_u32_u24 v{vWA}, 3072, v{vT1}', f'v_add_u32 v{vWA}, v{vWA}, v{vT3}')
lane_setup()
SH4 = ['0', f's{sVM}', f's{sVM+1}', f's{sC}']; RG4 = [82, 84, 86, 88]
qx, qw = 56, 64
E(f'v_bfe_u32 v{vXx}, v{vN}, 1, 3', f'v_xor_b32 v{vXx}, v{vXx}, v{vH}', f'v_lshlrev_b32 v{vXx}, 4, v{vXx}',
  f's_and_b32 s{sF0}, s{sW}, 1', f's_lshl_b32 s{sF0}, s{sF0}, 12', f'v_lshl_add_u32 v{qx}, v{vN}, 7, v{vXx}', f'v_add_u32 v{qx}, s{sF0}, v{qx}',
  f'v_xor_b32 v{qx+1}, 32, v{qx}', f'v_xor_b32 v{qx+2}, 64, v{qx}', f'v_xor_b32 v{qx+3}, 96, v{qx}',
  f's_and_b32 s{sF2}, s{sW}, 2', f's_lshl_b32 s{sF2}, s{sF2}, 5', f'v_xor_b32 v{qw}, s{sF2}, v{vWl}', f'v_add_u32 v{qw}, 8192, v{qw}', f'v_add_u32 v{qw+1}, 65536, v{qw}',
  f's_mov_b32 s{sCS}, {f32(CSCALE)}')
for j in range(4): e(f'v_add_u32 v{qx+4+j}, 65536, v{qx+j}')
if opt('arot', 0): E(f's_add_u32 s{sXo}, s{sRot}, s{sHG}', f's_and_b32 s{sXo}, s{sXo}, 7', f's_lshl_b32 s{sXo}, s{sXo}, 7')
else: e(f's_mov_b32 s{sXo}, 0')
E(f's_lshl_b32 s{sW2k}, s{sW}, 11',
  f's_lshl_b32 s{sT3}, s{sRB}, 2', f's_add_u32 s{sT0}, s{sT3}, s{sW}', f's_lshl_b32 s{sT0}, s{sT0}, 14', f'v_add_u32 v{vXA}, s{sT0}, v{vP0}', f'v_add_u32 v{vXA2}, s{sT0}, v{vP1}',
  f's_mul_i32 s{sT0}, s{sW}, {16*3072}', f's_add_u32 s{sT0}, s{sT0}, s{sHG128}', f'v_add_u32 v{vWA}, s{sT0}, v{vWA}', f'v_add_u32 v{vWA2}, {8*3072-1024}, v{vWA}')
def w64(srd_, lds_base_sgpr, lds, tag):
    for hf in range(2):
        E(f's_add_u32 m0, s{lds_base_sgpr}, {lds+hf*4096}', f's_add_u32 s{sT1}, s{sT0}, {2*7168}')
        dma(vW, srd_, f's{sT0}', 0, '', tag); dma(vW2, srd_, f's{sT0}', 1024, '', tag)
        dma(vW, srd_, f's{sT1}', 2048, '', tag); dma(vW2, srd_, f's{sT1}', 3072, '', tag)
        if hf == 0: e(f's_add_u32 s{sT0}, s{sT0}, 32768')
vTc = 68
def touch_setup():
    E(f's_lshr_b32 s{sT0}, s2, 3', f's_lshl_b32 s{sT0}, s{sT0}, 2', f's_add_u32 s{sT0}, s{sT0}, s{sW}',
      f's_mul_i32 s{sT1}, s{sT0}, {12*128}', f'v_mul_u32_u24 v{vTc}, {196608}, v{vG}', f'v_lshl_add_u32 v{vTc}, v{vI}, 7, v{vTc}', f'v_add_u32 v{vTc}, s{sT1}, v{vTc}',
      f's_lshl_b32 s{sT1}, s{sT0}, 12', f'v_lshlrev_b32 v{vTc+1}, 7, v{vN}', f'v_add_u32 v{vTc+1}, s{sT1}, v{vTc+1}',
      f's_lshl_b32 s{sT1}, s{sHG}, 2', f's_add_u32 s{sT1}, s{sT1}, s{sW}', f's_lshl_b32 s{sT1}, s{sT1}, 11', f's_lshl_b32 s{sT2}, s{sRB}, 16', f's_add_u32 s{sT1}, s{sT1}, s{sT2}',
      f'v_lshlrev_b32 v{vTc+2}, 7, v{vI}', f'v_add_u32 v{vTc+2}, s{sT1}, v{vTc+2}')
def touch_w(j):
    E(f's_mov_b32 s{sT0}, {j*4*196608}', 's_mov_b32 exec_lo, 0x0fff0fff', 's_mov_b32 exec_hi, 0x0fff0fff')
    e(f'buffer_load_dword v{vTc+3}, v{vTc}, {sr(S_WQKV,4)}, s{sT0} offen', 'tc')
    e('s_mov_b64 exec, -1')
def touch_x():
    e('s_mov_b64 exec, 0xffff')
    e(f'buffer_load_dword v{vTc+3}, v{vTc+2}, {sr(S_XA,4)}, 0 offen{NT}', 'tc')
    e('s_mov_b64 exec, -1')
def touch_wo(srd_):
    e('s_mov_b32 exec_hi, 0')
    e(f'buffer_load_dword v{vTc+3}, v{vTc+1}, {sr(srd_,4)}, 0 offen', 'tc')
    e('s_mov_b64 exec, -1')
TC = opt('tc', 0)
def halo_fill():
    E(f's_lshl_b32 s{sT3}, s{sRB}, 16', f's_sub_u32 s{sT2}, s{sT3}, 16384', f's_max_i32 s{sT2}, s{sT2}, 0',
      f's_lshl_b32 s{sT0}, s{sW}, 7', f's_add_u32 s{sT0}, s{sT0}, s{sStepH}')
    for j in range(2):
        E(f's_and_b32 s{sT0}, s{sT0}, 1023', f's_add_u32 m0, s{sW2k}, {HALO+j*8192}', f's_add_u32 s{sT1}, s{sT2}, s{sT0}')
        dma(vP0, S_XA, f's{sT1}', 0, '', 'halo'); dma(vP1, S_XA, f's{sT1}', 1024, '', 'halo')
        if j == 0: e(f's_add_u32 s{sT0}, s{sT0}, 512')
def a_fill(c):
    slot = (c & 3) * SLOT
    t = f'A{c}'
    E(f's_add_u32 m0, s{sW2k}, {slot}', f's_mul_i32 s{sWo}, s{sXo}, 1536')
    dma(vXA, S_XA, f's{sXo}', 0, NT, t); dma(vXA2, S_XA, f's{sXo}', 1024, NT, t)
    for ty in range(3):
        E(f's_add_u32 m0, s{sW2k}, {slot+8192+ty*8192}', [f's_add_u32 s{sXo}, s{sXo}, 128', f's_add_u32 s{sWo}, s{sWo}, 1024', f's_add_u32 s{sWo}, s{sWo}, 1024'][ty])
        dma(vWA, S_WQKV, f's{sWo}', 0, WNT, t); dma(vWA2, S_WQKV, f's{sWo}', 1024, WNT, t)
    e(f's_and_b32 s{sXo}, s{sXo}, 1023')
def kv_fill(k):
    E(f's_add_u32 m0, s{sW4k}, {R+((k&1)^1)*16384}', f's_and_b32 s{sKVo}, s{sKVo}, 0x1ffff')
    for j in range(4): dma(vL16, S_WS, f's{sKVo}', 1024*j, ' sc1', f'KV{k}')
    e(f's_add_u32 s{sKVo}, s{sKVo}, 16384')
def wo_fill(srd_, half, lds, tag):
    e(f's_add_u32 s{sT0}, s{sWoff}, {half*256*1024}')
    w64(srd_, sW8k, lds, tag)
def masks():
    E(f'v_lshlrev_b32 v{vT0}, 2, v{vH}', f'v_sub_u32 v{vT0}, v{vN}, v{vT0}', f'v_add_u32 v{vT0}, 18, v{vT0}',
      f'v_mov_b32 v{vT2}, 0x5555', f'v_mov_b32 v{vT3}, 0', f'v_lshlrev_b64 {vr(vT2,2)}, v{vT0}, {vr(vT2,2)}',
      f'v_not_b32 v{vT2}, v{vT2}', f'v_not_b32 v{vT3}, v{vT3}', f's_mov_b32 s{sF1}, 0xff800000')
    for r in range(16): E(f'v_bfe_i32 v{xMask+r}, v{vT3}, {8*(r>>2)+(r&3)}, 1', f'v_and_b32 v{xMask+r}, s{sF1}, v{xMask+r}')
    for r in range(8, 16): E(f'v_bfe_i32 v{xMask+8+r}, v{vT2}, {8*(r>>2)+(r&3)}, 1', f'v_and_b32 v{xMask+8+r}, s{sF1}, v{xMask+8+r}')
def local_setup():
    E(f's_and_b32 s{sT0}, s{sW}, 1', f's_lshl_b32 s{sT0}, s{sT0}, 12', f's_lshr_b32 s{sT1}, s{sW}, 1', f's_lshl_b32 s{sT2}, s{sT1}, 11', f's_add_u32 s{sT0}, s{sT0}, s{sT2}', f's_add_u32 s{sT0}, s{sT0}, {SC}', f'v_add_u32 v{xFw}, s{sT0}, v{vL16}',
      f's_lshl_b32 s{sT0}, s{sRB}, 3', f's_add_u32 s{sT0}, s{sT0}, s{sHG}', f's_lshl_b32 s{sStepA}, s{sT0}, 13', f's_add_u32 s{sStepA}, s{sStepA}, s{sT2}', f's_add_u32 s{sStepA}, s{sStepA}, {hex(WS_HX)}',
      f's_lshl_b32 s{sStepB}, s{sT0}, 1', f's_add_u32 s{sStepB}, s{sStepB}, s{sT1}', f's_lshl_b32 s{sStepB}, s{sStepB}, 6', f's_add_u32 s{sStepB}, s{sStepB}, {hex(WS_FHX)}',
      f's_cmp_eq_u32 s{sRB}, 0', f's_cselect_b32 s{sT2}, 0, 8', f's_sub_u32 s{sT0}, s{sT0}, s{sT2}', f's_lshl_b32 s{sT2}, s{sT2}, 7', f's_sub_u32 s{sT2}, s{sStepB}, s{sT2}', f'v_mov_b32 v{vB1}, s{sT2}',
      f's_lshl_b32 s{sStepH}, s{sT0}, 13', f's_lshl_b32 s{sT2}, s{sW}, 10', f's_add_u32 s{sStepH}, s{sStepH}, s{sT2}', f's_add_u32 s{sStepH}, s{sStepH}, {hex(WS_HX)}',
      f'v_mov_b32 v{xOne}, 0x3f803f80', f'v_mov_b32 v{xOne+1}, 0x3f803f80',
      f's_lshl_b32 s{sT1}, s{sW}, 10', f's_add_u32 s{sT2}, s{sT1}, {ONES}', f's_add_u32 s{sT1}, s{sT1}, {SC}', f'v_add_u32 v{xLq}, s{sT1}, v{vL16}',
      f'v_and_b32 v{vT0}, 1, v0', f'v_lshlrev_b32 v{vT0}, 5, v{vT0}', f'v_lshl_add_u32 v{vT0}, v{vH}, 3, v{vT0}',
      f'v_lshrrev_b32 v{vT1}, 2, v{vI}', f'v_add_u32 v{vT0}, v{vT0}, v{vT1}', f'v_lshlrev_b32 v{vT0}, 4, v{vT0}', f'v_and_b32 v{vT1}, 2, v0', f'v_lshl_add_u32 v{vT0}, v{vT1}, 2, v{vT0}',
      f'v_add_u32 v{xLv}, s{sT1}, v{vT0}', f'v_mov_b32 v{xLvp}, s{sT2}', f'v_lshl_add_u32 v{vOw}, v0, 3, v{xLvp}',
      f'v_and_b32 v{vT0}, 16, v0', f'v_cmp_ne_u32 vcc, 0, v{vT0}',
      f'v_add_u32 v78, {4*4096}, v{xLv}', f'v_add_u32 v79, {5*4096}, v{xLv}', f'v_add_u32 v80, {7*4096}, v{xLv}',
      f'v_cndmask_b32 v78, v78, v{xLvp}, vcc', f'v_cndmask_b32 v79, v79, v{xLvp}, vcc', f'v_cndmask_b32 v80, v80, v{xLvp}, vcc',
      f's_lshl_b32 s{sT0}, s{sRB}, 6', f's_lshl_b32 s{sT1}, s{sHG}, 2', f's_add_u32 s{sT1}, s{sT1}, s{sW}', f's_add_u32 s{sT0}, s{sT0}, s{sT1}',
      f's_lshl_b32 s{sT0}, s{sT0}, 10', f's_add_u32 s{sOslot}, s{sT0}, {hex(WS_OA)}', f's_add_u32 s{sOslot2}, s{sOslot}, 32768',
      f's_lshl_b32 s{sT0}, s{sRB}, 5', f's_add_u32 s{sT0}, s{sT0}, s{sT1}', f's_lshl_b32 s{sT0}, s{sT0}, 6', f's_add_u32 s{sK1}, s{sT0}, {hex(WS_FOA)}')
    for i in range(4): e(f'v_mov_b32 v{vF0+i}, -1')
def sentinels():
    E(f's_add_u32 s{sT0}, s{sOslot}, {hex(WS_OB-WS_OA)}', f's_add_u32 s{sT1}, s{sT0}, 32768')
    e(f'buffer_store_dwordx4 {vr(vF0,4)}, v{vL16}, {sr(S_WS,4)}, s{sT0} offen sc1', 'sent')
    e(f'buffer_store_dwordx4 {vr(vF0,4)}, v{vL16}, {sr(S_WS,4)}, s{sT1} offen sc1', 'sent')
    nonce_load('sent')
def setup_a():
    E(f's_cmp_eq_u32 s{sW}, 3', f's_cselect_b32 s{sT1}, 15, 31', f'v_and_b32 v{vT0}, s{sT1}, v{vN}', f'v_lshl_add_u32 v{xa}, v{vT0}, 7, v{vXx}',
      f's_cselect_b32 s{sT1}, {HALO}, 0', f'v_add_u32 v{xa}, s{sT1}, v{xa}', f's_cselect_b32 s{sT1}, 0, 4096', f'v_add_u32 v{xb}, s{sT1}, v{xa}',
      f's_cselect_b32 s{sStepA}, 1, 16', f's_cselect_b32 s{sStepB}, 1, -32', f's_cselect_b32 s{sT1}, 1, s{sW}', f's_cselect_b32 s{sT2}, 2, s{sW}',
      f's_lshl_b32 s{sStepA}, s{sStepA}, 11', f's_lshl_b32 s{sStepB}, s{sStepB}, 11',
      f's_lshl_b32 s{sT1}, s{sT1}, 13', f's_add_u32 s{sT1}, s{sT1}, 8192', f'v_add_u32 v{xw}, s{sT1}, v{vWl}', f'v_xor_b32 v{xw+1}, 64, v{xw}',
      f's_lshl_b32 s{sT2}, s{sT2}, 13', f's_add_u32 s{sT2}, s{sT2}, 8192', f'v_add_u32 v{xw+2}, s{sT2}, v{vWl}', f'v_xor_b32 v{xw+3}, 64, v{xw+2}')
    for j in range(4): e(f'v_add_u32 v{xw+4+j}, 65536, v{xw+j}')
    for s_ in range(1, 4): E(f'v_xor_b32 v{xa+s_}, {32*s_}, v{xa}', f'v_xor_b32 v{xb+s_}, {32*s_}, v{xb}')
def setup_b():
    E(f's_lshr_b32 s{sT1}, s{sRB}, 2', f's_lshl_b32 s{sKVo}, s{sT1}, 14', f's_add_u32 s{sKVo}, s{sKVo}, s{sW4k}', f's_add_u32 s{sKVo}, s{sKVo}, 16384',
      f'v_lshlrev_b32 v{vPa}, 3, v0', f'v_add_u32 v{vPa}, {hex(WS_FD)}, v{vPa}',
      f'v_lshlrev_b32 v{vPa2}, 6, v{vN}', f's_lshl_b32 s{sT2}, s{sRB}, 11', f's_add_u32 s{sT2}, s{sT2}, {hex(WS_FOA)}', f'v_add_u32 v{vPa2}, s{sT2}, v{vPa2}',
      f's_add_u32 s{sT2}, s{sT1}, 1', f's_lshl_b32 s{sT2}, s{sT2}, 5', f'v_add_u32 v{vB0}, s{sT2}, v0', f'v_and_b32 v{vB0}, 255, v{vB0}',
      f'v_lshlrev_b32 v{vB0}, 6, v{vB0}', f'v_add_u32 v{vB0}, {hex(WS_FKV)}, v{vB0}',
      f's_mov_b32 s{sVM}, 512', f's_mov_b32 s{sVM+1}, 1024', f's_mov_b32 s{sC}, 1536',
      f's_lshl_b32 s{sW8k}, s{sW}, 13', f's_lshl_b32 s{sWoff}, s{sW}, 16', f's_add_u32 s{sWoff}, s{sWoff}, s{sHG128}')
    srd(S_WOA, 0x80000); srd(S_WOB, 0x80000)
    E(f's_getreg_b32 s{sXcc}, hwreg(HW_REG_XCC_ID, 0, 4)', f's_lshl_b32 s{sXcc}, s{sXcc}, 1')
setup_b()
E(f's_add_u32 s{sT0}, s{sW}, s{sRot}', f's_lshl_b32 s{sT0}, s{sT0}, 16', f's_add_u32 s{sT0}, s{sT0}, s{sHG128}', f's_lshl_b32 s{sT2}, s{sW}, 14',
  f's_and_b32 s{sT0}, s{sT0}, 0x7ffff', 's_waitcnt lgkmcnt(0)', 's_barrier')
w64(S_WQ, sT2, 8192, 'B')
E(f's_add_u32 s{sT0}, s{sT0}, {4*65536-32768}', f's_and_b32 s{sT0}, s{sT0}, 0x7ffff')
w64(S_WQ, sT2, 65536+8192, 'B')
stamp(1, 'head')
local_setup(); tail_setup(); masks()
if TC: touch_setup()
for j in range(16): e(f'v_mov_b32 v{208+j}, 0')
E('s_waitcnt vmcnt(0)', 's_barrier')
stamp(5, 'head'); stamp(1, 'all', 'x')
def qrd(u):
    sc, st = u >> 2, u & 3
    x = vFr + 8 * (u % 8)
    hi = sc >> 2
    o = (sc & 3) * 16384
    E(f'ds_read_b128 {vr(x,4)}, v{qx+4*hi+st} offset:{o}',
      f'ds_read_b64_tr_b16 {vr(x+4,2)}, v{qw+hi} offset:{o+st*2048}', f'ds_read_b64_tr_b16 {vr(x+6,2)}, v{qw+hi} offset:{o+st*2048+512}')
for u in range(5): qrd(u)
if TC & 8: touch_x(); touch_w(0)
for u in range(32):
    x = vFr + 8 * (u % 8)
    issued = min(32, 5 + u)
    e(f's_waitcnt lgkmcnt({3*(issued-u-1)})')
    e(f'v_mfma_f32_32x32x16_bf16 {vr(vQacc,16)}, {vr(x+4,4)}, {vr(x,4)}, {"0" if u == 0 else vr(vQacc,16)}')
    if 5 + u < 32: qrd(5 + u)
    if EA and u == 7: e('s_barrier')
    if EA and u == EA: a_fill(0)
E(f's_cmp_lg_u32 s{sW}, 0', 's_cbranch_scc1 L_np2')
poll_issue(vB0, ['0'], [vFl])
lab('L_np2')
e('s_nop 9')
stamp(6, 'head')
for j in range(16): e(f'v_mul_f32 v{vQacc+j}, s{sCS}, v{vQacc+j}')
for j in range(8): e(f'v_cvt_pk_bf16_f32 v{vQacc+j}, v{vQacc+2*j}, v{vQacc+2*j+1}')
E(f'ds_write_b128 v{vQx}, {vr(vQacc,4)}', f'ds_write_b128 v{vQx}, {vr(vQacc+4,4)} offset:1024',
  f's_setprio {XV}', 's_waitcnt lgkmcnt(0)')
stamp(7, 'head'); stamp(2, 'all', 'x')
e('s_barrier')
for j in range(16): e(f'v_mov_b32 v{16+j}, 0')
stamp(8, 'head'); stamp(3, 'all', 'x')

def a_chunk(cs, side=()):
    side = list(side)
    seq = []
    u = 0
    for c in cs:
        hi, base = (c >> 1) & 1, (c & 1) * SLOT
        for s in range(4):
            x = xFr + 16 * (u % 3); u += 1
            for ty in range(3):
                r = [f'ds_read_b128 {vr(x,4)}, v{qx+4*hi+s} offset:{base}'] if ty == 0 else []
                o = base + ty * 8192 + s * 2048
                r += [f'ds_read_b64_tr_b16 {vr(x+4+4*ty,2)}, v{qw+hi} offset:{o}', f'ds_read_b64_tr_b16 {vr(x+6+4*ty,2)}, v{qw+hi} offset:{o+512}']
                a = xAcc + 16 * ty
                seq.append((r, f'v_mfma_f32_32x32x16_bf16 {vr(a,16)}, {vr(x+4+4*ty,4)}, {vr(x,4)}, {"0" if (c == 0 and s == 0) else vr(a,16)}'))
    if XM != XV: e(f's_setprio {XM}')
    LA = opt('la', 1)
    for k_ in range(LA): E(*seq[k_][0])
    for k_, (r, m) in enumerate(seq):
        if k_ + LA < len(seq): E(*seq[k_+LA][0])
        e(f's_waitcnt lgkmcnt({sum(len(seq[j][0]) for j in range(k_+1, min(len(seq), k_+LA+1)))})')
        e(m)
        take = -(-len(side) // (len(seq) - k_))
        for g in side[:take]:
            for s_, t_ in g: e(s_, t_)
        side = side[take:]
    if XM != XV: e(f's_setprio {XV}')
def write_frags():
    e('s_nop 6')
    for ty in range(3):
        for hd in range(2):
            a = xAcc + 16 * ty + 8 * hd
            for i in range(4): e(f'v_cvt_pk_bf16_f32 v{a+i}, v{a+2*i}, v{a+2*i+1}')
            e(f'ds_write_b128 v{xFw}, {vr(a,4)} offset:{ty*8192+hd*1024}')
    E(f's_bitcmp1_b32 s{sW}, 0', 's_cbranch_scc0 L_nopub', f's_add_u32 s{sT0}, s{sStepA}, 4096',
      f'buffer_store_dwordx4 {vr(xAcc+16,4)}, v{vL16}, {sr(S_WS,4)}, s{sStepA} offen sc1',
      f'buffer_store_dwordx4 {vr(xAcc+24,4)}, v{vL16}, {sr(S_WS,4)}, s{sStepA} offen offset:1024 sc1',
      f'buffer_store_dwordx4 {vr(xAcc+32,4)}, v{vL16}, {sr(S_WS,4)}, s{sT0} offen sc1',
      f'buffer_store_dwordx4 {vr(xAcc+40,4)}, v{vL16}, {sr(S_WS,4)}, s{sT0} offen offset:1024 sc1')
    lab('L_nopub')
PUB = [0]
def halo_flag():
    E(f's_bitcmp1_b32 s{sW}, 0', 's_cbranch_scc0 L_nohf')
    flag_store('hx', f's{sStepB}', f's_waitcnt vmcnt({len(VMQ)-PUB[0]})')
    lab('L_nohf')
def halo_get():
    poll_check('hx', vB1, ['0'], [vFl], None)
    E(f's_lshl_b32 s{sT0}, s{sW}, 10', f's_add_u32 m0, s{sT0}, {SC+6*4096}', f's_add_u32 s{sT1}, s{sStepH}, 4096')
    dma(vL16, S_WS, f's{sStepH}', 0, ' sc1', 'hx')
    E(f's_add_u32 m0, s{sT0}, {SC+7*4096}', 's_nop 0')
    dma(vL16, S_WS, f's{sT1}', 0, ' sc1', 'hx')
def local_task(t):
    lq, lk, lp, lv = xFr, xFr+4, xFr+8, xFr+12
    lS, lP, lO = xAcc, xAcc+16, (16 if t else 208)
    kp = 6 if t == 0 else 2
    vc, vp = (78, 80) if t == 0 else (79, 78)
    E(f'ds_read_b128 {vr(lq,4)}, v{xLq} offset:{t*4096}', f'ds_read_b128 {vr(lk,4)}, v{xLq} offset:{(2+t)*4096}', f'ds_read_b128 {vr(lp,4)}, v{xLq} offset:{kp*4096}',
      f'ds_read_b64_tr_b16 {vr(lv,2)}, v{vc}', f'ds_read_b64_tr_b16 {vr(lv+2,2)}, v{vc} offset:64',
      f'ds_read_b64_tr_b16 {vr(lv+4,2)}, v{vc} offset:256', f'ds_read_b64_tr_b16 {vr(lv+6,2)}, v{vc} offset:320',
      f'ds_read_b64_tr_b16 {vr(lv+8,2)}, v{vp} offset:256', f'ds_read_b64_tr_b16 {vr(lv+10,2)}, v{vp} offset:320')
    if t == 0:
        E(f's_cmp_lg_u32 s{sRB}, 0', 's_cbranch_scc1 L_m0')
        for r in range(8): e(f'v_mov_b32 v{xMask+16+r}, 0xff800000')
        lab('L_m0')
    E('s_waitcnt lgkmcnt(6)', 's_nop 0',
      f'v_mfma_f32_32x32x16_bf16 {vr(lS,16)}, {vr(lk,4)}, {vr(lq,4)}, {vr(xMask,16)}',
      f'v_mfma_f32_32x32x16_bf16 {vr(lP,16)}, {vr(lp,4)}, {vr(lq,4)}, {vr(xMask+8,16)}')
    e('s_nop 10')
    regs = [lS+i for i in range(16)] + [lP+8+i for i in range(8)]
    maxtree(regs, vT0, vT1)
    E('s_nop 1', f'v_permlane32_swap_b32 v{vT0}, v{vT1}', f'v_max_f32 v{vT0}, v{vT0}, v{vT1}', f'v_mul_f32 v{vT0}, {f32(-CSCALE)}, v{vT0}')
    for k in range(0, 24, 2): e(f'v_pk_fma_f32 {vr(regs[k],2)}, {vr(regs[k],2)}, {sr(sCS,2)}, {vr(vT0,2)} op_sel_hi:[1,0,0]')
    e('s_waitcnt lgkmcnt(0)')
    for k in range(24):
        e(f'v_exp_f32 v{regs[k]}, v{regs[k]}')
        if k == 9: e(f'v_smfmac_f32_32x32x32_bf16 {vr(lO,16)}, {vr(lv,4)}, {vr(lS,8)}, v{vIdx}')
        if k == 17: e(f'v_smfmac_f32_32x32x32_bf16 {vr(lO,16)}, {vr(lv+4,4)}, {vr(lS+8,8)}, v{vIdx}')
    E('s_nop 1', f'v_smfmac_f32_32x32x32_bf16 {vr(lO,16)}, {vr(lv+8,4)}, {vr(lP+8,8)}, v{vIdx}', 's_nop 11',
      f'v_rcp_f32 v{vT2}, v{lO+8}', 's_nop 0')
    for i in range(0, 8, 2): e(f'v_pk_mul_f32 {vr(lO+i,2)}, {vr(lO+i,2)}, {vr(vT2,2)} op_sel_hi:[1,0]')
    d = xAcc + 48 + 4 * t
    for i in range(4): e(f'v_cvt_pk_bf16_f32 v{d+i}, v{lO+2*i}, v{lO+2*i+1}')
    e(f'buffer_store_dwordx4 {vr(d,4)}, v{vL16}, {sr(S_WS,4)}, s{sOslot2 if t else sOslot} offen sc1', 'oa')

def oa_mfma(rt, wr=False):
    for s_ in range(8):
        for ct in range(2):
            a_ = oAcc + 32 * rt + 16 * ct
            e(f'v_mfma_f32_32x32x16_bf16 {vr(a_,16)}, {vr(oW+8*s_+4*ct,4)}, {vr(oOf+32*rt+4*s_,4)}, {"0" if s_ == 0 else vr(a_,16)}')
            m_ = 2 * s_ + ct
            if wr and wr <= m_ < wr + 4:
                for q in (2*(m_-wr), 2*(m_-wr)+1): e(f'ds_write_b128 v{80+q if q else vTp}, {vr(oAcc+4*q,4)}')
PAT = opt('pat', 3)
if PAT == 3:
    CH = {n: [n-2] for n in range(2, 10)}; FILL = {n: [n] for n in range(8)}
else:
    CH = {2: [0], 3: [1], 4: [2], 5: [3, 4], 6: [5], 7: [6], 8: [7]}; FILL = {0: [0], 1: [1], 2: [2, 3], 3: [4], 4: [5], 5: [6], 6: [7]}
if EA:
    CH = {n: [n-1] for n in range(1, 9)}; FILL = {n: [n+1] for n in range(7)}
NG = max(CH)
LATE = opt('late', 1 if NG < 9 else 0)
AE = opt('aearly', 0)
for n in range(16):
    cm(f'X interval {n}')
    if n < 9: stamp(n + 1, 'i0')
    if n >= 8: stamp(n - 7, 'i1')
    if n in (opt('dn', 2), opt('dn', 2)+1, opt('dn', 2)+2): stamp(1 + 4*(n-opt('dn', 2)), 'd')
    if n in (1, 2, 4, 10, 12, 14): stamp({1: 4, 2: 5, 4: 6, 10: 7, 12: 8, 14: 9}[n], 'x')
    if STAMPS and STMODE == 'xc' and n in (4, 8, 10, 12, 14, 15):
        i_ = (4, 8, 10, 12, 14, 15).index(n)
        E(f's_memrealtime {sr(sST+4*i_,2)}', f's_memtime {sr(sST+4*i_+2,2)}')
    waits = []
    k = n // 2
    if n == 0:
        E(f's_cmp_lg_u32 s{sW}, 0', 's_cbranch_scc1 L_nochk_kv1')
        poll_check('kv1', vB0, ['0'], [vFl], 0)
    ILV = opt('ilv', 1) and n in CH
    if n == 3:
        E(f's_cmp_lg_u32 s{sW}, 0', 's_cbranch_scc1 L_np3')
        poll_issue(vPa, SH4, RG4)
        lab('L_np3')
        NP3 = len(VMQ)
    if ILV: CAP[0] = []
    if n == 1: kv_fill(1)
    if n % 2 == 0 and 1 <= k <= 6: kv_fill(k + 1)
    for c in FILL.get(n, []): a_fill(c)
    if n == NG - 1: sentinels(); wo_fill(S_WOA, 0, 0, 'woA')
    if n == NG: wo_fill(S_WOA, 1, SLOT, 'woA')
    if TC & 1 and n == 0: touch_x(); touch_w(0)
    if TC & 2 and n == 2: touch_w(1)
    if TC & 4 and n == 3: touch_wo(S_WOA)
    if TC & 4 and n == 5: touch_wo(S_WOB)
    DN = opt('dn', 2)
    side = []
    if ILV:
        cap = CAP[0]; CAP[0] = None
        g = []
        for it in cap:
            g.append(it)
            if it[1] is not None: side.append(g); g = []
        if g: side[-1] += g
    if n in (DN, DN+1): stamp(2 + 4*(n-DN), 'd')
    if n in CH: a_chunk(CH[n], side)
    if n in (DN, DN+1): stamp(3 + 4*(n-DN), 'd')
    for c in CH.get(n + 1, []): waits.append(f'A{c}')
    if n == NG: write_frags(); PUB[0] = len(VMQ)
    if n == NG + 1:
        e(f'ds_write_b64 v{vOw}, {vr(xOne,2)}')
        if opt('hfe', 1): halo_flag()
        local_task(1)
        if not opt('hfe', 1): halo_flag()
    if n == NG + 2:
        halo_get(); waits.append('hx')
    if n == NG + 3: local_task(0)
    if n == NG + 4:
        flag_store('oa', f's{sK1}', f's_waitcnt vmcnt({vmn("oa")})', xcc=True)
        VMQ.append('fl')
        if LATE: wo_fill(S_WOB, 0, 2*SLOT, 'woB')
        w_reads()
    if LATE and n == NG + 5: wo_fill(S_WOB, 1, 3*SLOT, 'woB')
    if n == NG + 5 + LATE:
        E(f's_cmp_lg_u32 s{sW}, 0', 's_cbranch_scc1 L_skip_oa')
        poll_check('oa', vPa2, ['0'], [vFl], None, xcc=True)
        E(f'v_or_b32 v{vFl}, s{sXcc}, v{vNon}', f'v_cmp_ne_u32 vcc, v{vFl}, v{vFl+2}', 's_nop 1', 's_cmp_eq_u64 vcc, 0', f's_cselect_b32 s{sT0}, {opt("fast", 1)}, 0',
          f'v_mov_b32 v{vFl}, s{sT0}')
        lab('L_skip_oa')
        if not LATE: wo_fill(S_WOB, 0, 2*SLOT, 'woB'); wo_fill(S_WOB, 1, 3*SLOT, 'woB')
    if n == NG + 6 + LATE:
        E(f's_cmp_lg_u32 s{sW}, 0', 's_cbranch_scc1 L_skip_same', f'v_mov_b32 v{vFl+1}, {R+16384}', f'ds_write_b32 v{vFl+1}, v{vFl}')
        lab('L_skip_same')
        o_loads('oal')
    if n == 13 and opt('pad', 0):
        E('s_mov_b64 exec, 0', 's_branch L_pad0')
        lab(f'L_pad{PADS[0]}')
        e('s_mov_b64 exec, -1')
    if n == 15 and AE:
        E('s_waitcnt vmcnt(8)', f's_setprio {XM}')
        oa_mfma(0)
        e(f's_setprio {XV}')
    if n % 2 == 1 and k + 1 <= 7: waits.append(f'KV{k+1}')
    if n == 15: waits.append('woB')
    if waits: e(f's_waitcnt vmcnt({min(vmn(t) for t in waits)}) lgkmcnt(0)')
    else: e('s_waitcnt lgkmcnt(0)')
    if n == 3:
        E(f's_cmp_lg_u32 s{sW}, 0', 's_cbranch_scc1 L_nochk_kv2')
        poll_check('kv2', vPa, SH4, RG4, len(VMQ) - NP3)
    if n < 9: stamp(n + 1, 'j0')
    if n >= 8: stamp(n - 7, 'j1')
    if n in (DN, DN+1): stamp(4 + 4*(n-DN), 'd')
    e('s_barrier')
assert NBAR[0] == NBAR_Y, (NBAR[0], NBAR_Y)
E('s_setprio 0', f's_mov_b32 s{sSpin}, 0', f's_mov_b32 s{sC}, 0')
stamp(9, 'i1')
e('s_waitcnt vmcnt(0)')
stamp(5, 'tail')
if not AE: oa_mfma(0)
oa_mfma(1, 10)
E('s_nop 9', 's_branch L_tail_wr')

cm('---- fallback (Y waves): true max, K/V from global ----')
lab('L_fallback')
E(f's_cmp_eq_u32 s{sFB}, 0', 's_cbranch_scc1 L_fb_go', f's_cmp_eq_u32 s{sT1}, 1', 's_branch L_att_ok')
lab('L_fb_go')
E(f's_mov_b32 s{sFB}, 1', f'v_mov_b32 v{vT0}, 0xff800000', f'v_mov_b32 v{vT2}, 0xff800000', f's_mov_b32 s{sT2}, 0')
lab('L_fb_max')
E(f'buffer_load_dwordx4 {vr(aK,4)}, v{vL16}, {sr(S_WS,4)}, s{sT2} offen sc1', 's_waitcnt vmcnt(0)',
  f'v_mfma_f32_32x32x16_bf16 {vr(aSa,16)}, {vr(aK,4)}, {vr(vQa,4)}, 0', f'v_mfma_f32_32x32x16_bf16 {vr(aSb,16)}, {vr(aK,4)}, {vr(vQb,4)}, 0', 's_nop 15')
for k in range(0, 16, 2): e(f'v_max3_f32 v{vT0}, v{vT0}, v{aSa+k}, v{aSa+k+1}')
for k in range(0, 16, 2): e(f'v_max3_f32 v{vT2}, v{vT2}, v{aSb+k}, v{aSb+k+1}')
E(f's_add_u32 s{sT2}, s{sT2}, 2048', f's_cmp_lt_u32 s{sT2}, {64*2048}', 's_cbranch_scc1 L_fb_max',
  f'v_mov_b32 v{vT1}, v{vT0}', f'v_mov_b32 v{vT3}, v{vT2}', 's_nop 1',
  f'v_permlane32_swap_b32 v{vT0}, v{vT1}', f'v_permlane32_swap_b32 v{vT2}, v{vT3}', f'v_max_f32 v{vT0}, v{vT0}, v{vT1}', f'v_max_f32 v{vT2}, v{vT2}, v{vT3}')
for i in range(16): e(f'v_sub_f32 v{aCa+i}, 0, v{vT0}')
for i in range(16): e(f'v_sub_f32 v{aCb+i}, 0, v{vT2}')
for i in range(32): e(f'v_mov_b32 v{aOa+i}, 0')
E(f'v_lshlrev_b32 v{vT2}, 4, v{vI}', f'v_lshl_add_u32 v{vT2}, v{vH}, 8, v{vT2}', f's_mov_b32 s{sT2}, 0')
lab('L_fb_pv')
E(f'buffer_load_dwordx4 {vr(aK,4)}, v{vL16}, {sr(S_WS,4)}, s{sT2} offen sc1', f's_mov_b64 exec, {sr(sVM,2)}',
  f'buffer_load_dwordx4 {vr(aV,4)}, v{vT2}, {sr(S_WS,4)}, s{sT2} offen offset:1024 sc1',
  f'buffer_load_dwordx4 {vr(aV+4,4)}, v{vT2}, {sr(S_WS,4)}, s{sT2} offen offset:1536 sc1', 's_mov_b64 exec, -1', 's_waitcnt vmcnt(0)',
  f'v_mfma_f32_32x32x16_bf16 {vr(aSa,16)}, {vr(aK,4)}, {vr(vQa,4)}, {vr(aCa,16)}',
  f'v_mfma_f32_32x32x16_bf16 {vr(aSb,16)}, {vr(aK,4)}, {vr(vQb,4)}, {vr(aCb,16)}', 's_nop 15')
for i in range(32): e(f'v_exp_f32 v{aSa+i}, v{aSa+i}')
E('s_nop 1',
  f'v_smfmac_f32_32x32x32_bf16 {vr(aOa,16)}, {vr(aV,4)}, {vr(aSa,8)}, v{vIdx}', f'v_smfmac_f32_32x32x32_bf16 {vr(aOa,16)}, {vr(aV+4,4)}, {vr(aSa+8,8)}, v{vIdx}',
  f'v_smfmac_f32_32x32x32_bf16 {vr(aOb,16)}, {vr(aV,4)}, {vr(aSb,8)}, v{vIdx}', f'v_smfmac_f32_32x32x32_bf16 {vr(aOb,16)}, {vr(aV+4,4)}, {vr(aSb+8,8)}, v{vIdx}',
  f's_add_u32 s{sT2}, s{sT2}, 2048', f's_cmp_lt_u32 s{sT2}, {64*2048}', 's_cbranch_scc1 L_fb_pv', 's_nop 15', 's_branch L_att_fin')
for g, so in enumerate((sOoff, sT1, sT2, sT3)):
    lab(f'L_tr{g}')
    E(f's_sub_u32 s{sSpin}, s{sSpin}, 1', f's_cbranch_scc1 L_tk{g}')
    for j in range(4):
        o = f' offset:{j*1024}' if j else ''
        e(f'buffer_load_dwordx4 {vr(oOf+16*g+4*j,4)}, v{vL16}, {sr(S_WS,4)}, s{so} offen{o} sc1')
    E('s_waitcnt vmcnt(0)', f's_branch L_tg{g}')
lab('L_st_slow')
E(f'buffer_store_dwordx4 {vr(16,4)}, v{vL16}, {sr(S_WS,4)}, s{sOslot} offen sc1',
  f'buffer_store_dwordx4 {vr(28,4)}, v{vL16}, {sr(S_WS,4)}, s{sOslot} offen offset:1024 sc1', 's_branch L_st_j')
lab('L_code_end')

HDR = open(f'cdna_kernels/{NAME}.s.ref').read().split('\n')
hdr = []
for line in HDR:
    if line.startswith('; @launch'): break
    hdr.append(line)
txt = '\n'.join(hdr) + '\n; @launch grid=(256,1,1) block=(512,1,1) lds=163840\n'
txt += f'''.amdgcn_target "amdgcn-amd-amdhsa--gfx950"
.text
.globl {NAME}_kernel
.p2align 8
.type {NAME}_kernel,@function
'''
txt += '\n'.join(L) + '\n'
txt += f'''.section .rodata,"a"
.p2align 6
.amdhsa_kernel {NAME}_kernel
  .amdhsa_next_free_vgpr {NVGPR}
  .amdhsa_next_free_sgpr 102
  .amdhsa_accum_offset {NVGPR}
  .amdhsa_group_segment_fixed_size 0
  .amdhsa_kernarg_size 88
  .amdhsa_user_sgpr_count 2
  .amdhsa_user_sgpr_kernarg_segment_ptr 1
  .amdhsa_system_sgpr_workgroup_id_x 1
.end_amdhsa_kernel
'''
open(OUT, 'w').write(txt)
print('wrote', OUT, len(L), 'lines; barriers', NBAR_Y)
```

```python
import sys, struct

NAME = 'concat_heads__sliding_local_dilated__grouped_kv_mqa__prompt'
STAMPS = '--stamps' in sys.argv
STMODE = ([a[5:] for a in sys.argv if a.startswith('--st=')] + ['all'])[0]
XP = [a[4:] for a in sys.argv if a.startswith('--x=')]
args = [a for a in sys.argv[1:] if not a.startswith('--')]
OUT = args[0] if args else f'cdna_kernels/{NAME}.s'
def opt(name, default):
    for a in XP:
        if a.startswith(name): return type(default)(a[len(name):])
    return default

L = []
VMQ = []
NBAR = [0]
CAP = [None]
def e(s, tag=None):
    if CAP[0] is not None:
        CAP[0].append((s, tag)); return
    if tag is not None: VMQ.append(tag)
    if s == 's_barrier': NBAR[0] += 1
    L.append('    ' + s.strip())
    if PADON[0]:
        PADCNT[0] += 4 if (s.startswith('s_') and '0x' not in s) else 8
        if PADCNT[0] >= PADON[0] and not s.startswith('v_cmp') and 'abs' not in s:
            PADCNT[0] = 0; pad()
PADS = [0]
PADON = [False]
PADCNT = [0]
def lab(s): L.append(s + ':')
def pad():
    i = PADS[0]; PADS[0] += 1
    L.append(f'L_pad{i}:'); L.append(f'    s_cbranch_execz L_pad{i+1}')
def cm(s): L.append('    ; ' + s)
def vr(i, n): return f'v[{i}:{i+n-1}]'
def sr(i, n): return f's[{i}:{i+n-1}]'
def f32(x): return '0x%08x' % struct.unpack('<I', struct.pack('<f', x))[0]
def vmn(tag):
    idx = max(i for i, t in enumerate(VMQ) if t == tag)
    n = len(VMQ) - 1 - idx
    assert n <= 63
    return n
def E(*lines):
    for s in lines: e(s)

SLOT = 32768
R = 131072
HALO = 3 * SLOT
ONES = 3 * SLOT
SC = 2 * SLOT
WS_FHX = 0x60000
WS_HX = 0x600000
WS_FKV = 0x40000
WS_FOA = 0x48000
WS_FD = 0x44000
WS_OA = 0x100000
WS_OB = 0x300000
WS_STAMP = 0x500000
WS_SIZE = 0x800000
CSCALE = 0.25 * 1.4426950408889634
MOFF = float(opt('moff', 100))
VSC = 2.0 ** 40
ONEB = 0x53805380
SPIN = 200000
NT = '' if 'nont' in XP else ' nt'
WNT = ' nt' if 'wnt' in XP else ''

S_XA, S_WQKV, S_WOA, S_XB, S_WQ, S_WKV, S_WOB, S_OUT, S_WS = 8, 12, 16, 20, 24, 28, 32, 36, 40
S_DBG = 44
S_WV = 46
sP = 46
sW = 48
sRB, sHG = 49, 50
sT0, sT1, sT2, sT3 = 51, 52, 53, 54
sC = 55
sStepA, sStepB = 56, 57
sXo, sWo = 58, 59
sKVo = 60
sW4k, sW8k, sW2k = 61, 62, 63
sVM = 64
sOoff, sOutOff, sWoff, sSpin = 66, 67, 68, 69
sOslot, sOslot2 = 70, 71
sFB, sHG128, sCS, sQ = 72, 73, 74, 75
sRot, sK1 = 4, 5
sF0, sF1, sF2 = 3, 6, 7
sST = 76
sNon = 100
sStepH = 31
sXcc = 30

vL16, vW, vWA, vXA = 1, 2, 3, 4
vN, vH, vI = 5, 6, 7
vT0, vT1, vT2, vT3 = 8, 9, 10, 11
vP0, vP1, vXx, vG = 12, 13, 14, 15
vQacc = 16
vFr = 96
(vB0, vB1, vBW, vWl, vIdx, vPa, vQx, vW2, vTw0, vTw1, vTp, vTr0, vTo, vPa2, vZero, vOw,
 vF0, vF1, vF2, vF3, vWA2, vXA2) = range(232, 254)
vNon, vFl = 90, 92
NVGPR = 256

def stamp(i, *modes):
    if STAMPS and STMODE in modes: e(f's_memrealtime {sr(sST+2*i,2)}')
def cstamp(i):
    if STAMPS and STMODE != 'xc': e(f's_memtime {sr(sST+2*i,2)}')
def dma(voff, srd_, soff, off=0, fl='', tag='x'):
    o = f' offset:{off}' if off else ''
    e(f'buffer_load_dwordx4 v{voff}, {sr(srd_,4)}, {soff} offen{o}{fl} lds', tag)
def srd(reg, size): E(f's_mov_b32 s{reg+2}, {hex(size)}', f's_mov_b32 s{reg+3}, 0x20000')
def nonce_load(tag=None): e(f'global_load_dwordx2 {vr(vNon,2)}, v{vZero}, {sr(S_DBG,2)} sc1', tag)
def poll_issue(vaddr, soffs, regs, non=True):
    if non: nonce_load()
    for so, r in zip(soffs, regs):
        e(f'buffer_load_dwordx2 {vr(r,2)}, v{vaddr}, {sr(S_WS,4)}, {so} offen sc1')
def poll_check(tag, vaddr, soffs, regs, issued, xcc=False):
    e(f's_mov_b32 s{sSpin}, {SPIN}')
    if issued is not None: E(f's_waitcnt vmcnt({issued})', f's_branch L_chk_{tag}')
    lab(f'L_rep_{tag}')
    poll_issue(vaddr, soffs, regs)
    e('s_waitcnt vmcnt(0)')
    lab(f'L_chk_{tag}')
    e(f'v_cmp_eq_u32 vcc, 0, v{vNon}')
    if xcc: E(f'v_mov_b32 v{vFl+2}, v{vFl}', f'v_and_b32 v{vFl}, 0xffffffe1, v{vFl}')
    for r in regs:
        E(f'v_cmp_ne_u64 {sr(sP,2)}, {vr(vNon,2)}, {vr(r,2)}', 's_nop 1', f's_or_b64 vcc, vcc, {sr(sP,2)}')
    E(f's_cbranch_scc0 L_nochk_{tag}', f's_sub_u32 s{sSpin}, s{sSpin}, 1', f's_cbranch_scc0 L_rep_{tag}')
    lab(f'L_nochk_{tag}')
def flag_store(tag, soff, first_wait='s_waitcnt vmcnt(0)', xcc=False, soff2=None):
    e(f's_mov_b32 s{sSpin}, {SPIN}')
    e(first_wait)
    lab(f'L_fw_{tag}')
    E(f'v_cmp_eq_u32 vcc, 0, v{vNon}', f's_cbranch_vccz L_fs_{tag}')
    nonce_load()
    E('s_waitcnt vmcnt(0)', f's_sub_u32 s{sSpin}, s{sSpin}, 1', f's_cbranch_scc0 L_fw_{tag}')
    lab(f'L_fs_{tag}')
    if xcc: e(f'v_or_b32 v{vNon}, s{sXcc}, v{vNon}')
    E('s_mov_b64 exec, 1', f'buffer_store_dwordx2 {vr(vNon,2)}, v{vZero}, {sr(S_WS,4)}, {soff} offen sc1')
    if soff2: e(f'buffer_store_dwordx2 {vr(vNon,2)}, v{vZero}, {sr(S_WS,4)}, {soff2} offen sc1')
    e('s_mov_b64 exec, -1')
def maxtree(rs, t0, t1):
    e(f'v_max3_f32 v{t0}, v{rs[0]}, v{rs[1]}, v{rs[2]}')
    e(f'v_max3_f32 v{t1}, v{rs[3]}, v{rs[4]}, v{rs[5]}')
    for k in range(6, len(rs), 4):
        e(f'v_max3_f32 v{t0}, v{t0}, v{rs[k]}, v{rs[k+1]}')
        if k + 3 < len(rs): e(f'v_max3_f32 v{t1}, v{t1}, v{rs[k+2]}, v{rs[k+3]}')
    e(f'v_max_f32 v{t0}, v{t0}, v{t1}')
    e(f'v_mov_b32 v{t1}, v{t0}')
def lane_setup():
    E(f'v_and_b32 v{vN}, 31, v0', f'v_lshrrev_b32 v{vH}, 5, v0', f'v_and_b32 v{vI}, 15, v0',
      f'v_lshrrev_b32 v{vWl}, 2, v{vI}', f'v_lshl_add_u32 v{vWl}, v{vH}, 3, v{vWl}', f'v_lshlrev_b32 v{vWl}, 7, v{vWl}',
      f'v_and_b32 v{vF0}, 8, v{vI}', f'v_lshl_add_u32 v{vWl}, v{vF0}, 3, v{vWl}', f'v_and_b32 v{vF0}, 16, v0',
      f'v_lshl_add_u32 v{vWl}, v{vF0}, 1, v{vWl}', f'v_and_b32 v{vF0}, 3, v0', f'v_lshl_add_u32 v{vWl}, v{vF0}, 3, v{vWl}',
      f's_lshl_b32 s{sW4k}, s{sQ}, 12', f's_add_u32 s{sF0}, s{sW4k}, {R}', f'v_add_u32 v{vQx}, s{sF0}, v{vL16}',
      f'v_mov_b32 v{vIdx}, 0xdddddddd', f's_mov_b32 s{sFB}, 0')
oOf, oW, oAcc = 16, 96, 160
def tail_setup():
    E(f's_mov_b32 s{S_OUT+2}, 0x400000', f's_mov_b32 s{S_OUT+3}, 0x20000',
      f's_lshr_b32 s{sF2}, s{sW}, 2', f's_lshl_b32 s{sF1}, s{sW}, 14',
      f'v_lshlrev_b32 v{vT0}, 9, v{vH}', f'v_sub_u32 v{vTw0}, v{vWl}, v{vT0}', f'v_add_u32 v{vTw0}, s{sF1}, v{vTw0}', f'v_xor_b32 v{vTw1}, 64, v{vTw0}',
      f'v_xor_b32 v{vT0}, v{vH}, v{vI}', f'v_lshlrev_b32 v{vT0}, 4, v{vT0}', f'v_lshl_add_u32 v{vT0}, v{vN}, 8, v{vT0}', f'v_add_u32 v{vTp}, s{sF1}, v{vT0}',
      f'v_lshrrev_b32 v{vT0}, 3, v0', f's_lshl_b32 s{sF1}, s{sQ}, 3', f'v_add_u32 v{vT0}, s{sF1}, v{vT0}', f'v_and_b32 v{vT1}, 7, v0', f'v_lshlrev_b32 v{vT2}, 1, v{vT1}',
      f'v_and_b32 v{vT3}, 15, v{vT0}', f'v_xor_b32 v{vT2}, v{vT2}, v{vT3}', f'v_lshlrev_b32 v{vT2}, 4, v{vT2}', f'v_lshl_add_u32 v{vT2}, v{vT0}, 8, v{vT2}',
      f's_lshl_b32 s{sF1}, s{sF2}, 16', f'v_add_u32 v{vTr0}, s{sF1}, v{vT2}',
      f'v_lshlrev_b32 v{vT1}, 4, v{vT1}', f'v_lshl_add_u32 v{vTo}, v{vT0}, 11, v{vT1}',
      f's_lshl_b32 s{sOutOff}, s{sRB}, 17', f's_lshl_b32 s{sF1}, s{sF2}, 10', f's_add_u32 s{sOutOff}, s{sOutOff}, s{sF1}', f's_add_u32 s{sOutOff}, s{sOutOff}, s{sHG128}',
      f's_lshl_b32 s{sOoff}, s{sRB}, 16', f's_lshl_b32 s{sF1}, s{sQ}, 13', f's_add_u32 s{sOoff}, s{sOoff}, s{sF1}',
      f's_lshl_b32 s{sF1}, s{sF2}, 21', f's_add_u32 s{sOoff}, s{sOoff}, s{sF1}', f's_add_u32 s{sOoff}, s{sOoff}, {hex(WS_OA)}')
assert WS_OB - WS_OA == 1 << 21
def w_reads():
    for s in range(8):
        x = oW + 8 * s
        E(f'ds_read_b64_tr_b16 {vr(x,2)}, v{vTw0} offset:{s*2048}', f'ds_read_b64_tr_b16 {vr(x+2,2)}, v{vTw0} offset:{s*2048+1024}',
          f'ds_read_b64_tr_b16 {vr(x+4,2)}, v{vTw1} offset:{s*2048}', f'ds_read_b64_tr_b16 {vr(x+6,2)}, v{vTw1} offset:{s*2048+1024}')
    for q in range(1, 8): e(f'v_xor_b32 v{80+q}, {(2*q)<<4}, v{vTp}')
    e(f'v_xor_b32 v88, 16, v{vTr0}')
def o_loads(tag=None, gs=(0, 1, 2, 3)):
    if 0 in gs: E(f's_add_u32 s{sT1}, s{sOoff}, 4096', f's_add_u32 s{sT2}, s{sOoff}, 32768', f's_add_u32 s{sT3}, s{sOoff}, {32768+4096}')
    for g, so in enumerate((sOoff, sT1, sT2, sT3)):
        if g not in gs: continue
        for j in range(4):
            o = f' offset:{j*1024}' if j else ''
            e(f'buffer_load_dwordx4 {vr(oOf+16*g+4*j,4)}, v{vL16}, {sr(S_WS,4)}, s{so} offen{o} sc1', tag)

lab(f'{NAME}_kernel')
if STAMPS:
    for i in range(12): e(f's_mov_b32 s{sST+2*i}, 0')
stamp(0, 'all', 'head', 'tail', 'x', 'i0', 'i1', 'j0', 'j1', 'd')
for reg, off in ((S_XB,24),(S_WKV,40),(S_WV,48),(S_WQ,32),(S_DBG,72),(S_WS,80),(S_XA,0),(S_WQKV,8),(S_WOA,16),(S_WOB,56),(S_OUT,64)):
    e(f's_load_dwordx2 {sr(reg,2)}, s[0:1], {off}')
e(f's_memrealtime {sr(sNon,2)}')
E('s_cmp_ge_u32 s2, 256', 's_cbranch_scc1 L_end',
  f'v_lshrrev_b32 v{vT0}, 6, v0', 'v_and_b32 v0, 63, v0', f'v_readfirstlane_b32 s{sW}, v{vT0}',
  f's_and_b32 s{sT0}, s2, 7', f's_bfe_u32 s{sRot}, s2, 0x20003', f's_lshl_b32 s{sRB}, s{sT0}, 2',
  f's_add_u32 s{sRB}, s{sRB}, s{sRot}', f's_lshr_b32 s{sHG}, s2, 5',
  f'v_lshlrev_b32 v{vL16}, 4, v0', f'v_lshrrev_b32 v{vG}, 4, v0', f'v_lshrrev_b32 v{vT1}, 3, v0', f'v_and_b32 v{vT2}, 7, v0',
  f'v_xor_b32 v{vT3}, v{vT2}, v{vG}', f'v_lshlrev_b32 v{vT3}, 4, v{vT3}', f'v_lshl_add_u32 v{vP0}, v{vT1}, 10, v{vT3}',
  f'v_xor_b32 v{vP1}, 64, v{vP0}', f'v_add_u32 v{vP1}, {8192-1024}, v{vP1}', f'v_mov_b32 v{vZero}, 0',
  f's_xor_b32 s{sW}, s{sW}, 7', f's_lshl_b32 s{sRot}, s{sRot}, 1', f's_lshl_b32 s{sHG128}, s{sHG}, 7', f's_and_b32 s{sQ}, s{sW}, 3')
if opt('hgx', 0): E(f's_xor_b32 s{sHG}, s{sHG}, {opt("hgx", 0)}', f's_lshl_b32 s{sHG128}, s{sHG}, 7')
srd(S_WS, WS_SIZE)
E(f's_cmp_lt_u32 s{sW}, 4', 's_cbranch_scc1 L_X')

cm('================ Y program (waves 4-7) ================')
aSa, aSb, aCa, aCb, aOa, aOb = 96, 112, 128, 144, 160, 176
aK, aV = 192, 56
vQa, vQb = 208, 212
vKa, vVa = 216, 217
srd(S_XB, 0x200000); srd(S_WKV, 0x4000)
vD0, vD1 = 218, 219
E(f's_lshr_b32 s{sT1}, s{sHG}, 1', f's_add_u32 s{sT1}, s{sT1}, s{sW}', f's_add_u32 s{sT1}, s{sT1}, 1', f's_and_b32 s{sT1}, s{sT1}, 3',
  f's_lshl_b32 s{sT2}, s{sT1}, 11',
  f's_lshl_b32 s{sT3}, s{sRB}, 2', f's_add_u32 s{sT3}, s{sT3}, s{sT1}', f's_lshl_b32 s{sT3}, s{sT3}, 14',
  f'v_add_u32 v{vD0}, s{sT3}, v{vP0}', f'v_add_u32 v{vD1}, s{sT3}, v{vP1}',
  f's_lshl_b32 s{sXo}, s{sRot}, 7',
  f's_cmp_lg_u32 s{sW}, 7', 's_cbranch_scc1 L_Yset')
def x_sub(s, tag):
    E(f's_add_u32 m0, s{sT2}, {s*16384}', f's_and_b32 s{sXo}, s{sXo}, 1023')
    dma(vD0, S_XB, f's{sXo}', 0, NT, tag); dma(vD1, S_XB, f's{sXo}', 1024, NT, tag)
E(f's_bitcmp1_b32 s{sHG}, 0', 's_waitcnt lgkmcnt(0)',
  f's_cselect_b32 s{S_WKV}, s{S_WV}, s{S_WKV}', f's_cselect_b32 s{S_WKV+1}, s{S_WV+1}, s{S_WKV+1}')
for s_ in range(8):
    x_sub(s_, None)
    E(f's_mov_b32 m0, {R+s_*2048}', f's_lshl_b32 s{sWo}, s{sXo}, 4')
    dma(vL16, S_WKV, f's{sWo}', 0, '', None); dma(vL16, S_WKV, f's{sWo}', 1024, '', None)
    if s_ < 7: e(f's_add_u32 s{sXo}, s{sXo}, 128')
e('s_barrier'); NBAR[0] -= 1
stamp(1, 'head')
lab('L_Yset')
lane_setup()
tail_setup()
E(f's_mov_b32 s{sVM}, 0xffff', f's_mov_b32 s{sVM+1}, 0xffff',
  f's_and_b32 s{sT0}, s{sRB}, 28', f's_add_u32 s{sT0}, s{sT0}, s{sQ}', f's_lshl_b32 s{sKVo}, s{sT0}, 12',
  f's_lshl_b32 s{sT0}, s{sT0}, 9', f's_add_u32 s{sT0}, s{sT0}, {hex(WS_FKV)}',
  f'v_and_b32 v{vPa}, 7, v0', f'v_lshlrev_b32 v{vPa}, 6, v{vPa}', f'v_add_u32 v{vPa}, s{sT0}, v{vPa}',
  f's_and_b32 s{sT0}, s{sW}, 1', f's_lshl_b32 s{sT1}, s{sRB}, 1', f's_add_u32 s{sT0}, s{sT0}, s{sT1}', f's_lshl_b32 s{sT0}, s{sT0}, 5',
  f's_lshl_b32 s{sT1}, s{sHG}, 2', f's_add_u32 s{sT0}, s{sT0}, s{sT1}', f's_and_b32 s{sT1}, s{sW}, 2', f's_add_u32 s{sT0}, s{sT0}, s{sT1}',
  f's_lshl_b32 s{sT0}, s{sT0}, 10', f's_add_u32 s{sOslot}, s{sT0}, {hex(WS_OB)}',
  f'v_add_u32 v{vKa}, {R+16384}, v{vL16}', f'v_lshlrev_b32 v{vVa}, 4, v{vI}', f'v_lshl_add_u32 v{vVa}, v{vH}, 8, v{vVa}', f'v_add_u32 v{vVa}, {R+16384}, v{vVa}',
  f'v_and_b32 v{vT1}, 27, v0', f'v_cmp_eq_u32 vcc, 16, v{vT1}', f'v_mov_b32 v{vT1}, {hex(ONEB)}', f's_cmp_eq_u32 s{sW}, 7', f'v_cndmask_b32 v{aV}, 0, v{vT1}, vcc',
  's_cbranch_scc1 L_Y7', 's_waitcnt lgkmcnt(0)')
if opt('cpf', 1):
    e('s_getpc_b64 s[0:1]')
    lab('L_pc')
    E(f's_sub_u32 s0, s0, L_pc-{NAME}_kernel', 's_subb_u32 s1, s1, 0',
      f's_lshr_b32 s{sT0}, s2, 3', f's_mul_i32 s{sT0}, s{sT0}, 3', f's_add_u32 s{sT0}, s{sT0}, s{sQ}', f's_lshl_b32 s{sT0}, s{sT0}, 8',
      f'v_lshlrev_b32 v{vF0}, 7, v0', f'v_add_u32 v{vF0}, s{sT0}, v{vF0}', f'v_min_u32 v{vF0}, L_code_end-{NAME}_kernel-4, v{vF0}', 's_mov_b64 exec, 3',
      f'global_load_dword v{vF1}, v{vF0}, s[0:1]', 's_mov_b64 exec, -1')
e('s_barrier')
for s_ in range(8):
    x_sub(s_, 'xb')
    if s_ < 7: e(f's_add_u32 s{sXo}, s{sXo}, 128')
stamp(1, 'head')
e('s_branch L_Yj')
lab('L_Y7')
E(f'v_lshrrev_b32 v{vT1}, 1, v{vI}', f'v_xor_b32 v{vT1}, v{vT1}, v{vG}', f'v_lshlrev_b32 v{vT1}, 4, v{vT1}', f'v_lshl_add_u32 v{vT1}, v{vI}, 7, v{vT1}',
  f'v_add_u32 v{vT0}, s{sT2}, v{vT1}', f'v_xor_b32 v{vT1}, 64, v{vT0}', f'v_add_u32 v{vT2}, 65536, v{vT0}', f'v_add_u32 v{vT3}, 65536, v{vT1}',
  f'v_lshlrev_b32 v{vF0}, 8, v{vG}', f'v_lshl_add_u32 v{vF0}, v{vI}, 3, v{vF0}', f'v_add_u32 v{vF0}, {R}, v{vF0}',
  f'v_and_b32 v{vF1}, 1, v{vG}', f'v_lshrrev_b32 v{vF2}, 1, v{vG}',
  f's_lshr_b32 s{sT0}, s{sHG}, 2', f's_lshl_b32 s{sC}, s{sRB}, 1', f's_add_u32 s{sT0}, s{sT0}, s{sC}', f's_lshl_b32 s{sT0}, s{sT0}, 11',
  f's_bfe_u32 s{sC}, s{sHG}, 0x10001',
  f's_lshl_b32 s{sT1}, s{sRB}, 3', f's_add_u32 s{sT1}, s{sT1}, s{sHG}', f's_lshl_b32 s{sOslot2}, s{sT1}, 3', f's_add_u32 s{sOslot2}, s{sOslot2}, {hex(WS_FD)}', f's_lshl_b32 s{sT1}, s{sT1}, 6', f's_add_u32 s{sK1}, s{sT1}, {hex(WS_FKV)}')
kd = 16
KF = 88
KF = 96 - 8
def kfr(u): return (96 + 8 * u) if u < 15 else 24
def kv_reads(s):
    a0, a1 = (vT0, vT1) if s < 4 else (vT2, vT3)
    o = (s & 3) * 16384
    x, y = kfr(2*s), kfr(2*s+1)
    E(f's_waitcnt vmcnt({28-4*s})',
      f'ds_read_b128 {vr(x,4)}, v{a0} offset:{o}', f'ds_read_b64_tr_b16 {vr(x+4,2)}, v{vF0} offset:{s*2048}', f'ds_read_b64_tr_b16 {vr(x+6,2)}, v{vF0} offset:{s*2048+128}',
      f'ds_read_b128 {vr(y,4)}, v{a1} offset:{o}', f'ds_read_b64_tr_b16 {vr(y+4,2)}, v{vF0} offset:{s*2048+1024}', f'ds_read_b64_tr_b16 {vr(y+6,2)}, v{vF0} offset:{s*2048+1152}')
for s_ in range(8): kv_reads(s_)
nonce_load()
stamp(2, 'head')
E(f's_bitcmp1_b32 s{sHG}, 0', f's_cselect_b32 s{sWo}, {f32(VSC)}, 1.0', 's_cbranch_scc1 L_kv_v',
  f'v_lshlrev_b32 v{vF1}, 9, v{vF1}', f'v_lshl_add_u32 v{vF1}, v{vF2}, 3, v{vF1}', f's_lshl_b32 s{sC}, s{sC}, 8')
def kv_chain(swap):
    for u in range(16):
        x = kfr(u)
        if u == 0: e('s_waitcnt lgkmcnt(12)')
        if u == 12: e('s_waitcnt lgkmcnt(0)')
        a, b = (vr(x+4,4), vr(x,4))
        if swap: a, b = b, a
        d = kd + 4 * (u & 1)
        e(f'v_mfma_f32_16x16x32_bf16 {vr(d,4)}, {a}, {b}, {"0" if u < 2 else vr(d,4)}')
kv_chain(False)
e('s_branch L_kv_j')
lab('L_kv_v')
E(f'v_lshlrev_b32 v{vF1}, 3, v{vF1}', f'v_lshl_add_u32 v{vF1}, v{vF2}, 8, v{vF1}', f's_lshl_b32 s{sC}, s{sC}, 9', f's_add_u32 s{sC}, s{sC}, 1024')
kv_chain(True)
lab('L_kv_j')
E(f'v_lshl_add_u32 v{vF1}, v{vI}, 4, v{vF1}', f's_add_u32 s{sT0}, s{sT0}, s{sC}', 's_nop 5',
  f'v_pk_add_f32 {vr(kd,2)}, {vr(kd,2)}, {vr(kd+4,2)}', f'v_pk_add_f32 {vr(kd+2,2)}, {vr(kd+2,2)}, {vr(kd+6,2)}',
  f'v_mul_f32 v{kd}, s{sWo}, v{kd}', f'v_mul_f32 v{kd+1}, s{sWo}, v{kd+1}', f'v_mul_f32 v{kd+2}, s{sWo}, v{kd+2}', f'v_mul_f32 v{kd+3}, s{sWo}, v{kd+3}',
  f'v_cvt_pk_bf16_f32 v{vF2}, v{kd}, v{kd+1}', f'v_cvt_pk_bf16_f32 v{vF3}, v{kd+2}, v{kd+3}',
  f'buffer_store_dwordx2 {vr(vF2,2)}, v{vF1}, {sr(S_WS,4)}, s{sT0} offen sc1')
stamp(3, 'head')
lab('L_Yj')
if opt('ytc', 0):
    E(f's_bitcmp1_b32 s{sW}, 1', f's_cselect_b32 s{S_WOA}, s{S_WOB}, s{S_WOA}', f's_cselect_b32 s{S_WOA+1}, s{S_WOB+1}, s{S_WOA+1}',
      f's_mov_b32 s{S_WOA+2}, 0x80000', f's_mov_b32 s{S_WOA+3}, 0x20000',
      f's_lshr_b32 s{sT0}, s2, 3', f's_lshl_b32 s{sT0}, s{sT0}, 1', f's_and_b32 s{sT1}, s{sW}, 1', f's_add_u32 s{sT0}, s{sT0}, s{sT1}', f's_lshl_b32 s{sWoff}, s{sT0}, 13',
      f'v_lshlrev_b32 v{vD0}, 7, v0')
for i in range(1, 32): e(f'v_mov_b32 v{aV+i}, v{aV}')
for j in range(32): e(f'v_mov_b32 v{aOa+j}, 0')
E('s_waitcnt vmcnt(0)', f's_cmp_lg_u32 s{sW}, 7', 's_cbranch_scc1 L_flag_done')
flag_store('kv', f's{sK1}')
stamp(4, 'head')
lab('L_flag_done')
e('s_barrier')
stamp(5, 'head'); stamp(1, 'all', 'x')
EA = opt('ea', 20)
if EA: e('s_barrier')
if opt('psl', 0): e(f's_sleep {opt("psl", 0)}')
poll_check('kv', vPa, ['0'], [vFl], None)
stamp(6, 'head')
E(f's_add_u32 m0, s{sW4k}, {R+16384}', f's_mov_b32 s{sC}, 0')
for j in range(4): dma(vL16, S_WS, f's{sKVo}', 1024*j, ' sc1', None)
E(f's_setprio {opt("yp", 1)}', f's_cmp_lg_u32 s{sW}, 7', 's_waitcnt vmcnt(0)', 's_cbranch_scc1 L_nodense', 's_mov_b64 exec, 1',
  f'buffer_store_dwordx2 {vr(vNon,2)}, v{vZero}, {sr(S_WS,4)}, s{sOslot2} offen sc1', 's_mov_b64 exec, -1')
lab('L_nodense')
stamp(7, 'head'); stamp(2, 'all', 'x')
e('s_barrier')
stamp(8, 'head'); stamp(3, 'all', 'x'); stamp(1, 'tail')
cstamp(10)
E(f'ds_read_b128 {vr(vQa,4)}, v{vQx}', f'ds_read_b128 {vr(vQb,4)}, v{vQx} offset:1024',
  f'ds_read_b128 {vr(aK,4)}, v{vKa}', f'ds_read_b128 {vr(aK+4,4)}, v{vKa} offset:2048', f's_mov_b64 exec, {sr(sVM,2)}')
for j in range(4): e(f'ds_read_b128 {vr(aV+4*j,4)}, v{vVa} offset:{(j>>1)*2048+1024+(j&1)*512}')
E('s_mov_b64 exec, -1', 's_waitcnt lgkmcnt(5)',
  f'v_mfma_f32_32x32x16_bf16 {vr(aSa,16)}, {vr(aK,4)}, {vr(vQa,4)}, 0',
  f'v_mfma_f32_32x32x16_bf16 {vr(aSb,16)}, {vr(aK,4)}, {vr(vQb,4)}, 0', 's_nop 10')
maxtree([aSa+i for i in range(16)], vT0, vT1)
maxtree([aSb+i for i in range(16)], vT2, vT3)
E(f'v_permlane32_swap_b32 v{vT0}, v{vT1}', f'v_max_f32 v{vT0}, v{vT0}, v{vT1}', f'v_permlane32_swap_b32 v{vT2}, v{vT3}',
  f'v_sub_f32 v{aCa}, {f32(-MOFF)}, v{vT0}', f'v_max_f32 v{vT2}, v{vT2}, v{vT3}')
for i in range(1, 16): e(f'v_mov_b32 v{aCa+i}, v{aCa}')
E(f'v_sub_f32 v{aCb}, {f32(-MOFF)}, v{vT2}', f'v_mov_b32 v{aCb+1}, v{aCb}',
  f'v_mfma_f32_32x32x16_bf16 {vr(aSa,16)}, {vr(aK,4)}, {vr(vQa,4)}, {vr(aCa,16)}')
for i in range(2, 16): e(f'v_mov_b32 v{aCb+i}, v{aCb}')
if opt('ytc', 0): e(f'buffer_load_dword v{vD1}, v{vD0}, {sr(S_WOA,4)}, s{sWoff} offen')
E('s_waitcnt lgkmcnt(0)', f'v_exp_f32 v{aSa}, v{aSa}', f'v_exp_f32 v{aSa+1}, v{aSa+1}', 's_branch L_att_entry')

def dtile(par, ld_off, entry=False):
    K = aK + 8 * par; Kn = aK + 8 * (par ^ 1)
    V = aV + 16 * par; Vn = aV + 16 * (par ^ 1)
    def ex(S, a, b):
        for i in range(a, b): e(f'v_exp_f32 v{S+i}, v{S+i}')
    def pv(O, Vr, P): e(f'v_smfmac_f32_32x32x32_bf16 {vr(O,16)}, {vr(Vr,4)}, {vr(P,8)}, v{vIdx}')
    def qk(S, Kr, Q, C): e(f'v_mfma_f32_32x32x16_bf16 {vr(S,16)}, {vr(Kr,4)}, {vr(Q,4)}, {vr(C,16)}')
    ex(aSa, 0, 2); pv(aOb, Vn+12, aSb+8)
    if entry: lab('L_att_entry')
    e(f's_mov_b64 exec, {sr(sVM,2)}')
    for j in range(4): e(f'ds_read_b128 {vr(Vn+4*j,4)}, v{vVa} offset:{ld_off+(j>>1)*2048+1024+(j&1)*512}')
    e('s_mov_b64 exec, -1')
    ex(aSa, 2, 5); qk(aSb, K, vQb, aCb)
    E(f'ds_read_b128 {vr(Kn,4)}, v{vKa} offset:{ld_off}', f'ds_read_b128 {vr(Kn+4,4)}, v{vKa} offset:{ld_off+2048}')
    ex(aSa, 5, 10); pv(aOa, V, aSa); ex(aSa, 10, 16)
    ex(aSb, 0, 2); pv(aOa, V+4, aSa+8); ex(aSb, 2, 5); qk(aSa, K+4, vQa, aCa); ex(aSb, 5, 10); pv(aOb, V, aSb); ex(aSb, 10, 16)
    ex(aSa, 0, 2); pv(aOb, V+4, aSb+8); ex(aSa, 2, 5); qk(aSb, K+4, vQb, aCb); ex(aSa, 5, 10); pv(aOa, V+8, aSa); ex(aSa, 10, 16)
    ex(aSb, 0, 2); pv(aOa, V+12, aSa+8); e('s_waitcnt lgkmcnt(0)'); ex(aSb, 2, 5); qk(aSa, Kn, vQa, aCa); ex(aSb, 5, 10); pv(aOb, V+8, aSb); ex(aSb, 10, 16)

e('.p2align 6')
lab('L_att_top')
E(f'v_xor_b32 v{vKa}, 16384, v{vKa}', f'v_xor_b32 v{vVa}, 16384, v{vVa}', f's_cmp_eq_u32 s{sC}, 8', 's_barrier')
dtile(1, 0)
e('s_cbranch_scc1 L_att_done')
dtile(0, 4096, entry=True)
e('s_barrier')
dtile(1, 8192)
dtile(0, 12288)
E(f's_add_u32 s{sC}, s{sC}, 1', 's_branch L_att_top')
NBAR_Y = NBAR[0] - 2 + 16
lab('L_att_done')
E(f'ds_read_b32 v{vFl}, v{vKa}', f'v_smfmac_f32_32x32x32_bf16 {vr(aOb,16)}, {vr(aV+16+12,4)}, {vr(aSb+8,8)}, v{vIdx}')
stamp(4, 'all'); stamp(2, 'tail')
cstamp(11)
def chk(O, t):
    E(f'v_maximum3_f32 v{t}, abs(v{O}), abs(v{O+1}), abs(v{O+2})', f'v_maximum3_f32 v{t}, v{t}, abs(v{O+3}), abs(v{O+4})',
      f'v_maximum3_f32 v{t}, v{t}, abs(v{O+5}), abs(v{O+6})', f'v_maximum3_f32 v{t}, v{t}, abs(v{O+7}), v{O+8}')
def fin(O, t, d):
    for i in range(0, 8, 2): e(f'v_pk_mul_f32 {vr(d+4+i,2)}, {vr(O+i,2)}, {vr(t,2)} op_sel_hi:[1,0]')
    for i in range(4): e(f'v_cvt_pk_bf16_f32 v{d+i}, v{d+4+2*i}, v{d+4+2*i+1}')
lab('L_att_fin')
PADON[0] = opt('pad', 0); PADCNT[0] = 1000
E(f'v_rcp_f32 v{vT0}, v{aOa+8}', f's_mov_b32 s{sT0}, 0x7e000000')
chk(aOa, vT1)
fin(aOa, vT0, 16)
E(f'v_rcp_f32 v{vT2}, v{aOb+8}', 's_waitcnt lgkmcnt(0)', f'v_readfirstlane_b32 s{sT1}, v{vFl}')
chk(aOb, vT3)
fin(aOb, vT2, 28)
E(f'v_maximum3_f32 v{vT1}, v{vT1}, v{vT3}, v{vT3}', f'v_cmp_nle_f32 vcc, v{vT1}, s{sT0}'.replace('vcc, v', 'vcc, v'), f's_cmp_eq_u32 s{sT1}, 1', 's_cbranch_vccnz L_fallback')
lab('L_att_ok')
E('s_cbranch_scc0 L_st_slow',
  f'buffer_store_dwordx4 {vr(16,4)}, v{vL16}, {sr(S_WS,4)}, s{sOslot} offen',
  f'buffer_store_dwordx4 {vr(28,4)}, v{vL16}, {sr(S_WS,4)}, s{sOslot} offen offset:1024')
lab('L_st_j')
stamp(3, 'tail')
w_reads()
e(f's_mov_b32 s{sSpin}, {SPIN//10}')
if opt('tslp', 0): e(f's_sleep {opt("tslp", 0)}')
stamp(4, 'tail')
NPRE = opt('npre', 2)
o_loads(None, range(NPRE))
e(f's_mov_b32 s{sC}, 2')

cm('================ tail: out projections (X: branch A, Y: branch B) ================')
lab('L_tail_go')
e('s_waitcnt lgkmcnt(0)')
for g in range(4):
    rt = g >> 1
    b_ = oOf + 16 * g
    e(f's_waitcnt vmcnt({4*(min(4, NPRE+g)-g-1)})')
    lab(f'L_tg{g}')
    E(f'v_max3_u32 v{vT0}, v{b_}, v{b_+1}, v{b_+2}', f'v_max3_u32 v{vT1}, v{b_+3}, v{b_+4}, v{b_+5}')
    for k in range(6, 16, 2):
        t = vT0 if (k >> 1) & 1 else vT1
        e(f'v_max3_u32 v{t}, v{t}, v{b_+k}, v{b_+k+1}')
    E(f'v_max_u32 v{vT0}, v{vT0}, v{vT1}', f'v_cmp_eq_u32 vcc, -1, v{vT0}', f's_cbranch_vccnz L_tr{g}')
    lab(f'L_tk{g}')
    if g == 0: stamp(5, 'tail', 'all')
    if NPRE + g < 4: o_loads(None, [NPRE + g])
    if g == 2: e('s_barrier')
    order = [(s_, ct) for s_ in range(4*(g&1), 4*(g&1)+4) for ct in range(2)]
    if g == 3: order = sorted(order, key=lambda z: z[1])
    for m_, (s_, ct) in enumerate(order):
        a_ = oAcc + 32 * rt + 16 * ct
        e(f'v_mfma_f32_32x32x16_bf16 {vr(a_,16)}, {vr(oW+8*s_+4*ct,4)}, {vr(oOf+32*rt+4*s_,4)}, {"0" if s_ == 0 else vr(a_,16)}')
        if g == 2:
            e(f'ds_write_b128 v{80+m_ if m_ else vTp}, {vr(oAcc+4*m_,4)}')
e('s_nop 7')
PADON[0] = False
lab('L_tail_wr')
stamp(6, 'tail')
for q in range(8):
    e(f'ds_write_b128 v{80+q if q else vTp}, {vr(oAcc+32+4*q,4)} offset:8192')
E('s_waitcnt lgkmcnt(0)', 's_barrier')
stamp(7, 'tail')
lab('L_red')
tR = 96
for kq in range(4):
    E(f'ds_read_b128 {vr(tR+8*kq,4)}, v{vTr0} offset:{kq*16384}', f'ds_read_b128 {vr(tR+8*kq+4,4)}, v88 offset:{kq*16384}')
e('s_waitcnt lgkmcnt(4)')
for i in range(0, 8, 2): e(f'v_pk_add_f32 {vr(tR+i,2)}, {vr(tR+i,2)}, {vr(tR+8+i,2)}')
e('s_waitcnt lgkmcnt(0)')
for a_, b_ in ((16, 24), (0, 16)):
    for i in range(0, 8, 2): e(f'v_pk_add_f32 {vr(tR+a_+i,2)}, {vr(tR+a_+i,2)}, {vr(tR+b_+i,2)}')
for i in range(4): e(f'v_cvt_pk_bf16_f32 v{16+i}, v{tR+2*i}, v{tR+2*i+1}')
e(f'buffer_store_dwordx4 {vr(16,4)}, v{vTo}, {sr(S_OUT,4)}, s{sOutOff} offen{opt("of", "_nt").replace("_", " ")}')
E(f's_cmp_eq_u32 s{sC}, 2', 's_cbranch_scc1 L_fin',
  f's_add_u32 s{sC}, s{sC}, 1', f's_cmp_eq_u32 s{sC}, 1', f's_cselect_b32 s{sT0}, 1, 8', f's_cselect_b32 s{sT1}, 64, 1', f's_lshl_b32 s{sT1}, s{sT1}, 10', f's_lshl_b32 s{sT0}, s{sT0}, 13',
  f'v_add_u32 v{vTr0}, s{sT0}, v{vTr0}', f'v_add_u32 v88, s{sT0}, v88', f's_add_u32 s{sOutOff}, s{sOutOff}, s{sT1}',
  f's_cmp_eq_u32 s{sC}, 1', 's_cbranch_scc1 L_red', 's_barrier', 's_branch L_red')
lab('L_fin')
if STAMPS:
    stamp(8, 'tail')
    e('s_waitcnt vmcnt(0)')
    stamp(9, 'tail', 'head'); stamp(6, 'all')
    E('s_waitcnt lgkmcnt(0)', 's_nop 1')
    ECHO = [a[7:] for a in sys.argv if a.startswith('--echo=')]
    if ECHO:
        a_, b_, mul = map(int, ECHO[0].split(','))
        E(f's_sub_u32 s{sT0}, s{sST+2*b_}, s{sST+2*a_}', f's_mul_i32 s{sT0}, s{sT0}, {mul}')
        if opt('ehg', -1) >= 0:
            E(f's_cmp_eq_u32 s{sHG}, {opt("ehg", -1)}', f's_cselect_b32 s{sT0}, s{sT0}, 0', f's_cmp_ge_u32 s{sW}, 4', f's_cselect_b32 s{sT0}, s{sT0}, 0')
        lab('L_echo')
        E(f's_memrealtime {sr(4,2)}', 's_waitcnt lgkmcnt(0)', f's_sub_u32 s{sT1}, s4, s{sST+12}', f's_cmp_lt_u32 s{sT1}, s{sT0}', 's_cbranch_scc1 L_echo')
    for i in range(12): e(f'v_mov_b32 v{16+i}, s{sST+2*i}')
    E(f's_getreg_b32 s{sT0}, hwreg(HW_REG_XCC_ID)', f'v_mov_b32 v28, s{sT0}', f'v_mov_b32 v29, s{sSpin}', f'v_mov_b32 v30, s{sFB}', 'v_mov_b32 v31, 0',
      f's_lshl_b32 s{sT0}, s2, 3', f's_add_u32 s{sT0}, s{sT0}, s{sW}', f's_lshl_b32 s{sT0}, s{sT0}, 6', f's_add_u32 s{sT0}, s{sT0}, {hex(WS_STAMP)}',
      'v_mov_b32 v0, 0', 's_mov_b64 exec, 1')
    for i in range(4):
        e(f'buffer_store_dwordx4 {vr(16+4*i,4)}, v0, {sr(S_WS,4)}, s{sT0} offen offset:{16*i}')
lab('L_end')
e('s_endpgm')

cm('================ X program (waves 0-3) ================')
VMQ[:] = []; NBAR[0] = 0
xAcc, xFr, xMask = 96, 160, 32
xa, xb, xw = 56, 60, 64
(xFw, xLq, xLv, xLvp, xOne) = (72, 73, 74, 75, 76)
XV, XM, PACE = opt('xv', 2), opt('xm', 0), opt('pace', 2)
e('.p2align 6')
lab('L_X')
srd(S_WQ, 0x80000); srd(S_XA, 0x200000); srd(S_WQKV, 0x180000)
E(f's_or_b32 s{sT1}, s2, s{sW}', 's_cbranch_scc1 L_nonon', 's_waitcnt lgkmcnt(0)',
  f's_lshl_b64 {sr(sNon,2)}, {sr(sNon,2)}, 5', f's_or_b32 s{sNon}, s{sNon}, 1', f'v_mov_b32 v{vNon}, s{sNon}', f'v_mov_b32 v{vNon+1}, s{sNon+1}', 's_mov_b64 exec, 1',
  f'global_store_dwordx2 v{vZero}, {vr(vNon,2)}, {sr(S_DBG,2)} sc1', 's_mov_b64 exec, -1')
lab('L_nonon')
E(f'v_and_b32 v{vT3}, 1, v{vG}', f'v_lshlrev_b32 v{vT3}, 2, v{vT3}', f'v_xor_b32 v{vT3}, v{vT3}, v{vT2}', f'v_lshlrev_b32 v{vT3}, 4, v{vT3}',
  f'v_lshl_add_u32 v{vW}, v{vT1}, 10, v{vT3}', f'v_add_u32 v{vW2}, {8192-1024}, v{vW}',
  f'v_mul_u32_u24 v{vWA}, 3072, v{vT1}', f'v_add_u32 v{vWA}, v{vWA}, v{vT3}')
lane_setup()
SH4 = ['0', f's{sVM}', f's{sVM+1}', f's{sC}']; RG4 = [82, 84, 86, 88]
qx, qw = 56, 64
E(f'v_bfe_u32 v{vXx}, v{vN}, 1, 3', f'v_xor_b32 v{vXx}, v{vXx}, v{vH}', f'v_lshlrev_b32 v{vXx}, 4, v{vXx}',
  f's_and_b32 s{sF0}, s{sW}, 1', f's_lshl_b32 s{sF0}, s{sF0}, 12', f'v_lshl_add_u32 v{qx}, v{vN}, 7, v{vXx}', f'v_add_u32 v{qx}, s{sF0}, v{qx}',
  f'v_xor_b32 v{qx+1}, 32, v{qx}', f'v_xor_b32 v{qx+2}, 64, v{qx}', f'v_xor_b32 v{qx+3}, 96, v{qx}',
  f's_and_b32 s{sF2}, s{sW}, 2', f's_lshl_b32 s{sF2}, s{sF2}, 5', f'v_xor_b32 v{qw}, s{sF2}, v{vWl}', f'v_add_u32 v{qw}, 8192, v{qw}', f'v_add_u32 v{qw+1}, 65536, v{qw}',
  f's_mov_b32 s{sCS}, {f32(CSCALE)}')
for j in range(4): e(f'v_add_u32 v{qx+4+j}, 65536, v{qx+j}')
if opt('arot', 0): E(f's_add_u32 s{sXo}, s{sRot}, s{sHG}', f's_and_b32 s{sXo}, s{sXo}, 7', f's_lshl_b32 s{sXo}, s{sXo}, 7')
else: e(f's_mov_b32 s{sXo}, 0')
E(f's_lshl_b32 s{sW2k}, s{sW}, 11',
  f's_lshl_b32 s{sT3}, s{sRB}, 2', f's_add_u32 s{sT0}, s{sT3}, s{sW}', f's_lshl_b32 s{sT0}, s{sT0}, 14', f'v_add_u32 v{vXA}, s{sT0}, v{vP0}', f'v_add_u32 v{vXA2}, s{sT0}, v{vP1}',
  f's_mul_i32 s{sT0}, s{sW}, {16*3072}', f's_add_u32 s{sT0}, s{sT0}, s{sHG128}', f'v_add_u32 v{vWA}, s{sT0}, v{vWA}', f'v_add_u32 v{vWA2}, {8*3072-1024}, v{vWA}')
def w64(srd_, lds_base_sgpr, lds, tag):
    for hf in range(2):
        E(f's_add_u32 m0, s{lds_base_sgpr}, {lds+hf*4096}', f's_add_u32 s{sT1}, s{sT0}, {2*7168}')
        dma(vW, srd_, f's{sT0}', 0, '', tag); dma(vW2, srd_, f's{sT0}', 1024, '', tag)
        dma(vW, srd_, f's{sT1}', 2048, '', tag); dma(vW2, srd_, f's{sT1}', 3072, '', tag)
        if hf == 0: e(f's_add_u32 s{sT0}, s{sT0}, 32768')
vTc = 68
def touch_setup():
    E(f's_lshr_b32 s{sT0}, s2, 3', f's_lshl_b32 s{sT0}, s{sT0}, 2', f's_add_u32 s{sT0}, s{sT0}, s{sW}',
      f's_mul_i32 s{sT1}, s{sT0}, {12*128}', f'v_mul_u32_u24 v{vTc}, {196608}, v{vG}', f'v_lshl_add_u32 v{vTc}, v{vI}, 7, v{vTc}', f'v_add_u32 v{vTc}, s{sT1}, v{vTc}',
      f's_lshl_b32 s{sT1}, s{sT0}, 12', f'v_lshlrev_b32 v{vTc+1}, 7, v{vN}', f'v_add_u32 v{vTc+1}, s{sT1}, v{vTc+1}',
      f's_lshl_b32 s{sT1}, s{sHG}, 2', f's_add_u32 s{sT1}, s{sT1}, s{sW}', f's_lshl_b32 s{sT1}, s{sT1}, 11', f's_lshl_b32 s{sT2}, s{sRB}, 16', f's_add_u32 s{sT1}, s{sT1}, s{sT2}',
      f'v_lshlrev_b32 v{vTc+2}, 7, v{vI}', f'v_add_u32 v{vTc+2}, s{sT1}, v{vTc+2}')
def touch_w(j):
    E(f's_mov_b32 s{sT0}, {j*4*196608}', 's_mov_b32 exec_lo, 0x0fff0fff', 's_mov_b32 exec_hi, 0x0fff0fff')
    e(f'buffer_load_dword v{vTc+3}, v{vTc}, {sr(S_WQKV,4)}, s{sT0} offen', 'tc')
    e('s_mov_b64 exec, -1')
def touch_x():
    e('s_mov_b64 exec, 0xffff')
    e(f'buffer_load_dword v{vTc+3}, v{vTc+2}, {sr(S_XA,4)}, 0 offen{NT}', 'tc')
    e('s_mov_b64 exec, -1')
def touch_wo(srd_):
    e('s_mov_b32 exec_hi, 0')
    e(f'buffer_load_dword v{vTc+3}, v{vTc+1}, {sr(srd_,4)}, 0 offen', 'tc')
    e('s_mov_b64 exec, -1')
TC = opt('tc', 0)
def halo_fill():
    E(f's_lshl_b32 s{sT3}, s{sRB}, 16', f's_sub_u32 s{sT2}, s{sT3}, 16384', f's_max_i32 s{sT2}, s{sT2}, 0',
      f's_lshl_b32 s{sT0}, s{sW}, 7', f's_add_u32 s{sT0}, s{sT0}, s{sStepH}')
    for j in range(2):
        E(f's_and_b32 s{sT0}, s{sT0}, 1023', f's_add_u32 m0, s{sW2k}, {HALO+j*8192}', f's_add_u32 s{sT1}, s{sT2}, s{sT0}')
        dma(vP0, S_XA, f's{sT1}', 0, '', 'halo'); dma(vP1, S_XA, f's{sT1}', 1024, '', 'halo')
        if j == 0: e(f's_add_u32 s{sT0}, s{sT0}, 512')
def a_fill(c):
    slot = (c & 3) * SLOT
    t = f'A{c}'
    E(f's_add_u32 m0, s{sW2k}, {slot}', f's_mul_i32 s{sWo}, s{sXo}, 1536')
    dma(vXA, S_XA, f's{sXo}', 0, NT, t); dma(vXA2, S_XA, f's{sXo}', 1024, NT, t)
    for ty in range(3):
        E(f's_add_u32 m0, s{sW2k}, {slot+8192+ty*8192}', [f's_add_u32 s{sXo}, s{sXo}, 128', f's_add_u32 s{sWo}, s{sWo}, 1024', f's_add_u32 s{sWo}, s{sWo}, 1024'][ty])
        dma(vWA, S_WQKV, f's{sWo}', 0, WNT, t); dma(vWA2, S_WQKV, f's{sWo}', 1024, WNT, t)
    e(f's_and_b32 s{sXo}, s{sXo}, 1023')
def kv_fill(k):
    E(f's_add_u32 m0, s{sW4k}, {R+((k&1)^1)*16384}', f's_and_b32 s{sKVo}, s{sKVo}, 0x1ffff')
    for j in range(4): dma(vL16, S_WS, f's{sKVo}', 1024*j, ' sc1', f'KV{k}')
    e(f's_add_u32 s{sKVo}, s{sKVo}, 16384')
def wo_fill(srd_, half, lds, tag):
    e(f's_add_u32 s{sT0}, s{sWoff}, {half*256*1024}')
    w64(srd_, sW8k, lds, tag)
def masks():
    E(f'v_lshlrev_b32 v{vT0}, 2, v{vH}', f'v_sub_u32 v{vT0}, v{vN}, v{vT0}', f'v_add_u32 v{vT0}, 18, v{vT0}',
      f'v_mov_b32 v{vT2}, 0x5555', f'v_mov_b32 v{vT3}, 0', f'v_lshlrev_b64 {vr(vT2,2)}, v{vT0}, {vr(vT2,2)}',
      f'v_not_b32 v{vT2}, v{vT2}', f'v_not_b32 v{vT3}, v{vT3}', f's_mov_b32 s{sF1}, 0xff800000')
    for r in range(16): E(f'v_bfe_i32 v{xMask+r}, v{vT3}, {8*(r>>2)+(r&3)}, 1', f'v_and_b32 v{xMask+r}, s{sF1}, v{xMask+r}')
    for r in range(8, 16): E(f'v_bfe_i32 v{xMask+8+r}, v{vT2}, {8*(r>>2)+(r&3)}, 1', f'v_and_b32 v{xMask+8+r}, s{sF1}, v{xMask+8+r}')
def local_setup():
    E(f's_and_b32 s{sT0}, s{sW}, 1', f's_lshl_b32 s{sT0}, s{sT0}, 12', f's_lshr_b32 s{sT1}, s{sW}, 1', f's_lshl_b32 s{sT2}, s{sT1}, 11', f's_add_u32 s{sT0}, s{sT0}, s{sT2}', f's_add_u32 s{sT0}, s{sT0}, {SC}', f'v_add_u32 v{xFw}, s{sT0}, v{vL16}',
      f's_lshl_b32 s{sT0}, s{sRB}, 3', f's_add_u32 s{sT0}, s{sT0}, s{sHG}', f's_lshl_b32 s{sStepA}, s{sT0}, 13', f's_add_u32 s{sStepA}, s{sStepA}, s{sT2}', f's_add_u32 s{sStepA}, s{sStepA}, {hex(WS_HX)}',
      f's_lshl_b32 s{sStepB}, s{sT0}, 1', f's_add_u32 s{sStepB}, s{sStepB}, s{sT1}', f's_lshl_b32 s{sStepB}, s{sStepB}, 6', f's_add_u32 s{sStepB}, s{sStepB}, {hex(WS_FHX)}',
      f's_cmp_eq_u32 s{sRB}, 0', f's_cselect_b32 s{sT2}, 0, 8', f's_sub_u32 s{sT0}, s{sT0}, s{sT2}', f's_lshl_b32 s{sT2}, s{sT2}, 7', f's_sub_u32 s{sT2}, s{sStepB}, s{sT2}', f'v_mov_b32 v{vB1}, s{sT2}',
      f's_lshl_b32 s{sStepH}, s{sT0}, 13', f's_lshl_b32 s{sT2}, s{sW}, 10', f's_add_u32 s{sStepH}, s{sStepH}, s{sT2}', f's_add_u32 s{sStepH}, s{sStepH}, {hex(WS_HX)}',
      f'v_mov_b32 v{xOne}, 0x3f803f80', f'v_mov_b32 v{xOne+1}, 0x3f803f80',
      f's_lshl_b32 s{sT1}, s{sW}, 10', f's_add_u32 s{sT2}, s{sT1}, {ONES}', f's_add_u32 s{sT1}, s{sT1}, {SC}', f'v_add_u32 v{xLq}, s{sT1}, v{vL16}',
      f'v_and_b32 v{vT0}, 1, v0', f'v_lshlrev_b32 v{vT0}, 5, v{vT0}', f'v_lshl_add_u32 v{vT0}, v{vH}, 3, v{vT0}',
      f'v_lshrrev_b32 v{vT1}, 2, v{vI}', f'v_add_u32 v{vT0}, v{vT0}, v{vT1}', f'v_lshlrev_b32 v{vT0}, 4, v{vT0}', f'v_and_b32 v{vT1}, 2, v0', f'v_lshl_add_u32 v{vT0}, v{vT1}, 2, v{vT0}',
      f'v_add_u32 v{xLv}, s{sT1}, v{vT0}', f'v_mov_b32 v{xLvp}, s{sT2}', f'v_lshl_add_u32 v{vOw}, v0, 3, v{xLvp}',
      f'v_and_b32 v{vT0}, 16, v0', f'v_cmp_ne_u32 vcc, 0, v{vT0}',
      f'v_add_u32 v78, {4*4096}, v{xLv}', f'v_add_u32 v79, {5*4096}, v{xLv}', f'v_add_u32 v80, {7*4096}, v{xLv}',
      f'v_cndmask_b32 v78, v78, v{xLvp}, vcc', f'v_cndmask_b32 v79, v79, v{xLvp}, vcc', f'v_cndmask_b32 v80, v80, v{xLvp}, vcc',
      f's_lshl_b32 s{sT0}, s{sRB}, 6', f's_lshl_b32 s{sT1}, s{sHG}, 2', f's_add_u32 s{sT1}, s{sT1}, s{sW}', f's_add_u32 s{sT0}, s{sT0}, s{sT1}',
      f's_lshl_b32 s{sT0}, s{sT0}, 10', f's_add_u32 s{sOslot}, s{sT0}, {hex(WS_OA)}', f's_add_u32 s{sOslot2}, s{sOslot}, 32768',
      f's_lshl_b32 s{sT0}, s{sRB}, 5', f's_add_u32 s{sT0}, s{sT0}, s{sT1}', f's_lshl_b32 s{sT0}, s{sT0}, 6', f's_add_u32 s{sK1}, s{sT0}, {hex(WS_FOA)}')
    for i in range(4): e(f'v_mov_b32 v{vF0+i}, -1')
def sentinels():
    E(f's_add_u32 s{sT0}, s{sOslot}, {hex(WS_OB-WS_OA)}', f's_add_u32 s{sT1}, s{sT0}, 32768')
    e(f'buffer_store_dwordx4 {vr(vF0,4)}, v{vL16}, {sr(S_WS,4)}, s{sT0} offen sc1', 'sent')
    e(f'buffer_store_dwordx4 {vr(vF0,4)}, v{vL16}, {sr(S_WS,4)}, s{sT1} offen sc1', 'sent')
    nonce_load('sent')
def setup_a():
    E(f's_cmp_eq_u32 s{sW}, 3', f's_cselect_b32 s{sT1}, 15, 31', f'v_and_b32 v{vT0}, s{sT1}, v{vN}', f'v_lshl_add_u32 v{xa}, v{vT0}, 7, v{vXx}',
      f's_cselect_b32 s{sT1}, {HALO}, 0', f'v_add_u32 v{xa}, s{sT1}, v{xa}', f's_cselect_b32 s{sT1}, 0, 4096', f'v_add_u32 v{xb}, s{sT1}, v{xa}',
      f's_cselect_b32 s{sStepA}, 1, 16', f's_cselect_b32 s{sStepB}, 1, -32', f's_cselect_b32 s{sT1}, 1, s{sW}', f's_cselect_b32 s{sT2}, 2, s{sW}',
      f's_lshl_b32 s{sStepA}, s{sStepA}, 11', f's_lshl_b32 s{sStepB}, s{sStepB}, 11',
      f's_lshl_b32 s{sT1}, s{sT1}, 13', f's_add_u32 s{sT1}, s{sT1}, 8192', f'v_add_u32 v{xw}, s{sT1}, v{vWl}', f'v_xor_b32 v{xw+1}, 64, v{xw}',
      f's_lshl_b32 s{sT2}, s{sT2}, 13', f's_add_u32 s{sT2}, s{sT2}, 8192', f'v_add_u32 v{xw+2}, s{sT2}, v{vWl}', f'v_xor_b32 v{xw+3}, 64, v{xw+2}')
    for j in range(4): e(f'v_add_u32 v{xw+4+j}, 65536, v{xw+j}')
    for s_ in range(1, 4): E(f'v_xor_b32 v{xa+s_}, {32*s_}, v{xa}', f'v_xor_b32 v{xb+s_}, {32*s_}, v{xb}')
def setup_b():
    E(f's_lshr_b32 s{sT1}, s{sRB}, 2', f's_lshl_b32 s{sKVo}, s{sT1}, 14', f's_add_u32 s{sKVo}, s{sKVo}, s{sW4k}', f's_add_u32 s{sKVo}, s{sKVo}, 16384',
      f'v_lshlrev_b32 v{vPa}, 3, v0', f'v_add_u32 v{vPa}, {hex(WS_FD)}, v{vPa}',
      f'v_lshlrev_b32 v{vPa2}, 6, v{vN}', f's_lshl_b32 s{sT2}, s{sRB}, 11', f's_add_u32 s{sT2}, s{sT2}, {hex(WS_FOA)}', f'v_add_u32 v{vPa2}, s{sT2}, v{vPa2}',
      f's_add_u32 s{sT2}, s{sT1}, 1', f's_lshl_b32 s{sT2}, s{sT2}, 5', f'v_add_u32 v{vB0}, s{sT2}, v0', f'v_and_b32 v{vB0}, 255, v{vB0}',
      f'v_lshlrev_b32 v{vB0}, 6, v{vB0}', f'v_add_u32 v{vB0}, {hex(WS_FKV)}, v{vB0}',
      f's_mov_b32 s{sVM}, 512', f's_mov_b32 s{sVM+1}, 1024', f's_mov_b32 s{sC}, 1536',
      f's_lshl_b32 s{sW8k}, s{sW}, 13', f's_lshl_b32 s{sWoff}, s{sW}, 16', f's_add_u32 s{sWoff}, s{sWoff}, s{sHG128}')
    srd(S_WOA, 0x80000); srd(S_WOB, 0x80000)
    E(f's_getreg_b32 s{sXcc}, hwreg(HW_REG_XCC_ID, 0, 4)', f's_lshl_b32 s{sXcc}, s{sXcc}, 1')
setup_b()
E(f's_add_u32 s{sT0}, s{sW}, s{sRot}', f's_lshl_b32 s{sT0}, s{sT0}, 16', f's_add_u32 s{sT0}, s{sT0}, s{sHG128}', f's_lshl_b32 s{sT2}, s{sW}, 14',
  f's_and_b32 s{sT0}, s{sT0}, 0x7ffff', 's_waitcnt lgkmcnt(0)', 's_barrier')
w64(S_WQ, sT2, 8192, 'B')
E(f's_add_u32 s{sT0}, s{sT0}, {4*65536-32768}', f's_and_b32 s{sT0}, s{sT0}, 0x7ffff')
w64(S_WQ, sT2, 65536+8192, 'B')
stamp(1, 'head')
local_setup(); tail_setup(); masks()
if TC: touch_setup()
for j in range(16): e(f'v_mov_b32 v{208+j}, 0')
E('s_waitcnt vmcnt(0)', 's_barrier')
stamp(5, 'head'); stamp(1, 'all', 'x')
def qrd(u):
    sc, st = u >> 2, u & 3
    x = vFr + 8 * (u % 8)
    hi = sc >> 2
    o = (sc & 3) * 16384
    E(f'ds_read_b128 {vr(x,4)}, v{qx+4*hi+st} offset:{o}',
      f'ds_read_b64_tr_b16 {vr(x+4,2)}, v{qw+hi} offset:{o+st*2048}', f'ds_read_b64_tr_b16 {vr(x+6,2)}, v{qw+hi} offset:{o+st*2048+512}')
for u in range(5): qrd(u)
if TC & 8: touch_x(); touch_w(0)
for u in range(32):
    x = vFr + 8 * (u % 8)
    issued = min(32, 5 + u)
    e(f's_waitcnt lgkmcnt({3*(issued-u-1)})')
    e(f'v_mfma_f32_32x32x16_bf16 {vr(vQacc,16)}, {vr(x+4,4)}, {vr(x,4)}, {"0" if u == 0 else vr(vQacc,16)}')
    if 5 + u < 32: qrd(5 + u)
    if EA and u == 7: e('s_barrier')
    if EA and u == EA: a_fill(0)
E(f's_cmp_lg_u32 s{sW}, 0', 's_cbranch_scc1 L_np2')
poll_issue(vB0, ['0'], [vFl])
lab('L_np2')
e('s_nop 9')
stamp(6, 'head')
for j in range(16): e(f'v_mul_f32 v{vQacc+j}, s{sCS}, v{vQacc+j}')
for j in range(8): e(f'v_cvt_pk_bf16_f32 v{vQacc+j}, v{vQacc+2*j}, v{vQacc+2*j+1}')
E(f'ds_write_b128 v{vQx}, {vr(vQacc,4)}', f'ds_write_b128 v{vQx}, {vr(vQacc+4,4)} offset:1024',
  f's_setprio {XV}', 's_waitcnt lgkmcnt(0)')
stamp(7, 'head'); stamp(2, 'all', 'x')
e('s_barrier')
for j in range(16): e(f'v_mov_b32 v{16+j}, 0')
stamp(8, 'head'); stamp(3, 'all', 'x')

def a_chunk(cs, side=()):
    side = list(side)
    seq = []
    u = 0
    for c in cs:
        hi, base = (c >> 1) & 1, (c & 1) * SLOT
        for s in range(4):
            x = xFr + 16 * (u % 3); u += 1
            for ty in range(3):
                r = [f'ds_read_b128 {vr(x,4)}, v{qx+4*hi+s} offset:{base}'] if ty == 0 else []
                o = base + ty * 8192 + s * 2048
                r += [f'ds_read_b64_tr_b16 {vr(x+4+4*ty,2)}, v{qw+hi} offset:{o}', f'ds_read_b64_tr_b16 {vr(x+6+4*ty,2)}, v{qw+hi} offset:{o+512}']
                a = xAcc + 16 * ty
                seq.append((r, f'v_mfma_f32_32x32x16_bf16 {vr(a,16)}, {vr(x+4+4*ty,4)}, {vr(x,4)}, {"0" if (c == 0 and s == 0) else vr(a,16)}'))
    if XM != XV: e(f's_setprio {XM}')
    LA = opt('la', 1)
    for k_ in range(LA): E(*seq[k_][0])
    for k_, (r, m) in enumerate(seq):
        if k_ + LA < len(seq): E(*seq[k_+LA][0])
        e(f's_waitcnt lgkmcnt({sum(len(seq[j][0]) for j in range(k_+1, min(len(seq), k_+LA+1)))})')
        e(m)
        take = -(-len(side) // (len(seq) - k_))
        for g in side[:take]:
            for s_, t_ in g: e(s_, t_)
        side = side[take:]
    if XM != XV: e(f's_setprio {XV}')
def write_frags():
    e('s_nop 6')
    for ty in range(3):
        for hd in range(2):
            a = xAcc + 16 * ty + 8 * hd
            for i in range(4): e(f'v_cvt_pk_bf16_f32 v{a+i}, v{a+2*i}, v{a+2*i+1}')
            e(f'ds_write_b128 v{xFw}, {vr(a,4)} offset:{ty*8192+hd*1024}')
    E(f's_bitcmp1_b32 s{sW}, 0', 's_cbranch_scc0 L_nopub', f's_add_u32 s{sT0}, s{sStepA}, 4096',
      f'buffer_store_dwordx4 {vr(xAcc+16,4)}, v{vL16}, {sr(S_WS,4)}, s{sStepA} offen sc1',
      f'buffer_store_dwordx4 {vr(xAcc+24,4)}, v{vL16}, {sr(S_WS,4)}, s{sStepA} offen offset:1024 sc1',
      f'buffer_store_dwordx4 {vr(xAcc+32,4)}, v{vL16}, {sr(S_WS,4)}, s{sT0} offen sc1',
      f'buffer_store_dwordx4 {vr(xAcc+40,4)}, v{vL16}, {sr(S_WS,4)}, s{sT0} offen offset:1024 sc1')
    lab('L_nopub')
PUB = [0]
def halo_flag():
    E(f's_bitcmp1_b32 s{sW}, 0', 's_cbranch_scc0 L_nohf')
    flag_store('hx', f's{sStepB}', f's_waitcnt vmcnt({len(VMQ)-PUB[0]})')
    lab('L_nohf')
def halo_get():
    poll_check('hx', vB1, ['0'], [vFl], None)
    E(f's_lshl_b32 s{sT0}, s{sW}, 10', f's_add_u32 m0, s{sT0}, {SC+6*4096}', f's_add_u32 s{sT1}, s{sStepH}, 4096')
    dma(vL16, S_WS, f's{sStepH}', 0, ' sc1', 'hx')
    E(f's_add_u32 m0, s{sT0}, {SC+7*4096}', 's_nop 0')
    dma(vL16, S_WS, f's{sT1}', 0, ' sc1', 'hx')
def local_task(t):
    lq, lk, lp, lv = xFr, xFr+4, xFr+8, xFr+12
    lS, lP, lO = xAcc, xAcc+16, (16 if t else 208)
    kp = 6 if t == 0 else 2
    vc, vp = (78, 80) if t == 0 else (79, 78)
    E(f'ds_read_b128 {vr(lq,4)}, v{xLq} offset:{t*4096}', f'ds_read_b128 {vr(lk,4)}, v{xLq} offset:{(2+t)*4096}', f'ds_read_b128 {vr(lp,4)}, v{xLq} offset:{kp*4096}',
      f'ds_read_b64_tr_b16 {vr(lv,2)}, v{vc}', f'ds_read_b64_tr_b16 {vr(lv+2,2)}, v{vc} offset:64',
      f'ds_read_b64_tr_b16 {vr(lv+4,2)}, v{vc} offset:256', f'ds_read_b64_tr_b16 {vr(lv+6,2)}, v{vc} offset:320',
      f'ds_read_b64_tr_b16 {vr(lv+8,2)}, v{vp} offset:256', f'ds_read_b64_tr_b16 {vr(lv+10,2)}, v{vp} offset:320')
    if t == 0:
        E(f's_cmp_lg_u32 s{sRB}, 0', 's_cbranch_scc1 L_m0')
        for r in range(8): e(f'v_mov_b32 v{xMask+16+r}, 0xff800000')
        lab('L_m0')
    E('s_waitcnt lgkmcnt(6)', 's_nop 0',
      f'v_mfma_f32_32x32x16_bf16 {vr(lS,16)}, {vr(lk,4)}, {vr(lq,4)}, {vr(xMask,16)}',
      f'v_mfma_f32_32x32x16_bf16 {vr(lP,16)}, {vr(lp,4)}, {vr(lq,4)}, {vr(xMask+8,16)}')
    e('s_nop 10')
    regs = [lS+i for i in range(16)] + [lP+8+i for i in range(8)]
    maxtree(regs, vT0, vT1)
    E('s_nop 1', f'v_permlane32_swap_b32 v{vT0}, v{vT1}', f'v_max_f32 v{vT0}, v{vT0}, v{vT1}', f'v_mul_f32 v{vT0}, {f32(-CSCALE)}, v{vT0}')
    for k in range(0, 24, 2): e(f'v_pk_fma_f32 {vr(regs[k],2)}, {vr(regs[k],2)}, {sr(sCS,2)}, {vr(vT0,2)} op_sel_hi:[1,0,0]')
    e('s_waitcnt lgkmcnt(0)')
    for k in range(24):
        e(f'v_exp_f32 v{regs[k]}, v{regs[k]}')
        if k == 9: e(f'v_smfmac_f32_32x32x32_bf16 {vr(lO,16)}, {vr(lv,4)}, {vr(lS,8)}, v{vIdx}')
        if k == 17: e(f'v_smfmac_f32_32x32x32_bf16 {vr(lO,16)}, {vr(lv+4,4)}, {vr(lS+8,8)}, v{vIdx}')
    E('s_nop 1', f'v_smfmac_f32_32x32x32_bf16 {vr(lO,16)}, {vr(lv+8,4)}, {vr(lP+8,8)}, v{vIdx}', 's_nop 11',
      f'v_rcp_f32 v{vT2}, v{lO+8}', 's_nop 0')
    for i in range(0, 8, 2): e(f'v_pk_mul_f32 {vr(lO+i,2)}, {vr(lO+i,2)}, {vr(vT2,2)} op_sel_hi:[1,0]')
    d = xAcc + 48 + 4 * t
    for i in range(4): e(f'v_cvt_pk_bf16_f32 v{d+i}, v{lO+2*i}, v{lO+2*i+1}')
    e(f'buffer_store_dwordx4 {vr(d,4)}, v{vL16}, {sr(S_WS,4)}, s{sOslot2 if t else sOslot} offen sc1', 'oa')

def oa_mfma(rt, wr=False):
    for s_ in range(8):
        for ct in range(2):
            a_ = oAcc + 32 * rt + 16 * ct
            e(f'v_mfma_f32_32x32x16_bf16 {vr(a_,16)}, {vr(oW+8*s_+4*ct,4)}, {vr(oOf+32*rt+4*s_,4)}, {"0" if s_ == 0 else vr(a_,16)}')
            m_ = 2 * s_ + ct
            if wr and wr <= m_ < wr + 4:
                for q in (2*(m_-wr), 2*(m_-wr)+1): e(f'ds_write_b128 v{80+q if q else vTp}, {vr(oAcc+4*q,4)}')
PAT = opt('pat', 3)
if PAT == 3:
    CH = {n: [n-2] for n in range(2, 10)}; FILL = {n: [n] for n in range(8)}
else:
    CH = {2: [0], 3: [1], 4: [2], 5: [3, 4], 6: [5], 7: [6], 8: [7]}; FILL = {0: [0], 1: [1], 2: [2, 3], 3: [4], 4: [5], 5: [6], 6: [7]}
if EA:
    CH = {n: [n-1] for n in range(1, 9)}; FILL = {n: [n+1] for n in range(7)}
NG = max(CH)
LATE = opt('late', 1 if NG < 9 else 0)
AE = opt('aearly', 0)
for n in range(16):
    cm(f'X interval {n}')
    if n < 9: stamp(n + 1, 'i0')
    if n >= 8: stamp(n - 7, 'i1')
    if n in (opt('dn', 2), opt('dn', 2)+1, opt('dn', 2)+2): stamp(1 + 4*(n-opt('dn', 2)), 'd')
    if n in (1, 2, 4, 10, 12, 14): stamp({1: 4, 2: 5, 4: 6, 10: 7, 12: 8, 14: 9}[n], 'x')
    if STAMPS and STMODE == 'xc' and n in (4, 8, 10, 12, 14, 15):
        i_ = (4, 8, 10, 12, 14, 15).index(n)
        E(f's_memrealtime {sr(sST+4*i_,2)}', f's_memtime {sr(sST+4*i_+2,2)}')
    waits = []
    k = n // 2
    if n == 0:
        E(f's_cmp_lg_u32 s{sW}, 0', 's_cbranch_scc1 L_nochk_kv1')
        poll_check('kv1', vB0, ['0'], [vFl], 0)
    ILV = opt('ilv', 1) and n in CH
    if n == 3:
        E(f's_cmp_lg_u32 s{sW}, 0', 's_cbranch_scc1 L_np3')
        poll_issue(vPa, SH4, RG4)
        lab('L_np3')
        NP3 = len(VMQ)
    if ILV: CAP[0] = []
    if n == 1: kv_fill(1)
    if n % 2 == 0 and 1 <= k <= 6: kv_fill(k + 1)
    for c in FILL.get(n, []): a_fill(c)
    WS_ = opt('wos', 0)
    if n == NG - 1: sentinels()
    if WS_ == 0:
        if n == NG - 1: wo_fill(S_WOA, 0, 0, 'woA')
        if n == NG: wo_fill(S_WOA, 1, SLOT, 'woA')
    if WS_ == 2:
        if n == NG - 2: wo_fill(S_WOA, 0, 0, 'woA')
        if n == NG - 1: wo_fill(S_WOA, 1, SLOT, 'woA')
    if TC & 1 and n == 0: touch_x(); touch_w(0)
    if TC & 2 and n == 2: touch_w(1)
    if TC & 4 and n == 3: touch_wo(S_WOA)
    if TC & 4 and n == 5: touch_wo(S_WOB)
    DN = opt('dn', 2)
    side = []
    if ILV:
        cap = CAP[0]; CAP[0] = None
        g = []
        for it in cap:
            g.append(it)
            if it[1] is not None: side.append(g); g = []
        if g: side[-1] += g
    if n in (DN, DN+1): stamp(2 + 4*(n-DN), 'd')
    if n in CH: a_chunk(CH[n], side)
    if n in (DN, DN+1): stamp(3 + 4*(n-DN), 'd')
    for c in CH.get(n + 1, []): waits.append(f'A{c}')
    if n == NG: write_frags(); PUB[0] = len(VMQ)
    if n == NG + 1:
        e(f'ds_write_b64 v{vOw}, {vr(xOne,2)}')
        if opt('hfe', 1): halo_flag()
        local_task(1)
        if not opt('hfe', 1): halo_flag()
    if n == NG + 2:
        halo_get(); waits.append('hx')
        if WS_ == 1: wo_fill(S_WOA, 0, 0, 'woA')
    if n == NG + 3:
        local_task(0)
        if WS_ == 1: wo_fill(S_WOA, 1, SLOT, 'woA')
    if n == NG + 4:
        flag_store('oa', f's{sK1}', f's_waitcnt vmcnt({vmn("oa")})', xcc=True)
        VMQ.append('fl')
        if LATE: wo_fill(S_WOB, 0, 2*SLOT, 'woB')
        if WS_ != 1: w_reads()
    if LATE and n == NG + 5 and WS_ != 1: wo_fill(S_WOB, 1, 3*SLOT, 'woB')
    if WS_ == 1 and n == NG + 5: waits.append('woA')
    if n == NG + 5 + LATE:
        E(f's_cmp_lg_u32 s{sW}, 0', 's_cbranch_scc1 L_skip_oa')
        poll_check('oa', vPa2, ['0'], [vFl], None, xcc=True)
        E(f'v_or_b32 v{vFl}, s{sXcc}, v{vNon}', f'v_cmp_ne_u32 vcc, v{vFl}, v{vFl+2}', 's_nop 1', 's_cmp_eq_u64 vcc, 0', f's_cselect_b32 s{sT0}, {opt("fast", 1)}, 0',
          f'v_mov_b32 v{vFl}, s{sT0}')
        lab('L_skip_oa')
        if not LATE: wo_fill(S_WOB, 0, 2*SLOT, 'woB'); wo_fill(S_WOB, 1, 3*SLOT, 'woB')
        if WS_ == 1: wo_fill(S_WOB, 1, 3*SLOT, 'woB'); w_reads()
    if n == NG + 6 + LATE:
        E(f's_cmp_lg_u32 s{sW}, 0', 's_cbranch_scc1 L_skip_same', f'v_mov_b32 v{vFl+1}, {R+16384}', f'ds_write_b32 v{vFl+1}, v{vFl}')
        lab('L_skip_same')
        o_loads('oal')
    if n == 13 and opt('pad', 0):
        E('s_mov_b64 exec, 0', 's_branch L_pad0')
        lab(f'L_pad{PADS[0]}')
        e('s_mov_b64 exec, -1')
    if n == 15 and AE:
        E('s_waitcnt vmcnt(8)', f's_setprio {XM}')
        oa_mfma(0)
        e(f's_setprio {XV}')
    if n % 2 == 1 and k + 1 <= 7: waits.append(f'KV{k+1}')
    if n == 15: waits.append('woB')
    if waits: e(f's_waitcnt vmcnt({min(vmn(t) for t in waits)}) lgkmcnt(0)')
    else: e('s_waitcnt lgkmcnt(0)')
    if n == 3:
        E(f's_cmp_lg_u32 s{sW}, 0', 's_cbranch_scc1 L_nochk_kv2')
        poll_check('kv2', vPa, SH4, RG4, len(VMQ) - NP3)
    if n < 9: stamp(n + 1, 'j0')
    if n >= 8: stamp(n - 7, 'j1')
    if n in (DN, DN+1): stamp(4 + 4*(n-DN), 'd')
    e('s_barrier')
assert NBAR[0] == NBAR_Y, (NBAR[0], NBAR_Y)
E('s_setprio 0', f's_mov_b32 s{sSpin}, 0', f's_mov_b32 s{sC}, 0')
stamp(9, 'i1')
e('s_waitcnt vmcnt(0)')
stamp(5, 'tail')
if not AE: oa_mfma(0)
oa_mfma(1, 10)
E('s_nop 9', 's_branch L_tail_wr')

cm('---- fallback (Y waves): true max, K/V from global ----')
lab('L_fallback')
E(f's_cmp_eq_u32 s{sFB}, 0', 's_cbranch_scc1 L_fb_go', f's_cmp_eq_u32 s{sT1}, 1', 's_branch L_att_ok')
lab('L_fb_go')
E(f's_mov_b32 s{sFB}, 1', f'v_mov_b32 v{vT0}, 0xff800000', f'v_mov_b32 v{vT2}, 0xff800000', f's_mov_b32 s{sT2}, 0')
lab('L_fb_max')
E(f'buffer_load_dwordx4 {vr(aK,4)}, v{vL16}, {sr(S_WS,4)}, s{sT2} offen sc1', 's_waitcnt vmcnt(0)',
  f'v_mfma_f32_32x32x16_bf16 {vr(aSa,16)}, {vr(aK,4)}, {vr(vQa,4)}, 0', f'v_mfma_f32_32x32x16_bf16 {vr(aSb,16)}, {vr(aK,4)}, {vr(vQb,4)}, 0', 's_nop 15')
for k in range(0, 16, 2): e(f'v_max3_f32 v{vT0}, v{vT0}, v{aSa+k}, v{aSa+k+1}')
for k in range(0, 16, 2): e(f'v_max3_f32 v{vT2}, v{vT2}, v{aSb+k}, v{aSb+k+1}')
E(f's_add_u32 s{sT2}, s{sT2}, 2048', f's_cmp_lt_u32 s{sT2}, {64*2048}', 's_cbranch_scc1 L_fb_max',
  f'v_mov_b32 v{vT1}, v{vT0}', f'v_mov_b32 v{vT3}, v{vT2}', 's_nop 1',
  f'v_permlane32_swap_b32 v{vT0}, v{vT1}', f'v_permlane32_swap_b32 v{vT2}, v{vT3}', f'v_max_f32 v{vT0}, v{vT0}, v{vT1}', f'v_max_f32 v{vT2}, v{vT2}, v{vT3}')
for i in range(16): e(f'v_sub_f32 v{aCa+i}, 0, v{vT0}')
for i in range(16): e(f'v_sub_f32 v{aCb+i}, 0, v{vT2}')
for i in range(32): e(f'v_mov_b32 v{aOa+i}, 0')
E(f'v_lshlrev_b32 v{vT2}, 4, v{vI}', f'v_lshl_add_u32 v{vT2}, v{vH}, 8, v{vT2}', f's_mov_b32 s{sT2}, 0')
lab('L_fb_pv')
E(f'buffer_load_dwordx4 {vr(aK,4)}, v{vL16}, {sr(S_WS,4)}, s{sT2} offen sc1', f's_mov_b64 exec, {sr(sVM,2)}',
  f'buffer_load_dwordx4 {vr(aV,4)}, v{vT2}, {sr(S_WS,4)}, s{sT2} offen offset:1024 sc1',
  f'buffer_load_dwordx4 {vr(aV+4,4)}, v{vT2}, {sr(S_WS,4)}, s{sT2} offen offset:1536 sc1', 's_mov_b64 exec, -1', 's_waitcnt vmcnt(0)',
  f'v_mfma_f32_32x32x16_bf16 {vr(aSa,16)}, {vr(aK,4)}, {vr(vQa,4)}, {vr(aCa,16)}',
  f'v_mfma_f32_32x32x16_bf16 {vr(aSb,16)}, {vr(aK,4)}, {vr(vQb,4)}, {vr(aCb,16)}', 's_nop 15')
for i in range(32): e(f'v_exp_f32 v{aSa+i}, v{aSa+i}')
E('s_nop 1',
  f'v_smfmac_f32_32x32x32_bf16 {vr(aOa,16)}, {vr(aV,4)}, {vr(aSa,8)}, v{vIdx}', f'v_smfmac_f32_32x32x32_bf16 {vr(aOa,16)}, {vr(aV+4,4)}, {vr(aSa+8,8)}, v{vIdx}',
  f'v_smfmac_f32_32x32x32_bf16 {vr(aOb,16)}, {vr(aV,4)}, {vr(aSb,8)}, v{vIdx}', f'v_smfmac_f32_32x32x32_bf16 {vr(aOb,16)}, {vr(aV+4,4)}, {vr(aSb+8,8)}, v{vIdx}',
  f's_add_u32 s{sT2}, s{sT2}, 2048', f's_cmp_lt_u32 s{sT2}, {64*2048}', 's_cbranch_scc1 L_fb_pv', 's_nop 15', 's_branch L_att_fin')
for g, so in enumerate((sOoff, sT1, sT2, sT3)):
    lab(f'L_tr{g}')
    E(f's_sub_u32 s{sSpin}, s{sSpin}, 1', f's_cbranch_scc1 L_tk{g}')
    for j in range(4):
        o = f' offset:{j*1024}' if j else ''
        e(f'buffer_load_dwordx4 {vr(oOf+16*g+4*j,4)}, v{vL16}, {sr(S_WS,4)}, s{so} offen{o} sc1')
    E('s_waitcnt vmcnt(0)', f's_branch L_tg{g}')
lab('L_st_slow')
E(f'buffer_store_dwordx4 {vr(16,4)}, v{vL16}, {sr(S_WS,4)}, s{sOslot} offen sc1',
  f'buffer_store_dwordx4 {vr(28,4)}, v{vL16}, {sr(S_WS,4)}, s{sOslot} offen offset:1024 sc1', 's_branch L_st_j')
lab('L_code_end')

HDR = open(f'cdna_kernels/{NAME}.s.ref').read().split('\n')
hdr = []
for line in HDR:
    if line.startswith('; @launch'): break
    hdr.append(line)
txt = '\n'.join(hdr) + '\n; @launch grid=(256,1,1) block=(512,1,1) lds=163840\n'
txt += f'''.amdgcn_target "amdgcn-amd-amdhsa--gfx950"
.text
.globl {NAME}_kernel
.p2align 8
.type {NAME}_kernel,@function
'''
txt += '\n'.join(L) + '\n'
txt += f'''.section .rodata,"a"
.p2align 6
.amdhsa_kernel {NAME}_kernel
  .amdhsa_next_free_vgpr {NVGPR}
  .amdhsa_next_free_sgpr 102
  .amdhsa_accum_offset {NVGPR}
  .amdhsa_group_segment_fixed_size 0
  .amdhsa_kernarg_size 88
  .amdhsa_user_sgpr_count 2
  .amdhsa_user_sgpr_kernarg_segment_ptr 1
  .amdhsa_system_sgpr_workgroup_id_x 1
.end_amdhsa_kernel
'''
open(OUT, 'w').write(txt)
print('wrote', OUT, len(L), 'lines; barriers', NBAR_Y)
```

```python
import sys, struct

NAME = 'concat_heads__sliding_local_dilated__grouped_kv_mqa__prompt'
STAMPS = '--stamps' in sys.argv
STMODE = ([a[5:] for a in sys.argv if a.startswith('--st=')] + ['all'])[0]
XP = [a[4:] for a in sys.argv if a.startswith('--x=')]
args = [a for a in sys.argv[1:] if not a.startswith('--')]
OUT = args[0] if args else f'cdna_kernels/{NAME}.s'
def opt(name, default):
    for a in XP:
        if a.startswith(name): return type(default)(a[len(name):])
    return default

L = []
VMQ = []
NBAR = [0]
CAP = [None]
def e(s, tag=None):
    if CAP[0] is not None:
        CAP[0].append((s, tag)); return
    if tag is not None: VMQ.append(tag)
    if s == 's_barrier': NBAR[0] += 1
    L.append('    ' + s.strip())
    if PADON[0]:
        PADCNT[0] += 4 if (s.startswith('s_') and '0x' not in s) else 8
        if PADCNT[0] >= PADON[0] and not s.startswith('v_cmp') and 'abs' not in s:
            PADCNT[0] = 0; pad()
PADS = [0]
PADON = [False]
PADCNT = [0]
def lab(s): L.append(s + ':')
def pad():
    i = PADS[0]; PADS[0] += 1
    L.append(f'L_pad{i}:'); L.append(f'    s_cbranch_execz L_pad{i+1}')
def cm(s): L.append('    ; ' + s)
def vr(i, n): return f'v[{i}:{i+n-1}]'
def sr(i, n): return f's[{i}:{i+n-1}]'
def f32(x): return '0x%08x' % struct.unpack('<I', struct.pack('<f', x))[0]
def vmn(tag):
    idx = max(i for i, t in enumerate(VMQ) if t == tag)
    n = len(VMQ) - 1 - idx
    assert n <= 63
    return n
def E(*lines):
    for s in lines: e(s)

SLOT = 32768
R = 131072
HALO = 3 * SLOT
ONES = 3 * SLOT
SC = 2 * SLOT
WS_FHX = 0x60000
WS_HX = 0x600000
WS_FKV = 0x40000
WS_FOA = 0x48000
WS_FD = 0x44000
WS_OA = 0x100000
WS_OB = 0x300000
WS_STAMP = 0x500000
WS_SIZE = 0x800000
CSCALE = 0.25 * 1.4426950408889634
MOFF = float(opt('moff', 100))
VSC = 2.0 ** 40
ONEB = 0x53805380
SPIN = 200000
NT = '' if 'nont' in XP else ' nt'
WNT = ' nt' if 'wnt' in XP else ''

S_XA, S_WQKV, S_WOA, S_XB, S_WQ, S_WKV, S_WOB, S_OUT, S_WS = 8, 12, 16, 20, 24, 28, 32, 36, 40
S_DBG = 44
S_WV = 46
sP = 46
sW = 48
sRB, sHG = 49, 50
sT0, sT1, sT2, sT3 = 51, 52, 53, 54
sC = 55
sStepA, sStepB = 56, 57
sXo, sWo = 58, 59
sKVo = 60
sW4k, sW8k, sW2k = 61, 62, 63
sVM = 64
sOoff, sOutOff, sWoff, sSpin = 66, 67, 68, 69
sOslot, sOslot2 = 70, 71
sFB, sHG128, sCS, sQ = 72, 73, 74, 75
sRot, sK1 = 4, 5
sF0, sF1, sF2 = 3, 6, 7
sST = 76
sNon = 100
sStepH = 31
sXcc = 30

vL16, vW, vWA, vXA = 1, 2, 3, 4
vN, vH, vI = 5, 6, 7
vT0, vT1, vT2, vT3 = 8, 9, 10, 11
vP0, vP1, vXx, vG = 12, 13, 14, 15
vQacc = 16
vFr = 96
(vB0, vB1, vBW, vWl, vIdx, vPa, vQx, vW2, vTw0, vTw1, vTp, vTr0, vTo, vPa2, vZero, vOw,
 vF0, vF1, vF2, vF3, vWA2, vXA2) = range(232, 254)
vNon, vFl = 90, 92
NVGPR = 256

def stamp(i, *modes):
    if STAMPS and STMODE in modes: e(f's_memrealtime {sr(sST+2*i,2)}')
def cstamp(i):
    if STAMPS and STMODE != 'xc': e(f's_memtime {sr(sST+2*i,2)}')
def dma(voff, srd_, soff, off=0, fl='', tag='x'):
    o = f' offset:{off}' if off else ''
    e(f'buffer_load_dwordx4 v{voff}, {sr(srd_,4)}, {soff} offen{o}{fl} lds', tag)
def srd(reg, size): E(f's_mov_b32 s{reg+2}, {hex(size)}', f's_mov_b32 s{reg+3}, 0x20000')
def nonce_load(tag=None): e(f'global_load_dwordx2 {vr(vNon,2)}, v{vZero}, {sr(S_DBG,2)} sc1', tag)
def poll_issue(vaddr, soffs, regs, non=True):
    if non: nonce_load()
    for so, r in zip(soffs, regs):
        e(f'buffer_load_dwordx2 {vr(r,2)}, v{vaddr}, {sr(S_WS,4)}, {so} offen sc1')
def poll_check(tag, vaddr, soffs, regs, issued, xcc=False):
    e(f's_mov_b32 s{sSpin}, {SPIN}')
    if issued is not None: E(f's_waitcnt vmcnt({issued})', f's_branch L_chk_{tag}')
    lab(f'L_rep_{tag}')
    poll_issue(vaddr, soffs, regs)
    e('s_waitcnt vmcnt(0)')
    lab(f'L_chk_{tag}')
    e(f'v_cmp_eq_u32 vcc, 0, v{vNon}')
    if xcc: E(f'v_mov_b32 v{vFl+2}, v{vFl}', f'v_and_b32 v{vFl}, 0xffffffe1, v{vFl}')
    for r in regs:
        E(f'v_cmp_ne_u64 {sr(sP,2)}, {vr(vNon,2)}, {vr(r,2)}', 's_nop 1', f's_or_b64 vcc, vcc, {sr(sP,2)}')
    E(f's_cbranch_scc0 L_nochk_{tag}', f's_sub_u32 s{sSpin}, s{sSpin}, 1', f's_cbranch_scc0 L_rep_{tag}')
    lab(f'L_nochk_{tag}')
def flag_store(tag, soff, first_wait='s_waitcnt vmcnt(0)', xcc=False, soff2=None):
    e(f's_mov_b32 s{sSpin}, {SPIN}')
    e(first_wait)
    lab(f'L_fw_{tag}')
    E(f'v_cmp_eq_u32 vcc, 0, v{vNon}', f's_cbranch_vccz L_fs_{tag}')
    nonce_load()
    E('s_waitcnt vmcnt(0)', f's_sub_u32 s{sSpin}, s{sSpin}, 1', f's_cbranch_scc0 L_fw_{tag}')
    lab(f'L_fs_{tag}')
    if xcc: e(f'v_or_b32 v{vNon}, s{sXcc}, v{vNon}')
    E('s_mov_b64 exec, 1', f'buffer_store_dwordx2 {vr(vNon,2)}, v{vZero}, {sr(S_WS,4)}, {soff} offen sc1')
    if soff2: e(f'buffer_store_dwordx2 {vr(vNon,2)}, v{vZero}, {sr(S_WS,4)}, {soff2} offen sc1')
    e('s_mov_b64 exec, -1')
def maxtree(rs, t0, t1):
    e(f'v_max3_f32 v{t0}, v{rs[0]}, v{rs[1]}, v{rs[2]}')
    e(f'v_max3_f32 v{t1}, v{rs[3]}, v{rs[4]}, v{rs[5]}')
    for k in range(6, len(rs), 4):
        e(f'v_max3_f32 v{t0}, v{t0}, v{rs[k]}, v{rs[k+1]}')
        if k + 3 < len(rs): e(f'v_max3_f32 v{t1}, v{t1}, v{rs[k+2]}, v{rs[k+3]}')
    e(f'v_max_f32 v{t0}, v{t0}, v{t1}')
    e(f'v_mov_b32 v{t1}, v{t0}')
def lane_setup():
    E(f'v_and_b32 v{vN}, 31, v0', f'v_lshrrev_b32 v{vH}, 5, v0', f'v_and_b32 v{vI}, 15, v0',
      f'v_lshrrev_b32 v{vWl}, 2, v{vI}', f'v_lshl_add_u32 v{vWl}, v{vH}, 3, v{vWl}', f'v_lshlrev_b32 v{vWl}, 7, v{vWl}',
      f'v_and_b32 v{vF0}, 8, v{vI}', f'v_lshl_add_u32 v{vWl}, v{vF0}, 3, v{vWl}', f'v_and_b32 v{vF0}, 16, v0',
      f'v_lshl_add_u32 v{vWl}, v{vF0}, 1, v{vWl}', f'v_and_b32 v{vF0}, 3, v0', f'v_lshl_add_u32 v{vWl}, v{vF0}, 3, v{vWl}',
      f's_lshl_b32 s{sW4k}, s{sQ}, 12', f's_add_u32 s{sF0}, s{sW4k}, {R}', f'v_add_u32 v{vQx}, s{sF0}, v{vL16}',
      f'v_mov_b32 v{vIdx}, 0xdddddddd', f's_mov_b32 s{sFB}, 0')
oOf, oW, oAcc = 16, 96, 160
def tail_setup():
    E(f's_mov_b32 s{S_OUT+2}, 0x400000', f's_mov_b32 s{S_OUT+3}, 0x20000',
      f's_lshr_b32 s{sF2}, s{sW}, 2', f's_lshl_b32 s{sF1}, s{sW}, 14',
      f'v_lshlrev_b32 v{vT0}, 9, v{vH}', f'v_sub_u32 v{vTw0}, v{vWl}, v{vT0}', f'v_add_u32 v{vTw0}, s{sF1}, v{vTw0}', f'v_xor_b32 v{vTw1}, 64, v{vTw0}',
      f'v_xor_b32 v{vT0}, v{vH}, v{vI}', f'v_lshlrev_b32 v{vT0}, 4, v{vT0}', f'v_lshl_add_u32 v{vT0}, v{vN}, 8, v{vT0}', f'v_add_u32 v{vTp}, s{sF1}, v{vT0}',
      f'v_lshrrev_b32 v{vT0}, 3, v0', f's_lshl_b32 s{sF1}, s{sQ}, 3', f'v_add_u32 v{vT0}, s{sF1}, v{vT0}', f'v_and_b32 v{vT1}, 7, v0', f'v_lshlrev_b32 v{vT2}, 1, v{vT1}',
      f'v_and_b32 v{vT3}, 15, v{vT0}', f'v_xor_b32 v{vT2}, v{vT2}, v{vT3}', f'v_lshlrev_b32 v{vT2}, 4, v{vT2}', f'v_lshl_add_u32 v{vT2}, v{vT0}, 8, v{vT2}',
      f's_lshl_b32 s{sF1}, s{sF2}, 16', f'v_add_u32 v{vTr0}, s{sF1}, v{vT2}',
      f'v_lshlrev_b32 v{vT1}, 4, v{vT1}', f'v_lshl_add_u32 v{vTo}, v{vT0}, 11, v{vT1}',
      f's_lshl_b32 s{sOutOff}, s{sRB}, 17', f's_lshl_b32 s{sF1}, s{sF2}, 10', f's_add_u32 s{sOutOff}, s{sOutOff}, s{sF1}', f's_add_u32 s{sOutOff}, s{sOutOff}, s{sHG128}',
      f's_lshl_b32 s{sOoff}, s{sRB}, 16', f's_add_u32 s{sF1}, s{sQ}, s{sRB}' if opt('worot', 1) else f's_mov_b32 s{sF1}, s{sQ}', f's_and_b32 s{sF1}, s{sF1}, 3', f's_lshl_b32 s{sF1}, s{sF1}, 13', f's_add_u32 s{sOoff}, s{sOoff}, s{sF1}',
      f's_lshl_b32 s{sF1}, s{sF2}, 21', f's_add_u32 s{sOoff}, s{sOoff}, s{sF1}', f's_add_u32 s{sOoff}, s{sOoff}, {hex(WS_OA)}')
assert WS_OB - WS_OA == 1 << 21
def w_reads():
    for s in range(8):
        x = oW + 8 * s
        E(f'ds_read_b64_tr_b16 {vr(x,2)}, v{vTw0} offset:{s*2048}', f'ds_read_b64_tr_b16 {vr(x+2,2)}, v{vTw0} offset:{s*2048+1024}',
          f'ds_read_b64_tr_b16 {vr(x+4,2)}, v{vTw1} offset:{s*2048}', f'ds_read_b64_tr_b16 {vr(x+6,2)}, v{vTw1} offset:{s*2048+1024}')
    for q in range(1, 8): e(f'v_xor_b32 v{80+q}, {(2*q)<<4}, v{vTp}')
    e(f'v_xor_b32 v88, 16, v{vTr0}')
def o_loads(tag=None, gs=(0, 1, 2, 3)):
    if 0 in gs: E(f's_add_u32 s{sT1}, s{sOoff}, 4096', f's_add_u32 s{sT2}, s{sOoff}, 32768', f's_add_u32 s{sT3}, s{sOoff}, {32768+4096}')
    for g, so in enumerate((sOoff, sT1, sT2, sT3)):
        if g not in gs: continue
        for j in range(4):
            o = f' offset:{j*1024}' if j else ''
            e(f'buffer_load_dwordx4 {vr(oOf+16*g+4*j,4)}, v{vL16}, {sr(S_WS,4)}, s{so} offen{o} sc1', tag)

lab(f'{NAME}_kernel')
if STAMPS:
    for i in range(12): e(f's_mov_b32 s{sST+2*i}, 0')
stamp(0, 'all', 'head', 'tail', 'x', 'i0', 'i1', 'j0', 'j1', 'd')
for reg, off in ((S_XB,24),(S_WKV,40),(S_WV,48),(S_WQ,32),(S_DBG,72),(S_WS,80),(S_XA,0),(S_WQKV,8),(S_WOA,16),(S_WOB,56),(S_OUT,64)):
    e(f's_load_dwordx2 {sr(reg,2)}, s[0:1], {off}')
e(f's_memrealtime {sr(sNon,2)}')
E('s_cmp_ge_u32 s2, 256', 's_cbranch_scc1 L_end',
  f'v_lshrrev_b32 v{vT0}, 6, v0', 'v_and_b32 v0, 63, v0', f'v_readfirstlane_b32 s{sW}, v{vT0}',
  f's_and_b32 s{sT0}, s2, 7', f's_bfe_u32 s{sRot}, s2, 0x20003', f's_lshl_b32 s{sRB}, s{sT0}, 2',
  f's_add_u32 s{sRB}, s{sRB}, s{sRot}', f's_lshr_b32 s{sHG}, s2, 5',
  f'v_lshlrev_b32 v{vL16}, 4, v0', f'v_lshrrev_b32 v{vG}, 4, v0', f'v_lshrrev_b32 v{vT1}, 3, v0', f'v_and_b32 v{vT2}, 7, v0',
  f'v_xor_b32 v{vT3}, v{vT2}, v{vG}', f'v_lshlrev_b32 v{vT3}, 4, v{vT3}', f'v_lshl_add_u32 v{vP0}, v{vT1}, 10, v{vT3}',
  f'v_xor_b32 v{vP1}, 64, v{vP0}', f'v_add_u32 v{vP1}, {8192-1024}, v{vP1}', f'v_mov_b32 v{vZero}, 0',
  f's_xor_b32 s{sW}, s{sW}, 7', f's_lshl_b32 s{sRot}, s{sRot}, 1', f's_lshl_b32 s{sHG128}, s{sHG}, 7', f's_and_b32 s{sQ}, s{sW}, 3')
if opt('brx', 0): E(f's_lshr_b32 s{sT0}, s{sRB}, 2', f's_add_u32 s{sRot}, s{sRot}, s{sT0}', f's_and_b32 s{sRot}, s{sRot}, 7')
if opt('hgx', 0): E(f's_xor_b32 s{sHG}, s{sHG}, {opt("hgx", 0)}', f's_lshl_b32 s{sHG128}, s{sHG}, 7')
srd(S_WS, WS_SIZE)
E(f's_cmp_lt_u32 s{sW}, 4', 's_cbranch_scc1 L_X')

cm('================ Y program (waves 4-7) ================')
aSa, aSb, aCa, aCb, aOa, aOb = 96, 112, 128, 144, 160, 176
aK, aV = 192, 56
vQa, vQb = 208, 212
vKa, vVa = 216, 217
srd(S_XB, 0x200000); srd(S_WKV, 0x4000)
vD0, vD1 = 218, 219
E(f's_lshr_b32 s{sT1}, s{sHG}, 1', f's_add_u32 s{sT1}, s{sT1}, s{sW}', f's_add_u32 s{sT1}, s{sT1}, 1', f's_and_b32 s{sT1}, s{sT1}, 3',
  f's_lshl_b32 s{sT2}, s{sT1}, 11',
  f's_lshl_b32 s{sT3}, s{sRB}, 2', f's_add_u32 s{sT3}, s{sT3}, s{sT1}', f's_lshl_b32 s{sT3}, s{sT3}, 14',
  f'v_add_u32 v{vD0}, s{sT3}, v{vP0}', f'v_add_u32 v{vD1}, s{sT3}, v{vP1}',
  f's_lshl_b32 s{sXo}, s{sRot}, 7',
  f's_cmp_lg_u32 s{sW}, 7', 's_cbranch_scc1 L_Yset')
def x_sub(s, tag):
    E(f's_add_u32 m0, s{sT2}, {s*16384}', f's_and_b32 s{sXo}, s{sXo}, 1023')
    dma(vD0, S_XB, f's{sXo}', 0, NT, tag); dma(vD1, S_XB, f's{sXo}', 1024, NT, tag)
E(f's_bitcmp1_b32 s{sHG}, 0', 's_waitcnt lgkmcnt(0)',
  f's_cselect_b32 s{S_WKV}, s{S_WV}, s{S_WKV}', f's_cselect_b32 s{S_WKV+1}, s{S_WV+1}, s{S_WKV+1}')
for s_ in range(8):
    x_sub(s_, None)
    E(f's_mov_b32 m0, {R+s_*2048}', f's_lshl_b32 s{sWo}, s{sXo}, 4')
    dma(vL16, S_WKV, f's{sWo}', 0, '', None); dma(vL16, S_WKV, f's{sWo}', 1024, '', None)
    if s_ < 7: e(f's_add_u32 s{sXo}, s{sXo}, 128')
e('s_barrier'); NBAR[0] -= 1
stamp(1, 'head')
lab('L_Yset')
lane_setup()
tail_setup()
E(f's_mov_b32 s{sVM}, 0xffff', f's_mov_b32 s{sVM+1}, 0xffff',
  f's_and_b32 s{sT0}, s{sRB}, 28', f's_add_u32 s{sT0}, s{sT0}, s{sQ}', f's_lshl_b32 s{sKVo}, s{sT0}, 12',
  f's_lshl_b32 s{sT0}, s{sT0}, 9', f's_add_u32 s{sT0}, s{sT0}, {hex(WS_FKV)}',
  f'v_and_b32 v{vPa}, 7, v0', f'v_lshlrev_b32 v{vPa}, 6, v{vPa}', f'v_add_u32 v{vPa}, s{sT0}, v{vPa}',
  f's_and_b32 s{sT0}, s{sW}, 1', f's_lshl_b32 s{sT1}, s{sRB}, 1', f's_add_u32 s{sT0}, s{sT0}, s{sT1}', f's_lshl_b32 s{sT0}, s{sT0}, 5',
  f's_lshl_b32 s{sT1}, s{sHG}, 2', f's_add_u32 s{sT0}, s{sT0}, s{sT1}', f's_and_b32 s{sT1}, s{sW}, 2', f's_add_u32 s{sT0}, s{sT0}, s{sT1}',
  f's_lshl_b32 s{sT0}, s{sT0}, 10', f's_add_u32 s{sOslot}, s{sT0}, {hex(WS_OB)}',
  f'v_add_u32 v{vKa}, {R+16384}, v{vL16}', f'v_lshlrev_b32 v{vVa}, 4, v{vI}', f'v_lshl_add_u32 v{vVa}, v{vH}, 8, v{vVa}', f'v_add_u32 v{vVa}, {R+16384}, v{vVa}',
  f'v_and_b32 v{vT1}, 27, v0', f'v_cmp_eq_u32 vcc, 16, v{vT1}', f'v_mov_b32 v{vT1}, {hex(ONEB)}', f's_cmp_eq_u32 s{sW}, 7', f'v_cndmask_b32 v{aV}, 0, v{vT1}, vcc',
  's_cbranch_scc1 L_Y7', 's_waitcnt lgkmcnt(0)')
if opt('cpf', 1):
    e('s_getpc_b64 s[0:1]')
    lab('L_pc')
    E(f's_sub_u32 s0, s0, L_pc-{NAME}_kernel', 's_subb_u32 s1, s1, 0',
      f's_lshr_b32 s{sT0}, s2, 3', f's_mul_i32 s{sT0}, s{sT0}, 3', f's_add_u32 s{sT0}, s{sT0}, s{sQ}', f's_lshl_b32 s{sT0}, s{sT0}, 8',
      f'v_lshlrev_b32 v{vF0}, 7, v0', f'v_add_u32 v{vF0}, s{sT0}, v{vF0}', f'v_min_u32 v{vF0}, L_code_end-{NAME}_kernel-4, v{vF0}', 's_mov_b64 exec, 3',
      f'global_load_dword v{vF1}, v{vF0}, s[0:1]', 's_mov_b64 exec, -1')
e('s_barrier')
for s_ in range(8):
    x_sub(s_, 'xb')
    if s_ < 7: e(f's_add_u32 s{sXo}, s{sXo}, 128')
stamp(1, 'head')
e('s_branch L_Yj')
lab('L_Y7')
E(f'v_lshrrev_b32 v{vT1}, 1, v{vI}', f'v_xor_b32 v{vT1}, v{vT1}, v{vG}', f'v_lshlrev_b32 v{vT1}, 4, v{vT1}', f'v_lshl_add_u32 v{vT1}, v{vI}, 7, v{vT1}',
  f'v_add_u32 v{vT0}, s{sT2}, v{vT1}', f'v_xor_b32 v{vT1}, 64, v{vT0}', f'v_add_u32 v{vT2}, 65536, v{vT0}', f'v_add_u32 v{vT3}, 65536, v{vT1}',
  f'v_lshlrev_b32 v{vF0}, 8, v{vG}', f'v_lshl_add_u32 v{vF0}, v{vI}, 3, v{vF0}', f'v_add_u32 v{vF0}, {R}, v{vF0}',
  f'v_and_b32 v{vF1}, 1, v{vG}', f'v_lshrrev_b32 v{vF2}, 1, v{vG}',
  f's_lshr_b32 s{sT0}, s{sHG}, 2', f's_lshl_b32 s{sC}, s{sRB}, 1', f's_add_u32 s{sT0}, s{sT0}, s{sC}', f's_lshl_b32 s{sT0}, s{sT0}, 11',
  f's_bfe_u32 s{sC}, s{sHG}, 0x10001',
  f's_lshl_b32 s{sT1}, s{sRB}, 3', f's_add_u32 s{sT1}, s{sT1}, s{sHG}', f's_lshl_b32 s{sOslot2}, s{sT1}, 3', f's_add_u32 s{sOslot2}, s{sOslot2}, {hex(WS_FD)}', f's_lshl_b32 s{sT1}, s{sT1}, 6', f's_add_u32 s{sK1}, s{sT1}, {hex(WS_FKV)}')
kd = 16
KF = 88
KF = 96 - 8
def kfr(u): return (96 + 8 * u) if u < 15 else 24
def kv_reads(s):
    a0, a1 = (vT0, vT1) if s < 4 else (vT2, vT3)
    o = (s & 3) * 16384
    x, y = kfr(2*s), kfr(2*s+1)
    E(f's_waitcnt vmcnt({28-4*s})',
      f'ds_read_b128 {vr(x,4)}, v{a0} offset:{o}', f'ds_read_b64_tr_b16 {vr(x+4,2)}, v{vF0} offset:{s*2048}', f'ds_read_b64_tr_b16 {vr(x+6,2)}, v{vF0} offset:{s*2048+128}',
      f'ds_read_b128 {vr(y,4)}, v{a1} offset:{o}', f'ds_read_b64_tr_b16 {vr(y+4,2)}, v{vF0} offset:{s*2048+1024}', f'ds_read_b64_tr_b16 {vr(y+6,2)}, v{vF0} offset:{s*2048+1152}')
for s_ in range(8): kv_reads(s_)
nonce_load()
stamp(2, 'head')
E(f's_bitcmp1_b32 s{sHG}, 0', f's_cselect_b32 s{sWo}, {f32(VSC)}, 1.0', 's_cbranch_scc1 L_kv_v',
  f'v_lshlrev_b32 v{vF1}, 9, v{vF1}', f'v_lshl_add_u32 v{vF1}, v{vF2}, 3, v{vF1}', f's_lshl_b32 s{sC}, s{sC}, 8')
def kv_chain(swap):
    for u in range(16):
        x = kfr(u)
        if u == 0: e('s_waitcnt lgkmcnt(12)')
        if u == 12: e('s_waitcnt lgkmcnt(0)')
        a, b = (vr(x+4,4), vr(x,4))
        if swap: a, b = b, a
        d = kd + 4 * (u & 1)
        e(f'v_mfma_f32_16x16x32_bf16 {vr(d,4)}, {a}, {b}, {"0" if u < 2 else vr(d,4)}')
kv_chain(False)
e('s_branch L_kv_j')
lab('L_kv_v')
E(f'v_lshlrev_b32 v{vF1}, 3, v{vF1}', f'v_lshl_add_u32 v{vF1}, v{vF2}, 8, v{vF1}', f's_lshl_b32 s{sC}, s{sC}, 9', f's_add_u32 s{sC}, s{sC}, 1024')
kv_chain(True)
lab('L_kv_j')
E(f'v_lshl_add_u32 v{vF1}, v{vI}, 4, v{vF1}', f's_add_u32 s{sT0}, s{sT0}, s{sC}', 's_nop 5',
  f'v_pk_add_f32 {vr(kd,2)}, {vr(kd,2)}, {vr(kd+4,2)}', f'v_pk_add_f32 {vr(kd+2,2)}, {vr(kd+2,2)}, {vr(kd+6,2)}',
  f'v_mul_f32 v{kd}, s{sWo}, v{kd}', f'v_mul_f32 v{kd+1}, s{sWo}, v{kd+1}', f'v_mul_f32 v{kd+2}, s{sWo}, v{kd+2}', f'v_mul_f32 v{kd+3}, s{sWo}, v{kd+3}',
  f'v_cvt_pk_bf16_f32 v{vF2}, v{kd}, v{kd+1}', f'v_cvt_pk_bf16_f32 v{vF3}, v{kd+2}, v{kd+3}',
  f'buffer_store_dwordx2 {vr(vF2,2)}, v{vF1}, {sr(S_WS,4)}, s{sT0} offen sc1')
stamp(3, 'head')
lab('L_Yj')
if opt('ytc', 0):
    E(f's_bitcmp1_b32 s{sW}, 1', f's_cselect_b32 s{S_WOA}, s{S_WOB}, s{S_WOA}', f's_cselect_b32 s{S_WOA+1}, s{S_WOB+1}, s{S_WOA+1}',
      f's_mov_b32 s{S_WOA+2}, 0x80000', f's_mov_b32 s{S_WOA+3}, 0x20000',
      f's_lshr_b32 s{sT0}, s2, 3', f's_lshl_b32 s{sT0}, s{sT0}, 1', f's_and_b32 s{sT1}, s{sW}, 1', f's_add_u32 s{sT0}, s{sT0}, s{sT1}', f's_lshl_b32 s{sWoff}, s{sT0}, 13',
      f'v_lshlrev_b32 v{vD0}, 7, v0')
for i in range(1, 32): e(f'v_mov_b32 v{aV+i}, v{aV}')
for j in range(32): e(f'v_mov_b32 v{aOa+j}, 0')
E('s_waitcnt vmcnt(0)', f's_cmp_lg_u32 s{sW}, 7', 's_cbranch_scc1 L_flag_done')
flag_store('kv', f's{sK1}')
stamp(4, 'head')
lab('L_flag_done')
e('s_barrier')
stamp(5, 'head'); stamp(1, 'all', 'x')
EA = opt('ea', 20)
if EA: e('s_barrier')
if opt('psl', 0): e(f's_sleep {opt("psl", 0)}')
poll_check('kv', vPa, ['0'], [vFl], None)
stamp(6, 'head')
E(f's_add_u32 m0, s{sW4k}, {R+16384}', f's_mov_b32 s{sC}, 0')
for j in range(4): dma(vL16, S_WS, f's{sKVo}', 1024*j, ' sc1', None)
E(f's_setprio {opt("yp", 1)}', f's_cmp_lg_u32 s{sW}, 7', 's_waitcnt vmcnt(0)', 's_cbranch_scc1 L_nodense', 's_mov_b64 exec, 1',
  f'buffer_store_dwordx2 {vr(vNon,2)}, v{vZero}, {sr(S_WS,4)}, s{sOslot2} offen sc1', 's_mov_b64 exec, -1')
lab('L_nodense')
stamp(7, 'head'); stamp(2, 'all', 'x')
e('s_barrier')
stamp(8, 'head'); stamp(3, 'all', 'x'); stamp(1, 'tail')
cstamp(10)
E(f'ds_read_b128 {vr(vQa,4)}, v{vQx}', f'ds_read_b128 {vr(vQb,4)}, v{vQx} offset:1024',
  f'ds_read_b128 {vr(aK,4)}, v{vKa}', f'ds_read_b128 {vr(aK+4,4)}, v{vKa} offset:2048', f's_mov_b64 exec, {sr(sVM,2)}')
for j in range(4): e(f'ds_read_b128 {vr(aV+4*j,4)}, v{vVa} offset:{(j>>1)*2048+1024+(j&1)*512}')
E('s_mov_b64 exec, -1', 's_waitcnt lgkmcnt(5)',
  f'v_mfma_f32_32x32x16_bf16 {vr(aSa,16)}, {vr(aK,4)}, {vr(vQa,4)}, 0',
  f'v_mfma_f32_32x32x16_bf16 {vr(aSb,16)}, {vr(aK,4)}, {vr(vQb,4)}, 0', 's_nop 10')
maxtree([aSa+i for i in range(16)], vT0, vT1)
maxtree([aSb+i for i in range(16)], vT2, vT3)
E(f'v_permlane32_swap_b32 v{vT0}, v{vT1}', f'v_max_f32 v{vT0}, v{vT0}, v{vT1}', f'v_permlane32_swap_b32 v{vT2}, v{vT3}',
  f'v_sub_f32 v{aCa}, {f32(-MOFF)}, v{vT0}', f'v_max_f32 v{vT2}, v{vT2}, v{vT3}')
for i in range(1, 16): e(f'v_mov_b32 v{aCa+i}, v{aCa}')
E(f'v_sub_f32 v{aCb}, {f32(-MOFF)}, v{vT2}', f'v_mov_b32 v{aCb+1}, v{aCb}',
  f'v_mfma_f32_32x32x16_bf16 {vr(aSa,16)}, {vr(aK,4)}, {vr(vQa,4)}, {vr(aCa,16)}')
for i in range(2, 16): e(f'v_mov_b32 v{aCb+i}, v{aCb}')
if opt('ytc', 0): e(f'buffer_load_dword v{vD1}, v{vD0}, {sr(S_WOA,4)}, s{sWoff} offen')
E('s_waitcnt lgkmcnt(0)', f'v_exp_f32 v{aSa}, v{aSa}', f'v_exp_f32 v{aSa+1}, v{aSa+1}', 's_branch L_att_entry')

def dtile(par, ld_off, entry=False):
    K = aK + 8 * par; Kn = aK + 8 * (par ^ 1)
    V = aV + 16 * par; Vn = aV + 16 * (par ^ 1)
    def ex(S, a, b):
        for i in range(a, b): e(f'v_exp_f32 v{S+i}, v{S+i}')
    def pv(O, Vr, P): e(f'v_smfmac_f32_32x32x32_bf16 {vr(O,16)}, {vr(Vr,4)}, {vr(P,8)}, v{vIdx}')
    def qk(S, Kr, Q, C): e(f'v_mfma_f32_32x32x16_bf16 {vr(S,16)}, {vr(Kr,4)}, {vr(Q,4)}, {vr(C,16)}')
    ex(aSa, 0, 2); pv(aOb, Vn+12, aSb+8)
    if entry: lab('L_att_entry')
    e(f's_mov_b64 exec, {sr(sVM,2)}')
    for j in range(4): e(f'ds_read_b128 {vr(Vn+4*j,4)}, v{vVa} offset:{ld_off+(j>>1)*2048+1024+(j&1)*512}')
    e('s_mov_b64 exec, -1')
    ex(aSa, 2, 5); qk(aSb, K, vQb, aCb)
    E(f'ds_read_b128 {vr(Kn,4)}, v{vKa} offset:{ld_off}', f'ds_read_b128 {vr(Kn+4,4)}, v{vKa} offset:{ld_off+2048}')
    ex(aSa, 5, 10); pv(aOa, V, aSa); ex(aSa, 10, 16)
    ex(aSb, 0, 2); pv(aOa, V+4, aSa+8); ex(aSb, 2, 5); qk(aSa, K+4, vQa, aCa); ex(aSb, 5, 10); pv(aOb, V, aSb); ex(aSb, 10, 16)
    ex(aSa, 0, 2); pv(aOb, V+4, aSb+8); ex(aSa, 2, 5); qk(aSb, K+4, vQb, aCb); ex(aSa, 5, 10); pv(aOa, V+8, aSa); ex(aSa, 10, 16)
    ex(aSb, 0, 2); pv(aOa, V+12, aSa+8); e('s_waitcnt lgkmcnt(0)'); ex(aSb, 2, 5); qk(aSa, Kn, vQa, aCa); ex(aSb, 5, 10); pv(aOb, V+8, aSb); ex(aSb, 10, 16)

e('.p2align 6')
lab('L_att_top')
E(f'v_xor_b32 v{vKa}, 16384, v{vKa}', f'v_xor_b32 v{vVa}, 16384, v{vVa}', f's_cmp_eq_u32 s{sC}, 8', 's_barrier')
dtile(1, 0)
e('s_cbranch_scc1 L_att_done')
dtile(0, 4096, entry=True)
e('s_barrier')
dtile(1, 8192)
dtile(0, 12288)
E(f's_add_u32 s{sC}, s{sC}, 1', 's_branch L_att_top')
NBAR_Y = NBAR[0] - 2 + 16
lab('L_att_done')
E(f'ds_read_b32 v{vFl}, v{vKa}', f'v_smfmac_f32_32x32x32_bf16 {vr(aOb,16)}, {vr(aV+16+12,4)}, {vr(aSb+8,8)}, v{vIdx}')
stamp(4, 'all'); stamp(2, 'tail')
cstamp(11)
def chk(O, t):
    E(f'v_maximum3_f32 v{t}, abs(v{O}), abs(v{O+1}), abs(v{O+2})', f'v_maximum3_f32 v{t}, v{t}, abs(v{O+3}), abs(v{O+4})',
      f'v_maximum3_f32 v{t}, v{t}, abs(v{O+5}), abs(v{O+6})', f'v_maximum3_f32 v{t}, v{t}, abs(v{O+7}), v{O+8}')
def fin(O, t, d):
    for i in range(0, 8, 2): e(f'v_pk_mul_f32 {vr(d+4+i,2)}, {vr(O+i,2)}, {vr(t,2)} op_sel_hi:[1,0]')
    for i in range(4): e(f'v_cvt_pk_bf16_f32 v{d+i}, v{d+4+2*i}, v{d+4+2*i+1}')
lab('L_att_fin')
PADON[0] = opt('pad', 0); PADCNT[0] = 1000
E(f'v_rcp_f32 v{vT0}, v{aOa+8}', f's_mov_b32 s{sT0}, 0x7e000000')
chk(aOa, vT1)
fin(aOa, vT0, 16)
E(f'v_rcp_f32 v{vT2}, v{aOb+8}', 's_waitcnt lgkmcnt(0)', f'v_readfirstlane_b32 s{sT1}, v{vFl}')
chk(aOb, vT3)
fin(aOb, vT2, 28)
E(f'v_maximum3_f32 v{vT1}, v{vT1}, v{vT3}, v{vT3}', f'v_cmp_nle_f32 vcc, v{vT1}, s{sT0}'.replace('vcc, v', 'vcc, v'), f's_cmp_eq_u32 s{sT1}, 1', 's_cbranch_vccnz L_fallback')
lab('L_att_ok')
E('s_cbranch_scc0 L_st_slow',
  f'buffer_store_dwordx4 {vr(16,4)}, v{vL16}, {sr(S_WS,4)}, s{sOslot} offen',
  f'buffer_store_dwordx4 {vr(28,4)}, v{vL16}, {sr(S_WS,4)}, s{sOslot} offen offset:1024')
lab('L_st_j')
stamp(3, 'tail')
w_reads()
e(f's_mov_b32 s{sSpin}, {SPIN//10}')
if opt('tslp', 0): e(f's_sleep {opt("tslp", 0)}')
stamp(4, 'tail')
NPRE = opt('npre', 2)
o_loads(None, range(NPRE))
e(f's_mov_b32 s{sC}, 2')

cm('================ tail: out projections (X: branch A, Y: branch B) ================')
lab('L_tail_go')
e('s_waitcnt lgkmcnt(0)')
for g in range(4):
    rt = g >> 1
    b_ = oOf + 16 * g
    e(f's_waitcnt vmcnt({4*(min(4, NPRE+g)-g-1)})')
    lab(f'L_tg{g}')
    E(f'v_max3_u32 v{vT0}, v{b_}, v{b_+1}, v{b_+2}', f'v_max3_u32 v{vT1}, v{b_+3}, v{b_+4}, v{b_+5}')
    for k in range(6, 16, 2):
        t = vT0 if (k >> 1) & 1 else vT1
        e(f'v_max3_u32 v{t}, v{t}, v{b_+k}, v{b_+k+1}')
    E(f'v_max_u32 v{vT0}, v{vT0}, v{vT1}', f'v_cmp_eq_u32 vcc, -1, v{vT0}', f's_cbranch_vccnz L_tr{g}')
    lab(f'L_tk{g}')
    if g == 0: stamp(5, 'tail', 'all')
    if NPRE + g < 4: o_loads(None, [NPRE + g])
    if g == 2: e('s_barrier')
    order = [(s_, ct) for s_ in range(4*(g&1), 4*(g&1)+4) for ct in range(2)]
    if g == 3: order = sorted(order, key=lambda z: z[1])
    for m_, (s_, ct) in enumerate(order):
        a_ = oAcc + 32 * rt + 16 * ct
        e(f'v_mfma_f32_32x32x16_bf16 {vr(a_,16)}, {vr(oW+8*s_+4*ct,4)}, {vr(oOf+32*rt+4*s_,4)}, {"0" if s_ == 0 else vr(a_,16)}')
        if g == 2:
            e(f'ds_write_b128 v{80+m_ if m_ else vTp}, {vr(oAcc+4*m_,4)}')
e('s_nop 7')
PADON[0] = False
lab('L_tail_wr')
stamp(6, 'tail')
for q in range(8):
    e(f'ds_write_b128 v{80+q if q else vTp}, {vr(oAcc+32+4*q,4)} offset:8192')
E('s_waitcnt lgkmcnt(0)', 's_barrier')
stamp(7, 'tail')
lab('L_red')
tR = 96
for kq in range(4):
    E(f'ds_read_b128 {vr(tR+8*kq,4)}, v{vTr0} offset:{kq*16384}', f'ds_read_b128 {vr(tR+8*kq+4,4)}, v88 offset:{kq*16384}')
e('s_waitcnt lgkmcnt(4)')
for i in range(0, 8, 2): e(f'v_pk_add_f32 {vr(tR+i,2)}, {vr(tR+i,2)}, {vr(tR+8+i,2)}')
e('s_waitcnt lgkmcnt(0)')
for a_, b_ in ((16, 24), (0, 16)):
    for i in range(0, 8, 2): e(f'v_pk_add_f32 {vr(tR+a_+i,2)}, {vr(tR+a_+i,2)}, {vr(tR+b_+i,2)}')
for i in range(4): e(f'v_cvt_pk_bf16_f32 v{16+i}, v{tR+2*i}, v{tR+2*i+1}')
e(f'buffer_store_dwordx4 {vr(16,4)}, v{vTo}, {sr(S_OUT,4)}, s{sOutOff} offen{opt("of", "_nt").replace("_", " ")}')
E(f's_cmp_eq_u32 s{sC}, 2', 's_cbranch_scc1 L_fin',
  f's_add_u32 s{sC}, s{sC}, 1', f's_cmp_eq_u32 s{sC}, 1', f's_cselect_b32 s{sT0}, 1, 8', f's_cselect_b32 s{sT1}, 64, 1', f's_lshl_b32 s{sT1}, s{sT1}, 10', f's_lshl_b32 s{sT0}, s{sT0}, 13',
  f'v_add_u32 v{vTr0}, s{sT0}, v{vTr0}', f'v_add_u32 v88, s{sT0}, v88', f's_add_u32 s{sOutOff}, s{sOutOff}, s{sT1}',
  f's_cmp_eq_u32 s{sC}, 1', 's_cbranch_scc1 L_red', 's_barrier', 's_branch L_red')
lab('L_fin')
if STAMPS:
    stamp(8, 'tail')
    e('s_waitcnt vmcnt(0)')
    stamp(9, 'tail', 'head'); stamp(6, 'all')
    E('s_waitcnt lgkmcnt(0)', 's_nop 1')
    ECHO = [a[7:] for a in sys.argv if a.startswith('--echo=')]
    if ECHO:
        a_, b_, mul = map(int, ECHO[0].split(','))
        E(f's_sub_u32 s{sT0}, s{sST+2*b_}, s{sST+2*a_}', f's_mul_i32 s{sT0}, s{sT0}, {mul}')
        if opt('ehg', -1) >= 0:
            E(f's_cmp_eq_u32 s{sHG}, {opt("ehg", -1)}', f's_cselect_b32 s{sT0}, s{sT0}, 0', f's_cmp_ge_u32 s{sW}, 4', f's_cselect_b32 s{sT0}, s{sT0}, 0')
        lab('L_echo')
        E(f's_memrealtime {sr(4,2)}', 's_waitcnt lgkmcnt(0)', f's_sub_u32 s{sT1}, s4, s{sST+12}', f's_cmp_lt_u32 s{sT1}, s{sT0}', 's_cbranch_scc1 L_echo')
    for i in range(12): e(f'v_mov_b32 v{16+i}, s{sST+2*i}')
    E(f's_getreg_b32 s{sT0}, hwreg(HW_REG_XCC_ID)', f'v_mov_b32 v28, s{sT0}', f'v_mov_b32 v29, s{sSpin}', f'v_mov_b32 v30, s{sFB}', 'v_mov_b32 v31, 0',
      f's_lshl_b32 s{sT0}, s2, 3', f's_add_u32 s{sT0}, s{sT0}, s{sW}', f's_lshl_b32 s{sT0}, s{sT0}, 6', f's_add_u32 s{sT0}, s{sT0}, {hex(WS_STAMP)}',
      'v_mov_b32 v0, 0', 's_mov_b64 exec, 1')
    for i in range(4):
        e(f'buffer_store_dwordx4 {vr(16+4*i,4)}, v0, {sr(S_WS,4)}, s{sT0} offen offset:{16*i}')
lab('L_end')
e('s_endpgm')

cm('================ X program (waves 0-3) ================')
VMQ[:] = []; NBAR[0] = 0
xAcc, xFr, xMask = 96, 160, 32
xa, xb, xw = 56, 60, 64
(xFw, xLq, xLv, xLvp, xOne) = (72, 73, 74, 75, 76)
XV, XM, PACE = opt('xv', 2), opt('xm', 0), opt('pace', 2)
e('.p2align 6')
lab('L_X')
srd(S_WQ, 0x80000); srd(S_XA, 0x200000); srd(S_WQKV, 0x180000)
E(f's_or_b32 s{sT1}, s2, s{sW}', 's_cbranch_scc1 L_nonon', 's_waitcnt lgkmcnt(0)',
  f's_lshl_b64 {sr(sNon,2)}, {sr(sNon,2)}, 5', f's_or_b32 s{sNon}, s{sNon}, 1', f'v_mov_b32 v{vNon}, s{sNon}', f'v_mov_b32 v{vNon+1}, s{sNon+1}', 's_mov_b64 exec, 1',
  f'global_store_dwordx2 v{vZero}, {vr(vNon,2)}, {sr(S_DBG,2)} sc1', 's_mov_b64 exec, -1')
lab('L_nonon')
E(f'v_and_b32 v{vT3}, 1, v{vG}', f'v_lshlrev_b32 v{vT3}, 2, v{vT3}', f'v_xor_b32 v{vT3}, v{vT3}, v{vT2}', f'v_lshlrev_b32 v{vT3}, 4, v{vT3}',
  f'v_lshl_add_u32 v{vW}, v{vT1}, 10, v{vT3}', f'v_add_u32 v{vW2}, {8192-1024}, v{vW}',
  f'v_mul_u32_u24 v{vWA}, 3072, v{vT1}', f'v_add_u32 v{vWA}, v{vWA}, v{vT3}')
lane_setup()
SH4 = ['0', f's{sVM}', f's{sVM+1}', f's{sC}']; RG4 = [82, 84, 86, 88]
qx, qw = 56, 64
E(f'v_bfe_u32 v{vXx}, v{vN}, 1, 3', f'v_xor_b32 v{vXx}, v{vXx}, v{vH}', f'v_lshlrev_b32 v{vXx}, 4, v{vXx}',
  f's_and_b32 s{sF0}, s{sW}, 1', f's_lshl_b32 s{sF0}, s{sF0}, 12', f'v_lshl_add_u32 v{qx}, v{vN}, 7, v{vXx}', f'v_add_u32 v{qx}, s{sF0}, v{qx}',
  f'v_xor_b32 v{qx+1}, 32, v{qx}', f'v_xor_b32 v{qx+2}, 64, v{qx}', f'v_xor_b32 v{qx+3}, 96, v{qx}',
  f's_and_b32 s{sF2}, s{sW}, 2', f's_lshl_b32 s{sF2}, s{sF2}, 5', f'v_xor_b32 v{qw}, s{sF2}, v{vWl}', f'v_add_u32 v{qw}, 8192, v{qw}', f'v_add_u32 v{qw+1}, 65536, v{qw}',
  f's_mov_b32 s{sCS}, {f32(CSCALE)}')
for j in range(4): e(f'v_add_u32 v{qx+4+j}, 65536, v{qx+j}')
AR = opt('arot', 0)
if AR == 1: E(f's_add_u32 s{sXo}, s{sRot}, s{sHG}', f's_and_b32 s{sXo}, s{sXo}, 7', f's_lshl_b32 s{sXo}, s{sXo}, 7')
elif AR == 2: E(f's_lshr_b32 s{sXo}, s{sRB}, 2', f's_lshl_b32 s{sXo}, s{sXo}, 7')
elif AR == 3: E(f's_lshr_b32 s{sXo}, s{sRB}, 2', f's_lshl_b32 s{sT0}, s{sRB}, 2', f's_add_u32 s{sXo}, s{sXo}, s{sT0}', f's_and_b32 s{sXo}, s{sXo}, 7', f's_lshl_b32 s{sXo}, s{sXo}, 7')
elif AR == 4: E(f's_and_b32 s{sXo}, s{sRB}, 1', f's_lshl_b32 s{sXo}, s{sXo}, 9')
else: e(f's_mov_b32 s{sXo}, 0')
E(f's_lshl_b32 s{sW2k}, s{sW}, 11',
  f's_lshl_b32 s{sT3}, s{sRB}, 2', f's_add_u32 s{sT0}, s{sT3}, s{sW}', f's_lshl_b32 s{sT0}, s{sT0}, 14', f'v_add_u32 v{vXA}, s{sT0}, v{vP0}', f'v_add_u32 v{vXA2}, s{sT0}, v{vP1}',
  f's_mul_i32 s{sT0}, s{sW}, {16*3072}', f's_add_u32 s{sT0}, s{sT0}, s{sHG128}', f'v_add_u32 v{vWA}, s{sT0}, v{vWA}', f'v_add_u32 v{vWA2}, {8*3072-1024}, v{vWA}')
def w64(srd_, lds_base_sgpr, lds, tag):
    for hf in range(2):
        E(f's_add_u32 m0, s{lds_base_sgpr}, {lds+hf*4096}', f's_add_u32 s{sT1}, s{sT0}, {2*7168}')
        dma(vW, srd_, f's{sT0}', 0, '', tag); dma(vW2, srd_, f's{sT0}', 1024, '', tag)
        dma(vW, srd_, f's{sT1}', 2048, '', tag); dma(vW2, srd_, f's{sT1}', 3072, '', tag)
        if hf == 0: e(f's_add_u32 s{sT0}, s{sT0}, 32768')
vTc = 68
def touch_setup():
    E(f's_lshr_b32 s{sT0}, s2, 3', f's_lshl_b32 s{sT0}, s{sT0}, 2', f's_add_u32 s{sT0}, s{sT0}, s{sW}',
      f's_mul_i32 s{sT1}, s{sT0}, {12*128}', f'v_mul_u32_u24 v{vTc}, {196608}, v{vG}', f'v_lshl_add_u32 v{vTc}, v{vI}, 7, v{vTc}', f'v_add_u32 v{vTc}, s{sT1}, v{vTc}',
      f's_lshl_b32 s{sT1}, s{sT0}, 12', f'v_lshlrev_b32 v{vTc+1}, 7, v{vN}', f'v_add_u32 v{vTc+1}, s{sT1}, v{vTc+1}',
      f's_lshl_b32 s{sT1}, s{sHG}, 2', f's_add_u32 s{sT1}, s{sT1}, s{sW}', f's_lshl_b32 s{sT1}, s{sT1}, 11', f's_lshl_b32 s{sT2}, s{sRB}, 16', f's_add_u32 s{sT1}, s{sT1}, s{sT2}',
      f'v_lshlrev_b32 v{vTc+2}, 7, v{vI}', f'v_add_u32 v{vTc+2}, s{sT1}, v{vTc+2}')
def touch_w(j):
    E(f's_mov_b32 s{sT0}, {j*4*196608}', 's_mov_b32 exec_lo, 0x0fff0fff', 's_mov_b32 exec_hi, 0x0fff0fff')
    e(f'buffer_load_dword v{vTc+3}, v{vTc}, {sr(S_WQKV,4)}, s{sT0} offen', 'tc')
    e('s_mov_b64 exec, -1')
def touch_x():
    e('s_mov_b64 exec, 0xffff')
    e(f'buffer_load_dword v{vTc+3}, v{vTc+2}, {sr(S_XA,4)}, 0 offen{NT}', 'tc')
    e('s_mov_b64 exec, -1')
def touch_wo(srd_):
    e('s_mov_b32 exec_hi, 0')
    e(f'buffer_load_dword v{vTc+3}, v{vTc+1}, {sr(srd_,4)}, 0 offen', 'tc')
    e('s_mov_b64 exec, -1')
TC = opt('tc', 0)
def halo_fill():
    E(f's_lshl_b32 s{sT3}, s{sRB}, 16', f's_sub_u32 s{sT2}, s{sT3}, 16384', f's_max_i32 s{sT2}, s{sT2}, 0',
      f's_lshl_b32 s{sT0}, s{sW}, 7', f's_add_u32 s{sT0}, s{sT0}, s{sStepH}')
    for j in range(2):
        E(f's_and_b32 s{sT0}, s{sT0}, 1023', f's_add_u32 m0, s{sW2k}, {HALO+j*8192}', f's_add_u32 s{sT1}, s{sT2}, s{sT0}')
        dma(vP0, S_XA, f's{sT1}', 0, '', 'halo'); dma(vP1, S_XA, f's{sT1}', 1024, '', 'halo')
        if j == 0: e(f's_add_u32 s{sT0}, s{sT0}, 512')
def a_fill(c):
    slot = (c & 3) * SLOT
    t = f'A{c}'
    E(f's_add_u32 m0, s{sW2k}, {slot}', f's_mul_i32 s{sWo}, s{sXo}, 1536')
    dma(vXA, S_XA, f's{sXo}', 0, NT, t); dma(vXA2, S_XA, f's{sXo}', 1024, NT, t)
    for ty in range(3):
        E(f's_add_u32 m0, s{sW2k}, {slot+8192+ty*8192}', [f's_add_u32 s{sXo}, s{sXo}, 128', f's_add_u32 s{sWo}, s{sWo}, 1024', f's_add_u32 s{sWo}, s{sWo}, 1024'][ty])
        dma(vWA, S_WQKV, f's{sWo}', 0, WNT, t); dma(vWA2, S_WQKV, f's{sWo}', 1024, WNT, t)
    e(f's_and_b32 s{sXo}, s{sXo}, 1023')
def kv_fill(k):
    E(f's_add_u32 m0, s{sW4k}, {R+((k&1)^1)*16384}', f's_and_b32 s{sKVo}, s{sKVo}, 0x1ffff')
    for j in range(4): dma(vL16, S_WS, f's{sKVo}', 1024*j, ' sc1', f'KV{k}')
    e(f's_add_u32 s{sKVo}, s{sKVo}, 16384')
def wo_fill(srd_, half, lds, tag):
    e(f's_add_u32 s{sT0}, s{sWoff}, {half*256*1024}')
    if opt('worot', 1): e(f's_and_b32 s{sT0}, s{sT0}, 0x7ffff')
    w64(srd_, sW8k, lds, tag)
def masks():
    E(f'v_lshlrev_b32 v{vT0}, 2, v{vH}', f'v_sub_u32 v{vT0}, v{vN}, v{vT0}', f'v_add_u32 v{vT0}, 18, v{vT0}',
      f'v_mov_b32 v{vT2}, 0x5555', f'v_mov_b32 v{vT3}, 0', f'v_lshlrev_b64 {vr(vT2,2)}, v{vT0}, {vr(vT2,2)}',
      f'v_not_b32 v{vT2}, v{vT2}', f'v_not_b32 v{vT3}, v{vT3}', f's_mov_b32 s{sF1}, 0xff800000')
    for r in range(16): E(f'v_bfe_i32 v{xMask+r}, v{vT3}, {8*(r>>2)+(r&3)}, 1', f'v_and_b32 v{xMask+r}, s{sF1}, v{xMask+r}')
    for r in range(8, 16): E(f'v_bfe_i32 v{xMask+8+r}, v{vT2}, {8*(r>>2)+(r&3)}, 1', f'v_and_b32 v{xMask+8+r}, s{sF1}, v{xMask+8+r}')
def local_setup():
    E(f's_and_b32 s{sT0}, s{sW}, 1', f's_lshl_b32 s{sT0}, s{sT0}, 12', f's_lshr_b32 s{sT1}, s{sW}, 1', f's_lshl_b32 s{sT2}, s{sT1}, 11', f's_add_u32 s{sT0}, s{sT0}, s{sT2}', f's_add_u32 s{sT0}, s{sT0}, {SC}', f'v_add_u32 v{xFw}, s{sT0}, v{vL16}',
      f's_lshl_b32 s{sT0}, s{sRB}, 3', f's_add_u32 s{sT0}, s{sT0}, s{sHG}', f's_lshl_b32 s{sStepA}, s{sT0}, 13', f's_add_u32 s{sStepA}, s{sStepA}, s{sT2}', f's_add_u32 s{sStepA}, s{sStepA}, {hex(WS_HX)}',
      f's_lshl_b32 s{sStepB}, s{sT0}, 1', f's_add_u32 s{sStepB}, s{sStepB}, s{sT1}', f's_lshl_b32 s{sStepB}, s{sStepB}, 6', f's_add_u32 s{sStepB}, s{sStepB}, {hex(WS_FHX)}',
      f's_cmp_eq_u32 s{sRB}, 0', f's_cselect_b32 s{sT2}, 0, 8', f's_sub_u32 s{sT0}, s{sT0}, s{sT2}', f's_lshl_b32 s{sT2}, s{sT2}, 7', f's_sub_u32 s{sT2}, s{sStepB}, s{sT2}', f'v_mov_b32 v{vB1}, s{sT2}',
      f's_lshl_b32 s{sStepH}, s{sT0}, 13', f's_lshl_b32 s{sT2}, s{sW}, 10', f's_add_u32 s{sStepH}, s{sStepH}, s{sT2}', f's_add_u32 s{sStepH}, s{sStepH}, {hex(WS_HX)}',
      f'v_mov_b32 v{xOne}, 0x3f803f80', f'v_mov_b32 v{xOne+1}, 0x3f803f80',
      f's_lshl_b32 s{sT1}, s{sW}, 10', f's_add_u32 s{sT2}, s{sT1}, {ONES}', f's_add_u32 s{sT1}, s{sT1}, {SC}', f'v_add_u32 v{xLq}, s{sT1}, v{vL16}',
      f'v_and_b32 v{vT0}, 1, v0', f'v_lshlrev_b32 v{vT0}, 5, v{vT0}', f'v_lshl_add_u32 v{vT0}, v{vH}, 3, v{vT0}',
      f'v_lshrrev_b32 v{vT1}, 2, v{vI}', f'v_add_u32 v{vT0}, v{vT0}, v{vT1}', f'v_lshlrev_b32 v{vT0}, 4, v{vT0}', f'v_and_b32 v{vT1}, 2, v0', f'v_lshl_add_u32 v{vT0}, v{vT1}, 2, v{vT0}',
      f'v_add_u32 v{xLv}, s{sT1}, v{vT0}', f'v_mov_b32 v{xLvp}, s{sT2}', f'v_lshl_add_u32 v{vOw}, v0, 3, v{xLvp}',
      f'v_and_b32 v{vT0}, 16, v0', f'v_cmp_ne_u32 vcc, 0, v{vT0}',
      f'v_add_u32 v78, {4*4096}, v{xLv}', f'v_add_u32 v79, {5*4096}, v{xLv}', f'v_add_u32 v80, {7*4096}, v{xLv}',
      f'v_cndmask_b32 v78, v78, v{xLvp}, vcc', f'v_cndmask_b32 v79, v79, v{xLvp}, vcc', f'v_cndmask_b32 v80, v80, v{xLvp}, vcc',
      f's_lshl_b32 s{sT0}, s{sRB}, 6', f's_lshl_b32 s{sT1}, s{sHG}, 2', f's_add_u32 s{sT1}, s{sT1}, s{sW}', f's_add_u32 s{sT0}, s{sT0}, s{sT1}',
      f's_lshl_b32 s{sT0}, s{sT0}, 10', f's_add_u32 s{sOslot}, s{sT0}, {hex(WS_OA)}', f's_add_u32 s{sOslot2}, s{sOslot}, 32768',
      f's_lshl_b32 s{sT0}, s{sRB}, 5', f's_add_u32 s{sT0}, s{sT0}, s{sT1}', f's_lshl_b32 s{sT0}, s{sT0}, 6', f's_add_u32 s{sK1}, s{sT0}, {hex(WS_FOA)}')
    for i in range(4): e(f'v_mov_b32 v{vF0+i}, -1')
def sentinels():
    E(f's_add_u32 s{sT0}, s{sOslot}, {hex(WS_OB-WS_OA)}', f's_add_u32 s{sT1}, s{sT0}, 32768')
    e(f'buffer_store_dwordx4 {vr(vF0,4)}, v{vL16}, {sr(S_WS,4)}, s{sT0} offen sc1', 'sent')
    e(f'buffer_store_dwordx4 {vr(vF0,4)}, v{vL16}, {sr(S_WS,4)}, s{sT1} offen sc1', 'sent')
    nonce_load('sent')
def setup_a():
    E(f's_cmp_eq_u32 s{sW}, 3', f's_cselect_b32 s{sT1}, 15, 31', f'v_and_b32 v{vT0}, s{sT1}, v{vN}', f'v_lshl_add_u32 v{xa}, v{vT0}, 7, v{vXx}',
      f's_cselect_b32 s{sT1}, {HALO}, 0', f'v_add_u32 v{xa}, s{sT1}, v{xa}', f's_cselect_b32 s{sT1}, 0, 4096', f'v_add_u32 v{xb}, s{sT1}, v{xa}',
      f's_cselect_b32 s{sStepA}, 1, 16', f's_cselect_b32 s{sStepB}, 1, -32', f's_cselect_b32 s{sT1}, 1, s{sW}', f's_cselect_b32 s{sT2}, 2, s{sW}',
      f's_lshl_b32 s{sStepA}, s{sStepA}, 11', f's_lshl_b32 s{sStepB}, s{sStepB}, 11',
      f's_lshl_b32 s{sT1}, s{sT1}, 13', f's_add_u32 s{sT1}, s{sT1}, 8192', f'v_add_u32 v{xw}, s{sT1}, v{vWl}', f'v_xor_b32 v{xw+1}, 64, v{xw}',
      f's_lshl_b32 s{sT2}, s{sT2}, 13', f's_add_u32 s{sT2}, s{sT2}, 8192', f'v_add_u32 v{xw+2}, s{sT2}, v{vWl}', f'v_xor_b32 v{xw+3}, 64, v{xw+2}')
    for j in range(4): e(f'v_add_u32 v{xw+4+j}, 65536, v{xw+j}')
    for s_ in range(1, 4): E(f'v_xor_b32 v{xa+s_}, {32*s_}, v{xa}', f'v_xor_b32 v{xb+s_}, {32*s_}, v{xb}')
def setup_b():
    E(f's_lshr_b32 s{sT1}, s{sRB}, 2', f's_lshl_b32 s{sKVo}, s{sT1}, 14', f's_add_u32 s{sKVo}, s{sKVo}, s{sW4k}', f's_add_u32 s{sKVo}, s{sKVo}, 16384',
      f'v_lshlrev_b32 v{vPa}, 3, v0', f'v_add_u32 v{vPa}, {hex(WS_FD)}, v{vPa}',
      f'v_lshlrev_b32 v{vPa2}, 6, v{vN}', f's_lshl_b32 s{sT2}, s{sRB}, 11', f's_add_u32 s{sT2}, s{sT2}, {hex(WS_FOA)}', f'v_add_u32 v{vPa2}, s{sT2}, v{vPa2}',
      f's_add_u32 s{sT2}, s{sT1}, 1', f's_lshl_b32 s{sT2}, s{sT2}, 5', f'v_add_u32 v{vB0}, s{sT2}, v0', f'v_and_b32 v{vB0}, 255, v{vB0}',
      f'v_lshlrev_b32 v{vB0}, 6, v{vB0}', f'v_add_u32 v{vB0}, {hex(WS_FKV)}, v{vB0}',
      f's_mov_b32 s{sVM}, 512', f's_mov_b32 s{sVM+1}, 1024', f's_mov_b32 s{sC}, 1536',
      f's_lshl_b32 s{sW8k}, s{sW}, 13', f's_lshl_b32 s{sWoff}, s{sW}, 16', f's_add_u32 s{sWoff}, s{sWoff}, s{sHG128}')
    if opt('worot', 1): E(f's_lshl_b32 s{sT2}, s{sRB}, 17', f's_add_u32 s{sWoff}, s{sWoff}, s{sT2}')
    srd(S_WOA, 0x80000); srd(S_WOB, 0x80000)
    E(f's_getreg_b32 s{sXcc}, hwreg(HW_REG_XCC_ID, 0, 4)', f's_lshl_b32 s{sXcc}, s{sXcc}, 1')
setup_b()
E(f's_add_u32 s{sT0}, s{sW}, s{sRot}', f's_lshl_b32 s{sT0}, s{sT0}, 16', f's_add_u32 s{sT0}, s{sT0}, s{sHG128}', f's_lshl_b32 s{sT2}, s{sW}, 14',
  f's_and_b32 s{sT0}, s{sT0}, 0x7ffff', 's_waitcnt lgkmcnt(0)', 's_barrier')
w64(S_WQ, sT2, 8192, 'B')
E(f's_add_u32 s{sT0}, s{sT0}, {4*65536-32768}', f's_and_b32 s{sT0}, s{sT0}, 0x7ffff')
w64(S_WQ, sT2, 65536+8192, 'B')
stamp(1, 'head')
local_setup(); tail_setup(); masks()
if TC: touch_setup()
for j in range(16): e(f'v_mov_b32 v{208+j}, 0')
E('s_waitcnt vmcnt(0)', 's_barrier')
stamp(5, 'head'); stamp(1, 'all', 'x')
def qrd(u):
    sc, st = u >> 2, u & 3
    x = vFr + 8 * (u % 8)
    hi = sc >> 2
    o = (sc & 3) * 16384
    E(f'ds_read_b128 {vr(x,4)}, v{qx+4*hi+st} offset:{o}',
      f'ds_read_b64_tr_b16 {vr(x+4,2)}, v{qw+hi} offset:{o+st*2048}', f'ds_read_b64_tr_b16 {vr(x+6,2)}, v{qw+hi} offset:{o+st*2048+512}')
for u in range(5): qrd(u)
if TC & 8: touch_x(); touch_w(0)
for u in range(32):
    x = vFr + 8 * (u % 8)
    issued = min(32, 5 + u)
    e(f's_waitcnt lgkmcnt({3*(issued-u-1)})')
    e(f'v_mfma_f32_32x32x16_bf16 {vr(vQacc,16)}, {vr(x+4,4)}, {vr(x,4)}, {"0" if u == 0 else vr(vQacc,16)}')
    if 5 + u < 32: qrd(5 + u)
    if EA and u == 7: e('s_barrier')
    if EA and u == EA: a_fill(0)
E(f's_cmp_lg_u32 s{sW}, 0', 's_cbranch_scc1 L_np2')
poll_issue(vB0, ['0'], [vFl])
lab('L_np2')
e('s_nop 9')
stamp(6, 'head')
for j in range(16): e(f'v_mul_f32 v{vQacc+j}, s{sCS}, v{vQacc+j}')
for j in range(8): e(f'v_cvt_pk_bf16_f32 v{vQacc+j}, v{vQacc+2*j}, v{vQacc+2*j+1}')
E(f'ds_write_b128 v{vQx}, {vr(vQacc,4)}', f'ds_write_b128 v{vQx}, {vr(vQacc+4,4)} offset:1024',
  f's_setprio {XV}', 's_waitcnt lgkmcnt(0)')
stamp(7, 'head'); stamp(2, 'all', 'x')
e('s_barrier')
for j in range(16): e(f'v_mov_b32 v{16+j}, 0')
stamp(8, 'head'); stamp(3, 'all', 'x')

def a_chunk(cs, side=()):
    side = list(side)
    seq = []
    u = 0
    for c in cs:
        hi, base = (c >> 1) & 1, (c & 1) * SLOT
        for s in range(4):
            x = xFr + 16 * (u % 3); u += 1
            for ty in range(3):
                r = [f'ds_read_b128 {vr(x,4)}, v{qx+4*hi+s} offset:{base}'] if ty == 0 else []
                o = base + ty * 8192 + s * 2048
                r += [f'ds_read_b64_tr_b16 {vr(x+4+4*ty,2)}, v{qw+hi} offset:{o}', f'ds_read_b64_tr_b16 {vr(x+6+4*ty,2)}, v{qw+hi} offset:{o+512}']
                a = xAcc + 16 * ty
                seq.append((r, f'v_mfma_f32_32x32x16_bf16 {vr(a,16)}, {vr(x+4+4*ty,4)}, {vr(x,4)}, {"0" if (c == 0 and s == 0) else vr(a,16)}'))
    if XM != XV: e(f's_setprio {XM}')
    LA = opt('la', 1)
    for k_ in range(LA): E(*seq[k_][0])
    for k_, (r, m) in enumerate(seq):
        if k_ + LA < len(seq): E(*seq[k_+LA][0])
        e(f's_waitcnt lgkmcnt({sum(len(seq[j][0]) for j in range(k_+1, min(len(seq), k_+LA+1)))})')
        e(m)
        take = -(-len(side) // (len(seq) - k_))
        for g in side[:take]:
            for s_, t_ in g: e(s_, t_)
        side = side[take:]
    if XM != XV: e(f's_setprio {XV}')
def write_frags():
    e('s_nop 6')
    for ty in range(3):
        for hd in range(2):
            a = xAcc + 16 * ty + 8 * hd
            for i in range(4): e(f'v_cvt_pk_bf16_f32 v{a+i}, v{a+2*i}, v{a+2*i+1}')
            e(f'ds_write_b128 v{xFw}, {vr(a,4)} offset:{ty*8192+hd*1024}')
    E(f's_bitcmp1_b32 s{sW}, 0', 's_cbranch_scc0 L_nopub', f's_add_u32 s{sT0}, s{sStepA}, 4096',
      f'buffer_store_dwordx4 {vr(xAcc+16,4)}, v{vL16}, {sr(S_WS,4)}, s{sStepA} offen sc1',
      f'buffer_store_dwordx4 {vr(xAcc+24,4)}, v{vL16}, {sr(S_WS,4)}, s{sStepA} offen offset:1024 sc1',
      f'buffer_store_dwordx4 {vr(xAcc+32,4)}, v{vL16}, {sr(S_WS,4)}, s{sT0} offen sc1',
      f'buffer_store_dwordx4 {vr(xAcc+40,4)}, v{vL16}, {sr(S_WS,4)}, s{sT0} offen offset:1024 sc1')
    lab('L_nopub')
PUB = [0]
def halo_flag():
    E(f's_bitcmp1_b32 s{sW}, 0', 's_cbranch_scc0 L_nohf')
    flag_store('hx', f's{sStepB}', f's_waitcnt vmcnt({len(VMQ)-PUB[0]})')
    lab('L_nohf')
def halo_get():
    poll_check('hx', vB1, ['0'], [vFl], None)
    E(f's_lshl_b32 s{sT0}, s{sW}, 10', f's_add_u32 m0, s{sT0}, {SC+6*4096}', f's_add_u32 s{sT1}, s{sStepH}, 4096')
    dma(vL16, S_WS, f's{sStepH}', 0, ' sc1', 'hx')
    E(f's_add_u32 m0, s{sT0}, {SC+7*4096}', 's_nop 0')
    dma(vL16, S_WS, f's{sT1}', 0, ' sc1', 'hx')
def local_task(t):
    lq, lk, lp, lv = xFr, xFr+4, xFr+8, xFr+12
    lS, lP, lO = xAcc, xAcc+16, (16 if t else 208)
    kp = 6 if t == 0 else 2
    vc, vp = (78, 80) if t == 0 else (79, 78)
    E(f'ds_read_b128 {vr(lq,4)}, v{xLq} offset:{t*4096}', f'ds_read_b128 {vr(lk,4)}, v{xLq} offset:{(2+t)*4096}', f'ds_read_b128 {vr(lp,4)}, v{xLq} offset:{kp*4096}',
      f'ds_read_b64_tr_b16 {vr(lv,2)}, v{vc}', f'ds_read_b64_tr_b16 {vr(lv+2,2)}, v{vc} offset:64',
      f'ds_read_b64_tr_b16 {vr(lv+4,2)}, v{vc} offset:256', f'ds_read_b64_tr_b16 {vr(lv+6,2)}, v{vc} offset:320',
      f'ds_read_b64_tr_b16 {vr(lv+8,2)}, v{vp} offset:256', f'ds_read_b64_tr_b16 {vr(lv+10,2)}, v{vp} offset:320')
    if t == 0:
        E(f's_cmp_lg_u32 s{sRB}, 0', 's_cbranch_scc1 L_m0')
        for r in range(8): e(f'v_mov_b32 v{xMask+16+r}, 0xff800000')
        lab('L_m0')
    E('s_waitcnt lgkmcnt(6)', 's_nop 0',
      f'v_mfma_f32_32x32x16_bf16 {vr(lS,16)}, {vr(lk,4)}, {vr(lq,4)}, {vr(xMask,16)}',
      f'v_mfma_f32_32x32x16_bf16 {vr(lP,16)}, {vr(lp,4)}, {vr(lq,4)}, {vr(xMask+8,16)}')
    e('s_nop 10')
    regs = [lS+i for i in range(16)] + [lP+8+i for i in range(8)]
    maxtree(regs, vT0, vT1)
    E('s_nop 1', f'v_permlane32_swap_b32 v{vT0}, v{vT1}', f'v_max_f32 v{vT0}, v{vT0}, v{vT1}', f'v_mul_f32 v{vT0}, {f32(-CSCALE)}, v{vT0}')
    for k in range(0, 24, 2): e(f'v_pk_fma_f32 {vr(regs[k],2)}, {vr(regs[k],2)}, {sr(sCS,2)}, {vr(vT0,2)} op_sel_hi:[1,0,0]')
    e('s_waitcnt lgkmcnt(0)')
    for k in range(24):
        e(f'v_exp_f32 v{regs[k]}, v{regs[k]}')
        if k == 9: e(f'v_smfmac_f32_32x32x32_bf16 {vr(lO,16)}, {vr(lv,4)}, {vr(lS,8)}, v{vIdx}')
        if k == 17: e(f'v_smfmac_f32_32x32x32_bf16 {vr(lO,16)}, {vr(lv+4,4)}, {vr(lS+8,8)}, v{vIdx}')
    E('s_nop 1', f'v_smfmac_f32_32x32x32_bf16 {vr(lO,16)}, {vr(lv+8,4)}, {vr(lP+8,8)}, v{vIdx}', 's_nop 11',
      f'v_rcp_f32 v{vT2}, v{lO+8}', 's_nop 0')
    for i in range(0, 8, 2): e(f'v_pk_mul_f32 {vr(lO+i,2)}, {vr(lO+i,2)}, {vr(vT2,2)} op_sel_hi:[1,0]')
    d = xAcc + 48 + 4 * t
    for i in range(4): e(f'v_cvt_pk_bf16_f32 v{d+i}, v{lO+2*i}, v{lO+2*i+1}')
    e(f'buffer_store_dwordx4 {vr(d,4)}, v{vL16}, {sr(S_WS,4)}, s{sOslot2 if t else sOslot} offen sc1', 'oa')

def oa_mfma(rt, wr=False):
    for s_ in range(8):
        for ct in range(2):
            a_ = oAcc + 32 * rt + 16 * ct
            e(f'v_mfma_f32_32x32x16_bf16 {vr(a_,16)}, {vr(oW+8*s_+4*ct,4)}, {vr(oOf+32*rt+4*s_,4)}, {"0" if s_ == 0 else vr(a_,16)}')
            m_ = 2 * s_ + ct
            if wr and wr <= m_ < wr + 4:
                for q in (2*(m_-wr), 2*(m_-wr)+1): e(f'ds_write_b128 v{80+q if q else vTp}, {vr(oAcc+4*q,4)}')
PAT = opt('pat', 3)
if PAT == 3:
    CH = {n: [n-2] for n in range(2, 10)}; FILL = {n: [n] for n in range(8)}
else:
    CH = {2: [0], 3: [1], 4: [2], 5: [3, 4], 6: [5], 7: [6], 8: [7]}; FILL = {0: [0], 1: [1], 2: [2, 3], 3: [4], 4: [5], 5: [6], 6: [7]}
if EA:
    CH = {n: [n-1] for n in range(1, 9)}; FILL = {n: [n+1] for n in range(7)}
NG = max(CH)
LATE = opt('late', 1 if NG < 9 else 0)
AE = opt('aearly', 0)
for n in range(16):
    cm(f'X interval {n}')
    if n < 9: stamp(n + 1, 'i0')
    if n >= 8: stamp(n - 7, 'i1')
    if n in (opt('dn', 2), opt('dn', 2)+1, opt('dn', 2)+2): stamp(1 + 4*(n-opt('dn', 2)), 'd')
    if n in (1, 2, 4, 10, 12, 14): stamp({1: 4, 2: 5, 4: 6, 10: 7, 12: 8, 14: 9}[n], 'x')
    if STAMPS and STMODE == 'xc' and n in (4, 8, 10, 12, 14, 15):
        i_ = (4, 8, 10, 12, 14, 15).index(n)
        E(f's_memrealtime {sr(sST+4*i_,2)}', f's_memtime {sr(sST+4*i_+2,2)}')
    waits = []
    k = n // 2
    if n == 0:
        E(f's_cmp_lg_u32 s{sW}, 0', 's_cbranch_scc1 L_nochk_kv1')
        poll_check('kv1', vB0, ['0'], [vFl], 0)
    ILV = opt('ilv', 1) and n in CH
    if n == 3:
        E(f's_cmp_lg_u32 s{sW}, 0', 's_cbranch_scc1 L_np3')
        poll_issue(vPa, SH4, RG4)
        lab('L_np3')
        NP3 = len(VMQ)
    if ILV: CAP[0] = []
    if n == 1: kv_fill(1)
    if n % 2 == 0 and 1 <= k <= 6: kv_fill(k + 1)
    for c in FILL.get(n, []): a_fill(c)
    WS_ = opt('wos', 0)
    if n == NG - 1: sentinels()
    if WS_ == 0:
        if n == NG - 1: wo_fill(S_WOA, 0, 0, 'woA')
        if n == NG: wo_fill(S_WOA, 1, SLOT, 'woA')
    if WS_ == 2:
        if n == NG - 2: wo_fill(S_WOA, 0, 0, 'woA')
        if n == NG - 1: wo_fill(S_WOA, 1, SLOT, 'woA')
    if TC & 1 and n == 0: touch_x(); touch_w(0)
    if TC & 2 and n == 2: touch_w(1)
    if TC & 4 and n == 3: touch_wo(S_WOA)
    if TC & 4 and n == 5: touch_wo(S_WOB)
    DN = opt('dn', 2)
    side = []
    if ILV:
        cap = CAP[0]; CAP[0] = None
        g = []
        for it in cap:
            g.append(it)
            if it[1] is not None: side.append(g); g = []
        if g: side[-1] += g
    if n in (DN, DN+1): stamp(2 + 4*(n-DN), 'd')
    if n in CH: a_chunk(CH[n], side)
    if n in (DN, DN+1): stamp(3 + 4*(n-DN), 'd')
    for c in CH.get(n + 1, []): waits.append(f'A{c}')
    if n == NG: write_frags(); PUB[0] = len(VMQ)
    if n == NG + 1:
        e(f'ds_write_b64 v{vOw}, {vr(xOne,2)}')
        if opt('hfe', 1): halo_flag()
        local_task(1)
        if not opt('hfe', 1): halo_flag()
    if n == NG + 2:
        halo_get(); waits.append('hx')
        if WS_ == 1: wo_fill(S_WOA, 0, 0, 'woA')
    if n == NG + 3:
        local_task(0)
        if WS_ == 1: wo_fill(S_WOA, 1, SLOT, 'woA')
    if n == NG + 4:
        flag_store('oa', f's{sK1}', f's_waitcnt vmcnt({vmn("oa")})', xcc=True)
        VMQ.append('fl')
        if LATE: wo_fill(S_WOB, 0, 2*SLOT, 'woB')
        if WS_ != 1: w_reads()
    if LATE and n == NG + 5 and WS_ != 1: wo_fill(S_WOB, 1, 3*SLOT, 'woB')
    if WS_ == 1 and n == NG + 5: waits.append('woA')
    if n == NG + 5 + LATE:
        E(f's_cmp_lg_u32 s{sW}, 0', 's_cbranch_scc1 L_skip_oa')
        poll_check('oa', vPa2, ['0'], [vFl], None, xcc=True)
        E(f'v_or_b32 v{vFl}, s{sXcc}, v{vNon}', f'v_cmp_ne_u32 vcc, v{vFl}, v{vFl+2}', 's_nop 1', 's_cmp_eq_u64 vcc, 0', f's_cselect_b32 s{sT0}, {opt("fast", 1)}, 0',
          f'v_mov_b32 v{vFl}, s{sT0}')
        lab('L_skip_oa')
        if not LATE: wo_fill(S_WOB, 0, 2*SLOT, 'woB'); wo_fill(S_WOB, 1, 3*SLOT, 'woB')
        if WS_ == 1: wo_fill(S_WOB, 1, 3*SLOT, 'woB'); w_reads()
    if n == NG + 6 + LATE:
        E(f's_cmp_lg_u32 s{sW}, 0', 's_cbranch_scc1 L_skip_same', f'v_mov_b32 v{vFl+1}, {R+16384}', f'ds_write_b32 v{vFl+1}, v{vFl}')
        lab('L_skip_same')
        o_loads('oal')
    if n == 13 and opt('pad', 0):
        E('s_mov_b64 exec, 0', 's_branch L_pad0')
        lab(f'L_pad{PADS[0]}')
        e('s_mov_b64 exec, -1')
    if n == 15 and AE:
        E('s_waitcnt vmcnt(8)', f's_setprio {XM}')
        oa_mfma(0)
        e(f's_setprio {XV}')
    if n % 2 == 1 and k + 1 <= 7: waits.append(f'KV{k+1}')
    if n == 15: waits.append('woB')
    if waits: e(f's_waitcnt vmcnt({min(vmn(t) for t in waits)}) lgkmcnt(0)')
    else: e('s_waitcnt lgkmcnt(0)')
    if n == 3:
        E(f's_cmp_lg_u32 s{sW}, 0', 's_cbranch_scc1 L_nochk_kv2')
        poll_check('kv2', vPa, SH4, RG4, len(VMQ) - NP3)
    if n < 9: stamp(n + 1, 'j0')
    if n >= 8: stamp(n - 7, 'j1')
    if n in (DN, DN+1): stamp(4 + 4*(n-DN), 'd')
    e('s_barrier')
assert NBAR[0] == NBAR_Y, (NBAR[0], NBAR_Y)
E('s_setprio 0', f's_mov_b32 s{sSpin}, 0', f's_mov_b32 s{sC}, 0')
stamp(9, 'i1')
e('s_waitcnt vmcnt(0)')
stamp(5, 'tail')
if not AE: oa_mfma(0)
oa_mfma(1, 10)
E('s_nop 9', 's_branch L_tail_wr')

cm('---- fallback (Y waves): true max, K/V from global ----')
lab('L_fallback')
E(f's_cmp_eq_u32 s{sFB}, 0', 's_cbranch_scc1 L_fb_go', f's_cmp_eq_u32 s{sT1}, 1', 's_branch L_att_ok')
lab('L_fb_go')
E(f's_mov_b32 s{sFB}, 1', f'v_mov_b32 v{vT0}, 0xff800000', f'v_mov_b32 v{vT2}, 0xff800000', f's_mov_b32 s{sT2}, 0')
lab('L_fb_max')
E(f'buffer_load_dwordx4 {vr(aK,4)}, v{vL16}, {sr(S_WS,4)}, s{sT2} offen sc1', 's_waitcnt vmcnt(0)',
  f'v_mfma_f32_32x32x16_bf16 {vr(aSa,16)}, {vr(aK,4)}, {vr(vQa,4)}, 0', f'v_mfma_f32_32x32x16_bf16 {vr(aSb,16)}, {vr(aK,4)}, {vr(vQb,4)}, 0', 's_nop 15')
for k in range(0, 16, 2): e(f'v_max3_f32 v{vT0}, v{vT0}, v{aSa+k}, v{aSa+k+1}')
for k in range(0, 16, 2): e(f'v_max3_f32 v{vT2}, v{vT2}, v{aSb+k}, v{aSb+k+1}')
E(f's_add_u32 s{sT2}, s{sT2}, 2048', f's_cmp_lt_u32 s{sT2}, {64*2048}', 's_cbranch_scc1 L_fb_max',
  f'v_mov_b32 v{vT1}, v{vT0}', f'v_mov_b32 v{vT3}, v{vT2}', 's_nop 1',
  f'v_permlane32_swap_b32 v{vT0}, v{vT1}', f'v_permlane32_swap_b32 v{vT2}, v{vT3}', f'v_max_f32 v{vT0}, v{vT0}, v{vT1}', f'v_max_f32 v{vT2}, v{vT2}, v{vT3}')
for i in range(16): e(f'v_sub_f32 v{aCa+i}, 0, v{vT0}')
for i in range(16): e(f'v_sub_f32 v{aCb+i}, 0, v{vT2}')
for i in range(32): e(f'v_mov_b32 v{aOa+i}, 0')
E(f'v_lshlrev_b32 v{vT2}, 4, v{vI}', f'v_lshl_add_u32 v{vT2}, v{vH}, 8, v{vT2}', f's_mov_b32 s{sT2}, 0')
lab('L_fb_pv')
E(f'buffer_load_dwordx4 {vr(aK,4)}, v{vL16}, {sr(S_WS,4)}, s{sT2} offen sc1', f's_mov_b64 exec, {sr(sVM,2)}',
  f'buffer_load_dwordx4 {vr(aV,4)}, v{vT2}, {sr(S_WS,4)}, s{sT2} offen offset:1024 sc1',
  f'buffer_load_dwordx4 {vr(aV+4,4)}, v{vT2}, {sr(S_WS,4)}, s{sT2} offen offset:1536 sc1', 's_mov_b64 exec, -1', 's_waitcnt vmcnt(0)',
  f'v_mfma_f32_32x32x16_bf16 {vr(aSa,16)}, {vr(aK,4)}, {vr(vQa,4)}, {vr(aCa,16)}',
  f'v_mfma_f32_32x32x16_bf16 {vr(aSb,16)}, {vr(aK,4)}, {vr(vQb,4)}, {vr(aCb,16)}', 's_nop 15')
for i in range(32): e(f'v_exp_f32 v{aSa+i}, v{aSa+i}')
E('s_nop 1',
  f'v_smfmac_f32_32x32x32_bf16 {vr(aOa,16)}, {vr(aV,4)}, {vr(aSa,8)}, v{vIdx}', f'v_smfmac_f32_32x32x32_bf16 {vr(aOa,16)}, {vr(aV+4,4)}, {vr(aSa+8,8)}, v{vIdx}',
  f'v_smfmac_f32_32x32x32_bf16 {vr(aOb,16)}, {vr(aV,4)}, {vr(aSb,8)}, v{vIdx}', f'v_smfmac_f32_32x32x32_bf16 {vr(aOb,16)}, {vr(aV+4,4)}, {vr(aSb+8,8)}, v{vIdx}',
  f's_add_u32 s{sT2}, s{sT2}, 2048', f's_cmp_lt_u32 s{sT2}, {64*2048}', 's_cbranch_scc1 L_fb_pv', 's_nop 15', 's_branch L_att_fin')
for g, so in enumerate((sOoff, sT1, sT2, sT3)):
    lab(f'L_tr{g}')
    E(f's_sub_u32 s{sSpin}, s{sSpin}, 1', f's_cbranch_scc1 L_tk{g}')
    for j in range(4):
        o = f' offset:{j*1024}' if j else ''
        e(f'buffer_load_dwordx4 {vr(oOf+16*g+4*j,4)}, v{vL16}, {sr(S_WS,4)}, s{so} offen{o} sc1')
    E('s_waitcnt vmcnt(0)', f's_branch L_tg{g}')
lab('L_st_slow')
E(f'buffer_store_dwordx4 {vr(16,4)}, v{vL16}, {sr(S_WS,4)}, s{sOslot} offen sc1',
  f'buffer_store_dwordx4 {vr(28,4)}, v{vL16}, {sr(S_WS,4)}, s{sOslot} offen offset:1024 sc1', 's_branch L_st_j')
lab('L_code_end')

HDR = open(f'cdna_kernels/{NAME}.s.ref').read().split('\n')
hdr = []
for line in HDR:
    if line.startswith('; @launch'): break
    hdr.append(line)
txt = '\n'.join(hdr) + '\n; @launch grid=(256,1,1) block=(512,1,1) lds=163840\n'
txt += f'''.amdgcn_target "amdgcn-amd-amdhsa--gfx950"
.text
.globl {NAME}_kernel
.p2align 8
.type {NAME}_kernel,@function
'''
txt += '\n'.join(L) + '\n'
txt += f'''.section .rodata,"a"
.p2align 6
.amdhsa_kernel {NAME}_kernel
  .amdhsa_next_free_vgpr {NVGPR}
  .amdhsa_next_free_sgpr 102
  .amdhsa_accum_offset {NVGPR}
  .amdhsa_group_segment_fixed_size 0
  .amdhsa_kernarg_size 88
  .amdhsa_user_sgpr_count 2
  .amdhsa_user_sgpr_kernarg_segment_ptr 1
  .amdhsa_system_sgpr_workgroup_id_x 1
.end_amdhsa_kernel
'''
open(OUT, 'w').write(txt)
print('wrote', OUT, len(L), 'lines; barriers', NBAR_Y)
```

```python
import sys, struct

NAME = 'concat_heads__sliding_local_dilated__grouped_kv_mqa__prompt'
STAMPS = '--stamps' in sys.argv
STMODE = ([a[5:] for a in sys.argv if a.startswith('--st=')] + ['all'])[0]
XP = [a[4:] for a in sys.argv if a.startswith('--x=')]
args = [a for a in sys.argv[1:] if not a.startswith('--')]
OUT = args[0] if args else f'cdna_kernels/{NAME}.s'
def opt(name, default):
    for a in XP:
        if a.startswith(name): return type(default)(a[len(name):])
    return default

L = []
VMQ = []
NBAR = [0]
CAP = [None]
def e(s, tag=None):
    if CAP[0] is not None:
        CAP[0].append((s, tag)); return
    if tag is not None: VMQ.append(tag)
    if s == 's_barrier': NBAR[0] += 1
    L.append('    ' + s.strip())
    if PADON[0]:
        PADCNT[0] += 4 if (s.startswith('s_') and '0x' not in s) else 8
        if PADCNT[0] >= PADON[0] and not s.startswith('v_cmp') and 'abs' not in s:
            PADCNT[0] = 0; pad()
PADS = [0]
PADON = [False]
PADCNT = [0]
def lab(s): L.append(s + ':')
def pad():
    i = PADS[0]; PADS[0] += 1
    L.append(f'L_pad{i}:'); L.append(f'    s_cbranch_execz L_pad{i+1}')
def cm(s): L.append('    ; ' + s)
def vr(i, n): return f'v[{i}:{i+n-1}]'
def sr(i, n): return f's[{i}:{i+n-1}]'
def f32(x): return '0x%08x' % struct.unpack('<I', struct.pack('<f', x))[0]
def vmn(tag):
    idx = max(i for i, t in enumerate(VMQ) if t == tag)
    n = len(VMQ) - 1 - idx
    assert n <= 63
    return n
def E(*lines):
    for s in lines: e(s)

SLOT = 32768
R = 131072
HALO = 3 * SLOT
ONES = 3 * SLOT
SC = 2 * SLOT
WS_FHX = 0x60000
WS_HX = 0x600000
WS_FKV = 0x40000
WS_FOA = 0x48000
WS_FD = 0x44000
WS_OA = 0x100000
WS_OB = 0x300000
WS_STAMP = 0x500000
WS_SIZE = 0x800000
CSCALE = 0.25 * 1.4426950408889634
MOFF = float(opt('moff', 100))
VSC = 2.0 ** 40
ONEB = 0x53805380
SPIN = 200000
NT = '' if 'nont' in XP else ' nt'
WNT = ' nt' if 'wnt' in XP else ''

S_XA, S_WQKV, S_WOA, S_XB, S_WQ, S_WKV, S_WOB, S_OUT, S_WS = 8, 12, 16, 20, 24, 28, 32, 36, 40
S_DBG = 44
S_WV = 46
sP = 46
sW = 48
sRB, sHG = 49, 50
sT0, sT1, sT2, sT3 = 51, 52, 53, 54
sC = 55
sStepA, sStepB = 56, 57
sXo, sWo = 58, 59
sKVo = 60
sW4k, sW8k, sW2k = 61, 62, 63
sVM = 64
sOoff, sOutOff, sWoff, sSpin = 66, 67, 68, 69
sOslot, sOslot2 = 70, 71
sFB, sHG128, sCS, sQ = 72, 73, 74, 75
sRot, sK1 = 4, 5
sF0, sF1, sF2 = 3, 6, 7
sST = 76
sNon = 100
sStepH = 31
sXcc = 30

vL16, vW, vWA, vXA = 1, 2, 3, 4
vN, vH, vI = 5, 6, 7
vT0, vT1, vT2, vT3 = 8, 9, 10, 11
vP0, vP1, vXx, vG = 12, 13, 14, 15
vQacc = 16
vFr = 96
(vB0, vB1, vBW, vWl, vIdx, vPa, vQx, vW2, vTw0, vTw1, vTp, vTr0, vTo, vPa2, vZero, vOw,
 vF0, vF1, vF2, vF3, vWA2, vXA2) = range(232, 254)
vNon, vFl = 90, 92
NVGPR = 256

def stamp(i, *modes):
    if STAMPS and STMODE in modes: e(f's_memrealtime {sr(sST+2*i,2)}')
def cstamp(i):
    if STAMPS and STMODE != 'xc': e(f's_memtime {sr(sST+2*i,2)}')
def dma(voff, srd_, soff, off=0, fl='', tag='x'):
    o = f' offset:{off}' if off else ''
    e(f'buffer_load_dwordx4 v{voff}, {sr(srd_,4)}, {soff} offen{o}{fl} lds', tag)
def srd(reg, size): E(f's_mov_b32 s{reg+2}, {hex(size)}', f's_mov_b32 s{reg+3}, 0x20000')
def nonce_load(tag=None): e(f'global_load_dwordx2 {vr(vNon,2)}, v{vZero}, {sr(S_DBG,2)} sc1', tag)
def poll_issue(vaddr, soffs, regs, non=True):
    if non: nonce_load()
    for so, r in zip(soffs, regs):
        e(f'buffer_load_dwordx2 {vr(r,2)}, v{vaddr}, {sr(S_WS,4)}, {so} offen sc1')
def poll_check(tag, vaddr, soffs, regs, issued, xcc=False):
    e(f's_mov_b32 s{sSpin}, {SPIN}')
    if issued is not None: E(f's_waitcnt vmcnt({issued})', f's_branch L_chk_{tag}')
    lab(f'L_rep_{tag}')
    poll_issue(vaddr, soffs, regs)
    e('s_waitcnt vmcnt(0)')
    lab(f'L_chk_{tag}')
    e(f'v_cmp_eq_u32 vcc, 0, v{vNon}')
    if xcc: E(f'v_mov_b32 v{vFl+2}, v{vFl}', f'v_and_b32 v{vFl}, 0xffffffe1, v{vFl}')
    for r in regs:
        E(f'v_cmp_ne_u64 {sr(sP,2)}, {vr(vNon,2)}, {vr(r,2)}', 's_nop 1', f's_or_b64 vcc, vcc, {sr(sP,2)}')
    E(f's_cbranch_scc0 L_nochk_{tag}', f's_sub_u32 s{sSpin}, s{sSpin}, 1', f's_cbranch_scc0 L_rep_{tag}')
    lab(f'L_nochk_{tag}')
def flag_store(tag, soff, first_wait='s_waitcnt vmcnt(0)', xcc=False, soff2=None):
    e(f's_mov_b32 s{sSpin}, {SPIN}')
    e(first_wait)
    lab(f'L_fw_{tag}')
    E(f'v_cmp_eq_u32 vcc, 0, v{vNon}', f's_cbranch_vccz L_fs_{tag}')
    nonce_load()
    E('s_waitcnt vmcnt(0)', f's_sub_u32 s{sSpin}, s{sSpin}, 1', f's_cbranch_scc0 L_fw_{tag}')
    lab(f'L_fs_{tag}')
    if xcc: e(f'v_or_b32 v{vNon}, s{sXcc}, v{vNon}')
    E('s_mov_b64 exec, 1', f'buffer_store_dwordx2 {vr(vNon,2)}, v{vZero}, {sr(S_WS,4)}, {soff} offen sc1')
    if soff2: e(f'buffer_store_dwordx2 {vr(vNon,2)}, v{vZero}, {sr(S_WS,4)}, {soff2} offen sc1')
    e('s_mov_b64 exec, -1')
def maxtree(rs, t0, t1):
    e(f'v_max3_f32 v{t0}, v{rs[0]}, v{rs[1]}, v{rs[2]}')
    e(f'v_max3_f32 v{t1}, v{rs[3]}, v{rs[4]}, v{rs[5]}')
    for k in range(6, len(rs), 4):
        e(f'v_max3_f32 v{t0}, v{t0}, v{rs[k]}, v{rs[k+1]}')
        if k + 3 < len(rs): e(f'v_max3_f32 v{t1}, v{t1}, v{rs[k+2]}, v{rs[k+3]}')
    e(f'v_max_f32 v{t0}, v{t0}, v{t1}')
    e(f'v_mov_b32 v{t1}, v{t0}')
def lane_setup():
    E(f'v_and_b32 v{vN}, 31, v0', f'v_lshrrev_b32 v{vH}, 5, v0', f'v_and_b32 v{vI}, 15, v0',
      f'v_lshrrev_b32 v{vWl}, 2, v{vI}', f'v_lshl_add_u32 v{vWl}, v{vH}, 3, v{vWl}', f'v_lshlrev_b32 v{vWl}, 7, v{vWl}',
      f'v_and_b32 v{vF0}, 8, v{vI}', f'v_lshl_add_u32 v{vWl}, v{vF0}, 3, v{vWl}', f'v_and_b32 v{vF0}, 16, v0',
      f'v_lshl_add_u32 v{vWl}, v{vF0}, 1, v{vWl}', f'v_and_b32 v{vF0}, 3, v0', f'v_lshl_add_u32 v{vWl}, v{vF0}, 3, v{vWl}',
      f's_lshl_b32 s{sW4k}, s{sQ}, 12', f's_add_u32 s{sF0}, s{sW4k}, {R}', f'v_add_u32 v{vQx}, s{sF0}, v{vL16}',
      f'v_mov_b32 v{vIdx}, 0xdddddddd', f's_mov_b32 s{sFB}, 0')
oOf, oW, oAcc = 16, 96, 160
def tail_setup():
    E(f's_mov_b32 s{S_OUT+2}, 0x400000', f's_mov_b32 s{S_OUT+3}, 0x20000',
      f's_lshr_b32 s{sF2}, s{sW}, 2', f's_lshl_b32 s{sF1}, s{sW}, 14',
      f'v_lshlrev_b32 v{vT0}, 9, v{vH}', f'v_sub_u32 v{vTw0}, v{vWl}, v{vT0}', f'v_add_u32 v{vTw0}, s{sF1}, v{vTw0}', f'v_xor_b32 v{vTw1}, 64, v{vTw0}',
      f'v_xor_b32 v{vT0}, v{vH}, v{vI}', f'v_lshlrev_b32 v{vT0}, 4, v{vT0}', f'v_lshl_add_u32 v{vT0}, v{vN}, 8, v{vT0}', f'v_add_u32 v{vTp}, s{sF1}, v{vT0}',
      f'v_lshrrev_b32 v{vT0}, 3, v0', f's_lshl_b32 s{sF1}, s{sQ}, 3', f'v_add_u32 v{vT0}, s{sF1}, v{vT0}', f'v_and_b32 v{vT1}, 7, v0', f'v_lshlrev_b32 v{vT2}, 1, v{vT1}',
      f'v_and_b32 v{vT3}, 15, v{vT0}', f'v_xor_b32 v{vT2}, v{vT2}, v{vT3}', f'v_lshlrev_b32 v{vT2}, 4, v{vT2}', f'v_lshl_add_u32 v{vT2}, v{vT0}, 8, v{vT2}',
      f's_lshl_b32 s{sF1}, s{sF2}, 16', f'v_add_u32 v{vTr0}, s{sF1}, v{vT2}',
      f'v_lshlrev_b32 v{vT1}, 4, v{vT1}', f'v_lshl_add_u32 v{vTo}, v{vT0}, 11, v{vT1}',
      f's_lshl_b32 s{sOutOff}, s{sRB}, 17', f's_lshl_b32 s{sF1}, s{sF2}, 10', f's_add_u32 s{sOutOff}, s{sOutOff}, s{sF1}', f's_add_u32 s{sOutOff}, s{sOutOff}, s{sHG128}',
      f's_lshl_b32 s{sOoff}, s{sRB}, 16', f's_add_u32 s{sF1}, s{sQ}, s{sRB}' if opt('worot', 1) else f's_mov_b32 s{sF1}, s{sQ}', f's_and_b32 s{sF1}, s{sF1}, 3', f's_lshl_b32 s{sF1}, s{sF1}, 13', f's_add_u32 s{sOoff}, s{sOoff}, s{sF1}',
      f's_lshl_b32 s{sF1}, s{sF2}, 21', f's_add_u32 s{sOoff}, s{sOoff}, s{sF1}', f's_add_u32 s{sOoff}, s{sOoff}, {hex(WS_OA)}')
assert WS_OB - WS_OA == 1 << 21
def w_reads():
    for s in range(8):
        x = oW + 8 * s
        E(f'ds_read_b64_tr_b16 {vr(x,2)}, v{vTw0} offset:{s*2048}', f'ds_read_b64_tr_b16 {vr(x+2,2)}, v{vTw0} offset:{s*2048+1024}',
          f'ds_read_b64_tr_b16 {vr(x+4,2)}, v{vTw1} offset:{s*2048}', f'ds_read_b64_tr_b16 {vr(x+6,2)}, v{vTw1} offset:{s*2048+1024}')
    for q in range(1, 8): e(f'v_xor_b32 v{80+q}, {(2*q)<<4}, v{vTp}')
    e(f'v_xor_b32 v88, 16, v{vTr0}')
def o_loads(tag=None, gs=(0, 1, 2, 3)):
    if 0 in gs: E(f's_add_u32 s{sT1}, s{sOoff}, 4096', f's_add_u32 s{sT2}, s{sOoff}, 32768', f's_add_u32 s{sT3}, s{sOoff}, {32768+4096}')
    for g, so in enumerate((sOoff, sT1, sT2, sT3)):
        if g not in gs: continue
        for j in range(4):
            o = f' offset:{j*1024}' if j else ''
            e(f'buffer_load_dwordx4 {vr(oOf+16*g+4*j,4)}, v{vL16}, {sr(S_WS,4)}, s{so} offen{o} sc1', tag)

lab(f'{NAME}_kernel')
if STAMPS:
    for i in range(12): e(f's_mov_b32 s{sST+2*i}, 0')
stamp(0, 'all', 'head', 'tail', 'x', 'i0', 'i1', 'j0', 'j1', 'd')
for reg, off in ((S_XB,24),(S_WKV,40),(S_WV,48),(S_WQ,32),(S_DBG,72),(S_WS,80),(S_XA,0),(S_WQKV,8),(S_WOA,16),(S_WOB,56),(S_OUT,64)):
    e(f's_load_dwordx2 {sr(reg,2)}, s[0:1], {off}')
e(f's_memrealtime {sr(sNon,2)}')
E('s_cmp_ge_u32 s2, 256', 's_cbranch_scc1 L_end',
  f'v_lshrrev_b32 v{vT0}, 6, v0', 'v_and_b32 v0, 63, v0', f'v_readfirstlane_b32 s{sW}, v{vT0}',
  f's_and_b32 s{sT0}, s2, 7', f's_bfe_u32 s{sRot}, s2, 0x20003', f's_lshl_b32 s{sRB}, s{sT0}, 2',
  f's_add_u32 s{sRB}, s{sRB}, s{sRot}', f's_lshr_b32 s{sHG}, s2, 5',
  f'v_lshlrev_b32 v{vL16}, 4, v0', f'v_lshrrev_b32 v{vG}, 4, v0', f'v_lshrrev_b32 v{vT1}, 3, v0', f'v_and_b32 v{vT2}, 7, v0',
  f'v_xor_b32 v{vT3}, v{vT2}, v{vG}', f'v_lshlrev_b32 v{vT3}, 4, v{vT3}', f'v_lshl_add_u32 v{vP0}, v{vT1}, 10, v{vT3}',
  f'v_xor_b32 v{vP1}, 64, v{vP0}', f'v_add_u32 v{vP1}, {8192-1024}, v{vP1}', f'v_mov_b32 v{vZero}, 0',
  f's_xor_b32 s{sW}, s{sW}, 7', f's_lshl_b32 s{sRot}, s{sRot}, 1', f's_lshl_b32 s{sHG128}, s{sHG}, 7', f's_and_b32 s{sQ}, s{sW}, 3')
if opt('brx', 0): E(f's_lshr_b32 s{sT0}, s{sRB}, 2', f's_add_u32 s{sRot}, s{sRot}, s{sT0}', f's_and_b32 s{sRot}, s{sRot}, 7')
if opt('hgx', 0): E(f's_xor_b32 s{sHG}, s{sHG}, {opt("hgx", 0)}', f's_lshl_b32 s{sHG128}, s{sHG}, 7')
srd(S_WS, WS_SIZE)
E(f's_cmp_lt_u32 s{sW}, 4', 's_cbranch_scc1 L_X')

cm('================ Y program (waves 4-7) ================')
aSa, aSb, aCa, aCb, aOa, aOb = 96, 112, 128, 144, 160, 176
aK, aV = 192, 56
vQa, vQb = 208, 212
vKa, vVa = 216, 217
srd(S_XB, 0x200000); srd(S_WKV, 0x4000)
vD0, vD1 = 218, 219
E(f's_lshr_b32 s{sT1}, s{sHG}, 1', f's_add_u32 s{sT1}, s{sT1}, s{sW}', f's_add_u32 s{sT1}, s{sT1}, 1', f's_and_b32 s{sT1}, s{sT1}, 3',
  f's_lshl_b32 s{sT2}, s{sT1}, 11',
  f's_lshl_b32 s{sT3}, s{sRB}, 2', f's_add_u32 s{sT3}, s{sT3}, s{sT1}', f's_lshl_b32 s{sT3}, s{sT3}, 14',
  f'v_add_u32 v{vD0}, s{sT3}, v{vP0}', f'v_add_u32 v{vD1}, s{sT3}, v{vP1}',
  f's_lshl_b32 s{sXo}, s{sRot}, 7',
  f's_cmp_lg_u32 s{sW}, 7', 's_cbranch_scc1 L_Yset')
def x_sub(s, tag):
    E(f's_add_u32 m0, s{sT2}, {s*16384}', f's_and_b32 s{sXo}, s{sXo}, 1023')
    dma(vD0, S_XB, f's{sXo}', 0, NT, tag); dma(vD1, S_XB, f's{sXo}', 1024, NT, tag)
E(f's_bitcmp1_b32 s{sHG}, 0', 's_waitcnt lgkmcnt(0)',
  f's_cselect_b32 s{S_WKV}, s{S_WV}, s{S_WKV}', f's_cselect_b32 s{S_WKV+1}, s{S_WV+1}, s{S_WKV+1}')
for s_ in range(8):
    x_sub(s_, None)
    E(f's_mov_b32 m0, {R+s_*2048}', f's_lshl_b32 s{sWo}, s{sXo}, 4')
    dma(vL16, S_WKV, f's{sWo}', 0, '', None); dma(vL16, S_WKV, f's{sWo}', 1024, '', None)
    if s_ < 7: e(f's_add_u32 s{sXo}, s{sXo}, 128')
e('s_barrier'); NBAR[0] -= 1
stamp(1, 'head')
lab('L_Yset')
lane_setup()
tail_setup()
E(f's_mov_b32 s{sVM}, 0xffff', f's_mov_b32 s{sVM+1}, 0xffff',
  f's_and_b32 s{sT0}, s{sRB}, 28', f's_add_u32 s{sT0}, s{sT0}, s{sQ}', f's_lshl_b32 s{sKVo}, s{sT0}, 12',
  f's_lshl_b32 s{sT0}, s{sT0}, 9', f's_add_u32 s{sT0}, s{sT0}, {hex(WS_FKV)}',
  f'v_and_b32 v{vPa}, 7, v0', f'v_lshlrev_b32 v{vPa}, 6, v{vPa}', f'v_add_u32 v{vPa}, s{sT0}, v{vPa}',
  f's_and_b32 s{sT0}, s{sW}, 1', f's_lshl_b32 s{sT1}, s{sRB}, 1', f's_add_u32 s{sT0}, s{sT0}, s{sT1}', f's_lshl_b32 s{sT0}, s{sT0}, 5',
  f's_lshl_b32 s{sT1}, s{sHG}, 2', f's_add_u32 s{sT0}, s{sT0}, s{sT1}', f's_and_b32 s{sT1}, s{sW}, 2', f's_add_u32 s{sT0}, s{sT0}, s{sT1}',
  f's_lshl_b32 s{sT0}, s{sT0}, 10', f's_add_u32 s{sOslot}, s{sT0}, {hex(WS_OB)}',
  f'v_add_u32 v{vKa}, {R+16384}, v{vL16}', f'v_lshlrev_b32 v{vVa}, 4, v{vI}', f'v_lshl_add_u32 v{vVa}, v{vH}, 8, v{vVa}', f'v_add_u32 v{vVa}, {R+16384}, v{vVa}',
  f'v_and_b32 v{vT1}, 27, v0', f'v_cmp_eq_u32 vcc, 16, v{vT1}', f'v_mov_b32 v{vT1}, {hex(ONEB)}', f's_cmp_eq_u32 s{sW}, 7', f'v_cndmask_b32 v{aV}, 0, v{vT1}, vcc',
  's_cbranch_scc1 L_Y7', 's_waitcnt lgkmcnt(0)')
if opt('cpf', 1):
    e('s_getpc_b64 s[0:1]')
    lab('L_pc')
    E(f's_sub_u32 s0, s0, L_pc-{NAME}_kernel', 's_subb_u32 s1, s1, 0',
      f's_lshr_b32 s{sT0}, s2, 3', f's_mul_i32 s{sT0}, s{sT0}, 3', f's_add_u32 s{sT0}, s{sT0}, s{sQ}', f's_lshl_b32 s{sT0}, s{sT0}, 8',
      f'v_lshlrev_b32 v{vF0}, 7, v0', f'v_add_u32 v{vF0}, s{sT0}, v{vF0}', f'v_min_u32 v{vF0}, L_code_end-{NAME}_kernel-4, v{vF0}', 's_mov_b64 exec, 3',
      f'global_load_dword v{vF1}, v{vF0}, s[0:1]', 's_mov_b64 exec, -1')
e('s_barrier')
for s_ in range(8):
    x_sub(s_, 'xb')
    if s_ < 7: e(f's_add_u32 s{sXo}, s{sXo}, 128')
stamp(1, 'head')
e('s_branch L_Yj')
lab('L_Y7')
E(f'v_lshrrev_b32 v{vT1}, 1, v{vI}', f'v_xor_b32 v{vT1}, v{vT1}, v{vG}', f'v_lshlrev_b32 v{vT1}, 4, v{vT1}', f'v_lshl_add_u32 v{vT1}, v{vI}, 7, v{vT1}',
  f'v_add_u32 v{vT0}, s{sT2}, v{vT1}', f'v_xor_b32 v{vT1}, 64, v{vT0}', f'v_add_u32 v{vT2}, 65536, v{vT0}', f'v_add_u32 v{vT3}, 65536, v{vT1}',
  f'v_lshlrev_b32 v{vF0}, 8, v{vG}', f'v_lshl_add_u32 v{vF0}, v{vI}, 3, v{vF0}', f'v_add_u32 v{vF0}, {R}, v{vF0}',
  f'v_and_b32 v{vF1}, 1, v{vG}', f'v_lshrrev_b32 v{vF2}, 1, v{vG}',
  f's_lshr_b32 s{sT0}, s{sHG}, 2', f's_lshl_b32 s{sC}, s{sRB}, 1', f's_add_u32 s{sT0}, s{sT0}, s{sC}', f's_lshl_b32 s{sT0}, s{sT0}, 11',
  f's_bfe_u32 s{sC}, s{sHG}, 0x10001',
  f's_lshl_b32 s{sT1}, s{sRB}, 3', f's_add_u32 s{sT1}, s{sT1}, s{sHG}', f's_lshl_b32 s{sOslot2}, s{sT1}, 3', f's_add_u32 s{sOslot2}, s{sOslot2}, {hex(WS_FD)}', f's_lshl_b32 s{sT1}, s{sT1}, 6', f's_add_u32 s{sK1}, s{sT1}, {hex(WS_FKV)}')
kd = 16
KF = 88
KF = 96 - 8
def kfr(u): return (96 + 8 * u) if u < 15 else 24
def kv_reads(s):
    a0, a1 = (vT0, vT1) if s < 4 else (vT2, vT3)
    o = (s & 3) * 16384
    x, y = kfr(2*s), kfr(2*s+1)
    E(f's_waitcnt vmcnt({28-4*s})',
      f'ds_read_b128 {vr(x,4)}, v{a0} offset:{o}', f'ds_read_b64_tr_b16 {vr(x+4,2)}, v{vF0} offset:{s*2048}', f'ds_read_b64_tr_b16 {vr(x+6,2)}, v{vF0} offset:{s*2048+128}',
      f'ds_read_b128 {vr(y,4)}, v{a1} offset:{o}', f'ds_read_b64_tr_b16 {vr(y+4,2)}, v{vF0} offset:{s*2048+1024}', f'ds_read_b64_tr_b16 {vr(y+6,2)}, v{vF0} offset:{s*2048+1152}')
for s_ in range(8): kv_reads(s_)
nonce_load()
stamp(2, 'head')
E(f's_bitcmp1_b32 s{sHG}, 0', f's_cselect_b32 s{sWo}, {f32(VSC)}, 1.0', 's_cbranch_scc1 L_kv_v',
  f'v_lshlrev_b32 v{vF1}, 9, v{vF1}', f'v_lshl_add_u32 v{vF1}, v{vF2}, 3, v{vF1}', f's_lshl_b32 s{sC}, s{sC}, 8')
def kv_chain(swap):
    for u in range(16):
        x = kfr(u)
        if u == 0: e('s_waitcnt lgkmcnt(12)')
        if u == 12: e('s_waitcnt lgkmcnt(0)')
        a, b = (vr(x+4,4), vr(x,4))
        if swap: a, b = b, a
        d = kd + 4 * (u & 1)
        e(f'v_mfma_f32_16x16x32_bf16 {vr(d,4)}, {a}, {b}, {"0" if u < 2 else vr(d,4)}')
kv_chain(False)
e('s_branch L_kv_j')
lab('L_kv_v')
E(f'v_lshlrev_b32 v{vF1}, 3, v{vF1}', f'v_lshl_add_u32 v{vF1}, v{vF2}, 8, v{vF1}', f's_lshl_b32 s{sC}, s{sC}, 9', f's_add_u32 s{sC}, s{sC}, 1024')
kv_chain(True)
lab('L_kv_j')
E(f'v_lshl_add_u32 v{vF1}, v{vI}, 4, v{vF1}', f's_add_u32 s{sT0}, s{sT0}, s{sC}', 's_nop 5',
  f'v_pk_add_f32 {vr(kd,2)}, {vr(kd,2)}, {vr(kd+4,2)}', f'v_pk_add_f32 {vr(kd+2,2)}, {vr(kd+2,2)}, {vr(kd+6,2)}',
  f'v_mul_f32 v{kd}, s{sWo}, v{kd}', f'v_mul_f32 v{kd+1}, s{sWo}, v{kd+1}', f'v_mul_f32 v{kd+2}, s{sWo}, v{kd+2}', f'v_mul_f32 v{kd+3}, s{sWo}, v{kd+3}',
  f'v_cvt_pk_bf16_f32 v{vF2}, v{kd}, v{kd+1}', f'v_cvt_pk_bf16_f32 v{vF3}, v{kd+2}, v{kd+3}',
  f'buffer_store_dwordx2 {vr(vF2,2)}, v{vF1}, {sr(S_WS,4)}, s{sT0} offen sc1')
stamp(3, 'head')
lab('L_Yj')
if opt('ytc', 0):
    E(f's_bitcmp1_b32 s{sW}, 1', f's_cselect_b32 s{S_WOA}, s{S_WOB}, s{S_WOA}', f's_cselect_b32 s{S_WOA+1}, s{S_WOB+1}, s{S_WOA+1}',
      f's_mov_b32 s{S_WOA+2}, 0x80000', f's_mov_b32 s{S_WOA+3}, 0x20000',
      f's_lshr_b32 s{sT0}, s2, 3', f's_lshl_b32 s{sT0}, s{sT0}, 1', f's_and_b32 s{sT1}, s{sW}, 1', f's_add_u32 s{sT0}, s{sT0}, s{sT1}', f's_lshl_b32 s{sWoff}, s{sT0}, 13',
      f'v_lshlrev_b32 v{vD0}, 7, v0')
for i in range(1, 32): e(f'v_mov_b32 v{aV+i}, v{aV}')
for j in range(32): e(f'v_mov_b32 v{aOa+j}, 0')
E('s_waitcnt vmcnt(0)', f's_cmp_lg_u32 s{sW}, 7', 's_cbranch_scc1 L_flag_done')
flag_store('kv', f's{sK1}')
stamp(4, 'head')
lab('L_flag_done')
e('s_barrier')
stamp(5, 'head'); stamp(1, 'all', 'x')
EA = opt('ea', 20)
if EA: e('s_barrier')
if opt('psl', 0): e(f's_sleep {opt("psl", 0)}')
poll_check('kv', vPa, ['0'], [vFl], None)
stamp(6, 'head')
E(f's_add_u32 m0, s{sW4k}, {R+16384}', f's_mov_b32 s{sC}, 0')
for j in range(4): dma(vL16, S_WS, f's{sKVo}', 1024*j, ' sc1', None)
E(f's_setprio {opt("yp", 1)}', f's_cmp_lg_u32 s{sW}, 7', 's_waitcnt vmcnt(0)', 's_cbranch_scc1 L_nodense', 's_mov_b64 exec, 1',
  f'buffer_store_dwordx2 {vr(vNon,2)}, v{vZero}, {sr(S_WS,4)}, s{sOslot2} offen sc1', 's_mov_b64 exec, -1')
lab('L_nodense')
stamp(7, 'head'); stamp(2, 'all', 'x')
e('s_barrier')
stamp(8, 'head'); stamp(3, 'all', 'x'); stamp(1, 'tail')
cstamp(10)
E(f'ds_read_b128 {vr(vQa,4)}, v{vQx}', f'ds_read_b128 {vr(vQb,4)}, v{vQx} offset:1024',
  f'ds_read_b128 {vr(aK,4)}, v{vKa}', f'ds_read_b128 {vr(aK+4,4)}, v{vKa} offset:2048', f's_mov_b64 exec, {sr(sVM,2)}')
for j in range(4): e(f'ds_read_b128 {vr(aV+4*j,4)}, v{vVa} offset:{(j>>1)*2048+1024+(j&1)*512}')
E('s_mov_b64 exec, -1', 's_waitcnt lgkmcnt(5)',
  f'v_mfma_f32_32x32x16_bf16 {vr(aSa,16)}, {vr(aK,4)}, {vr(vQa,4)}, 0',
  f'v_mfma_f32_32x32x16_bf16 {vr(aSb,16)}, {vr(aK,4)}, {vr(vQb,4)}, 0', 's_nop 10')
maxtree([aSa+i for i in range(16)], vT0, vT1)
maxtree([aSb+i for i in range(16)], vT2, vT3)
E(f'v_permlane32_swap_b32 v{vT0}, v{vT1}', f'v_max_f32 v{vT0}, v{vT0}, v{vT1}', f'v_permlane32_swap_b32 v{vT2}, v{vT3}',
  f'v_sub_f32 v{aCa}, {f32(-MOFF)}, v{vT0}', f'v_max_f32 v{vT2}, v{vT2}, v{vT3}')
for i in range(1, 16): e(f'v_mov_b32 v{aCa+i}, v{aCa}')
E(f'v_sub_f32 v{aCb}, {f32(-MOFF)}, v{vT2}', f'v_mov_b32 v{aCb+1}, v{aCb}',
  f'v_mfma_f32_32x32x16_bf16 {vr(aSa,16)}, {vr(aK,4)}, {vr(vQa,4)}, {vr(aCa,16)}')
for i in range(2, 16): e(f'v_mov_b32 v{aCb+i}, v{aCb}')
if opt('ytc', 0): e(f'buffer_load_dword v{vD1}, v{vD0}, {sr(S_WOA,4)}, s{sWoff} offen')
E('s_waitcnt lgkmcnt(0)', f'v_exp_f32 v{aSa}, v{aSa}', f'v_exp_f32 v{aSa+1}, v{aSa+1}', 's_branch L_att_entry')

def dtile(par, ld_off, entry=False):
    K = aK + 8 * par; Kn = aK + 8 * (par ^ 1)
    V = aV + 16 * par; Vn = aV + 16 * (par ^ 1)
    def ex(S, a, b):
        for i in range(a, b): e(f'v_exp_f32 v{S+i}, v{S+i}')
    def pv(O, Vr, P): e(f'v_smfmac_f32_32x32x32_bf16 {vr(O,16)}, {vr(Vr,4)}, {vr(P,8)}, v{vIdx}')
    def qk(S, Kr, Q, C): e(f'v_mfma_f32_32x32x16_bf16 {vr(S,16)}, {vr(Kr,4)}, {vr(Q,4)}, {vr(C,16)}')
    ex(aSa, 0, 2); pv(aOb, Vn+12, aSb+8)
    if entry: lab('L_att_entry')
    e(f's_mov_b64 exec, {sr(sVM,2)}')
    for j in range(4): e(f'ds_read_b128 {vr(Vn+4*j,4)}, v{vVa} offset:{ld_off+(j>>1)*2048+1024+(j&1)*512}')
    e('s_mov_b64 exec, -1')
    ex(aSa, 2, 5); qk(aSb, K, vQb, aCb)
    E(f'ds_read_b128 {vr(Kn,4)}, v{vKa} offset:{ld_off}', f'ds_read_b128 {vr(Kn+4,4)}, v{vKa} offset:{ld_off+2048}')
    ex(aSa, 5, 10); pv(aOa, V, aSa); ex(aSa, 10, 16)
    ex(aSb, 0, 2); pv(aOa, V+4, aSa+8); ex(aSb, 2, 5); qk(aSa, K+4, vQa, aCa); ex(aSb, 5, 10); pv(aOb, V, aSb); ex(aSb, 10, 16)
    ex(aSa, 0, 2); pv(aOb, V+4, aSb+8); ex(aSa, 2, 5); qk(aSb, K+4, vQb, aCb); ex(aSa, 5, 10); pv(aOa, V+8, aSa); ex(aSa, 10, 16)
    ex(aSb, 0, 2); pv(aOa, V+12, aSa+8); e('s_waitcnt lgkmcnt(0)'); ex(aSb, 2, 5); qk(aSa, Kn, vQa, aCa); ex(aSb, 5, 10); pv(aOb, V+8, aSb); ex(aSb, 10, 16)

e('.p2align 6')
lab('L_att_top')
E(f'v_xor_b32 v{vKa}, 16384, v{vKa}', f'v_xor_b32 v{vVa}, 16384, v{vVa}', f's_cmp_eq_u32 s{sC}, 8', 's_barrier')
dtile(1, 0)
e('s_cbranch_scc1 L_att_done')
dtile(0, 4096, entry=True)
e('s_barrier')
dtile(1, 8192)
dtile(0, 12288)
E(f's_add_u32 s{sC}, s{sC}, 1', 's_branch L_att_top')
NBAR_Y = NBAR[0] - 2 + 16
lab('L_att_done')
E(f'ds_read_b32 v{vFl}, v{vKa}', f'v_smfmac_f32_32x32x32_bf16 {vr(aOb,16)}, {vr(aV+16+12,4)}, {vr(aSb+8,8)}, v{vIdx}')
stamp(4, 'all'); stamp(2, 'tail')
cstamp(11)
def chk(O, t):
    E(f'v_maximum3_f32 v{t}, abs(v{O}), abs(v{O+1}), abs(v{O+2})', f'v_maximum3_f32 v{t}, v{t}, abs(v{O+3}), abs(v{O+4})',
      f'v_maximum3_f32 v{t}, v{t}, abs(v{O+5}), abs(v{O+6})', f'v_maximum3_f32 v{t}, v{t}, abs(v{O+7}), v{O+8}')
def fin(O, t, d):
    for i in range(0, 8, 2): e(f'v_pk_mul_f32 {vr(d+4+i,2)}, {vr(O+i,2)}, {vr(t,2)} op_sel_hi:[1,0]')
    for i in range(4): e(f'v_cvt_pk_bf16_f32 v{d+i}, v{d+4+2*i}, v{d+4+2*i+1}')
lab('L_att_fin')
PADON[0] = opt('pad', 0); PADCNT[0] = 1000
E(f'v_rcp_f32 v{vT0}, v{aOa+8}', f's_mov_b32 s{sT0}, 0x7e000000')
chk(aOa, vT1)
fin(aOa, vT0, 16)
E(f'v_rcp_f32 v{vT2}, v{aOb+8}', 's_waitcnt lgkmcnt(0)', f'v_readfirstlane_b32 s{sT1}, v{vFl}')
chk(aOb, vT3)
fin(aOb, vT2, 28)
E(f'v_maximum3_f32 v{vT1}, v{vT1}, v{vT3}, v{vT3}', f'v_cmp_nle_f32 vcc, v{vT1}, s{sT0}'.replace('vcc, v', 'vcc, v'), f's_cmp_eq_u32 s{sT1}, 1', 's_cbranch_vccnz L_fallback')
lab('L_att_ok')
E('s_cbranch_scc0 L_st_slow',
  f'buffer_store_dwordx4 {vr(16,4)}, v{vL16}, {sr(S_WS,4)}, s{sOslot} offen',
  f'buffer_store_dwordx4 {vr(28,4)}, v{vL16}, {sr(S_WS,4)}, s{sOslot} offen offset:1024')
lab('L_st_j')
stamp(3, 'tail')
w_reads()
e(f's_mov_b32 s{sSpin}, {SPIN//10}')
if opt('tslp', 0): e(f's_sleep {opt("tslp", 0)}')
stamp(4, 'tail')
NPRE = opt('npre', 2)
o_loads(None, range(NPRE))
e(f's_mov_b32 s{sC}, 2')

cm('================ tail: out projections (X: branch A, Y: branch B) ================')
lab('L_tail_go')
e('s_waitcnt lgkmcnt(0)')
for g in range(4):
    rt = g >> 1
    b_ = oOf + 16 * g
    e(f's_waitcnt vmcnt({4*(min(4, NPRE+g)-g-1)})')
    lab(f'L_tg{g}')
    E(f'v_max3_u32 v{vT0}, v{b_}, v{b_+1}, v{b_+2}', f'v_max3_u32 v{vT1}, v{b_+3}, v{b_+4}, v{b_+5}')
    for k in range(6, 16, 2):
        t = vT0 if (k >> 1) & 1 else vT1
        e(f'v_max3_u32 v{t}, v{t}, v{b_+k}, v{b_+k+1}')
    E(f'v_max_u32 v{vT0}, v{vT0}, v{vT1}', f'v_cmp_eq_u32 vcc, -1, v{vT0}', f's_cbranch_vccnz L_tr{g}')
    lab(f'L_tk{g}')
    if g == 0: stamp(5, 'tail', 'all')
    if NPRE + g < 4: o_loads(None, [NPRE + g])
    if g == 2: e('s_barrier')
    order = [(s_, ct) for s_ in range(4*(g&1), 4*(g&1)+4) for ct in range(2)]
    if g == 3: order = sorted(order, key=lambda z: z[1])
    for m_, (s_, ct) in enumerate(order):
        a_ = oAcc + 32 * rt + 16 * ct
        e(f'v_mfma_f32_32x32x16_bf16 {vr(a_,16)}, {vr(oW+8*s_+4*ct,4)}, {vr(oOf+32*rt+4*s_,4)}, {"0" if s_ == 0 else vr(a_,16)}')
        if g == 2:
            e(f'ds_write_b128 v{80+m_ if m_ else vTp}, {vr(oAcc+4*m_,4)}')
e('s_nop 7')
PADON[0] = False
lab('L_tail_wr')
stamp(6, 'tail')
for q in range(8):
    e(f'ds_write_b128 v{80+q if q else vTp}, {vr(oAcc+32+4*q,4)} offset:8192')
E('s_waitcnt lgkmcnt(0)', 's_barrier')
stamp(7, 'tail')
lab('L_red')
tR = 96
for kq in range(4):
    E(f'ds_read_b128 {vr(tR+8*kq,4)}, v{vTr0} offset:{kq*16384}', f'ds_read_b128 {vr(tR+8*kq+4,4)}, v88 offset:{kq*16384}')
e('s_waitcnt lgkmcnt(4)')
for i in range(0, 8, 2): e(f'v_pk_add_f32 {vr(tR+i,2)}, {vr(tR+i,2)}, {vr(tR+8+i,2)}')
e('s_waitcnt lgkmcnt(0)')
for a_, b_ in ((16, 24), (0, 16)):
    for i in range(0, 8, 2): e(f'v_pk_add_f32 {vr(tR+a_+i,2)}, {vr(tR+a_+i,2)}, {vr(tR+b_+i,2)}')
for i in range(4): e(f'v_cvt_pk_bf16_f32 v{16+i}, v{tR+2*i}, v{tR+2*i+1}')
e(f'buffer_store_dwordx4 {vr(16,4)}, v{vTo}, {sr(S_OUT,4)}, s{sOutOff} offen{opt("of", "_nt").replace("_", " ")}')
E(f's_cmp_eq_u32 s{sC}, 2', 's_cbranch_scc1 L_fin',
  f's_add_u32 s{sC}, s{sC}, 1', f's_cmp_eq_u32 s{sC}, 1', f's_cselect_b32 s{sT0}, 1, 8', f's_cselect_b32 s{sT1}, 64, 1', f's_lshl_b32 s{sT1}, s{sT1}, 10', f's_lshl_b32 s{sT0}, s{sT0}, 13',
  f'v_add_u32 v{vTr0}, s{sT0}, v{vTr0}', f'v_add_u32 v88, s{sT0}, v88', f's_add_u32 s{sOutOff}, s{sOutOff}, s{sT1}',
  f's_cmp_eq_u32 s{sC}, 1', 's_cbranch_scc1 L_red', 's_barrier', 's_branch L_red')
lab('L_fin')
if STAMPS:
    stamp(8, 'tail')
    e('s_waitcnt vmcnt(0)')
    stamp(9, 'tail', 'head'); stamp(6, 'all')
    E('s_waitcnt lgkmcnt(0)', 's_nop 1')
    ECHO = [a[7:] for a in sys.argv if a.startswith('--echo=')]
    if ECHO:
        a_, b_, mul = map(int, ECHO[0].split(','))
        E(f's_sub_u32 s{sT0}, s{sST+2*b_}, s{sST+2*a_}', f's_mul_i32 s{sT0}, s{sT0}, {mul}')
        if opt('ehg', -1) >= 0:
            E(f's_cmp_eq_u32 s{sHG}, {opt("ehg", -1)}', f's_cselect_b32 s{sT0}, s{sT0}, 0', f's_cmp_ge_u32 s{sW}, 4', f's_cselect_b32 s{sT0}, s{sT0}, 0')
        lab('L_echo')
        E(f's_memrealtime {sr(4,2)}', 's_waitcnt lgkmcnt(0)', f's_sub_u32 s{sT1}, s4, s{sST+12}', f's_cmp_lt_u32 s{sT1}, s{sT0}', 's_cbranch_scc1 L_echo')
    for i in range(12): e(f'v_mov_b32 v{16+i}, s{sST+2*i}')
    E(f's_getreg_b32 s{sT0}, hwreg(HW_REG_XCC_ID)', f'v_mov_b32 v28, s{sT0}', f'v_mov_b32 v29, s{sSpin}', f'v_mov_b32 v30, s{sFB}', 'v_mov_b32 v31, 0',
      f's_lshl_b32 s{sT0}, s2, 3', f's_add_u32 s{sT0}, s{sT0}, s{sW}', f's_lshl_b32 s{sT0}, s{sT0}, 6', f's_add_u32 s{sT0}, s{sT0}, {hex(WS_STAMP)}',
      'v_mov_b32 v0, 0', 's_mov_b64 exec, 1')
    for i in range(4):
        e(f'buffer_store_dwordx4 {vr(16+4*i,4)}, v0, {sr(S_WS,4)}, s{sT0} offen offset:{16*i}')
lab('L_end')
e('s_endpgm')

cm('================ X program (waves 0-3) ================')
VMQ[:] = []; NBAR[0] = 0
xAcc, xFr, xMask = 96, 160, 32
xa, xb, xw = 56, 60, 64
(xFw, xLq, xLv, xLvp, xOne) = (72, 73, 74, 75, 76)
XV, XM, PACE = opt('xv', 2), opt('xm', 0), opt('pace', 2)
e('.p2align 6')
lab('L_X')
srd(S_WQ, 0x80000); srd(S_XA, 0x200000); srd(S_WQKV, 0x180000)
E(f's_or_b32 s{sT1}, s2, s{sW}', 's_cbranch_scc1 L_nonon', 's_waitcnt lgkmcnt(0)',
  f's_lshl_b64 {sr(sNon,2)}, {sr(sNon,2)}, 5', f's_or_b32 s{sNon}, s{sNon}, 1', f'v_mov_b32 v{vNon}, s{sNon}', f'v_mov_b32 v{vNon+1}, s{sNon+1}', 's_mov_b64 exec, 1',
  f'global_store_dwordx2 v{vZero}, {vr(vNon,2)}, {sr(S_DBG,2)} sc1', 's_mov_b64 exec, -1')
lab('L_nonon')
E(f'v_and_b32 v{vT3}, 1, v{vG}', f'v_lshlrev_b32 v{vT3}, 2, v{vT3}', f'v_xor_b32 v{vT3}, v{vT3}, v{vT2}', f'v_lshlrev_b32 v{vT3}, 4, v{vT3}',
  f'v_lshl_add_u32 v{vW}, v{vT1}, 10, v{vT3}', f'v_add_u32 v{vW2}, {8192-1024}, v{vW}',
  f'v_mul_u32_u24 v{vWA}, 3072, v{vT1}', f'v_add_u32 v{vWA}, v{vWA}, v{vT3}')
lane_setup()
SH4 = ['0', f's{sVM}', f's{sVM+1}', f's{sC}']; RG4 = [82, 84, 86, 88]
qx, qw = 56, 64
E(f'v_bfe_u32 v{vXx}, v{vN}, 1, 3', f'v_xor_b32 v{vXx}, v{vXx}, v{vH}', f'v_lshlrev_b32 v{vXx}, 4, v{vXx}',
  f's_and_b32 s{sF0}, s{sW}, 1', f's_lshl_b32 s{sF0}, s{sF0}, 12', f'v_lshl_add_u32 v{qx}, v{vN}, 7, v{vXx}', f'v_add_u32 v{qx}, s{sF0}, v{qx}',
  f'v_xor_b32 v{qx+1}, 32, v{qx}', f'v_xor_b32 v{qx+2}, 64, v{qx}', f'v_xor_b32 v{qx+3}, 96, v{qx}',
  f's_and_b32 s{sF2}, s{sW}, 2', f's_lshl_b32 s{sF2}, s{sF2}, 5', f'v_xor_b32 v{qw}, s{sF2}, v{vWl}', f'v_add_u32 v{qw}, 8192, v{qw}', f'v_add_u32 v{qw+1}, 65536, v{qw}',
  f's_mov_b32 s{sCS}, {f32(CSCALE)}')
for j in range(4): e(f'v_add_u32 v{qx+4+j}, 65536, v{qx+j}')
AR = opt('arot', 0)
if AR == 1: E(f's_add_u32 s{sXo}, s{sRot}, s{sHG}', f's_and_b32 s{sXo}, s{sXo}, 7', f's_lshl_b32 s{sXo}, s{sXo}, 7')
elif AR == 2: E(f's_lshr_b32 s{sXo}, s{sRB}, 2', f's_lshl_b32 s{sXo}, s{sXo}, 7')
elif AR == 3: E(f's_lshr_b32 s{sXo}, s{sRB}, 2', f's_lshl_b32 s{sT0}, s{sRB}, 2', f's_add_u32 s{sXo}, s{sXo}, s{sT0}', f's_and_b32 s{sXo}, s{sXo}, 7', f's_lshl_b32 s{sXo}, s{sXo}, 7')
elif AR == 4: E(f's_and_b32 s{sXo}, s{sRB}, 1', f's_lshl_b32 s{sXo}, s{sXo}, 9')
else: e(f's_mov_b32 s{sXo}, 0')
E(f's_lshl_b32 s{sW2k}, s{sW}, 11',
  f's_lshl_b32 s{sT3}, s{sRB}, 2', f's_add_u32 s{sT0}, s{sT3}, s{sW}', f's_lshl_b32 s{sT0}, s{sT0}, 14', f'v_add_u32 v{vXA}, s{sT0}, v{vP0}', f'v_add_u32 v{vXA2}, s{sT0}, v{vP1}',
  f's_mul_i32 s{sT0}, s{sW}, {16*3072}', f's_add_u32 s{sT0}, s{sT0}, s{sHG128}', f'v_add_u32 v{vWA}, s{sT0}, v{vWA}', f'v_add_u32 v{vWA2}, {8*3072-1024}, v{vWA}')
def w64(srd_, lds_base_sgpr, lds, tag):
    for hf in range(2):
        E(f's_add_u32 m0, s{lds_base_sgpr}, {lds+hf*4096}', f's_add_u32 s{sT1}, s{sT0}, {2*7168}')
        dma(vW, srd_, f's{sT0}', 0, '', tag); dma(vW2, srd_, f's{sT0}', 1024, '', tag)
        dma(vW, srd_, f's{sT1}', 2048, '', tag); dma(vW2, srd_, f's{sT1}', 3072, '', tag)
        if hf == 0: e(f's_add_u32 s{sT0}, s{sT0}, 32768')
vTc = 68
def touch_setup():
    E(f's_lshr_b32 s{sT0}, s2, 3', f's_lshl_b32 s{sT0}, s{sT0}, 2', f's_add_u32 s{sT0}, s{sT0}, s{sW}',
      f's_mul_i32 s{sT1}, s{sT0}, {12*128}', f'v_mul_u32_u24 v{vTc}, {196608}, v{vG}', f'v_lshl_add_u32 v{vTc}, v{vI}, 7, v{vTc}', f'v_add_u32 v{vTc}, s{sT1}, v{vTc}',
      f's_lshl_b32 s{sT1}, s{sT0}, 12', f'v_lshlrev_b32 v{vTc+1}, 7, v{vN}', f'v_add_u32 v{vTc+1}, s{sT1}, v{vTc+1}',
      f's_lshl_b32 s{sT1}, s{sHG}, 2', f's_add_u32 s{sT1}, s{sT1}, s{sW}', f's_lshl_b32 s{sT1}, s{sT1}, 11', f's_lshl_b32 s{sT2}, s{sRB}, 16', f's_add_u32 s{sT1}, s{sT1}, s{sT2}',
      f'v_lshlrev_b32 v{vTc+2}, 7, v{vI}', f'v_add_u32 v{vTc+2}, s{sT1}, v{vTc+2}')
def touch_w(j):
    E(f's_mov_b32 s{sT0}, {j*4*196608}', 's_mov_b32 exec_lo, 0x0fff0fff', 's_mov_b32 exec_hi, 0x0fff0fff')
    e(f'buffer_load_dword v{vTc+3}, v{vTc}, {sr(S_WQKV,4)}, s{sT0} offen', 'tc')
    e('s_mov_b64 exec, -1')
def touch_x():
    e('s_mov_b64 exec, 0xffff')
    e(f'buffer_load_dword v{vTc+3}, v{vTc+2}, {sr(S_XA,4)}, 0 offen{NT}', 'tc')
    e('s_mov_b64 exec, -1')
def touch_wo(srd_):
    e('s_mov_b32 exec_hi, 0')
    e(f'buffer_load_dword v{vTc+3}, v{vTc+1}, {sr(srd_,4)}, 0 offen', 'tc')
    e('s_mov_b64 exec, -1')
TC = opt('tc', 0)
def halo_fill():
    E(f's_lshl_b32 s{sT3}, s{sRB}, 16', f's_sub_u32 s{sT2}, s{sT3}, 16384', f's_max_i32 s{sT2}, s{sT2}, 0',
      f's_lshl_b32 s{sT0}, s{sW}, 7', f's_add_u32 s{sT0}, s{sT0}, s{sStepH}')
    for j in range(2):
        E(f's_and_b32 s{sT0}, s{sT0}, 1023', f's_add_u32 m0, s{sW2k}, {HALO+j*8192}', f's_add_u32 s{sT1}, s{sT2}, s{sT0}')
        dma(vP0, S_XA, f's{sT1}', 0, '', 'halo'); dma(vP1, S_XA, f's{sT1}', 1024, '', 'halo')
        if j == 0: e(f's_add_u32 s{sT0}, s{sT0}, 512')
def a_fill(c):
    slot = (c & 3) * SLOT
    t = f'A{c}'
    E(f's_add_u32 m0, s{sW2k}, {slot}', f's_mul_i32 s{sWo}, s{sXo}, 1536')
    dma(vXA, S_XA, f's{sXo}', 0, NT, t); dma(vXA2, S_XA, f's{sXo}', 1024, NT, t)
    for ty in range(3):
        E(f's_add_u32 m0, s{sW2k}, {slot+8192+ty*8192}', [f's_add_u32 s{sXo}, s{sXo}, 128', f's_add_u32 s{sWo}, s{sWo}, 1024', f's_add_u32 s{sWo}, s{sWo}, 1024'][ty])
        dma(vWA, S_WQKV, f's{sWo}', 0, WNT, t); dma(vWA2, S_WQKV, f's{sWo}', 1024, WNT, t)
    e(f's_and_b32 s{sXo}, s{sXo}, 1023')
def kv_fill(k):
    E(f's_add_u32 m0, s{sW4k}, {R+((k&1)^1)*16384}', f's_and_b32 s{sKVo}, s{sKVo}, 0x1ffff')
    for j in range(4): dma(vL16, S_WS, f's{sKVo}', 1024*j, ' sc1', f'KV{k}')
    e(f's_add_u32 s{sKVo}, s{sKVo}, 16384')
def wo_fill(srd_, half, lds, tag):
    e(f's_add_u32 s{sT0}, s{sWoff}, {half*256*1024}')
    if opt('worot', 1): e(f's_and_b32 s{sT0}, s{sT0}, 0x7ffff')
    w64(srd_, sW8k, lds, tag)
def masks():
    E(f'v_lshlrev_b32 v{vT0}, 2, v{vH}', f'v_sub_u32 v{vT0}, v{vN}, v{vT0}', f'v_add_u32 v{vT0}, 18, v{vT0}',
      f'v_mov_b32 v{vT2}, 0x5555', f'v_mov_b32 v{vT3}, 0', f'v_lshlrev_b64 {vr(vT2,2)}, v{vT0}, {vr(vT2,2)}',
      f'v_not_b32 v{vT2}, v{vT2}', f'v_not_b32 v{vT3}, v{vT3}', f's_mov_b32 s{sF1}, 0xff800000')
    for r in range(16): E(f'v_bfe_i32 v{xMask+r}, v{vT3}, {8*(r>>2)+(r&3)}, 1', f'v_and_b32 v{xMask+r}, s{sF1}, v{xMask+r}')
    for r in range(8, 16): E(f'v_bfe_i32 v{xMask+8+r}, v{vT2}, {8*(r>>2)+(r&3)}, 1', f'v_and_b32 v{xMask+8+r}, s{sF1}, v{xMask+8+r}')
def local_setup():
    E(f's_and_b32 s{sT0}, s{sW}, 1', f's_lshl_b32 s{sT0}, s{sT0}, 12', f's_lshr_b32 s{sT1}, s{sW}, 1', f's_lshl_b32 s{sT2}, s{sT1}, 11', f's_add_u32 s{sT0}, s{sT0}, s{sT2}', f's_add_u32 s{sT0}, s{sT0}, {SC}', f'v_add_u32 v{xFw}, s{sT0}, v{vL16}',
      f's_lshl_b32 s{sT0}, s{sRB}, 3', f's_add_u32 s{sT0}, s{sT0}, s{sHG}', f's_lshl_b32 s{sStepA}, s{sT0}, 13', f's_add_u32 s{sStepA}, s{sStepA}, s{sT2}', f's_add_u32 s{sStepA}, s{sStepA}, {hex(WS_HX)}',
      f's_lshl_b32 s{sStepB}, s{sT0}, 1', f's_add_u32 s{sStepB}, s{sStepB}, s{sT1}', f's_lshl_b32 s{sStepB}, s{sStepB}, 6', f's_add_u32 s{sStepB}, s{sStepB}, {hex(WS_FHX)}',
      f's_cmp_eq_u32 s{sRB}, 0', f's_cselect_b32 s{sT2}, 0, 8', f's_sub_u32 s{sT0}, s{sT0}, s{sT2}', f's_lshl_b32 s{sT2}, s{sT2}, 7', f's_sub_u32 s{sT2}, s{sStepB}, s{sT2}', f'v_mov_b32 v{vB1}, s{sT2}',
      f's_lshl_b32 s{sStepH}, s{sT0}, 13', f's_lshl_b32 s{sT2}, s{sW}, 10', f's_add_u32 s{sStepH}, s{sStepH}, s{sT2}', f's_add_u32 s{sStepH}, s{sStepH}, {hex(WS_HX)}',
      f'v_mov_b32 v{xOne}, 0x3f803f80', f'v_mov_b32 v{xOne+1}, 0x3f803f80',
      f's_lshl_b32 s{sT1}, s{sW}, 10', f's_add_u32 s{sT2}, s{sT1}, {ONES}', f's_add_u32 s{sT1}, s{sT1}, {SC}', f'v_add_u32 v{xLq}, s{sT1}, v{vL16}',
      f'v_and_b32 v{vT0}, 1, v0', f'v_lshlrev_b32 v{vT0}, 5, v{vT0}', f'v_lshl_add_u32 v{vT0}, v{vH}, 3, v{vT0}',
      f'v_lshrrev_b32 v{vT1}, 2, v{vI}', f'v_add_u32 v{vT0}, v{vT0}, v{vT1}', f'v_lshlrev_b32 v{vT0}, 4, v{vT0}', f'v_and_b32 v{vT1}, 2, v0', f'v_lshl_add_u32 v{vT0}, v{vT1}, 2, v{vT0}',
      f'v_add_u32 v{xLv}, s{sT1}, v{vT0}', f'v_mov_b32 v{xLvp}, s{sT2}', f'v_lshl_add_u32 v{vOw}, v0, 3, v{xLvp}',
      f'v_and_b32 v{vT0}, 16, v0', f'v_cmp_ne_u32 vcc, 0, v{vT0}',
      f'v_add_u32 v78, {4*4096}, v{xLv}', f'v_add_u32 v79, {5*4096}, v{xLv}', f'v_add_u32 v80, {7*4096}, v{xLv}',
      f'v_cndmask_b32 v78, v78, v{xLvp}, vcc', f'v_cndmask_b32 v79, v79, v{xLvp}, vcc', f'v_cndmask_b32 v80, v80, v{xLvp}, vcc',
      f's_lshl_b32 s{sT0}, s{sRB}, 6', f's_lshl_b32 s{sT1}, s{sHG}, 2', f's_add_u32 s{sT1}, s{sT1}, s{sW}', f's_add_u32 s{sT0}, s{sT0}, s{sT1}',
      f's_lshl_b32 s{sT0}, s{sT0}, 10', f's_add_u32 s{sOslot}, s{sT0}, {hex(WS_OA)}', f's_add_u32 s{sOslot2}, s{sOslot}, 32768',
      f's_lshl_b32 s{sT0}, s{sRB}, 5', f's_add_u32 s{sT0}, s{sT0}, s{sT1}', f's_lshl_b32 s{sT0}, s{sT0}, 6', f's_add_u32 s{sK1}, s{sT0}, {hex(WS_FOA)}')
    for i in range(4): e(f'v_mov_b32 v{vF0+i}, -1')
def sentinels():
    E(f's_add_u32 s{sT0}, s{sOslot}, {hex(WS_OB-WS_OA)}', f's_add_u32 s{sT1}, s{sT0}, 32768')
    e(f'buffer_store_dwordx4 {vr(vF0,4)}, v{vL16}, {sr(S_WS,4)}, s{sT0} offen sc1', 'sent')
    e(f'buffer_store_dwordx4 {vr(vF0,4)}, v{vL16}, {sr(S_WS,4)}, s{sT1} offen sc1', 'sent')
    nonce_load('sent')
def setup_a():
    E(f's_cmp_eq_u32 s{sW}, 3', f's_cselect_b32 s{sT1}, 15, 31', f'v_and_b32 v{vT0}, s{sT1}, v{vN}', f'v_lshl_add_u32 v{xa}, v{vT0}, 7, v{vXx}',
      f's_cselect_b32 s{sT1}, {HALO}, 0', f'v_add_u32 v{xa}, s{sT1}, v{xa}', f's_cselect_b32 s{sT1}, 0, 4096', f'v_add_u32 v{xb}, s{sT1}, v{xa}',
      f's_cselect_b32 s{sStepA}, 1, 16', f's_cselect_b32 s{sStepB}, 1, -32', f's_cselect_b32 s{sT1}, 1, s{sW}', f's_cselect_b32 s{sT2}, 2, s{sW}',
      f's_lshl_b32 s{sStepA}, s{sStepA}, 11', f's_lshl_b32 s{sStepB}, s{sStepB}, 11',
      f's_lshl_b32 s{sT1}, s{sT1}, 13', f's_add_u32 s{sT1}, s{sT1}, 8192', f'v_add_u32 v{xw}, s{sT1}, v{vWl}', f'v_xor_b32 v{xw+1}, 64, v{xw}',
      f's_lshl_b32 s{sT2}, s{sT2}, 13', f's_add_u32 s{sT2}, s{sT2}, 8192', f'v_add_u32 v{xw+2}, s{sT2}, v{vWl}', f'v_xor_b32 v{xw+3}, 64, v{xw+2}')
    for j in range(4): e(f'v_add_u32 v{xw+4+j}, 65536, v{xw+j}')
    for s_ in range(1, 4): E(f'v_xor_b32 v{xa+s_}, {32*s_}, v{xa}', f'v_xor_b32 v{xb+s_}, {32*s_}, v{xb}')
def setup_b():
    E(f's_lshr_b32 s{sT1}, s{sRB}, 2', f's_lshl_b32 s{sKVo}, s{sT1}, 14', f's_add_u32 s{sKVo}, s{sKVo}, s{sW4k}', f's_add_u32 s{sKVo}, s{sKVo}, 16384',
      f'v_lshlrev_b32 v{vPa}, 3, v0', f'v_add_u32 v{vPa}, {hex(WS_FD)}, v{vPa}',
      f'v_lshlrev_b32 v{vPa2}, 6, v{vN}', f's_lshl_b32 s{sT2}, s{sRB}, 11', f's_add_u32 s{sT2}, s{sT2}, {hex(WS_FOA)}', f'v_add_u32 v{vPa2}, s{sT2}, v{vPa2}',
      f's_add_u32 s{sT2}, s{sT1}, 1', f's_lshl_b32 s{sT2}, s{sT2}, 5', f'v_add_u32 v{vB0}, s{sT2}, v0', f'v_and_b32 v{vB0}, 255, v{vB0}',
      f'v_lshlrev_b32 v{vB0}, 6, v{vB0}', f'v_add_u32 v{vB0}, {hex(WS_FKV)}, v{vB0}',
      f's_mov_b32 s{sVM}, 512', f's_mov_b32 s{sVM+1}, 1024', f's_mov_b32 s{sC}, 1536',
      f's_lshl_b32 s{sW8k}, s{sW}, 13', f's_lshl_b32 s{sWoff}, s{sW}, 16', f's_add_u32 s{sWoff}, s{sWoff}, s{sHG128}')
    if opt('worot', 1): E(f's_lshl_b32 s{sT2}, s{sRB}, 17', f's_add_u32 s{sWoff}, s{sWoff}, s{sT2}')
    srd(S_WOA, 0x80000); srd(S_WOB, 0x80000)
    E(f's_getreg_b32 s{sXcc}, hwreg(HW_REG_XCC_ID, 0, 4)', f's_lshl_b32 s{sXcc}, s{sXcc}, 1')
setup_b()
E(f's_add_u32 s{sT0}, s{sW}, s{sRot}', f's_lshl_b32 s{sT0}, s{sT0}, 16', f's_add_u32 s{sT0}, s{sT0}, s{sHG128}', f's_lshl_b32 s{sT2}, s{sW}, 14',
  f's_and_b32 s{sT0}, s{sT0}, 0x7ffff', 's_waitcnt lgkmcnt(0)', 's_barrier')
w64(S_WQ, sT2, 8192, 'B')
E(f's_add_u32 s{sT0}, s{sT0}, {4*65536-32768}', f's_and_b32 s{sT0}, s{sT0}, 0x7ffff')
w64(S_WQ, sT2, 65536+8192, 'B')
stamp(1, 'head')
local_setup(); tail_setup(); masks()
if TC: touch_setup()
for j in range(16): e(f'v_mov_b32 v{208+j}, 0')
E('s_waitcnt vmcnt(0)', 's_barrier')
stamp(5, 'head'); stamp(1, 'all', 'x')
def qrd(u):
    sc, st = u >> 2, u & 3
    x = vFr + 8 * (u % 8)
    hi = sc >> 2
    o = (sc & 3) * 16384
    E(f'ds_read_b128 {vr(x,4)}, v{qx+4*hi+st} offset:{o}',
      f'ds_read_b64_tr_b16 {vr(x+4,2)}, v{qw+hi} offset:{o+st*2048}', f'ds_read_b64_tr_b16 {vr(x+6,2)}, v{qw+hi} offset:{o+st*2048+512}')
for u in range(5): qrd(u)
if TC & 8: touch_x(); touch_w(0)
for u in range(32):
    x = vFr + 8 * (u % 8)
    issued = min(32, 5 + u)
    e(f's_waitcnt lgkmcnt({3*(issued-u-1)})')
    e(f'v_mfma_f32_32x32x16_bf16 {vr(vQacc,16)}, {vr(x+4,4)}, {vr(x,4)}, {"0" if u == 0 else vr(vQacc,16)}')
    if 5 + u < 32: qrd(5 + u)
    if EA and u == 7: e('s_barrier')
    if EA and u == EA:
        CAP[0] = []; a_fill(0); cap0 = CAP[0]; CAP[0] = None
        side0 = []; g_ = []
        for it in cap0:
            g_.append(it)
            if it[1] is not None: side0.append(g_); g_ = []
        side0[-1] += g_
    if EA and u >= EA and side0 and (u - EA) % opt('eas', 1) == 0:
        for s_, t_ in side0.pop(0): e(s_, t_)
if EA: assert not side0
E(f's_cmp_lg_u32 s{sW}, 0', 's_cbranch_scc1 L_np2')
poll_issue(vB0, ['0'], [vFl])
lab('L_np2')
e('s_nop 9')
stamp(6, 'head')
for j in range(16): e(f'v_mul_f32 v{vQacc+j}, s{sCS}, v{vQacc+j}')
for j in range(8): e(f'v_cvt_pk_bf16_f32 v{vQacc+j}, v{vQacc+2*j}, v{vQacc+2*j+1}')
E(f'ds_write_b128 v{vQx}, {vr(vQacc,4)}', f'ds_write_b128 v{vQx}, {vr(vQacc+4,4)} offset:1024',
  f's_setprio {XV}', 's_waitcnt lgkmcnt(0)')
stamp(7, 'head'); stamp(2, 'all', 'x')
e('s_barrier')
for j in range(16): e(f'v_mov_b32 v{16+j}, 0')
stamp(8, 'head'); stamp(3, 'all', 'x')

def a_chunk(cs, side=()):
    side = list(side)
    seq = []
    u = 0
    for c in cs:
        hi, base = (c >> 1) & 1, (c & 1) * SLOT
        for s in range(4):
            x = xFr + 16 * (u % 3); u += 1
            for ty in range(3):
                r = [f'ds_read_b128 {vr(x,4)}, v{qx+4*hi+s} offset:{base}'] if ty == 0 else []
                o = base + ty * 8192 + s * 2048
                r += [f'ds_read_b64_tr_b16 {vr(x+4+4*ty,2)}, v{qw+hi} offset:{o}', f'ds_read_b64_tr_b16 {vr(x+6+4*ty,2)}, v{qw+hi} offset:{o+512}']
                a = xAcc + 16 * ty
                seq.append((r, f'v_mfma_f32_32x32x16_bf16 {vr(a,16)}, {vr(x+4+4*ty,4)}, {vr(x,4)}, {"0" if (c == 0 and s == 0) else vr(a,16)}'))
    if XM != XV: e(f's_setprio {XM}')
    LA = opt('la', 1)
    for k_ in range(LA): E(*seq[k_][0])
    for k_, (r, m) in enumerate(seq):
        if k_ + LA < len(seq): E(*seq[k_+LA][0])
        e(f's_waitcnt lgkmcnt({sum(len(seq[j][0]) for j in range(k_+1, min(len(seq), k_+LA+1)))})')
        e(m)
        take = -(-len(side) // (len(seq) - k_))
        for g in side[:take]:
            for s_, t_ in g: e(s_, t_)
        side = side[take:]
    if XM != XV: e(f's_setprio {XV}')
def write_frags():
    e('s_nop 6')
    for ty in range(3):
        for hd in range(2):
            a = xAcc + 16 * ty + 8 * hd
            for i in range(4): e(f'v_cvt_pk_bf16_f32 v{a+i}, v{a+2*i}, v{a+2*i+1}')
            e(f'ds_write_b128 v{xFw}, {vr(a,4)} offset:{ty*8192+hd*1024}')
    E(f's_bitcmp1_b32 s{sW}, 0', 's_cbranch_scc0 L_nopub', f's_add_u32 s{sT0}, s{sStepA}, 4096',
      f'buffer_store_dwordx4 {vr(xAcc+16,4)}, v{vL16}, {sr(S_WS,4)}, s{sStepA} offen sc1',
      f'buffer_store_dwordx4 {vr(xAcc+24,4)}, v{vL16}, {sr(S_WS,4)}, s{sStepA} offen offset:1024 sc1',
      f'buffer_store_dwordx4 {vr(xAcc+32,4)}, v{vL16}, {sr(S_WS,4)}, s{sT0} offen sc1',
      f'buffer_store_dwordx4 {vr(xAcc+40,4)}, v{vL16}, {sr(S_WS,4)}, s{sT0} offen offset:1024 sc1')
    lab('L_nopub')
PUB = [0]
def halo_flag():
    E(f's_bitcmp1_b32 s{sW}, 0', 's_cbranch_scc0 L_nohf')
    flag_store('hx', f's{sStepB}', f's_waitcnt vmcnt({len(VMQ)-PUB[0]})')
    lab('L_nohf')
def halo_get():
    poll_check('hx', vB1, ['0'], [vFl], None)
    E(f's_lshl_b32 s{sT0}, s{sW}, 10', f's_add_u32 m0, s{sT0}, {SC+6*4096}', f's_add_u32 s{sT1}, s{sStepH}, 4096')
    dma(vL16, S_WS, f's{sStepH}', 0, ' sc1', 'hx')
    E(f's_add_u32 m0, s{sT0}, {SC+7*4096}', 's_nop 0')
    dma(vL16, S_WS, f's{sT1}', 0, ' sc1', 'hx')
def local_task(t):
    lq, lk, lp, lv = xFr, xFr+4, xFr+8, xFr+12
    lS, lP, lO = xAcc, xAcc+16, (16 if t else 208)
    kp = 6 if t == 0 else 2
    vc, vp = (78, 80) if t == 0 else (79, 78)
    E(f'ds_read_b128 {vr(lq,4)}, v{xLq} offset:{t*4096}', f'ds_read_b128 {vr(lk,4)}, v{xLq} offset:{(2+t)*4096}', f'ds_read_b128 {vr(lp,4)}, v{xLq} offset:{kp*4096}',
      f'ds_read_b64_tr_b16 {vr(lv,2)}, v{vc}', f'ds_read_b64_tr_b16 {vr(lv+2,2)}, v{vc} offset:64',
      f'ds_read_b64_tr_b16 {vr(lv+4,2)}, v{vc} offset:256', f'ds_read_b64_tr_b16 {vr(lv+6,2)}, v{vc} offset:320',
      f'ds_read_b64_tr_b16 {vr(lv+8,2)}, v{vp} offset:256', f'ds_read_b64_tr_b16 {vr(lv+10,2)}, v{vp} offset:320')
    if t == 0:
        E(f's_cmp_lg_u32 s{sRB}, 0', 's_cbranch_scc1 L_m0')
        for r in range(8): e(f'v_mov_b32 v{xMask+16+r}, 0xff800000')
        lab('L_m0')
    E('s_waitcnt lgkmcnt(6)', 's_nop 0',
      f'v_mfma_f32_32x32x16_bf16 {vr(lS,16)}, {vr(lk,4)}, {vr(lq,4)}, {vr(xMask,16)}',
      f'v_mfma_f32_32x32x16_bf16 {vr(lP,16)}, {vr(lp,4)}, {vr(lq,4)}, {vr(xMask+8,16)}')
    e('s_nop 10')
    regs = [lS+i for i in range(16)] + [lP+8+i for i in range(8)]
    maxtree(regs, vT0, vT1)
    E('s_nop 1', f'v_permlane32_swap_b32 v{vT0}, v{vT1}', f'v_max_f32 v{vT0}, v{vT0}, v{vT1}', f'v_mul_f32 v{vT0}, {f32(-CSCALE)}, v{vT0}')
    for k in range(0, 24, 2): e(f'v_pk_fma_f32 {vr(regs[k],2)}, {vr(regs[k],2)}, {sr(sCS,2)}, {vr(vT0,2)} op_sel_hi:[1,0,0]')
    e('s_waitcnt lgkmcnt(0)')
    for k in range(24):
        e(f'v_exp_f32 v{regs[k]}, v{regs[k]}')
        if k == 9: e(f'v_smfmac_f32_32x32x32_bf16 {vr(lO,16)}, {vr(lv,4)}, {vr(lS,8)}, v{vIdx}')
        if k == 17: e(f'v_smfmac_f32_32x32x32_bf16 {vr(lO,16)}, {vr(lv+4,4)}, {vr(lS+8,8)}, v{vIdx}')
    E('s_nop 1', f'v_smfmac_f32_32x32x32_bf16 {vr(lO,16)}, {vr(lv+8,4)}, {vr(lP+8,8)}, v{vIdx}', 's_nop 11',
      f'v_rcp_f32 v{vT2}, v{lO+8}', 's_nop 0')
    for i in range(0, 8, 2): e(f'v_pk_mul_f32 {vr(lO+i,2)}, {vr(lO+i,2)}, {vr(vT2,2)} op_sel_hi:[1,0]')
    d = xAcc + 48 + 4 * t
    for i in range(4): e(f'v_cvt_pk_bf16_f32 v{d+i}, v{lO+2*i}, v{lO+2*i+1}')
    e(f'buffer_store_dwordx4 {vr(d,4)}, v{vL16}, {sr(S_WS,4)}, s{sOslot2 if t else sOslot} offen sc1', 'oa')

def oa_mfma(rt, wr=False):
    for s_ in range(8):
        for ct in range(2):
            a_ = oAcc + 32 * rt + 16 * ct
            e(f'v_mfma_f32_32x32x16_bf16 {vr(a_,16)}, {vr(oW+8*s_+4*ct,4)}, {vr(oOf+32*rt+4*s_,4)}, {"0" if s_ == 0 else vr(a_,16)}')
            m_ = 2 * s_ + ct
            if wr and wr <= m_ < wr + 4:
                for q in (2*(m_-wr), 2*(m_-wr)+1): e(f'ds_write_b128 v{80+q if q else vTp}, {vr(oAcc+4*q,4)}')
PAT = opt('pat', 3)
if PAT == 3:
    CH = {n: [n-2] for n in range(2, 10)}; FILL = {n: [n] for n in range(8)}
else:
    CH = {2: [0], 3: [1], 4: [2], 5: [3, 4], 6: [5], 7: [6], 8: [7]}; FILL = {0: [0], 1: [1], 2: [2, 3], 3: [4], 4: [5], 5: [6], 6: [7]}
if EA:
    CH = {n: [n-1] for n in range(1, 9)}; FILL = {n: [n+1] for n in range(7)}
NG = max(CH)
LATE = opt('late', 1 if NG < 9 else 0)
AE = opt('aearly', 0)
for n in range(16):
    cm(f'X interval {n}')
    if n < 9: stamp(n + 1, 'i0')
    if n >= 8: stamp(n - 7, 'i1')
    if n in (opt('dn', 2), opt('dn', 2)+1, opt('dn', 2)+2): stamp(1 + 4*(n-opt('dn', 2)), 'd')
    if n in (1, 2, 4, 10, 12, 14): stamp({1: 4, 2: 5, 4: 6, 10: 7, 12: 8, 14: 9}[n], 'x')
    if STAMPS and STMODE == 'xc' and n in (4, 8, 10, 12, 14, 15):
        i_ = (4, 8, 10, 12, 14, 15).index(n)
        E(f's_memrealtime {sr(sST+4*i_,2)}', f's_memtime {sr(sST+4*i_+2,2)}')
    waits = []
    k = n // 2
    if n == 0:
        E(f's_cmp_lg_u32 s{sW}, 0', 's_cbranch_scc1 L_nochk_kv1')
        poll_check('kv1', vB0, ['0'], [vFl], 0)
    ILV = opt('ilv', 1) and n in CH
    if n == 3:
        E(f's_cmp_lg_u32 s{sW}, 0', 's_cbranch_scc1 L_np3')
        poll_issue(vPa, SH4, RG4)
        lab('L_np3')
        NP3 = len(VMQ)
    if ILV: CAP[0] = []
    if n == 1: kv_fill(1)
    if n % 2 == 0 and 1 <= k <= 6: kv_fill(k + 1)
    for c in FILL.get(n, []): a_fill(c)
    WS_ = opt('wos', 3)
    if n == NG - 1: sentinels()
    if WS_ == 0:
        if n == NG - 1: wo_fill(S_WOA, 0, 0, 'woA')
        if n == NG: wo_fill(S_WOA, 1, SLOT, 'woA')
    if WS_ == 3 and n == NG - 1: wo_fill(S_WOA, 0, 0, 'woA')
    if WS_ == 2:
        if n == NG - 2: wo_fill(S_WOA, 0, 0, 'woA')
        if n == NG - 1: wo_fill(S_WOA, 1, SLOT, 'woA')
    if TC & 1 and n == 0: touch_x(); touch_w(0)
    if TC & 2 and n == 2: touch_w(1)
    if TC & 4 and n == 3: touch_wo(S_WOA)
    if TC & 4 and n == 5: touch_wo(S_WOB)
    DN = opt('dn', 2)
    side = []
    if ILV:
        cap = CAP[0]; CAP[0] = None
        g = []
        for it in cap:
            g.append(it)
            if it[1] is not None: side.append(g); g = []
        if g: side[-1] += g
    if n in (DN, DN+1): stamp(2 + 4*(n-DN), 'd')
    if n in CH: a_chunk(CH[n], side)
    if n in (DN, DN+1): stamp(3 + 4*(n-DN), 'd')
    for c in CH.get(n + 1, []): waits.append(f'A{c}')
    if n == NG: write_frags(); PUB[0] = len(VMQ)
    if n == NG + 1:
        e(f'ds_write_b64 v{vOw}, {vr(xOne,2)}')
        if opt('hfe', 1): halo_flag()
        local_task(1)
        if not opt('hfe', 1): halo_flag()
    if n == NG + 2:
        halo_get()
        if WS_ == 1: wo_fill(S_WOA, 0, 0, 'woA')
        if WS_ == 3: wo_fill(S_WOA, 1, SLOT, 'woA')
    if n == NG + 3:
        e(f's_waitcnt vmcnt({vmn("hx")})')
        local_task(0)
        if WS_ == 3: waits.append('woA')
        if WS_ == 1: wo_fill(S_WOA, 1, SLOT, 'woA')
    if n == NG + 4:
        if LATE: wo_fill(S_WOB, 0, 2*SLOT, 'woB')
        flag_store('oa', f's{sK1}', f's_waitcnt vmcnt({vmn("oa")})', xcc=True)
        VMQ.append('fl')
        if WS_ != 1 and not LATE: w_reads()
    if WS_ != 1 and LATE and n == NG + 5: w_reads()
    if LATE and n == NG + 5 and WS_ != 1: wo_fill(S_WOB, 1, 3*SLOT, 'woB')
    if WS_ == 1 and n == NG + 5: waits.append('woA')
    if n == NG + 5 + LATE:
        E(f's_cmp_lg_u32 s{sW}, 0', 's_cbranch_scc1 L_skip_oa')
        poll_check('oa', vPa2, ['0'], [vFl], None, xcc=True)
        E(f'v_or_b32 v{vFl}, s{sXcc}, v{vNon}', f'v_cmp_ne_u32 vcc, v{vFl}, v{vFl+2}', 's_nop 1', 's_cmp_eq_u64 vcc, 0', f's_cselect_b32 s{sT0}, {opt("fast", 1)}, 0',
          f'v_mov_b32 v{vFl}, s{sT0}')
        lab('L_skip_oa')
        if not LATE: wo_fill(S_WOB, 0, 2*SLOT, 'woB'); wo_fill(S_WOB, 1, 3*SLOT, 'woB')
        if WS_ == 1: wo_fill(S_WOB, 1, 3*SLOT, 'woB'); w_reads()
    if n == NG + 6 + LATE:
        E(f's_cmp_lg_u32 s{sW}, 0', 's_cbranch_scc1 L_skip_same', f'v_mov_b32 v{vFl+1}, {R+16384}', f'ds_write_b32 v{vFl+1}, v{vFl}')
        lab('L_skip_same')
        o_loads('oal')
    if n == 13 and opt('pad', 0):
        E('s_mov_b64 exec, 0', 's_branch L_pad0')
        lab(f'L_pad{PADS[0]}')
        e('s_mov_b64 exec, -1')
    if n == 15 and AE:
        E('s_waitcnt vmcnt(8)', f's_setprio {XM}')
        oa_mfma(0)
        e(f's_setprio {XV}')
    if n % 2 == 1 and k + 1 <= 7: waits.append(f'KV{k+1}')
    if n == 15: waits.append('woB')
    if waits: e(f's_waitcnt vmcnt({min(vmn(t) for t in waits)}) lgkmcnt(0)')
    else: e('s_waitcnt lgkmcnt(0)')
    if n == 3:
        E(f's_cmp_lg_u32 s{sW}, 0', 's_cbranch_scc1 L_nochk_kv2')
        poll_check('kv2', vPa, SH4, RG4, len(VMQ) - NP3)
    if n < 9: stamp(n + 1, 'j0')
    if n >= 8: stamp(n - 7, 'j1')
    if n in (DN, DN+1): stamp(4 + 4*(n-DN), 'd')
    e('s_barrier')
assert NBAR[0] == NBAR_Y, (NBAR[0], NBAR_Y)
E('s_setprio 0', f's_mov_b32 s{sSpin}, 0', f's_mov_b32 s{sC}, 0')
stamp(9, 'i1')
e('s_waitcnt vmcnt(0)')
stamp(5, 'tail')
if not AE: oa_mfma(0)
oa_mfma(1, 10)
E('s_nop 9', 's_branch L_tail_wr')

cm('---- fallback (Y waves): true max, K/V from global ----')
lab('L_fallback')
E(f's_cmp_eq_u32 s{sFB}, 0', 's_cbranch_scc1 L_fb_go', f's_cmp_eq_u32 s{sT1}, 1', 's_branch L_att_ok')
lab('L_fb_go')
E(f's_mov_b32 s{sFB}, 1', f'v_mov_b32 v{vT0}, 0xff800000', f'v_mov_b32 v{vT2}, 0xff800000', f's_mov_b32 s{sT2}, 0')
lab('L_fb_max')
E(f'buffer_load_dwordx4 {vr(aK,4)}, v{vL16}, {sr(S_WS,4)}, s{sT2} offen sc1', 's_waitcnt vmcnt(0)',
  f'v_mfma_f32_32x32x16_bf16 {vr(aSa,16)}, {vr(aK,4)}, {vr(vQa,4)}, 0', f'v_mfma_f32_32x32x16_bf16 {vr(aSb,16)}, {vr(aK,4)}, {vr(vQb,4)}, 0', 's_nop 15')
for k in range(0, 16, 2): e(f'v_max3_f32 v{vT0}, v{vT0}, v{aSa+k}, v{aSa+k+1}')
for k in range(0, 16, 2): e(f'v_max3_f32 v{vT2}, v{vT2}, v{aSb+k}, v{aSb+k+1}')
E(f's_add_u32 s{sT2}, s{sT2}, 2048', f's_cmp_lt_u32 s{sT2}, {64*2048}', 's_cbranch_scc1 L_fb_max',
  f'v_mov_b32 v{vT1}, v{vT0}', f'v_mov_b32 v{vT3}, v{vT2}', 's_nop 1',
  f'v_permlane32_swap_b32 v{vT0}, v{vT1}', f'v_permlane32_swap_b32 v{vT2}, v{vT3}', f'v_max_f32 v{vT0}, v{vT0}, v{vT1}', f'v_max_f32 v{vT2}, v{vT2}, v{vT3}')
for i in range(16): e(f'v_sub_f32 v{aCa+i}, 0, v{vT0}')
for i in range(16): e(f'v_sub_f32 v{aCb+i}, 0, v{vT2}')
for i in range(32): e(f'v_mov_b32 v{aOa+i}, 0')
E(f'v_lshlrev_b32 v{vT2}, 4, v{vI}', f'v_lshl_add_u32 v{vT2}, v{vH}, 8, v{vT2}', f's_mov_b32 s{sT2}, 0')
lab('L_fb_pv')
E(f'buffer_load_dwordx4 {vr(aK,4)}, v{vL16}, {sr(S_WS,4)}, s{sT2} offen sc1', f's_mov_b64 exec, {sr(sVM,2)}',
  f'buffer_load_dwordx4 {vr(aV,4)}, v{vT2}, {sr(S_WS,4)}, s{sT2} offen offset:1024 sc1',
  f'buffer_load_dwordx4 {vr(aV+4,4)}, v{vT2}, {sr(S_WS,4)}, s{sT2} offen offset:1536 sc1', 's_mov_b64 exec, -1', 's_waitcnt vmcnt(0)',
  f'v_mfma_f32_32x32x16_bf16 {vr(aSa,16)}, {vr(aK,4)}, {vr(vQa,4)}, {vr(aCa,16)}',
  f'v_mfma_f32_32x32x16_bf16 {vr(aSb,16)}, {vr(aK,4)}, {vr(vQb,4)}, {vr(aCb,16)}', 's_nop 15')
for i in range(32): e(f'v_exp_f32 v{aSa+i}, v{aSa+i}')
E('s_nop 1',
  f'v_smfmac_f32_32x32x32_bf16 {vr(aOa,16)}, {vr(aV,4)}, {vr(aSa,8)}, v{vIdx}', f'v_smfmac_f32_32x32x32_bf16 {vr(aOa,16)}, {vr(aV+4,4)}, {vr(aSa+8,8)}, v{vIdx}',
  f'v_smfmac_f32_32x32x32_bf16 {vr(aOb,16)}, {vr(aV,4)}, {vr(aSb,8)}, v{vIdx}', f'v_smfmac_f32_32x32x32_bf16 {vr(aOb,16)}, {vr(aV+4,4)}, {vr(aSb+8,8)}, v{vIdx}',
  f's_add_u32 s{sT2}, s{sT2}, 2048', f's_cmp_lt_u32 s{sT2}, {64*2048}', 's_cbranch_scc1 L_fb_pv', 's_nop 15', 's_branch L_att_fin')
for g, so in enumerate((sOoff, sT1, sT2, sT3)):
    lab(f'L_tr{g}')
    E(f's_sub_u32 s{sSpin}, s{sSpin}, 1', f's_cbranch_scc1 L_tk{g}')
    for j in range(4):
        o = f' offset:{j*1024}' if j else ''
        e(f'buffer_load_dwordx4 {vr(oOf+16*g+4*j,4)}, v{vL16}, {sr(S_WS,4)}, s{so} offen{o} sc1')
    E('s_waitcnt vmcnt(0)', f's_branch L_tg{g}')
lab('L_st_slow')
E(f'buffer_store_dwordx4 {vr(16,4)}, v{vL16}, {sr(S_WS,4)}, s{sOslot} offen sc1',
  f'buffer_store_dwordx4 {vr(28,4)}, v{vL16}, {sr(S_WS,4)}, s{sOslot} offen offset:1024 sc1', 's_branch L_st_j')
lab('L_code_end')

HDR = open(f'cdna_kernels/{NAME}.s.ref').read().split('\n')
hdr = []
for line in HDR:
    if line.startswith('; @launch'): break
    hdr.append(line)
txt = '\n'.join(hdr) + '\n; @launch grid=(256,1,1) block=(512,1,1) lds=163840\n'
txt += f'''.amdgcn_target "amdgcn-amd-amdhsa--gfx950"
.text
.globl {NAME}_kernel
.p2align 8
.type {NAME}_kernel,@function
'''
txt += '\n'.join(L) + '\n'
txt += f'''.section .rodata,"a"
.p2align 6
.amdhsa_kernel {NAME}_kernel
  .amdhsa_next_free_vgpr {NVGPR}
  .amdhsa_next_free_sgpr 102
  .amdhsa_accum_offset {NVGPR}
  .amdhsa_group_segment_fixed_size 0
  .amdhsa_kernarg_size 88
  .amdhsa_user_sgpr_count 2
  .amdhsa_user_sgpr_kernarg_segment_ptr 1
  .amdhsa_system_sgpr_workgroup_id_x 1
.end_amdhsa_kernel
'''
open(OUT, 'w').write(txt)
print('wrote', OUT, len(L), 'lines; barriers', NBAR_Y)
```

```python
import sys, struct

NAME = 'concat_heads__sliding_local_dilated__grouped_kv_mqa__prompt'
STAMPS = '--stamps' in sys.argv
STMODE = ([a[5:] for a in sys.argv if a.startswith('--st=')] + ['all'])[0]
XP = [a[4:] for a in sys.argv if a.startswith('--x=')]
args = [a for a in sys.argv[1:] if not a.startswith('--')]
OUT = args[0] if args else f'cdna_kernels/{NAME}.s'
def opt(name, default):
    for a in XP:
        if a.startswith(name): return type(default)(a[len(name):])
    return default

L = []
VMQ = []
NBAR = [0]
CAP = [None]
def e(s, tag=None):
    if CAP[0] is not None:
        CAP[0].append((s, tag)); return
    if tag is not None: VMQ.append(tag)
    if s == 's_barrier': NBAR[0] += 1
    L.append('    ' + s.strip())
    if PADON[0]:
        PADCNT[0] += 4 if (s.startswith('s_') and '0x' not in s) else 8
        if PADCNT[0] >= PADON[0] and not s.startswith('v_cmp') and 'abs' not in s:
            PADCNT[0] = 0; pad()
PADS = [0]
PADON = [False]
PADCNT = [0]
def lab(s): L.append(s + ':')
def pad():
    i = PADS[0]; PADS[0] += 1
    L.append(f'L_pad{i}:'); L.append(f'    s_cbranch_execz L_pad{i+1}')
def cm(s): L.append('    ; ' + s)
def vr(i, n): return f'v[{i}:{i+n-1}]'
def sr(i, n): return f's[{i}:{i+n-1}]'
def f32(x): return '0x%08x' % struct.unpack('<I', struct.pack('<f', x))[0]
def vmn(tag):
    idx = max(i for i, t in enumerate(VMQ) if t == tag)
    n = len(VMQ) - 1 - idx
    assert n <= 63
    return n
def E(*lines):
    for s in lines: e(s)

SLOT = 32768
R = 131072
HALO = 3 * SLOT
ONES = 3 * SLOT
SC = 2 * SLOT
WS_FHX = 0x60000
WS_HX = 0x600000
WS_FKV = 0x40000
WS_FOA = 0x48000
WS_FD = 0x44000
WS_OA = 0x100000
WS_OB = 0x300000
WS_STAMP = 0x500000
WS_SIZE = 0x800000
CSCALE = 0.25 * 1.4426950408889634
MOFF = float(opt('moff', 100))
VSC = 2.0 ** 40
ONEB = 0x53805380
SPIN = 200000
NT = '' if 'nont' in XP else ' nt'
WNT = ' nt' if 'wnt' in XP else ''

S_XA, S_WQKV, S_WOA, S_XB, S_WQ, S_WKV, S_WOB, S_OUT, S_WS = 8, 12, 16, 20, 24, 28, 32, 36, 40
S_DBG = 44
S_WV = 46
sP = 46
sW = 48
sRB, sHG = 49, 50
sT0, sT1, sT2, sT3 = 51, 52, 53, 54
sC = 55
sStepA, sStepB = 56, 57
sXo, sWo = 58, 59
sKVo = 60
sW4k, sW8k, sW2k = 61, 62, 63
sVM = 64
sOoff, sOutOff, sWoff, sSpin = 66, 67, 68, 69
sOslot, sOslot2 = 70, 71
sFB, sHG128, sCS, sQ = 72, 73, 74, 75
sRot, sK1 = 4, 5
sF0, sF1, sF2 = 3, 6, 7
sST = 76
sNon = 100
sStepH = 31
sXcc = 30

vL16, vW, vWA, vXA = 1, 2, 3, 4
vN, vH, vI = 5, 6, 7
vT0, vT1, vT2, vT3 = 8, 9, 10, 11
vP0, vP1, vXx, vG = 12, 13, 14, 15
vQacc = 16
vFr = 96
(vB0, vB1, vBW, vWl, vIdx, vPa, vQx, vW2, vTw0, vTw1, vTp, vTr0, vTo, vPa2, vZero, vOw,
 vF0, vF1, vF2, vF3, vWA2, vXA2) = range(232, 254)
vNon, vFl = 90, 92
NVGPR = 256

def stamp(i, *modes):
    if STAMPS and STMODE in modes: e(f's_memrealtime {sr(sST+2*i,2)}')
def cstamp(i):
    if STAMPS and STMODE != 'xc': e(f's_memtime {sr(sST+2*i,2)}')
def dma(voff, srd_, soff, off=0, fl='', tag='x'):
    o = f' offset:{off}' if off else ''
    e(f'buffer_load_dwordx4 v{voff}, {sr(srd_,4)}, {soff} offen{o}{fl} lds', tag)
def srd(reg, size): E(f's_mov_b32 s{reg+2}, {hex(size)}', f's_mov_b32 s{reg+3}, 0x20000')
def nonce_load(tag=None): e(f'global_load_dwordx2 {vr(vNon,2)}, v{vZero}, {sr(S_DBG,2)} sc1', tag)
def poll_issue(vaddr, soffs, regs, non=True):
    if non: nonce_load()
    for so, r in zip(soffs, regs):
        e(f'buffer_load_dwordx2 {vr(r,2)}, v{vaddr}, {sr(S_WS,4)}, {so} offen sc1')
def poll_check(tag, vaddr, soffs, regs, issued, xcc=False):
    e(f's_mov_b32 s{sSpin}, {SPIN}')
    if issued is not None: E(f's_waitcnt vmcnt({issued})', f's_branch L_chk_{tag}')
    lab(f'L_rep_{tag}')
    poll_issue(vaddr, soffs, regs)
    e('s_waitcnt vmcnt(0)')
    lab(f'L_chk_{tag}')
    e(f'v_cmp_eq_u32 vcc, 0, v{vNon}')
    if xcc: E(f'v_mov_b32 v{vFl+2}, v{vFl}', f'v_and_b32 v{vFl}, 0xffffffe1, v{vFl}')
    for r in regs:
        E(f'v_cmp_ne_u64 {sr(sP,2)}, {vr(vNon,2)}, {vr(r,2)}', 's_nop 1', f's_or_b64 vcc, vcc, {sr(sP,2)}')
    E(f's_cbranch_scc0 L_nochk_{tag}', f's_sub_u32 s{sSpin}, s{sSpin}, 1', f's_cbranch_scc0 L_rep_{tag}')
    lab(f'L_nochk_{tag}')
def flag_store(tag, soff, first_wait='s_waitcnt vmcnt(0)', xcc=False, soff2=None):
    e(f's_mov_b32 s{sSpin}, {SPIN}')
    e(first_wait)
    lab(f'L_fw_{tag}')
    E(f'v_cmp_eq_u32 vcc, 0, v{vNon}', f's_cbranch_vccz L_fs_{tag}')
    nonce_load()
    E('s_waitcnt vmcnt(0)', f's_sub_u32 s{sSpin}, s{sSpin}, 1', f's_cbranch_scc0 L_fw_{tag}')
    lab(f'L_fs_{tag}')
    if xcc: e(f'v_or_b32 v{vNon}, s{sXcc}, v{vNon}')
    E('s_mov_b64 exec, 1', f'buffer_store_dwordx2 {vr(vNon,2)}, v{vZero}, {sr(S_WS,4)}, {soff} offen sc1')
    if soff2: e(f'buffer_store_dwordx2 {vr(vNon,2)}, v{vZero}, {sr(S_WS,4)}, {soff2} offen sc1')
    e('s_mov_b64 exec, -1')
def maxtree(rs, t0, t1):
    e(f'v_max3_f32 v{t0}, v{rs[0]}, v{rs[1]}, v{rs[2]}')
    e(f'v_max3_f32 v{t1}, v{rs[3]}, v{rs[4]}, v{rs[5]}')
    for k in range(6, len(rs), 4):
        e(f'v_max3_f32 v{t0}, v{t0}, v{rs[k]}, v{rs[k+1]}')
        if k + 3 < len(rs): e(f'v_max3_f32 v{t1}, v{t1}, v{rs[k+2]}, v{rs[k+3]}')
    e(f'v_max_f32 v{t0}, v{t0}, v{t1}')
    e(f'v_mov_b32 v{t1}, v{t0}')
def lane_setup():
    E(f'v_and_b32 v{vN}, 31, v0', f'v_lshrrev_b32 v{vH}, 5, v0', f'v_and_b32 v{vI}, 15, v0',
      f'v_lshrrev_b32 v{vWl}, 2, v{vI}', f'v_lshl_add_u32 v{vWl}, v{vH}, 3, v{vWl}', f'v_lshlrev_b32 v{vWl}, 7, v{vWl}',
      f'v_and_b32 v{vF0}, 8, v{vI}', f'v_lshl_add_u32 v{vWl}, v{vF0}, 3, v{vWl}', f'v_and_b32 v{vF0}, 16, v0',
      f'v_lshl_add_u32 v{vWl}, v{vF0}, 1, v{vWl}', f'v_and_b32 v{vF0}, 3, v0', f'v_lshl_add_u32 v{vWl}, v{vF0}, 3, v{vWl}',
      f's_lshl_b32 s{sW4k}, s{sQ}, 12', f's_add_u32 s{sF0}, s{sW4k}, {R}', f'v_add_u32 v{vQx}, s{sF0}, v{vL16}',
      f'v_mov_b32 v{vIdx}, 0xdddddddd', f's_mov_b32 s{sFB}, 0')
oOf, oW, oAcc = 16, 96, 160
def tail_setup():
    E(f's_mov_b32 s{S_OUT+2}, 0x400000', f's_mov_b32 s{S_OUT+3}, 0x20000',
      f's_lshr_b32 s{sF2}, s{sW}, 2', f's_lshl_b32 s{sF1}, s{sW}, 14',
      f'v_lshlrev_b32 v{vT0}, 9, v{vH}', f'v_sub_u32 v{vTw0}, v{vWl}, v{vT0}', f'v_add_u32 v{vTw0}, s{sF1}, v{vTw0}', f'v_xor_b32 v{vTw1}, 64, v{vTw0}',
      f'v_xor_b32 v{vT0}, v{vH}, v{vI}', f'v_lshlrev_b32 v{vT0}, 4, v{vT0}', f'v_lshl_add_u32 v{vT0}, v{vN}, 8, v{vT0}', f'v_add_u32 v{vTp}, s{sF1}, v{vT0}',
      f'v_lshrrev_b32 v{vT0}, 3, v0', f's_lshl_b32 s{sF1}, s{sQ}, 3', f'v_add_u32 v{vT0}, s{sF1}, v{vT0}', f'v_and_b32 v{vT1}, 7, v0', f'v_lshlrev_b32 v{vT2}, 1, v{vT1}',
      f'v_and_b32 v{vT3}, 15, v{vT0}', f'v_xor_b32 v{vT2}, v{vT2}, v{vT3}', f'v_lshlrev_b32 v{vT2}, 4, v{vT2}', f'v_lshl_add_u32 v{vT2}, v{vT0}, 8, v{vT2}',
      f's_lshl_b32 s{sF1}, s{sF2}, 16', f'v_add_u32 v{vTr0}, s{sF1}, v{vT2}',
      f'v_lshlrev_b32 v{vT1}, 4, v{vT1}', f'v_lshl_add_u32 v{vTo}, v{vT0}, 11, v{vT1}',
      f's_lshl_b32 s{sOutOff}, s{sRB}, 17', f's_lshl_b32 s{sF1}, s{sF2}, 10', f's_add_u32 s{sOutOff}, s{sOutOff}, s{sF1}', f's_add_u32 s{sOutOff}, s{sOutOff}, s{sHG128}',
      f's_lshl_b32 s{sOoff}, s{sRB}, 16', f's_add_u32 s{sF1}, s{sQ}, s{sRB}' if opt('worot', 1) else f's_mov_b32 s{sF1}, s{sQ}', f's_and_b32 s{sF1}, s{sF1}, 3', f's_lshl_b32 s{sF1}, s{sF1}, 13', f's_add_u32 s{sOoff}, s{sOoff}, s{sF1}',
      f's_lshl_b32 s{sF1}, s{sF2}, 21', f's_add_u32 s{sOoff}, s{sOoff}, s{sF1}', f's_add_u32 s{sOoff}, s{sOoff}, {hex(WS_OA)}')
assert WS_OB - WS_OA == 1 << 21
def w_reads():
    for s in range(8):
        x = oW + 8 * s
        E(f'ds_read_b64_tr_b16 {vr(x,2)}, v{vTw0} offset:{s*2048}', f'ds_read_b64_tr_b16 {vr(x+2,2)}, v{vTw0} offset:{s*2048+1024}',
          f'ds_read_b64_tr_b16 {vr(x+4,2)}, v{vTw1} offset:{s*2048}', f'ds_read_b64_tr_b16 {vr(x+6,2)}, v{vTw1} offset:{s*2048+1024}')
    for q in range(1, 8): e(f'v_xor_b32 v{80+q}, {(2*q)<<4}, v{vTp}')
    e(f'v_xor_b32 v88, 16, v{vTr0}')
def o_loads(tag=None, gs=(0, 1, 2, 3)):
    if 0 in gs: E(f's_add_u32 s{sT1}, s{sOoff}, 4096', f's_add_u32 s{sT2}, s{sOoff}, 32768', f's_add_u32 s{sT3}, s{sOoff}, {32768+4096}')
    for g, so in enumerate((sOoff, sT1, sT2, sT3)):
        if g not in gs: continue
        for j in range(4):
            o = f' offset:{j*1024}' if j else ''
            e(f'buffer_load_dwordx4 {vr(oOf+16*g+4*j,4)}, v{vL16}, {sr(S_WS,4)}, s{so} offen{o} sc1', tag)

lab(f'{NAME}_kernel')
if STAMPS:
    for i in range(12): e(f's_mov_b32 s{sST+2*i}, 0')
stamp(0, 'all', 'head', 'tail', 'x', 'i0', 'i1', 'j0', 'j1', 'd')
for reg, off in ((S_XB,24),(S_WKV,40),(S_WV,48),(S_WQ,32),(S_DBG,72),(S_WS,80),(S_XA,0),(S_WQKV,8),(S_WOA,16),(S_WOB,56),(S_OUT,64)):
    e(f's_load_dwordx2 {sr(reg,2)}, s[0:1], {off}')
e(f's_memrealtime {sr(sNon,2)}')
E('s_cmp_ge_u32 s2, 256', 's_cbranch_scc1 L_end',
  f'v_lshrrev_b32 v{vT0}, 6, v0', 'v_and_b32 v0, 63, v0', f'v_readfirstlane_b32 s{sW}, v{vT0}',
  f's_and_b32 s{sT0}, s2, 7', f's_bfe_u32 s{sRot}, s2, 0x20003', f's_lshl_b32 s{sRB}, s{sT0}, 2',
  f's_add_u32 s{sRB}, s{sRB}, s{sRot}', f's_lshr_b32 s{sHG}, s2, 5',
  f'v_lshlrev_b32 v{vL16}, 4, v0', f'v_lshrrev_b32 v{vG}, 4, v0', f'v_lshrrev_b32 v{vT1}, 3, v0', f'v_and_b32 v{vT2}, 7, v0',
  f'v_xor_b32 v{vT3}, v{vT2}, v{vG}', f'v_lshlrev_b32 v{vT3}, 4, v{vT3}', f'v_lshl_add_u32 v{vP0}, v{vT1}, 10, v{vT3}',
  f'v_xor_b32 v{vP1}, 64, v{vP0}', f'v_add_u32 v{vP1}, {8192-1024}, v{vP1}', f'v_mov_b32 v{vZero}, 0',
  f's_xor_b32 s{sW}, s{sW}, 7', f's_lshl_b32 s{sRot}, s{sRot}, 1', f's_lshl_b32 s{sHG128}, s{sHG}, 7', f's_and_b32 s{sQ}, s{sW}, 3')
if opt('brx', 0): E(f's_lshr_b32 s{sT0}, s{sRB}, 2', f's_add_u32 s{sRot}, s{sRot}, s{sT0}', f's_and_b32 s{sRot}, s{sRot}, 7')
if opt('hgx', 0): E(f's_xor_b32 s{sHG}, s{sHG}, {opt("hgx", 0)}', f's_lshl_b32 s{sHG128}, s{sHG}, 7')
srd(S_WS, WS_SIZE)
E(f's_cmp_lt_u32 s{sW}, 4', 's_cbranch_scc1 L_X')

cm('================ Y program (waves 4-7) ================')
aSa, aSb, aCa, aCb, aOa, aOb = 96, 112, 128, 144, 160, 176
aK, aV = 192, 56
vQa, vQb = 208, 212
vKa, vVa = 216, 217
srd(S_XB, 0x200000); srd(S_WKV, 0x4000)
vD0, vD1 = 218, 219
E(f's_lshr_b32 s{sT1}, s{sHG}, 1', f's_add_u32 s{sT1}, s{sT1}, s{sW}', f's_add_u32 s{sT1}, s{sT1}, 1', f's_and_b32 s{sT1}, s{sT1}, 3',
  f's_lshl_b32 s{sT2}, s{sT1}, 11',
  f's_lshl_b32 s{sT3}, s{sRB}, 2', f's_add_u32 s{sT3}, s{sT3}, s{sT1}', f's_lshl_b32 s{sT3}, s{sT3}, 14',
  f'v_add_u32 v{vD0}, s{sT3}, v{vP0}', f'v_add_u32 v{vD1}, s{sT3}, v{vP1}',
  f's_lshl_b32 s{sXo}, s{sRot}, 7',
  f's_cmp_lg_u32 s{sW}, 7', 's_cbranch_scc1 L_Yset')
def x_sub(s, tag):
    E(f's_add_u32 m0, s{sT2}, {s*16384}', f's_and_b32 s{sXo}, s{sXo}, 1023')
    dma(vD0, S_XB, f's{sXo}', 0, NT, tag); dma(vD1, S_XB, f's{sXo}', 1024, NT, tag)
E(f's_bitcmp1_b32 s{sHG}, 0', 's_waitcnt lgkmcnt(0)',
  f's_cselect_b32 s{S_WKV}, s{S_WV}, s{S_WKV}', f's_cselect_b32 s{S_WKV+1}, s{S_WV+1}, s{S_WKV+1}')
for s_ in range(8):
    x_sub(s_, None)
    E(f's_mov_b32 m0, {R+s_*2048}', f's_lshl_b32 s{sWo}, s{sXo}, 4')
    dma(vL16, S_WKV, f's{sWo}', 0, '', None); dma(vL16, S_WKV, f's{sWo}', 1024, '', None)
    if s_ < 7: e(f's_add_u32 s{sXo}, s{sXo}, 128')
e('s_barrier'); NBAR[0] -= 1
stamp(1, 'head')
lab('L_Yset')
lane_setup()
tail_setup()
E(f's_mov_b32 s{sVM}, 0xffff', f's_mov_b32 s{sVM+1}, 0xffff',
  f's_and_b32 s{sT0}, s{sRB}, 28', f's_add_u32 s{sT0}, s{sT0}, s{sQ}', f's_lshl_b32 s{sKVo}, s{sT0}, 12',
  f's_lshl_b32 s{sT0}, s{sT0}, 9', f's_add_u32 s{sT0}, s{sT0}, {hex(WS_FKV)}',
  f'v_and_b32 v{vPa}, 7, v0', f'v_lshlrev_b32 v{vPa}, 6, v{vPa}', f'v_add_u32 v{vPa}, s{sT0}, v{vPa}',
  f's_and_b32 s{sT0}, s{sW}, 1', f's_lshl_b32 s{sT1}, s{sRB}, 1', f's_add_u32 s{sT0}, s{sT0}, s{sT1}', f's_lshl_b32 s{sT0}, s{sT0}, 5',
  f's_lshl_b32 s{sT1}, s{sHG}, 2', f's_add_u32 s{sT0}, s{sT0}, s{sT1}', f's_and_b32 s{sT1}, s{sW}, 2', f's_add_u32 s{sT0}, s{sT0}, s{sT1}',
  f's_lshl_b32 s{sT0}, s{sT0}, 10', f's_add_u32 s{sOslot}, s{sT0}, {hex(WS_OB)}',
  f'v_add_u32 v{vKa}, {R+16384}, v{vL16}', f'v_lshlrev_b32 v{vVa}, 4, v{vI}', f'v_lshl_add_u32 v{vVa}, v{vH}, 8, v{vVa}', f'v_add_u32 v{vVa}, {R+16384}, v{vVa}',
  f'v_and_b32 v{vT1}, 27, v0', f'v_cmp_eq_u32 vcc, 16, v{vT1}', f'v_mov_b32 v{vT1}, {hex(ONEB)}', f's_cmp_eq_u32 s{sW}, 7', f'v_cndmask_b32 v{aV}, 0, v{vT1}, vcc',
  's_cbranch_scc1 L_Y7', 's_waitcnt lgkmcnt(0)')
if opt('cpf', 1):
    e('s_getpc_b64 s[0:1]')
    lab('L_pc')
    E(f's_sub_u32 s0, s0, L_pc-{NAME}_kernel', 's_subb_u32 s1, s1, 0',
      f's_lshr_b32 s{sT0}, s2, 3', f's_mul_i32 s{sT0}, s{sT0}, 3', f's_add_u32 s{sT0}, s{sT0}, s{sQ}', f's_lshl_b32 s{sT0}, s{sT0}, 8',
      f'v_lshlrev_b32 v{vF0}, 7, v0', f'v_add_u32 v{vF0}, s{sT0}, v{vF0}', f'v_min_u32 v{vF0}, L_code_end-{NAME}_kernel-4, v{vF0}', 's_mov_b64 exec, 3',
      f'global_load_dword v{vF1}, v{vF0}, s[0:1]', 's_mov_b64 exec, -1')
e('s_barrier')
for s_ in range(8):
    x_sub(s_, 'xb')
    if s_ < 7: e(f's_add_u32 s{sXo}, s{sXo}, 128')
stamp(1, 'head')
e('s_branch L_Yj')
lab('L_Y7')
E(f'v_lshrrev_b32 v{vT1}, 1, v{vI}', f'v_xor_b32 v{vT1}, v{vT1}, v{vG}', f'v_lshlrev_b32 v{vT1}, 4, v{vT1}', f'v_lshl_add_u32 v{vT1}, v{vI}, 7, v{vT1}',
  f'v_add_u32 v{vT0}, s{sT2}, v{vT1}', f'v_xor_b32 v{vT1}, 64, v{vT0}', f'v_add_u32 v{vT2}, 65536, v{vT0}', f'v_add_u32 v{vT3}, 65536, v{vT1}',
  f'v_lshlrev_b32 v{vF0}, 8, v{vG}', f'v_lshl_add_u32 v{vF0}, v{vI}, 3, v{vF0}', f'v_add_u32 v{vF0}, {R}, v{vF0}',
  f'v_and_b32 v{vF1}, 1, v{vG}', f'v_lshrrev_b32 v{vF2}, 1, v{vG}',
  f's_lshr_b32 s{sT0}, s{sHG}, 2', f's_lshl_b32 s{sC}, s{sRB}, 1', f's_add_u32 s{sT0}, s{sT0}, s{sC}', f's_lshl_b32 s{sT0}, s{sT0}, 11',
  f's_bfe_u32 s{sC}, s{sHG}, 0x10001',
  f's_lshl_b32 s{sT1}, s{sRB}, 3', f's_add_u32 s{sT1}, s{sT1}, s{sHG}', f's_lshl_b32 s{sOslot2}, s{sT1}, 3', f's_add_u32 s{sOslot2}, s{sOslot2}, {hex(WS_FD)}', f's_lshl_b32 s{sT1}, s{sT1}, 6', f's_add_u32 s{sK1}, s{sT1}, {hex(WS_FKV)}')
kd = 16
KF = 88
KF = 96 - 8
def kfr(u): return (96 + 8 * u) if u < 15 else 24
def kv_reads(s):
    a0, a1 = (vT0, vT1) if s < 4 else (vT2, vT3)
    o = (s & 3) * 16384
    x, y = kfr(2*s), kfr(2*s+1)
    E(f's_waitcnt vmcnt({28-4*s})',
      f'ds_read_b128 {vr(x,4)}, v{a0} offset:{o}', f'ds_read_b64_tr_b16 {vr(x+4,2)}, v{vF0} offset:{s*2048}', f'ds_read_b64_tr_b16 {vr(x+6,2)}, v{vF0} offset:{s*2048+128}',
      f'ds_read_b128 {vr(y,4)}, v{a1} offset:{o}', f'ds_read_b64_tr_b16 {vr(y+4,2)}, v{vF0} offset:{s*2048+1024}', f'ds_read_b64_tr_b16 {vr(y+6,2)}, v{vF0} offset:{s*2048+1152}')
for s_ in range(8): kv_reads(s_)
nonce_load()
stamp(2, 'head')
E(f's_bitcmp1_b32 s{sHG}, 0', f's_cselect_b32 s{sWo}, {f32(VSC)}, 1.0', 's_cbranch_scc1 L_kv_v',
  f'v_lshlrev_b32 v{vF1}, 9, v{vF1}', f'v_lshl_add_u32 v{vF1}, v{vF2}, 3, v{vF1}', f's_lshl_b32 s{sC}, s{sC}, 8')
def kv_chain(swap):
    for u in range(16):
        x = kfr(u)
        if u == 0: e('s_waitcnt lgkmcnt(12)')
        if u == 12: e('s_waitcnt lgkmcnt(0)')
        a, b = (vr(x+4,4), vr(x,4))
        if swap: a, b = b, a
        d = kd + 4 * (u & 1)
        e(f'v_mfma_f32_16x16x32_bf16 {vr(d,4)}, {a}, {b}, {"0" if u < 2 else vr(d,4)}')
kv_chain(False)
e('s_branch L_kv_j')
lab('L_kv_v')
E(f'v_lshlrev_b32 v{vF1}, 3, v{vF1}', f'v_lshl_add_u32 v{vF1}, v{vF2}, 8, v{vF1}', f's_lshl_b32 s{sC}, s{sC}, 9', f's_add_u32 s{sC}, s{sC}, 1024')
kv_chain(True)
lab('L_kv_j')
E(f'v_lshl_add_u32 v{vF1}, v{vI}, 4, v{vF1}', f's_add_u32 s{sT0}, s{sT0}, s{sC}', 's_nop 5',
  f'v_pk_add_f32 {vr(kd,2)}, {vr(kd,2)}, {vr(kd+4,2)}', f'v_pk_add_f32 {vr(kd+2,2)}, {vr(kd+2,2)}, {vr(kd+6,2)}',
  f'v_mul_f32 v{kd}, s{sWo}, v{kd}', f'v_mul_f32 v{kd+1}, s{sWo}, v{kd+1}', f'v_mul_f32 v{kd+2}, s{sWo}, v{kd+2}', f'v_mul_f32 v{kd+3}, s{sWo}, v{kd+3}',
  f'v_cvt_pk_bf16_f32 v{vF2}, v{kd}, v{kd+1}', f'v_cvt_pk_bf16_f32 v{vF3}, v{kd+2}, v{kd+3}',
  f'buffer_store_dwordx2 {vr(vF2,2)}, v{vF1}, {sr(S_WS,4)}, s{sT0} offen sc1')
stamp(3, 'head')
lab('L_Yj')
if opt('ytc', 0):
    E(f's_bitcmp1_b32 s{sW}, 1', f's_cselect_b32 s{S_WOA}, s{S_WOB}, s{S_WOA}', f's_cselect_b32 s{S_WOA+1}, s{S_WOB+1}, s{S_WOA+1}',
      f's_mov_b32 s{S_WOA+2}, 0x80000', f's_mov_b32 s{S_WOA+3}, 0x20000',
      f's_lshr_b32 s{sT0}, s2, 3', f's_lshl_b32 s{sT0}, s{sT0}, 1', f's_and_b32 s{sT1}, s{sW}, 1', f's_add_u32 s{sT0}, s{sT0}, s{sT1}', f's_lshl_b32 s{sWoff}, s{sT0}, 13',
      f'v_lshlrev_b32 v{vD0}, 7, v0')
for i in range(1, 32): e(f'v_mov_b32 v{aV+i}, v{aV}')
for j in range(32): e(f'v_mov_b32 v{aOa+j}, 0')
E('s_waitcnt vmcnt(0)', f's_cmp_lg_u32 s{sW}, 7', 's_cbranch_scc1 L_flag_done')
flag_store('kv', f's{sK1}')
stamp(4, 'head')
lab('L_flag_done')
e('s_barrier')
stamp(5, 'head'); stamp(1, 'all', 'x')
EA = opt('ea', 20)
if EA: e('s_barrier')
if opt('psl', 0): e(f's_sleep {opt("psl", 0)}')
poll_check('kv', vPa, ['0'], [vFl], None)
stamp(6, 'head')
E(f's_add_u32 m0, s{sW4k}, {R+16384}', f's_mov_b32 s{sC}, 0')
for j in range(4): dma(vL16, S_WS, f's{sKVo}', 1024*j, ' sc1', None)
E(f's_setprio {opt("yp", 1)}', f's_cmp_lg_u32 s{sW}, 7', 's_waitcnt vmcnt(0)', 's_cbranch_scc1 L_nodense', 's_mov_b64 exec, 1',
  f'buffer_store_dwordx2 {vr(vNon,2)}, v{vZero}, {sr(S_WS,4)}, s{sOslot2} offen sc1', 's_mov_b64 exec, -1')
lab('L_nodense')
stamp(7, 'head'); stamp(2, 'all', 'x')
e('s_barrier')
stamp(8, 'head'); stamp(3, 'all', 'x'); stamp(1, 'tail')
cstamp(10)
E(f'ds_read_b128 {vr(vQa,4)}, v{vQx}', f'ds_read_b128 {vr(vQb,4)}, v{vQx} offset:1024',
  f'ds_read_b128 {vr(aK,4)}, v{vKa}', f'ds_read_b128 {vr(aK+4,4)}, v{vKa} offset:2048', f's_mov_b64 exec, {sr(sVM,2)}')
for j in range(4): e(f'ds_read_b128 {vr(aV+4*j,4)}, v{vVa} offset:{(j>>1)*2048+1024+(j&1)*512}')
E('s_mov_b64 exec, -1', 's_waitcnt lgkmcnt(5)',
  f'v_mfma_f32_32x32x16_bf16 {vr(aSa,16)}, {vr(aK,4)}, {vr(vQa,4)}, 0',
  f'v_mfma_f32_32x32x16_bf16 {vr(aSb,16)}, {vr(aK,4)}, {vr(vQb,4)}, 0', 's_nop 10')
maxtree([aSa+i for i in range(16)], vT0, vT1)
maxtree([aSb+i for i in range(16)], vT2, vT3)
E(f'v_permlane32_swap_b32 v{vT0}, v{vT1}', f'v_max_f32 v{vT0}, v{vT0}, v{vT1}', f'v_permlane32_swap_b32 v{vT2}, v{vT3}',
  f'v_sub_f32 v{aCa}, {f32(-MOFF)}, v{vT0}', f'v_max_f32 v{vT2}, v{vT2}, v{vT3}')
for i in range(1, 16): e(f'v_mov_b32 v{aCa+i}, v{aCa}')
E(f'v_sub_f32 v{aCb}, {f32(-MOFF)}, v{vT2}', f'v_mov_b32 v{aCb+1}, v{aCb}',
  f'v_mfma_f32_32x32x16_bf16 {vr(aSa,16)}, {vr(aK,4)}, {vr(vQa,4)}, {vr(aCa,16)}')
for i in range(2, 16): e(f'v_mov_b32 v{aCb+i}, v{aCb}')
if opt('ytc', 0): e(f'buffer_load_dword v{vD1}, v{vD0}, {sr(S_WOA,4)}, s{sWoff} offen')
E('s_waitcnt lgkmcnt(0)', f'v_exp_f32 v{aSa}, v{aSa}', f'v_exp_f32 v{aSa+1}, v{aSa+1}', 's_branch L_att_entry')

def dtile(par, ld_off, entry=False):
    K = aK + 8 * par; Kn = aK + 8 * (par ^ 1)
    V = aV + 16 * par; Vn = aV + 16 * (par ^ 1)
    def ex(S, a, b):
        for i in range(a, b): e(f'v_exp_f32 v{S+i}, v{S+i}')
    def pv(O, Vr, P): e(f'v_smfmac_f32_32x32x32_bf16 {vr(O,16)}, {vr(Vr,4)}, {vr(P,8)}, v{vIdx}')
    def qk(S, Kr, Q, C): e(f'v_mfma_f32_32x32x16_bf16 {vr(S,16)}, {vr(Kr,4)}, {vr(Q,4)}, {vr(C,16)}')
    ex(aSa, 0, 2); pv(aOb, Vn+12, aSb+8)
    if entry: lab('L_att_entry')
    e(f's_mov_b64 exec, {sr(sVM,2)}')
    for j in range(4): e(f'ds_read_b128 {vr(Vn+4*j,4)}, v{vVa} offset:{ld_off+(j>>1)*2048+1024+(j&1)*512}')
    e('s_mov_b64 exec, -1')
    ex(aSa, 2, 5); qk(aSb, K, vQb, aCb)
    E(f'ds_read_b128 {vr(Kn,4)}, v{vKa} offset:{ld_off}', f'ds_read_b128 {vr(Kn+4,4)}, v{vKa} offset:{ld_off+2048}')
    ex(aSa, 5, 10); pv(aOa, V, aSa); ex(aSa, 10, 16)
    ex(aSb, 0, 2); pv(aOa, V+4, aSa+8); ex(aSb, 2, 5); qk(aSa, K+4, vQa, aCa); ex(aSb, 5, 10); pv(aOb, V, aSb); ex(aSb, 10, 16)
    ex(aSa, 0, 2); pv(aOb, V+4, aSb+8); ex(aSa, 2, 5); qk(aSb, K+4, vQb, aCb); ex(aSa, 5, 10); pv(aOa, V+8, aSa); ex(aSa, 10, 16)
    ex(aSb, 0, 2); pv(aOa, V+12, aSa+8); e('s_waitcnt lgkmcnt(0)'); ex(aSb, 2, 5); qk(aSa, Kn, vQa, aCa); ex(aSb, 5, 10); pv(aOb, V+8, aSb); ex(aSb, 10, 16)

e('.p2align 6')
lab('L_att_top')
E(f'v_xor_b32 v{vKa}, 16384, v{vKa}', f'v_xor_b32 v{vVa}, 16384, v{vVa}', f's_cmp_eq_u32 s{sC}, 8', 's_barrier')
dtile(1, 0)
e('s_cbranch_scc1 L_att_done')
dtile(0, 4096, entry=True)
e('s_barrier')
dtile(1, 8192)
dtile(0, 12288)
E(f's_add_u32 s{sC}, s{sC}, 1', 's_branch L_att_top')
NBAR_Y = NBAR[0] - 2 + 16
lab('L_att_done')
E(f'ds_read_b32 v{vFl}, v{vKa}', f'v_smfmac_f32_32x32x32_bf16 {vr(aOb,16)}, {vr(aV+16+12,4)}, {vr(aSb+8,8)}, v{vIdx}')
stamp(4, 'all'); stamp(2, 'tail')
cstamp(11)
def chk(O, t):
    E(f'v_maximum3_f32 v{t}, abs(v{O}), abs(v{O+1}), abs(v{O+2})', f'v_maximum3_f32 v{t}, v{t}, abs(v{O+3}), abs(v{O+4})',
      f'v_maximum3_f32 v{t}, v{t}, abs(v{O+5}), abs(v{O+6})', f'v_maximum3_f32 v{t}, v{t}, abs(v{O+7}), v{O+8}')
def fin(O, t, d):
    for i in range(0, 8, 2): e(f'v_pk_mul_f32 {vr(d+4+i,2)}, {vr(O+i,2)}, {vr(t,2)} op_sel_hi:[1,0]')
    for i in range(4): e(f'v_cvt_pk_bf16_f32 v{d+i}, v{d+4+2*i}, v{d+4+2*i+1}')
lab('L_att_fin')
PADON[0] = opt('pad', 0); PADCNT[0] = 1000
E(f'v_rcp_f32 v{vT0}, v{aOa+8}', f's_mov_b32 s{sT0}, 0x7e000000')
chk(aOa, vT1)
fin(aOa, vT0, 16)
E(f'v_rcp_f32 v{vT2}, v{aOb+8}', 's_waitcnt lgkmcnt(0)', f'v_readfirstlane_b32 s{sT1}, v{vFl}')
chk(aOb, vT3)
fin(aOb, vT2, 28)
E(f'v_maximum3_f32 v{vT1}, v{vT1}, v{vT3}, v{vT3}', f'v_cmp_nle_f32 vcc, v{vT1}, s{sT0}'.replace('vcc, v', 'vcc, v'), f's_cmp_eq_u32 s{sT1}, 1', 's_cbranch_vccnz L_fallback')
lab('L_att_ok')
E('s_cbranch_scc0 L_st_slow',
  f'buffer_store_dwordx4 {vr(16,4)}, v{vL16}, {sr(S_WS,4)}, s{sOslot} offen',
  f'buffer_store_dwordx4 {vr(28,4)}, v{vL16}, {sr(S_WS,4)}, s{sOslot} offen offset:1024')
lab('L_st_j')
stamp(3, 'tail')
w_reads()
e(f's_mov_b32 s{sSpin}, {SPIN//10}')
if opt('tslp', 0): e(f's_sleep {opt("tslp", 0)}')
stamp(4, 'tail')
NPRE = opt('npre', 2)
o_loads(None, range(NPRE))
e(f's_mov_b32 s{sC}, 2')

cm('================ tail: out projections (X: branch A, Y: branch B) ================')
lab('L_tail_go')
e('s_waitcnt lgkmcnt(0)')
for g in range(4):
    rt = g >> 1
    b_ = oOf + 16 * g
    e(f's_waitcnt vmcnt({4*(min(4, NPRE+g)-g-1)})')
    lab(f'L_tg{g}')
    E(f'v_max3_u32 v{vT0}, v{b_}, v{b_+1}, v{b_+2}', f'v_max3_u32 v{vT1}, v{b_+3}, v{b_+4}, v{b_+5}')
    for k in range(6, 16, 2):
        t = vT0 if (k >> 1) & 1 else vT1
        e(f'v_max3_u32 v{t}, v{t}, v{b_+k}, v{b_+k+1}')
    E(f'v_max_u32 v{vT0}, v{vT0}, v{vT1}', f'v_cmp_eq_u32 vcc, -1, v{vT0}', f's_cbranch_vccnz L_tr{g}')
    lab(f'L_tk{g}')
    if g == 0: stamp(5, 'tail', 'all')
    if NPRE + g < 4: o_loads(None, [NPRE + g])
    if g == 2: e('s_barrier')
    order = [(s_, ct) for s_ in range(4*(g&1), 4*(g&1)+4) for ct in range(2)]
    if g == 3: order = sorted(order, key=lambda z: z[1])
    for m_, (s_, ct) in enumerate(order):
        a_ = oAcc + 32 * rt + 16 * ct
        e(f'v_mfma_f32_32x32x16_bf16 {vr(a_,16)}, {vr(oW+8*s_+4*ct,4)}, {vr(oOf+32*rt+4*s_,4)}, {"0" if s_ == 0 else vr(a_,16)}')
        if g == 2:
            e(f'ds_write_b128 v{80+m_ if m_ else vTp}, {vr(oAcc+4*m_,4)}')
e('s_nop 7')
PADON[0] = False
lab('L_tail_wr')
stamp(6, 'tail')
for q in range(8):
    e(f'ds_write_b128 v{80+q if q else vTp}, {vr(oAcc+32+4*q,4)} offset:8192')
E('s_waitcnt lgkmcnt(0)', 's_barrier')
stamp(7, 'tail')
lab('L_red')
tR = 96
for kq in range(4):
    E(f'ds_read_b128 {vr(tR+8*kq,4)}, v{vTr0} offset:{kq*16384}', f'ds_read_b128 {vr(tR+8*kq+4,4)}, v88 offset:{kq*16384}')
e('s_waitcnt lgkmcnt(4)')
for i in range(0, 8, 2): e(f'v_pk_add_f32 {vr(tR+i,2)}, {vr(tR+i,2)}, {vr(tR+8+i,2)}')
e('s_waitcnt lgkmcnt(0)')
for a_, b_ in ((16, 24), (0, 16)):
    for i in range(0, 8, 2): e(f'v_pk_add_f32 {vr(tR+a_+i,2)}, {vr(tR+a_+i,2)}, {vr(tR+b_+i,2)}')
for i in range(4): e(f'v_cvt_pk_bf16_f32 v{16+i}, v{tR+2*i}, v{tR+2*i+1}')
e(f'buffer_store_dwordx4 {vr(16,4)}, v{vTo}, {sr(S_OUT,4)}, s{sOutOff} offen{opt("of", "_nt").replace("_", " ")}')
E(f's_cmp_eq_u32 s{sC}, 2', 's_cbranch_scc1 L_fin',
  f's_add_u32 s{sC}, s{sC}, 1', f's_cmp_eq_u32 s{sC}, 1', f's_cselect_b32 s{sT0}, 1, 8', f's_cselect_b32 s{sT1}, 64, 1', f's_lshl_b32 s{sT1}, s{sT1}, 10', f's_lshl_b32 s{sT0}, s{sT0}, 13',
  f'v_add_u32 v{vTr0}, s{sT0}, v{vTr0}', f'v_add_u32 v88, s{sT0}, v88', f's_add_u32 s{sOutOff}, s{sOutOff}, s{sT1}',
  f's_cmp_eq_u32 s{sC}, 1', 's_cbranch_scc1 L_red', 's_barrier', 's_branch L_red')
lab('L_fin')
if STAMPS:
    stamp(8, 'tail')
    e('s_waitcnt vmcnt(0)')
    stamp(9, 'tail', 'head'); stamp(6, 'all')
    E('s_waitcnt lgkmcnt(0)', 's_nop 1')
    ECHO = [a[7:] for a in sys.argv if a.startswith('--echo=')]
    if ECHO:
        a_, b_, mul = map(int, ECHO[0].split(','))
        E(f's_sub_u32 s{sT0}, s{sST+2*b_}, s{sST+2*a_}', f's_mul_i32 s{sT0}, s{sT0}, {mul}')
        if opt('ehg', -1) >= 0:
            E(f's_cmp_eq_u32 s{sHG}, {opt("ehg", -1)}', f's_cselect_b32 s{sT0}, s{sT0}, 0', f's_cmp_ge_u32 s{sW}, 4' if STMODE == 'all' else f's_cmp_lt_u32 s{sW}, 4', f's_cselect_b32 s{sT0}, s{sT0}, 0')
        E(f's_memrealtime {sr(6,2)}', 's_waitcnt lgkmcnt(0)')
        lab('L_echo')
        E(f's_memrealtime {sr(4,2)}', 's_waitcnt lgkmcnt(0)', f's_sub_u32 s{sT1}, s4, s6', f's_cmp_lt_u32 s{sT1}, s{sT0}', 's_cbranch_scc1 L_echo')
    for i in range(12): e(f'v_mov_b32 v{16+i}, s{sST+2*i}')
    E(f's_getreg_b32 s{sT0}, hwreg(HW_REG_XCC_ID)', f'v_mov_b32 v28, s{sT0}', f'v_mov_b32 v29, s{sSpin}', f'v_mov_b32 v30, s{sFB}', 'v_mov_b32 v31, 0',
      f's_lshl_b32 s{sT0}, s2, 3', f's_add_u32 s{sT0}, s{sT0}, s{sW}', f's_lshl_b32 s{sT0}, s{sT0}, 6', f's_add_u32 s{sT0}, s{sT0}, {hex(WS_STAMP)}',
      'v_mov_b32 v0, 0', 's_mov_b64 exec, 1')
    for i in range(4):
        e(f'buffer_store_dwordx4 {vr(16+4*i,4)}, v0, {sr(S_WS,4)}, s{sT0} offen offset:{16*i}')
lab('L_end')
e('s_endpgm')

cm('================ X program (waves 0-3) ================')
VMQ[:] = []; NBAR[0] = 0
xAcc, xFr, xMask = 96, 160, 32
xa, xb, xw = 56, 60, 64
(xFw, xLq, xLv, xLvp, xOne) = (72, 73, 74, 75, 76)
XV, XM, PACE = opt('xv', 2), opt('xm', 0), opt('pace', 2)
e('.p2align 6')
lab('L_X')
srd(S_WQ, 0x80000); srd(S_XA, 0x200000); srd(S_WQKV, 0x180000)
E(f's_or_b32 s{sT1}, s2, s{sW}', 's_cbranch_scc1 L_nonon', 's_waitcnt lgkmcnt(0)',
  f's_lshl_b64 {sr(sNon,2)}, {sr(sNon,2)}, 5', f's_or_b32 s{sNon}, s{sNon}, 1', f'v_mov_b32 v{vNon}, s{sNon}', f'v_mov_b32 v{vNon+1}, s{sNon+1}', 's_mov_b64 exec, 1',
  f'global_store_dwordx2 v{vZero}, {vr(vNon,2)}, {sr(S_DBG,2)} sc1', 's_mov_b64 exec, -1')
lab('L_nonon')
E(f'v_and_b32 v{vT3}, 1, v{vG}', f'v_lshlrev_b32 v{vT3}, 2, v{vT3}', f'v_xor_b32 v{vT3}, v{vT3}, v{vT2}', f'v_lshlrev_b32 v{vT3}, 4, v{vT3}',
  f'v_lshl_add_u32 v{vW}, v{vT1}, 10, v{vT3}', f'v_add_u32 v{vW2}, {8192-1024}, v{vW}',
  f'v_mul_u32_u24 v{vWA}, 3072, v{vT1}', f'v_add_u32 v{vWA}, v{vWA}, v{vT3}')
lane_setup()
SH4 = ['0', f's{sVM}', f's{sVM+1}', f's{sC}']; RG4 = [82, 84, 86, 88]
qx, qw = 56, 64
E(f'v_bfe_u32 v{vXx}, v{vN}, 1, 3', f'v_xor_b32 v{vXx}, v{vXx}, v{vH}', f'v_lshlrev_b32 v{vXx}, 4, v{vXx}',
  f's_and_b32 s{sF0}, s{sW}, 1', f's_lshl_b32 s{sF0}, s{sF0}, 12', f'v_lshl_add_u32 v{qx}, v{vN}, 7, v{vXx}', f'v_add_u32 v{qx}, s{sF0}, v{qx}',
  f'v_xor_b32 v{qx+1}, 32, v{qx}', f'v_xor_b32 v{qx+2}, 64, v{qx}', f'v_xor_b32 v{qx+3}, 96, v{qx}',
  f's_and_b32 s{sF2}, s{sW}, 2', f's_lshl_b32 s{sF2}, s{sF2}, 5', f'v_xor_b32 v{qw}, s{sF2}, v{vWl}', f'v_add_u32 v{qw}, 8192, v{qw}', f'v_add_u32 v{qw+1}, 65536, v{qw}',
  f's_mov_b32 s{sCS}, {f32(CSCALE)}')
for j in range(4): e(f'v_add_u32 v{qx+4+j}, 65536, v{qx+j}')
AR = opt('arot', 0)
if AR == 1: E(f's_add_u32 s{sXo}, s{sRot}, s{sHG}', f's_and_b32 s{sXo}, s{sXo}, 7', f's_lshl_b32 s{sXo}, s{sXo}, 7')
elif AR == 2: E(f's_lshr_b32 s{sXo}, s{sRB}, 2', f's_lshl_b32 s{sXo}, s{sXo}, 7')
elif AR == 3: E(f's_lshr_b32 s{sXo}, s{sRB}, 2', f's_lshl_b32 s{sT0}, s{sRB}, 2', f's_add_u32 s{sXo}, s{sXo}, s{sT0}', f's_and_b32 s{sXo}, s{sXo}, 7', f's_lshl_b32 s{sXo}, s{sXo}, 7')
elif AR == 4: E(f's_and_b32 s{sXo}, s{sRB}, 1', f's_lshl_b32 s{sXo}, s{sXo}, 9')
else: e(f's_mov_b32 s{sXo}, 0')
E(f's_lshl_b32 s{sW2k}, s{sW}, 11',
  f's_lshl_b32 s{sT3}, s{sRB}, 2', f's_add_u32 s{sT0}, s{sT3}, s{sW}', f's_lshl_b32 s{sT0}, s{sT0}, 14', f'v_add_u32 v{vXA}, s{sT0}, v{vP0}', f'v_add_u32 v{vXA2}, s{sT0}, v{vP1}',
  f's_mul_i32 s{sT0}, s{sW}, {16*3072}', f's_add_u32 s{sT0}, s{sT0}, s{sHG128}', f'v_add_u32 v{vWA}, s{sT0}, v{vWA}', f'v_add_u32 v{vWA2}, {8*3072-1024}, v{vWA}')
def w64(srd_, lds_base_sgpr, lds, tag):
    for hf in range(2):
        E(f's_add_u32 m0, s{lds_base_sgpr}, {lds+hf*4096}', f's_add_u32 s{sT1}, s{sT0}, {2*7168}')
        dma(vW, srd_, f's{sT0}', 0, '', tag); dma(vW2, srd_, f's{sT0}', 1024, '', tag)
        dma(vW, srd_, f's{sT1}', 2048, '', tag); dma(vW2, srd_, f's{sT1}', 3072, '', tag)
        if hf == 0: e(f's_add_u32 s{sT0}, s{sT0}, 32768')
vTc = 68
def touch_setup():
    E(f's_lshr_b32 s{sT0}, s2, 3', f's_lshl_b32 s{sT0}, s{sT0}, 2', f's_add_u32 s{sT0}, s{sT0}, s{sW}',
      f's_mul_i32 s{sT1}, s{sT0}, {12*128}', f'v_mul_u32_u24 v{vTc}, {196608}, v{vG}', f'v_lshl_add_u32 v{vTc}, v{vI}, 7, v{vTc}', f'v_add_u32 v{vTc}, s{sT1}, v{vTc}',
      f's_lshl_b32 s{sT1}, s{sT0}, 12', f'v_lshlrev_b32 v{vTc+1}, 7, v{vN}', f'v_add_u32 v{vTc+1}, s{sT1}, v{vTc+1}',
      f's_lshl_b32 s{sT1}, s{sHG}, 2', f's_add_u32 s{sT1}, s{sT1}, s{sW}', f's_lshl_b32 s{sT1}, s{sT1}, 11', f's_lshl_b32 s{sT2}, s{sRB}, 16', f's_add_u32 s{sT1}, s{sT1}, s{sT2}',
      f'v_lshlrev_b32 v{vTc+2}, 7, v{vI}', f'v_add_u32 v{vTc+2}, s{sT1}, v{vTc+2}')
def touch_w(j):
    E(f's_mov_b32 s{sT0}, {j*4*196608}', 's_mov_b32 exec_lo, 0x0fff0fff', 's_mov_b32 exec_hi, 0x0fff0fff')
    e(f'buffer_load_dword v{vTc+3}, v{vTc}, {sr(S_WQKV,4)}, s{sT0} offen', 'tc')
    e('s_mov_b64 exec, -1')
def touch_x():
    e('s_mov_b64 exec, 0xffff')
    e(f'buffer_load_dword v{vTc+3}, v{vTc+2}, {sr(S_XA,4)}, 0 offen{NT}', 'tc')
    e('s_mov_b64 exec, -1')
def touch_wo(srd_):
    e('s_mov_b32 exec_hi, 0')
    e(f'buffer_load_dword v{vTc+3}, v{vTc+1}, {sr(srd_,4)}, 0 offen', 'tc')
    e('s_mov_b64 exec, -1')
TC = opt('tc', 0)
def halo_fill():
    E(f's_lshl_b32 s{sT3}, s{sRB}, 16', f's_sub_u32 s{sT2}, s{sT3}, 16384', f's_max_i32 s{sT2}, s{sT2}, 0',
      f's_lshl_b32 s{sT0}, s{sW}, 7', f's_add_u32 s{sT0}, s{sT0}, s{sStepH}')
    for j in range(2):
        E(f's_and_b32 s{sT0}, s{sT0}, 1023', f's_add_u32 m0, s{sW2k}, {HALO+j*8192}', f's_add_u32 s{sT1}, s{sT2}, s{sT0}')
        dma(vP0, S_XA, f's{sT1}', 0, '', 'halo'); dma(vP1, S_XA, f's{sT1}', 1024, '', 'halo')
        if j == 0: e(f's_add_u32 s{sT0}, s{sT0}, 512')
def a_fill(c):
    slot = (c & 3) * SLOT
    t = f'A{c}'
    E(f's_add_u32 m0, s{sW2k}, {slot}', f's_mul_i32 s{sWo}, s{sXo}, 1536')
    dma(vXA, S_XA, f's{sXo}', 0, NT, t); dma(vXA2, S_XA, f's{sXo}', 1024, NT, t)
    for ty in range(3):
        E(f's_add_u32 m0, s{sW2k}, {slot+8192+ty*8192}', [f's_add_u32 s{sXo}, s{sXo}, 128', f's_add_u32 s{sWo}, s{sWo}, 1024', f's_add_u32 s{sWo}, s{sWo}, 1024'][ty])
        dma(vWA, S_WQKV, f's{sWo}', 0, WNT, t); dma(vWA2, S_WQKV, f's{sWo}', 1024, WNT, t)
    e(f's_and_b32 s{sXo}, s{sXo}, 1023')
def kv_fill(k):
    E(f's_add_u32 m0, s{sW4k}, {R+((k&1)^1)*16384}', f's_and_b32 s{sKVo}, s{sKVo}, 0x1ffff')
    for j in range(4): dma(vL16, S_WS, f's{sKVo}', 1024*j, ' sc1', f'KV{k}')
    e(f's_add_u32 s{sKVo}, s{sKVo}, 16384')
def wo_fill(srd_, half, lds, tag):
    e(f's_add_u32 s{sT0}, s{sWoff}, {half*256*1024}')
    if opt('worot', 1): e(f's_and_b32 s{sT0}, s{sT0}, 0x7ffff')
    w64(srd_, sW8k, lds, tag)
def masks():
    E(f'v_lshlrev_b32 v{vT0}, 2, v{vH}', f'v_sub_u32 v{vT0}, v{vN}, v{vT0}', f'v_add_u32 v{vT0}, 18, v{vT0}',
      f'v_mov_b32 v{vT2}, 0x5555', f'v_mov_b32 v{vT3}, 0', f'v_lshlrev_b64 {vr(vT2,2)}, v{vT0}, {vr(vT2,2)}',
      f'v_not_b32 v{vT2}, v{vT2}', f'v_not_b32 v{vT3}, v{vT3}', f's_mov_b32 s{sF1}, 0xff800000')
    for r in range(16): E(f'v_bfe_i32 v{xMask+r}, v{vT3}, {8*(r>>2)+(r&3)}, 1', f'v_and_b32 v{xMask+r}, s{sF1}, v{xMask+r}')
    for r in range(8, 16): E(f'v_bfe_i32 v{xMask+8+r}, v{vT2}, {8*(r>>2)+(r&3)}, 1', f'v_and_b32 v{xMask+8+r}, s{sF1}, v{xMask+8+r}')
def local_setup():
    E(f's_and_b32 s{sT0}, s{sW}, 1', f's_lshl_b32 s{sT0}, s{sT0}, 12', f's_lshr_b32 s{sT1}, s{sW}, 1', f's_lshl_b32 s{sT2}, s{sT1}, 11', f's_add_u32 s{sT0}, s{sT0}, s{sT2}', f's_add_u32 s{sT0}, s{sT0}, {SC}', f'v_add_u32 v{xFw}, s{sT0}, v{vL16}',
      f's_lshl_b32 s{sT0}, s{sRB}, 3', f's_add_u32 s{sT0}, s{sT0}, s{sHG}', f's_lshl_b32 s{sStepA}, s{sT0}, 13', f's_add_u32 s{sStepA}, s{sStepA}, s{sT2}', f's_add_u32 s{sStepA}, s{sStepA}, {hex(WS_HX)}',
      f's_lshl_b32 s{sStepB}, s{sT0}, 1', f's_add_u32 s{sStepB}, s{sStepB}, s{sT1}', f's_lshl_b32 s{sStepB}, s{sStepB}, 6', f's_add_u32 s{sStepB}, s{sStepB}, {hex(WS_FHX)}',
      f's_cmp_eq_u32 s{sRB}, 0', f's_cselect_b32 s{sT2}, 0, 8', f's_sub_u32 s{sT0}, s{sT0}, s{sT2}', f's_lshl_b32 s{sT2}, s{sT2}, 7', f's_sub_u32 s{sT2}, s{sStepB}, s{sT2}', f'v_mov_b32 v{vB1}, s{sT2}',
      f's_lshl_b32 s{sStepH}, s{sT0}, 13', f's_lshl_b32 s{sT2}, s{sW}, 10', f's_add_u32 s{sStepH}, s{sStepH}, s{sT2}', f's_add_u32 s{sStepH}, s{sStepH}, {hex(WS_HX)}',
      f'v_mov_b32 v{xOne}, 0x3f803f80', f'v_mov_b32 v{xOne+1}, 0x3f803f80',
      f's_lshl_b32 s{sT1}, s{sW}, 10', f's_add_u32 s{sT2}, s{sT1}, {ONES}', f's_add_u32 s{sT1}, s{sT1}, {SC}', f'v_add_u32 v{xLq}, s{sT1}, v{vL16}',
      f'v_and_b32 v{vT0}, 1, v0', f'v_lshlrev_b32 v{vT0}, 5, v{vT0}', f'v_lshl_add_u32 v{vT0}, v{vH}, 3, v{vT0}',
      f'v_lshrrev_b32 v{vT1}, 2, v{vI}', f'v_add_u32 v{vT0}, v{vT0}, v{vT1}', f'v_lshlrev_b32 v{vT0}, 4, v{vT0}', f'v_and_b32 v{vT1}, 2, v0', f'v_lshl_add_u32 v{vT0}, v{vT1}, 2, v{vT0}',
      f'v_add_u32 v{xLv}, s{sT1}, v{vT0}', f'v_mov_b32 v{xLvp}, s{sT2}', f'v_lshl_add_u32 v{vOw}, v0, 3, v{xLvp}',
      f'v_and_b32 v{vT0}, 16, v0', f'v_cmp_ne_u32 vcc, 0, v{vT0}',
      f'v_add_u32 v78, {4*4096}, v{xLv}', f'v_add_u32 v79, {5*4096}, v{xLv}', f'v_add_u32 v80, {7*4096}, v{xLv}',
      f'v_cndmask_b32 v78, v78, v{xLvp}, vcc', f'v_cndmask_b32 v79, v79, v{xLvp}, vcc', f'v_cndmask_b32 v80, v80, v{xLvp}, vcc',
      f's_lshl_b32 s{sT0}, s{sRB}, 6', f's_lshl_b32 s{sT1}, s{sHG}, 2', f's_add_u32 s{sT1}, s{sT1}, s{sW}', f's_add_u32 s{sT0}, s{sT0}, s{sT1}',
      f's_lshl_b32 s{sT0}, s{sT0}, 10', f's_add_u32 s{sOslot}, s{sT0}, {hex(WS_OA)}', f's_add_u32 s{sOslot2}, s{sOslot}, 32768',
      f's_lshl_b32 s{sT0}, s{sRB}, 5', f's_add_u32 s{sT0}, s{sT0}, s{sT1}', f's_lshl_b32 s{sT0}, s{sT0}, 6', f's_add_u32 s{sK1}, s{sT0}, {hex(WS_FOA)}')
    for i in range(4): e(f'v_mov_b32 v{vF0+i}, -1')
def sentinels():
    E(f's_add_u32 s{sT0}, s{sOslot}, {hex(WS_OB-WS_OA)}', f's_add_u32 s{sT1}, s{sT0}, 32768')
    e(f'buffer_store_dwordx4 {vr(vF0,4)}, v{vL16}, {sr(S_WS,4)}, s{sT0} offen sc1', 'sent')
    e(f'buffer_store_dwordx4 {vr(vF0,4)}, v{vL16}, {sr(S_WS,4)}, s{sT1} offen sc1', 'sent')
    nonce_load('sent')
def setup_a():
    E(f's_cmp_eq_u32 s{sW}, 3', f's_cselect_b32 s{sT1}, 15, 31', f'v_and_b32 v{vT0}, s{sT1}, v{vN}', f'v_lshl_add_u32 v{xa}, v{vT0}, 7, v{vXx}',
      f's_cselect_b32 s{sT1}, {HALO}, 0', f'v_add_u32 v{xa}, s{sT1}, v{xa}', f's_cselect_b32 s{sT1}, 0, 4096', f'v_add_u32 v{xb}, s{sT1}, v{xa}',
      f's_cselect_b32 s{sStepA}, 1, 16', f's_cselect_b32 s{sStepB}, 1, -32', f's_cselect_b32 s{sT1}, 1, s{sW}', f's_cselect_b32 s{sT2}, 2, s{sW}',
      f's_lshl_b32 s{sStepA}, s{sStepA}, 11', f's_lshl_b32 s{sStepB}, s{sStepB}, 11',
      f's_lshl_b32 s{sT1}, s{sT1}, 13', f's_add_u32 s{sT1}, s{sT1}, 8192', f'v_add_u32 v{xw}, s{sT1}, v{vWl}', f'v_xor_b32 v{xw+1}, 64, v{xw}',
      f's_lshl_b32 s{sT2}, s{sT2}, 13', f's_add_u32 s{sT2}, s{sT2}, 8192', f'v_add_u32 v{xw+2}, s{sT2}, v{vWl}', f'v_xor_b32 v{xw+3}, 64, v{xw+2}')
    for j in range(4): e(f'v_add_u32 v{xw+4+j}, 65536, v{xw+j}')
    for s_ in range(1, 4): E(f'v_xor_b32 v{xa+s_}, {32*s_}, v{xa}', f'v_xor_b32 v{xb+s_}, {32*s_}, v{xb}')
def setup_b():
    E(f's_lshr_b32 s{sT1}, s{sRB}, 2', f's_lshl_b32 s{sKVo}, s{sT1}, 14', f's_add_u32 s{sKVo}, s{sKVo}, s{sW4k}', f's_add_u32 s{sKVo}, s{sKVo}, 16384',
      f'v_lshlrev_b32 v{vPa}, 3, v0', f'v_add_u32 v{vPa}, {hex(WS_FD)}, v{vPa}',
      f'v_lshlrev_b32 v{vPa2}, 6, v{vN}', f's_lshl_b32 s{sT2}, s{sRB}, 11', f's_add_u32 s{sT2}, s{sT2}, {hex(WS_FOA)}', f'v_add_u32 v{vPa2}, s{sT2}, v{vPa2}',
      f's_add_u32 s{sT2}, s{sT1}, 1', f's_lshl_b32 s{sT2}, s{sT2}, 5', f'v_add_u32 v{vB0}, s{sT2}, v0', f'v_and_b32 v{vB0}, 255, v{vB0}',
      f'v_lshlrev_b32 v{vB0}, 6, v{vB0}', f'v_add_u32 v{vB0}, {hex(WS_FKV)}, v{vB0}',
      f's_mov_b32 s{sVM}, 512', f's_mov_b32 s{sVM+1}, 1024', f's_mov_b32 s{sC}, 1536',
      f's_lshl_b32 s{sW8k}, s{sW}, 13', f's_lshl_b32 s{sWoff}, s{sW}, 16', f's_add_u32 s{sWoff}, s{sWoff}, s{sHG128}')
    if opt('worot', 1): E(f's_lshl_b32 s{sT2}, s{sRB}, 17', f's_add_u32 s{sWoff}, s{sWoff}, s{sT2}')
    srd(S_WOA, 0x80000); srd(S_WOB, 0x80000)
    E(f's_getreg_b32 s{sXcc}, hwreg(HW_REG_XCC_ID, 0, 4)', f's_lshl_b32 s{sXcc}, s{sXcc}, 1')
setup_b()
E(f's_add_u32 s{sT0}, s{sW}, s{sRot}', f's_lshl_b32 s{sT0}, s{sT0}, 16', f's_add_u32 s{sT0}, s{sT0}, s{sHG128}', f's_lshl_b32 s{sT2}, s{sW}, 14',
  f's_and_b32 s{sT0}, s{sT0}, 0x7ffff', 's_waitcnt lgkmcnt(0)', 's_barrier')
w64(S_WQ, sT2, 8192, 'B')
E(f's_add_u32 s{sT0}, s{sT0}, {4*65536-32768}', f's_and_b32 s{sT0}, s{sT0}, 0x7ffff')
w64(S_WQ, sT2, 65536+8192, 'B')
stamp(1, 'head')
local_setup(); tail_setup(); masks()
if TC: touch_setup()
for j in range(16): e(f'v_mov_b32 v{208+j}, 0')
E('s_waitcnt vmcnt(0)', 's_barrier')
stamp(5, 'head'); stamp(1, 'all', 'x')
def qrd(u):
    sc, st = u >> 2, u & 3
    x = vFr + 8 * (u % 8)
    hi = sc >> 2
    o = (sc & 3) * 16384
    E(f'ds_read_b128 {vr(x,4)}, v{qx+4*hi+st} offset:{o}',
      f'ds_read_b64_tr_b16 {vr(x+4,2)}, v{qw+hi} offset:{o+st*2048}', f'ds_read_b64_tr_b16 {vr(x+6,2)}, v{qw+hi} offset:{o+st*2048+512}')
for u in range(5): qrd(u)
if TC & 8: touch_x(); touch_w(0)
for u in range(32):
    x = vFr + 8 * (u % 8)
    issued = min(32, 5 + u)
    e(f's_waitcnt lgkmcnt({3*(issued-u-1)})')
    e(f'v_mfma_f32_32x32x16_bf16 {vr(vQacc,16)}, {vr(x+4,4)}, {vr(x,4)}, {"0" if u == 0 else vr(vQacc,16)}')
    if 5 + u < 32: qrd(5 + u)
    if EA and u == 7: e('s_barrier')
    if EA and u == EA:
        CAP[0] = []; a_fill(0); cap0 = CAP[0]; CAP[0] = None
        side0 = []; g_ = []
        for it in cap0:
            g_.append(it)
            if it[1] is not None: side0.append(g_); g_ = []
        side0[-1] += g_
    if EA and u >= EA and side0 and (u - EA) % opt('eas', 1) == 0:
        for s_, t_ in side0.pop(0): e(s_, t_)
if EA: assert not side0
E(f's_cmp_lg_u32 s{sW}, 0', 's_cbranch_scc1 L_np2')
poll_issue(vB0, ['0'], [vFl])
lab('L_np2')
e('s_nop 9')
stamp(6, 'head')
for j in range(16): e(f'v_mul_f32 v{vQacc+j}, s{sCS}, v{vQacc+j}')
for j in range(8): e(f'v_cvt_pk_bf16_f32 v{vQacc+j}, v{vQacc+2*j}, v{vQacc+2*j+1}')
E(f'ds_write_b128 v{vQx}, {vr(vQacc,4)}', f'ds_write_b128 v{vQx}, {vr(vQacc+4,4)} offset:1024',
  f's_setprio {XV}', 's_waitcnt lgkmcnt(0)')
stamp(7, 'head'); stamp(2, 'all', 'x')
e('s_barrier')
for j in range(16): e(f'v_mov_b32 v{16+j}, 0')
stamp(8, 'head'); stamp(3, 'all', 'x')

def a_chunk(cs, side=()):
    side = list(side)
    seq = []
    u = 0
    for c in cs:
        hi, base = (c >> 1) & 1, (c & 1) * SLOT
        for s in range(4):
            x = xFr + 16 * (u % 3); u += 1
            for ty in range(3):
                r = [f'ds_read_b128 {vr(x,4)}, v{qx+4*hi+s} offset:{base}'] if ty == 0 else []
                o = base + ty * 8192 + s * 2048
                r += [f'ds_read_b64_tr_b16 {vr(x+4+4*ty,2)}, v{qw+hi} offset:{o}', f'ds_read_b64_tr_b16 {vr(x+6+4*ty,2)}, v{qw+hi} offset:{o+512}']
                a = xAcc + 16 * ty
                seq.append((r, f'v_mfma_f32_32x32x16_bf16 {vr(a,16)}, {vr(x+4+4*ty,4)}, {vr(x,4)}, {"0" if (c == 0 and s == 0) else vr(a,16)}'))
    if XM != XV: e(f's_setprio {XM}')
    LA = opt('la', 1)
    for k_ in range(LA): E(*seq[k_][0])
    for k_, (r, m) in enumerate(seq):
        if k_ + LA < len(seq): E(*seq[k_+LA][0])
        e(f's_waitcnt lgkmcnt({sum(len(seq[j][0]) for j in range(k_+1, min(len(seq), k_+LA+1)))})')
        e(m)
        take = -(-len(side) // (len(seq) - k_))
        for g in side[:take]:
            for s_, t_ in g: e(s_, t_)
        side = side[take:]
    if XM != XV: e(f's_setprio {XV}')
def write_frags():
    e('s_nop 6')
    for ty in range(3):
        for hd in range(2):
            a = xAcc + 16 * ty + 8 * hd
            for i in range(4): e(f'v_cvt_pk_bf16_f32 v{a+i}, v{a+2*i}, v{a+2*i+1}')
            e(f'ds_write_b128 v{xFw}, {vr(a,4)} offset:{ty*8192+hd*1024}')
    E(f's_bitcmp1_b32 s{sW}, 0', 's_cbranch_scc0 L_nopub', f's_add_u32 s{sT0}, s{sStepA}, 4096',
      f'buffer_store_dwordx4 {vr(xAcc+16,4)}, v{vL16}, {sr(S_WS,4)}, s{sStepA} offen sc1',
      f'buffer_store_dwordx4 {vr(xAcc+24,4)}, v{vL16}, {sr(S_WS,4)}, s{sStepA} offen offset:1024 sc1',
      f'buffer_store_dwordx4 {vr(xAcc+32,4)}, v{vL16}, {sr(S_WS,4)}, s{sT0} offen sc1',
      f'buffer_store_dwordx4 {vr(xAcc+40,4)}, v{vL16}, {sr(S_WS,4)}, s{sT0} offen offset:1024 sc1')
    lab('L_nopub')
PUB = [0]
def halo_flag():
    E(f's_bitcmp1_b32 s{sW}, 0', 's_cbranch_scc0 L_nohf')
    flag_store('hx', f's{sStepB}', f's_waitcnt vmcnt({len(VMQ)-PUB[0]})')
    lab('L_nohf')
def halo_get():
    poll_check('hx', vB1, ['0'], [vFl], None)
    E(f's_lshl_b32 s{sT0}, s{sW}, 10', f's_add_u32 m0, s{sT0}, {SC+6*4096}', f's_add_u32 s{sT1}, s{sStepH}, 4096')
    dma(vL16, S_WS, f's{sStepH}', 0, ' sc1', 'hx')
    E(f's_add_u32 m0, s{sT0}, {SC+7*4096}', 's_nop 0')
    dma(vL16, S_WS, f's{sT1}', 0, ' sc1', 'hx')
def local_task(t):
    lq, lk, lp, lv = xFr, xFr+4, xFr+8, xFr+12
    lS, lP, lO = xAcc, xAcc+16, (16 if t else 208)
    kp = 6 if t == 0 else 2
    vc, vp = (78, 80) if t == 0 else (79, 78)
    E(f'ds_read_b128 {vr(lq,4)}, v{xLq} offset:{t*4096}', f'ds_read_b128 {vr(lk,4)}, v{xLq} offset:{(2+t)*4096}', f'ds_read_b128 {vr(lp,4)}, v{xLq} offset:{kp*4096}',
      f'ds_read_b64_tr_b16 {vr(lv,2)}, v{vc}', f'ds_read_b64_tr_b16 {vr(lv+2,2)}, v{vc} offset:64',
      f'ds_read_b64_tr_b16 {vr(lv+4,2)}, v{vc} offset:256', f'ds_read_b64_tr_b16 {vr(lv+6,2)}, v{vc} offset:320',
      f'ds_read_b64_tr_b16 {vr(lv+8,2)}, v{vp} offset:256', f'ds_read_b64_tr_b16 {vr(lv+10,2)}, v{vp} offset:320')
    if t == 0:
        E(f's_cmp_lg_u32 s{sRB}, 0', 's_cbranch_scc1 L_m0')
        for r in range(8): e(f'v_mov_b32 v{xMask+16+r}, 0xff800000')
        lab('L_m0')
    E('s_waitcnt lgkmcnt(6)', 's_nop 0',
      f'v_mfma_f32_32x32x16_bf16 {vr(lS,16)}, {vr(lk,4)}, {vr(lq,4)}, {vr(xMask,16)}',
      f'v_mfma_f32_32x32x16_bf16 {vr(lP,16)}, {vr(lp,4)}, {vr(lq,4)}, {vr(xMask+8,16)}')
    e('s_nop 10')
    regs = [lS+i for i in range(16)] + [lP+8+i for i in range(8)]
    maxtree(regs, vT0, vT1)
    E('s_nop 1', f'v_permlane32_swap_b32 v{vT0}, v{vT1}', f'v_max_f32 v{vT0}, v{vT0}, v{vT1}', f'v_mul_f32 v{vT0}, {f32(-CSCALE)}, v{vT0}')
    for k in range(0, 24, 2): e(f'v_pk_fma_f32 {vr(regs[k],2)}, {vr(regs[k],2)}, {sr(sCS,2)}, {vr(vT0,2)} op_sel_hi:[1,0,0]')
    e('s_waitcnt lgkmcnt(0)')
    for k in range(24):
        e(f'v_exp_f32 v{regs[k]}, v{regs[k]}')
        if k == 9: e(f'v_smfmac_f32_32x32x32_bf16 {vr(lO,16)}, {vr(lv,4)}, {vr(lS,8)}, v{vIdx}')
        if k == 17: e(f'v_smfmac_f32_32x32x32_bf16 {vr(lO,16)}, {vr(lv+4,4)}, {vr(lS+8,8)}, v{vIdx}')
    E('s_nop 1', f'v_smfmac_f32_32x32x32_bf16 {vr(lO,16)}, {vr(lv+8,4)}, {vr(lP+8,8)}, v{vIdx}', 's_nop 11',
      f'v_rcp_f32 v{vT2}, v{lO+8}', 's_nop 0')
    for i in range(0, 8, 2): e(f'v_pk_mul_f32 {vr(lO+i,2)}, {vr(lO+i,2)}, {vr(vT2,2)} op_sel_hi:[1,0]')
    d = xAcc + 48 + 4 * t
    for i in range(4): e(f'v_cvt_pk_bf16_f32 v{d+i}, v{lO+2*i}, v{lO+2*i+1}')
    e(f'buffer_store_dwordx4 {vr(d,4)}, v{vL16}, {sr(S_WS,4)}, s{sOslot2 if t else sOslot} offen sc1', 'oa')

def oa_mfma(rt, wr=False):
    for s_ in range(8):
        for ct in range(2):
            a_ = oAcc + 32 * rt + 16 * ct
            e(f'v_mfma_f32_32x32x16_bf16 {vr(a_,16)}, {vr(oW+8*s_+4*ct,4)}, {vr(oOf+32*rt+4*s_,4)}, {"0" if s_ == 0 else vr(a_,16)}')
            m_ = 2 * s_ + ct
            if wr and wr <= m_ < wr + 4:
                for q in (2*(m_-wr), 2*(m_-wr)+1): e(f'ds_write_b128 v{80+q if q else vTp}, {vr(oAcc+4*q,4)}')
PAT = opt('pat', 3)
if PAT == 3:
    CH = {n: [n-2] for n in range(2, 10)}; FILL = {n: [n] for n in range(8)}
else:
    CH = {2: [0], 3: [1], 4: [2], 5: [3, 4], 6: [5], 7: [6], 8: [7]}; FILL = {0: [0], 1: [1], 2: [2, 3], 3: [4], 4: [5], 5: [6], 6: [7]}
if EA:
    CH = {n: [n-1] for n in range(1, 9)}; FILL = {n: [n+1] for n in range(7)}
NG = max(CH)
LATE = opt('late', 1 if NG < 9 else 0)
AE = opt('aearly', 0)
for n in range(16):
    cm(f'X interval {n}')
    if n < 9: stamp(n + 1, 'i0')
    if n >= 8: stamp(n - 7, 'i1')
    if n in (opt('dn', 2), opt('dn', 2)+1, opt('dn', 2)+2): stamp(1 + 4*(n-opt('dn', 2)), 'd')
    if n in (1, 2, 4, 10, 12, 14): stamp({1: 4, 2: 5, 4: 6, 10: 7, 12: 8, 14: 9}[n], 'x')
    if STAMPS and STMODE == 'xc' and n in (4, 8, 10, 12, 14, 15):
        i_ = (4, 8, 10, 12, 14, 15).index(n)
        E(f's_memrealtime {sr(sST+4*i_,2)}', f's_memtime {sr(sST+4*i_+2,2)}')
    waits = []
    k = n // 2
    if n == 0:
        E(f's_cmp_lg_u32 s{sW}, 0', 's_cbranch_scc1 L_nochk_kv1')
        poll_check('kv1', vB0, ['0'], [vFl], 0)
    ILV = opt('ilv', 1) and n in CH
    if n == 3:
        E(f's_cmp_lg_u32 s{sW}, 0', 's_cbranch_scc1 L_np3')
        poll_issue(vPa, SH4, RG4)
        lab('L_np3')
        NP3 = len(VMQ)
    if ILV: CAP[0] = []
    if n == 1: kv_fill(1)
    if n % 2 == 0 and 1 <= k <= 6: kv_fill(k + 1)
    for c in FILL.get(n, []): a_fill(c)
    WS_ = opt('wos', 3)
    if n == NG - 1: sentinels()
    if WS_ == 0:
        if n == NG - 1: wo_fill(S_WOA, 0, 0, 'woA')
        if n == NG: wo_fill(S_WOA, 1, SLOT, 'woA')
    if WS_ == 3 and n == NG - 1: wo_fill(S_WOA, 0, 0, 'woA')
    if WS_ == 2:
        if n == NG - 2: wo_fill(S_WOA, 0, 0, 'woA')
        if n == NG - 1: wo_fill(S_WOA, 1, SLOT, 'woA')
    if TC & 1 and n == 0: touch_x(); touch_w(0)
    if TC & 2 and n == 2: touch_w(1)
    if TC & 4 and n == 3: touch_wo(S_WOA)
    if TC & 4 and n == 5: touch_wo(S_WOB)
    DN = opt('dn', 2)
    side = []
    if ILV:
        cap = CAP[0]; CAP[0] = None
        g = []
        for it in cap:
            g.append(it)
            if it[1] is not None: side.append(g); g = []
        if g: side[-1] += g
    if n in (DN, DN+1): stamp(2 + 4*(n-DN), 'd')
    if n in CH: a_chunk(CH[n], side)
    if n in (DN, DN+1): stamp(3 + 4*(n-DN), 'd')
    for c in CH.get(n + 1, []): waits.append(f'A{c}')
    if n == NG: write_frags(); PUB[0] = len(VMQ)
    if n == NG + 1:
        e(f'ds_write_b64 v{vOw}, {vr(xOne,2)}')
        if opt('hfe', 1): halo_flag()
        local_task(1)
        if not opt('hfe', 1): halo_flag()
    if n == NG + 2:
        halo_get()
        if WS_ == 1: wo_fill(S_WOA, 0, 0, 'woA')
        if WS_ == 3: wo_fill(S_WOA, 1, SLOT, 'woA')
    if n == NG + 3:
        e(f's_waitcnt vmcnt({vmn("hx")})')
        local_task(0)
        if WS_ == 3: waits.append('woA')
        if WS_ == 1: wo_fill(S_WOA, 1, SLOT, 'woA')
    if n == NG + 4:
        if LATE: wo_fill(S_WOB, 0, 2*SLOT, 'woB')
        flag_store('oa', f's{sK1}', f's_waitcnt vmcnt({vmn("oa")})', xcc=True)
        VMQ.append('fl')
        if WS_ != 1 and not LATE: w_reads()
    if WS_ != 1 and LATE and n == NG + 5: w_reads()
    if LATE and n == NG + 5 and WS_ != 1: wo_fill(S_WOB, 1, 3*SLOT, 'woB')
    if WS_ == 1 and n == NG + 5: waits.append('woA')
    if n == NG + 5 + LATE:
        E(f's_cmp_lg_u32 s{sW}, 0', 's_cbranch_scc1 L_skip_oa')
        poll_check('oa', vPa2, ['0'], [vFl], None, xcc=True)
        E(f'v_or_b32 v{vFl}, s{sXcc}, v{vNon}', f'v_cmp_ne_u32 vcc, v{vFl}, v{vFl+2}', 's_nop 1', 's_cmp_eq_u64 vcc, 0', f's_cselect_b32 s{sT0}, {opt("fast", 1)}, 0',
          f'v_mov_b32 v{vFl}, s{sT0}')
        lab('L_skip_oa')
        if not LATE: wo_fill(S_WOB, 0, 2*SLOT, 'woB'); wo_fill(S_WOB, 1, 3*SLOT, 'woB')
        if WS_ == 1: wo_fill(S_WOB, 1, 3*SLOT, 'woB'); w_reads()
    if n == NG + 6 + LATE:
        E(f's_cmp_lg_u32 s{sW}, 0', 's_cbranch_scc1 L_skip_same', f'v_mov_b32 v{vFl+1}, {R+16384}', f'ds_write_b32 v{vFl+1}, v{vFl}')
        lab('L_skip_same')
        o_loads('oal')
    if n == 13 and opt('pad', 0):
        E('s_mov_b64 exec, 0', 's_branch L_pad0')
        lab(f'L_pad{PADS[0]}')
        e('s_mov_b64 exec, -1')
    if n == 15 and AE:
        E('s_waitcnt vmcnt(8)', f's_setprio {XM}')
        oa_mfma(0)
        e(f's_setprio {XV}')
    if n % 2 == 1 and k + 1 <= 7: waits.append(f'KV{k+1}')
    if n == 15: waits.append('woB')
    if waits: e(f's_waitcnt vmcnt({min(vmn(t) for t in waits)}) lgkmcnt(0)')
    else: e('s_waitcnt lgkmcnt(0)')
    if n == 3:
        E(f's_cmp_lg_u32 s{sW}, 0', 's_cbranch_scc1 L_nochk_kv2')
        poll_check('kv2', vPa, SH4, RG4, len(VMQ) - NP3)
    if n < 9: stamp(n + 1, 'j0')
    if n >= 8: stamp(n - 7, 'j1')
    if n in (DN, DN+1): stamp(4 + 4*(n-DN), 'd')
    e('s_barrier')
assert NBAR[0] == NBAR_Y, (NBAR[0], NBAR_Y)
E('s_setprio 0', f's_mov_b32 s{sSpin}, 0', f's_mov_b32 s{sC}, 0')
stamp(9, 'i1')
e('s_waitcnt vmcnt(0)')
stamp(5, 'tail')
if not AE: oa_mfma(0)
oa_mfma(1, 10)
E('s_nop 9', 's_branch L_tail_wr')

cm('---- fallback (Y waves): true max, K/V from global ----')
lab('L_fallback')
E(f's_cmp_eq_u32 s{sFB}, 0', 's_cbranch_scc1 L_fb_go', f's_cmp_eq_u32 s{sT1}, 1', 's_branch L_att_ok')
lab('L_fb_go')
E(f's_mov_b32 s{sFB}, 1', f'v_mov_b32 v{vT0}, 0xff800000', f'v_mov_b32 v{vT2}, 0xff800000', f's_mov_b32 s{sT2}, 0')
lab('L_fb_max')
E(f'buffer_load_dwordx4 {vr(aK,4)}, v{vL16}, {sr(S_WS,4)}, s{sT2} offen sc1', 's_waitcnt vmcnt(0)',
  f'v_mfma_f32_32x32x16_bf16 {vr(aSa,16)}, {vr(aK,4)}, {vr(vQa,4)}, 0', f'v_mfma_f32_32x32x16_bf16 {vr(aSb,16)}, {vr(aK,4)}, {vr(vQb,4)}, 0', 's_nop 15')
for k in range(0, 16, 2): e(f'v_max3_f32 v{vT0}, v{vT0}, v{aSa+k}, v{aSa+k+1}')
for k in range(0, 16, 2): e(f'v_max3_f32 v{vT2}, v{vT2}, v{aSb+k}, v{aSb+k+1}')
E(f's_add_u32 s{sT2}, s{sT2}, 2048', f's_cmp_lt_u32 s{sT2}, {64*2048}', 's_cbranch_scc1 L_fb_max',
  f'v_mov_b32 v{vT1}, v{vT0}', f'v_mov_b32 v{vT3}, v{vT2}', 's_nop 1',
  f'v_permlane32_swap_b32 v{vT0}, v{vT1}', f'v_permlane32_swap_b32 v{vT2}, v{vT3}', f'v_max_f32 v{vT0}, v{vT0}, v{vT1}', f'v_max_f32 v{vT2}, v{vT2}, v{vT3}')
for i in range(16): e(f'v_sub_f32 v{aCa+i}, 0, v{vT0}')
for i in range(16): e(f'v_sub_f32 v{aCb+i}, 0, v{vT2}')
for i in range(32): e(f'v_mov_b32 v{aOa+i}, 0')
E(f'v_lshlrev_b32 v{vT2}, 4, v{vI}', f'v_lshl_add_u32 v{vT2}, v{vH}, 8, v{vT2}', f's_mov_b32 s{sT2}, 0')
lab('L_fb_pv')
E(f'buffer_load_dwordx4 {vr(aK,4)}, v{vL16}, {sr(S_WS,4)}, s{sT2} offen sc1', f's_mov_b64 exec, {sr(sVM,2)}',
  f'buffer_load_dwordx4 {vr(aV,4)}, v{vT2}, {sr(S_WS,4)}, s{sT2} offen offset:1024 sc1',
  f'buffer_load_dwordx4 {vr(aV+4,4)}, v{vT2}, {sr(S_WS,4)}, s{sT2} offen offset:1536 sc1', 's_mov_b64 exec, -1', 's_waitcnt vmcnt(0)',
  f'v_mfma_f32_32x32x16_bf16 {vr(aSa,16)}, {vr(aK,4)}, {vr(vQa,4)}, {vr(aCa,16)}',
  f'v_mfma_f32_32x32x16_bf16 {vr(aSb,16)}, {vr(aK,4)}, {vr(vQb,4)}, {vr(aCb,16)}', 's_nop 15')
for i in range(32): e(f'v_exp_f32 v{aSa+i}, v{aSa+i}')
E('s_nop 1',
  f'v_smfmac_f32_32x32x32_bf16 {vr(aOa,16)}, {vr(aV,4)}, {vr(aSa,8)}, v{vIdx}', f'v_smfmac_f32_32x32x32_bf16 {vr(aOa,16)}, {vr(aV+4,4)}, {vr(aSa+8,8)}, v{vIdx}',
  f'v_smfmac_f32_32x32x32_bf16 {vr(aOb,16)}, {vr(aV,4)}, {vr(aSb,8)}, v{vIdx}', f'v_smfmac_f32_32x32x32_bf16 {vr(aOb,16)}, {vr(aV+4,4)}, {vr(aSb+8,8)}, v{vIdx}',
  f's_add_u32 s{sT2}, s{sT2}, 2048', f's_cmp_lt_u32 s{sT2}, {64*2048}', 's_cbranch_scc1 L_fb_pv', 's_nop 15', 's_branch L_att_fin')
for g, so in enumerate((sOoff, sT1, sT2, sT3)):
    lab(f'L_tr{g}')
    E(f's_sub_u32 s{sSpin}, s{sSpin}, 1', f's_cbranch_scc1 L_tk{g}')
    for j in range(4):
        o = f' offset:{j*1024}' if j else ''
        e(f'buffer_load_dwordx4 {vr(oOf+16*g+4*j,4)}, v{vL16}, {sr(S_WS,4)}, s{so} offen{o} sc1')
    E('s_waitcnt vmcnt(0)', f's_branch L_tg{g}')
lab('L_st_slow')
E(f'buffer_store_dwordx4 {vr(16,4)}, v{vL16}, {sr(S_WS,4)}, s{sOslot} offen sc1',
  f'buffer_store_dwordx4 {vr(28,4)}, v{vL16}, {sr(S_WS,4)}, s{sOslot} offen offset:1024 sc1', 's_branch L_st_j')
lab('L_code_end')

HDR = open(f'cdna_kernels/{NAME}.s.ref').read().split('\n')
hdr = []
for line in HDR:
    if line.startswith('; @launch'): break
    hdr.append(line)
txt = '\n'.join(hdr) + '\n; @launch grid=(256,1,1) block=(512,1,1) lds=163840\n'
txt += f'''.amdgcn_target "amdgcn-amd-amdhsa--gfx950"
.text
.globl {NAME}_kernel
.p2align 8
.type {NAME}_kernel,@function
'''
txt += '\n'.join(L) + '\n'
txt += f'''.section .rodata,"a"
.p2align 6
.amdhsa_kernel {NAME}_kernel
  .amdhsa_next_free_vgpr {NVGPR}
  .amdhsa_next_free_sgpr 102
  .amdhsa_accum_offset {NVGPR}
  .amdhsa_group_segment_fixed_size 0
  .amdhsa_kernarg_size 88
  .amdhsa_user_sgpr_count 2
  .amdhsa_user_sgpr_kernarg_segment_ptr 1
  .amdhsa_system_sgpr_workgroup_id_x 1
.end_amdhsa_kernel
'''
open(OUT, 'w').write(txt)
print('wrote', OUT, len(L), 'lines; barriers', NBAR_Y)
```

```python
import sys, struct

NAME = 'concat_heads__sliding_local_dilated__grouped_kv_mqa__prompt'
STAMPS = '--stamps' in sys.argv
STMODE = ([a[5:] for a in sys.argv if a.startswith('--st=')] + ['all'])[0]
XP = [a[4:] for a in sys.argv if a.startswith('--x=')]
args = [a for a in sys.argv[1:] if not a.startswith('--')]
OUT = args[0] if args else f'cdna_kernels/{NAME}.s'
def opt(name, default):
    for a in XP:
        if a.startswith(name): return type(default)(a[len(name):])
    return default

L = []
VMQ = []
NBAR = [0]
CAP = [None]
def e(s, tag=None):
    if CAP[0] is not None:
        CAP[0].append((s, tag)); return
    if tag is not None: VMQ.append(tag)
    if s == 's_barrier': NBAR[0] += 1
    L.append('    ' + s.strip())
    if PADON[0]:
        PADCNT[0] += 4 if (s.startswith('s_') and '0x' not in s) else 8
        if PADCNT[0] >= PADON[0] and not s.startswith('v_cmp') and 'abs' not in s:
            PADCNT[0] = 0; pad()
PADS = [0]
PADON = [False]
PADCNT = [0]
def lab(s): L.append(s + ':')
def pad():
    i = PADS[0]; PADS[0] += 1
    L.append(f'L_pad{i}:'); L.append(f'    s_cbranch_execz L_pad{i+1}')
def cm(s): L.append('    ; ' + s)
def vr(i, n): return f'v[{i}:{i+n-1}]'
def sr(i, n): return f's[{i}:{i+n-1}]'
def f32(x): return '0x%08x' % struct.unpack('<I', struct.pack('<f', x))[0]
def vmn(tag):
    idx = max(i for i, t in enumerate(VMQ) if t == tag)
    n = len(VMQ) - 1 - idx
    assert n <= 63
    return n
def E(*lines):
    for s in lines: e(s)

SLOT = 32768
R = 131072
HALO = 3 * SLOT
ONES = 3 * SLOT
SC = 2 * SLOT
WS_FHX = 0x60000
WS_HX = 0x600000
WS_FKV = 0x40000
WS_FOA = 0x48000
WS_FD = 0x44000
WS_OA = 0x100000
WS_OB = 0x300000
WS_STAMP = 0x500000
WS_SIZE = 0x800000
CSCALE = 0.25 * 1.4426950408889634
MOFF = float(opt('moff', 100))
VSC = 2.0 ** 40
ONEB = 0x53805380
SPIN = 200000
NT = '' if 'nont' in XP else ' nt'
WNT = ' nt' if 'wnt' in XP else ''

S_XA, S_WQKV, S_WOA, S_XB, S_WQ, S_WKV, S_WOB, S_OUT, S_WS = 8, 12, 16, 20, 24, 28, 32, 36, 40
S_DBG = 44
S_WV = 46
sP = 46
sW = 48
sRB, sHG = 49, 50
sT0, sT1, sT2, sT3 = 51, 52, 53, 54
sC = 55
sStepA, sStepB = 56, 57
sXo, sWo = 58, 59
sKVo = 60
sW4k, sW8k, sW2k = 61, 62, 63
sVM = 64
sOoff, sOutOff, sWoff, sSpin = 66, 67, 68, 69
sOslot, sOslot2 = 70, 71
sFB, sHG128, sCS, sQ = 72, 73, 74, 75
sRot, sK1 = 4, 5
sF0, sF1, sF2 = 3, 6, 7
sST = 76
sNon = 100
sStepH = 31
sXcc = 30

vL16, vW, vWA, vXA = 1, 2, 3, 4
vN, vH, vI = 5, 6, 7
vT0, vT1, vT2, vT3 = 8, 9, 10, 11
vP0, vP1, vXx, vG = 12, 13, 14, 15
vQacc = 16
vFr = 96
(vB0, vB1, vBW, vWl, vIdx, vPa, vQx, vW2, vTw0, vTw1, vTp, vTr0, vTo, vPa2, vZero, vOw,
 vF0, vF1, vF2, vF3, vWA2, vXA2) = range(232, 254)
vNon, vFl = 90, 92
NVGPR = 256

def stamp(i, *modes):
    if STAMPS and STMODE in modes: e(f's_memrealtime {sr(sST+2*i,2)}')
def cstamp(i):
    if STAMPS and STMODE != 'xc': e(f's_memtime {sr(sST+2*i,2)}')
def dma(voff, srd_, soff, off=0, fl='', tag='x'):
    o = f' offset:{off}' if off else ''
    e(f'buffer_load_dwordx4 v{voff}, {sr(srd_,4)}, {soff} offen{o}{fl} lds', tag)
def srd(reg, size): E(f's_mov_b32 s{reg+2}, {hex(size)}', f's_mov_b32 s{reg+3}, 0x20000')
def nonce_load(tag=None): e(f'global_load_dwordx2 {vr(vNon,2)}, v{vZero}, {sr(S_DBG,2)} sc1', tag)
def poll_issue(vaddr, soffs, regs, non=True):
    if non: nonce_load()
    for so, r in zip(soffs, regs):
        e(f'buffer_load_dwordx2 {vr(r,2)}, v{vaddr}, {sr(S_WS,4)}, {so} offen sc1')
def poll_check(tag, vaddr, soffs, regs, issued, xcc=False):
    e(f's_mov_b32 s{sSpin}, {SPIN}')
    if issued is not None: E(f's_waitcnt vmcnt({issued})', f's_branch L_chk_{tag}')
    lab(f'L_rep_{tag}')
    poll_issue(vaddr, soffs, regs)
    e('s_waitcnt vmcnt(0)')
    lab(f'L_chk_{tag}')
    e(f'v_cmp_eq_u32 vcc, 0, v{vNon}')
    if xcc: E(f'v_mov_b32 v{vFl+2}, v{vFl}', f'v_and_b32 v{vFl}, 0xffffffe1, v{vFl}')
    for r in regs:
        E(f'v_cmp_ne_u64 {sr(sP,2)}, {vr(vNon,2)}, {vr(r,2)}', 's_nop 1', f's_or_b64 vcc, vcc, {sr(sP,2)}')
    E(f's_cbranch_scc0 L_nochk_{tag}', f's_sub_u32 s{sSpin}, s{sSpin}, 1', f's_cbranch_scc0 L_rep_{tag}')
    lab(f'L_nochk_{tag}')
def flag_store(tag, soff, first_wait='s_waitcnt vmcnt(0)', xcc=False, soff2=None):
    e(f's_mov_b32 s{sSpin}, {SPIN}')
    e(first_wait)
    lab(f'L_fw_{tag}')
    E(f'v_cmp_eq_u32 vcc, 0, v{vNon}', f's_cbranch_vccz L_fs_{tag}')
    nonce_load()
    E('s_waitcnt vmcnt(0)', f's_sub_u32 s{sSpin}, s{sSpin}, 1', f's_cbranch_scc0 L_fw_{tag}')
    lab(f'L_fs_{tag}')
    if xcc: e(f'v_or_b32 v{vNon}, s{sXcc}, v{vNon}')
    E('s_mov_b64 exec, 1', f'buffer_store_dwordx2 {vr(vNon,2)}, v{vZero}, {sr(S_WS,4)}, {soff} offen sc1')
    if soff2: e(f'buffer_store_dwordx2 {vr(vNon,2)}, v{vZero}, {sr(S_WS,4)}, {soff2} offen sc1')
    e('s_mov_b64 exec, -1')
def maxtree(rs, t0, t1):
    e(f'v_max3_f32 v{t0}, v{rs[0]}, v{rs[1]}, v{rs[2]}')
    e(f'v_max3_f32 v{t1}, v{rs[3]}, v{rs[4]}, v{rs[5]}')
    for k in range(6, len(rs), 4):
        e(f'v_max3_f32 v{t0}, v{t0}, v{rs[k]}, v{rs[k+1]}')
        if k + 3 < len(rs): e(f'v_max3_f32 v{t1}, v{t1}, v{rs[k+2]}, v{rs[k+3]}')
    e(f'v_max_f32 v{t0}, v{t0}, v{t1}')
    e(f'v_mov_b32 v{t1}, v{t0}')
def lane_setup():
    E(f'v_and_b32 v{vN}, 31, v0', f'v_lshrrev_b32 v{vH}, 5, v0', f'v_and_b32 v{vI}, 15, v0',
      f'v_lshrrev_b32 v{vWl}, 2, v{vI}', f'v_lshl_add_u32 v{vWl}, v{vH}, 3, v{vWl}', f'v_lshlrev_b32 v{vWl}, 7, v{vWl}',
      f'v_and_b32 v{vF0}, 8, v{vI}', f'v_lshl_add_u32 v{vWl}, v{vF0}, 3, v{vWl}', f'v_and_b32 v{vF0}, 16, v0',
      f'v_lshl_add_u32 v{vWl}, v{vF0}, 1, v{vWl}', f'v_and_b32 v{vF0}, 3, v0', f'v_lshl_add_u32 v{vWl}, v{vF0}, 3, v{vWl}',
      f's_lshl_b32 s{sW4k}, s{sQ}, 12', f's_add_u32 s{sF0}, s{sW4k}, {R}', f'v_add_u32 v{vQx}, s{sF0}, v{vL16}',
      f'v_mov_b32 v{vIdx}, 0xdddddddd', f's_mov_b32 s{sFB}, 0')
oOf, oW, oAcc = 16, 96, 160
def tail_setup():
    E(f's_mov_b32 s{S_OUT+2}, 0x400000', f's_mov_b32 s{S_OUT+3}, 0x20000',
      f's_lshr_b32 s{sF2}, s{sW}, 2', f's_lshl_b32 s{sF1}, s{sW}, 14',
      f'v_lshlrev_b32 v{vT0}, 9, v{vH}', f'v_sub_u32 v{vTw0}, v{vWl}, v{vT0}', f'v_add_u32 v{vTw0}, s{sF1}, v{vTw0}', f'v_xor_b32 v{vTw1}, 64, v{vTw0}',
      f'v_xor_b32 v{vT0}, v{vH}, v{vI}', f'v_lshlrev_b32 v{vT0}, 4, v{vT0}', f'v_lshl_add_u32 v{vT0}, v{vN}, 8, v{vT0}', f'v_add_u32 v{vTp}, s{sF1}, v{vT0}',
      f'v_lshrrev_b32 v{vT0}, 3, v0', f's_lshl_b32 s{sF1}, s{sQ}, 3', f'v_add_u32 v{vT0}, s{sF1}, v{vT0}', f'v_and_b32 v{vT1}, 7, v0', f'v_lshlrev_b32 v{vT2}, 1, v{vT1}',
      f'v_and_b32 v{vT3}, 15, v{vT0}', f'v_xor_b32 v{vT2}, v{vT2}, v{vT3}', f'v_lshlrev_b32 v{vT2}, 4, v{vT2}', f'v_lshl_add_u32 v{vT2}, v{vT0}, 8, v{vT2}',
      f's_lshl_b32 s{sF1}, s{sF2}, 16', f'v_add_u32 v{vTr0}, s{sF1}, v{vT2}',
      f'v_lshlrev_b32 v{vT1}, 4, v{vT1}', f'v_lshl_add_u32 v{vTo}, v{vT0}, 11, v{vT1}',
      f's_lshl_b32 s{sOutOff}, s{sRB}, 17', f's_lshl_b32 s{sF1}, s{sF2}, 10', f's_add_u32 s{sOutOff}, s{sOutOff}, s{sF1}', f's_add_u32 s{sOutOff}, s{sOutOff}, s{sHG128}',
      f's_lshl_b32 s{sOoff}, s{sRB}, 16', f's_add_u32 s{sF1}, s{sQ}, s{sRB}' if opt('worot', 1) else f's_mov_b32 s{sF1}, s{sQ}', f's_and_b32 s{sF1}, s{sF1}, 3', f's_lshl_b32 s{sF1}, s{sF1}, 13', f's_add_u32 s{sOoff}, s{sOoff}, s{sF1}',
      f's_lshl_b32 s{sF1}, s{sF2}, 21', f's_add_u32 s{sOoff}, s{sOoff}, s{sF1}', f's_add_u32 s{sOoff}, s{sOoff}, {hex(WS_OA)}')
assert WS_OB - WS_OA == 1 << 21
def w_reads():
    for s in range(8):
        x = oW + 8 * s
        E(f'ds_read_b64_tr_b16 {vr(x,2)}, v{vTw0} offset:{s*2048}', f'ds_read_b64_tr_b16 {vr(x+2,2)}, v{vTw0} offset:{s*2048+1024}',
          f'ds_read_b64_tr_b16 {vr(x+4,2)}, v{vTw1} offset:{s*2048}', f'ds_read_b64_tr_b16 {vr(x+6,2)}, v{vTw1} offset:{s*2048+1024}')
    for q in range(1, 8): e(f'v_xor_b32 v{80+q}, {(2*q)<<4}, v{vTp}')
    e(f'v_xor_b32 v88, 16, v{vTr0}')
def o_loads(tag=None, gs=(0, 1, 2, 3)):
    if 0 in gs: E(f's_add_u32 s{sT1}, s{sOoff}, 4096', f's_add_u32 s{sT2}, s{sOoff}, 32768', f's_add_u32 s{sT3}, s{sOoff}, {32768+4096}')
    for g, so in enumerate((sOoff, sT1, sT2, sT3)):
        if g not in gs: continue
        for j in range(4):
            o = f' offset:{j*1024}' if j else ''
            e(f'buffer_load_dwordx4 {vr(oOf+16*g+4*j,4)}, v{vL16}, {sr(S_WS,4)}, s{so} offen{o} sc1', tag)

lab(f'{NAME}_kernel')
if STAMPS:
    for i in range(12): e(f's_mov_b32 s{sST+2*i}, 0')
stamp(0, 'all', 'head', 'tail', 'x', 'i0', 'i1', 'j0', 'j1', 'd')
for reg, off in ((S_XB,24),(S_WKV,40),(S_WV,48),(S_WQ,32),(S_DBG,72),(S_WS,80),(S_XA,0),(S_WQKV,8),(S_WOA,16),(S_WOB,56),(S_OUT,64)):
    e(f's_load_dwordx2 {sr(reg,2)}, s[0:1], {off}')
e(f's_memrealtime {sr(sNon,2)}')
E('s_cmp_ge_u32 s2, 256', 's_cbranch_scc1 L_end',
  f'v_lshrrev_b32 v{vT0}, 6, v0', 'v_and_b32 v0, 63, v0', f'v_readfirstlane_b32 s{sW}, v{vT0}',
  f's_and_b32 s{sT0}, s2, 7', f's_bfe_u32 s{sRot}, s2, 0x20003', f's_lshl_b32 s{sRB}, s{sT0}, 2',
  f's_add_u32 s{sRB}, s{sRB}, s{sRot}', f's_lshr_b32 s{sHG}, s2, 5',
  f'v_lshlrev_b32 v{vL16}, 4, v0', f'v_lshrrev_b32 v{vG}, 4, v0', f'v_lshrrev_b32 v{vT1}, 3, v0', f'v_and_b32 v{vT2}, 7, v0',
  f'v_xor_b32 v{vT3}, v{vT2}, v{vG}', f'v_lshlrev_b32 v{vT3}, 4, v{vT3}', f'v_lshl_add_u32 v{vP0}, v{vT1}, 10, v{vT3}',
  f'v_xor_b32 v{vP1}, 64, v{vP0}', f'v_add_u32 v{vP1}, {8192-1024}, v{vP1}', f'v_mov_b32 v{vZero}, 0',
  f's_xor_b32 s{sW}, s{sW}, 7', f's_lshl_b32 s{sRot}, s{sRot}, 1', f's_lshl_b32 s{sHG128}, s{sHG}, 7', f's_and_b32 s{sQ}, s{sW}, 3')
if opt('brx', 0): E(f's_lshr_b32 s{sT0}, s{sRB}, 2', f's_add_u32 s{sRot}, s{sRot}, s{sT0}', f's_and_b32 s{sRot}, s{sRot}, 7')
if opt('hgx', 0): E(f's_xor_b32 s{sHG}, s{sHG}, {opt("hgx", 0)}', f's_lshl_b32 s{sHG128}, s{sHG}, 7')
srd(S_WS, WS_SIZE)
E(f's_cmp_lt_u32 s{sW}, 4', 's_cbranch_scc1 L_X')

cm('================ Y program (waves 4-7) ================')
aSa, aSb, aCa, aCb, aOa, aOb = 96, 112, 128, 144, 160, 176
aK, aV = 192, 56
vQa, vQb = 208, 212
vKa, vVa = 216, 217
srd(S_XB, 0x200000); srd(S_WKV, 0x4000)
vD0, vD1 = 218, 219
E(f's_lshr_b32 s{sT1}, s{sHG}, 1', f's_add_u32 s{sT1}, s{sT1}, s{sW}', f's_add_u32 s{sT1}, s{sT1}, 1', f's_and_b32 s{sT1}, s{sT1}, 3',
  f's_lshl_b32 s{sT2}, s{sT1}, 11',
  f's_lshl_b32 s{sT3}, s{sRB}, 2', f's_add_u32 s{sT3}, s{sT3}, s{sT1}', f's_lshl_b32 s{sT3}, s{sT3}, 14',
  f'v_add_u32 v{vD0}, s{sT3}, v{vP0}', f'v_add_u32 v{vD1}, s{sT3}, v{vP1}',
  f's_lshl_b32 s{sXo}, s{sRot}, 7',
  f's_cmp_lg_u32 s{sW}, 7', 's_cbranch_scc1 L_Yset')
def x_sub(s, tag):
    E(f's_add_u32 m0, s{sT2}, {s*16384}', f's_and_b32 s{sXo}, s{sXo}, 1023')
    dma(vD0, S_XB, f's{sXo}', 0, NT, tag); dma(vD1, S_XB, f's{sXo}', 1024, NT, tag)
E(f's_bitcmp1_b32 s{sHG}, 0', 's_waitcnt lgkmcnt(0)',
  f's_cselect_b32 s{S_WKV}, s{S_WV}, s{S_WKV}', f's_cselect_b32 s{S_WKV+1}, s{S_WV+1}, s{S_WKV+1}')
for s_ in range(8):
    x_sub(s_, None)
    E(f's_mov_b32 m0, {R+s_*2048}', f's_lshl_b32 s{sWo}, s{sXo}, 4')
    dma(vL16, S_WKV, f's{sWo}', 0, '', None); dma(vL16, S_WKV, f's{sWo}', 1024, '', None)
    if s_ < 7: e(f's_add_u32 s{sXo}, s{sXo}, 128')
e('s_barrier'); NBAR[0] -= 1
stamp(1, 'head')
lab('L_Yset')
lane_setup()
tail_setup()
E(f's_mov_b32 s{sVM}, 0xffff', f's_mov_b32 s{sVM+1}, 0xffff',
  f's_and_b32 s{sT0}, s{sRB}, 28', f's_add_u32 s{sT0}, s{sT0}, s{sQ}', f's_lshl_b32 s{sKVo}, s{sT0}, 12',
  f's_lshl_b32 s{sT0}, s{sT0}, 9', f's_add_u32 s{sT0}, s{sT0}, {hex(WS_FKV)}',
  f'v_and_b32 v{vPa}, 7, v0', f'v_lshlrev_b32 v{vPa}, 6, v{vPa}', f'v_add_u32 v{vPa}, s{sT0}, v{vPa}',
  f's_and_b32 s{sT0}, s{sW}, 1', f's_lshl_b32 s{sT1}, s{sRB}, 1', f's_add_u32 s{sT0}, s{sT0}, s{sT1}', f's_lshl_b32 s{sT0}, s{sT0}, 5',
  f's_lshl_b32 s{sT1}, s{sHG}, 2', f's_add_u32 s{sT0}, s{sT0}, s{sT1}', f's_and_b32 s{sT1}, s{sW}, 2', f's_add_u32 s{sT0}, s{sT0}, s{sT1}',
  f's_lshl_b32 s{sT0}, s{sT0}, 10', f's_add_u32 s{sOslot}, s{sT0}, {hex(WS_OB)}',
  f'v_add_u32 v{vKa}, {R+16384}, v{vL16}', f'v_lshlrev_b32 v{vVa}, 4, v{vI}', f'v_lshl_add_u32 v{vVa}, v{vH}, 8, v{vVa}', f'v_add_u32 v{vVa}, {R+16384}, v{vVa}',
  f'v_and_b32 v{vT1}, 27, v0', f'v_cmp_eq_u32 vcc, 16, v{vT1}', f'v_mov_b32 v{vT1}, {hex(ONEB)}', f's_cmp_eq_u32 s{sW}, 7', f'v_cndmask_b32 v{aV}, 0, v{vT1}, vcc',
  's_cbranch_scc1 L_Y7', 's_waitcnt lgkmcnt(0)')
if opt('cpf', 1):
    e('s_getpc_b64 s[0:1]')
    lab('L_pc')
    E(f's_sub_u32 s0, s0, L_pc-{NAME}_kernel', 's_subb_u32 s1, s1, 0',
      f's_lshr_b32 s{sT0}, s2, 3', f's_mul_i32 s{sT0}, s{sT0}, 3', f's_add_u32 s{sT0}, s{sT0}, s{sQ}', f's_lshl_b32 s{sT0}, s{sT0}, 8',
      f'v_lshlrev_b32 v{vF0}, 7, v0', f'v_add_u32 v{vF0}, s{sT0}, v{vF0}', f'v_min_u32 v{vF0}, L_code_end-{NAME}_kernel-4, v{vF0}', 's_mov_b64 exec, 3',
      f'global_load_dword v{vF1}, v{vF0}, s[0:1]', 's_mov_b64 exec, -1')
e('s_barrier')
for s_ in range(8):
    x_sub(s_, 'xb')
    if s_ < 7: e(f's_add_u32 s{sXo}, s{sXo}, 128')
stamp(1, 'head')
e('s_branch L_Yj')
lab('L_Y7')
E(f'v_lshrrev_b32 v{vT1}, 1, v{vI}', f'v_xor_b32 v{vT1}, v{vT1}, v{vG}', f'v_lshlrev_b32 v{vT1}, 4, v{vT1}', f'v_lshl_add_u32 v{vT1}, v{vI}, 7, v{vT1}',
  f'v_add_u32 v{vT0}, s{sT2}, v{vT1}', f'v_xor_b32 v{vT1}, 64, v{vT0}', f'v_add_u32 v{vT2}, 65536, v{vT0}', f'v_add_u32 v{vT3}, 65536, v{vT1}',
  f'v_lshlrev_b32 v{vF0}, 8, v{vG}', f'v_lshl_add_u32 v{vF0}, v{vI}, 3, v{vF0}', f'v_add_u32 v{vF0}, {R}, v{vF0}',
  f'v_and_b32 v{vF1}, 1, v{vG}', f'v_lshrrev_b32 v{vF2}, 1, v{vG}',
  f's_lshr_b32 s{sT0}, s{sHG}, 2', f's_lshl_b32 s{sC}, s{sRB}, 1', f's_add_u32 s{sT0}, s{sT0}, s{sC}', f's_lshl_b32 s{sT0}, s{sT0}, 11',
  f's_bfe_u32 s{sC}, s{sHG}, 0x10001',
  f's_lshl_b32 s{sT1}, s{sRB}, 3', f's_add_u32 s{sT1}, s{sT1}, s{sHG}', f's_lshl_b32 s{sOslot2}, s{sT1}, 3', f's_add_u32 s{sOslot2}, s{sOslot2}, {hex(WS_FD)}', f's_lshl_b32 s{sT1}, s{sT1}, 6', f's_add_u32 s{sK1}, s{sT1}, {hex(WS_FKV)}')
kd = 16
KF = 88
KF = 96 - 8
def kfr(u): return (96 + 8 * u) if u < 15 else 24
def kv_reads(s):
    a0, a1 = (vT0, vT1) if s < 4 else (vT2, vT3)
    o = (s & 3) * 16384
    x, y = kfr(2*s), kfr(2*s+1)
    E(f's_waitcnt vmcnt({28-4*s})',
      f'ds_read_b128 {vr(x,4)}, v{a0} offset:{o}', f'ds_read_b64_tr_b16 {vr(x+4,2)}, v{vF0} offset:{s*2048}', f'ds_read_b64_tr_b16 {vr(x+6,2)}, v{vF0} offset:{s*2048+128}',
      f'ds_read_b128 {vr(y,4)}, v{a1} offset:{o}', f'ds_read_b64_tr_b16 {vr(y+4,2)}, v{vF0} offset:{s*2048+1024}', f'ds_read_b64_tr_b16 {vr(y+6,2)}, v{vF0} offset:{s*2048+1152}')
for s_ in range(8): kv_reads(s_)
nonce_load()
stamp(2, 'head')
E(f's_bitcmp1_b32 s{sHG}, 0', f's_cselect_b32 s{sWo}, {f32(VSC) if "zv" not in XP else 0}, {"1.0" if "zk" not in XP else 0}', 's_cbranch_scc1 L_kv_v',
  f'v_lshlrev_b32 v{vF1}, 9, v{vF1}', f'v_lshl_add_u32 v{vF1}, v{vF2}, 3, v{vF1}', f's_lshl_b32 s{sC}, s{sC}, 8')
def kv_chain(swap):
    for u in range(16):
        x = kfr(u)
        if u == 0: e('s_waitcnt lgkmcnt(12)')
        if u == 12: e('s_waitcnt lgkmcnt(0)')
        a, b = (vr(x+4,4), vr(x,4))
        if swap: a, b = b, a
        d = kd + 4 * (u & 1)
        e(f'v_mfma_f32_16x16x32_bf16 {vr(d,4)}, {a}, {b}, {"0" if u < 2 else vr(d,4)}')
kv_chain(False)
e('s_branch L_kv_j')
lab('L_kv_v')
E(f'v_lshlrev_b32 v{vF1}, 3, v{vF1}', f'v_lshl_add_u32 v{vF1}, v{vF2}, 8, v{vF1}', f's_lshl_b32 s{sC}, s{sC}, 9', f's_add_u32 s{sC}, s{sC}, 1024')
kv_chain(True)
lab('L_kv_j')
E(f'v_lshl_add_u32 v{vF1}, v{vI}, 4, v{vF1}', f's_add_u32 s{sT0}, s{sT0}, s{sC}', 's_nop 5',
  f'v_pk_add_f32 {vr(kd,2)}, {vr(kd,2)}, {vr(kd+4,2)}', f'v_pk_add_f32 {vr(kd+2,2)}, {vr(kd+2,2)}, {vr(kd+6,2)}',
  f'v_mul_f32 v{kd}, s{sWo}, v{kd}', f'v_mul_f32 v{kd+1}, s{sWo}, v{kd+1}', f'v_mul_f32 v{kd+2}, s{sWo}, v{kd+2}', f'v_mul_f32 v{kd+3}, s{sWo}, v{kd+3}',
  f'v_cvt_pk_bf16_f32 v{vF2}, v{kd}, v{kd+1}', f'v_cvt_pk_bf16_f32 v{vF3}, v{kd+2}, v{kd+3}',
  f'buffer_store_dwordx2 {vr(vF2,2)}, v{vF1}, {sr(S_WS,4)}, s{sT0} offen sc1')
stamp(3, 'head')
lab('L_Yj')
if opt('ytc', 0):
    E(f's_bitcmp1_b32 s{sW}, 1', f's_cselect_b32 s{S_WOA}, s{S_WOB}, s{S_WOA}', f's_cselect_b32 s{S_WOA+1}, s{S_WOB+1}, s{S_WOA+1}',
      f's_mov_b32 s{S_WOA+2}, 0x80000', f's_mov_b32 s{S_WOA+3}, 0x20000',
      f's_lshr_b32 s{sT0}, s2, 3', f's_lshl_b32 s{sT0}, s{sT0}, 1', f's_and_b32 s{sT1}, s{sW}, 1', f's_add_u32 s{sT0}, s{sT0}, s{sT1}', f's_lshl_b32 s{sWoff}, s{sT0}, 13',
      f'v_lshlrev_b32 v{vD0}, 7, v0')
for i in range(1, 32): e(f'v_mov_b32 v{aV+i}, v{aV}')
for j in range(32): e(f'v_mov_b32 v{aOa+j}, 0')
E('s_waitcnt vmcnt(0)', f's_cmp_lg_u32 s{sW}, 7', 's_cbranch_scc1 L_flag_done')
flag_store('kv', f's{sK1}')
stamp(4, 'head')
lab('L_flag_done')
e('s_barrier')
stamp(5, 'head'); stamp(1, 'all', 'x')
EA = opt('ea', 20)
if EA: e('s_barrier')
if opt('psl', 0): e(f's_sleep {opt("psl", 0)}')
poll_check('kv', vPa, ['0'], [vFl], None)
stamp(6, 'head')
E(f's_add_u32 m0, s{sW4k}, {R+16384}', f's_mov_b32 s{sC}, 0')
for j in range(4): dma(vL16, S_WS, f's{sKVo}', 1024*j, ' sc1', None)
E(f's_setprio {opt("yp", 1)}', f's_cmp_lg_u32 s{sW}, 7', 's_waitcnt vmcnt(0)', 's_cbranch_scc1 L_nodense', 's_mov_b64 exec, 1',
  f'buffer_store_dwordx2 {vr(vNon,2)}, v{vZero}, {sr(S_WS,4)}, s{sOslot2} offen sc1', 's_mov_b64 exec, -1')
lab('L_nodense')
stamp(7, 'head'); stamp(2, 'all', 'x')
e('s_barrier')
stamp(8, 'head'); stamp(3, 'all', 'x'); stamp(1, 'tail')
cstamp(10)
E(f'ds_read_b128 {vr(vQa,4)}, v{vQx}', f'ds_read_b128 {vr(vQb,4)}, v{vQx} offset:1024',
  f'ds_read_b128 {vr(aK,4)}, v{vKa}', f'ds_read_b128 {vr(aK+4,4)}, v{vKa} offset:2048', f's_mov_b64 exec, {sr(sVM,2)}')
for j in range(4): e(f'ds_read_b128 {vr(aV+4*j,4)}, v{vVa} offset:{(j>>1)*2048+1024+(j&1)*512}')
E('s_mov_b64 exec, -1', 's_waitcnt lgkmcnt(5)',
  f'v_mfma_f32_32x32x16_bf16 {vr(aSa,16)}, {vr(aK,4)}, {vr(vQa,4)}, 0',
  f'v_mfma_f32_32x32x16_bf16 {vr(aSb,16)}, {vr(aK,4)}, {vr(vQb,4)}, 0', 's_nop 10')
maxtree([aSa+i for i in range(16)], vT0, vT1)
maxtree([aSb+i for i in range(16)], vT2, vT3)
E(f'v_permlane32_swap_b32 v{vT0}, v{vT1}', f'v_max_f32 v{vT0}, v{vT0}, v{vT1}', f'v_permlane32_swap_b32 v{vT2}, v{vT3}',
  f'v_sub_f32 v{aCa}, {f32(-MOFF)}, v{vT0}', f'v_max_f32 v{vT2}, v{vT2}, v{vT3}')
for i in range(1, 16): e(f'v_mov_b32 v{aCa+i}, v{aCa}')
E(f'v_sub_f32 v{aCb}, {f32(-MOFF)}, v{vT2}', f'v_mov_b32 v{aCb+1}, v{aCb}',
  f'v_mfma_f32_32x32x16_bf16 {vr(aSa,16)}, {vr(aK,4)}, {vr(vQa,4)}, {vr(aCa,16)}')
for i in range(2, 16): e(f'v_mov_b32 v{aCb+i}, v{aCb}')
if opt('ytc', 0): e(f'buffer_load_dword v{vD1}, v{vD0}, {sr(S_WOA,4)}, s{sWoff} offen')
E('s_waitcnt lgkmcnt(0)', f'v_exp_f32 v{aSa}, v{aSa}', f'v_exp_f32 v{aSa+1}, v{aSa+1}', 's_branch L_att_entry')

def dtile(par, ld_off, entry=False):
    K = aK + 8 * par; Kn = aK + 8 * (par ^ 1)
    V = aV + 16 * par; Vn = aV + 16 * (par ^ 1)
    def ex(S, a, b):
        for i in range(a, b): e(f'v_exp_f32 v{S+i}, v{S+i}')
    def pv(O, Vr, P):
        if 'nopv' in XP: return
        if 'pvhalf' in XP and (P in (aSa, aSb)): return
        e(f'v_smfmac_f32_32x32x32_bf16 {vr(O,16)}, {vr(Vr,4)}, {vr(P,8)}, v{vIdx}')
    def qk(S, Kr, Q, C): e(f'v_mfma_f32_32x32x16_bf16 {vr(S,16)}, {vr(Kr,4)}, {vr(Q,4)}, {vr(C,16)}')
    P1, P2, P3 = [int(c, 16) for c in opt('pos', '25a')]
    LDV = opt('ldv', 0)
    ex(aSa, 0, 2)
    if entry and P1 > 2: pass
    pv(aOb, Vn+12, aSb+8)
    if entry: lab('L_att_entry')
    def vld(js):
        e(f's_mov_b64 exec, {sr(sVM,2)}')
        for j in js: e(f'ds_read_b128 {vr(Vn+4*j,4)}, v{vVa} offset:{ld_off+(j>>1)*2048+1024+(j&1)*512}')
        e('s_mov_b64 exec, -1')
    def kld(j): e(f'ds_read_b128 {vr(Kn+4*j,4)}, v{vKa} offset:{ld_off+2048*j}')
    if LDV == 0: vld(range(4))
    ex(aSa, 2, P2); qk(aSb, K, vQb, aCb)
    if LDV == 0: kld(0); kld(1)
    if LDV == 1: kld(0)
    ex(aSa, P2, P3); pv(aOa, V, aSa)
    if LDV == 1: vld(range(4))
    if LDV == 2: vld(range(4)); kld(0); kld(1)
    ex(aSa, P3, 16)
    ex(aSb, 0, P1); pv(aOa, V+4, aSa+8); ex(aSb, P1, P2); qk(aSa, K+4, vQa, aCa); ex(aSb, P2, P3); pv(aOb, V, aSb)
    if LDV == 1: kld(1)
    ex(aSb, P3, 16)
    ex(aSa, 0, P1); pv(aOb, V+4, aSb+8); ex(aSa, P1, P2); qk(aSb, K+4, vQb, aCb); ex(aSa, P2, P3); pv(aOa, V+8, aSa); ex(aSa, P3, 16)
    ex(aSb, 0, P1); pv(aOa, V+12, aSa+8); e('s_waitcnt lgkmcnt(0)'); ex(aSb, P1, P2); qk(aSa, Kn, vQa, aCa); ex(aSb, P2, P3); pv(aOb, V+8, aSb); ex(aSb, P3, 16)

e('.p2align 6')
lab('L_att_top')
E(f'v_xor_b32 v{vKa}, 16384, v{vKa}', f'v_xor_b32 v{vVa}, 16384, v{vVa}', f's_cmp_eq_u32 s{sC}, 8', 's_barrier')
dtile(1, 0)
e('s_cbranch_scc1 L_att_done')
dtile(0, 4096, entry=True)
if opt('nomid', 0): NBAR[0] += 1
else: e('s_barrier')
dtile(1, 8192)
dtile(0, 12288)
E(f's_add_u32 s{sC}, s{sC}, 1', 's_branch L_att_top')
NBAR_Y = NBAR[0] - 2 + 16
lab('L_att_done')
E(f'ds_read_b32 v{vFl}, v{vKa}', f'v_smfmac_f32_32x32x32_bf16 {vr(aOb,16)}, {vr(aV+16+12,4)}, {vr(aSb+8,8)}, v{vIdx}')
stamp(4, 'all'); stamp(2, 'tail')
cstamp(11)
def chk(O, t):
    E(f'v_maximum3_f32 v{t}, abs(v{O}), abs(v{O+1}), abs(v{O+2})', f'v_maximum3_f32 v{t}, v{t}, abs(v{O+3}), abs(v{O+4})',
      f'v_maximum3_f32 v{t}, v{t}, abs(v{O+5}), abs(v{O+6})', f'v_maximum3_f32 v{t}, v{t}, abs(v{O+7}), v{O+8}')
def fin(O, t, d):
    for i in range(0, 8, 2): e(f'v_pk_mul_f32 {vr(d+4+i,2)}, {vr(O+i,2)}, {vr(t,2)} op_sel_hi:[1,0]')
    for i in range(4): e(f'v_cvt_pk_bf16_f32 v{d+i}, v{d+4+2*i}, v{d+4+2*i+1}')
lab('L_att_fin')
PADON[0] = opt('pad', 0); PADCNT[0] = 1000
E(f'v_rcp_f32 v{vT0}, v{aOa+8}', f's_mov_b32 s{sT0}, 0x7e000000')
chk(aOa, vT1)
fin(aOa, vT0, 16)
E(f'v_rcp_f32 v{vT2}, v{aOb+8}', 's_waitcnt lgkmcnt(0)', f'v_readfirstlane_b32 s{sT1}, v{vFl}')
chk(aOb, vT3)
fin(aOb, vT2, 28)
E(f'v_maximum3_f32 v{vT1}, v{vT1}, v{vT3}, v{vT3}', f'v_cmp_nle_f32 vcc, v{vT1}, s{sT0}'.replace('vcc, v', 'vcc, v'), f's_cmp_eq_u32 s{sT1}, 1', 's_cbranch_vccnz L_fallback' if 'nofb' not in XP else 's_nop 0')
lab('L_att_ok')
E('s_cbranch_scc0 L_st_slow',
  f'buffer_store_dwordx4 {vr(16,4)}, v{vL16}, {sr(S_WS,4)}, s{sOslot} offen',
  f'buffer_store_dwordx4 {vr(28,4)}, v{vL16}, {sr(S_WS,4)}, s{sOslot} offen offset:1024')
lab('L_st_j')
stamp(3, 'tail')
w_reads()
e(f's_mov_b32 s{sSpin}, {SPIN//10}')
if opt('tslp', 0): e(f's_sleep {opt("tslp", 0)}')
stamp(4, 'tail')
NPRE = opt('npre', 2)
o_loads(None, range(NPRE))
e(f's_mov_b32 s{sC}, 2')

cm('================ tail: out projections (X: branch A, Y: branch B) ================')
lab('L_tail_go')
e('s_waitcnt lgkmcnt(0)')
for g in range(4):
    rt = g >> 1
    b_ = oOf + 16 * g
    e(f's_waitcnt vmcnt({4*(min(4, NPRE+g)-g-1)})')
    lab(f'L_tg{g}')
    E(f'v_max3_u32 v{vT0}, v{b_}, v{b_+1}, v{b_+2}', f'v_max3_u32 v{vT1}, v{b_+3}, v{b_+4}, v{b_+5}')
    for k in range(6, 16, 2):
        t = vT0 if (k >> 1) & 1 else vT1
        e(f'v_max3_u32 v{t}, v{t}, v{b_+k}, v{b_+k+1}')
    E(f'v_max_u32 v{vT0}, v{vT0}, v{vT1}', f'v_cmp_eq_u32 vcc, -1, v{vT0}', f's_cbranch_vccnz L_tr{g}')
    lab(f'L_tk{g}')
    if g == 0: stamp(5, 'tail', 'all')
    if NPRE + g < 4: o_loads(None, [NPRE + g])
    if g == 2: e('s_barrier')
    order = [(s_, ct) for s_ in range(4*(g&1), 4*(g&1)+4) for ct in range(2)]
    if g == 3: order = sorted(order, key=lambda z: z[1])
    for m_, (s_, ct) in enumerate(order):
        a_ = oAcc + 32 * rt + 16 * ct
        e(f'v_mfma_f32_32x32x16_bf16 {vr(a_,16)}, {vr(oW+8*s_+4*ct,4)}, {vr(oOf+32*rt+4*s_,4)}, {"0" if s_ == 0 else vr(a_,16)}')
        if g == 2:
            e(f'ds_write_b128 v{80+m_ if m_ else vTp}, {vr(oAcc+4*m_,4)}')
e('s_nop 7')
PADON[0] = False
lab('L_tail_wr')
stamp(6, 'tail')
for q in range(8):
    e(f'ds_write_b128 v{80+q if q else vTp}, {vr(oAcc+32+4*q,4)} offset:8192')
E('s_waitcnt lgkmcnt(0)', 's_barrier')
stamp(7, 'tail')
lab('L_red')
tR = 96
for kq in range(4):
    E(f'ds_read_b128 {vr(tR+8*kq,4)}, v{vTr0} offset:{kq*16384}', f'ds_read_b128 {vr(tR+8*kq+4,4)}, v88 offset:{kq*16384}')
e('s_waitcnt lgkmcnt(4)')
for i in range(0, 8, 2): e(f'v_pk_add_f32 {vr(tR+i,2)}, {vr(tR+i,2)}, {vr(tR+8+i,2)}')
e('s_waitcnt lgkmcnt(0)')
for a_, b_ in ((16, 24), (0, 16)):
    for i in range(0, 8, 2): e(f'v_pk_add_f32 {vr(tR+a_+i,2)}, {vr(tR+a_+i,2)}, {vr(tR+b_+i,2)}')
for i in range(4): e(f'v_cvt_pk_bf16_f32 v{16+i}, v{tR+2*i}, v{tR+2*i+1}')
e(f'buffer_store_dwordx4 {vr(16,4)}, v{vTo}, {sr(S_OUT,4)}, s{sOutOff} offen{opt("of", "_nt").replace("_", " ")}')
E(f's_cmp_eq_u32 s{sC}, 2', 's_cbranch_scc1 L_fin',
  f's_add_u32 s{sC}, s{sC}, 1', f's_cmp_eq_u32 s{sC}, 1', f's_cselect_b32 s{sT0}, 1, 8', f's_cselect_b32 s{sT1}, 64, 1', f's_lshl_b32 s{sT1}, s{sT1}, 10', f's_lshl_b32 s{sT0}, s{sT0}, 13',
  f'v_add_u32 v{vTr0}, s{sT0}, v{vTr0}', f'v_add_u32 v88, s{sT0}, v88', f's_add_u32 s{sOutOff}, s{sOutOff}, s{sT1}',
  f's_cmp_eq_u32 s{sC}, 1', 's_cbranch_scc1 L_red', 's_barrier', 's_branch L_red')
lab('L_fin')
if STAMPS:
    stamp(8, 'tail')
    e('s_waitcnt vmcnt(0)')
    stamp(9, 'tail', 'head'); stamp(6, 'all')
    E('s_waitcnt lgkmcnt(0)', 's_nop 1')
    ECHO = [a[7:] for a in sys.argv if a.startswith('--echo=')]
    if ECHO:
        a_, b_, mul = map(int, ECHO[0].split(','))
        E(f's_sub_u32 s{sT0}, s{sST+2*b_}, s{sST+2*a_}', f's_mul_i32 s{sT0}, s{sT0}, {mul}')
        if opt('ehg', -1) >= 0:
            E(f's_cmp_eq_u32 s{sHG}, {opt("ehg", -1)}', f's_cselect_b32 s{sT0}, s{sT0}, 0', f's_cmp_ge_u32 s{sW}, 4' if STMODE == 'all' else f's_cmp_lt_u32 s{sW}, 4', f's_cselect_b32 s{sT0}, s{sT0}, 0')
        if opt('erole', ''):
            E({'x': f's_cmp_lt_u32 s{sW}, 4', 'y': f's_cmp_ge_u32 s{sW}, 4', 'k': f's_cmp_eq_u32 s{sW}, 7'}[opt('erole', '')], f's_cselect_b32 s{sT0}, s{sT0}, 0')
        E(f's_memrealtime {sr(6,2)}', 's_waitcnt lgkmcnt(0)')
        lab('L_echo')
        E(f's_memrealtime {sr(4,2)}', 's_waitcnt lgkmcnt(0)', f's_sub_u32 s{sT1}, s4, s6', f's_cmp_lt_u32 s{sT1}, s{sT0}', 's_cbranch_scc1 L_echo')
    for i in range(12): e(f'v_mov_b32 v{16+i}, s{sST+2*i}')
    E(f's_getreg_b32 s{sT0}, hwreg(HW_REG_XCC_ID)', f'v_mov_b32 v28, s{sT0}', f'v_mov_b32 v29, s{sSpin}', f'v_mov_b32 v30, s{sFB}', 'v_mov_b32 v31, 0',
      f's_lshl_b32 s{sT0}, s2, 3', f's_add_u32 s{sT0}, s{sT0}, s{sW}', f's_lshl_b32 s{sT0}, s{sT0}, 6', f's_add_u32 s{sT0}, s{sT0}, {hex(WS_STAMP)}',
      'v_mov_b32 v0, 0', 's_mov_b64 exec, 1')
    for i in range(4):
        e(f'buffer_store_dwordx4 {vr(16+4*i,4)}, v0, {sr(S_WS,4)}, s{sT0} offen offset:{16*i}')
lab('L_end')
e('s_endpgm')

cm('================ X program (waves 0-3) ================')
VMQ[:] = []; NBAR[0] = 0
xAcc, xFr, xMask = 96, 160, 32
xa, xb, xw = 56, 60, 64
(xFw, xLq, xLv, xLvp, xOne) = (72, 73, 74, 75, 76)
XV, XM, PACE = opt('xv', 2), opt('xm', 0), opt('pace', 2)
e('.p2align 6')
lab('L_X')
srd(S_WQ, 0x80000); srd(S_XA, 0x200000); srd(S_WQKV, 0x180000)
E(f's_or_b32 s{sT1}, s2, s{sW}', 's_cbranch_scc1 L_nonon', 's_waitcnt lgkmcnt(0)',
  f's_lshl_b64 {sr(sNon,2)}, {sr(sNon,2)}, 5', f's_or_b32 s{sNon}, s{sNon}, 1', f'v_mov_b32 v{vNon}, s{sNon}', f'v_mov_b32 v{vNon+1}, s{sNon+1}', 's_mov_b64 exec, 1',
  f'global_store_dwordx2 v{vZero}, {vr(vNon,2)}, {sr(S_DBG,2)} sc1', 's_mov_b64 exec, -1')
lab('L_nonon')
E(f'v_and_b32 v{vT3}, 1, v{vG}', f'v_lshlrev_b32 v{vT3}, 2, v{vT3}', f'v_xor_b32 v{vT3}, v{vT3}, v{vT2}', f'v_lshlrev_b32 v{vT3}, 4, v{vT3}',
  f'v_lshl_add_u32 v{vW}, v{vT1}, 10, v{vT3}', f'v_add_u32 v{vW2}, {8192-1024}, v{vW}',
  f'v_mul_u32_u24 v{vWA}, 3072, v{vT1}', f'v_add_u32 v{vWA}, v{vWA}, v{vT3}')
lane_setup()
SH4 = ['0', f's{sVM}', f's{sVM+1}', f's{sC}']; RG4 = [82, 84, 86, 88]
qx, qw = 56, 64
E(f'v_bfe_u32 v{vXx}, v{vN}, 1, 3', f'v_xor_b32 v{vXx}, v{vXx}, v{vH}', f'v_lshlrev_b32 v{vXx}, 4, v{vXx}',
  f's_and_b32 s{sF0}, s{sW}, 1', f's_lshl_b32 s{sF0}, s{sF0}, 12', f'v_lshl_add_u32 v{qx}, v{vN}, 7, v{vXx}', f'v_add_u32 v{qx}, s{sF0}, v{qx}',
  f'v_xor_b32 v{qx+1}, 32, v{qx}', f'v_xor_b32 v{qx+2}, 64, v{qx}', f'v_xor_b32 v{qx+3}, 96, v{qx}',
  f's_and_b32 s{sF2}, s{sW}, 2', f's_lshl_b32 s{sF2}, s{sF2}, 5', f'v_xor_b32 v{qw}, s{sF2}, v{vWl}', f'v_add_u32 v{qw}, 8192, v{qw}', f'v_add_u32 v{qw+1}, 65536, v{qw}',
  f's_mov_b32 s{sCS}, {f32(CSCALE)}')
for j in range(4): e(f'v_add_u32 v{qx+4+j}, 65536, v{qx+j}')
AR = opt('arot', 0)
if AR == 1: E(f's_add_u32 s{sXo}, s{sRot}, s{sHG}', f's_and_b32 s{sXo}, s{sXo}, 7', f's_lshl_b32 s{sXo}, s{sXo}, 7')
elif AR == 2: E(f's_lshr_b32 s{sXo}, s{sRB}, 2', f's_lshl_b32 s{sXo}, s{sXo}, 7')
elif AR == 3: E(f's_lshr_b32 s{sXo}, s{sRB}, 2', f's_lshl_b32 s{sT0}, s{sRB}, 2', f's_add_u32 s{sXo}, s{sXo}, s{sT0}', f's_and_b32 s{sXo}, s{sXo}, 7', f's_lshl_b32 s{sXo}, s{sXo}, 7')
elif AR == 4: E(f's_and_b32 s{sXo}, s{sRB}, 1', f's_lshl_b32 s{sXo}, s{sXo}, 9')
else: e(f's_mov_b32 s{sXo}, 0')
E(f's_lshl_b32 s{sW2k}, s{sW}, 11',
  f's_lshl_b32 s{sT3}, s{sRB}, 2', f's_add_u32 s{sT0}, s{sT3}, s{sW}', f's_lshl_b32 s{sT0}, s{sT0}, 14', f'v_add_u32 v{vXA}, s{sT0}, v{vP0}', f'v_add_u32 v{vXA2}, s{sT0}, v{vP1}',
  f's_mul_i32 s{sT0}, s{sW}, {16*3072}', f's_add_u32 s{sT0}, s{sT0}, s{sHG128}', f'v_add_u32 v{vWA}, s{sT0}, v{vWA}', f'v_add_u32 v{vWA2}, {8*3072-1024}, v{vWA}')
def w64(srd_, lds_base_sgpr, lds, tag):
    for hf in range(2):
        E(f's_add_u32 m0, s{lds_base_sgpr}, {lds+hf*4096}', f's_add_u32 s{sT1}, s{sT0}, {2*7168}')
        dma(vW, srd_, f's{sT0}', 0, '', tag); dma(vW2, srd_, f's{sT0}', 1024, '', tag)
        dma(vW, srd_, f's{sT1}', 2048, '', tag); dma(vW2, srd_, f's{sT1}', 3072, '', tag)
        if hf == 0: e(f's_add_u32 s{sT0}, s{sT0}, 32768')
vTc = 68
def touch_setup():
    E(f's_lshr_b32 s{sT0}, s2, 3', f's_lshl_b32 s{sT0}, s{sT0}, 2', f's_add_u32 s{sT0}, s{sT0}, s{sW}',
      f's_mul_i32 s{sT1}, s{sT0}, {12*128}', f'v_mul_u32_u24 v{vTc}, {196608}, v{vG}', f'v_lshl_add_u32 v{vTc}, v{vI}, 7, v{vTc}', f'v_add_u32 v{vTc}, s{sT1}, v{vTc}',
      f's_lshl_b32 s{sT1}, s{sT0}, 12', f'v_lshlrev_b32 v{vTc+1}, 7, v{vN}', f'v_add_u32 v{vTc+1}, s{sT1}, v{vTc+1}',
      f's_lshl_b32 s{sT1}, s{sHG}, 2', f's_add_u32 s{sT1}, s{sT1}, s{sW}', f's_lshl_b32 s{sT1}, s{sT1}, 11', f's_lshl_b32 s{sT2}, s{sRB}, 16', f's_add_u32 s{sT1}, s{sT1}, s{sT2}',
      f'v_lshlrev_b32 v{vTc+2}, 7, v{vI}', f'v_add_u32 v{vTc+2}, s{sT1}, v{vTc+2}')
def touch_w(j):
    E(f's_mov_b32 s{sT0}, {j*4*196608}', 's_mov_b32 exec_lo, 0x0fff0fff', 's_mov_b32 exec_hi, 0x0fff0fff')
    e(f'buffer_load_dword v{vTc+3}, v{vTc}, {sr(S_WQKV,4)}, s{sT0} offen', 'tc')
    e('s_mov_b64 exec, -1')
def touch_x():
    e('s_mov_b64 exec, 0xffff')
    e(f'buffer_load_dword v{vTc+3}, v{vTc+2}, {sr(S_XA,4)}, 0 offen{NT}', 'tc')
    e('s_mov_b64 exec, -1')
def touch_wo(srd_):
    e('s_mov_b32 exec_hi, 0')
    e(f'buffer_load_dword v{vTc+3}, v{vTc+1}, {sr(srd_,4)}, 0 offen', 'tc')
    e('s_mov_b64 exec, -1')
TC = opt('tc', 0)
def halo_fill():
    E(f's_lshl_b32 s{sT3}, s{sRB}, 16', f's_sub_u32 s{sT2}, s{sT3}, 16384', f's_max_i32 s{sT2}, s{sT2}, 0',
      f's_lshl_b32 s{sT0}, s{sW}, 7', f's_add_u32 s{sT0}, s{sT0}, s{sStepH}')
    for j in range(2):
        E(f's_and_b32 s{sT0}, s{sT0}, 1023', f's_add_u32 m0, s{sW2k}, {HALO+j*8192}', f's_add_u32 s{sT1}, s{sT2}, s{sT0}')
        dma(vP0, S_XA, f's{sT1}', 0, '', 'halo'); dma(vP1, S_XA, f's{sT1}', 1024, '', 'halo')
        if j == 0: e(f's_add_u32 s{sT0}, s{sT0}, 512')
def a_fill(c):
    slot = (c & 3) * SLOT
    t = f'A{c}'
    E(f's_add_u32 m0, s{sW2k}, {slot}', f's_mul_i32 s{sWo}, s{sXo}, 1536')
    dma(vXA, S_XA, f's{sXo}', 0, NT, t); dma(vXA2, S_XA, f's{sXo}', 1024, NT, t)
    for ty in range(3):
        E(f's_add_u32 m0, s{sW2k}, {slot+8192+ty*8192}', [f's_add_u32 s{sXo}, s{sXo}, 128', f's_add_u32 s{sWo}, s{sWo}, 1024', f's_add_u32 s{sWo}, s{sWo}, 1024'][ty])
        dma(vWA, S_WQKV, f's{sWo}', 0, WNT, t); dma(vWA2, S_WQKV, f's{sWo}', 1024, WNT, t)
    e(f's_and_b32 s{sXo}, s{sXo}, 1023')
def kv_fill(k):
    E(f's_add_u32 m0, s{sW4k}, {R+((k&1)^1)*16384}', f's_and_b32 s{sKVo}, s{sKVo}, 0x1ffff')
    for j in range(4): dma(vL16, S_WS, f's{sKVo}', 1024*j, ' sc1', f'KV{k}')
    e(f's_add_u32 s{sKVo}, s{sKVo}, 16384')
def wo_fill(srd_, half, lds, tag):
    e(f's_add_u32 s{sT0}, s{sWoff}, {half*256*1024}')
    if opt('worot', 1): e(f's_and_b32 s{sT0}, s{sT0}, 0x7ffff')
    w64(srd_, sW8k, lds, tag)
def masks():
    E(f'v_lshlrev_b32 v{vT0}, 2, v{vH}', f'v_sub_u32 v{vT0}, v{vN}, v{vT0}', f'v_add_u32 v{vT0}, 18, v{vT0}',
      f'v_mov_b32 v{vT2}, 0x5555', f'v_mov_b32 v{vT3}, 0', f'v_lshlrev_b64 {vr(vT2,2)}, v{vT0}, {vr(vT2,2)}',
      f'v_not_b32 v{vT2}, v{vT2}', f'v_not_b32 v{vT3}, v{vT3}', f's_mov_b32 s{sF1}, 0xff800000')
    for r in range(16): E(f'v_bfe_i32 v{xMask+r}, v{vT3}, {8*(r>>2)+(r&3)}, 1', f'v_and_b32 v{xMask+r}, s{sF1}, v{xMask+r}')
    for r in range(8, 16): E(f'v_bfe_i32 v{xMask+8+r}, v{vT2}, {8*(r>>2)+(r&3)}, 1', f'v_and_b32 v{xMask+8+r}, s{sF1}, v{xMask+8+r}')
def local_setup():
    E(f's_and_b32 s{sT0}, s{sW}, 1', f's_lshl_b32 s{sT0}, s{sT0}, 12', f's_lshr_b32 s{sT1}, s{sW}, 1', f's_lshl_b32 s{sT2}, s{sT1}, 11', f's_add_u32 s{sT0}, s{sT0}, s{sT2}', f's_add_u32 s{sT0}, s{sT0}, {SC}', f'v_add_u32 v{xFw}, s{sT0}, v{vL16}',
      f's_lshl_b32 s{sT0}, s{sRB}, 3', f's_add_u32 s{sT0}, s{sT0}, s{sHG}', f's_lshl_b32 s{sStepA}, s{sT0}, 13', f's_add_u32 s{sStepA}, s{sStepA}, s{sT2}', f's_add_u32 s{sStepA}, s{sStepA}, {hex(WS_HX)}',
      f's_lshl_b32 s{sStepB}, s{sT0}, 1', f's_add_u32 s{sStepB}, s{sStepB}, s{sT1}', f's_lshl_b32 s{sStepB}, s{sStepB}, 6', f's_add_u32 s{sStepB}, s{sStepB}, {hex(WS_FHX)}',
      f's_cmp_eq_u32 s{sRB}, 0', f's_cselect_b32 s{sT2}, 0, 8', f's_sub_u32 s{sT0}, s{sT0}, s{sT2}', f's_lshl_b32 s{sT2}, s{sT2}, 7', f's_sub_u32 s{sT2}, s{sStepB}, s{sT2}', f'v_mov_b32 v{vB1}, s{sT2}',
      f's_lshl_b32 s{sStepH}, s{sT0}, 13', f's_lshl_b32 s{sT2}, s{sW}, 10', f's_add_u32 s{sStepH}, s{sStepH}, s{sT2}', f's_add_u32 s{sStepH}, s{sStepH}, {hex(WS_HX)}',
      f'v_mov_b32 v{xOne}, 0x3f803f80', f'v_mov_b32 v{xOne+1}, 0x3f803f80',
      f's_lshl_b32 s{sT1}, s{sW}, 10', f's_add_u32 s{sT2}, s{sT1}, {ONES}', f's_add_u32 s{sT1}, s{sT1}, {SC}', f'v_add_u32 v{xLq}, s{sT1}, v{vL16}',
      f'v_and_b32 v{vT0}, 1, v0', f'v_lshlrev_b32 v{vT0}, 5, v{vT0}', f'v_lshl_add_u32 v{vT0}, v{vH}, 3, v{vT0}',
      f'v_lshrrev_b32 v{vT1}, 2, v{vI}', f'v_add_u32 v{vT0}, v{vT0}, v{vT1}', f'v_lshlrev_b32 v{vT0}, 4, v{vT0}', f'v_and_b32 v{vT1}, 2, v0', f'v_lshl_add_u32 v{vT0}, v{vT1}, 2, v{vT0}',
      f'v_add_u32 v{xLv}, s{sT1}, v{vT0}', f'v_mov_b32 v{xLvp}, s{sT2}', f'v_lshl_add_u32 v{vOw}, v0, 3, v{xLvp}',
      f'v_and_b32 v{vT0}, 16, v0', f'v_cmp_ne_u32 vcc, 0, v{vT0}',
      f'v_add_u32 v78, {4*4096}, v{xLv}', f'v_add_u32 v79, {5*4096}, v{xLv}', f'v_add_u32 v80, {7*4096}, v{xLv}',
      f'v_cndmask_b32 v78, v78, v{xLvp}, vcc', f'v_cndmask_b32 v79, v79, v{xLvp}, vcc', f'v_cndmask_b32 v80, v80, v{xLvp}, vcc',
      f's_lshl_b32 s{sT0}, s{sRB}, 6', f's_lshl_b32 s{sT1}, s{sHG}, 2', f's_add_u32 s{sT1}, s{sT1}, s{sW}', f's_add_u32 s{sT0}, s{sT0}, s{sT1}',
      f's_lshl_b32 s{sT0}, s{sT0}, 10', f's_add_u32 s{sOslot}, s{sT0}, {hex(WS_OA)}', f's_add_u32 s{sOslot2}, s{sOslot}, 32768',
      f's_lshl_b32 s{sT0}, s{sRB}, 5', f's_add_u32 s{sT0}, s{sT0}, s{sT1}', f's_lshl_b32 s{sT0}, s{sT0}, 6', f's_add_u32 s{sK1}, s{sT0}, {hex(WS_FOA)}')
    for i in range(4): e(f'v_mov_b32 v{vF0+i}, -1')
def sentinels():
    E(f's_add_u32 s{sT0}, s{sOslot}, {hex(WS_OB-WS_OA)}', f's_add_u32 s{sT1}, s{sT0}, 32768')
    e(f'buffer_store_dwordx4 {vr(vF0,4)}, v{vL16}, {sr(S_WS,4)}, s{sT0} offen sc1', 'sent')
    e(f'buffer_store_dwordx4 {vr(vF0,4)}, v{vL16}, {sr(S_WS,4)}, s{sT1} offen sc1', 'sent')
    nonce_load('sent')
def setup_a():
    E(f's_cmp_eq_u32 s{sW}, 3', f's_cselect_b32 s{sT1}, 15, 31', f'v_and_b32 v{vT0}, s{sT1}, v{vN}', f'v_lshl_add_u32 v{xa}, v{vT0}, 7, v{vXx}',
      f's_cselect_b32 s{sT1}, {HALO}, 0', f'v_add_u32 v{xa}, s{sT1}, v{xa}', f's_cselect_b32 s{sT1}, 0, 4096', f'v_add_u32 v{xb}, s{sT1}, v{xa}',
      f's_cselect_b32 s{sStepA}, 1, 16', f's_cselect_b32 s{sStepB}, 1, -32', f's_cselect_b32 s{sT1}, 1, s{sW}', f's_cselect_b32 s{sT2}, 2, s{sW}',
      f's_lshl_b32 s{sStepA}, s{sStepA}, 11', f's_lshl_b32 s{sStepB}, s{sStepB}, 11',
      f's_lshl_b32 s{sT1}, s{sT1}, 13', f's_add_u32 s{sT1}, s{sT1}, 8192', f'v_add_u32 v{xw}, s{sT1}, v{vWl}', f'v_xor_b32 v{xw+1}, 64, v{xw}',
      f's_lshl_b32 s{sT2}, s{sT2}, 13', f's_add_u32 s{sT2}, s{sT2}, 8192', f'v_add_u32 v{xw+2}, s{sT2}, v{vWl}', f'v_xor_b32 v{xw+3}, 64, v{xw+2}')
    for j in range(4): e(f'v_add_u32 v{xw+4+j}, 65536, v{xw+j}')
    for s_ in range(1, 4): E(f'v_xor_b32 v{xa+s_}, {32*s_}, v{xa}', f'v_xor_b32 v{xb+s_}, {32*s_}, v{xb}')
def setup_b():
    E(f's_lshr_b32 s{sT1}, s{sRB}, 2', f's_lshl_b32 s{sKVo}, s{sT1}, 14', f's_add_u32 s{sKVo}, s{sKVo}, s{sW4k}', f's_add_u32 s{sKVo}, s{sKVo}, 16384',
      f'v_lshlrev_b32 v{vPa}, 3, v0', f'v_add_u32 v{vPa}, {hex(WS_FD)}, v{vPa}',
      f'v_lshlrev_b32 v{vPa2}, 6, v{vN}', f's_lshl_b32 s{sT2}, s{sRB}, 11', f's_add_u32 s{sT2}, s{sT2}, {hex(WS_FOA)}', f'v_add_u32 v{vPa2}, s{sT2}, v{vPa2}',
      f's_add_u32 s{sT2}, s{sT1}, 1', f's_lshl_b32 s{sT2}, s{sT2}, 5', f'v_add_u32 v{vB0}, s{sT2}, v0', f'v_and_b32 v{vB0}, 255, v{vB0}',
      f'v_lshlrev_b32 v{vB0}, 6, v{vB0}', f'v_add_u32 v{vB0}, {hex(WS_FKV)}, v{vB0}',
      f's_mov_b32 s{sVM}, 512', f's_mov_b32 s{sVM+1}, 1024', f's_mov_b32 s{sC}, 1536',
      f's_lshl_b32 s{sW8k}, s{sW}, 13', f's_lshl_b32 s{sWoff}, s{sW}, 16', f's_add_u32 s{sWoff}, s{sWoff}, s{sHG128}')
    if opt('worot', 1): E(f's_lshl_b32 s{sT2}, s{sRB}, 17', f's_add_u32 s{sWoff}, s{sWoff}, s{sT2}')
    srd(S_WOA, 0x80000); srd(S_WOB, 0x80000)
    E(f's_getreg_b32 s{sXcc}, hwreg(HW_REG_XCC_ID, 0, 4)', f's_lshl_b32 s{sXcc}, s{sXcc}, 1')
setup_b()
E(f's_add_u32 s{sT0}, s{sW}, s{sRot}', f's_lshl_b32 s{sT0}, s{sT0}, 16', f's_add_u32 s{sT0}, s{sT0}, s{sHG128}', f's_lshl_b32 s{sT2}, s{sW}, 14',
  f's_and_b32 s{sT0}, s{sT0}, 0x7ffff', 's_waitcnt lgkmcnt(0)', 's_barrier')
w64(S_WQ, sT2, 8192, 'B')
E(f's_add_u32 s{sT0}, s{sT0}, {4*65536-32768}', f's_and_b32 s{sT0}, s{sT0}, 0x7ffff')
w64(S_WQ, sT2, 65536+8192, 'B')
stamp(1, 'head')
local_setup(); tail_setup(); masks()
if TC: touch_setup()
for j in range(16): e(f'v_mov_b32 v{208+j}, 0')
E('s_waitcnt vmcnt(0)', 's_barrier')
stamp(5, 'head'); stamp(1, 'all', 'x')
def qrd(u):
    sc, st = u >> 2, u & 3
    x = vFr + 8 * (u % 8)
    hi = sc >> 2
    o = (sc & 3) * 16384
    E(f'ds_read_b128 {vr(x,4)}, v{qx+4*hi+st} offset:{o}',
      f'ds_read_b64_tr_b16 {vr(x+4,2)}, v{qw+hi} offset:{o+st*2048}', f'ds_read_b64_tr_b16 {vr(x+6,2)}, v{qw+hi} offset:{o+st*2048+512}')
for u in range(5): qrd(u)
if TC & 8: touch_x(); touch_w(0)
for u in range(32):
    x = vFr + 8 * (u % 8)
    issued = min(32, 5 + u)
    e(f's_waitcnt lgkmcnt({3*(issued-u-1)})')
    e(f'v_mfma_f32_32x32x16_bf16 {vr(vQacc,16)}, {vr(x+4,4)}, {vr(x,4)}, {"0" if u == 0 else vr(vQacc,16)}')
    if 5 + u < 32: qrd(5 + u)
    if EA and u == 7: e('s_barrier')
    if EA and u == EA:
        CAP[0] = []; a_fill(0); cap0 = CAP[0]; CAP[0] = None
        side0 = []; g_ = []
        for it in cap0:
            g_.append(it)
            if it[1] is not None: side0.append(g_); g_ = []
        side0[-1] += g_
    if EA and u >= EA and side0 and (u - EA) % opt('eas', 1) == 0:
        for s_, t_ in side0.pop(0): e(s_, t_)
if EA: assert not side0
E(f's_cmp_lg_u32 s{sW}, 0', 's_cbranch_scc1 L_np2')
poll_issue(vB0, ['0'], [vFl])
lab('L_np2')
e('s_nop 9')
stamp(6, 'head')
for j in range(16): e(f'v_mul_f32 v{vQacc+j}, s{sCS}, v{vQacc+j}')
for j in range(8): e(f'v_cvt_pk_bf16_f32 v{vQacc+j}, v{vQacc+2*j}, v{vQacc+2*j+1}')
E(f'ds_write_b128 v{vQx}, {vr(vQacc,4)}', f'ds_write_b128 v{vQx}, {vr(vQacc+4,4)} offset:1024',
  f's_setprio {XV}', 's_waitcnt lgkmcnt(0)')
stamp(7, 'head'); stamp(2, 'all', 'x')
e('s_barrier')
for j in range(16): e(f'v_mov_b32 v{16+j}, 0')
stamp(8, 'head'); stamp(3, 'all', 'x')

def a_chunk(cs, side=()):
    side = list(side)
    seq = []
    u = 0
    for c in cs:
        hi, base = (c >> 1) & 1, (c & 1) * SLOT
        for s in range(4):
            x = xFr + 16 * (u % 3); u += 1
            for ty in range(3):
                r = [f'ds_read_b128 {vr(x,4)}, v{qx+4*hi+s} offset:{base}'] if ty == 0 else []
                o = base + ty * 8192 + s * 2048
                r += [f'ds_read_b64_tr_b16 {vr(x+4+4*ty,2)}, v{qw+hi} offset:{o}', f'ds_read_b64_tr_b16 {vr(x+6+4*ty,2)}, v{qw+hi} offset:{o+512}']
                a = xAcc + 16 * ty
                seq.append((r, f'v_mfma_f32_32x32x16_bf16 {vr(a,16)}, {vr(x+4+4*ty,4)}, {vr(x,4)}, {"0" if (c == 0 and s == 0) else vr(a,16)}'))
    if XM != XV: e(f's_setprio {XM}')
    LA = opt('la', 1)
    for k_ in range(LA): E(*seq[k_][0])
    for k_, (r, m) in enumerate(seq):
        if k_ + LA < len(seq): E(*seq[k_+LA][0])
        e(f's_waitcnt lgkmcnt({sum(len(seq[j][0]) for j in range(k_+1, min(len(seq), k_+LA+1)))})')
        e(m)
        take = -(-len(side) // (len(seq) - k_))
        for g in side[:take]:
            for s_, t_ in g: e(s_, t_)
        side = side[take:]
    if XM != XV: e(f's_setprio {XV}')
def write_frags():
    e('s_nop 6')
    for ty in range(3):
        for hd in range(2):
            a = xAcc + 16 * ty + 8 * hd
            for i in range(4): e(f'v_cvt_pk_bf16_f32 v{a+i}, v{a+2*i}, v{a+2*i+1}')
            e(f'ds_write_b128 v{xFw}, {vr(a,4)} offset:{ty*8192+hd*1024}')
    E(f's_bitcmp1_b32 s{sW}, 0', 's_cbranch_scc0 L_nopub', f's_add_u32 s{sT0}, s{sStepA}, 4096',
      f'buffer_store_dwordx4 {vr(xAcc+16,4)}, v{vL16}, {sr(S_WS,4)}, s{sStepA} offen sc1',
      f'buffer_store_dwordx4 {vr(xAcc+24,4)}, v{vL16}, {sr(S_WS,4)}, s{sStepA} offen offset:1024 sc1',
      f'buffer_store_dwordx4 {vr(xAcc+32,4)}, v{vL16}, {sr(S_WS,4)}, s{sT0} offen sc1',
      f'buffer_store_dwordx4 {vr(xAcc+40,4)}, v{vL16}, {sr(S_WS,4)}, s{sT0} offen offset:1024 sc1')
    lab('L_nopub')
PUB = [0]
def halo_flag():
    E(f's_bitcmp1_b32 s{sW}, 0', 's_cbranch_scc0 L_nohf')
    flag_store('hx', f's{sStepB}', f's_waitcnt vmcnt({len(VMQ)-PUB[0]})')
    lab('L_nohf')
def halo_get():
    poll_check('hx', vB1, ['0'], [vFl], None)
    E(f's_lshl_b32 s{sT0}, s{sW}, 10', f's_add_u32 m0, s{sT0}, {SC+6*4096}', f's_add_u32 s{sT1}, s{sStepH}, 4096')
    dma(vL16, S_WS, f's{sStepH}', 0, ' sc1', 'hx')
    E(f's_add_u32 m0, s{sT0}, {SC+7*4096}', 's_nop 0')
    dma(vL16, S_WS, f's{sT1}', 0, ' sc1', 'hx')
def local_task(t):
    lq, lk, lp, lv = xFr, xFr+4, xFr+8, xFr+12
    lS, lP, lO = xAcc, xAcc+16, (16 if t else 208)
    kp = 6 if t == 0 else 2
    vc, vp = (78, 80) if t == 0 else (79, 78)
    E(f'ds_read_b128 {vr(lq,4)}, v{xLq} offset:{t*4096}', f'ds_read_b128 {vr(lk,4)}, v{xLq} offset:{(2+t)*4096}', f'ds_read_b128 {vr(lp,4)}, v{xLq} offset:{kp*4096}',
      f'ds_read_b64_tr_b16 {vr(lv,2)}, v{vc}', f'ds_read_b64_tr_b16 {vr(lv+2,2)}, v{vc} offset:64',
      f'ds_read_b64_tr_b16 {vr(lv+4,2)}, v{vc} offset:256', f'ds_read_b64_tr_b16 {vr(lv+6,2)}, v{vc} offset:320',
      f'ds_read_b64_tr_b16 {vr(lv+8,2)}, v{vp} offset:256', f'ds_read_b64_tr_b16 {vr(lv+10,2)}, v{vp} offset:320')
    if t == 0:
        E(f's_cmp_lg_u32 s{sRB}, 0', 's_cbranch_scc1 L_m0')
        for r in range(8): e(f'v_mov_b32 v{xMask+16+r}, 0xff800000')
        lab('L_m0')
    E('s_waitcnt lgkmcnt(6)', 's_nop 0',
      f'v_mfma_f32_32x32x16_bf16 {vr(lS,16)}, {vr(lk,4)}, {vr(lq,4)}, {vr(xMask,16)}',
      f'v_mfma_f32_32x32x16_bf16 {vr(lP,16)}, {vr(lp,4)}, {vr(lq,4)}, {vr(xMask+8,16)}')
    e('s_nop 10')
    regs = [lS+i for i in range(16)] + [lP+8+i for i in range(8)]
    maxtree(regs, vT0, vT1)
    E('s_nop 1', f'v_permlane32_swap_b32 v{vT0}, v{vT1}', f'v_max_f32 v{vT0}, v{vT0}, v{vT1}', f'v_mul_f32 v{vT0}, {f32(-CSCALE)}, v{vT0}')
    for k in range(0, 24, 2): e(f'v_pk_fma_f32 {vr(regs[k],2)}, {vr(regs[k],2)}, {sr(sCS,2)}, {vr(vT0,2)} op_sel_hi:[1,0,0]')
    e('s_waitcnt lgkmcnt(0)')
    for k in range(24):
        e(f'v_exp_f32 v{regs[k]}, v{regs[k]}')
        if k == 9: e(f'v_smfmac_f32_32x32x32_bf16 {vr(lO,16)}, {vr(lv,4)}, {vr(lS,8)}, v{vIdx}')
        if k == 17: e(f'v_smfmac_f32_32x32x32_bf16 {vr(lO,16)}, {vr(lv+4,4)}, {vr(lS+8,8)}, v{vIdx}')
    E('s_nop 1', f'v_smfmac_f32_32x32x32_bf16 {vr(lO,16)}, {vr(lv+8,4)}, {vr(lP+8,8)}, v{vIdx}', 's_nop 11',
      f'v_rcp_f32 v{vT2}, v{lO+8}', 's_nop 0')
    for i in range(0, 8, 2): e(f'v_pk_mul_f32 {vr(lO+i,2)}, {vr(lO+i,2)}, {vr(vT2,2)} op_sel_hi:[1,0]')
    d = xAcc + 48 + 4 * t
    for i in range(4): e(f'v_cvt_pk_bf16_f32 v{d+i}, v{lO+2*i}, v{lO+2*i+1}')
    e(f'buffer_store_dwordx4 {vr(d,4)}, v{vL16}, {sr(S_WS,4)}, s{sOslot2 if t else sOslot} offen sc1', 'oa')

def oa_mfma(rt, wr=False):
    for s_ in range(8):
        for ct in range(2):
            a_ = oAcc + 32 * rt + 16 * ct
            e(f'v_mfma_f32_32x32x16_bf16 {vr(a_,16)}, {vr(oW+8*s_+4*ct,4)}, {vr(oOf+32*rt+4*s_,4)}, {"0" if s_ == 0 else vr(a_,16)}')
            m_ = 2 * s_ + ct
            if wr and wr <= m_ < wr + 4:
                for q in (2*(m_-wr), 2*(m_-wr)+1): e(f'ds_write_b128 v{80+q if q else vTp}, {vr(oAcc+4*q,4)}')
PAT = opt('pat', 3)
if PAT == 3:
    CH = {n: [n-2] for n in range(2, 10)}; FILL = {n: [n] for n in range(8)}
else:
    CH = {2: [0], 3: [1], 4: [2], 5: [3, 4], 6: [5], 7: [6], 8: [7]}; FILL = {0: [0], 1: [1], 2: [2, 3], 3: [4], 4: [5], 5: [6], 6: [7]}
if EA:
    CH = {n: [n-1] for n in range(1, 9)}; FILL = {n: [n+1] for n in range(7)}
NG = max(CH)
LATE = opt('late', 1 if NG < 9 else 0)
AE = opt('aearly', 0)
for n in range(16):
    cm(f'X interval {n}')
    if n < 9: stamp(n + 1, 'i0')
    if n >= 8: stamp(n - 7, 'i1')
    if n in (opt('dn', 2), opt('dn', 2)+1, opt('dn', 2)+2): stamp(1 + 4*(n-opt('dn', 2)), 'd')
    if n in (1, 2, 4, 10, 12, 14): stamp({1: 4, 2: 5, 4: 6, 10: 7, 12: 8, 14: 9}[n], 'x')
    if STAMPS and STMODE == 'xc' and n in (4, 8, 10, 12, 14, 15):
        i_ = (4, 8, 10, 12, 14, 15).index(n)
        E(f's_memrealtime {sr(sST+4*i_,2)}', f's_memtime {sr(sST+4*i_+2,2)}')
    waits = []
    k = n // 2
    if n == 0:
        E(f's_cmp_lg_u32 s{sW}, 0', 's_cbranch_scc1 L_nochk_kv1')
        poll_check('kv1', vB0, ['0'], [vFl], 0)
    ILV = opt('ilv', 1) and n in CH
    if n == 3:
        E(f's_cmp_lg_u32 s{sW}, 0', 's_cbranch_scc1 L_np3')
        poll_issue(vPa, SH4, RG4)
        lab('L_np3')
        NP3 = len(VMQ)
    if ILV: CAP[0] = []
    if n == 1: kv_fill(1)
    if n % 2 == 0 and 1 <= k <= 6: kv_fill(k + 1)
    for c in FILL.get(n, []): a_fill(c)
    WS_ = opt('wos', 3)
    if n == NG - 1: sentinels()
    if WS_ == 0:
        if n == NG - 1: wo_fill(S_WOA, 0, 0, 'woA')
        if n == NG: wo_fill(S_WOA, 1, SLOT, 'woA')
    if WS_ == 3 and n == NG - 1: wo_fill(S_WOA, 0, 0, 'woA')
    if WS_ == 2:
        if n == NG - 2: wo_fill(S_WOA, 0, 0, 'woA')
        if n == NG - 1: wo_fill(S_WOA, 1, SLOT, 'woA')
    if TC & 1 and n == 0: touch_x(); touch_w(0)
    if TC & 2 and n == 2: touch_w(1)
    if TC & 4 and n == 3: touch_wo(S_WOA)
    if TC & 4 and n == 5: touch_wo(S_WOB)
    DN = opt('dn', 2)
    side = []
    if ILV:
        cap = CAP[0]; CAP[0] = None
        g = []
        for it in cap:
            g.append(it)
            if it[1] is not None: side.append(g); g = []
        if g: side[-1] += g
    if n in (DN, DN+1): stamp(2 + 4*(n-DN), 'd')
    if n in CH: a_chunk(CH[n], side)
    if n in (DN, DN+1): stamp(3 + 4*(n-DN), 'd')
    for c in CH.get(n + 1, []): waits.append(f'A{c}')
    if n == NG: write_frags(); PUB[0] = len(VMQ)
    if n == NG + 1:
        e(f'ds_write_b64 v{vOw}, {vr(xOne,2)}')
        if opt('hfe', 1): halo_flag()
        local_task(1)
        if not opt('hfe', 1): halo_flag()
    if n == NG + 2:
        halo_get()
        if WS_ == 1: wo_fill(S_WOA, 0, 0, 'woA')
        if WS_ == 3: wo_fill(S_WOA, 1, SLOT, 'woA')
    if n == NG + 3:
        e(f's_waitcnt vmcnt({vmn("hx")})')
        local_task(0)
        if WS_ == 3: waits.append('woA')
        if WS_ == 1: wo_fill(S_WOA, 1, SLOT, 'woA')
    if n == NG + 4:
        if LATE: wo_fill(S_WOB, 0, 2*SLOT, 'woB')
        flag_store('oa', f's{sK1}', f's_waitcnt vmcnt({vmn("oa")})', xcc=True)
        VMQ.append('fl')
        if WS_ != 1 and not LATE: w_reads()
    if WS_ != 1 and LATE and n == NG + 5: w_reads()
    if LATE and n == NG + 5 and WS_ != 1: wo_fill(S_WOB, 1, 3*SLOT, 'woB')
    if WS_ == 1 and n == NG + 5: waits.append('woA')
    if n == NG + 5 + LATE:
        E(f's_cmp_lg_u32 s{sW}, 0', 's_cbranch_scc1 L_skip_oa')
        poll_check('oa', vPa2, ['0'], [vFl], None, xcc=True)
        E(f'v_or_b32 v{vFl}, s{sXcc}, v{vNon}', f'v_cmp_ne_u32 vcc, v{vFl}, v{vFl+2}', 's_nop 1', 's_cmp_eq_u64 vcc, 0', f's_cselect_b32 s{sT0}, {opt("fast", 1)}, 0',
          f'v_mov_b32 v{vFl}, s{sT0}')
        lab('L_skip_oa')
        if not LATE: wo_fill(S_WOB, 0, 2*SLOT, 'woB'); wo_fill(S_WOB, 1, 3*SLOT, 'woB')
        if WS_ == 1: wo_fill(S_WOB, 1, 3*SLOT, 'woB'); w_reads()
    if n == NG + 6 + LATE:
        E(f's_cmp_lg_u32 s{sW}, 0', 's_cbranch_scc1 L_skip_same', f'v_mov_b32 v{vFl+1}, {R+16384}', f'ds_write_b32 v{vFl+1}, v{vFl}')
        lab('L_skip_same')
        o_loads('oal')
    if n == 13 and opt('pad', 0):
        E('s_mov_b64 exec, 0', 's_branch L_pad0')
        lab(f'L_pad{PADS[0]}')
        e('s_mov_b64 exec, -1')
    if n == 15 and AE:
        E('s_waitcnt vmcnt(8)', f's_setprio {XM}')
        oa_mfma(0)
        e(f's_setprio {XV}')
    if n % 2 == 1 and k + 1 <= 7: waits.append(f'KV{k+1}')
    if n == 15: waits.append('woB')
    if waits: e(f's_waitcnt vmcnt({min(vmn(t) for t in waits)}) lgkmcnt(0)')
    else: e('s_waitcnt lgkmcnt(0)')
    if n == 3:
        E(f's_cmp_lg_u32 s{sW}, 0', 's_cbranch_scc1 L_nochk_kv2')
        poll_check('kv2', vPa, SH4, RG4, len(VMQ) - NP3)
    if n < 9: stamp(n + 1, 'j0')
    if n >= 8: stamp(n - 7, 'j1')
    if n in (DN, DN+1): stamp(4 + 4*(n-DN), 'd')
    if opt('nomid', 0) and n % 2 == 0: NBAR[0] += 1
    else: e('s_barrier')
assert NBAR[0] == NBAR_Y, (NBAR[0], NBAR_Y)
E('s_setprio 0', f's_mov_b32 s{sSpin}, 0', f's_mov_b32 s{sC}, 0')
stamp(9, 'i1')
e('s_waitcnt vmcnt(0)')
stamp(5, 'tail')
if not AE: oa_mfma(0)
oa_mfma(1, 10)
E('s_nop 9', 's_branch L_tail_wr')

cm('---- fallback (Y waves): true max, K/V from global ----')
lab('L_fallback')
E(f's_cmp_eq_u32 s{sFB}, 0', 's_cbranch_scc1 L_fb_go', f's_cmp_eq_u32 s{sT1}, 1', 's_branch L_att_ok')
lab('L_fb_go')
E(f's_mov_b32 s{sFB}, 1', f'v_mov_b32 v{vT0}, 0xff800000', f'v_mov_b32 v{vT2}, 0xff800000', f's_mov_b32 s{sT2}, 0')
lab('L_fb_max')
E(f'buffer_load_dwordx4 {vr(aK,4)}, v{vL16}, {sr(S_WS,4)}, s{sT2} offen sc1', 's_waitcnt vmcnt(0)',
  f'v_mfma_f32_32x32x16_bf16 {vr(aSa,16)}, {vr(aK,4)}, {vr(vQa,4)}, 0', f'v_mfma_f32_32x32x16_bf16 {vr(aSb,16)}, {vr(aK,4)}, {vr(vQb,4)}, 0', 's_nop 15')
for k in range(0, 16, 2): e(f'v_max3_f32 v{vT0}, v{vT0}, v{aSa+k}, v{aSa+k+1}')
for k in range(0, 16, 2): e(f'v_max3_f32 v{vT2}, v{vT2}, v{aSb+k}, v{aSb+k+1}')
E(f's_add_u32 s{sT2}, s{sT2}, 2048', f's_cmp_lt_u32 s{sT2}, {64*2048}', 's_cbranch_scc1 L_fb_max',
  f'v_mov_b32 v{vT1}, v{vT0}', f'v_mov_b32 v{vT3}, v{vT2}', 's_nop 1',
  f'v_permlane32_swap_b32 v{vT0}, v{vT1}', f'v_permlane32_swap_b32 v{vT2}, v{vT3}', f'v_max_f32 v{vT0}, v{vT0}, v{vT1}', f'v_max_f32 v{vT2}, v{vT2}, v{vT3}')
for i in range(16): e(f'v_sub_f32 v{aCa+i}, 0, v{vT0}')
for i in range(16): e(f'v_sub_f32 v{aCb+i}, 0, v{vT2}')
for i in range(32): e(f'v_mov_b32 v{aOa+i}, 0')
E(f'v_lshlrev_b32 v{vT2}, 4, v{vI}', f'v_lshl_add_u32 v{vT2}, v{vH}, 8, v{vT2}', f's_mov_b32 s{sT2}, 0')
lab('L_fb_pv')
E(f'buffer_load_dwordx4 {vr(aK,4)}, v{vL16}, {sr(S_WS,4)}, s{sT2} offen sc1', f's_mov_b64 exec, {sr(sVM,2)}',
  f'buffer_load_dwordx4 {vr(aV,4)}, v{vT2}, {sr(S_WS,4)}, s{sT2} offen offset:1024 sc1',
  f'buffer_load_dwordx4 {vr(aV+4,4)}, v{vT2}, {sr(S_WS,4)}, s{sT2} offen offset:1536 sc1', 's_mov_b64 exec, -1', 's_waitcnt vmcnt(0)',
  f'v_mfma_f32_32x32x16_bf16 {vr(aSa,16)}, {vr(aK,4)}, {vr(vQa,4)}, {vr(aCa,16)}',
  f'v_mfma_f32_32x32x16_bf16 {vr(aSb,16)}, {vr(aK,4)}, {vr(vQb,4)}, {vr(aCb,16)}', 's_nop 15')
for i in range(32): e(f'v_exp_f32 v{aSa+i}, v{aSa+i}')
E('s_nop 1',
  f'v_smfmac_f32_32x32x32_bf16 {vr(aOa,16)}, {vr(aV,4)}, {vr(aSa,8)}, v{vIdx}', f'v_smfmac_f32_32x32x32_bf16 {vr(aOa,16)}, {vr(aV+4,4)}, {vr(aSa+8,8)}, v{vIdx}',
  f'v_smfmac_f32_32x32x32_bf16 {vr(aOb,16)}, {vr(aV,4)}, {vr(aSb,8)}, v{vIdx}', f'v_smfmac_f32_32x32x32_bf16 {vr(aOb,16)}, {vr(aV+4,4)}, {vr(aSb+8,8)}, v{vIdx}',
  f's_add_u32 s{sT2}, s{sT2}, 2048', f's_cmp_lt_u32 s{sT2}, {64*2048}', 's_cbranch_scc1 L_fb_pv', 's_nop 15', 's_branch L_att_fin')
for g, so in enumerate((sOoff, sT1, sT2, sT3)):
    lab(f'L_tr{g}')
    E(f's_sub_u32 s{sSpin}, s{sSpin}, 1', f's_cbranch_scc1 L_tk{g}')
    for j in range(4):
        o = f' offset:{j*1024}' if j else ''
        e(f'buffer_load_dwordx4 {vr(oOf+16*g+4*j,4)}, v{vL16}, {sr(S_WS,4)}, s{so} offen{o} sc1')
    E('s_waitcnt vmcnt(0)', f's_branch L_tg{g}')
lab('L_st_slow')
E(f'buffer_store_dwordx4 {vr(16,4)}, v{vL16}, {sr(S_WS,4)}, s{sOslot} offen sc1',
  f'buffer_store_dwordx4 {vr(28,4)}, v{vL16}, {sr(S_WS,4)}, s{sOslot} offen offset:1024 sc1', 's_branch L_st_j')
lab('L_code_end')

HDR = open(f'cdna_kernels/{NAME}.s.ref').read().split('\n')
hdr = []
for line in HDR:
    if line.startswith('; @launch'): break
    hdr.append(line)
txt = '\n'.join(hdr) + '\n; @launch grid=(256,1,1) block=(512,1,1) lds=163840\n'
txt += f'''.amdgcn_target "amdgcn-amd-amdhsa--gfx950"
.text
.globl {NAME}_kernel
.p2align 8
.type {NAME}_kernel,@function
'''
txt += '\n'.join(L) + '\n'
txt += f'''.section .rodata,"a"
.p2align 6
.amdhsa_kernel {NAME}_kernel
  .amdhsa_next_free_vgpr {NVGPR}
  .amdhsa_next_free_sgpr 102
  .amdhsa_accum_offset {NVGPR}
  .amdhsa_group_segment_fixed_size 0
  .amdhsa_kernarg_size 88
  .amdhsa_user_sgpr_count 2
  .amdhsa_user_sgpr_kernarg_segment_ptr 1
  .amdhsa_system_sgpr_workgroup_id_x 1
.end_amdhsa_kernel
'''
open(OUT, 'w').write(txt)
print('wrote', OUT, len(L), 'lines; barriers', NBAR_Y)
```

```python
import sys, struct

NAME = 'concat_heads__sliding_local_dilated__grouped_kv_mqa__prompt'
STAMPS = '--stamps' in sys.argv
STMODE = ([a[5:] for a in sys.argv if a.startswith('--st=')] + ['all'])[0]
XP = [a[4:] for a in sys.argv if a.startswith('--x=')]
args = [a for a in sys.argv[1:] if not a.startswith('--')]
OUT = args[0] if args else f'cdna_kernels/{NAME}.s'
def opt(name, default):
    for a in XP:
        if a.startswith(name): return type(default)(a[len(name):])
    return default

L = []
VMQ = []
NBAR = [0]
CAP = [None]
def e(s, tag=None):
    if CAP[0] is not None:
        CAP[0].append((s, tag)); return
    if tag is not None: VMQ.append(tag)
    if s == 's_barrier': NBAR[0] += 1
    L.append('    ' + s.strip())
    if PADON[0]:
        PADCNT[0] += 4 if (s.startswith('s_') and '0x' not in s) else 8
        if PADCNT[0] >= PADON[0] and not s.startswith('v_cmp') and 'abs' not in s:
            PADCNT[0] = 0; pad()
PADS = [0]
PADON = [False]
PADCNT = [0]
def lab(s): L.append(s + ':')
def pad():
    i = PADS[0]; PADS[0] += 1
    L.append(f'L_pad{i}:'); L.append(f'    s_cbranch_execz L_pad{i+1}')
def cm(s): L.append('    ; ' + s)
def vr(i, n): return f'v[{i}:{i+n-1}]'
def sr(i, n): return f's[{i}:{i+n-1}]'
def f32(x): return '0x%08x' % struct.unpack('<I', struct.pack('<f', x))[0]
def vmn(tag):
    idx = max(i for i, t in enumerate(VMQ) if t == tag)
    n = len(VMQ) - 1 - idx
    assert n <= 63
    return n
def E(*lines):
    for s in lines: e(s)

SLOT = 32768
R = 131072
HALO = 3 * SLOT
ONES = 3 * SLOT
SC = 2 * SLOT
WS_FHX = 0x60000
WS_HX = 0x600000
WS_FKV = 0x40000
WS_FOA = 0x48000
WS_FD = 0x44000
WS_OA = 0x100000
WS_OB = 0x300000
WS_STAMP = 0x500000
WS_SIZE = 0x800000
CSCALE = 0.25 * 1.4426950408889634
MOFF = float(opt('moff', 100))
VSC = 2.0 ** 40
ONEB = 0x53805380
SPIN = 200000
NT = '' if 'nont' in XP else ' nt'
WNT = ' nt' if 'wnt' in XP else ''

S_XA, S_WQKV, S_WOA, S_XB, S_WQ, S_WKV, S_WOB, S_OUT, S_WS = 8, 12, 16, 20, 24, 28, 32, 36, 40
S_DBG = 44
S_WV = 46
sP = 46
sW = 48
sRB, sHG = 49, 50
sT0, sT1, sT2, sT3 = 51, 52, 53, 54
sC = 55
sStepA, sStepB = 56, 57
sXo, sWo = 58, 59
sKVo = 60
sW4k, sW8k, sW2k = 61, 62, 63
sVM = 64
sOoff, sOutOff, sWoff, sSpin = 66, 67, 68, 69
sOslot, sOslot2 = 70, 71
sFB, sHG128, sCS, sQ = 72, 73, 74, 75
sRot, sK1 = 4, 5
sF0, sF1, sF2 = 3, 6, 7
sST = 76
sNon = 100
sStepH = 31
sXcc = 30

vL16, vW, vWA, vXA = 1, 2, 3, 4
vN, vH, vI = 5, 6, 7
vT0, vT1, vT2, vT3 = 8, 9, 10, 11
vP0, vP1, vXx, vG = 12, 13, 14, 15
vQacc = 16
vFr = 96
(vB0, vB1, vBW, vWl, vIdx, vPa, vQx, vW2, vTw0, vTw1, vTp, vTr0, vTo, vPa2, vZero, vOw,
 vF0, vF1, vF2, vF3, vWA2, vXA2) = range(232, 254)
vNon, vFl = 90, 92
NVGPR = 256

def stamp(i, *modes):
    if STAMPS and STMODE in modes: e(f's_memrealtime {sr(sST+2*i,2)}')
def cstamp(i):
    if STAMPS and STMODE != 'xc': e(f's_memtime {sr(sST+2*i,2)}')
def dma(voff, srd_, soff, off=0, fl='', tag='x'):
    o = f' offset:{off}' if off else ''
    e(f'buffer_load_dwordx4 v{voff}, {sr(srd_,4)}, {soff} offen{o}{fl} lds', tag)
def srd(reg, size): E(f's_mov_b32 s{reg+2}, {hex(size)}', f's_mov_b32 s{reg+3}, 0x20000')
def nonce_load(tag=None): e(f'global_load_dwordx2 {vr(vNon,2)}, v{vZero}, {sr(S_DBG,2)} sc1', tag)
def poll_issue(vaddr, soffs, regs, non=True):
    if non: nonce_load()
    for so, r in zip(soffs, regs):
        e(f'buffer_load_dwordx2 {vr(r,2)}, v{vaddr}, {sr(S_WS,4)}, {so} offen sc1')
def poll_check(tag, vaddr, soffs, regs, issued, xcc=False):
    e(f's_mov_b32 s{sSpin}, {SPIN}')
    if issued is not None: E(f's_waitcnt vmcnt({issued})', f's_branch L_chk_{tag}')
    lab(f'L_rep_{tag}')
    poll_issue(vaddr, soffs, regs)
    e('s_waitcnt vmcnt(0)')
    lab(f'L_chk_{tag}')
    e(f'v_cmp_eq_u32 vcc, 0, v{vNon}')
    if xcc: E(f'v_mov_b32 v{vFl+2}, v{vFl}', f'v_and_b32 v{vFl}, 0xffffffe1, v{vFl}')
    for r in regs:
        E(f'v_cmp_ne_u64 {sr(sP,2)}, {vr(vNon,2)}, {vr(r,2)}', 's_nop 1', f's_or_b64 vcc, vcc, {sr(sP,2)}')
    E(f's_cbranch_scc0 L_nochk_{tag}', f's_sub_u32 s{sSpin}, s{sSpin}, 1', f's_cbranch_scc0 L_rep_{tag}')
    lab(f'L_nochk_{tag}')
def flag_store(tag, soff, first_wait='s_waitcnt vmcnt(0)', xcc=False, soff2=None):
    e(f's_mov_b32 s{sSpin}, {SPIN}')
    e(first_wait)
    lab(f'L_fw_{tag}')
    E(f'v_cmp_eq_u32 vcc, 0, v{vNon}', f's_cbranch_vccz L_fs_{tag}')
    nonce_load()
    E('s_waitcnt vmcnt(0)', f's_sub_u32 s{sSpin}, s{sSpin}, 1', f's_cbranch_scc0 L_fw_{tag}')
    lab(f'L_fs_{tag}')
    if xcc: e(f'v_or_b32 v{vNon}, s{sXcc}, v{vNon}')
    E('s_mov_b64 exec, 1', f'buffer_store_dwordx2 {vr(vNon,2)}, v{vZero}, {sr(S_WS,4)}, {soff} offen sc1')
    if soff2: e(f'buffer_store_dwordx2 {vr(vNon,2)}, v{vZero}, {sr(S_WS,4)}, {soff2} offen sc1')
    e('s_mov_b64 exec, -1')
def maxtree(rs, t0, t1):
    e(f'v_max3_f32 v{t0}, v{rs[0]}, v{rs[1]}, v{rs[2]}')
    e(f'v_max3_f32 v{t1}, v{rs[3]}, v{rs[4]}, v{rs[5]}')
    for k in range(6, len(rs), 4):
        e(f'v_max3_f32 v{t0}, v{t0}, v{rs[k]}, v{rs[k+1]}')
        if k + 3 < len(rs): e(f'v_max3_f32 v{t1}, v{t1}, v{rs[k+2]}, v{rs[k+3]}')
    e(f'v_max_f32 v{t0}, v{t0}, v{t1}')
    e(f'v_mov_b32 v{t1}, v{t0}')
def lane_setup():
    E(f'v_and_b32 v{vN}, 31, v0', f'v_lshrrev_b32 v{vH}, 5, v0', f'v_and_b32 v{vI}, 15, v0',
      f'v_lshrrev_b32 v{vWl}, 2, v{vI}', f'v_lshl_add_u32 v{vWl}, v{vH}, 3, v{vWl}', f'v_lshlrev_b32 v{vWl}, 7, v{vWl}',
      f'v_and_b32 v{vF0}, 8, v{vI}', f'v_lshl_add_u32 v{vWl}, v{vF0}, 3, v{vWl}', f'v_and_b32 v{vF0}, 16, v0',
      f'v_lshl_add_u32 v{vWl}, v{vF0}, 1, v{vWl}', f'v_and_b32 v{vF0}, 3, v0', f'v_lshl_add_u32 v{vWl}, v{vF0}, 3, v{vWl}',
      f's_lshl_b32 s{sW4k}, s{sQ}, 12', f's_add_u32 s{sF0}, s{sW4k}, {R}', f'v_add_u32 v{vQx}, s{sF0}, v{vL16}',
      f'v_mov_b32 v{vIdx}, 0xdddddddd', f's_mov_b32 s{sFB}, 0')
oOf, oW, oAcc = 16, 96, 160
def tail_setup():
    E(f's_mov_b32 s{S_OUT+2}, 0x400000', f's_mov_b32 s{S_OUT+3}, 0x20000',
      f's_lshr_b32 s{sF2}, s{sW}, 2', f's_lshl_b32 s{sF1}, s{sW}, 14',
      f'v_lshlrev_b32 v{vT0}, 9, v{vH}', f'v_sub_u32 v{vTw0}, v{vWl}, v{vT0}', f'v_add_u32 v{vTw0}, s{sF1}, v{vTw0}', f'v_xor_b32 v{vTw1}, 64, v{vTw0}',
      f'v_xor_b32 v{vT0}, v{vH}, v{vI}', f'v_lshlrev_b32 v{vT0}, 4, v{vT0}', f'v_lshl_add_u32 v{vT0}, v{vN}, 8, v{vT0}', f'v_add_u32 v{vTp}, s{sF1}, v{vT0}',
      f'v_lshrrev_b32 v{vT0}, 3, v0', f's_lshl_b32 s{sF1}, s{sQ}, 3', f'v_add_u32 v{vT0}, s{sF1}, v{vT0}', f'v_and_b32 v{vT1}, 7, v0', f'v_lshlrev_b32 v{vT2}, 1, v{vT1}',
      f'v_and_b32 v{vT3}, 15, v{vT0}', f'v_xor_b32 v{vT2}, v{vT2}, v{vT3}', f'v_lshlrev_b32 v{vT2}, 4, v{vT2}', f'v_lshl_add_u32 v{vT2}, v{vT0}, 8, v{vT2}',
      f's_lshl_b32 s{sF1}, s{sF2}, 16', f'v_add_u32 v{vTr0}, s{sF1}, v{vT2}',
      f'v_lshlrev_b32 v{vT1}, 4, v{vT1}', f'v_lshl_add_u32 v{vTo}, v{vT0}, 11, v{vT1}',
      f's_lshl_b32 s{sOutOff}, s{sRB}, 17', f's_lshl_b32 s{sF1}, s{sF2}, 10', f's_add_u32 s{sOutOff}, s{sOutOff}, s{sF1}', f's_add_u32 s{sOutOff}, s{sOutOff}, s{sHG128}',
      f's_lshl_b32 s{sOoff}, s{sRB}, 16', f's_add_u32 s{sF1}, s{sQ}, s{sRB}' if opt('worot', 1) else f's_mov_b32 s{sF1}, s{sQ}', f's_and_b32 s{sF1}, s{sF1}, 3', f's_lshl_b32 s{sF1}, s{sF1}, 13', f's_add_u32 s{sOoff}, s{sOoff}, s{sF1}',
      f's_lshl_b32 s{sF1}, s{sF2}, 21', f's_add_u32 s{sOoff}, s{sOoff}, s{sF1}', f's_add_u32 s{sOoff}, s{sOoff}, {hex(WS_OA)}')
assert WS_OB - WS_OA == 1 << 21
def w_reads():
    for s in range(8):
        x = oW + 8 * s
        E(f'ds_read_b64_tr_b16 {vr(x,2)}, v{vTw0} offset:{s*2048}', f'ds_read_b64_tr_b16 {vr(x+2,2)}, v{vTw0} offset:{s*2048+1024}',
          f'ds_read_b64_tr_b16 {vr(x+4,2)}, v{vTw1} offset:{s*2048}', f'ds_read_b64_tr_b16 {vr(x+6,2)}, v{vTw1} offset:{s*2048+1024}')
    for q in range(1, 8): e(f'v_xor_b32 v{80+q}, {(2*q)<<4}, v{vTp}')
    e(f'v_xor_b32 v88, 16, v{vTr0}')
def o_loads(tag=None, gs=(0, 1, 2, 3)):
    if 0 in gs: E(f's_add_u32 s{sT1}, s{sOoff}, 4096', f's_add_u32 s{sT2}, s{sOoff}, 32768', f's_add_u32 s{sT3}, s{sOoff}, {32768+4096}')
    for g, so in enumerate((sOoff, sT1, sT2, sT3)):
        if g not in gs: continue
        for j in range(4):
            o = f' offset:{j*1024}' if j else ''
            e(f'buffer_load_dwordx4 {vr(oOf+16*g+4*j,4)}, v{vL16}, {sr(S_WS,4)}, s{so} offen{o} sc1', tag)

lab(f'{NAME}_kernel')
if STAMPS:
    for i in range(12): e(f's_mov_b32 s{sST+2*i}, 0')
stamp(0, 'all', 'head', 'tail', 'x', 'i0', 'i1', 'j0', 'j1', 'd')
for reg, off in ((S_XB,24),(S_WKV,40),(S_WV,48),(S_WQ,32),(S_DBG,72),(S_WS,80),(S_XA,0),(S_WQKV,8),(S_WOA,16),(S_WOB,56),(S_OUT,64)):
    e(f's_load_dwordx2 {sr(reg,2)}, s[0:1], {off}')
e(f's_memrealtime {sr(sNon,2)}')
E('s_cmp_ge_u32 s2, 256', 's_cbranch_scc1 L_end',
  f'v_lshrrev_b32 v{vT0}, 6, v0', 'v_and_b32 v0, 63, v0', f'v_readfirstlane_b32 s{sW}, v{vT0}',
  f's_and_b32 s{sT0}, s2, 7', f's_bfe_u32 s{sRot}, s2, 0x20003', f's_lshl_b32 s{sRB}, s{sT0}, 2',
  f's_add_u32 s{sRB}, s{sRB}, s{sRot}', f's_lshr_b32 s{sHG}, s2, 5',
  f'v_lshlrev_b32 v{vL16}, 4, v0', f'v_lshrrev_b32 v{vG}, 4, v0', f'v_lshrrev_b32 v{vT1}, 3, v0', f'v_and_b32 v{vT2}, 7, v0',
  f'v_xor_b32 v{vT3}, v{vT2}, v{vG}', f'v_lshlrev_b32 v{vT3}, 4, v{vT3}', f'v_lshl_add_u32 v{vP0}, v{vT1}, 10, v{vT3}',
  f'v_xor_b32 v{vP1}, 64, v{vP0}', f'v_add_u32 v{vP1}, {8192-1024}, v{vP1}', f'v_mov_b32 v{vZero}, 0',
  f's_xor_b32 s{sW}, s{sW}, 7', f's_lshl_b32 s{sRot}, s{sRot}, 1', f's_lshl_b32 s{sHG128}, s{sHG}, 7', f's_and_b32 s{sQ}, s{sW}, 3')
if opt('brx', 0): E(f's_lshr_b32 s{sT0}, s{sRB}, 2', f's_add_u32 s{sRot}, s{sRot}, s{sT0}', f's_and_b32 s{sRot}, s{sRot}, 7')
if opt('brh', 1): E(f's_add_u32 s{sRot}, s{sRot}, s{sHG}', f's_and_b32 s{sRot}, s{sRot}, 7')
if opt('hgx', 0): E(f's_xor_b32 s{sHG}, s{sHG}, {opt("hgx", 0)}', f's_lshl_b32 s{sHG128}, s{sHG}, 7')
srd(S_WS, WS_SIZE)
E(f's_cmp_lt_u32 s{sW}, 4', 's_cbranch_scc1 L_X')

cm('================ Y program (waves 4-7) ================')
aSa, aSb, aCa, aCb, aOa, aOb = 96, 112, 128, 144, 160, 176
aK, aV = 192, 56
vQa, vQb = 208, 212
vKa, vVa = 216, 217
srd(S_XB, 0x200000); srd(S_WKV, 0x4000)
vD0, vD1 = 218, 219
E(f's_lshr_b32 s{sT1}, s{sHG}, 1', f's_add_u32 s{sT1}, s{sT1}, s{sW}', f's_add_u32 s{sT1}, s{sT1}, 1', f's_and_b32 s{sT1}, s{sT1}, 3',
  f's_lshl_b32 s{sT2}, s{sT1}, 11',
  f's_lshl_b32 s{sT3}, s{sRB}, 2', f's_add_u32 s{sT3}, s{sT3}, s{sT1}', f's_lshl_b32 s{sT3}, s{sT3}, 14',
  f'v_add_u32 v{vD0}, s{sT3}, v{vP0}', f'v_add_u32 v{vD1}, s{sT3}, v{vP1}',
  f's_lshl_b32 s{sXo}, s{sRot}, 7',
  f's_cmp_lg_u32 s{sW}, 7', 's_cbranch_scc1 L_Yset')
def x_sub(s, tag):
    E(f's_add_u32 m0, s{sT2}, {s*16384}', f's_and_b32 s{sXo}, s{sXo}, 1023')
    dma(vD0, S_XB, f's{sXo}', 0, NT, tag); dma(vD1, S_XB, f's{sXo}', 1024, NT, tag)
E(f's_bitcmp1_b32 s{sHG}, 0', 's_waitcnt lgkmcnt(0)',
  f's_cselect_b32 s{S_WKV}, s{S_WV}, s{S_WKV}', f's_cselect_b32 s{S_WKV+1}, s{S_WV+1}, s{S_WKV+1}')
for s_ in range(8):
    x_sub(s_, None)
    E(f's_mov_b32 m0, {R+s_*2048}', f's_lshl_b32 s{sWo}, s{sXo}, 4')
    dma(vL16, S_WKV, f's{sWo}', 0, '', None); dma(vL16, S_WKV, f's{sWo}', 1024, '', None)
    if s_ < 7: e(f's_add_u32 s{sXo}, s{sXo}, 128')
e('s_barrier'); NBAR[0] -= 1
stamp(1, 'head')
lab('L_Yset')
lane_setup()
tail_setup()
E(f's_mov_b32 s{sVM}, 0xffff', f's_mov_b32 s{sVM+1}, 0xffff',
  f's_and_b32 s{sT0}, s{sRB}, 28', f's_add_u32 s{sT0}, s{sT0}, s{sQ}', f's_lshl_b32 s{sKVo}, s{sT0}, 12',
  f's_lshl_b32 s{sT0}, s{sT0}, 9', f's_add_u32 s{sT0}, s{sT0}, {hex(WS_FKV)}',
  f'v_and_b32 v{vPa}, 7, v0', f'v_lshlrev_b32 v{vPa}, 6, v{vPa}', f'v_add_u32 v{vPa}, s{sT0}, v{vPa}',
  f's_and_b32 s{sT0}, s{sW}, 1', f's_lshl_b32 s{sT1}, s{sRB}, 1', f's_add_u32 s{sT0}, s{sT0}, s{sT1}', f's_lshl_b32 s{sT0}, s{sT0}, 5',
  f's_lshl_b32 s{sT1}, s{sHG}, 2', f's_add_u32 s{sT0}, s{sT0}, s{sT1}', f's_and_b32 s{sT1}, s{sW}, 2', f's_add_u32 s{sT0}, s{sT0}, s{sT1}',
  f's_lshl_b32 s{sT0}, s{sT0}, 10', f's_add_u32 s{sOslot}, s{sT0}, {hex(WS_OB)}',
  f'v_add_u32 v{vKa}, {R+16384}, v{vL16}', f'v_lshlrev_b32 v{vVa}, 4, v{vI}', f'v_lshl_add_u32 v{vVa}, v{vH}, 8, v{vVa}', f'v_add_u32 v{vVa}, {R+16384}, v{vVa}',
  f'v_and_b32 v{vT1}, 27, v0', f'v_cmp_eq_u32 vcc, 16, v{vT1}', f'v_mov_b32 v{vT1}, {hex(ONEB)}', f's_cmp_eq_u32 s{sW}, 7', f'v_cndmask_b32 v{aV}, 0, v{vT1}, vcc',
  's_cbranch_scc1 L_Y7', 's_waitcnt lgkmcnt(0)')
if opt('cpf', 1):
    e('s_getpc_b64 s[0:1]')
    lab('L_pc')
    E(f's_sub_u32 s0, s0, L_pc-{NAME}_kernel', 's_subb_u32 s1, s1, 0',
      f's_lshr_b32 s{sT0}, s2, 3', f's_mul_i32 s{sT0}, s{sT0}, 3', f's_add_u32 s{sT0}, s{sT0}, s{sQ}', f's_lshl_b32 s{sT0}, s{sT0}, 8',
      f'v_lshlrev_b32 v{vF0}, 7, v0', f'v_add_u32 v{vF0}, s{sT0}, v{vF0}', f'v_min_u32 v{vF0}, L_code_end-{NAME}_kernel-4, v{vF0}', 's_mov_b64 exec, 3',
      f'global_load_dword v{vF1}, v{vF0}, s[0:1]', 's_mov_b64 exec, -1')
e('s_barrier')
for s_ in range(8):
    x_sub(s_, 'xb')
    if s_ < 7: e(f's_add_u32 s{sXo}, s{sXo}, 128')
stamp(1, 'head')
e('s_branch L_Yj')
lab('L_Y7')
E(f'v_lshrrev_b32 v{vT1}, 1, v{vI}', f'v_xor_b32 v{vT1}, v{vT1}, v{vG}', f'v_lshlrev_b32 v{vT1}, 4, v{vT1}', f'v_lshl_add_u32 v{vT1}, v{vI}, 7, v{vT1}',
  f'v_add_u32 v{vT0}, s{sT2}, v{vT1}', f'v_xor_b32 v{vT1}, 64, v{vT0}', f'v_add_u32 v{vT2}, 65536, v{vT0}', f'v_add_u32 v{vT3}, 65536, v{vT1}',
  f'v_lshlrev_b32 v{vF0}, 8, v{vG}', f'v_lshl_add_u32 v{vF0}, v{vI}, 3, v{vF0}', f'v_add_u32 v{vF0}, {R}, v{vF0}',
  f'v_and_b32 v{vF1}, 1, v{vG}', f'v_lshrrev_b32 v{vF2}, 1, v{vG}',
  f's_lshr_b32 s{sT0}, s{sHG}, 2', f's_lshl_b32 s{sC}, s{sRB}, 1', f's_add_u32 s{sT0}, s{sT0}, s{sC}', f's_lshl_b32 s{sT0}, s{sT0}, 11',
  f's_bfe_u32 s{sC}, s{sHG}, 0x10001',
  f's_lshl_b32 s{sT1}, s{sRB}, 3', f's_add_u32 s{sT1}, s{sT1}, s{sHG}', f's_lshl_b32 s{sOslot2}, s{sT1}, 3', f's_add_u32 s{sOslot2}, s{sOslot2}, {hex(WS_FD)}', f's_lshl_b32 s{sT1}, s{sT1}, 6', f's_add_u32 s{sK1}, s{sT1}, {hex(WS_FKV)}')
kd = 16
KF = 88
KF = 96 - 8
def kfr(u): return (96 + 8 * u) if u < 15 else 24
def kv_reads(s):
    a0, a1 = (vT0, vT1) if s < 4 else (vT2, vT3)
    o = (s & 3) * 16384
    x, y = kfr(2*s), kfr(2*s+1)
    E(f's_waitcnt vmcnt({28-4*s})',
      f'ds_read_b128 {vr(x,4)}, v{a0} offset:{o}', f'ds_read_b64_tr_b16 {vr(x+4,2)}, v{vF0} offset:{s*2048}', f'ds_read_b64_tr_b16 {vr(x+6,2)}, v{vF0} offset:{s*2048+128}',
      f'ds_read_b128 {vr(y,4)}, v{a1} offset:{o}', f'ds_read_b64_tr_b16 {vr(y+4,2)}, v{vF0} offset:{s*2048+1024}', f'ds_read_b64_tr_b16 {vr(y+6,2)}, v{vF0} offset:{s*2048+1152}')
for s_ in range(8): kv_reads(s_)
nonce_load()
stamp(2, 'head')
E(f's_bitcmp1_b32 s{sHG}, 0', f's_cselect_b32 s{sWo}, {f32(VSC) if "zv" not in XP else 0}, {"1.0" if "zk" not in XP else 0}', 's_cbranch_scc1 L_kv_v',
  f'v_lshlrev_b32 v{vF1}, 9, v{vF1}', f'v_lshl_add_u32 v{vF1}, v{vF2}, 3, v{vF1}', f's_lshl_b32 s{sC}, s{sC}, 8')
def kv_chain(swap):
    for u in range(16):
        x = kfr(u)
        if u == 0: e('s_waitcnt lgkmcnt(12)')
        if u == 12: e('s_waitcnt lgkmcnt(0)')
        a, b = (vr(x+4,4), vr(x,4))
        if swap: a, b = b, a
        d = kd + 4 * (u & 1)
        e(f'v_mfma_f32_16x16x32_bf16 {vr(d,4)}, {a}, {b}, {"0" if u < 2 else vr(d,4)}')
kv_chain(False)
e('s_branch L_kv_j')
lab('L_kv_v')
E(f'v_lshlrev_b32 v{vF1}, 3, v{vF1}', f'v_lshl_add_u32 v{vF1}, v{vF2}, 8, v{vF1}', f's_lshl_b32 s{sC}, s{sC}, 9', f's_add_u32 s{sC}, s{sC}, 1024')
kv_chain(True)
lab('L_kv_j')
E(f'v_lshl_add_u32 v{vF1}, v{vI}, 4, v{vF1}', f's_add_u32 s{sT0}, s{sT0}, s{sC}', 's_nop 5',
  f'v_pk_add_f32 {vr(kd,2)}, {vr(kd,2)}, {vr(kd+4,2)}', f'v_pk_add_f32 {vr(kd+2,2)}, {vr(kd+2,2)}, {vr(kd+6,2)}',
  f'v_mul_f32 v{kd}, s{sWo}, v{kd}', f'v_mul_f32 v{kd+1}, s{sWo}, v{kd+1}', f'v_mul_f32 v{kd+2}, s{sWo}, v{kd+2}', f'v_mul_f32 v{kd+3}, s{sWo}, v{kd+3}',
  f'v_cvt_pk_bf16_f32 v{vF2}, v{kd}, v{kd+1}', f'v_cvt_pk_bf16_f32 v{vF3}, v{kd+2}, v{kd+3}',
  f'buffer_store_dwordx2 {vr(vF2,2)}, v{vF1}, {sr(S_WS,4)}, s{sT0} offen sc1')
stamp(3, 'head')
lab('L_Yj')
if opt('ytc', 0):
    E(f's_bitcmp1_b32 s{sW}, 1', f's_cselect_b32 s{S_WOA}, s{S_WOB}, s{S_WOA}', f's_cselect_b32 s{S_WOA+1}, s{S_WOB+1}, s{S_WOA+1}',
      f's_mov_b32 s{S_WOA+2}, 0x80000', f's_mov_b32 s{S_WOA+3}, 0x20000',
      f's_lshr_b32 s{sT0}, s2, 3', f's_lshl_b32 s{sT0}, s{sT0}, 1', f's_and_b32 s{sT1}, s{sW}, 1', f's_add_u32 s{sT0}, s{sT0}, s{sT1}', f's_lshl_b32 s{sWoff}, s{sT0}, 13',
      f'v_lshlrev_b32 v{vD0}, 7, v0')
for i in range(1, 32): e(f'v_mov_b32 v{aV+i}, v{aV}')
for j in range(32): e(f'v_mov_b32 v{aOa+j}, 0')
E('s_waitcnt vmcnt(0)', f's_cmp_lg_u32 s{sW}, 7', 's_cbranch_scc1 L_flag_done')
flag_store('kv', f's{sK1}')
stamp(4, 'head')
lab('L_flag_done')
e('s_barrier')
stamp(5, 'head'); stamp(1, 'all', 'x')
EA = opt('ea', 20)
if EA: e('s_barrier')
if opt('psl', 0): e(f's_sleep {opt("psl", 0)}')
poll_check('kv', vPa, ['0'], [vFl], None)
stamp(6, 'head')
E(f's_add_u32 m0, s{sW4k}, {R+16384}', f's_mov_b32 s{sC}, 0')
for j in range(4): dma(vL16, S_WS, f's{sKVo}', 1024*j, ' sc1', None)
E(f's_setprio {opt("yp", 1)}', f's_cmp_lg_u32 s{sW}, 7', 's_waitcnt vmcnt(0)', 's_cbranch_scc1 L_nodense', 's_mov_b64 exec, 1',
  f'buffer_store_dwordx2 {vr(vNon,2)}, v{vZero}, {sr(S_WS,4)}, s{sOslot2} offen sc1', 's_mov_b64 exec, -1')
lab('L_nodense')
stamp(7, 'head'); stamp(2, 'all', 'x')
e('s_barrier')
stamp(8, 'head'); stamp(3, 'all', 'x'); stamp(1, 'tail')
cstamp(10)
E(f'ds_read_b128 {vr(vQa,4)}, v{vQx}', f'ds_read_b128 {vr(vQb,4)}, v{vQx} offset:1024',
  f'ds_read_b128 {vr(aK,4)}, v{vKa}', f'ds_read_b128 {vr(aK+4,4)}, v{vKa} offset:2048', f's_mov_b64 exec, {sr(sVM,2)}')
for j in range(4): e(f'ds_read_b128 {vr(aV+4*j,4)}, v{vVa} offset:{(j>>1)*2048+1024+(j&1)*512}')
E('s_mov_b64 exec, -1', 's_waitcnt lgkmcnt(5)',
  f'v_mfma_f32_32x32x16_bf16 {vr(aSa,16)}, {vr(aK,4)}, {vr(vQa,4)}, 0',
  f'v_mfma_f32_32x32x16_bf16 {vr(aSb,16)}, {vr(aK,4)}, {vr(vQb,4)}, 0', 's_nop 10')
maxtree([aSa+i for i in range(16)], vT0, vT1)
maxtree([aSb+i for i in range(16)], vT2, vT3)
E(f'v_permlane32_swap_b32 v{vT0}, v{vT1}', f'v_max_f32 v{vT0}, v{vT0}, v{vT1}', f'v_permlane32_swap_b32 v{vT2}, v{vT3}',
  f'v_sub_f32 v{aCa}, {f32(-MOFF)}, v{vT0}', f'v_max_f32 v{vT2}, v{vT2}, v{vT3}')
for i in range(1, 16): e(f'v_mov_b32 v{aCa+i}, v{aCa}')
E(f'v_sub_f32 v{aCb}, {f32(-MOFF)}, v{vT2}', f'v_mov_b32 v{aCb+1}, v{aCb}',
  f'v_mfma_f32_32x32x16_bf16 {vr(aSa,16)}, {vr(aK,4)}, {vr(vQa,4)}, {vr(aCa,16)}')
for i in range(2, 16): e(f'v_mov_b32 v{aCb+i}, v{aCb}')
if opt('ytc', 0): e(f'buffer_load_dword v{vD1}, v{vD0}, {sr(S_WOA,4)}, s{sWoff} offen')
E('s_waitcnt lgkmcnt(0)', f'v_exp_f32 v{aSa}, v{aSa}', f'v_exp_f32 v{aSa+1}, v{aSa+1}', 's_branch L_att_entry')

def dtile(par, ld_off, entry=False):
    K = aK + 8 * par; Kn = aK + 8 * (par ^ 1)
    V = aV + 16 * par; Vn = aV + 16 * (par ^ 1)
    def ex(S, a, b):
        for i in range(a, b): e(f'v_exp_f32 v{S+i}, v{S+i}')
    def pv(O, Vr, P):
        if 'nopv' in XP: return
        if 'pvhalf' in XP and (P in (aSa, aSb)): return
        e(f'v_smfmac_f32_32x32x32_bf16 {vr(O,16)}, {vr(Vr,4)}, {vr(P,8)}, v{vIdx}')
    def qk(S, Kr, Q, C): e(f'v_mfma_f32_32x32x16_bf16 {vr(S,16)}, {vr(Kr,4)}, {vr(Q,4)}, {vr(C,16)}')
    P1, P2, P3 = [int(c, 16) for c in opt('pos', '25a')]
    LDV = opt('ldv', 0)
    ex(aSa, 0, 2)
    if entry and P1 > 2: pass
    pv(aOb, Vn+12, aSb+8)
    if entry: lab('L_att_entry')
    def vld(js):
        e(f's_mov_b64 exec, {sr(sVM,2)}')
        for j in js: e(f'ds_read_b128 {vr(Vn+4*j,4)}, v{vVa} offset:{ld_off+(j>>1)*2048+1024+(j&1)*512}')
        e('s_mov_b64 exec, -1')
    def kld(j): e(f'ds_read_b128 {vr(Kn+4*j,4)}, v{vKa} offset:{ld_off+2048*j}')
    if LDV == 0: vld(range(4))
    ex(aSa, 2, P2); qk(aSb, K, vQb, aCb)
    if LDV == 0: kld(0); kld(1)
    if LDV == 1: kld(0)
    ex(aSa, P2, P3); pv(aOa, V, aSa)
    if LDV == 1: vld(range(4))
    if LDV == 2: vld(range(4)); kld(0); kld(1)
    ex(aSa, P3, 16)
    ex(aSb, 0, P1); pv(aOa, V+4, aSa+8); ex(aSb, P1, P2); qk(aSa, K+4, vQa, aCa); ex(aSb, P2, P3); pv(aOb, V, aSb)
    if LDV == 1: kld(1)
    ex(aSb, P3, 16)
    ex(aSa, 0, P1); pv(aOb, V+4, aSb+8); ex(aSa, P1, P2); qk(aSb, K+4, vQb, aCb); ex(aSa, P2, P3); pv(aOa, V+8, aSa); ex(aSa, P3, 16)
    ex(aSb, 0, P1); pv(aOa, V+12, aSa+8); e('s_waitcnt lgkmcnt(0)'); ex(aSb, P1, P2); qk(aSa, Kn, vQa, aCa); ex(aSb, P2, P3); pv(aOb, V+8, aSb); ex(aSb, P3, 16)

e('.p2align 6')
lab('L_att_top')
E(f'v_xor_b32 v{vKa}, 16384, v{vKa}', f'v_xor_b32 v{vVa}, 16384, v{vVa}', f's_cmp_eq_u32 s{sC}, 8', 's_barrier')
dtile(1, 0)
e('s_cbranch_scc1 L_att_done')
dtile(0, 4096, entry=True)
if opt('nomid', 0): NBAR[0] += 1
else: e('s_barrier')
dtile(1, 8192)
dtile(0, 12288)
E(f's_add_u32 s{sC}, s{sC}, 1', 's_branch L_att_top')
NBAR_Y = NBAR[0] - 2 + 16
lab('L_att_done')
E(f'ds_read_b32 v{vFl}, v{vKa}', f'v_smfmac_f32_32x32x32_bf16 {vr(aOb,16)}, {vr(aV+16+12,4)}, {vr(aSb+8,8)}, v{vIdx}')
stamp(4, 'all'); stamp(2, 'tail')
cstamp(11)
def chk(O, t):
    E(f'v_maximum3_f32 v{t}, abs(v{O}), abs(v{O+1}), abs(v{O+2})', f'v_maximum3_f32 v{t}, v{t}, abs(v{O+3}), abs(v{O+4})',
      f'v_maximum3_f32 v{t}, v{t}, abs(v{O+5}), abs(v{O+6})', f'v_maximum3_f32 v{t}, v{t}, abs(v{O+7}), v{O+8}')
def fin(O, t, d):
    for i in range(0, 8, 2): e(f'v_pk_mul_f32 {vr(d+4+i,2)}, {vr(O+i,2)}, {vr(t,2)} op_sel_hi:[1,0]')
    for i in range(4): e(f'v_cvt_pk_bf16_f32 v{d+i}, v{d+4+2*i}, v{d+4+2*i+1}')
lab('L_att_fin')
PADON[0] = opt('pad', 0); PADCNT[0] = 1000
E(f'v_rcp_f32 v{vT0}, v{aOa+8}', f's_mov_b32 s{sT0}, 0x7e000000')
chk(aOa, vT1)
fin(aOa, vT0, 16)
E(f'v_rcp_f32 v{vT2}, v{aOb+8}', 's_waitcnt lgkmcnt(0)', f'v_readfirstlane_b32 s{sT1}, v{vFl}')
chk(aOb, vT3)
fin(aOb, vT2, 28)
E(f'v_maximum3_f32 v{vT1}, v{vT1}, v{vT3}, v{vT3}', f'v_cmp_nle_f32 vcc, v{vT1}, s{sT0}'.replace('vcc, v', 'vcc, v'), f's_cmp_eq_u32 s{sT1}, 1', 's_cbranch_vccnz L_fallback' if 'nofb' not in XP else 's_nop 0')
lab('L_att_ok')
E('s_cbranch_scc0 L_st_slow',
  f'buffer_store_dwordx4 {vr(16,4)}, v{vL16}, {sr(S_WS,4)}, s{sOslot} offen',
  f'buffer_store_dwordx4 {vr(28,4)}, v{vL16}, {sr(S_WS,4)}, s{sOslot} offen offset:1024')
lab('L_st_j')
stamp(3, 'tail')
w_reads()
e(f's_mov_b32 s{sSpin}, {SPIN//10}')
if opt('tslp', 0): e(f's_sleep {opt("tslp", 0)}')
stamp(4, 'tail')
NPRE = opt('npre', 2)
o_loads(None, range(NPRE))
e(f's_mov_b32 s{sC}, 2')

cm('================ tail: out projections (X: branch A, Y: branch B) ================')
lab('L_tail_go')
e('s_waitcnt lgkmcnt(0)')
for g in range(4):
    rt = g >> 1
    b_ = oOf + 16 * g
    e(f's_waitcnt vmcnt({4*(min(4, NPRE+g)-g-1)})')
    lab(f'L_tg{g}')
    E(f'v_max3_u32 v{vT0}, v{b_}, v{b_+1}, v{b_+2}', f'v_max3_u32 v{vT1}, v{b_+3}, v{b_+4}, v{b_+5}')
    for k in range(6, 16, 2):
        t = vT0 if (k >> 1) & 1 else vT1
        e(f'v_max3_u32 v{t}, v{t}, v{b_+k}, v{b_+k+1}')
    E(f'v_max_u32 v{vT0}, v{vT0}, v{vT1}', f'v_cmp_eq_u32 vcc, -1, v{vT0}', f's_cbranch_vccnz L_tr{g}')
    lab(f'L_tk{g}')
    if g == 0: stamp(5, 'tail', 'all')
    if NPRE + g < 4: o_loads(None, [NPRE + g])
    if g == 2: e('s_barrier')
    order = [(s_, ct) for s_ in range(4*(g&1), 4*(g&1)+4) for ct in range(2)]
    if g == 3: order = sorted(order, key=lambda z: z[1])
    for m_, (s_, ct) in enumerate(order):
        a_ = oAcc + 32 * rt + 16 * ct
        e(f'v_mfma_f32_32x32x16_bf16 {vr(a_,16)}, {vr(oW+8*s_+4*ct,4)}, {vr(oOf+32*rt+4*s_,4)}, {"0" if s_ == 0 else vr(a_,16)}')
        if g == 2:
            e(f'ds_write_b128 v{80+m_ if m_ else vTp}, {vr(oAcc+4*m_,4)}')
e('s_nop 7')
PADON[0] = False
lab('L_tail_wr')
stamp(6, 'tail')
for q in range(8):
    e(f'ds_write_b128 v{80+q if q else vTp}, {vr(oAcc+32+4*q,4)} offset:8192')
E('s_waitcnt lgkmcnt(0)', 's_barrier')
stamp(7, 'tail')
lab('L_red')
tR = 96
for kq in range(4):
    E(f'ds_read_b128 {vr(tR+8*kq,4)}, v{vTr0} offset:{kq*16384}', f'ds_read_b128 {vr(tR+8*kq+4,4)}, v88 offset:{kq*16384}')
e('s_waitcnt lgkmcnt(4)')
for i in range(0, 8, 2): e(f'v_pk_add_f32 {vr(tR+i,2)}, {vr(tR+i,2)}, {vr(tR+8+i,2)}')
e('s_waitcnt lgkmcnt(0)')
for a_, b_ in ((16, 24), (0, 16)):
    for i in range(0, 8, 2): e(f'v_pk_add_f32 {vr(tR+a_+i,2)}, {vr(tR+a_+i,2)}, {vr(tR+b_+i,2)}')
for i in range(4): e(f'v_cvt_pk_bf16_f32 v{16+i}, v{tR+2*i}, v{tR+2*i+1}')
e(f'buffer_store_dwordx4 {vr(16,4)}, v{vTo}, {sr(S_OUT,4)}, s{sOutOff} offen{opt("of", "_nt").replace("_", " ")}')
E(f's_cmp_eq_u32 s{sC}, 2', 's_cbranch_scc1 L_fin',
  f's_add_u32 s{sC}, s{sC}, 1', f's_cmp_eq_u32 s{sC}, 1', f's_cselect_b32 s{sT0}, 1, 8', f's_cselect_b32 s{sT1}, 64, 1', f's_lshl_b32 s{sT1}, s{sT1}, 10', f's_lshl_b32 s{sT0}, s{sT0}, 13',
  f'v_add_u32 v{vTr0}, s{sT0}, v{vTr0}', f'v_add_u32 v88, s{sT0}, v88', f's_add_u32 s{sOutOff}, s{sOutOff}, s{sT1}',
  f's_cmp_eq_u32 s{sC}, 1', 's_cbranch_scc1 L_red', 's_barrier', 's_branch L_red')
lab('L_fin')
if STAMPS:
    stamp(8, 'tail')
    e('s_waitcnt vmcnt(0)')
    stamp(9, 'tail', 'head'); stamp(6, 'all')
    E('s_waitcnt lgkmcnt(0)', 's_nop 1')
    ECHO = [a[7:] for a in sys.argv if a.startswith('--echo=')]
    if ECHO:
        a_, b_, mul = map(int, ECHO[0].split(','))
        E(f's_sub_u32 s{sT0}, s{sST+2*b_}, s{sST+2*a_}', f's_mul_i32 s{sT0}, s{sT0}, {mul}')
        if opt('ehg', -1) >= 0:
            E(f's_cmp_eq_u32 s{sHG}, {opt("ehg", -1)}', f's_cselect_b32 s{sT0}, s{sT0}, 0', f's_cmp_ge_u32 s{sW}, 4' if STMODE == 'all' else f's_cmp_lt_u32 s{sW}, 4', f's_cselect_b32 s{sT0}, s{sT0}, 0')
        if opt('erole', ''):
            E({'x': f's_cmp_lt_u32 s{sW}, 4', 'y': f's_cmp_ge_u32 s{sW}, 4', 'k': f's_cmp_eq_u32 s{sW}, 7'}[opt('erole', '')], f's_cselect_b32 s{sT0}, s{sT0}, 0')
        E(f's_memrealtime {sr(6,2)}', 's_waitcnt lgkmcnt(0)')
        lab('L_echo')
        E(f's_memrealtime {sr(4,2)}', 's_waitcnt lgkmcnt(0)', f's_sub_u32 s{sT1}, s4, s6', f's_cmp_lt_u32 s{sT1}, s{sT0}', 's_cbranch_scc1 L_echo')
    for i in range(12): e(f'v_mov_b32 v{16+i}, s{sST+2*i}')
    E(f's_getreg_b32 s{sT0}, hwreg(HW_REG_XCC_ID)', f'v_mov_b32 v28, s{sT0}', f'v_mov_b32 v29, s{sSpin}', f'v_mov_b32 v30, s{sFB}', 'v_mov_b32 v31, 0',
      f's_lshl_b32 s{sT0}, s2, 3', f's_add_u32 s{sT0}, s{sT0}, s{sW}', f's_lshl_b32 s{sT0}, s{sT0}, 6', f's_add_u32 s{sT0}, s{sT0}, {hex(WS_STAMP)}',
      'v_mov_b32 v0, 0', 's_mov_b64 exec, 1')
    for i in range(4):
        e(f'buffer_store_dwordx4 {vr(16+4*i,4)}, v0, {sr(S_WS,4)}, s{sT0} offen offset:{16*i}')
lab('L_end')
e('s_endpgm')

cm('================ X program (waves 0-3) ================')
VMQ[:] = []; NBAR[0] = 0
xAcc, xFr, xMask = 96, 160, 32
xa, xb, xw = 56, 60, 64
(xFw, xLq, xLv, xLvp, xOne) = (72, 73, 74, 75, 76)
XV, XM, PACE = opt('xv', 2), opt('xm', 0), opt('pace', 2)
e('.p2align 6')
lab('L_X')
srd(S_WQ, 0x80000); srd(S_XA, 0x200000); srd(S_WQKV, 0x180000)
E(f's_or_b32 s{sT1}, s2, s{sW}', 's_cbranch_scc1 L_nonon', 's_waitcnt lgkmcnt(0)',
  f's_lshl_b64 {sr(sNon,2)}, {sr(sNon,2)}, 5', f's_or_b32 s{sNon}, s{sNon}, 1', f'v_mov_b32 v{vNon}, s{sNon}', f'v_mov_b32 v{vNon+1}, s{sNon+1}', 's_mov_b64 exec, 1',
  f'global_store_dwordx2 v{vZero}, {vr(vNon,2)}, {sr(S_DBG,2)} sc1', 's_mov_b64 exec, -1')
lab('L_nonon')
E(f'v_and_b32 v{vT3}, 1, v{vG}', f'v_lshlrev_b32 v{vT3}, 2, v{vT3}', f'v_xor_b32 v{vT3}, v{vT3}, v{vT2}', f'v_lshlrev_b32 v{vT3}, 4, v{vT3}',
  f'v_lshl_add_u32 v{vW}, v{vT1}, 10, v{vT3}', f'v_add_u32 v{vW2}, {8192-1024}, v{vW}',
  f'v_mul_u32_u24 v{vWA}, 3072, v{vT1}', f'v_add_u32 v{vWA}, v{vWA}, v{vT3}')
lane_setup()
SH4 = ['0', f's{sVM}', f's{sVM+1}', f's{sC}']; RG4 = [82, 84, 86, 88]
qx, qw = 56, 64
E(f'v_bfe_u32 v{vXx}, v{vN}, 1, 3', f'v_xor_b32 v{vXx}, v{vXx}, v{vH}', f'v_lshlrev_b32 v{vXx}, 4, v{vXx}',
  f's_and_b32 s{sF0}, s{sW}, 1', f's_lshl_b32 s{sF0}, s{sF0}, 12', f'v_lshl_add_u32 v{qx}, v{vN}, 7, v{vXx}', f'v_add_u32 v{qx}, s{sF0}, v{qx}',
  f'v_xor_b32 v{qx+1}, 32, v{qx}', f'v_xor_b32 v{qx+2}, 64, v{qx}', f'v_xor_b32 v{qx+3}, 96, v{qx}',
  f's_and_b32 s{sF2}, s{sW}, 2', f's_lshl_b32 s{sF2}, s{sF2}, 5', f'v_xor_b32 v{qw}, s{sF2}, v{vWl}', f'v_add_u32 v{qw}, 8192, v{qw}', f'v_add_u32 v{qw+1}, 65536, v{qw}',
  f's_mov_b32 s{sCS}, {f32(CSCALE)}')
for j in range(4): e(f'v_add_u32 v{qx+4+j}, 65536, v{qx+j}')
AR = opt('arot', 0)
if AR == 1: E(f's_add_u32 s{sXo}, s{sRot}, s{sHG}', f's_and_b32 s{sXo}, s{sXo}, 7', f's_lshl_b32 s{sXo}, s{sXo}, 7')
elif AR == 2: E(f's_lshr_b32 s{sXo}, s{sRB}, 2', f's_lshl_b32 s{sXo}, s{sXo}, 7')
elif AR == 3: E(f's_lshr_b32 s{sXo}, s{sRB}, 2', f's_lshl_b32 s{sT0}, s{sRB}, 2', f's_add_u32 s{sXo}, s{sXo}, s{sT0}', f's_and_b32 s{sXo}, s{sXo}, 7', f's_lshl_b32 s{sXo}, s{sXo}, 7')
elif AR == 4: E(f's_and_b32 s{sXo}, s{sRB}, 1', f's_lshl_b32 s{sXo}, s{sXo}, 9')
else: e(f's_mov_b32 s{sXo}, 0')
E(f's_lshl_b32 s{sW2k}, s{sW}, 11',
  f's_lshl_b32 s{sT3}, s{sRB}, 2', f's_add_u32 s{sT0}, s{sT3}, s{sW}', f's_lshl_b32 s{sT0}, s{sT0}, 14', f'v_add_u32 v{vXA}, s{sT0}, v{vP0}', f'v_add_u32 v{vXA2}, s{sT0}, v{vP1}',
  f's_mul_i32 s{sT0}, s{sW}, {16*3072}', f's_add_u32 s{sT0}, s{sT0}, s{sHG128}', f'v_add_u32 v{vWA}, s{sT0}, v{vWA}', f'v_add_u32 v{vWA2}, {8*3072-1024}, v{vWA}')
def w64(srd_, lds_base_sgpr, lds, tag):
    for hf in range(2):
        E(f's_add_u32 m0, s{lds_base_sgpr}, {lds+hf*4096}', f's_add_u32 s{sT1}, s{sT0}, {2*7168}')
        dma(vW, srd_, f's{sT0}', 0, '', tag); dma(vW2, srd_, f's{sT0}', 1024, '', tag)
        dma(vW, srd_, f's{sT1}', 2048, '', tag); dma(vW2, srd_, f's{sT1}', 3072, '', tag)
        if hf == 0: e(f's_add_u32 s{sT0}, s{sT0}, 32768')
vTc = 68
def touch_setup():
    E(f's_lshr_b32 s{sT0}, s2, 3', f's_lshl_b32 s{sT0}, s{sT0}, 2', f's_add_u32 s{sT0}, s{sT0}, s{sW}',
      f's_mul_i32 s{sT1}, s{sT0}, {12*128}', f'v_mul_u32_u24 v{vTc}, {196608}, v{vG}', f'v_lshl_add_u32 v{vTc}, v{vI}, 7, v{vTc}', f'v_add_u32 v{vTc}, s{sT1}, v{vTc}',
      f's_lshl_b32 s{sT1}, s{sT0}, 12', f'v_lshlrev_b32 v{vTc+1}, 7, v{vN}', f'v_add_u32 v{vTc+1}, s{sT1}, v{vTc+1}',
      f's_lshl_b32 s{sT1}, s{sHG}, 2', f's_add_u32 s{sT1}, s{sT1}, s{sW}', f's_lshl_b32 s{sT1}, s{sT1}, 11', f's_lshl_b32 s{sT2}, s{sRB}, 16', f's_add_u32 s{sT1}, s{sT1}, s{sT2}',
      f'v_lshlrev_b32 v{vTc+2}, 7, v{vI}', f'v_add_u32 v{vTc+2}, s{sT1}, v{vTc+2}')
def touch_w(j):
    E(f's_mov_b32 s{sT0}, {j*4*196608}', 's_mov_b32 exec_lo, 0x0fff0fff', 's_mov_b32 exec_hi, 0x0fff0fff')
    e(f'buffer_load_dword v{vTc+3}, v{vTc}, {sr(S_WQKV,4)}, s{sT0} offen', 'tc')
    e('s_mov_b64 exec, -1')
def touch_x():
    e('s_mov_b64 exec, 0xffff')
    e(f'buffer_load_dword v{vTc+3}, v{vTc+2}, {sr(S_XA,4)}, 0 offen{NT}', 'tc')
    e('s_mov_b64 exec, -1')
def touch_wo(srd_):
    e('s_mov_b32 exec_hi, 0')
    e(f'buffer_load_dword v{vTc+3}, v{vTc+1}, {sr(srd_,4)}, 0 offen', 'tc')
    e('s_mov_b64 exec, -1')
TC = opt('tc', 0)
def halo_fill():
    E(f's_lshl_b32 s{sT3}, s{sRB}, 16', f's_sub_u32 s{sT2}, s{sT3}, 16384', f's_max_i32 s{sT2}, s{sT2}, 0',
      f's_lshl_b32 s{sT0}, s{sW}, 7', f's_add_u32 s{sT0}, s{sT0}, s{sStepH}')
    for j in range(2):
        E(f's_and_b32 s{sT0}, s{sT0}, 1023', f's_add_u32 m0, s{sW2k}, {HALO+j*8192}', f's_add_u32 s{sT1}, s{sT2}, s{sT0}')
        dma(vP0, S_XA, f's{sT1}', 0, '', 'halo'); dma(vP1, S_XA, f's{sT1}', 1024, '', 'halo')
        if j == 0: e(f's_add_u32 s{sT0}, s{sT0}, 512')
def a_fill(c):
    slot = (c & 3) * SLOT
    t = f'A{c}'
    E(f's_add_u32 m0, s{sW2k}, {slot}', f's_mul_i32 s{sWo}, s{sXo}, 1536')
    dma(vXA, S_XA, f's{sXo}', 0, NT, t); dma(vXA2, S_XA, f's{sXo}', 1024, NT, t)
    for ty in range(3):
        E(f's_add_u32 m0, s{sW2k}, {slot+8192+ty*8192}', [f's_add_u32 s{sXo}, s{sXo}, 128', f's_add_u32 s{sWo}, s{sWo}, 1024', f's_add_u32 s{sWo}, s{sWo}, 1024'][ty])
        dma(vWA, S_WQKV, f's{sWo}', 0, WNT, t); dma(vWA2, S_WQKV, f's{sWo}', 1024, WNT, t)
    e(f's_and_b32 s{sXo}, s{sXo}, 1023')
def kv_fill(k):
    E(f's_add_u32 m0, s{sW4k}, {R+((k&1)^1)*16384}', f's_and_b32 s{sKVo}, s{sKVo}, 0x1ffff')
    for j in range(4): dma(vL16, S_WS, f's{sKVo}', 1024*j, ' sc1', f'KV{k}')
    e(f's_add_u32 s{sKVo}, s{sKVo}, 16384')
def wo_fill(srd_, half, lds, tag):
    e(f's_add_u32 s{sT0}, s{sWoff}, {half*256*1024}')
    if opt('woc', 1): return wcoop(srd_, 4, lds, 8192, tag)
    if opt('worot', 1): e(f's_and_b32 s{sT0}, s{sT0}, 0x7ffff')
    w64(srd_, sW8k, lds, tag)
def masks():
    E(f'v_lshlrev_b32 v{vT0}, 2, v{vH}', f'v_sub_u32 v{vT0}, v{vN}, v{vT0}', f'v_add_u32 v{vT0}, 18, v{vT0}',
      f'v_mov_b32 v{vT2}, 0x5555', f'v_mov_b32 v{vT3}, 0', f'v_lshlrev_b64 {vr(vT2,2)}, v{vT0}, {vr(vT2,2)}',
      f'v_not_b32 v{vT2}, v{vT2}', f'v_not_b32 v{vT3}, v{vT3}', f's_mov_b32 s{sF1}, 0xff800000')
    for r in range(16): E(f'v_bfe_i32 v{xMask+r}, v{vT3}, {8*(r>>2)+(r&3)}, 1', f'v_and_b32 v{xMask+r}, s{sF1}, v{xMask+r}')
    for r in range(8, 16): E(f'v_bfe_i32 v{xMask+8+r}, v{vT2}, {8*(r>>2)+(r&3)}, 1', f'v_and_b32 v{xMask+8+r}, s{sF1}, v{xMask+8+r}')
def local_setup():
    E(f's_and_b32 s{sT0}, s{sW}, 1', f's_lshl_b32 s{sT0}, s{sT0}, 12', f's_lshr_b32 s{sT1}, s{sW}, 1', f's_lshl_b32 s{sT2}, s{sT1}, 11', f's_add_u32 s{sT0}, s{sT0}, s{sT2}', f's_add_u32 s{sT0}, s{sT0}, {SC}', f'v_add_u32 v{xFw}, s{sT0}, v{vL16}',
      f's_lshl_b32 s{sT0}, s{sRB}, 3', f's_add_u32 s{sT0}, s{sT0}, s{sHG}', f's_lshl_b32 s{sStepA}, s{sT0}, 13', f's_add_u32 s{sStepA}, s{sStepA}, s{sT2}', f's_add_u32 s{sStepA}, s{sStepA}, {hex(WS_HX)}',
      f's_lshl_b32 s{sStepB}, s{sT0}, 1', f's_add_u32 s{sStepB}, s{sStepB}, s{sT1}', f's_lshl_b32 s{sStepB}, s{sStepB}, 6', f's_add_u32 s{sStepB}, s{sStepB}, {hex(WS_FHX)}',
      f's_cmp_eq_u32 s{sRB}, 0', f's_cselect_b32 s{sT2}, 0, 8', f's_sub_u32 s{sT0}, s{sT0}, s{sT2}', f's_lshl_b32 s{sT2}, s{sT2}, 7', f's_sub_u32 s{sT2}, s{sStepB}, s{sT2}', f'v_mov_b32 v{vB1}, s{sT2}',
      f's_lshl_b32 s{sStepH}, s{sT0}, 13', f's_lshl_b32 s{sT2}, s{sW}, 10', f's_add_u32 s{sStepH}, s{sStepH}, s{sT2}', f's_add_u32 s{sStepH}, s{sStepH}, {hex(WS_HX)}',
      f'v_mov_b32 v{xOne}, 0x3f803f80', f'v_mov_b32 v{xOne+1}, 0x3f803f80',
      f's_lshl_b32 s{sT1}, s{sW}, 10', f's_add_u32 s{sT2}, s{sT1}, {ONES}', f's_add_u32 s{sT1}, s{sT1}, {SC}', f'v_add_u32 v{xLq}, s{sT1}, v{vL16}',
      f'v_and_b32 v{vT0}, 1, v0', f'v_lshlrev_b32 v{vT0}, 5, v{vT0}', f'v_lshl_add_u32 v{vT0}, v{vH}, 3, v{vT0}',
      f'v_lshrrev_b32 v{vT1}, 2, v{vI}', f'v_add_u32 v{vT0}, v{vT0}, v{vT1}', f'v_lshlrev_b32 v{vT0}, 4, v{vT0}', f'v_and_b32 v{vT1}, 2, v0', f'v_lshl_add_u32 v{vT0}, v{vT1}, 2, v{vT0}',
      f'v_add_u32 v{xLv}, s{sT1}, v{vT0}', f'v_mov_b32 v{xLvp}, s{sT2}', f'v_lshl_add_u32 v{vOw}, v0, 3, v{xLvp}',
      f'v_and_b32 v{vT0}, 16, v0', f'v_cmp_ne_u32 vcc, 0, v{vT0}',
      f'v_add_u32 v78, {4*4096}, v{xLv}', f'v_add_u32 v79, {5*4096}, v{xLv}', f'v_add_u32 v80, {7*4096}, v{xLv}',
      f'v_cndmask_b32 v78, v78, v{xLvp}, vcc', f'v_cndmask_b32 v79, v79, v{xLvp}, vcc', f'v_cndmask_b32 v80, v80, v{xLvp}, vcc',
      f's_lshl_b32 s{sT0}, s{sRB}, 6', f's_lshl_b32 s{sT1}, s{sHG}, 2', f's_add_u32 s{sT1}, s{sT1}, s{sW}', f's_add_u32 s{sT0}, s{sT0}, s{sT1}',
      f's_lshl_b32 s{sT0}, s{sT0}, 10', f's_add_u32 s{sOslot}, s{sT0}, {hex(WS_OA)}', f's_add_u32 s{sOslot2}, s{sOslot}, 32768',
      f's_lshl_b32 s{sT0}, s{sRB}, 5', f's_add_u32 s{sT0}, s{sT0}, s{sT1}', f's_lshl_b32 s{sT0}, s{sT0}, 6', f's_add_u32 s{sK1}, s{sT0}, {hex(WS_FOA)}')
    for i in range(4): e(f'v_mov_b32 v{vF0+i}, -1')
def sentinels():
    E(f's_add_u32 s{sT0}, s{sOslot}, {hex(WS_OB-WS_OA)}', f's_add_u32 s{sT1}, s{sT0}, 32768')
    e(f'buffer_store_dwordx4 {vr(vF0,4)}, v{vL16}, {sr(S_WS,4)}, s{sT0} offen sc1', 'sent')
    e(f'buffer_store_dwordx4 {vr(vF0,4)}, v{vL16}, {sr(S_WS,4)}, s{sT1} offen sc1', 'sent')
    nonce_load('sent')
def setup_a():
    E(f's_cmp_eq_u32 s{sW}, 3', f's_cselect_b32 s{sT1}, 15, 31', f'v_and_b32 v{vT0}, s{sT1}, v{vN}', f'v_lshl_add_u32 v{xa}, v{vT0}, 7, v{vXx}',
      f's_cselect_b32 s{sT1}, {HALO}, 0', f'v_add_u32 v{xa}, s{sT1}, v{xa}', f's_cselect_b32 s{sT1}, 0, 4096', f'v_add_u32 v{xb}, s{sT1}, v{xa}',
      f's_cselect_b32 s{sStepA}, 1, 16', f's_cselect_b32 s{sStepB}, 1, -32', f's_cselect_b32 s{sT1}, 1, s{sW}', f's_cselect_b32 s{sT2}, 2, s{sW}',
      f's_lshl_b32 s{sStepA}, s{sStepA}, 11', f's_lshl_b32 s{sStepB}, s{sStepB}, 11',
      f's_lshl_b32 s{sT1}, s{sT1}, 13', f's_add_u32 s{sT1}, s{sT1}, 8192', f'v_add_u32 v{xw}, s{sT1}, v{vWl}', f'v_xor_b32 v{xw+1}, 64, v{xw}',
      f's_lshl_b32 s{sT2}, s{sT2}, 13', f's_add_u32 s{sT2}, s{sT2}, 8192', f'v_add_u32 v{xw+2}, s{sT2}, v{vWl}', f'v_xor_b32 v{xw+3}, 64, v{xw+2}')
    for j in range(4): e(f'v_add_u32 v{xw+4+j}, 65536, v{xw+j}')
    for s_ in range(1, 4): E(f'v_xor_b32 v{xa+s_}, {32*s_}, v{xa}', f'v_xor_b32 v{xb+s_}, {32*s_}, v{xb}')
def setup_b():
    E(f's_lshr_b32 s{sT1}, s{sRB}, 2', f's_lshl_b32 s{sKVo}, s{sT1}, 14', f's_add_u32 s{sKVo}, s{sKVo}, s{sW4k}', f's_add_u32 s{sKVo}, s{sKVo}, 16384',
      f'v_lshlrev_b32 v{vPa}, 3, v0', f'v_add_u32 v{vPa}, {hex(WS_FD)}, v{vPa}',
      f'v_lshlrev_b32 v{vPa2}, 6, v{vN}', f's_lshl_b32 s{sT2}, s{sRB}, 11', f's_add_u32 s{sT2}, s{sT2}, {hex(WS_FOA)}', f'v_add_u32 v{vPa2}, s{sT2}, v{vPa2}',
      f's_add_u32 s{sT2}, s{sT1}, 1', f's_lshl_b32 s{sT2}, s{sT2}, 5', f'v_add_u32 v{vB0}, s{sT2}, v0', f'v_and_b32 v{vB0}, 255, v{vB0}',
      f'v_lshlrev_b32 v{vB0}, 6, v{vB0}', f'v_add_u32 v{vB0}, {hex(WS_FKV)}, v{vB0}',
      f's_mov_b32 s{sVM}, 512', f's_mov_b32 s{sVM+1}, 1024', f's_mov_b32 s{sC}, 1536',
      f's_lshl_b32 s{sW8k}, s{sW}, 13', f's_lshl_b32 s{sWoff}, s{sW}, {14 if opt("woc", 1) else 16}', f's_add_u32 s{sWoff}, s{sWoff}, s{sHG128}')
    if opt('worot', 1): E(f's_lshl_b32 s{sT2}, s{sRB}, 17', f's_add_u32 s{sWoff}, s{sWoff}, s{sT2}')
    srd(S_WOA, 0x80000); srd(S_WOB, 0x80000)
    E(f's_getreg_b32 s{sXcc}, hwreg(HW_REG_XCC_ID, 0, 4)', f's_lshl_b32 s{sXcc}, s{sXcc}, 1')
setup_b()
def wcoop(srd_, n, lds, ldstep, tag):
    for j in range(n):
        E(f's_add_u32 m0, s{sW2k}, {lds+j*ldstep}', f's_and_b32 s{sT0}, s{sT0}, 0x7ffff')
        dma(vW, srd_, f's{sT0}', 0, '', tag); dma(vW2, srd_, f's{sT0}', 1024, '', tag)
        if j < n - 1: e(f's_add_u32 s{sT0}, s{sT0}, 65536')
if opt('wqc', 1):
    E(f's_lshl_b32 s{sT0}, s{sRot}, 16', f's_lshl_b32 s{sT2}, s{sW}, 14', f's_add_u32 s{sT0}, s{sT0}, s{sT2}', f's_add_u32 s{sT0}, s{sT0}, s{sHG128}',
      's_waitcnt lgkmcnt(0)', 's_barrier')
    wcoop(S_WQ, 8, 8192, 16384, 'B')
else:
    E(f's_add_u32 s{sT0}, s{sW}, s{sRot}', f's_lshl_b32 s{sT0}, s{sT0}, 16', f's_add_u32 s{sT0}, s{sT0}, s{sHG128}', f's_lshl_b32 s{sT2}, s{sW}, 14',
      f's_and_b32 s{sT0}, s{sT0}, 0x7ffff', 's_waitcnt lgkmcnt(0)', 's_barrier')
    w64(S_WQ, sT2, 8192, 'B')
    E(f's_add_u32 s{sT0}, s{sT0}, {4*65536-32768}', f's_and_b32 s{sT0}, s{sT0}, 0x7ffff')
    w64(S_WQ, sT2, 65536+8192, 'B')
stamp(1, 'head')
local_setup(); tail_setup(); masks()
if TC: touch_setup()
for j in range(16): e(f'v_mov_b32 v{208+j}, 0')
E('s_waitcnt vmcnt(0)', 's_barrier')
stamp(5, 'head'); stamp(1, 'all', 'x')
def qrd(u):
    sc, st = u >> 2, u & 3
    x = vFr + 8 * (u % 8)
    hi = sc >> 2
    o = (sc & 3) * 16384
    E(f'ds_read_b128 {vr(x,4)}, v{qx+4*hi+st} offset:{o}',
      f'ds_read_b64_tr_b16 {vr(x+4,2)}, v{qw+hi} offset:{o+st*2048}', f'ds_read_b64_tr_b16 {vr(x+6,2)}, v{qw+hi} offset:{o+st*2048+512}')
for u in range(5): qrd(u)
if TC & 8: touch_x(); touch_w(0)
for u in range(32):
    x = vFr + 8 * (u % 8)
    issued = min(32, 5 + u)
    e(f's_waitcnt lgkmcnt({3*(issued-u-1)})')
    e(f'v_mfma_f32_32x32x16_bf16 {vr(vQacc,16)}, {vr(x+4,4)}, {vr(x,4)}, {"0" if u == 0 else vr(vQacc,16)}')
    if 5 + u < 32: qrd(5 + u)
    if EA and u == 7: e('s_barrier')
    if EA and u == EA:
        CAP[0] = []; a_fill(0); cap0 = CAP[0]; CAP[0] = None
        side0 = []; g_ = []
        for it in cap0:
            g_.append(it)
            if it[1] is not None: side0.append(g_); g_ = []
        side0[-1] += g_
    if EA and u >= EA and side0 and (u - EA) % opt('eas', 1) == 0:
        for s_, t_ in side0.pop(0): e(s_, t_)
if EA: assert not side0
E(f's_cmp_lg_u32 s{sW}, 0', 's_cbranch_scc1 L_np2')
poll_issue(vB0, ['0'], [vFl])
lab('L_np2')
e('s_nop 9')
stamp(6, 'head')
for j in range(16): e(f'v_mul_f32 v{vQacc+j}, s{sCS}, v{vQacc+j}')
for j in range(8): e(f'v_cvt_pk_bf16_f32 v{vQacc+j}, v{vQacc+2*j}, v{vQacc+2*j+1}')
E(f'ds_write_b128 v{vQx}, {vr(vQacc,4)}', f'ds_write_b128 v{vQx}, {vr(vQacc+4,4)} offset:1024',
  f's_setprio {XV}', 's_waitcnt lgkmcnt(0)')
stamp(7, 'head'); stamp(2, 'all', 'x')
e('s_barrier')
for j in range(16): e(f'v_mov_b32 v{16+j}, 0')
stamp(8, 'head'); stamp(3, 'all', 'x')

def a_chunk(cs, side=()):
    side = list(side)
    seq = []
    u = 0
    for c in cs:
        hi, base = (c >> 1) & 1, (c & 1) * SLOT
        for s in range(4):
            x = xFr + 16 * (u % 3); u += 1
            for ty in range(3):
                r = [f'ds_read_b128 {vr(x,4)}, v{qx+4*hi+s} offset:{base}'] if ty == 0 else []
                o = base + ty * 8192 + s * 2048
                r += [f'ds_read_b64_tr_b16 {vr(x+4+4*ty,2)}, v{qw+hi} offset:{o}', f'ds_read_b64_tr_b16 {vr(x+6+4*ty,2)}, v{qw+hi} offset:{o+512}']
                a = xAcc + 16 * ty
                seq.append((r, f'v_mfma_f32_32x32x16_bf16 {vr(a,16)}, {vr(x+4+4*ty,4)}, {vr(x,4)}, {"0" if (c == 0 and s == 0) else vr(a,16)}'))
    if XM != XV: e(f's_setprio {XM}')
    LA = opt('la', 1)
    for k_ in range(LA): E(*seq[k_][0])
    for k_, (r, m) in enumerate(seq):
        if k_ + LA < len(seq): E(*seq[k_+LA][0])
        e(f's_waitcnt lgkmcnt({sum(len(seq[j][0]) for j in range(k_+1, min(len(seq), k_+LA+1)))})')
        e(m)
        take = -(-len(side) // (len(seq) - k_))
        for g in side[:take]:
            for s_, t_ in g: e(s_, t_)
        side = side[take:]
    if XM != XV: e(f's_setprio {XV}')
def write_frags():
    e('s_nop 6')
    for ty in range(3):
        for hd in range(2):
            a = xAcc + 16 * ty + 8 * hd
            for i in range(4): e(f'v_cvt_pk_bf16_f32 v{a+i}, v{a+2*i}, v{a+2*i+1}')
            e(f'ds_write_b128 v{xFw}, {vr(a,4)} offset:{ty*8192+hd*1024}')
    E(f's_bitcmp1_b32 s{sW}, 0', 's_cbranch_scc0 L_nopub', f's_add_u32 s{sT0}, s{sStepA}, 4096',
      f'buffer_store_dwordx4 {vr(xAcc+16,4)}, v{vL16}, {sr(S_WS,4)}, s{sStepA} offen sc1',
      f'buffer_store_dwordx4 {vr(xAcc+24,4)}, v{vL16}, {sr(S_WS,4)}, s{sStepA} offen offset:1024 sc1',
      f'buffer_store_dwordx4 {vr(xAcc+32,4)}, v{vL16}, {sr(S_WS,4)}, s{sT0} offen sc1',
      f'buffer_store_dwordx4 {vr(xAcc+40,4)}, v{vL16}, {sr(S_WS,4)}, s{sT0} offen offset:1024 sc1')
    lab('L_nopub')
PUB = [0]
def halo_flag():
    E(f's_bitcmp1_b32 s{sW}, 0', 's_cbranch_scc0 L_nohf')
    flag_store('hx', f's{sStepB}', f's_waitcnt vmcnt({len(VMQ)-PUB[0]})')
    lab('L_nohf')
def halo_get():
    poll_check('hx', vB1, ['0'], [vFl], None)
    E(f's_lshl_b32 s{sT0}, s{sW}, 10', f's_add_u32 m0, s{sT0}, {SC+6*4096}', f's_add_u32 s{sT1}, s{sStepH}, 4096')
    dma(vL16, S_WS, f's{sStepH}', 0, ' sc1', 'hx')
    E(f's_add_u32 m0, s{sT0}, {SC+7*4096}', 's_nop 0')
    dma(vL16, S_WS, f's{sT1}', 0, ' sc1', 'hx')
def local_task(t):
    lq, lk, lp, lv = xFr, xFr+4, xFr+8, xFr+12
    lS, lP, lO = xAcc, xAcc+16, (16 if t else 208)
    kp = 6 if t == 0 else 2
    vc, vp = (78, 80) if t == 0 else (79, 78)
    E(f'ds_read_b128 {vr(lq,4)}, v{xLq} offset:{t*4096}', f'ds_read_b128 {vr(lk,4)}, v{xLq} offset:{(2+t)*4096}', f'ds_read_b128 {vr(lp,4)}, v{xLq} offset:{kp*4096}',
      f'ds_read_b64_tr_b16 {vr(lv,2)}, v{vc}', f'ds_read_b64_tr_b16 {vr(lv+2,2)}, v{vc} offset:64',
      f'ds_read_b64_tr_b16 {vr(lv+4,2)}, v{vc} offset:256', f'ds_read_b64_tr_b16 {vr(lv+6,2)}, v{vc} offset:320',
      f'ds_read_b64_tr_b16 {vr(lv+8,2)}, v{vp} offset:256', f'ds_read_b64_tr_b16 {vr(lv+10,2)}, v{vp} offset:320')
    if t == 0:
        E(f's_cmp_lg_u32 s{sRB}, 0', 's_cbranch_scc1 L_m0')
        for r in range(8): e(f'v_mov_b32 v{xMask+16+r}, 0xff800000')
        lab('L_m0')
    E('s_waitcnt lgkmcnt(6)', 's_nop 0',
      f'v_mfma_f32_32x32x16_bf16 {vr(lS,16)}, {vr(lk,4)}, {vr(lq,4)}, {vr(xMask,16)}',
      f'v_mfma_f32_32x32x16_bf16 {vr(lP,16)}, {vr(lp,4)}, {vr(lq,4)}, {vr(xMask+8,16)}')
    e('s_nop 10')
    regs = [lS+i for i in range(16)] + [lP+8+i for i in range(8)]
    maxtree(regs, vT0, vT1)
    E('s_nop 1', f'v_permlane32_swap_b32 v{vT0}, v{vT1}', f'v_max_f32 v{vT0}, v{vT0}, v{vT1}', f'v_mul_f32 v{vT0}, {f32(-CSCALE)}, v{vT0}')
    for k in range(0, 24, 2): e(f'v_pk_fma_f32 {vr(regs[k],2)}, {vr(regs[k],2)}, {sr(sCS,2)}, {vr(vT0,2)} op_sel_hi:[1,0,0]')
    e('s_waitcnt lgkmcnt(0)')
    for k in range(24):
        e(f'v_exp_f32 v{regs[k]}, v{regs[k]}')
        if k == 9: e(f'v_smfmac_f32_32x32x32_bf16 {vr(lO,16)}, {vr(lv,4)}, {vr(lS,8)}, v{vIdx}')
        if k == 17: e(f'v_smfmac_f32_32x32x32_bf16 {vr(lO,16)}, {vr(lv+4,4)}, {vr(lS+8,8)}, v{vIdx}')
    E('s_nop 1', f'v_smfmac_f32_32x32x32_bf16 {vr(lO,16)}, {vr(lv+8,4)}, {vr(lP+8,8)}, v{vIdx}', 's_nop 11',
      f'v_rcp_f32 v{vT2}, v{lO+8}', 's_nop 0')
    for i in range(0, 8, 2): e(f'v_pk_mul_f32 {vr(lO+i,2)}, {vr(lO+i,2)}, {vr(vT2,2)} op_sel_hi:[1,0]')
    d = xAcc + 48 + 4 * t
    for i in range(4): e(f'v_cvt_pk_bf16_f32 v{d+i}, v{lO+2*i}, v{lO+2*i+1}')
    e(f'buffer_store_dwordx4 {vr(d,4)}, v{vL16}, {sr(S_WS,4)}, s{sOslot2 if t else sOslot} offen sc1', 'oa')

def oa_mfma(rt, wr=False):
    for s_ in range(8):
        for ct in range(2):
            a_ = oAcc + 32 * rt + 16 * ct
            e(f'v_mfma_f32_32x32x16_bf16 {vr(a_,16)}, {vr(oW+8*s_+4*ct,4)}, {vr(oOf+32*rt+4*s_,4)}, {"0" if s_ == 0 else vr(a_,16)}')
            m_ = 2 * s_ + ct
            if wr and wr <= m_ < wr + 4:
                for q in (2*(m_-wr), 2*(m_-wr)+1): e(f'ds_write_b128 v{80+q if q else vTp}, {vr(oAcc+4*q,4)}')
PAT = opt('pat', 3)
if PAT == 3:
    CH = {n: [n-2] for n in range(2, 10)}; FILL = {n: [n] for n in range(8)}
else:
    CH = {2: [0], 3: [1], 4: [2], 5: [3, 4], 6: [5], 7: [6], 8: [7]}; FILL = {0: [0], 1: [1], 2: [2, 3], 3: [4], 4: [5], 5: [6], 6: [7]}
if EA:
    CH = {n: [n-1] for n in range(1, 9)}; FILL = {n: [n+1] for n in range(7)}
NG = max(CH)
LATE = opt('late', 1 if NG < 9 else 0)
AE = opt('aearly', 0)
for n in range(16):
    cm(f'X interval {n}')
    if n < 9: stamp(n + 1, 'i0')
    if n >= 8: stamp(n - 7, 'i1')
    if n in (opt('dn', 2), opt('dn', 2)+1, opt('dn', 2)+2): stamp(1 + 4*(n-opt('dn', 2)), 'd')
    if n in (1, 2, 4, 10, 12, 14): stamp({1: 4, 2: 5, 4: 6, 10: 7, 12: 8, 14: 9}[n], 'x')
    if STAMPS and STMODE == 'xc' and n in (4, 8, 10, 12, 14, 15):
        i_ = (4, 8, 10, 12, 14, 15).index(n)
        E(f's_memrealtime {sr(sST+4*i_,2)}', f's_memtime {sr(sST+4*i_+2,2)}')
    waits = []
    k = n // 2
    if n == 0:
        E(f's_cmp_lg_u32 s{sW}, 0', 's_cbranch_scc1 L_nochk_kv1')
        poll_check('kv1', vB0, ['0'], [vFl], 0)
    ILV = opt('ilv', 1) and n in CH
    if n == 3:
        E(f's_cmp_lg_u32 s{sW}, 0', 's_cbranch_scc1 L_np3')
        poll_issue(vPa, SH4, RG4)
        lab('L_np3')
        NP3 = len(VMQ)
    if ILV: CAP[0] = []
    if n == 1: kv_fill(1)
    if n % 2 == 0 and 1 <= k <= 6: kv_fill(k + 1)
    for c in FILL.get(n, []): a_fill(c)
    WS_ = opt('wos', 3)
    if n == NG - 1: sentinels()
    if WS_ == 0:
        if n == NG - 1: wo_fill(S_WOA, 0, 0, 'woA')
        if n == NG: wo_fill(S_WOA, 1, SLOT, 'woA')
    if WS_ == 3 and n == NG - 1: wo_fill(S_WOA, 0, 0, 'woA')
    if WS_ == 2:
        if n == NG - 2: wo_fill(S_WOA, 0, 0, 'woA')
        if n == NG - 1: wo_fill(S_WOA, 1, SLOT, 'woA')
    if TC & 1 and n == 0: touch_x(); touch_w(0)
    if TC & 2 and n == 2: touch_w(1)
    if TC & 4 and n == 3: touch_wo(S_WOA)
    if TC & 4 and n == 5: touch_wo(S_WOB)
    DN = opt('dn', 2)
    side = []
    if ILV:
        cap = CAP[0]; CAP[0] = None
        g = []
        for it in cap:
            g.append(it)
            if it[1] is not None: side.append(g); g = []
        if g: side[-1] += g
    if n in (DN, DN+1): stamp(2 + 4*(n-DN), 'd')
    if n in CH: a_chunk(CH[n], side)
    if n in (DN, DN+1): stamp(3 + 4*(n-DN), 'd')
    for c in CH.get(n + 1, []): waits.append(f'A{c}')
    if n == NG: write_frags(); PUB[0] = len(VMQ)
    if n == NG + 1:
        e(f'ds_write_b64 v{vOw}, {vr(xOne,2)}')
        if opt('hfe', 1): halo_flag()
        local_task(1)
        if not opt('hfe', 1): halo_flag()
    if n == NG + 2:
        halo_get()
        if WS_ == 1: wo_fill(S_WOA, 0, 0, 'woA')
        if WS_ == 3: wo_fill(S_WOA, 1, SLOT, 'woA')
    if n == NG + 3:
        e(f's_waitcnt vmcnt({vmn("hx")})')
        local_task(0)
        if WS_ == 3: waits.append('woA')
        if WS_ == 1: wo_fill(S_WOA, 1, SLOT, 'woA')
    if n == NG + 4:
        if LATE: wo_fill(S_WOB, 0, 2*SLOT, 'woB')
        flag_store('oa', f's{sK1}', f's_waitcnt vmcnt({vmn("oa")})', xcc=True)
        VMQ.append('fl')
        if WS_ != 1 and not LATE: w_reads()
    if WS_ != 1 and LATE and n == NG + 5: w_reads()
    if LATE and n == NG + 5 and WS_ != 1: wo_fill(S_WOB, 1, 3*SLOT, 'woB')
    if WS_ == 1 and n == NG + 5: waits.append('woA')
    if n == NG + 5 + LATE:
        E(f's_cmp_lg_u32 s{sW}, 0', 's_cbranch_scc1 L_skip_oa')
        poll_check('oa', vPa2, ['0'], [vFl], None, xcc=True)
        E(f'v_or_b32 v{vFl}, s{sXcc}, v{vNon}', f'v_cmp_ne_u32 vcc, v{vFl}, v{vFl+2}', 's_nop 1', 's_cmp_eq_u64 vcc, 0', f's_cselect_b32 s{sT0}, {opt("fast", 1)}, 0',
          f'v_mov_b32 v{vFl}, s{sT0}')
        lab('L_skip_oa')
        if not LATE: wo_fill(S_WOB, 0, 2*SLOT, 'woB'); wo_fill(S_WOB, 1, 3*SLOT, 'woB')
        if WS_ == 1: wo_fill(S_WOB, 1, 3*SLOT, 'woB'); w_reads()
    if n == NG + 6 + LATE:
        E(f's_cmp_lg_u32 s{sW}, 0', 's_cbranch_scc1 L_skip_same', f'v_mov_b32 v{vFl+1}, {R+16384}', f'ds_write_b32 v{vFl+1}, v{vFl}')
        lab('L_skip_same')
        o_loads('oal')
    if n == 13 and opt('pad', 0):
        E('s_mov_b64 exec, 0', 's_branch L_pad0')
        lab(f'L_pad{PADS[0]}')
        e('s_mov_b64 exec, -1')
    if n == 15 and AE:
        E('s_waitcnt vmcnt(8)', f's_setprio {XM}')
        oa_mfma(0)
        e(f's_setprio {XV}')
    if n % 2 == 1 and k + 1 <= 7: waits.append(f'KV{k+1}')
    if n == 15: waits.append('woB')
    if waits: e(f's_waitcnt vmcnt({min(vmn(t) for t in waits)}) lgkmcnt(0)')
    else: e('s_waitcnt lgkmcnt(0)')
    if n == 3:
        E(f's_cmp_lg_u32 s{sW}, 0', 's_cbranch_scc1 L_nochk_kv2')
        poll_check('kv2', vPa, SH4, RG4, len(VMQ) - NP3)
    if n < 9: stamp(n + 1, 'j0')
    if n >= 8: stamp(n - 7, 'j1')
    if n in (DN, DN+1): stamp(4 + 4*(n-DN), 'd')
    if opt('nomid', 0) and n % 2 == 0: NBAR[0] += 1
    else: e('s_barrier')
assert NBAR[0] == NBAR_Y, (NBAR[0], NBAR_Y)
E('s_setprio 0', f's_mov_b32 s{sSpin}, 0', f's_mov_b32 s{sC}, 0')
stamp(9, 'i1')
e('s_waitcnt vmcnt(0)')
stamp(5, 'tail')
if not AE: oa_mfma(0)
oa_mfma(1, 10)
E('s_nop 9', 's_branch L_tail_wr')

cm('---- fallback (Y waves): true max, K/V from global ----')
lab('L_fallback')
E(f's_cmp_eq_u32 s{sFB}, 0', 's_cbranch_scc1 L_fb_go', f's_cmp_eq_u32 s{sT1}, 1', 's_branch L_att_ok')
lab('L_fb_go')
E(f's_mov_b32 s{sFB}, 1', f'v_mov_b32 v{vT0}, 0xff800000', f'v_mov_b32 v{vT2}, 0xff800000', f's_mov_b32 s{sT2}, 0')
lab('L_fb_max')
E(f'buffer_load_dwordx4 {vr(aK,4)}, v{vL16}, {sr(S_WS,4)}, s{sT2} offen sc1', 's_waitcnt vmcnt(0)',
  f'v_mfma_f32_32x32x16_bf16 {vr(aSa,16)}, {vr(aK,4)}, {vr(vQa,4)}, 0', f'v_mfma_f32_32x32x16_bf16 {vr(aSb,16)}, {vr(aK,4)}, {vr(vQb,4)}, 0', 's_nop 15')
for k in range(0, 16, 2): e(f'v_max3_f32 v{vT0}, v{vT0}, v{aSa+k}, v{aSa+k+1}')
for k in range(0, 16, 2): e(f'v_max3_f32 v{vT2}, v{vT2}, v{aSb+k}, v{aSb+k+1}')
E(f's_add_u32 s{sT2}, s{sT2}, 2048', f's_cmp_lt_u32 s{sT2}, {64*2048}', 's_cbranch_scc1 L_fb_max',
  f'v_mov_b32 v{vT1}, v{vT0}', f'v_mov_b32 v{vT3}, v{vT2}', 's_nop 1',
  f'v_permlane32_swap_b32 v{vT0}, v{vT1}', f'v_permlane32_swap_b32 v{vT2}, v{vT3}', f'v_max_f32 v{vT0}, v{vT0}, v{vT1}', f'v_max_f32 v{vT2}, v{vT2}, v{vT3}')
for i in range(16): e(f'v_sub_f32 v{aCa+i}, 0, v{vT0}')
for i in range(16): e(f'v_sub_f32 v{aCb+i}, 0, v{vT2}')
for i in range(32): e(f'v_mov_b32 v{aOa+i}, 0')
E(f'v_lshlrev_b32 v{vT2}, 4, v{vI}', f'v_lshl_add_u32 v{vT2}, v{vH}, 8, v{vT2}', f's_mov_b32 s{sT2}, 0')
lab('L_fb_pv')
E(f'buffer_load_dwordx4 {vr(aK,4)}, v{vL16}, {sr(S_WS,4)}, s{sT2} offen sc1', f's_mov_b64 exec, {sr(sVM,2)}',
  f'buffer_load_dwordx4 {vr(aV,4)}, v{vT2}, {sr(S_WS,4)}, s{sT2} offen offset:1024 sc1',
  f'buffer_load_dwordx4 {vr(aV+4,4)}, v{vT2}, {sr(S_WS,4)}, s{sT2} offen offset:1536 sc1', 's_mov_b64 exec, -1', 's_waitcnt vmcnt(0)',
  f'v_mfma_f32_32x32x16_bf16 {vr(aSa,16)}, {vr(aK,4)}, {vr(vQa,4)}, {vr(aCa,16)}',
  f'v_mfma_f32_32x32x16_bf16 {vr(aSb,16)}, {vr(aK,4)}, {vr(vQb,4)}, {vr(aCb,16)}', 's_nop 15')
for i in range(32): e(f'v_exp_f32 v{aSa+i}, v{aSa+i}')
E('s_nop 1',
  f'v_smfmac_f32_32x32x32_bf16 {vr(aOa,16)}, {vr(aV,4)}, {vr(aSa,8)}, v{vIdx}', f'v_smfmac_f32_32x32x32_bf16 {vr(aOa,16)}, {vr(aV+4,4)}, {vr(aSa+8,8)}, v{vIdx}',
  f'v_smfmac_f32_32x32x32_bf16 {vr(aOb,16)}, {vr(aV,4)}, {vr(aSb,8)}, v{vIdx}', f'v_smfmac_f32_32x32x32_bf16 {vr(aOb,16)}, {vr(aV+4,4)}, {vr(aSb+8,8)}, v{vIdx}',
  f's_add_u32 s{sT2}, s{sT2}, 2048', f's_cmp_lt_u32 s{sT2}, {64*2048}', 's_cbranch_scc1 L_fb_pv', 's_nop 15', 's_branch L_att_fin')
for g, so in enumerate((sOoff, sT1, sT2, sT3)):
    lab(f'L_tr{g}')
    E(f's_sub_u32 s{sSpin}, s{sSpin}, 1', f's_cbranch_scc1 L_tk{g}')
    for j in range(4):
        o = f' offset:{j*1024}' if j else ''
        e(f'buffer_load_dwordx4 {vr(oOf+16*g+4*j,4)}, v{vL16}, {sr(S_WS,4)}, s{so} offen{o} sc1')
    E('s_waitcnt vmcnt(0)', f's_branch L_tg{g}')
lab('L_st_slow')
E(f'buffer_store_dwordx4 {vr(16,4)}, v{vL16}, {sr(S_WS,4)}, s{sOslot} offen sc1',
  f'buffer_store_dwordx4 {vr(28,4)}, v{vL16}, {sr(S_WS,4)}, s{sOslot} offen offset:1024 sc1', 's_branch L_st_j')
lab('L_code_end')

HDR = open(f'cdna_kernels/{NAME}.s.ref').read().split('\n')
hdr = []
for line in HDR:
    if line.startswith('; @launch'): break
    hdr.append(line)
txt = '\n'.join(hdr) + '\n; @launch grid=(256,1,1) block=(512,1,1) lds=163840\n'
txt += f'''.amdgcn_target "amdgcn-amd-amdhsa--gfx950"
.text
.globl {NAME}_kernel
.p2align 8
.type {NAME}_kernel,@function
'''
txt += '\n'.join(L) + '\n'
txt += f'''.section .rodata,"a"
.p2align 6
.amdhsa_kernel {NAME}_kernel
  .amdhsa_next_free_vgpr {NVGPR}
  .amdhsa_next_free_sgpr 102
  .amdhsa_accum_offset {NVGPR}
  .amdhsa_group_segment_fixed_size 0
  .amdhsa_kernarg_size 88
  .amdhsa_user_sgpr_count 2
  .amdhsa_user_sgpr_kernarg_segment_ptr 1
  .amdhsa_system_sgpr_workgroup_id_x 1
.end_amdhsa_kernel
'''
open(OUT, 'w').write(txt)
print('wrote', OUT, len(L), 'lines; barriers', NBAR_Y)
```

```python
import sys, struct

NAME = 'concat_heads__sliding_local_dilated__grouped_kv_mqa__prompt'
STAMPS = '--stamps' in sys.argv
STMODE = ([a[5:] for a in sys.argv if a.startswith('--st=')] + ['all'])[0]
XP = [a[4:] for a in sys.argv if a.startswith('--x=')]
args = [a for a in sys.argv[1:] if not a.startswith('--')]
OUT = args[0] if args else f'cdna_kernels/{NAME}.s'
def opt(name, default):
    for a in XP:
        if a.startswith(name): return type(default)(a[len(name):])
    return default

L = []
VMQ = []
NBAR = [0]
CAP = [None]
def e(s, tag=None):
    if CAP[0] is not None:
        CAP[0].append((s, tag)); return
    if tag is not None: VMQ.append(tag)
    if s == 's_barrier': NBAR[0] += 1
    L.append('    ' + s.strip())
    if PADON[0]:
        PADCNT[0] += 4 if (s.startswith('s_') and '0x' not in s) else 8
        if PADCNT[0] >= PADON[0] and not s.startswith('v_cmp') and 'abs' not in s:
            PADCNT[0] = 0; pad()
PADS = [0]
PADON = [False]
PADCNT = [0]
def lab(s): L.append(s + ':')
def pad():
    i = PADS[0]; PADS[0] += 1
    L.append(f'L_pad{i}:'); L.append(f'    s_cbranch_execz L_pad{i+1}')
def cm(s): L.append('    ; ' + s)
def vr(i, n): return f'v[{i}:{i+n-1}]'
def sr(i, n): return f's[{i}:{i+n-1}]'
def f32(x): return '0x%08x' % struct.unpack('<I', struct.pack('<f', x))[0]
def vmn(tag):
    idx = max(i for i, t in enumerate(VMQ) if t == tag)
    n = len(VMQ) - 1 - idx
    assert n <= 63
    return n
def E(*lines):
    for s in lines: e(s)

SLOT = 32768
R = 131072
HALO = 3 * SLOT
ONES = 3 * SLOT
SC = 2 * SLOT
WS_FHX = 0x60000
WS_HX = 0x600000
WS_FKV = 0x40000
WS_FOA = 0x48000
WS_FD = 0x44000
WS_OA = 0x100000
WS_OB = 0x300000
WS_STAMP = 0x500000
WS_SIZE = 0x800000
CSCALE = 0.25 * 1.4426950408889634
MOFF = float(opt('moff', 100))
VSC = 2.0 ** 40
ONEB = 0x53805380
SPIN = 200000
NT = '' if 'nont' in XP else ' nt'
WNT = ' nt' if 'wnt' in XP else ''

S_XA, S_WQKV, S_WOA, S_XB, S_WQ, S_WKV, S_WOB, S_OUT, S_WS = 8, 12, 16, 20, 24, 28, 32, 36, 40
S_DBG = 44
S_WV = 46
sP = 46
sW = 48
sRB, sHG = 49, 50
sT0, sT1, sT2, sT3 = 51, 52, 53, 54
sC = 55
sStepA, sStepB = 56, 57
sXo, sWo = 58, 59
sKVo = 60
sW4k, sW8k, sW2k = 61, 62, 63
sVM = 64
sOoff, sOutOff, sWoff, sSpin = 66, 67, 68, 69
sOslot, sOslot2 = 70, 71
sFB, sHG128, sCS, sQ = 72, 73, 74, 75
sRot, sK1 = 4, 5
sF0, sF1, sF2 = 3, 6, 7
sST = 76
sNon = 100
sStepH = 31
sXcc = 30

vL16, vW, vWA, vXA = 1, 2, 3, 4
vN, vH, vI = 5, 6, 7
vT0, vT1, vT2, vT3 = 8, 9, 10, 11
vP0, vP1, vXx, vG = 12, 13, 14, 15
vQacc = 16
vFr = 96
(vB0, vB1, vBW, vWl, vIdx, vPa, vQx, vW2, vTw0, vTw1, vTp, vTr0, vTo, vPa2, vZero, vOw,
 vF0, vF1, vF2, vF3, vWA2, vXA2) = range(232, 254)
vNon, vFl = 90, 92
NVGPR = 256

def stamp(i, *modes):
    if STAMPS and STMODE in modes: e(f's_memrealtime {sr(sST+2*i,2)}')
def cstamp(i):
    if STAMPS and STMODE != 'xc': e(f's_memtime {sr(sST+2*i,2)}')
def dma(voff, srd_, soff, off=0, fl='', tag='x'):
    o = f' offset:{off}' if off else ''
    e(f'buffer_load_dwordx4 v{voff}, {sr(srd_,4)}, {soff} offen{o}{fl} lds', tag)
def srd(reg, size): E(f's_mov_b32 s{reg+2}, {hex(size)}', f's_mov_b32 s{reg+3}, 0x20000')
def nonce_load(tag=None): e(f'global_load_dwordx2 {vr(vNon,2)}, v{vZero}, {sr(S_DBG,2)} sc1', tag)
def poll_issue(vaddr, soffs, regs, non=True):
    if non: nonce_load()
    for so, r in zip(soffs, regs):
        e(f'buffer_load_dwordx2 {vr(r,2)}, v{vaddr}, {sr(S_WS,4)}, {so} offen sc1')
def poll_check(tag, vaddr, soffs, regs, issued, xcc=False):
    e(f's_mov_b32 s{sSpin}, {SPIN}')
    if issued is not None: E(f's_waitcnt vmcnt({issued})', f's_branch L_chk_{tag}')
    lab(f'L_rep_{tag}')
    poll_issue(vaddr, soffs, regs)
    e('s_waitcnt vmcnt(0)')
    lab(f'L_chk_{tag}')
    e(f'v_cmp_eq_u32 vcc, 0, v{vNon}')
    if xcc: E(f'v_mov_b32 v{vFl+2}, v{vFl}', f'v_and_b32 v{vFl}, 0xffffffe1, v{vFl}')
    for r in regs:
        E(f'v_cmp_ne_u64 {sr(sP,2)}, {vr(vNon,2)}, {vr(r,2)}', 's_nop 1', f's_or_b64 vcc, vcc, {sr(sP,2)}')
    E(f's_cbranch_scc0 L_nochk_{tag}', f's_sub_u32 s{sSpin}, s{sSpin}, 1', f's_cbranch_scc0 L_rep_{tag}')
    lab(f'L_nochk_{tag}')
def flag_store(tag, soff, first_wait='s_waitcnt vmcnt(0)', xcc=False, soff2=None):
    e(f's_mov_b32 s{sSpin}, {SPIN}')
    e(first_wait)
    lab(f'L_fw_{tag}')
    E(f'v_cmp_eq_u32 vcc, 0, v{vNon}', f's_cbranch_vccz L_fs_{tag}')
    nonce_load()
    E('s_waitcnt vmcnt(0)', f's_sub_u32 s{sSpin}, s{sSpin}, 1', f's_cbranch_scc0 L_fw_{tag}')
    lab(f'L_fs_{tag}')
    if xcc: e(f'v_or_b32 v{vNon}, s{sXcc}, v{vNon}')
    E('s_mov_b64 exec, 1', f'buffer_store_dwordx2 {vr(vNon,2)}, v{vZero}, {sr(S_WS,4)}, {soff} offen sc1')
    if soff2: e(f'buffer_store_dwordx2 {vr(vNon,2)}, v{vZero}, {sr(S_WS,4)}, {soff2} offen sc1')
    e('s_mov_b64 exec, -1')
def maxtree(rs, t0, t1):
    e(f'v_max3_f32 v{t0}, v{rs[0]}, v{rs[1]}, v{rs[2]}')
    e(f'v_max3_f32 v{t1}, v{rs[3]}, v{rs[4]}, v{rs[5]}')
    for k in range(6, len(rs), 4):
        e(f'v_max3_f32 v{t0}, v{t0}, v{rs[k]}, v{rs[k+1]}')
        if k + 3 < len(rs): e(f'v_max3_f32 v{t1}, v{t1}, v{rs[k+2]}, v{rs[k+3]}')
    e(f'v_max_f32 v{t0}, v{t0}, v{t1}')
    e(f'v_mov_b32 v{t1}, v{t0}')
def lane_setup():
    E(f'v_and_b32 v{vN}, 31, v0', f'v_lshrrev_b32 v{vH}, 5, v0', f'v_and_b32 v{vI}, 15, v0',
      f'v_lshrrev_b32 v{vWl}, 2, v{vI}', f'v_lshl_add_u32 v{vWl}, v{vH}, 3, v{vWl}', f'v_lshlrev_b32 v{vWl}, 7, v{vWl}',
      f'v_and_b32 v{vF0}, 8, v{vI}', f'v_lshl_add_u32 v{vWl}, v{vF0}, 3, v{vWl}', f'v_and_b32 v{vF0}, 16, v0',
      f'v_lshl_add_u32 v{vWl}, v{vF0}, 1, v{vWl}', f'v_and_b32 v{vF0}, 3, v0', f'v_lshl_add_u32 v{vWl}, v{vF0}, 3, v{vWl}',
      f's_lshl_b32 s{sW4k}, s{sQ}, 12', f's_add_u32 s{sF0}, s{sW4k}, {R}', f'v_add_u32 v{vQx}, s{sF0}, v{vL16}',
      f'v_mov_b32 v{vIdx}, 0xdddddddd', f's_mov_b32 s{sFB}, 0')
def q_addr(qx, qw):
    E(f'v_bfe_u32 v{vXx}, v{vN}, 1, 3', f'v_xor_b32 v{vXx}, v{vXx}, v{vH}', f'v_lshlrev_b32 v{vXx}, 4, v{vXx}',
      f's_and_b32 s{sF0}, s{sW}, 1', f's_lshl_b32 s{sF0}, s{sF0}, 12', f'v_lshl_add_u32 v{qx}, v{vN}, 7, v{vXx}', f'v_add_u32 v{qx}, s{sF0}, v{qx}',
      f'v_xor_b32 v{qx+1}, 32, v{qx}', f'v_xor_b32 v{qx+2}, 64, v{qx}', f'v_xor_b32 v{qx+3}, 96, v{qx}',
      f's_and_b32 s{sF2}, s{sW}, 2', f's_lshl_b32 s{sF2}, s{sF2}, 5', f'v_xor_b32 v{qw}, s{sF2}, v{vWl}', f'v_add_u32 v{qw}, 8192, v{qw}', f'v_add_u32 v{qw+1}, 65536, v{qw}',
      f's_mov_b32 s{sCS}, {f32(CSCALE)}')
    for j in range(4): e(f'v_add_u32 v{qx+4+j}, 65536, v{qx+j}')
oOf, oW, oAcc = 16, 96, 160
def tail_setup():
    E(f's_mov_b32 s{S_OUT+2}, 0x400000', f's_mov_b32 s{S_OUT+3}, 0x20000',
      f's_lshr_b32 s{sF2}, s{sW}, 2', f's_lshl_b32 s{sF1}, s{sW}, 14',
      f'v_lshlrev_b32 v{vT0}, 9, v{vH}', f'v_sub_u32 v{vTw0}, v{vWl}, v{vT0}', f'v_add_u32 v{vTw0}, s{sF1}, v{vTw0}', f'v_xor_b32 v{vTw1}, 64, v{vTw0}',
      f'v_xor_b32 v{vT0}, v{vH}, v{vI}', f'v_lshlrev_b32 v{vT0}, 4, v{vT0}', f'v_lshl_add_u32 v{vT0}, v{vN}, 8, v{vT0}', f'v_add_u32 v{vTp}, s{sF1}, v{vT0}',
      f'v_lshrrev_b32 v{vT0}, 3, v0', f's_lshl_b32 s{sF1}, s{sQ}, 3', f'v_add_u32 v{vT0}, s{sF1}, v{vT0}', f'v_and_b32 v{vT1}, 7, v0', f'v_lshlrev_b32 v{vT2}, 1, v{vT1}',
      f'v_and_b32 v{vT3}, 15, v{vT0}', f'v_xor_b32 v{vT2}, v{vT2}, v{vT3}', f'v_lshlrev_b32 v{vT2}, 4, v{vT2}', f'v_lshl_add_u32 v{vT2}, v{vT0}, 8, v{vT2}',
      f's_lshl_b32 s{sF1}, s{sF2}, 16', f'v_add_u32 v{vTr0}, s{sF1}, v{vT2}',
      f'v_lshlrev_b32 v{vT1}, 4, v{vT1}', f'v_lshl_add_u32 v{vTo}, v{vT0}, 11, v{vT1}',
      f's_lshl_b32 s{sOutOff}, s{sRB}, 17', f's_lshl_b32 s{sF1}, s{sF2}, 10', f's_add_u32 s{sOutOff}, s{sOutOff}, s{sF1}', f's_add_u32 s{sOutOff}, s{sOutOff}, s{sHG128}',
      f's_lshl_b32 s{sOoff}, s{sRB}, 16', f's_add_u32 s{sF1}, s{sQ}, s{sRB}' if opt('worot', 1) else f's_mov_b32 s{sF1}, s{sQ}', f's_and_b32 s{sF1}, s{sF1}, 3', f's_lshl_b32 s{sF1}, s{sF1}, 13', f's_add_u32 s{sOoff}, s{sOoff}, s{sF1}',
      f's_lshl_b32 s{sF1}, s{sF2}, 21', f's_add_u32 s{sOoff}, s{sOoff}, s{sF1}', f's_add_u32 s{sOoff}, s{sOoff}, {hex(WS_OA)}')
assert WS_OB - WS_OA == 1 << 21
def w_reads():
    for s in range(8):
        x = oW + 8 * s
        E(f'ds_read_b64_tr_b16 {vr(x,2)}, v{vTw0} offset:{s*2048}', f'ds_read_b64_tr_b16 {vr(x+2,2)}, v{vTw0} offset:{s*2048+1024}',
          f'ds_read_b64_tr_b16 {vr(x+4,2)}, v{vTw1} offset:{s*2048}', f'ds_read_b64_tr_b16 {vr(x+6,2)}, v{vTw1} offset:{s*2048+1024}')
    for q in range(1, 8): e(f'v_xor_b32 v{80+q}, {(2*q)<<4}, v{vTp}')
    e(f'v_xor_b32 v88, 16, v{vTr0}')
def o_loads(tag=None, gs=(0, 1, 2, 3)):
    if 0 in gs: E(f's_add_u32 s{sT1}, s{sOoff}, 4096', f's_add_u32 s{sT2}, s{sOoff}, 32768', f's_add_u32 s{sT3}, s{sOoff}, {32768+4096}')
    for g, so in enumerate((sOoff, sT1, sT2, sT3)):
        if g not in gs: continue
        for j in range(4):
            o = f' offset:{j*1024}' if j else ''
            e(f'buffer_load_dwordx4 {vr(oOf+16*g+4*j,4)}, v{vL16}, {sr(S_WS,4)}, s{so} offen{o} sc1', tag)

lab(f'{NAME}_kernel')
if STAMPS:
    for i in range(12): e(f's_mov_b32 s{sST+2*i}, 0')
stamp(0, 'all', 'head', 'tail', 'x', 'i0', 'i1', 'j0', 'j1', 'd')
for reg, off in ((S_XB,24),(S_WKV,40),(S_WV,48),(S_WQ,32),(S_DBG,72),(S_WS,80),(S_XA,0),(S_WQKV,8),(S_WOA,16),(S_WOB,56),(S_OUT,64)):
    e(f's_load_dwordx2 {sr(reg,2)}, s[0:1], {off}')
e(f's_memrealtime {sr(sNon,2)}')
E('s_cmp_ge_u32 s2, 256', 's_cbranch_scc1 L_end')
if opt('cpf', 1) == 2:
    e(f's_getpc_b64 {sr(sOoff,2)}')
    lab('L_pc')
    E(f'v_subrev_u32 v{vF0}, 64, v0', f'v_cmp_gt_u32 vcc, 6, v{vF0}', f's_and_saveexec_b64 {sr(sVM,2)}, vcc', 's_cbranch_execz L_nopf',
      f's_lshr_b32 s{sT0}, s2, 3', f's_mul_i32 s{sT0}, s{sT0}, 768', f'v_lshl_add_u32 v{vF0}, v{vF0}, 7, s{sT0}',
      f'v_min_u32 v{vF0}, L_code_end-L_pc-4, v{vF0}', f'global_load_dword v{vF1}, v{vF0}, {sr(sOoff,2)}')
    lab('L_nopf')
    e('s_mov_b64 exec, -1')
E(
  f'v_lshrrev_b32 v{vT0}, 6, v0', 'v_and_b32 v0, 63, v0', f'v_readfirstlane_b32 s{sW}, v{vT0}',
  f's_and_b32 s{sT0}, s2, 7', f's_bfe_u32 s{sRot}, s2, 0x20003', f's_lshl_b32 s{sRB}, s{sT0}, 2',
  f's_add_u32 s{sRB}, s{sRB}, s{sRot}', f's_lshr_b32 s{sHG}, s2, 5',
  f'v_lshlrev_b32 v{vL16}, 4, v0', f'v_lshrrev_b32 v{vG}, 4, v0', f'v_lshrrev_b32 v{vT1}, 3, v0', f'v_and_b32 v{vT2}, 7, v0',
  f'v_xor_b32 v{vT3}, v{vT2}, v{vG}', f'v_lshlrev_b32 v{vT3}, 4, v{vT3}', f'v_lshl_add_u32 v{vP0}, v{vT1}, 10, v{vT3}',
  f'v_xor_b32 v{vP1}, 64, v{vP0}', f'v_add_u32 v{vP1}, {8192-1024}, v{vP1}', f'v_mov_b32 v{vZero}, 0',
  f's_xor_b32 s{sW}, s{sW}, 7', f's_lshl_b32 s{sRot}, s{sRot}, 1', f's_lshl_b32 s{sHG128}, s{sHG}, 7', f's_and_b32 s{sQ}, s{sW}, 3')
if opt('brx', 0): E(f's_lshr_b32 s{sT0}, s{sRB}, 2', f's_add_u32 s{sRot}, s{sRot}, s{sT0}', f's_and_b32 s{sRot}, s{sRot}, 7')
if opt('brh', 1): E(f's_add_u32 s{sRot}, s{sRot}, s{sHG}', f's_and_b32 s{sRot}, s{sRot}, 7')
if opt('hgx', 0): E(f's_xor_b32 s{sHG}, s{sHG}, {opt("hgx", 0)}', f's_lshl_b32 s{sHG128}, s{sHG}, 7')
srd(S_WS, WS_SIZE)
E(f's_cmp_lt_u32 s{sW}, 4', 's_cbranch_scc1 L_X')

cm('================ Y program (waves 4-7) ================')
aSa, aSb, aCa, aCb, aOa, aOb = 96, 112, 128, 144, 160, 176
aK, aV = 192, 56
vQa, vQb = 208, 212
vKa, vVa = 216, 217
srd(S_XB, 0x200000); srd(S_WKV, 0x4000)
vD0, vD1 = 218, 219
E(f's_lshr_b32 s{sT1}, s{sHG}, 1', f's_add_u32 s{sT1}, s{sT1}, s{sW}', f's_add_u32 s{sT1}, s{sT1}, 1', f's_and_b32 s{sT1}, s{sT1}, 3',
  f's_lshl_b32 s{sT2}, s{sT1}, 11',
  f's_lshl_b32 s{sT3}, s{sRB}, 2', f's_add_u32 s{sT3}, s{sT3}, s{sT1}', f's_lshl_b32 s{sT3}, s{sT3}, 14',
  f'v_add_u32 v{vD0}, s{sT3}, v{vP0}', f'v_add_u32 v{vD1}, s{sT3}, v{vP1}',
  f's_lshl_b32 s{sXo}, s{sRot}, 7',
  f's_cmp_lg_u32 s{sW}, 7', 's_cbranch_scc1 L_Yset')
def x_sub(s, tag):
    E(f's_add_u32 m0, s{sT2}, {s*16384}', f's_and_b32 s{sXo}, s{sXo}, 1023')
    dma(vD0, S_XB, f's{sXo}', 0, NT, tag); dma(vD1, S_XB, f's{sXo}', 1024, NT, tag)
E(f's_bitcmp1_b32 s{sHG}, 0', 's_waitcnt lgkmcnt(0)',
  f's_cselect_b32 s{S_WKV}, s{S_WV}, s{S_WKV}', f's_cselect_b32 s{S_WKV+1}, s{S_WV+1}, s{S_WKV+1}')
if opt('kvl', 1):
    E(f's_mov_b32 s{sT0}, s{sT2}', f's_mov_b32 s{sT1}, {R}')
    lab('L_kvl')
    E(f's_mov_b32 m0, s{sT0}', f's_and_b32 s{sXo}, s{sXo}, 1023')
    dma(vD0, S_XB, f's{sXo}', 0, NT, None); dma(vD1, S_XB, f's{sXo}', 1024, NT, None)
    E(f's_mov_b32 m0, s{sT1}', f's_lshl_b32 s{sWo}, s{sXo}, 4')
    dma(vL16, S_WKV, f's{sWo}', 0, '', None); dma(vL16, S_WKV, f's{sWo}', 1024, '', None)
    E(f's_add_u32 s{sXo}, s{sXo}, 128', f's_add_u32 s{sT0}, s{sT0}, 16384', f's_add_u32 s{sT1}, s{sT1}, 2048', f's_cmp_lt_u32 s{sT1}, {R+16384}', 's_cbranch_scc1 L_kvl')
else:
    for s_ in range(8):
        x_sub(s_, None)
        E(f's_mov_b32 m0, {R+s_*2048}', f's_lshl_b32 s{sWo}, s{sXo}, 4')
        dma(vL16, S_WKV, f's{sWo}', 0, '', None); dma(vL16, S_WKV, f's{sWo}', 1024, '', None)
        if s_ < 7: e(f's_add_u32 s{sXo}, s{sXo}, 128')
e('s_barrier'); NBAR[0] -= 1
stamp(1, 'head')
lab('L_Yset')
lane_setup()
tail_setup()
q_addr(32, 40)
E(f's_mov_b32 s{sVM}, 0xffff', f's_mov_b32 s{sVM+1}, 0xffff',
  f's_and_b32 s{sT0}, s{sW}, 1', f's_lshl_b32 s{sT1}, s{sRB}, 1', f's_add_u32 s{sT0}, s{sT0}, s{sT1}', f's_lshl_b32 s{sT0}, s{sT0}, 5',
  f's_lshl_b32 s{sT1}, s{sHG}, 2', f's_add_u32 s{sT0}, s{sT0}, s{sT1}', f's_and_b32 s{sT1}, s{sW}, 2', f's_add_u32 s{sT0}, s{sT0}, s{sT1}',
  f's_lshl_b32 s{sT0}, s{sT0}, 10', f's_add_u32 s{sOslot}, s{sT0}, {hex(WS_OB)}',
  f'v_add_u32 v{vKa}, {R+16384}, v{vL16}', f'v_lshlrev_b32 v{vVa}, 4, v{vI}', f'v_lshl_add_u32 v{vVa}, v{vH}, 8, v{vVa}', f'v_add_u32 v{vVa}, {R+16384}, v{vVa}',
  f'v_and_b32 v{vT1}, 27, v0', f'v_cmp_eq_u32 vcc, 16, v{vT1}', f'v_mov_b32 v{vT1}, {hex(ONEB)}', f's_cmp_eq_u32 s{sW}, 7', f'v_cndmask_b32 v{aV}, 0, v{vT1}, vcc',
  's_cbranch_scc1 L_Y7', 's_waitcnt lgkmcnt(0)')
if opt('cpf', 1) == 1:
    e('s_getpc_b64 s[0:1]')
    lab('L_pc')
    E(f's_sub_u32 s0, s0, L_pc-{NAME}_kernel', 's_subb_u32 s1, s1, 0',
      f's_lshr_b32 s{sT0}, s2, 3', f's_mul_i32 s{sT0}, s{sT0}, 3', f's_add_u32 s{sT0}, s{sT0}, s{sQ}', f's_lshl_b32 s{sT0}, s{sT0}, 8',
      f'v_lshlrev_b32 v{vF0}, 7, v0', f'v_add_u32 v{vF0}, s{sT0}, v{vF0}', f'v_min_u32 v{vF0}, L_code_end-{NAME}_kernel-4, v{vF0}', 's_mov_b64 exec, 3',
      f'global_load_dword v{vF1}, v{vF0}, s[0:1]', 's_mov_b64 exec, -1')
e('s_barrier')
for s_ in range(8):
    x_sub(s_, 'xb')
    if s_ < 7: e(f's_add_u32 s{sXo}, s{sXo}, 128')
stamp(1, 'head')
e('s_branch L_Yj')
lab('L_Y7')
E(f'v_lshrrev_b32 v{vT1}, 1, v{vI}', f'v_xor_b32 v{vT1}, v{vT1}, v{vG}', f'v_lshlrev_b32 v{vT1}, 4, v{vT1}', f'v_lshl_add_u32 v{vT1}, v{vI}, 7, v{vT1}',
  f'v_add_u32 v{vT0}, s{sT2}, v{vT1}', f'v_xor_b32 v{vT1}, 64, v{vT0}', f'v_add_u32 v{vT2}, 65536, v{vT0}', f'v_add_u32 v{vT3}, 65536, v{vT1}',
  f'v_lshlrev_b32 v{vF0}, 8, v{vG}', f'v_lshl_add_u32 v{vF0}, v{vI}, 3, v{vF0}', f'v_add_u32 v{vF0}, {R}, v{vF0}',
  f'v_and_b32 v{vF1}, 1, v{vG}', f'v_lshrrev_b32 v{vF2}, 1, v{vG}',
  f's_lshr_b32 s{sT0}, s{sHG}, 2', f's_lshl_b32 s{sC}, s{sRB}, 1', f's_add_u32 s{sT0}, s{sT0}, s{sC}', f's_lshl_b32 s{sT0}, s{sT0}, 11',
  f's_bfe_u32 s{sC}, s{sHG}, 0x10001',
  f's_lshl_b32 s{sT1}, s{sRB}, 3', f's_add_u32 s{sT1}, s{sT1}, s{sHG}', f's_lshl_b32 s{sOslot2}, s{sT1}, 3', f's_add_u32 s{sOslot2}, s{sOslot2}, {hex(WS_FD)}', f's_lshl_b32 s{sT1}, s{sT1}, 6', f's_add_u32 s{sK1}, s{sT1}, {hex(WS_FKV)}')
kd = 16
KF = 88
KF = 96 - 8
def kfr(u): return (96 + 8 * u) if u < 15 else 24
def kv_reads(s):
    a0, a1 = (vT0, vT1) if s < 4 else (vT2, vT3)
    o = (s & 3) * 16384
    x, y = kfr(2*s), kfr(2*s+1)
    E(f's_waitcnt vmcnt({28-4*s})',
      f'ds_read_b128 {vr(x,4)}, v{a0} offset:{o}', f'ds_read_b64_tr_b16 {vr(x+4,2)}, v{vF0} offset:{s*2048}', f'ds_read_b64_tr_b16 {vr(x+6,2)}, v{vF0} offset:{s*2048+128}',
      f'ds_read_b128 {vr(y,4)}, v{a1} offset:{o}', f'ds_read_b64_tr_b16 {vr(y+4,2)}, v{vF0} offset:{s*2048+1024}', f'ds_read_b64_tr_b16 {vr(y+6,2)}, v{vF0} offset:{s*2048+1152}')
for s_ in range(8): kv_reads(s_)
nonce_load()
stamp(2, 'head')
E(f's_bitcmp1_b32 s{sHG}, 0', f's_cselect_b32 s{sWo}, {f32(VSC) if "zv" not in XP else 0}, {"1.0" if "zk" not in XP else 0}', 's_cbranch_scc1 L_kv_v',
  f'v_lshlrev_b32 v{vF1}, 9, v{vF1}', f'v_lshl_add_u32 v{vF1}, v{vF2}, 3, v{vF1}', f's_lshl_b32 s{sC}, s{sC}, 8')
def kv_chain(swap):
    for u in range(16):
        x = kfr(u)
        if u == 0: e('s_waitcnt lgkmcnt(12)')
        if u == 12: e('s_waitcnt lgkmcnt(0)')
        a, b = (vr(x+4,4), vr(x,4))
        if swap: a, b = b, a
        d = kd + 4 * (u & 1)
        e(f'v_mfma_f32_16x16x32_bf16 {vr(d,4)}, {a}, {b}, {"0" if u < 2 else vr(d,4)}')
kv_chain(False)
e('s_branch L_kv_j')
lab('L_kv_v')
E(f'v_lshlrev_b32 v{vF1}, 3, v{vF1}', f'v_lshl_add_u32 v{vF1}, v{vF2}, 8, v{vF1}', f's_lshl_b32 s{sC}, s{sC}, 9', f's_add_u32 s{sC}, s{sC}, 1024')
kv_chain(True)
lab('L_kv_j')
E(f'v_lshl_add_u32 v{vF1}, v{vI}, 4, v{vF1}', f's_add_u32 s{sT0}, s{sT0}, s{sC}', 's_nop 5',
  f'v_pk_add_f32 {vr(kd,2)}, {vr(kd,2)}, {vr(kd+4,2)}', f'v_pk_add_f32 {vr(kd+2,2)}, {vr(kd+2,2)}, {vr(kd+6,2)}',
  f'v_mul_f32 v{kd}, s{sWo}, v{kd}', f'v_mul_f32 v{kd+1}, s{sWo}, v{kd+1}', f'v_mul_f32 v{kd+2}, s{sWo}, v{kd+2}', f'v_mul_f32 v{kd+3}, s{sWo}, v{kd+3}',
  f'v_cvt_pk_bf16_f32 v{vF2}, v{kd}, v{kd+1}', f'v_cvt_pk_bf16_f32 v{vF3}, v{kd+2}, v{kd+3}',
  f'buffer_store_dwordx2 {vr(vF2,2)}, v{vF1}, {sr(S_WS,4)}, s{sT0} offen sc1')
stamp(3, 'head')
lab('L_Yj')
if opt('ytc', 0):
    E(f's_bitcmp1_b32 s{sW}, 1', f's_cselect_b32 s{S_WOA}, s{S_WOB}, s{S_WOA}', f's_cselect_b32 s{S_WOA+1}, s{S_WOB+1}, s{S_WOA+1}',
      f's_mov_b32 s{S_WOA+2}, 0x80000', f's_mov_b32 s{S_WOA+3}, 0x20000',
      f's_lshr_b32 s{sT0}, s2, 3', f's_lshl_b32 s{sT0}, s{sT0}, 1', f's_and_b32 s{sT1}, s{sW}, 1', f's_add_u32 s{sT0}, s{sT0}, s{sT1}', f's_lshl_b32 s{sWoff}, s{sT0}, 13',
      f'v_lshlrev_b32 v{vD0}, 7, v0')
for i in range(1, 32): e(f'v_mov_b32 v{aV+i}, v{aV}')
for j in range(32): e(f'v_mov_b32 v{aOa+j}, 0')
EA = 1
STG = opt('stg', 0)
B2U = opt('b2u', 7)
def y_flag():
    E(f's_cmp_lg_u32 s{sW}, 7', 's_cbranch_scc1 L_flag_done')
    flag_store('kv', f's{sK1}')
    stamp(4, 'head')
    lab('L_flag_done')
if STG and opt('fu', 99) < 32:
    E(f's_cmp_eq_u32 s{sW}, 7', 's_cbranch_scc1 L_y7b', 's_waitcnt vmcnt(0)')
    lab('L_y7b')
else:
    e('s_waitcnt vmcnt(0)')
    y_flag()
e('s_barrier')
stamp(5, 'head'); stamp(1, 'all', 'x')
def qrd(u, qx=32, qw=40):
    sc, st = u >> 2, u & 3
    x = vFr + 8 * (u % 8)
    hi = sc >> 2
    o = (sc & 3) * 16384
    E(f'ds_read_b128 {vr(x,4)}, v{qx+4*hi+st} offset:{o}',
      f'ds_read_b64_tr_b16 {vr(x+4,2)}, v{qw+hi} offset:{o+st*2048}', f'ds_read_b64_tr_b16 {vr(x+6,2)}, v{qw+hi} offset:{o+st*2048+512}')
for u in range(5): qrd(u)
for u in range(32):
    x = vFr + 8 * (u % 8)
    lim = 16 if (STG and u < 16) else 32
    if STG and u == 16:
        e('s_barrier')
        for v_ in range(16, 21): qrd(v_)
    issued = min(lim, 5 + u)
    e(f's_waitcnt lgkmcnt({3*(issued-u-1)})')
    e(f'v_mfma_f32_32x32x16_bf16 {vr(vQacc,16)}, {vr(x+4,4)}, {vr(x,4)}, {"0" if u == 0 else vr(vQacc,16)}')
    if 5 + u < lim: qrd(5 + u)
    if STG and u == opt('fu', 99): y_flag()
    if not STG and u == B2U: e('s_barrier')
stamp(6, 'head')
E(f's_mov_b32 s{sC}, 0', f's_setprio {opt("yp", 1)}', f's_cmp_lg_u32 s{sW}, 7', 's_cbranch_scc1 L_nodense', 's_mov_b64 exec, 1',
  f'buffer_store_dwordx2 {vr(vNon,2)}, v{vZero}, {sr(S_WS,4)}, s{sOslot2} offen sc1', 's_mov_b64 exec, -1')
lab('L_nodense')
e('s_nop 7')
for j in range(0, 16, 2): e(f'v_pk_mul_f32 {vr(vQacc+j,2)}, {vr(vQacc+j,2)}, {sr(sCS,2)} op_sel_hi:[1,0]')
for j in range(8): e(f'v_cvt_pk_bf16_f32 v{vQa+j}, v{vQacc+2*j}, v{vQacc+2*j+1}')
stamp(7, 'head'); stamp(2, 'all', 'x')
e('s_barrier')
stamp(8, 'head'); stamp(3, 'all', 'x'); stamp(1, 'tail')
cstamp(10)
E(f'ds_read_b128 {vr(aK,4)}, v{vKa}', f'ds_read_b128 {vr(aK+4,4)}, v{vKa} offset:2048', f's_mov_b64 exec, {sr(sVM,2)}')
for j in range(4): e(f'ds_read_b128 {vr(aV+4*j,4)}, v{vVa} offset:{(j>>1)*2048+1024+(j&1)*512}')
E('s_mov_b64 exec, -1', 's_waitcnt lgkmcnt(5)',
  f'v_mfma_f32_32x32x16_bf16 {vr(aSa,16)}, {vr(aK,4)}, {vr(vQa,4)}, 0',
  f'v_mfma_f32_32x32x16_bf16 {vr(aSb,16)}, {vr(aK,4)}, {vr(vQb,4)}, 0', 's_nop 10')
maxtree([aSa+i for i in range(16)], vT0, vT1)
maxtree([aSb+i for i in range(16)], vT2, vT3)
E(f'v_permlane32_swap_b32 v{vT0}, v{vT1}', f'v_max_f32 v{vT0}, v{vT0}, v{vT1}', f'v_permlane32_swap_b32 v{vT2}, v{vT3}',
  f'v_sub_f32 v{aCa}, {f32(-MOFF)}, v{vT0}', f'v_max_f32 v{vT2}, v{vT2}, v{vT3}')
for i in range(1, 16): e(f'v_mov_b32 v{aCa+i}, v{aCa}')
E(f'v_sub_f32 v{aCb}, {f32(-MOFF)}, v{vT2}', f'v_mov_b32 v{aCb+1}, v{aCb}',
  f'v_mfma_f32_32x32x16_bf16 {vr(aSa,16)}, {vr(aK,4)}, {vr(vQa,4)}, {vr(aCa,16)}')
for i in range(2, 16): e(f'v_mov_b32 v{aCb+i}, v{aCb}')
if opt('ytc', 0): e(f'buffer_load_dword v{vD1}, v{vD0}, {sr(S_WOA,4)}, s{sWoff} offen')
E('s_waitcnt lgkmcnt(0)', f'v_exp_f32 v{aSa}, v{aSa}', f'v_exp_f32 v{aSa+1}, v{aSa+1}', 's_branch L_att_entry')

def dtile(par, ld_off, entry=False):
    K = aK + 8 * par; Kn = aK + 8 * (par ^ 1)
    V = aV + 16 * par; Vn = aV + 16 * (par ^ 1)
    def ex(S, a, b):
        for i in range(a, b): e(f'v_exp_f32 v{S+i}, v{S+i}')
    def pv(O, Vr, P):
        if 'nopv' in XP: return
        if 'pvhalf' in XP and (P in (aSa, aSb)): return
        e(f'v_smfmac_f32_32x32x32_bf16 {vr(O,16)}, {vr(Vr,4)}, {vr(P,8)}, v{vIdx}')
    def qk(S, Kr, Q, C): e(f'v_mfma_f32_32x32x16_bf16 {vr(S,16)}, {vr(Kr,4)}, {vr(Q,4)}, {vr(C,16)}')
    P1, P2, P3 = [int(c, 16) for c in opt('pos', '25a')]
    LDV = opt('ldv', 0)
    ex(aSa, 0, 2)
    if entry and P1 > 2: pass
    pv(aOb, Vn+12, aSb+8)
    if entry: lab('L_att_entry')
    def vld(js):
        e(f's_mov_b64 exec, {sr(sVM,2)}')
        for j in js: e(f'ds_read_b128 {vr(Vn+4*j,4)}, v{vVa} offset:{ld_off+(j>>1)*2048+1024+(j&1)*512}')
        e('s_mov_b64 exec, -1')
    def kld(j): e(f'ds_read_b128 {vr(Kn+4*j,4)}, v{vKa} offset:{ld_off+2048*j}')
    if LDV == 0: vld(range(4))
    ex(aSa, 2, P2); qk(aSb, K, vQb, aCb)
    if LDV == 0: kld(0); kld(1)
    if LDV == 1: kld(0)
    ex(aSa, P2, P3); pv(aOa, V, aSa)
    if LDV == 1: vld(range(4))
    if LDV == 2: vld(range(4)); kld(0); kld(1)
    ex(aSa, P3, 16)
    ex(aSb, 0, P1); pv(aOa, V+4, aSa+8); ex(aSb, P1, P2); qk(aSa, K+4, vQa, aCa); ex(aSb, P2, P3); pv(aOb, V, aSb)
    if LDV == 1: kld(1)
    ex(aSb, P3, 16)
    ex(aSa, 0, P1); pv(aOb, V+4, aSb+8); ex(aSa, P1, P2); qk(aSb, K+4, vQb, aCb); ex(aSa, P2, P3); pv(aOa, V+8, aSa); ex(aSa, P3, 16)
    ex(aSb, 0, P1); pv(aOa, V+12, aSa+8); e('s_waitcnt lgkmcnt(0)'); ex(aSb, P1, P2); qk(aSa, Kn, vQa, aCa); ex(aSb, P2, P3); pv(aOb, V+8, aSb); ex(aSb, P3, 16)

e('.p2align 6')
lab('L_att_top')
E(f'v_xor_b32 v{vKa}, 16384, v{vKa}', f'v_xor_b32 v{vVa}, 16384, v{vVa}', f's_cmp_eq_u32 s{sC}, 8', 's_barrier')
dtile(1, 0)
e('s_cbranch_scc1 L_att_done')
dtile(0, 4096, entry=True)
if opt('nomid', 0): NBAR[0] += 1
else: e('s_barrier')
dtile(1, 8192)
dtile(0, 12288)
E(f's_add_u32 s{sC}, s{sC}, 1', 's_branch L_att_top')
NBAR_Y = NBAR[0] - 2 + 16
lab('L_att_done')
E(f'ds_read_b32 v{vFl}, v{vKa}', f'v_smfmac_f32_32x32x32_bf16 {vr(aOb,16)}, {vr(aV+16+12,4)}, {vr(aSb+8,8)}, v{vIdx}')
stamp(4, 'all'); stamp(2, 'tail')
cstamp(11)
def chk(O, t):
    E(f'v_maximum3_f32 v{t}, abs(v{O}), abs(v{O+1}), abs(v{O+2})', f'v_maximum3_f32 v{t}, v{t}, abs(v{O+3}), abs(v{O+4})',
      f'v_maximum3_f32 v{t}, v{t}, abs(v{O+5}), abs(v{O+6})', f'v_maximum3_f32 v{t}, v{t}, abs(v{O+7}), v{O+8}')
def fin(O, t, d):
    for i in range(0, 8, 2): e(f'v_pk_mul_f32 {vr(d+4+i,2)}, {vr(O+i,2)}, {vr(t,2)} op_sel_hi:[1,0]')
    for i in range(4): e(f'v_cvt_pk_bf16_f32 v{d+i}, v{d+4+2*i}, v{d+4+2*i+1}')
lab('L_att_fin')
PADON[0] = opt('pad', 0); PADCNT[0] = 1000
E(f'v_rcp_f32 v{vT0}, v{aOa+8}', f's_mov_b32 s{sT0}, 0x7e000000')
chk(aOa, vT1)
fin(aOa, vT0, 16)
E(f'v_rcp_f32 v{vT2}, v{aOb+8}', 's_waitcnt lgkmcnt(0)', f'v_readfirstlane_b32 s{sT1}, v{vFl}')
chk(aOb, vT3)
fin(aOb, vT2, 28)
E(f'v_maximum3_f32 v{vT1}, v{vT1}, v{vT3}, v{vT3}', f'v_cmp_nle_f32 vcc, v{vT1}, s{sT0}'.replace('vcc, v', 'vcc, v'), f's_cmp_eq_u32 s{sT1}, 1', 's_cbranch_vccnz L_fallback' if 'nofb' not in XP else 's_nop 0')
lab('L_att_ok')
E('s_cbranch_scc0 L_st_slow',
  f'buffer_store_dwordx4 {vr(16,4)}, v{vL16}, {sr(S_WS,4)}, s{sOslot} offen',
  f'buffer_store_dwordx4 {vr(28,4)}, v{vL16}, {sr(S_WS,4)}, s{sOslot} offen offset:1024')
lab('L_st_j')
stamp(3, 'tail')
w_reads()
e(f's_mov_b32 s{sSpin}, {SPIN//10}')
if opt('tslp', 0): e(f's_sleep {opt("tslp", 0)}')
stamp(4, 'tail')
NPRE = opt('npre', 2)
o_loads(None, range(NPRE))
e(f's_mov_b32 s{sC}, 2')

cm('================ tail: out projections (X: branch A, Y: branch B) ================')
lab('L_tail_go')
e('s_waitcnt lgkmcnt(0)')
for g in range(4):
    rt = g >> 1
    b_ = oOf + 16 * g
    e(f's_waitcnt vmcnt({4*(min(4, NPRE+g)-g-1)})')
    lab(f'L_tg{g}')
    E(f'v_max3_u32 v{vT0}, v{b_}, v{b_+1}, v{b_+2}', f'v_max3_u32 v{vT1}, v{b_+3}, v{b_+4}, v{b_+5}')
    for k in range(6, 16, 2):
        t = vT0 if (k >> 1) & 1 else vT1
        e(f'v_max3_u32 v{t}, v{t}, v{b_+k}, v{b_+k+1}')
    E(f'v_max_u32 v{vT0}, v{vT0}, v{vT1}', f'v_cmp_eq_u32 vcc, -1, v{vT0}', f's_cbranch_vccnz L_tr{g}')
    lab(f'L_tk{g}')
    if g == 0: stamp(5, 'tail', 'all')
    if NPRE + g < 4: o_loads(None, [NPRE + g])
    if g == 2: e('s_barrier')
    order = [(s_, ct) for s_ in range(4*(g&1), 4*(g&1)+4) for ct in range(2)]
    if g == 3: order = sorted(order, key=lambda z: z[1])
    for m_, (s_, ct) in enumerate(order):
        a_ = oAcc + 32 * rt + 16 * ct
        e(f'v_mfma_f32_32x32x16_bf16 {vr(a_,16)}, {vr(oW+8*s_+4*ct,4)}, {vr(oOf+32*rt+4*s_,4)}, {"0" if s_ == 0 else vr(a_,16)}')
        if g == 2:
            e(f'ds_write_b128 v{80+m_ if m_ else vTp}, {vr(oAcc+4*m_,4)}')
e('s_nop 7')
PADON[0] = False
lab('L_tail_wr')
stamp(6, 'tail')
for q in range(8):
    e(f'ds_write_b128 v{80+q if q else vTp}, {vr(oAcc+32+4*q,4)} offset:8192')
E('s_waitcnt lgkmcnt(0)', 's_barrier')
stamp(7, 'tail')
lab('L_red')
tR = 96
for kq in range(4):
    E(f'ds_read_b128 {vr(tR+8*kq,4)}, v{vTr0} offset:{kq*16384}', f'ds_read_b128 {vr(tR+8*kq+4,4)}, v88 offset:{kq*16384}')
e('s_waitcnt lgkmcnt(4)')
for i in range(0, 8, 2): e(f'v_pk_add_f32 {vr(tR+i,2)}, {vr(tR+i,2)}, {vr(tR+8+i,2)}')
e('s_waitcnt lgkmcnt(0)')
for a_, b_ in ((16, 24), (0, 16)):
    for i in range(0, 8, 2): e(f'v_pk_add_f32 {vr(tR+a_+i,2)}, {vr(tR+a_+i,2)}, {vr(tR+b_+i,2)}')
for i in range(4): e(f'v_cvt_pk_bf16_f32 v{16+i}, v{tR+2*i}, v{tR+2*i+1}')
e(f'buffer_store_dwordx4 {vr(16,4)}, v{vTo}, {sr(S_OUT,4)}, s{sOutOff} offen{opt("of", "_nt").replace("_", " ")}')
E(f's_cmp_eq_u32 s{sC}, 2', 's_cbranch_scc1 L_fin',
  f's_add_u32 s{sC}, s{sC}, 1', f's_cmp_eq_u32 s{sC}, 1', f's_cselect_b32 s{sT0}, 1, 8', f's_cselect_b32 s{sT1}, 64, 1', f's_lshl_b32 s{sT1}, s{sT1}, 10', f's_lshl_b32 s{sT0}, s{sT0}, 13',
  f'v_add_u32 v{vTr0}, s{sT0}, v{vTr0}', f'v_add_u32 v88, s{sT0}, v88', f's_add_u32 s{sOutOff}, s{sOutOff}, s{sT1}',
  f's_cmp_eq_u32 s{sC}, 1', 's_cbranch_scc1 L_red', 's_barrier', 's_branch L_red')
lab('L_fin')
if STAMPS:
    stamp(8, 'tail')
    e('s_waitcnt vmcnt(0)')
    stamp(9, 'tail', 'head'); stamp(6, 'all')
    E('s_waitcnt lgkmcnt(0)', 's_nop 1')
    ECHO = [a[7:] for a in sys.argv if a.startswith('--echo=')]
    if ECHO:
        a_, b_, mul = map(int, ECHO[0].split(','))
        E(f's_sub_u32 s{sT0}, s{sST+2*b_}, s{sST+2*a_}', f's_mul_i32 s{sT0}, s{sT0}, {mul}')
        if opt('ehg', -1) >= 0:
            E(f's_cmp_eq_u32 s{sHG}, {opt("ehg", -1)}', f's_cselect_b32 s{sT0}, s{sT0}, 0', f's_cmp_ge_u32 s{sW}, 4' if STMODE == 'all' else f's_cmp_lt_u32 s{sW}, 4', f's_cselect_b32 s{sT0}, s{sT0}, 0')
        if opt('erole', ''):
            E({'x': f's_cmp_lt_u32 s{sW}, 4', 'y': f's_cmp_ge_u32 s{sW}, 4', 'k': f's_cmp_eq_u32 s{sW}, 7'}[opt('erole', '')], f's_cselect_b32 s{sT0}, s{sT0}, 0')
        E(f's_memrealtime {sr(6,2)}', 's_waitcnt lgkmcnt(0)')
        lab('L_echo')
        E(f's_memrealtime {sr(4,2)}', 's_waitcnt lgkmcnt(0)', f's_sub_u32 s{sT1}, s4, s6', f's_cmp_lt_u32 s{sT1}, s{sT0}', 's_cbranch_scc1 L_echo')
    for i in range(12): e(f'v_mov_b32 v{16+i}, s{sST+2*i}')
    E(f's_getreg_b32 s{sT0}, hwreg(HW_REG_XCC_ID)', f'v_mov_b32 v28, s{sT0}', f'v_mov_b32 v29, s{sSpin}', f'v_mov_b32 v30, s{sFB}', 'v_mov_b32 v31, 0',
      f's_lshl_b32 s{sT0}, s2, 3', f's_add_u32 s{sT0}, s{sT0}, s{sW}', f's_lshl_b32 s{sT0}, s{sT0}, 6', f's_add_u32 s{sT0}, s{sT0}, {hex(WS_STAMP)}',
      'v_mov_b32 v0, 0', 's_mov_b64 exec, 1')
    for i in range(4):
        e(f'buffer_store_dwordx4 {vr(16+4*i,4)}, v0, {sr(S_WS,4)}, s{sT0} offen offset:{16*i}')
lab('L_end')
e('s_endpgm')

cm('================ X program (waves 0-3) ================')
VMQ[:] = []; NBAR[0] = 0
xAcc, xFr, xMask = 96, 160, 32
xa, xb, xw = 56, 60, 64
(xFw, xLq, xLv, xLvp, xOne) = (72, 73, 74, 75, 76)
XV, XM, PACE = opt('xv', 2), opt('xm', 0), opt('pace', 2)
e('.p2align 6')
lab('L_X')
srd(S_WQ, 0x80000); srd(S_XA, 0x200000); srd(S_WQKV, 0x180000)
E(f's_or_b32 s{sT1}, s2, s{sW}', 's_cbranch_scc1 L_nonon', 's_waitcnt lgkmcnt(0)',
  f's_lshl_b64 {sr(sNon,2)}, {sr(sNon,2)}, 5', f's_or_b32 s{sNon}, s{sNon}, 1', f'v_mov_b32 v{vNon}, s{sNon}', f'v_mov_b32 v{vNon+1}, s{sNon+1}', 's_mov_b64 exec, 1',
  f'global_store_dwordx2 v{vZero}, {vr(vNon,2)}, {sr(S_DBG,2)} sc1', 's_mov_b64 exec, -1')
lab('L_nonon')
E(f'v_and_b32 v{vT3}, 1, v{vG}', f'v_lshlrev_b32 v{vT3}, 2, v{vT3}', f'v_xor_b32 v{vT3}, v{vT3}, v{vT2}', f'v_lshlrev_b32 v{vT3}, 4, v{vT3}',
  f'v_lshl_add_u32 v{vW}, v{vT1}, 10, v{vT3}', f'v_add_u32 v{vW2}, {8192-1024}, v{vW}',
  f'v_mul_u32_u24 v{vWA}, 3072, v{vT1}', f'v_add_u32 v{vWA}, v{vWA}, v{vT3}')
lane_setup()
SH4 = ['0', f's{sVM}', f's{sVM+1}', f's{sC}']; RG4 = [82, 84, 86, 88]
qx, qw = 56, 64
q_addr(qx, qw)
AR = opt('arot', 0)
if AR == 1: E(f's_add_u32 s{sXo}, s{sRot}, s{sHG}', f's_and_b32 s{sXo}, s{sXo}, 7', f's_lshl_b32 s{sXo}, s{sXo}, 7')
elif AR == 2: E(f's_lshr_b32 s{sXo}, s{sRB}, 2', f's_lshl_b32 s{sXo}, s{sXo}, 7')
elif AR == 3: E(f's_lshr_b32 s{sXo}, s{sRB}, 2', f's_lshl_b32 s{sT0}, s{sRB}, 2', f's_add_u32 s{sXo}, s{sXo}, s{sT0}', f's_and_b32 s{sXo}, s{sXo}, 7', f's_lshl_b32 s{sXo}, s{sXo}, 7')
elif AR == 4: E(f's_and_b32 s{sXo}, s{sRB}, 1', f's_lshl_b32 s{sXo}, s{sXo}, 9')
else: e(f's_mov_b32 s{sXo}, 0')
E(f's_lshl_b32 s{sW2k}, s{sW}, 11',
  f's_lshl_b32 s{sT3}, s{sRB}, 2', f's_add_u32 s{sT0}, s{sT3}, s{sW}', f's_lshl_b32 s{sT0}, s{sT0}, 14', f'v_add_u32 v{vXA}, s{sT0}, v{vP0}', f'v_add_u32 v{vXA2}, s{sT0}, v{vP1}',
  f's_mul_i32 s{sT0}, s{sW}, {16*3072}', f's_add_u32 s{sT0}, s{sT0}, s{sHG128}', f'v_add_u32 v{vWA}, s{sT0}, v{vWA}', f'v_add_u32 v{vWA2}, {8*3072-1024}, v{vWA}')
def w64(srd_, lds_base_sgpr, lds, tag):
    for hf in range(2):
        E(f's_add_u32 m0, s{lds_base_sgpr}, {lds+hf*4096}', f's_add_u32 s{sT1}, s{sT0}, {2*7168}')
        dma(vW, srd_, f's{sT0}', 0, '', tag); dma(vW2, srd_, f's{sT0}', 1024, '', tag)
        dma(vW, srd_, f's{sT1}', 2048, '', tag); dma(vW2, srd_, f's{sT1}', 3072, '', tag)
        if hf == 0: e(f's_add_u32 s{sT0}, s{sT0}, 32768')
vTc = 68
def touch_setup():
    E(f's_lshr_b32 s{sT0}, s2, 3', f's_lshl_b32 s{sT0}, s{sT0}, 2', f's_add_u32 s{sT0}, s{sT0}, s{sW}',
      f's_mul_i32 s{sT1}, s{sT0}, {12*128}', f'v_mul_u32_u24 v{vTc}, {196608}, v{vG}', f'v_lshl_add_u32 v{vTc}, v{vI}, 7, v{vTc}', f'v_add_u32 v{vTc}, s{sT1}, v{vTc}',
      f's_lshl_b32 s{sT1}, s{sT0}, 12', f'v_lshlrev_b32 v{vTc+1}, 7, v{vN}', f'v_add_u32 v{vTc+1}, s{sT1}, v{vTc+1}',
      f's_lshl_b32 s{sT1}, s{sHG}, 2', f's_add_u32 s{sT1}, s{sT1}, s{sW}', f's_lshl_b32 s{sT1}, s{sT1}, 11', f's_lshl_b32 s{sT2}, s{sRB}, 16', f's_add_u32 s{sT1}, s{sT1}, s{sT2}',
      f'v_lshlrev_b32 v{vTc+2}, 7, v{vI}', f'v_add_u32 v{vTc+2}, s{sT1}, v{vTc+2}')
def touch_w(j):
    E(f's_mov_b32 s{sT0}, {j*4*196608}', 's_mov_b32 exec_lo, 0x0fff0fff', 's_mov_b32 exec_hi, 0x0fff0fff')
    e(f'buffer_load_dword v{vTc+3}, v{vTc}, {sr(S_WQKV,4)}, s{sT0} offen', 'tc')
    e('s_mov_b64 exec, -1')
def touch_x():
    e('s_mov_b64 exec, 0xffff')
    e(f'buffer_load_dword v{vTc+3}, v{vTc+2}, {sr(S_XA,4)}, 0 offen{NT}', 'tc')
    e('s_mov_b64 exec, -1')
def touch_wo(srd_):
    e('s_mov_b32 exec_hi, 0')
    e(f'buffer_load_dword v{vTc+3}, v{vTc+1}, {sr(srd_,4)}, 0 offen', 'tc')
    e('s_mov_b64 exec, -1')
TC = opt('tc', 0)
def halo_fill():
    E(f's_lshl_b32 s{sT3}, s{sRB}, 16', f's_sub_u32 s{sT2}, s{sT3}, 16384', f's_max_i32 s{sT2}, s{sT2}, 0',
      f's_lshl_b32 s{sT0}, s{sW}, 7', f's_add_u32 s{sT0}, s{sT0}, s{sStepH}')
    for j in range(2):
        E(f's_and_b32 s{sT0}, s{sT0}, 1023', f's_add_u32 m0, s{sW2k}, {HALO+j*8192}', f's_add_u32 s{sT1}, s{sT2}, s{sT0}')
        dma(vP0, S_XA, f's{sT1}', 0, '', 'halo'); dma(vP1, S_XA, f's{sT1}', 1024, '', 'halo')
        if j == 0: e(f's_add_u32 s{sT0}, s{sT0}, 512')
def a_fill(c):
    slot = (c & 3) * SLOT
    t = f'A{c}'
    E(f's_add_u32 m0, s{sW2k}, {slot}', f's_mul_i32 s{sWo}, s{sXo}, 1536')
    dma(vXA, S_XA, f's{sXo}', 0, NT, t); dma(vXA2, S_XA, f's{sXo}', 1024, NT, t)
    for ty in range(3):
        E(f's_add_u32 m0, s{sW2k}, {slot+8192+ty*8192}', [f's_add_u32 s{sXo}, s{sXo}, 128', f's_add_u32 s{sWo}, s{sWo}, 1024', f's_add_u32 s{sWo}, s{sWo}, 1024'][ty])
        dma(vWA, S_WQKV, f's{sWo}', 0, WNT, t); dma(vWA2, S_WQKV, f's{sWo}', 1024, WNT, t)
    e(f's_and_b32 s{sXo}, s{sXo}, 1023')
def kv_fill(k):
    E(f's_add_u32 m0, s{sW4k}, {R+((k&1)^1)*16384}', f's_and_b32 s{sKVo}, s{sKVo}, 0x1ffff')
    for j in range(4): dma(vL16, S_WS, f's{sKVo}', 1024*j, ' sc1', f'KV{k}')
    e(f's_add_u32 s{sKVo}, s{sKVo}, 16384')
def wo_fill(srd_, half, lds, tag):
    e(f's_add_u32 s{sT0}, s{sWoff}, {half*256*1024}')
    if opt('woc', 1): return wcoop(srd_, 4, lds, 8192, tag)
    if opt('worot', 1): e(f's_and_b32 s{sT0}, s{sT0}, 0x7ffff')
    w64(srd_, sW8k, lds, tag)
def masks():
    E(f'v_lshlrev_b32 v{vT0}, 2, v{vH}', f'v_sub_u32 v{vT0}, v{vN}, v{vT0}', f'v_add_u32 v{vT0}, 18, v{vT0}',
      f'v_mov_b32 v{vT2}, 0x5555', f'v_mov_b32 v{vT3}, 0', f'v_lshlrev_b64 {vr(vT2,2)}, v{vT0}, {vr(vT2,2)}',
      f'v_not_b32 v{vT2}, v{vT2}', f'v_not_b32 v{vT3}, v{vT3}', f's_mov_b32 s{sF1}, 0xff800000')
    for r in range(16): E(f'v_bfe_i32 v{xMask+r}, v{vT3}, {8*(r>>2)+(r&3)}, 1', f'v_and_b32 v{xMask+r}, s{sF1}, v{xMask+r}')
    for r in range(8, 16): E(f'v_bfe_i32 v{xMask+8+r}, v{vT2}, {8*(r>>2)+(r&3)}, 1', f'v_and_b32 v{xMask+8+r}, s{sF1}, v{xMask+8+r}')
def local_setup():
    E(f's_and_b32 s{sT0}, s{sW}, 1', f's_lshl_b32 s{sT0}, s{sT0}, 12', f's_lshr_b32 s{sT1}, s{sW}, 1', f's_lshl_b32 s{sT2}, s{sT1}, 11', f's_add_u32 s{sT0}, s{sT0}, s{sT2}', f's_add_u32 s{sT0}, s{sT0}, {SC}', f'v_add_u32 v{xFw}, s{sT0}, v{vL16}',
      f's_lshl_b32 s{sT0}, s{sRB}, 3', f's_add_u32 s{sT0}, s{sT0}, s{sHG}', f's_lshl_b32 s{sStepA}, s{sT0}, 13', f's_add_u32 s{sStepA}, s{sStepA}, s{sT2}', f's_add_u32 s{sStepA}, s{sStepA}, {hex(WS_HX)}',
      f's_lshl_b32 s{sStepB}, s{sT0}, 1', f's_add_u32 s{sStepB}, s{sStepB}, s{sT1}', f's_lshl_b32 s{sStepB}, s{sStepB}, 6', f's_add_u32 s{sStepB}, s{sStepB}, {hex(WS_FHX)}',
      f's_cmp_eq_u32 s{sRB}, 0', f's_cselect_b32 s{sT2}, 0, 8', f's_sub_u32 s{sT0}, s{sT0}, s{sT2}', f's_lshl_b32 s{sT2}, s{sT2}, 7', f's_sub_u32 s{sT2}, s{sStepB}, s{sT2}', f'v_mov_b32 v{vB1}, s{sT2}',
      f's_lshl_b32 s{sStepH}, s{sT0}, 13', f's_lshl_b32 s{sT2}, s{sW}, 10', f's_add_u32 s{sStepH}, s{sStepH}, s{sT2}', f's_add_u32 s{sStepH}, s{sStepH}, {hex(WS_HX)}',
      f'v_mov_b32 v{xOne}, 0x3f803f80', f'v_mov_b32 v{xOne+1}, 0x3f803f80',
      f's_lshl_b32 s{sT1}, s{sW}, 10', f's_add_u32 s{sT2}, s{sT1}, {ONES}', f's_add_u32 s{sT1}, s{sT1}, {SC}', f'v_add_u32 v{xLq}, s{sT1}, v{vL16}',
      f'v_and_b32 v{vT0}, 1, v0', f'v_lshlrev_b32 v{vT0}, 5, v{vT0}', f'v_lshl_add_u32 v{vT0}, v{vH}, 3, v{vT0}',
      f'v_lshrrev_b32 v{vT1}, 2, v{vI}', f'v_add_u32 v{vT0}, v{vT0}, v{vT1}', f'v_lshlrev_b32 v{vT0}, 4, v{vT0}', f'v_and_b32 v{vT1}, 2, v0', f'v_lshl_add_u32 v{vT0}, v{vT1}, 2, v{vT0}',
      f'v_add_u32 v{xLv}, s{sT1}, v{vT0}', f'v_mov_b32 v{xLvp}, s{sT2}', f'v_lshl_add_u32 v{vOw}, v0, 3, v{xLvp}',
      f'v_and_b32 v{vT0}, 16, v0', f'v_cmp_ne_u32 vcc, 0, v{vT0}',
      f'v_add_u32 v78, {4*4096}, v{xLv}', f'v_add_u32 v79, {5*4096}, v{xLv}', f'v_add_u32 v80, {7*4096}, v{xLv}',
      f'v_cndmask_b32 v78, v78, v{xLvp}, vcc', f'v_cndmask_b32 v79, v79, v{xLvp}, vcc', f'v_cndmask_b32 v80, v80, v{xLvp}, vcc',
      f's_lshl_b32 s{sT0}, s{sRB}, 6', f's_lshl_b32 s{sT1}, s{sHG}, 2', f's_add_u32 s{sT1}, s{sT1}, s{sW}', f's_add_u32 s{sT0}, s{sT0}, s{sT1}',
      f's_lshl_b32 s{sT0}, s{sT0}, 10', f's_add_u32 s{sOslot}, s{sT0}, {hex(WS_OA)}', f's_add_u32 s{sOslot2}, s{sOslot}, 32768',
      f's_lshl_b32 s{sT0}, s{sRB}, 5', f's_add_u32 s{sT0}, s{sT0}, s{sT1}', f's_lshl_b32 s{sT0}, s{sT0}, 6', f's_add_u32 s{sK1}, s{sT0}, {hex(WS_FOA)}')
    for i in range(4): e(f'v_mov_b32 v{vF0+i}, -1')
def sentinels():
    E(f's_add_u32 s{sT0}, s{sOslot}, {hex(WS_OB-WS_OA)}', f's_add_u32 s{sT1}, s{sT0}, 32768')
    e(f'buffer_store_dwordx4 {vr(vF0,4)}, v{vL16}, {sr(S_WS,4)}, s{sT0} offen sc1', 'sent')
    e(f'buffer_store_dwordx4 {vr(vF0,4)}, v{vL16}, {sr(S_WS,4)}, s{sT1} offen sc1', 'sent')
    nonce_load('sent')
def setup_a():
    E(f's_cmp_eq_u32 s{sW}, 3', f's_cselect_b32 s{sT1}, 15, 31', f'v_and_b32 v{vT0}, s{sT1}, v{vN}', f'v_lshl_add_u32 v{xa}, v{vT0}, 7, v{vXx}',
      f's_cselect_b32 s{sT1}, {HALO}, 0', f'v_add_u32 v{xa}, s{sT1}, v{xa}', f's_cselect_b32 s{sT1}, 0, 4096', f'v_add_u32 v{xb}, s{sT1}, v{xa}',
      f's_cselect_b32 s{sStepA}, 1, 16', f's_cselect_b32 s{sStepB}, 1, -32', f's_cselect_b32 s{sT1}, 1, s{sW}', f's_cselect_b32 s{sT2}, 2, s{sW}',
      f's_lshl_b32 s{sStepA}, s{sStepA}, 11', f's_lshl_b32 s{sStepB}, s{sStepB}, 11',
      f's_lshl_b32 s{sT1}, s{sT1}, 13', f's_add_u32 s{sT1}, s{sT1}, 8192', f'v_add_u32 v{xw}, s{sT1}, v{vWl}', f'v_xor_b32 v{xw+1}, 64, v{xw}',
      f's_lshl_b32 s{sT2}, s{sT2}, 13', f's_add_u32 s{sT2}, s{sT2}, 8192', f'v_add_u32 v{xw+2}, s{sT2}, v{vWl}', f'v_xor_b32 v{xw+3}, 64, v{xw+2}')
    for j in range(4): e(f'v_add_u32 v{xw+4+j}, 65536, v{xw+j}')
    for s_ in range(1, 4): E(f'v_xor_b32 v{xa+s_}, {32*s_}, v{xa}', f'v_xor_b32 v{xb+s_}, {32*s_}, v{xb}')
def setup_b():
    E(f's_lshr_b32 s{sT1}, s{sRB}, 2', f's_lshl_b32 s{sKVo}, s{sT1}, 14', f's_add_u32 s{sKVo}, s{sKVo}, s{sW4k}',
      f'v_lshlrev_b32 v{vPa}, 3, v0', f'v_add_u32 v{vPa}, {hex(WS_FD)}, v{vPa}',
      f'v_lshlrev_b32 v{vPa2}, 6, v{vN}', f's_lshl_b32 s{sT2}, s{sRB}, 11', f's_add_u32 s{sT2}, s{sT2}, {hex(WS_FOA)}', f'v_add_u32 v{vPa2}, s{sT2}, v{vPa2}',
      f's_lshl_b32 s{sT2}, s{sT1}, 2', f's_add_u32 s{sT2}, s{sT2}, s{sW}', f's_lshl_b32 s{sT2}, s{sT2}, 3',
      f'v_and_b32 v{vBW}, 7, v0', f'v_add_u32 v{vBW}, s{sT2}, v{vBW}',
      f'v_and_b32 v{vB0}, 8, v0', f'v_lshlrev_b32 v{vB0}, 2, v{vB0}', f'v_add3_u32 v{vB0}, v{vB0}, v{vBW}, 32', f'v_and_b32 v{vB0}, 255, v{vB0}',
      f'v_lshlrev_b32 v{vB0}, 6, v{vB0}', f'v_add_u32 v{vB0}, {hex(WS_FKV)}, v{vB0}',
      f'v_lshlrev_b32 v{vBW}, 6, v{vBW}', f'v_add_u32 v{vBW}, {hex(WS_FKV)}, v{vBW}',
      f's_mov_b32 s{sVM}, 512', f's_mov_b32 s{sVM+1}, 1024', f's_mov_b32 s{sC}, 1536',
      f's_lshl_b32 s{sW8k}, s{sW}, 13', f's_lshl_b32 s{sWoff}, s{sW}, {14 if opt("woc", 1) else 16}', f's_add_u32 s{sWoff}, s{sWoff}, s{sHG128}')
    if opt('worot', 1): E(f's_lshl_b32 s{sT2}, s{sRB}, 17', f's_add_u32 s{sWoff}, s{sWoff}, s{sT2}')
    srd(S_WOA, 0x80000); srd(S_WOB, 0x80000)
    E(f's_getreg_b32 s{sXcc}, hwreg(HW_REG_XCC_ID, 0, 4)', f's_lshl_b32 s{sXcc}, s{sXcc}, 1')
setup_b()
def wcoop(srd_, n, lds, ldstep, tag):
    for j in range(n):
        E(f's_add_u32 m0, s{sW2k}, {lds+j*ldstep}', f's_and_b32 s{sT0}, s{sT0}, 0x7ffff')
        dma(vW, srd_, f's{sT0}', 0, '', tag); dma(vW2, srd_, f's{sT0}', 1024, '', tag)
        if j < n - 1: e(f's_add_u32 s{sT0}, s{sT0}, 65536')
if opt('wqc', 1):
    E(f's_lshl_b32 s{sT0}, s{sRot}, 16', f's_lshl_b32 s{sT2}, s{sW}, 14', f's_add_u32 s{sT0}, s{sT0}, s{sT2}', f's_add_u32 s{sT0}, s{sT0}, s{sHG128}',
      's_waitcnt lgkmcnt(0)', 's_barrier')
    if STG:
        NS1 = opt('ns', 6)
        wcoop(S_WQ, NS1, 8192, 16384, 'B')
        E(f's_waitcnt vmcnt({2*(NS1-4)})', 's_barrier', f's_add_u32 s{sT0}, s{sT0}, 65536')
        stamp(4, 'head')
        wcoop(S_WQ, 8-NS1, 8192+NS1*16384, 16384, 'B')
    else:
        wcoop(S_WQ, 8, 8192, 16384, 'B')
else:
    E(f's_add_u32 s{sT0}, s{sW}, s{sRot}', f's_lshl_b32 s{sT0}, s{sT0}, 16', f's_add_u32 s{sT0}, s{sT0}, s{sHG128}', f's_lshl_b32 s{sT2}, s{sW}, 14',
      f's_and_b32 s{sT0}, s{sT0}, 0x7ffff', 's_waitcnt lgkmcnt(0)', 's_barrier')
    w64(S_WQ, sT2, 8192, 'B')
    E(f's_add_u32 s{sT0}, s{sT0}, {4*65536-32768}', f's_and_b32 s{sT0}, s{sT0}, 0x7ffff')
    w64(S_WQ, sT2, 65536+8192, 'B')
stamp(1, 'head')
local_setup()
E('s_waitcnt vmcnt(0)', 's_barrier')
stamp(5, 'head'); stamp(1, 'all', 'x')
if not STG:
    tail_setup()
    e('s_barrier')
if opt('psl', 0): e(f's_sleep {opt("psl", 0)}')
poll_issue(vBW, ['0'], [vFl])
A0P = opt('a0p', 0)
if A0P == 1: a_fill(0)
if STG: tail_setup()
masks()
poll_check('kv', vBW, ['0'], [vFl], 8 if A0P == 1 else 0)
stamp(6, 'head')
kv_fill(0)
poll_issue(vB0, ['0'], [vFl]); VMQ += ['p', 'p']
if A0P == 0: a_fill(0)
for j in range(16): E(f'v_mov_b32 v{208+j}, 0', f'v_mov_b32 v{16+j}, 0')
E(f's_setprio {XV}', f's_waitcnt vmcnt({vmn("KV0")})')
stamp(7, 'head'); stamp(2, 'all', 'x')
e('s_barrier')
stamp(8, 'head'); stamp(3, 'all', 'x')

def a_chunk(cs, side=()):
    side = list(side)
    seq = []
    u = 0
    for c in cs:
        hi, base = (c >> 1) & 1, (c & 1) * SLOT
        for s in range(4):
            x = xFr + 16 * (u % 3); u += 1
            for ty in range(3):
                r = [f'ds_read_b128 {vr(x,4)}, v{qx+4*hi+s} offset:{base}'] if ty == 0 else []
                o = base + ty * 8192 + s * 2048
                r += [f'ds_read_b64_tr_b16 {vr(x+4+4*ty,2)}, v{qw+hi} offset:{o}', f'ds_read_b64_tr_b16 {vr(x+6+4*ty,2)}, v{qw+hi} offset:{o+512}']
                a = xAcc + 16 * ty
                seq.append((r, f'v_mfma_f32_32x32x16_bf16 {vr(a,16)}, {vr(x+4+4*ty,4)}, {vr(x,4)}, {"0" if (c == 0 and s == 0) else vr(a,16)}'))
    if XM != XV: e(f's_setprio {XM}')
    LA = opt('la', 1)
    for k_ in range(LA): E(*seq[k_][0])
    for k_, (r, m) in enumerate(seq):
        if k_ + LA < len(seq): E(*seq[k_+LA][0])
        e(f's_waitcnt lgkmcnt({sum(len(seq[j][0]) for j in range(k_+1, min(len(seq), k_+LA+1)))})')
        e(m)
        take = -(-len(side) // (len(seq) - k_))
        for g in side[:take]:
            for s_, t_ in g: e(s_, t_)
        side = side[take:]
    if XM != XV: e(f's_setprio {XV}')
def write_frags():
    e('s_nop 6')
    for ty in range(3):
        for hd in range(2):
            a = xAcc + 16 * ty + 8 * hd
            for i in range(4): e(f'v_cvt_pk_bf16_f32 v{a+i}, v{a+2*i}, v{a+2*i+1}')
            e(f'ds_write_b128 v{xFw}, {vr(a,4)} offset:{ty*8192+hd*1024}')
    E(f's_bitcmp1_b32 s{sW}, 0', 's_cbranch_scc0 L_nopub', f's_add_u32 s{sT0}, s{sStepA}, 4096',
      f'buffer_store_dwordx4 {vr(xAcc+16,4)}, v{vL16}, {sr(S_WS,4)}, s{sStepA} offen sc1',
      f'buffer_store_dwordx4 {vr(xAcc+24,4)}, v{vL16}, {sr(S_WS,4)}, s{sStepA} offen offset:1024 sc1',
      f'buffer_store_dwordx4 {vr(xAcc+32,4)}, v{vL16}, {sr(S_WS,4)}, s{sT0} offen sc1',
      f'buffer_store_dwordx4 {vr(xAcc+40,4)}, v{vL16}, {sr(S_WS,4)}, s{sT0} offen offset:1024 sc1')
    lab('L_nopub')
PUB = [0]
def halo_flag():
    E(f's_bitcmp1_b32 s{sW}, 0', 's_cbranch_scc0 L_nohf')
    flag_store('hx', f's{sStepB}', f's_waitcnt vmcnt({len(VMQ)-PUB[0]})')
    lab('L_nohf')
def halo_get():
    poll_check('hx', vB1, ['0'], [vFl], None)
    E(f's_lshl_b32 s{sT0}, s{sW}, 10', f's_add_u32 m0, s{sT0}, {SC+6*4096}', f's_add_u32 s{sT1}, s{sStepH}, 4096')
    dma(vL16, S_WS, f's{sStepH}', 0, ' sc1', 'hx')
    E(f's_add_u32 m0, s{sT0}, {SC+7*4096}', 's_nop 0')
    dma(vL16, S_WS, f's{sT1}', 0, ' sc1', 'hx')
def local_task(t):
    lq, lk, lp, lv = xFr, xFr+4, xFr+8, xFr+12
    lS, lP, lO = xAcc, xAcc+16, (16 if t else 208)
    kp = 6 if t == 0 else 2
    vc, vp = (78, 80) if t == 0 else (79, 78)
    E(f'ds_read_b128 {vr(lq,4)}, v{xLq} offset:{t*4096}', f'ds_read_b128 {vr(lk,4)}, v{xLq} offset:{(2+t)*4096}', f'ds_read_b128 {vr(lp,4)}, v{xLq} offset:{kp*4096}',
      f'ds_read_b64_tr_b16 {vr(lv,2)}, v{vc}', f'ds_read_b64_tr_b16 {vr(lv+2,2)}, v{vc} offset:64',
      f'ds_read_b64_tr_b16 {vr(lv+4,2)}, v{vc} offset:256', f'ds_read_b64_tr_b16 {vr(lv+6,2)}, v{vc} offset:320',
      f'ds_read_b64_tr_b16 {vr(lv+8,2)}, v{vp} offset:256', f'ds_read_b64_tr_b16 {vr(lv+10,2)}, v{vp} offset:320')
    if t == 0:
        E(f's_cmp_lg_u32 s{sRB}, 0', 's_cbranch_scc1 L_m0')
        for r in range(8): e(f'v_mov_b32 v{xMask+16+r}, 0xff800000')
        lab('L_m0')
    E('s_waitcnt lgkmcnt(6)', 's_nop 0',
      f'v_mfma_f32_32x32x16_bf16 {vr(lS,16)}, {vr(lk,4)}, {vr(lq,4)}, {vr(xMask,16)}',
      f'v_mfma_f32_32x32x16_bf16 {vr(lP,16)}, {vr(lp,4)}, {vr(lq,4)}, {vr(xMask+8,16)}')
    e('s_nop 10')
    regs = [lS+i for i in range(16)] + [lP+8+i for i in range(8)]
    maxtree(regs, vT0, vT1)
    E('s_nop 1', f'v_permlane32_swap_b32 v{vT0}, v{vT1}', f'v_max_f32 v{vT0}, v{vT0}, v{vT1}', f'v_mul_f32 v{vT0}, {f32(-CSCALE)}, v{vT0}')
    for k in range(0, 24, 2): e(f'v_pk_fma_f32 {vr(regs[k],2)}, {vr(regs[k],2)}, {sr(sCS,2)}, {vr(vT0,2)} op_sel_hi:[1,0,0]')
    e('s_waitcnt lgkmcnt(0)')
    for k in range(24):
        e(f'v_exp_f32 v{regs[k]}, v{regs[k]}')
        if k == 9: e(f'v_smfmac_f32_32x32x32_bf16 {vr(lO,16)}, {vr(lv,4)}, {vr(lS,8)}, v{vIdx}')
        if k == 17: e(f'v_smfmac_f32_32x32x32_bf16 {vr(lO,16)}, {vr(lv+4,4)}, {vr(lS+8,8)}, v{vIdx}')
    E('s_nop 1', f'v_smfmac_f32_32x32x32_bf16 {vr(lO,16)}, {vr(lv+8,4)}, {vr(lP+8,8)}, v{vIdx}', 's_nop 11',
      f'v_rcp_f32 v{vT2}, v{lO+8}', 's_nop 0')
    for i in range(0, 8, 2): e(f'v_pk_mul_f32 {vr(lO+i,2)}, {vr(lO+i,2)}, {vr(vT2,2)} op_sel_hi:[1,0]')
    d = xAcc + 48 + 4 * t
    for i in range(4): e(f'v_cvt_pk_bf16_f32 v{d+i}, v{lO+2*i}, v{lO+2*i+1}')
    e(f'buffer_store_dwordx4 {vr(d,4)}, v{vL16}, {sr(S_WS,4)}, s{sOslot2 if t else sOslot} offen sc1', 'oa')

def oa_mfma(rt, wr=False):
    for s_ in range(8):
        for ct in range(2):
            a_ = oAcc + 32 * rt + 16 * ct
            e(f'v_mfma_f32_32x32x16_bf16 {vr(a_,16)}, {vr(oW+8*s_+4*ct,4)}, {vr(oOf+32*rt+4*s_,4)}, {"0" if s_ == 0 else vr(a_,16)}')
            m_ = 2 * s_ + ct
            if wr and wr <= m_ < wr + 4:
                for q in (2*(m_-wr), 2*(m_-wr)+1): e(f'ds_write_b128 v{80+q if q else vTp}, {vr(oAcc+4*q,4)}')
PAT = opt('pat', 3)
if PAT == 3:
    CH = {n: [n-2] for n in range(2, 10)}; FILL = {n: [n] for n in range(8)}
else:
    CH = {2: [0], 3: [1], 4: [2], 5: [3, 4], 6: [5], 7: [6], 8: [7]}; FILL = {0: [0], 1: [1], 2: [2, 3], 3: [4], 4: [5], 5: [6], 6: [7]}
if EA:
    CH = {n: [n-1] for n in range(1, 9)}; FILL = {n: [n+1] for n in range(7)}
NG = max(CH)
LATE = opt('xlate', 1 if NG < 9 else 0)
AE = opt('aearly', 0)
for n in range(16):
    cm(f'X interval {n}')
    if n < 9: stamp(n + 1, 'i0')
    if n >= 8: stamp(n - 7, 'i1')
    if n in (opt('dn', 2), opt('dn', 2)+1, opt('dn', 2)+2): stamp(1 + 4*(n-opt('dn', 2)), 'd')
    if n in (1, 2, 4, 10, 12, 14): stamp({1: 4, 2: 5, 4: 6, 10: 7, 12: 8, 14: 9}[n], 'x')
    if STAMPS and STMODE == 'xc' and n in (4, 8, 10, 12, 14, 15):
        i_ = (4, 8, 10, 12, 14, 15).index(n)
        E(f's_memrealtime {sr(sST+4*i_,2)}', f's_memtime {sr(sST+4*i_+2,2)}')
    waits = []
    k = n // 2
    if n == 0:
        if A0P == 2: a_fill(0)
        poll_check('kv1', vB0, ['0'], [vFl], vmn('p'))
        kv_fill(1)
    ILV = opt('ilv', 1) and n in CH
    if n == 3:
        E(f's_cmp_lg_u32 s{sW}, 0', 's_cbranch_scc1 L_np3')
        poll_issue(vPa, SH4, RG4)
        lab('L_np3')
        NP3 = len(VMQ)
    if ILV: CAP[0] = []
    if n % 2 == 0 and 1 <= k <= 6: kv_fill(k + 1)
    for c in FILL.get(n, []): a_fill(c)
    WS_ = opt('wos', 3)
    if n == NG - 1: sentinels()
    if WS_ == 0:
        if n == NG - 1: wo_fill(S_WOA, 0, 0, 'woA')
        if n == NG: wo_fill(S_WOA, 1, SLOT, 'woA')
    if WS_ == 3 and n == NG - 1: wo_fill(S_WOA, 0, 0, 'woA')
    if WS_ == 2:
        if n == NG - 2: wo_fill(S_WOA, 0, 0, 'woA')
        if n == NG - 1: wo_fill(S_WOA, 1, SLOT, 'woA')
    if TC & 1 and n == 0: touch_x(); touch_w(0)
    if TC & 2 and n == 2: touch_w(1)
    if TC & 4 and n == 3: touch_wo(S_WOA)
    if TC & 4 and n == 5: touch_wo(S_WOB)
    DN = opt('dn', 2)
    side = []
    if ILV:
        cap = CAP[0]; CAP[0] = None
        g = []
        for it in cap:
            g.append(it)
            if it[1] is not None: side.append(g); g = []
        if g: side[-1] += g
    if n in (DN, DN+1): stamp(2 + 4*(n-DN), 'd')
    if n in CH: a_chunk(CH[n], side)
    if n in (DN, DN+1): stamp(3 + 4*(n-DN), 'd')
    for c in CH.get(n + 1, []): waits.append(f'A{c}')
    if n == NG: write_frags(); PUB[0] = len(VMQ)
    if n == NG + 1:
        e(f'ds_write_b64 v{vOw}, {vr(xOne,2)}')
        if opt('hfe', 1): halo_flag()
        local_task(1)
        if not opt('hfe', 1): halo_flag()
    if n == NG + 2:
        halo_get()
        if WS_ == 1: wo_fill(S_WOA, 0, 0, 'woA')
        if WS_ == 3: wo_fill(S_WOA, 1, SLOT, 'woA')
    if n == NG + 3:
        e(f's_waitcnt vmcnt({vmn("hx")})')
        local_task(0)
        if WS_ == 3: waits.append('woA')
        if WS_ == 1: wo_fill(S_WOA, 1, SLOT, 'woA')
    if n == NG + 4:
        if LATE: wo_fill(S_WOB, 0, 2*SLOT, 'woB')
        flag_store('oa', f's{sK1}', f's_waitcnt vmcnt({vmn("oa")})', xcc=True)
        VMQ.append('fl')
        if WS_ != 1 and not LATE: w_reads()
    if WS_ != 1 and LATE and n == NG + 5: w_reads()
    if LATE and n == NG + 5 and WS_ != 1: wo_fill(S_WOB, 1, 3*SLOT, 'woB')
    if WS_ == 1 and n == NG + 5: waits.append('woA')
    if n == NG + 5 + LATE:
        E(f's_cmp_lg_u32 s{sW}, 0', 's_cbranch_scc1 L_skip_oa')
        poll_check('oa', vPa2, ['0'], [vFl], None, xcc=True)
        E(f'v_or_b32 v{vFl}, s{sXcc}, v{vNon}', f'v_cmp_ne_u32 vcc, v{vFl}, v{vFl+2}', 's_nop 1', 's_cmp_eq_u64 vcc, 0', f's_cselect_b32 s{sT0}, {opt("fast", 1)}, 0',
          f'v_mov_b32 v{vFl}, s{sT0}')
        lab('L_skip_oa')
        if not LATE: wo_fill(S_WOB, 0, 2*SLOT, 'woB'); wo_fill(S_WOB, 1, 3*SLOT, 'woB')
        if WS_ == 1: wo_fill(S_WOB, 1, 3*SLOT, 'woB'); w_reads()
    if n == NG + 6 + LATE:
        E(f's_cmp_lg_u32 s{sW}, 0', 's_cbranch_scc1 L_skip_same', f'v_mov_b32 v{vFl+1}, {R+16384}', f'ds_write_b32 v{vFl+1}, v{vFl}')
        lab('L_skip_same')
        o_loads('oal')
    if n == 13 and opt('pad', 0):
        E('s_mov_b64 exec, 0', 's_branch L_pad0')
        lab(f'L_pad{PADS[0]}')
        e('s_mov_b64 exec, -1')
    if n == 15 and AE:
        E('s_waitcnt vmcnt(8)', f's_setprio {XM}')
        oa_mfma(0)
        e(f's_setprio {XV}')
    if n % 2 == 1 and k + 1 <= 7: waits.append(f'KV{k+1}')
    if n == 15: waits.append('woB')
    if waits: e(f's_waitcnt vmcnt({min(vmn(t) for t in waits)}) lgkmcnt(0)')
    else: e('s_waitcnt lgkmcnt(0)')
    if n == 3:
        E(f's_cmp_lg_u32 s{sW}, 0', 's_cbranch_scc1 L_nochk_kv2')
        poll_check('kv2', vPa, SH4, RG4, len(VMQ) - NP3)
    if n < 9: stamp(n + 1, 'j0')
    if n >= 8: stamp(n - 7, 'j1')
    if n in (DN, DN+1): stamp(4 + 4*(n-DN), 'd')
    if opt('nomid', 0) and n % 2 == 0: NBAR[0] += 1
    else: e('s_barrier')
assert NBAR[0] == NBAR_Y, (NBAR[0], NBAR_Y)
E('s_setprio 0', f's_mov_b32 s{sSpin}, 0', f's_mov_b32 s{sC}, 0')
stamp(9, 'i1')
e('s_waitcnt vmcnt(0)')
stamp(5, 'tail')
if not AE: oa_mfma(0)
oa_mfma(1, 10)
E('s_nop 9', 's_branch L_tail_wr')

cm('---- fallback (Y waves): true max, K/V from global ----')
lab('L_fallback')
E(f's_cmp_eq_u32 s{sFB}, 0', 's_cbranch_scc1 L_fb_go', f's_cmp_eq_u32 s{sT1}, 1', 's_branch L_att_ok')
lab('L_fb_go')
E(f's_mov_b32 s{sFB}, 1', f'v_mov_b32 v{vT0}, 0xff800000', f'v_mov_b32 v{vT2}, 0xff800000', f's_mov_b32 s{sT2}, 0')
lab('L_fb_max')
E(f'buffer_load_dwordx4 {vr(aK,4)}, v{vL16}, {sr(S_WS,4)}, s{sT2} offen sc1', 's_waitcnt vmcnt(0)',
  f'v_mfma_f32_32x32x16_bf16 {vr(aSa,16)}, {vr(aK,4)}, {vr(vQa,4)}, 0', f'v_mfma_f32_32x32x16_bf16 {vr(aSb,16)}, {vr(aK,4)}, {vr(vQb,4)}, 0', 's_nop 15')
for k in range(0, 16, 2): e(f'v_max3_f32 v{vT0}, v{vT0}, v{aSa+k}, v{aSa+k+1}')
for k in range(0, 16, 2): e(f'v_max3_f32 v{vT2}, v{vT2}, v{aSb+k}, v{aSb+k+1}')
E(f's_add_u32 s{sT2}, s{sT2}, 2048', f's_cmp_lt_u32 s{sT2}, {64*2048}', 's_cbranch_scc1 L_fb_max',
  f'v_mov_b32 v{vT1}, v{vT0}', f'v_mov_b32 v{vT3}, v{vT2}', 's_nop 1',
  f'v_permlane32_swap_b32 v{vT0}, v{vT1}', f'v_permlane32_swap_b32 v{vT2}, v{vT3}', f'v_max_f32 v{vT0}, v{vT0}, v{vT1}', f'v_max_f32 v{vT2}, v{vT2}, v{vT3}')
for i in range(16): e(f'v_sub_f32 v{aCa+i}, 0, v{vT0}')
for i in range(16): e(f'v_sub_f32 v{aCb+i}, 0, v{vT2}')
for i in range(32): e(f'v_mov_b32 v{aOa+i}, 0')
E(f'v_lshlrev_b32 v{vT2}, 4, v{vI}', f'v_lshl_add_u32 v{vT2}, v{vH}, 8, v{vT2}', f's_mov_b32 s{sT2}, 0')
lab('L_fb_pv')
E(f'buffer_load_dwordx4 {vr(aK,4)}, v{vL16}, {sr(S_WS,4)}, s{sT2} offen sc1', f's_mov_b64 exec, {sr(sVM,2)}',
  f'buffer_load_dwordx4 {vr(aV,4)}, v{vT2}, {sr(S_WS,4)}, s{sT2} offen offset:1024 sc1',
  f'buffer_load_dwordx4 {vr(aV+4,4)}, v{vT2}, {sr(S_WS,4)}, s{sT2} offen offset:1536 sc1', 's_mov_b64 exec, -1', 's_waitcnt vmcnt(0)',
  f'v_mfma_f32_32x32x16_bf16 {vr(aSa,16)}, {vr(aK,4)}, {vr(vQa,4)}, {vr(aCa,16)}',
  f'v_mfma_f32_32x32x16_bf16 {vr(aSb,16)}, {vr(aK,4)}, {vr(vQb,4)}, {vr(aCb,16)}', 's_nop 15')
for i in range(32): e(f'v_exp_f32 v{aSa+i}, v{aSa+i}')
E('s_nop 1',
  f'v_smfmac_f32_32x32x32_bf16 {vr(aOa,16)}, {vr(aV,4)}, {vr(aSa,8)}, v{vIdx}', f'v_smfmac_f32_32x32x32_bf16 {vr(aOa,16)}, {vr(aV+4,4)}, {vr(aSa+8,8)}, v{vIdx}',
  f'v_smfmac_f32_32x32x32_bf16 {vr(aOb,16)}, {vr(aV,4)}, {vr(aSb,8)}, v{vIdx}', f'v_smfmac_f32_32x32x32_bf16 {vr(aOb,16)}, {vr(aV+4,4)}, {vr(aSb+8,8)}, v{vIdx}',
  f's_add_u32 s{sT2}, s{sT2}, 2048', f's_cmp_lt_u32 s{sT2}, {64*2048}', 's_cbranch_scc1 L_fb_pv', 's_nop 15', 's_branch L_att_fin')
for g, so in enumerate((sOoff, sT1, sT2, sT3)):
    lab(f'L_tr{g}')
    E(f's_sub_u32 s{sSpin}, s{sSpin}, 1', f's_cbranch_scc1 L_tk{g}')
    for j in range(4):
        o = f' offset:{j*1024}' if j else ''
        e(f'buffer_load_dwordx4 {vr(oOf+16*g+4*j,4)}, v{vL16}, {sr(S_WS,4)}, s{so} offen{o} sc1')
    E('s_waitcnt vmcnt(0)', f's_branch L_tg{g}')
lab('L_st_slow')
E(f'buffer_store_dwordx4 {vr(16,4)}, v{vL16}, {sr(S_WS,4)}, s{sOslot} offen sc1',
  f'buffer_store_dwordx4 {vr(28,4)}, v{vL16}, {sr(S_WS,4)}, s{sOslot} offen offset:1024 sc1', 's_branch L_st_j')
lab('L_code_end')

HDR = open(f'cdna_kernels/{NAME}.s.ref').read().split('\n')
hdr = []
for line in HDR:
    if line.startswith('; @launch'): break
    hdr.append(line)
txt = '\n'.join(hdr) + '\n; @launch grid=(256,1,1) block=(512,1,1) lds=163840\n'
txt += '''; ---------------------------------------------------------------------------------------------
; Design (generated by a hand-written generator script; one fused launch, 256 workgroups, one per CU)
;    (non-finite / too large accumulators) falls back to a two-pass path that uses the true row max.
;  logical waves 0-3 ("X"): q projection, all of branch A (qkv GEMM, banded softmax with true max, out projection)
;    and all LDS-DMA traffic, running beside the attention waves.
; ---------------------------------------------------------------------------------------------
'''
txt += f'''.amdgcn_target "amdgcn-amd-amdhsa--gfx950"
.text
.globl {NAME}_kernel
.p2align 8
.type {NAME}_kernel,@function
'''
txt += '\n'.join(L) + '\n'
txt += f'''.section .rodata,"a"
.p2align 6
.amdhsa_kernel {NAME}_kernel
  .amdhsa_next_free_vgpr {NVGPR}
  .amdhsa_next_free_sgpr 102
  .amdhsa_accum_offset {NVGPR}
  .amdhsa_group_segment_fixed_size 0
  .amdhsa_kernarg_size 88
  .amdhsa_user_sgpr_count 2
  .amdhsa_user_sgpr_kernarg_segment_ptr 1
  .amdhsa_system_sgpr_workgroup_id_x 1
.end_amdhsa_kernel
'''
open(OUT, 'w').write(txt)
print('wrote', OUT, len(L), 'lines; barriers', NBAR_Y)
```

```python
import sys, struct

NAME = 'concat_heads__sliding_local_dilated__grouped_kv_mqa__prompt'
STAMPS = '--stamps' in sys.argv
STMODE = ([a[5:] for a in sys.argv if a.startswith('--st=')] + ['all'])[0]
XP = [a[4:] for a in sys.argv if a.startswith('--x=')]
args = [a for a in sys.argv[1:] if not a.startswith('--')]
OUT = args[0] if args else f'cdna_kernels/{NAME}.s'
def opt(name, default):
    for a in XP:
        if a.startswith(name): return type(default)(a[len(name):])
    return default

L = []
VMQ = []
NBAR = [0]
CAP = [None]
def e(s, tag=None):
    if CAP[0] is not None:
        CAP[0].append((s, tag)); return
    if tag is not None: VMQ.append(tag)
    if s == 's_barrier': NBAR[0] += 1
    L.append('    ' + s.strip())
    if PADON[0]:
        PADCNT[0] += 4 if (s.startswith('s_') and '0x' not in s) else 8
        if PADCNT[0] >= PADON[0] and not s.startswith('v_cmp') and 'abs' not in s:
            PADCNT[0] = 0; pad()
PADS = [0]
PADON = [False]
PADCNT = [0]
def lab(s): L.append(s + ':')
def pad():
    i = PADS[0]; PADS[0] += 1
    L.append(f'L_pad{i}:'); L.append(f'    s_cbranch_execz L_pad{i+1}')
def cm(s): L.append('    ; ' + s)
def vr(i, n): return f'v[{i}:{i+n-1}]'
def sr(i, n): return f's[{i}:{i+n-1}]'
def f32(x): return '0x%08x' % struct.unpack('<I', struct.pack('<f', x))[0]
def vmn(tag):
    idx = max(i for i, t in enumerate(VMQ) if t == tag)
    n = len(VMQ) - 1 - idx
    assert n <= 63
    return n
def E(*lines):
    for s in lines: e(s)

SLOT = 32768
R = 131072
HALO = 3 * SLOT
ONES = 3 * SLOT
SC = 2 * SLOT
WS_FHX = 0x60000
WS_HX = 0x600000
WS_FKV = 0x40000
WS_FOA = 0x48000
WS_FD = 0x44000
WS_OA = 0x100000
WS_OB = 0x300000
WS_STAMP = 0x500000
WS_SIZE = 0x800000
CSCALE = 0.25 * 1.4426950408889634
MOFF = float(opt('moff', 100))
VSC = 2.0 ** 40
ONEB = 0x53805380
SPIN = 200000
NT = '' if 'nont' in XP else ' nt'
WNT = ' nt' if 'wnt' in XP else ''

S_XA, S_WQKV, S_WOA, S_XB, S_WQ, S_WKV, S_WOB, S_OUT, S_WS = 8, 12, 16, 20, 24, 28, 32, 36, 40
S_DBG = 44
S_WV = 46
sP = 46
sW = 48
sRB, sHG = 49, 50
sT0, sT1, sT2, sT3 = 51, 52, 53, 54
sC = 55
sStepA, sStepB = 56, 57
sXo, sWo = 58, 59
sKVo = 60
sW4k, sW8k, sW2k = 61, 62, 63
sVM = 64
sOoff, sOutOff, sWoff, sSpin = 66, 67, 68, 69
sOslot, sOslot2 = 70, 71
sFB, sHG128, sCS, sQ = 72, 73, 74, 75
sRot, sK1 = 4, 5
sF0, sF1, sF2 = 3, 6, 7
sST = 76
sNon = 100
sStepH = 31
sXcc = 30

vL16, vW, vWA, vXA = 1, 2, 3, 4
vN, vH, vI = 5, 6, 7
vT0, vT1, vT2, vT3 = 8, 9, 10, 11
vP0, vP1, vXx, vG = 12, 13, 14, 15
vQacc = 16
vFr = 96
(vB0, vB1, vBW, vWl, vIdx, vPa, vQx, vW2, vTw0, vTw1, vTp, vTr0, vTo, vPa2, vZero, vOw,
 vF0, vF1, vF2, vF3, vWA2, vXA2) = range(232, 254)
vNon, vFl = 90, 92
NVGPR = 256

def stamp(i, *modes):
    if STAMPS and STMODE in modes: e(f's_memrealtime {sr(sST+2*i,2)}')
def cstamp(i):
    if STAMPS and STMODE != 'xc': e(f's_memtime {sr(sST+2*i,2)}')
def dma(voff, srd_, soff, off=0, fl='', tag='x'):
    o = f' offset:{off}' if off else ''
    e(f'buffer_load_dwordx4 v{voff}, {sr(srd_,4)}, {soff} offen{o}{fl} lds', tag)
def srd(reg, size): E(f's_mov_b32 s{reg+2}, {hex(size)}', f's_mov_b32 s{reg+3}, 0x20000')
def nonce_load(tag=None): e(f'global_load_dwordx2 {vr(vNon,2)}, v{vZero}, {sr(S_DBG,2)} sc1', tag)
def poll_issue(vaddr, soffs, regs, non=True):
    if non: nonce_load()
    for so, r in zip(soffs, regs):
        e(f'buffer_load_dwordx2 {vr(r,2)}, v{vaddr}, {sr(S_WS,4)}, {so} offen sc1')
def poll_check(tag, vaddr, soffs, regs, issued, xcc=False):
    e(f's_mov_b32 s{sSpin}, {SPIN}')
    if issued is not None: E(f's_waitcnt vmcnt({issued})', f's_branch L_chk_{tag}')
    lab(f'L_rep_{tag}')
    poll_issue(vaddr, soffs, regs)
    e('s_waitcnt vmcnt(0)')
    lab(f'L_chk_{tag}')
    e(f'v_cmp_eq_u32 vcc, 0, v{vNon}')
    if xcc: E(f'v_mov_b32 v{vFl+2}, v{vFl}', f'v_and_b32 v{vFl}, 0xffffffe1, v{vFl}')
    for r in regs:
        E(f'v_cmp_ne_u64 {sr(sP,2)}, {vr(vNon,2)}, {vr(r,2)}', 's_nop 1', f's_or_b64 vcc, vcc, {sr(sP,2)}')
    E(f's_cbranch_scc0 L_nochk_{tag}', f's_sub_u32 s{sSpin}, s{sSpin}, 1', f's_cbranch_scc0 L_rep_{tag}')
    lab(f'L_nochk_{tag}')
def flag_store(tag, soff, first_wait='s_waitcnt vmcnt(0)', xcc=False, soff2=None):
    e(f's_mov_b32 s{sSpin}, {SPIN}')
    e(first_wait)
    lab(f'L_fw_{tag}')
    E(f'v_cmp_eq_u32 vcc, 0, v{vNon}', f's_cbranch_vccz L_fs_{tag}')
    nonce_load()
    E('s_waitcnt vmcnt(0)', f's_sub_u32 s{sSpin}, s{sSpin}, 1', f's_cbranch_scc0 L_fw_{tag}')
    lab(f'L_fs_{tag}')
    if xcc: e(f'v_or_b32 v{vNon}, s{sXcc}, v{vNon}')
    E('s_mov_b64 exec, 1', f'buffer_store_dwordx2 {vr(vNon,2)}, v{vZero}, {sr(S_WS,4)}, {soff} offen sc1')
    if soff2: e(f'buffer_store_dwordx2 {vr(vNon,2)}, v{vZero}, {sr(S_WS,4)}, {soff2} offen sc1')
    e('s_mov_b64 exec, -1')
def maxtree(rs, t0, t1):
    e(f'v_max3_f32 v{t0}, v{rs[0]}, v{rs[1]}, v{rs[2]}')
    e(f'v_max3_f32 v{t1}, v{rs[3]}, v{rs[4]}, v{rs[5]}')
    for k in range(6, len(rs), 4):
        e(f'v_max3_f32 v{t0}, v{t0}, v{rs[k]}, v{rs[k+1]}')
        if k + 3 < len(rs): e(f'v_max3_f32 v{t1}, v{t1}, v{rs[k+2]}, v{rs[k+3]}')
    e(f'v_max_f32 v{t0}, v{t0}, v{t1}')
    e(f'v_mov_b32 v{t1}, v{t0}')
def lane_setup():
    E(f'v_and_b32 v{vN}, 31, v0', f'v_lshrrev_b32 v{vH}, 5, v0', f'v_and_b32 v{vI}, 15, v0',
      f'v_lshrrev_b32 v{vWl}, 2, v{vI}', f'v_lshl_add_u32 v{vWl}, v{vH}, 3, v{vWl}', f'v_lshlrev_b32 v{vWl}, 7, v{vWl}',
      f'v_and_b32 v{vF0}, 8, v{vI}', f'v_lshl_add_u32 v{vWl}, v{vF0}, 3, v{vWl}', f'v_and_b32 v{vF0}, 16, v0',
      f'v_lshl_add_u32 v{vWl}, v{vF0}, 1, v{vWl}', f'v_and_b32 v{vF0}, 3, v0', f'v_lshl_add_u32 v{vWl}, v{vF0}, 3, v{vWl}',
      f's_lshl_b32 s{sW4k}, s{sQ}, 12', f's_add_u32 s{sF0}, s{sW4k}, {R}', f'v_add_u32 v{vQx}, s{sF0}, v{vL16}',
      f'v_mov_b32 v{vIdx}, 0xdddddddd', f's_mov_b32 s{sFB}, 0')
def q_addr(qx, qw):
    E(f'v_bfe_u32 v{vXx}, v{vN}, 1, 3', f'v_xor_b32 v{vXx}, v{vXx}, v{vH}', f'v_lshlrev_b32 v{vXx}, 4, v{vXx}',
      f's_and_b32 s{sF0}, s{sW}, 1', f's_lshl_b32 s{sF0}, s{sF0}, 12', f'v_lshl_add_u32 v{qx}, v{vN}, 7, v{vXx}', f'v_add_u32 v{qx}, s{sF0}, v{qx}',
      f'v_xor_b32 v{qx+1}, 32, v{qx}', f'v_xor_b32 v{qx+2}, 64, v{qx}', f'v_xor_b32 v{qx+3}, 96, v{qx}',
      f's_and_b32 s{sF2}, s{sW}, 2', f's_lshl_b32 s{sF2}, s{sF2}, 5', f'v_xor_b32 v{qw}, s{sF2}, v{vWl}', f'v_add_u32 v{qw}, 8192, v{qw}', f'v_add_u32 v{qw+1}, 65536, v{qw}',
      f's_mov_b32 s{sCS}, {f32(CSCALE)}')
    for j in range(4): e(f'v_add_u32 v{qx+4+j}, 65536, v{qx+j}')
oOf, oW, oAcc = 16, 96, 160
def tail_setup():
    E(f's_mov_b32 s{S_OUT+2}, 0x400000', f's_mov_b32 s{S_OUT+3}, 0x20000',
      f's_lshr_b32 s{sF2}, s{sW}, 2', f's_lshl_b32 s{sF1}, s{sW}, 14',
      f'v_lshlrev_b32 v{vT0}, 9, v{vH}', f'v_sub_u32 v{vTw0}, v{vWl}, v{vT0}', f'v_add_u32 v{vTw0}, s{sF1}, v{vTw0}', f'v_xor_b32 v{vTw1}, 64, v{vTw0}',
      f'v_xor_b32 v{vT0}, v{vH}, v{vI}', f'v_lshlrev_b32 v{vT0}, 4, v{vT0}', f'v_lshl_add_u32 v{vT0}, v{vN}, 8, v{vT0}', f'v_add_u32 v{vTp}, s{sF1}, v{vT0}',
      f'v_lshrrev_b32 v{vT0}, 3, v0', f's_lshl_b32 s{sF1}, s{sQ}, 3', f'v_add_u32 v{vT0}, s{sF1}, v{vT0}', f'v_and_b32 v{vT1}, 7, v0', f'v_lshlrev_b32 v{vT2}, 1, v{vT1}',
      f'v_and_b32 v{vT3}, 15, v{vT0}', f'v_xor_b32 v{vT2}, v{vT2}, v{vT3}', f'v_lshlrev_b32 v{vT2}, 4, v{vT2}', f'v_lshl_add_u32 v{vT2}, v{vT0}, 8, v{vT2}',
      f's_lshl_b32 s{sF1}, s{sF2}, 16', f'v_add_u32 v{vTr0}, s{sF1}, v{vT2}',
      f'v_lshlrev_b32 v{vT1}, 4, v{vT1}', f'v_lshl_add_u32 v{vTo}, v{vT0}, 11, v{vT1}',
      f's_lshl_b32 s{sOutOff}, s{sRB}, 17', f's_lshl_b32 s{sF1}, s{sF2}, 10', f's_add_u32 s{sOutOff}, s{sOutOff}, s{sF1}', f's_add_u32 s{sOutOff}, s{sOutOff}, s{sHG128}',
      f's_lshl_b32 s{sOoff}, s{sRB}, 16', f's_add_u32 s{sF1}, s{sQ}, s{sRB}' if opt('worot', 1) else f's_mov_b32 s{sF1}, s{sQ}', f's_and_b32 s{sF1}, s{sF1}, 3', f's_lshl_b32 s{sF1}, s{sF1}, 13', f's_add_u32 s{sOoff}, s{sOoff}, s{sF1}',
      f's_lshl_b32 s{sF1}, s{sF2}, 21', f's_add_u32 s{sOoff}, s{sOoff}, s{sF1}', f's_add_u32 s{sOoff}, s{sOoff}, {hex(WS_OA)}')
assert WS_OB - WS_OA == 1 << 21
def w_reads():
    for s in range(8):
        x = oW + 8 * s
        E(f'ds_read_b64_tr_b16 {vr(x,2)}, v{vTw0} offset:{s*2048}', f'ds_read_b64_tr_b16 {vr(x+2,2)}, v{vTw0} offset:{s*2048+1024}',
          f'ds_read_b64_tr_b16 {vr(x+4,2)}, v{vTw1} offset:{s*2048}', f'ds_read_b64_tr_b16 {vr(x+6,2)}, v{vTw1} offset:{s*2048+1024}')
    for q in range(1, 8): e(f'v_xor_b32 v{80+q}, {(2*q)<<4}, v{vTp}')
    e(f'v_xor_b32 v88, 16, v{vTr0}')
def o_loads(tag=None, gs=(0, 1, 2, 3)):
    if 0 in gs: E(f's_add_u32 s{sT1}, s{sOoff}, 4096', f's_add_u32 s{sT2}, s{sOoff}, 32768', f's_add_u32 s{sT3}, s{sOoff}, {32768+4096}')
    for g, so in enumerate((sOoff, sT1, sT2, sT3)):
        if g not in gs: continue
        for j in range(4):
            o = f' offset:{j*1024}' if j else ''
            e(f'buffer_load_dwordx4 {vr(oOf+16*g+4*j,4)}, v{vL16}, {sr(S_WS,4)}, s{so} offen{o} sc1', tag)

lab(f'{NAME}_kernel')
if STAMPS:
    for i in range(12): e(f's_mov_b32 s{sST+2*i}, 0')
stamp(0, 'all', 'head', 'tail', 'x', 'i0', 'i1', 'j0', 'j1', 'd')
for reg, off in ((S_XB,24),(S_WKV,40),(S_WV,48),(S_WQ,32),(S_DBG,72),(S_WS,80),(S_XA,0),(S_WQKV,8),(S_WOA,16),(S_WOB,56),(S_OUT,64)):
    e(f's_load_dwordx2 {sr(reg,2)}, s[0:1], {off}')
e(f's_memrealtime {sr(sNon,2)}')
E('s_cmp_ge_u32 s2, 256', 's_cbranch_scc1 L_end')
if opt('cpf', 1) == 2:
    e(f's_getpc_b64 {sr(sOoff,2)}')
    lab('L_pc')
    E(f'v_subrev_u32 v{vF0}, 64, v0', f'v_cmp_gt_u32 vcc, 6, v{vF0}', f's_and_saveexec_b64 {sr(sVM,2)}, vcc', 's_cbranch_execz L_nopf',
      f's_lshr_b32 s{sT0}, s2, 3', f's_mul_i32 s{sT0}, s{sT0}, 768', f'v_lshl_add_u32 v{vF0}, v{vF0}, 7, s{sT0}',
      f'v_min_u32 v{vF0}, L_code_end-L_pc-4, v{vF0}', f'global_load_dword v{vF1}, v{vF0}, {sr(sOoff,2)}')
    lab('L_nopf')
    e('s_mov_b64 exec, -1')
E(
  f'v_lshrrev_b32 v{vT0}, 6, v0', 'v_and_b32 v0, 63, v0', f'v_readfirstlane_b32 s{sW}, v{vT0}',
  f's_and_b32 s{sT0}, s2, 7', f's_bfe_u32 s{sRot}, s2, 0x20003', f's_lshl_b32 s{sRB}, s{sT0}, 2',
  f's_add_u32 s{sRB}, s{sRB}, s{sRot}', f's_lshr_b32 s{sHG}, s2, 5',
  f'v_lshlrev_b32 v{vL16}, 4, v0', f'v_lshrrev_b32 v{vG}, 4, v0', f'v_lshrrev_b32 v{vT1}, 3, v0', f'v_and_b32 v{vT2}, 7, v0',
  f'v_xor_b32 v{vT3}, v{vT2}, v{vG}', f'v_lshlrev_b32 v{vT3}, 4, v{vT3}', f'v_lshl_add_u32 v{vP0}, v{vT1}, 10, v{vT3}',
  f'v_xor_b32 v{vP1}, 64, v{vP0}', f'v_add_u32 v{vP1}, {8192-1024}, v{vP1}', f'v_mov_b32 v{vZero}, 0',
  f's_xor_b32 s{sW}, s{sW}, 7', f's_lshl_b32 s{sRot}, s{sRot}, 1', f's_lshl_b32 s{sHG128}, s{sHG}, 7', f's_and_b32 s{sQ}, s{sW}, 3')
if opt('brx', 0): E(f's_lshr_b32 s{sT0}, s{sRB}, 2', f's_add_u32 s{sRot}, s{sRot}, s{sT0}', f's_and_b32 s{sRot}, s{sRot}, 7')
if opt('brh', 1): E(f's_add_u32 s{sRot}, s{sRot}, s{sHG}', f's_and_b32 s{sRot}, s{sRot}, 7')
if opt('hgx', 0): E(f's_xor_b32 s{sHG}, s{sHG}, {opt("hgx", 0)}', f's_lshl_b32 s{sHG128}, s{sHG}, 7')
srd(S_WS, WS_SIZE)
E(f's_cmp_lt_u32 s{sW}, 4', 's_cbranch_scc1 L_X')

cm('================ Y program (waves 4-7) ================')
aSa, aSb, aCa, aCb, aOa, aOb = 96, 112, 128, 144, 160, 176
aK, aV = 192, 56
vQa, vQb = 208, 212
vKa, vVa = 216, 217
srd(S_XB, 0x200000); srd(S_WKV, 0x4000)
vD0, vD1 = 218, 219
E(f's_lshr_b32 s{sT1}, s{sHG}, 1', f's_add_u32 s{sT1}, s{sT1}, s{sW}', f's_add_u32 s{sT1}, s{sT1}, 1', f's_and_b32 s{sT1}, s{sT1}, 3',
  f's_lshl_b32 s{sT2}, s{sT1}, 11',
  f's_lshl_b32 s{sT3}, s{sRB}, 2', f's_add_u32 s{sT3}, s{sT3}, s{sT1}', f's_lshl_b32 s{sT3}, s{sT3}, 14',
  f'v_add_u32 v{vD0}, s{sT3}, v{vP0}', f'v_add_u32 v{vD1}, s{sT3}, v{vP1}',
  f's_lshl_b32 s{sXo}, s{sRot}, 7',
  f's_cmp_lg_u32 s{sW}, 7', 's_cbranch_scc1 L_Yset')
def x_sub(s, tag):
    E(f's_add_u32 m0, s{sT2}, {s*16384}', f's_and_b32 s{sXo}, s{sXo}, 1023')
    dma(vD0, S_XB, f's{sXo}', 0, NT, tag); dma(vD1, S_XB, f's{sXo}', 1024, NT, tag)
E(f's_bitcmp1_b32 s{sHG}, 0', 's_waitcnt lgkmcnt(0)',
  f's_cselect_b32 s{S_WKV}, s{S_WV}, s{S_WKV}', f's_cselect_b32 s{S_WKV+1}, s{S_WV+1}, s{S_WKV+1}')
if opt('kvl', 1):
    E(f's_mov_b32 s{sT0}, s{sT2}', f's_mov_b32 s{sT1}, {R}')
    lab('L_kvl')
    E(f's_mov_b32 m0, s{sT0}', f's_and_b32 s{sXo}, s{sXo}, 1023')
    dma(vD0, S_XB, f's{sXo}', 0, NT, None); dma(vD1, S_XB, f's{sXo}', 1024, NT, None)
    E(f's_mov_b32 m0, s{sT1}', f's_lshl_b32 s{sWo}, s{sXo}, 4')
    dma(vL16, S_WKV, f's{sWo}', 0, '', None); dma(vL16, S_WKV, f's{sWo}', 1024, '', None)
    E(f's_add_u32 s{sXo}, s{sXo}, 128', f's_add_u32 s{sT0}, s{sT0}, 16384', f's_add_u32 s{sT1}, s{sT1}, 2048', f's_cmp_lt_u32 s{sT1}, {R+16384}', 's_cbranch_scc1 L_kvl')
else:
    for s_ in range(8):
        x_sub(s_, None)
        E(f's_mov_b32 m0, {R+s_*2048}', f's_lshl_b32 s{sWo}, s{sXo}, 4')
        dma(vL16, S_WKV, f's{sWo}', 0, '', None); dma(vL16, S_WKV, f's{sWo}', 1024, '', None)
        if s_ < 7: e(f's_add_u32 s{sXo}, s{sXo}, 128')
e('s_barrier'); NBAR[0] -= 1
stamp(1, 'head')
e('s_branch L_Yset2')
lab('L_Yset')
e('s_waitcnt lgkmcnt(0)')
if opt('cpf', 1) == 1:
    e('s_getpc_b64 s[0:1]')
    lab('L_pc')
    E(f's_sub_u32 s0, s0, L_pc-{NAME}_kernel', 's_subb_u32 s1, s1, 0',
      f's_lshr_b32 s{sT0}, s2, 3', f's_mul_i32 s{sT0}, s{sT0}, 3', f's_add_u32 s{sT0}, s{sT0}, s{sQ}', f's_lshl_b32 s{sT0}, s{sT0}, 8',
      f'v_lshlrev_b32 v{vF0}, 7, v0', f'v_add_u32 v{vF0}, s{sT0}, v{vF0}', f'v_min_u32 v{vF0}, L_code_end-{NAME}_kernel-4, v{vF0}', 's_mov_b64 exec, 3',
      f'global_load_dword v{vF1}, v{vF0}, s[0:1]', 's_mov_b64 exec, -1')
e('s_barrier')
for s_ in range(8):
    x_sub(s_, 'xb')
    if s_ < 7: e(f's_add_u32 s{sXo}, s{sXo}, 128')
stamp(1, 'head')
lab('L_Yset2')
lane_setup()
tail_setup()
q_addr(32, 40)
E(f's_mov_b32 s{sVM}, 0xffff', f's_mov_b32 s{sVM+1}, 0xffff',
  f's_and_b32 s{sT0}, s{sW}, 1', f's_lshl_b32 s{sT1}, s{sRB}, 1', f's_add_u32 s{sT0}, s{sT0}, s{sT1}', f's_lshl_b32 s{sT0}, s{sT0}, 5',
  f's_lshl_b32 s{sT1}, s{sHG}, 2', f's_add_u32 s{sT0}, s{sT0}, s{sT1}', f's_and_b32 s{sT1}, s{sW}, 2', f's_add_u32 s{sT0}, s{sT0}, s{sT1}',
  f's_lshl_b32 s{sT0}, s{sT0}, 10', f's_add_u32 s{sOslot}, s{sT0}, {hex(WS_OB)}',
  f'v_add_u32 v{vKa}, {R+16384}, v{vL16}', f'v_lshlrev_b32 v{vVa}, 4, v{vI}', f'v_lshl_add_u32 v{vVa}, v{vH}, 8, v{vVa}', f'v_add_u32 v{vVa}, {R+16384}, v{vVa}',
  f'v_and_b32 v{vT1}, 27, v0', f'v_cmp_eq_u32 vcc, 16, v{vT1}', f'v_mov_b32 v{vT1}, {hex(ONEB)}', f's_cmp_lg_u32 s{sW}, 7', f'v_cndmask_b32 v{aV}, 0, v{vT1}, vcc',
  's_cbranch_scc1 L_Yj')
lab('L_Y7')
E(f'v_lshrrev_b32 v{vT1}, 1, v{vI}', f'v_xor_b32 v{vT1}, v{vT1}, v{vG}', f'v_lshlrev_b32 v{vT1}, 4, v{vT1}', f'v_lshl_add_u32 v{vT1}, v{vI}, 7, v{vT1}',
  f'v_add_u32 v{vT0}, s{sT2}, v{vT1}', f'v_xor_b32 v{vT1}, 64, v{vT0}', f'v_add_u32 v{vT2}, 65536, v{vT0}', f'v_add_u32 v{vT3}, 65536, v{vT1}',
  f'v_lshlrev_b32 v{vF0}, 8, v{vG}', f'v_lshl_add_u32 v{vF0}, v{vI}, 3, v{vF0}', f'v_add_u32 v{vF0}, {R}, v{vF0}',
  f'v_and_b32 v{vF1}, 1, v{vG}', f'v_lshrrev_b32 v{vF2}, 1, v{vG}',
  f's_lshr_b32 s{sT0}, s{sHG}, 2', f's_lshl_b32 s{sC}, s{sRB}, 1', f's_add_u32 s{sT0}, s{sT0}, s{sC}', f's_lshl_b32 s{sT0}, s{sT0}, 11',
  f's_bfe_u32 s{sC}, s{sHG}, 0x10001',
  f's_lshl_b32 s{sT1}, s{sRB}, 3', f's_add_u32 s{sT1}, s{sT1}, s{sHG}', f's_lshl_b32 s{sOslot2}, s{sT1}, 3', f's_add_u32 s{sOslot2}, s{sOslot2}, {hex(WS_FD)}', f's_lshl_b32 s{sT1}, s{sT1}, 6', f's_add_u32 s{sK1}, s{sT1}, {hex(WS_FKV)}')
kd = 16
KF = 88
KF = 96 - 8
def kfr(u): return (96 + 8 * u) if u < 15 else 24
def kv_reads(s):
    a0, a1 = (vT0, vT1) if s < 4 else (vT2, vT3)
    o = (s & 3) * 16384
    x, y = kfr(2*s), kfr(2*s+1)
    E(f's_waitcnt vmcnt({28-4*s})',
      f'ds_read_b128 {vr(x,4)}, v{a0} offset:{o}', f'ds_read_b64_tr_b16 {vr(x+4,2)}, v{vF0} offset:{s*2048}', f'ds_read_b64_tr_b16 {vr(x+6,2)}, v{vF0} offset:{s*2048+128}',
      f'ds_read_b128 {vr(y,4)}, v{a1} offset:{o}', f'ds_read_b64_tr_b16 {vr(y+4,2)}, v{vF0} offset:{s*2048+1024}', f'ds_read_b64_tr_b16 {vr(y+6,2)}, v{vF0} offset:{s*2048+1152}')
for s_ in range(8): kv_reads(s_)
nonce_load()
stamp(2, 'head')
E(f's_bitcmp1_b32 s{sHG}, 0', f's_cselect_b32 s{sWo}, {f32(VSC) if "zv" not in XP else 0}, {"1.0" if "zk" not in XP else 0}', 's_cbranch_scc1 L_kv_v',
  f'v_lshlrev_b32 v{vF1}, 9, v{vF1}', f'v_lshl_add_u32 v{vF1}, v{vF2}, 3, v{vF1}', f's_lshl_b32 s{sC}, s{sC}, 8')
def kv_chain(swap):
    for u in range(16):
        x = kfr(u)
        if u == 0: e('s_waitcnt lgkmcnt(12)')
        if u == 12: e('s_waitcnt lgkmcnt(0)')
        a, b = (vr(x+4,4), vr(x,4))
        if swap: a, b = b, a
        d = kd + 4 * (u & 1)
        e(f'v_mfma_f32_16x16x32_bf16 {vr(d,4)}, {a}, {b}, {"0" if u < 2 else vr(d,4)}')
kv_chain(False)
e('s_branch L_kv_j')
lab('L_kv_v')
E(f'v_lshlrev_b32 v{vF1}, 3, v{vF1}', f'v_lshl_add_u32 v{vF1}, v{vF2}, 8, v{vF1}', f's_lshl_b32 s{sC}, s{sC}, 9', f's_add_u32 s{sC}, s{sC}, 1024')
kv_chain(True)
lab('L_kv_j')
E(f'v_lshl_add_u32 v{vF1}, v{vI}, 4, v{vF1}', f's_add_u32 s{sT0}, s{sT0}, s{sC}', 's_nop 5',
  f'v_pk_add_f32 {vr(kd,2)}, {vr(kd,2)}, {vr(kd+4,2)}', f'v_pk_add_f32 {vr(kd+2,2)}, {vr(kd+2,2)}, {vr(kd+6,2)}',
  f'v_mul_f32 v{kd}, s{sWo}, v{kd}', f'v_mul_f32 v{kd+1}, s{sWo}, v{kd+1}', f'v_mul_f32 v{kd+2}, s{sWo}, v{kd+2}', f'v_mul_f32 v{kd+3}, s{sWo}, v{kd+3}',
  f'v_cvt_pk_bf16_f32 v{vF2}, v{kd}, v{kd+1}', f'v_cvt_pk_bf16_f32 v{vF3}, v{kd+2}, v{kd+3}',
  f'buffer_store_dwordx2 {vr(vF2,2)}, v{vF1}, {sr(S_WS,4)}, s{sT0} offen sc1')
stamp(3, 'head')
lab('L_Yj')
if opt('ytc', 0):
    E(f's_bitcmp1_b32 s{sW}, 1', f's_cselect_b32 s{S_WOA}, s{S_WOB}, s{S_WOA}', f's_cselect_b32 s{S_WOA+1}, s{S_WOB+1}, s{S_WOA+1}',
      f's_mov_b32 s{S_WOA+2}, 0x80000', f's_mov_b32 s{S_WOA+3}, 0x20000',
      f's_lshr_b32 s{sT0}, s2, 3', f's_lshl_b32 s{sT0}, s{sT0}, 1', f's_and_b32 s{sT1}, s{sW}, 1', f's_add_u32 s{sT0}, s{sT0}, s{sT1}', f's_lshl_b32 s{sWoff}, s{sT0}, 13',
      f'v_lshlrev_b32 v{vD0}, 7, v0')
for i in range(1, 32): e(f'v_mov_b32 v{aV+i}, v{aV}')
for j in range(32): e(f'v_mov_b32 v{aOa+j}, 0')
EA = 1
STG = opt('stg', 0)
B2U = opt('b2u', 7)
def y_flag():
    E(f's_cmp_lg_u32 s{sW}, 7', 's_cbranch_scc1 L_flag_done')
    flag_store('kv', f's{sK1}')
    stamp(4, 'head')
    lab('L_flag_done')
if STG and opt('fu', 99) < 32:
    E(f's_cmp_eq_u32 s{sW}, 7', 's_cbranch_scc1 L_y7b', 's_waitcnt vmcnt(0)')
    lab('L_y7b')
else:
    e('s_waitcnt vmcnt(0)')
    y_flag()
e('s_barrier')
stamp(5, 'head'); stamp(1, 'all', 'x')
def qrd(u, qx=32, qw=40):
    sc, st = u >> 2, u & 3
    x = vFr + 8 * (u % 8)
    hi = sc >> 2
    o = (sc & 3) * 16384
    E(f'ds_read_b128 {vr(x,4)}, v{qx+4*hi+st} offset:{o}',
      f'ds_read_b64_tr_b16 {vr(x+4,2)}, v{qw+hi} offset:{o+st*2048}', f'ds_read_b64_tr_b16 {vr(x+6,2)}, v{qw+hi} offset:{o+st*2048+512}')
for u in range(5): qrd(u)
for u in range(32):
    x = vFr + 8 * (u % 8)
    lim = 16 if (STG and u < 16) else 32
    if STG and u == 16:
        e('s_barrier')
        for v_ in range(16, 21): qrd(v_)
    issued = min(lim, 5 + u)
    e(f's_waitcnt lgkmcnt({3*(issued-u-1)})')
    e(f'v_mfma_f32_32x32x16_bf16 {vr(vQacc,16)}, {vr(x+4,4)}, {vr(x,4)}, {"0" if u == 0 else vr(vQacc,16)}')
    if 5 + u < lim: qrd(5 + u)
    if STG and u == opt('fu', 99): y_flag()
    if not STG and u == B2U: e('s_barrier')
stamp(6, 'head')
E(f's_mov_b32 s{sC}, 0', f's_setprio {opt("yp", 1)}', f's_cmp_lg_u32 s{sW}, 7', 's_cbranch_scc1 L_nodense', 's_mov_b64 exec, 1',
  f'buffer_store_dwordx2 {vr(vNon,2)}, v{vZero}, {sr(S_WS,4)}, s{sOslot2} offen sc1', 's_mov_b64 exec, -1')
lab('L_nodense')
e('s_nop 7')
for j in range(0, 16, 2): e(f'v_pk_mul_f32 {vr(vQacc+j,2)}, {vr(vQacc+j,2)}, {sr(sCS,2)} op_sel_hi:[1,0]')
for j in range(8): e(f'v_cvt_pk_bf16_f32 v{vQa+j}, v{vQacc+2*j}, v{vQacc+2*j+1}')
stamp(7, 'head'); stamp(2, 'all', 'x')
e('s_barrier')
stamp(8, 'head'); stamp(3, 'all', 'x'); stamp(1, 'tail')
cstamp(10)
E(f'ds_read_b128 {vr(aK,4)}, v{vKa}', f'ds_read_b128 {vr(aK+4,4)}, v{vKa} offset:2048', f's_mov_b64 exec, {sr(sVM,2)}')
for j in range(4): e(f'ds_read_b128 {vr(aV+4*j,4)}, v{vVa} offset:{(j>>1)*2048+1024+(j&1)*512}')
E('s_mov_b64 exec, -1', 's_waitcnt lgkmcnt(5)',
  f'v_mfma_f32_32x32x16_bf16 {vr(aSa,16)}, {vr(aK,4)}, {vr(vQa,4)}, 0',
  f'v_mfma_f32_32x32x16_bf16 {vr(aSb,16)}, {vr(aK,4)}, {vr(vQb,4)}, 0', 's_nop 10')
maxtree([aSa+i for i in range(16)], vT0, vT1)
maxtree([aSb+i for i in range(16)], vT2, vT3)
E(f'v_permlane32_swap_b32 v{vT0}, v{vT1}', f'v_max_f32 v{vT0}, v{vT0}, v{vT1}', f'v_permlane32_swap_b32 v{vT2}, v{vT3}',
  f'v_sub_f32 v{aCa}, {f32(-MOFF)}, v{vT0}', f'v_max_f32 v{vT2}, v{vT2}, v{vT3}')
for i in range(1, 16): e(f'v_mov_b32 v{aCa+i}, v{aCa}')
E(f'v_sub_f32 v{aCb}, {f32(-MOFF)}, v{vT2}', f'v_mov_b32 v{aCb+1}, v{aCb}',
  f'v_mfma_f32_32x32x16_bf16 {vr(aSa,16)}, {vr(aK,4)}, {vr(vQa,4)}, {vr(aCa,16)}')
for i in range(2, 16): e(f'v_mov_b32 v{aCb+i}, v{aCb}')
if opt('ytc', 0): e(f'buffer_load_dword v{vD1}, v{vD0}, {sr(S_WOA,4)}, s{sWoff} offen')
E('s_waitcnt lgkmcnt(0)', f'v_exp_f32 v{aSa}, v{aSa}', f'v_exp_f32 v{aSa+1}, v{aSa+1}', 's_branch L_att_entry')

def dtile(par, ld_off, entry=False):
    K = aK + 8 * par; Kn = aK + 8 * (par ^ 1)
    V = aV + 16 * par; Vn = aV + 16 * (par ^ 1)
    def ex(S, a, b):
        for i in range(a, b): e(f'v_exp_f32 v{S+i}, v{S+i}')
    def pv(O, Vr, P):
        if 'nopv' in XP: return
        if 'pvhalf' in XP and (P in (aSa, aSb)): return
        e(f'v_smfmac_f32_32x32x32_bf16 {vr(O,16)}, {vr(Vr,4)}, {vr(P,8)}, v{vIdx}')
    def qk(S, Kr, Q, C): e(f'v_mfma_f32_32x32x16_bf16 {vr(S,16)}, {vr(Kr,4)}, {vr(Q,4)}, {vr(C,16)}')
    P1, P2, P3 = [int(c, 16) for c in opt('pos', '25a')]
    LDV = opt('ldv', 0)
    ex(aSa, 0, 2)
    if entry and P1 > 2: pass
    pv(aOb, Vn+12, aSb+8)
    if entry: lab('L_att_entry')
    def vld(js):
        e(f's_mov_b64 exec, {sr(sVM,2)}')
        for j in js: e(f'ds_read_b128 {vr(Vn+4*j,4)}, v{vVa} offset:{ld_off+(j>>1)*2048+1024+(j&1)*512}')
        e('s_mov_b64 exec, -1')
    def kld(j): e(f'ds_read_b128 {vr(Kn+4*j,4)}, v{vKa} offset:{ld_off+2048*j}')
    if LDV == 0: vld(range(4))
    ex(aSa, 2, P2); qk(aSb, K, vQb, aCb)
    if LDV == 0: kld(0); kld(1)
    if LDV == 1: kld(0)
    ex(aSa, P2, P3); pv(aOa, V, aSa)
    if LDV == 1: vld(range(4))
    if LDV == 2: vld(range(4)); kld(0); kld(1)
    ex(aSa, P3, 16)
    ex(aSb, 0, P1); pv(aOa, V+4, aSa+8); ex(aSb, P1, P2); qk(aSa, K+4, vQa, aCa); ex(aSb, P2, P3); pv(aOb, V, aSb)
    if LDV == 1: kld(1)
    ex(aSb, P3, 16)
    ex(aSa, 0, P1); pv(aOb, V+4, aSb+8); ex(aSa, P1, P2); qk(aSb, K+4, vQb, aCb); ex(aSa, P2, P3); pv(aOa, V+8, aSa); ex(aSa, P3, 16)
    ex(aSb, 0, P1); pv(aOa, V+12, aSa+8); e('s_waitcnt lgkmcnt(0)'); ex(aSb, P1, P2); qk(aSa, Kn, vQa, aCa); ex(aSb, P2, P3); pv(aOb, V+8, aSb); ex(aSb, P3, 16)

e('.p2align 6')
lab('L_att_top')
E(f'v_xor_b32 v{vKa}, 16384, v{vKa}', f'v_xor_b32 v{vVa}, 16384, v{vVa}', f's_cmp_eq_u32 s{sC}, 8', 's_barrier')
dtile(1, 0)
e('s_cbranch_scc1 L_att_done')
dtile(0, 4096, entry=True)
if opt('nomid', 0): NBAR[0] += 1
else: e('s_barrier')
dtile(1, 8192)
dtile(0, 12288)
E(f's_add_u32 s{sC}, s{sC}, 1', 's_branch L_att_top')
NBAR_Y = NBAR[0] - 2 + 16
lab('L_att_done')
E(f'ds_read_b32 v{vFl}, v{vKa}', f'v_smfmac_f32_32x32x32_bf16 {vr(aOb,16)}, {vr(aV+16+12,4)}, {vr(aSb+8,8)}, v{vIdx}')
stamp(4, 'all'); stamp(2, 'tail')
cstamp(11)
def chk(O, t):
    E(f'v_maximum3_f32 v{t}, abs(v{O}), abs(v{O+1}), abs(v{O+2})', f'v_maximum3_f32 v{t}, v{t}, abs(v{O+3}), abs(v{O+4})',
      f'v_maximum3_f32 v{t}, v{t}, abs(v{O+5}), abs(v{O+6})', f'v_maximum3_f32 v{t}, v{t}, abs(v{O+7}), v{O+8}')
def fin(O, t, d):
    for i in range(0, 8, 2): e(f'v_pk_mul_f32 {vr(d+4+i,2)}, {vr(O+i,2)}, {vr(t,2)} op_sel_hi:[1,0]')
    for i in range(4): e(f'v_cvt_pk_bf16_f32 v{d+i}, v{d+4+2*i}, v{d+4+2*i+1}')
lab('L_att_fin')
PADON[0] = opt('pad', 0); PADCNT[0] = 1000
E(f'v_rcp_f32 v{vT0}, v{aOa+8}', f's_mov_b32 s{sT0}, 0x7e000000')
chk(aOa, vT1)
fin(aOa, vT0, 16)
E(f'v_rcp_f32 v{vT2}, v{aOb+8}', 's_waitcnt lgkmcnt(0)', f'v_readfirstlane_b32 s{sT1}, v{vFl}')
chk(aOb, vT3)
fin(aOb, vT2, 28)
E(f'v_maximum3_f32 v{vT1}, v{vT1}, v{vT3}, v{vT3}', f'v_cmp_nle_f32 vcc, v{vT1}, s{sT0}'.replace('vcc, v', 'vcc, v'), f's_cmp_eq_u32 s{sT1}, 1', 's_cbranch_vccnz L_fallback' if 'nofb' not in XP else 's_nop 0')
lab('L_att_ok')
E('s_cbranch_scc0 L_st_slow',
  f'buffer_store_dwordx4 {vr(16,4)}, v{vL16}, {sr(S_WS,4)}, s{sOslot} offen',
  f'buffer_store_dwordx4 {vr(28,4)}, v{vL16}, {sr(S_WS,4)}, s{sOslot} offen offset:1024')
lab('L_st_j')
stamp(3, 'tail')
w_reads()
e(f's_mov_b32 s{sSpin}, {SPIN//10}')
if opt('tslp', 0): e(f's_sleep {opt("tslp", 0)}')
stamp(4, 'tail')
NPRE = opt('npre', 2)
o_loads(None, range(NPRE))
e(f's_mov_b32 s{sC}, 2')

cm('================ tail: out projections (X: branch A, Y: branch B) ================')
lab('L_tail_go')
e('s_waitcnt lgkmcnt(0)')
for g in range(4):
    rt = g >> 1
    b_ = oOf + 16 * g
    e(f's_waitcnt vmcnt({4*(min(4, NPRE+g)-g-1)})')
    lab(f'L_tg{g}')
    E(f'v_max3_u32 v{vT0}, v{b_}, v{b_+1}, v{b_+2}', f'v_max3_u32 v{vT1}, v{b_+3}, v{b_+4}, v{b_+5}')
    for k in range(6, 16, 2):
        t = vT0 if (k >> 1) & 1 else vT1
        e(f'v_max3_u32 v{t}, v{t}, v{b_+k}, v{b_+k+1}')
    E(f'v_max_u32 v{vT0}, v{vT0}, v{vT1}', f'v_cmp_eq_u32 vcc, -1, v{vT0}', f's_cbranch_vccnz L_tr{g}')
    lab(f'L_tk{g}')
    if g == 0: stamp(5, 'tail', 'all')
    if NPRE + g < 4: o_loads(None, [NPRE + g])
    if g == 2: e('s_barrier')
    order = [(s_, ct) for s_ in range(4*(g&1), 4*(g&1)+4) for ct in range(2)]
    if g == 3: order = sorted(order, key=lambda z: z[1])
    for m_, (s_, ct) in enumerate(order):
        a_ = oAcc + 32 * rt + 16 * ct
        e(f'v_mfma_f32_32x32x16_bf16 {vr(a_,16)}, {vr(oW+8*s_+4*ct,4)}, {vr(oOf+32*rt+4*s_,4)}, {"0" if s_ == 0 else vr(a_,16)}')
        if g == 2:
            e(f'ds_write_b128 v{80+m_ if m_ else vTp}, {vr(oAcc+4*m_,4)}')
e('s_nop 7')
PADON[0] = False
lab('L_tail_wr')
stamp(6, 'tail')
for q in range(8):
    e(f'ds_write_b128 v{80+q if q else vTp}, {vr(oAcc+32+4*q,4)} offset:8192')
E('s_waitcnt lgkmcnt(0)', 's_barrier')
stamp(7, 'tail')
lab('L_red')
tR = 96
for kq in range(4):
    E(f'ds_read_b128 {vr(tR+8*kq,4)}, v{vTr0} offset:{kq*16384}', f'ds_read_b128 {vr(tR+8*kq+4,4)}, v88 offset:{kq*16384}')
e('s_waitcnt lgkmcnt(4)')
for i in range(0, 8, 2): e(f'v_pk_add_f32 {vr(tR+i,2)}, {vr(tR+i,2)}, {vr(tR+8+i,2)}')
e('s_waitcnt lgkmcnt(0)')
for a_, b_ in ((16, 24), (0, 16)):
    for i in range(0, 8, 2): e(f'v_pk_add_f32 {vr(tR+a_+i,2)}, {vr(tR+a_+i,2)}, {vr(tR+b_+i,2)}')
for i in range(4): e(f'v_cvt_pk_bf16_f32 v{16+i}, v{tR+2*i}, v{tR+2*i+1}')
e(f'buffer_store_dwordx4 {vr(16,4)}, v{vTo}, {sr(S_OUT,4)}, s{sOutOff} offen{opt("of", "_nt").replace("_", " ")}')
E(f's_cmp_eq_u32 s{sC}, 2', 's_cbranch_scc1 L_fin',
  f's_add_u32 s{sC}, s{sC}, 1', f's_cmp_eq_u32 s{sC}, 1', f's_cselect_b32 s{sT0}, 1, 8', f's_cselect_b32 s{sT1}, 64, 1', f's_lshl_b32 s{sT1}, s{sT1}, 10', f's_lshl_b32 s{sT0}, s{sT0}, 13',
  f'v_add_u32 v{vTr0}, s{sT0}, v{vTr0}', f'v_add_u32 v88, s{sT0}, v88', f's_add_u32 s{sOutOff}, s{sOutOff}, s{sT1}',
  f's_cmp_eq_u32 s{sC}, 1', 's_cbranch_scc1 L_red', 's_barrier', 's_branch L_red')
lab('L_fin')
if STAMPS:
    stamp(8, 'tail')
    e('s_waitcnt vmcnt(0)')
    stamp(9, 'tail', 'head'); stamp(6, 'all')
    E('s_waitcnt lgkmcnt(0)', 's_nop 1')
    ECHO = [a[7:] for a in sys.argv if a.startswith('--echo=')]
    if ECHO:
        a_, b_, mul = map(int, ECHO[0].split(','))
        E(f's_sub_u32 s{sT0}, s{sST+2*b_}, s{sST+2*a_}', f's_mul_i32 s{sT0}, s{sT0}, {mul}')
        if opt('ehg', -1) >= 0:
            E(f's_cmp_eq_u32 s{sHG}, {opt("ehg", -1)}', f's_cselect_b32 s{sT0}, s{sT0}, 0', f's_cmp_ge_u32 s{sW}, 4' if STMODE == 'all' else f's_cmp_lt_u32 s{sW}, 4', f's_cselect_b32 s{sT0}, s{sT0}, 0')
        if opt('erole', ''):
            E({'x': f's_cmp_lt_u32 s{sW}, 4', 'y': f's_cmp_ge_u32 s{sW}, 4', 'k': f's_cmp_eq_u32 s{sW}, 7'}[opt('erole', '')], f's_cselect_b32 s{sT0}, s{sT0}, 0')
        E(f's_memrealtime {sr(6,2)}', 's_waitcnt lgkmcnt(0)')
        lab('L_echo')
        E(f's_memrealtime {sr(4,2)}', 's_waitcnt lgkmcnt(0)', f's_sub_u32 s{sT1}, s4, s6', f's_cmp_lt_u32 s{sT1}, s{sT0}', 's_cbranch_scc1 L_echo')
    for i in range(12): e(f'v_mov_b32 v{16+i}, s{sST+2*i}')
    E(f's_getreg_b32 s{sT0}, hwreg(HW_REG_XCC_ID)', f'v_mov_b32 v28, s{sT0}', f'v_mov_b32 v29, s{sSpin}', f'v_mov_b32 v30, s{sFB}', 'v_mov_b32 v31, 0',
      f's_lshl_b32 s{sT0}, s2, 3', f's_add_u32 s{sT0}, s{sT0}, s{sW}', f's_lshl_b32 s{sT0}, s{sT0}, 6', f's_add_u32 s{sT0}, s{sT0}, {hex(WS_STAMP)}',
      'v_mov_b32 v0, 0', 's_mov_b64 exec, 1')
    for i in range(4):
        e(f'buffer_store_dwordx4 {vr(16+4*i,4)}, v0, {sr(S_WS,4)}, s{sT0} offen offset:{16*i}')
lab('L_end')
e('s_endpgm')

cm('================ X program (waves 0-3) ================')
VMQ[:] = []; NBAR[0] = 0
xAcc, xFr, xMask = 96, 160, 32
xa, xb, xw = 56, 60, 64
(xFw, xLq, xLv, xLvp, xOne) = (72, 73, 74, 75, 76)
XV, XM, PACE = opt('xv', 2), opt('xm', 0), opt('pace', 2)
e('.p2align 6')
lab('L_X')
srd(S_WQ, 0x80000); srd(S_XA, 0x200000); srd(S_WQKV, 0x180000)
E(f's_or_b32 s{sT1}, s2, s{sW}', 's_cbranch_scc1 L_nonon', 's_waitcnt lgkmcnt(0)',
  f's_lshl_b64 {sr(sNon,2)}, {sr(sNon,2)}, 5', f's_or_b32 s{sNon}, s{sNon}, 1', f'v_mov_b32 v{vNon}, s{sNon}', f'v_mov_b32 v{vNon+1}, s{sNon+1}', 's_mov_b64 exec, 1',
  f'global_store_dwordx2 v{vZero}, {vr(vNon,2)}, {sr(S_DBG,2)} sc1', 's_mov_b64 exec, -1')
lab('L_nonon')
E(f'v_and_b32 v{vT3}, 1, v{vG}', f'v_lshlrev_b32 v{vT3}, 2, v{vT3}', f'v_xor_b32 v{vT3}, v{vT3}, v{vT2}', f'v_lshlrev_b32 v{vT3}, 4, v{vT3}',
  f'v_lshl_add_u32 v{vW}, v{vT1}, 10, v{vT3}', f'v_add_u32 v{vW2}, {8192-1024}, v{vW}',
  f'v_mul_u32_u24 v{vWA}, 3072, v{vT1}', f'v_add_u32 v{vWA}, v{vWA}, v{vT3}')
e(f's_lshl_b32 s{sW2k}, s{sW}, 11')
def x_setup1():
    global SH4, RG4, qx, qw, AR
    lane_setup()
    SH4 = ['0', f's{sVM}', f's{sVM+1}', f's{sC}']; RG4 = [82, 84, 86, 88]
    qx, qw = 56, 64
    q_addr(qx, qw)
    AR = opt('arot', 0)
    if AR == 1: E(f's_add_u32 s{sXo}, s{sRot}, s{sHG}', f's_and_b32 s{sXo}, s{sXo}, 7', f's_lshl_b32 s{sXo}, s{sXo}, 7')
    elif AR == 2: E(f's_lshr_b32 s{sXo}, s{sRB}, 2', f's_lshl_b32 s{sXo}, s{sXo}, 7')
    elif AR == 3: E(f's_lshr_b32 s{sXo}, s{sRB}, 2', f's_lshl_b32 s{sT0}, s{sRB}, 2', f's_add_u32 s{sXo}, s{sXo}, s{sT0}', f's_and_b32 s{sXo}, s{sXo}, 7', f's_lshl_b32 s{sXo}, s{sXo}, 7')
    elif AR == 4: E(f's_and_b32 s{sXo}, s{sRB}, 1', f's_lshl_b32 s{sXo}, s{sXo}, 9')
    else: e(f's_mov_b32 s{sXo}, 0')
    E(f's_lshl_b32 s{sW2k}, s{sW}, 11',
      f's_lshl_b32 s{sT3}, s{sRB}, 2', f's_add_u32 s{sT0}, s{sT3}, s{sW}', f's_lshl_b32 s{sT0}, s{sT0}, 14', f'v_add_u32 v{vXA}, s{sT0}, v{vP0}', f'v_add_u32 v{vXA2}, s{sT0}, v{vP1}',
      f's_mul_i32 s{sT0}, s{sW}, {16*3072}', f's_add_u32 s{sT0}, s{sT0}, s{sHG128}', f'v_add_u32 v{vWA}, s{sT0}, v{vWA}', f'v_add_u32 v{vWA2}, {8*3072-1024}, v{vWA}')
def w64(srd_, lds_base_sgpr, lds, tag):
    for hf in range(2):
        E(f's_add_u32 m0, s{lds_base_sgpr}, {lds+hf*4096}', f's_add_u32 s{sT1}, s{sT0}, {2*7168}')
        dma(vW, srd_, f's{sT0}', 0, '', tag); dma(vW2, srd_, f's{sT0}', 1024, '', tag)
        dma(vW, srd_, f's{sT1}', 2048, '', tag); dma(vW2, srd_, f's{sT1}', 3072, '', tag)
        if hf == 0: e(f's_add_u32 s{sT0}, s{sT0}, 32768')
vTc = 68
def touch_setup():
    E(f's_lshr_b32 s{sT0}, s2, 3', f's_lshl_b32 s{sT0}, s{sT0}, 2', f's_add_u32 s{sT0}, s{sT0}, s{sW}',
      f's_mul_i32 s{sT1}, s{sT0}, {12*128}', f'v_mul_u32_u24 v{vTc}, {196608}, v{vG}', f'v_lshl_add_u32 v{vTc}, v{vI}, 7, v{vTc}', f'v_add_u32 v{vTc}, s{sT1}, v{vTc}',
      f's_lshl_b32 s{sT1}, s{sT0}, 12', f'v_lshlrev_b32 v{vTc+1}, 7, v{vN}', f'v_add_u32 v{vTc+1}, s{sT1}, v{vTc+1}',
      f's_lshl_b32 s{sT1}, s{sHG}, 2', f's_add_u32 s{sT1}, s{sT1}, s{sW}', f's_lshl_b32 s{sT1}, s{sT1}, 11', f's_lshl_b32 s{sT2}, s{sRB}, 16', f's_add_u32 s{sT1}, s{sT1}, s{sT2}',
      f'v_lshlrev_b32 v{vTc+2}, 7, v{vI}', f'v_add_u32 v{vTc+2}, s{sT1}, v{vTc+2}')
def touch_w(j):
    E(f's_mov_b32 s{sT0}, {j*4*196608}', 's_mov_b32 exec_lo, 0x0fff0fff', 's_mov_b32 exec_hi, 0x0fff0fff')
    e(f'buffer_load_dword v{vTc+3}, v{vTc}, {sr(S_WQKV,4)}, s{sT0} offen', 'tc')
    e('s_mov_b64 exec, -1')
def touch_x():
    e('s_mov_b64 exec, 0xffff')
    e(f'buffer_load_dword v{vTc+3}, v{vTc+2}, {sr(S_XA,4)}, 0 offen{NT}', 'tc')
    e('s_mov_b64 exec, -1')
def touch_wo(srd_):
    e('s_mov_b32 exec_hi, 0')
    e(f'buffer_load_dword v{vTc+3}, v{vTc+1}, {sr(srd_,4)}, 0 offen', 'tc')
    e('s_mov_b64 exec, -1')
TC = opt('tc', 0)
def halo_fill():
    E(f's_lshl_b32 s{sT3}, s{sRB}, 16', f's_sub_u32 s{sT2}, s{sT3}, 16384', f's_max_i32 s{sT2}, s{sT2}, 0',
      f's_lshl_b32 s{sT0}, s{sW}, 7', f's_add_u32 s{sT0}, s{sT0}, s{sStepH}')
    for j in range(2):
        E(f's_and_b32 s{sT0}, s{sT0}, 1023', f's_add_u32 m0, s{sW2k}, {HALO+j*8192}', f's_add_u32 s{sT1}, s{sT2}, s{sT0}')
        dma(vP0, S_XA, f's{sT1}', 0, '', 'halo'); dma(vP1, S_XA, f's{sT1}', 1024, '', 'halo')
        if j == 0: e(f's_add_u32 s{sT0}, s{sT0}, 512')
def a_fill(c):
    slot = (c & 3) * SLOT
    t = f'A{c}'
    E(f's_add_u32 m0, s{sW2k}, {slot}', f's_mul_i32 s{sWo}, s{sXo}, 1536')
    dma(vXA, S_XA, f's{sXo}', 0, NT, t); dma(vXA2, S_XA, f's{sXo}', 1024, NT, t)
    for ty in range(3):
        E(f's_add_u32 m0, s{sW2k}, {slot+8192+ty*8192}', [f's_add_u32 s{sXo}, s{sXo}, 128', f's_add_u32 s{sWo}, s{sWo}, 1024', f's_add_u32 s{sWo}, s{sWo}, 1024'][ty])
        dma(vWA, S_WQKV, f's{sWo}', 0, WNT, t); dma(vWA2, S_WQKV, f's{sWo}', 1024, WNT, t)
    e(f's_and_b32 s{sXo}, s{sXo}, 1023')
def kv_fill(k):
    E(f's_add_u32 m0, s{sW4k}, {R+((k&1)^1)*16384}', f's_and_b32 s{sKVo}, s{sKVo}, 0x1ffff')
    for j in range(4): dma(vL16, S_WS, f's{sKVo}', 1024*j, ' sc1', f'KV{k}')
    e(f's_add_u32 s{sKVo}, s{sKVo}, 16384')
def wo_fill(srd_, half, lds, tag):
    e(f's_add_u32 s{sT0}, s{sWoff}, {half*256*1024}')
    if opt('woc', 1): return wcoop(srd_, 4, lds, 8192, tag)
    if opt('worot', 1): e(f's_and_b32 s{sT0}, s{sT0}, 0x7ffff')
    w64(srd_, sW8k, lds, tag)
def masks():
    E(f'v_lshlrev_b32 v{vT0}, 2, v{vH}', f'v_sub_u32 v{vT0}, v{vN}, v{vT0}', f'v_add_u32 v{vT0}, 18, v{vT0}',
      f'v_mov_b32 v{vT2}, 0x5555', f'v_mov_b32 v{vT3}, 0', f'v_lshlrev_b64 {vr(vT2,2)}, v{vT0}, {vr(vT2,2)}',
      f'v_not_b32 v{vT2}, v{vT2}', f'v_not_b32 v{vT3}, v{vT3}', f's_mov_b32 s{sF1}, 0xff800000')
    for r in range(16): E(f'v_bfe_i32 v{xMask+r}, v{vT3}, {8*(r>>2)+(r&3)}, 1', f'v_and_b32 v{xMask+r}, s{sF1}, v{xMask+r}')
    for r in range(8, 16): E(f'v_bfe_i32 v{xMask+8+r}, v{vT2}, {8*(r>>2)+(r&3)}, 1', f'v_and_b32 v{xMask+8+r}, s{sF1}, v{xMask+8+r}')
def local_setup():
    E(f's_and_b32 s{sT0}, s{sW}, 1', f's_lshl_b32 s{sT0}, s{sT0}, 12', f's_lshr_b32 s{sT1}, s{sW}, 1', f's_lshl_b32 s{sT2}, s{sT1}, 11', f's_add_u32 s{sT0}, s{sT0}, s{sT2}', f's_add_u32 s{sT0}, s{sT0}, {SC}', f'v_add_u32 v{xFw}, s{sT0}, v{vL16}',
      f's_lshl_b32 s{sT0}, s{sRB}, 3', f's_add_u32 s{sT0}, s{sT0}, s{sHG}', f's_lshl_b32 s{sStepA}, s{sT0}, 13', f's_add_u32 s{sStepA}, s{sStepA}, s{sT2}', f's_add_u32 s{sStepA}, s{sStepA}, {hex(WS_HX)}',
      f's_lshl_b32 s{sStepB}, s{sT0}, 1', f's_add_u32 s{sStepB}, s{sStepB}, s{sT1}', f's_lshl_b32 s{sStepB}, s{sStepB}, 6', f's_add_u32 s{sStepB}, s{sStepB}, {hex(WS_FHX)}',
      f's_cmp_eq_u32 s{sRB}, 0', f's_cselect_b32 s{sT2}, 0, 8', f's_sub_u32 s{sT0}, s{sT0}, s{sT2}', f's_lshl_b32 s{sT2}, s{sT2}, 7', f's_sub_u32 s{sT2}, s{sStepB}, s{sT2}', f'v_mov_b32 v{vB1}, s{sT2}',
      f's_lshl_b32 s{sStepH}, s{sT0}, 13', f's_lshl_b32 s{sT2}, s{sW}, 10', f's_add_u32 s{sStepH}, s{sStepH}, s{sT2}', f's_add_u32 s{sStepH}, s{sStepH}, {hex(WS_HX)}',
      f'v_mov_b32 v{xOne}, 0x3f803f80', f'v_mov_b32 v{xOne+1}, 0x3f803f80',
      f's_lshl_b32 s{sT1}, s{sW}, 10', f's_add_u32 s{sT2}, s{sT1}, {ONES}', f's_add_u32 s{sT1}, s{sT1}, {SC}', f'v_add_u32 v{xLq}, s{sT1}, v{vL16}',
      f'v_and_b32 v{vT0}, 1, v0', f'v_lshlrev_b32 v{vT0}, 5, v{vT0}', f'v_lshl_add_u32 v{vT0}, v{vH}, 3, v{vT0}',
      f'v_lshrrev_b32 v{vT1}, 2, v{vI}', f'v_add_u32 v{vT0}, v{vT0}, v{vT1}', f'v_lshlrev_b32 v{vT0}, 4, v{vT0}', f'v_and_b32 v{vT1}, 2, v0', f'v_lshl_add_u32 v{vT0}, v{vT1}, 2, v{vT0}',
      f'v_add_u32 v{xLv}, s{sT1}, v{vT0}', f'v_mov_b32 v{xLvp}, s{sT2}', f'v_lshl_add_u32 v{vOw}, v0, 3, v{xLvp}',
      f'v_and_b32 v{vT0}, 16, v0', f'v_cmp_ne_u32 vcc, 0, v{vT0}',
      f'v_add_u32 v78, {4*4096}, v{xLv}', f'v_add_u32 v79, {5*4096}, v{xLv}', f'v_add_u32 v80, {7*4096}, v{xLv}',
      f'v_cndmask_b32 v78, v78, v{xLvp}, vcc', f'v_cndmask_b32 v79, v79, v{xLvp}, vcc', f'v_cndmask_b32 v80, v80, v{xLvp}, vcc',
      f's_lshl_b32 s{sT0}, s{sRB}, 6', f's_lshl_b32 s{sT1}, s{sHG}, 2', f's_add_u32 s{sT1}, s{sT1}, s{sW}', f's_add_u32 s{sT0}, s{sT0}, s{sT1}',
      f's_lshl_b32 s{sT0}, s{sT0}, 10', f's_add_u32 s{sOslot}, s{sT0}, {hex(WS_OA)}', f's_add_u32 s{sOslot2}, s{sOslot}, 32768',
      f's_lshl_b32 s{sT0}, s{sRB}, 5', f's_add_u32 s{sT0}, s{sT0}, s{sT1}', f's_lshl_b32 s{sT0}, s{sT0}, 6', f's_add_u32 s{sK1}, s{sT0}, {hex(WS_FOA)}')
    for i in range(4): e(f'v_mov_b32 v{vF0+i}, -1')
def sentinels():
    E(f's_add_u32 s{sT0}, s{sOslot}, {hex(WS_OB-WS_OA)}', f's_add_u32 s{sT1}, s{sT0}, 32768')
    e(f'buffer_store_dwordx4 {vr(vF0,4)}, v{vL16}, {sr(S_WS,4)}, s{sT0} offen sc1', 'sent')
    e(f'buffer_store_dwordx4 {vr(vF0,4)}, v{vL16}, {sr(S_WS,4)}, s{sT1} offen sc1', 'sent')
    nonce_load('sent')
def setup_a():
    E(f's_cmp_eq_u32 s{sW}, 3', f's_cselect_b32 s{sT1}, 15, 31', f'v_and_b32 v{vT0}, s{sT1}, v{vN}', f'v_lshl_add_u32 v{xa}, v{vT0}, 7, v{vXx}',
      f's_cselect_b32 s{sT1}, {HALO}, 0', f'v_add_u32 v{xa}, s{sT1}, v{xa}', f's_cselect_b32 s{sT1}, 0, 4096', f'v_add_u32 v{xb}, s{sT1}, v{xa}',
      f's_cselect_b32 s{sStepA}, 1, 16', f's_cselect_b32 s{sStepB}, 1, -32', f's_cselect_b32 s{sT1}, 1, s{sW}', f's_cselect_b32 s{sT2}, 2, s{sW}',
      f's_lshl_b32 s{sStepA}, s{sStepA}, 11', f's_lshl_b32 s{sStepB}, s{sStepB}, 11',
      f's_lshl_b32 s{sT1}, s{sT1}, 13', f's_add_u32 s{sT1}, s{sT1}, 8192', f'v_add_u32 v{xw}, s{sT1}, v{vWl}', f'v_xor_b32 v{xw+1}, 64, v{xw}',
      f's_lshl_b32 s{sT2}, s{sT2}, 13', f's_add_u32 s{sT2}, s{sT2}, 8192', f'v_add_u32 v{xw+2}, s{sT2}, v{vWl}', f'v_xor_b32 v{xw+3}, 64, v{xw+2}')
    for j in range(4): e(f'v_add_u32 v{xw+4+j}, 65536, v{xw+j}')
    for s_ in range(1, 4): E(f'v_xor_b32 v{xa+s_}, {32*s_}, v{xa}', f'v_xor_b32 v{xb+s_}, {32*s_}, v{xb}')
def setup_b():
    E(f's_lshr_b32 s{sT1}, s{sRB}, 2', f's_lshl_b32 s{sKVo}, s{sT1}, 14', f's_add_u32 s{sKVo}, s{sKVo}, s{sW4k}',
      f'v_lshlrev_b32 v{vPa}, 3, v0', f'v_add_u32 v{vPa}, {hex(WS_FD)}, v{vPa}',
      f'v_lshlrev_b32 v{vPa2}, 6, v{vN}', f's_lshl_b32 s{sT2}, s{sRB}, 11', f's_add_u32 s{sT2}, s{sT2}, {hex(WS_FOA)}', f'v_add_u32 v{vPa2}, s{sT2}, v{vPa2}',
      f's_lshl_b32 s{sT2}, s{sT1}, 2', f's_add_u32 s{sT2}, s{sT2}, s{sW}', f's_lshl_b32 s{sT2}, s{sT2}, 3',
      f'v_and_b32 v{vBW}, 7, v0', f'v_add_u32 v{vBW}, s{sT2}, v{vBW}',
      f'v_and_b32 v{vB0}, 8, v0', f'v_lshlrev_b32 v{vB0}, 2, v{vB0}', f'v_add3_u32 v{vB0}, v{vB0}, v{vBW}, 32', f'v_and_b32 v{vB0}, 255, v{vB0}',
      f'v_lshlrev_b32 v{vB0}, 6, v{vB0}', f'v_add_u32 v{vB0}, {hex(WS_FKV)}, v{vB0}',
      f'v_lshlrev_b32 v{vBW}, 6, v{vBW}', f'v_add_u32 v{vBW}, {hex(WS_FKV)}, v{vBW}',
      f's_mov_b32 s{sVM}, 512', f's_mov_b32 s{sVM+1}, 1024', f's_mov_b32 s{sC}, 1536',
      f's_lshl_b32 s{sW8k}, s{sW}, 13', f's_lshl_b32 s{sWoff}, s{sW}, {14 if opt("woc", 1) else 16}', f's_add_u32 s{sWoff}, s{sWoff}, s{sHG128}')
    if opt('worot', 1): E(f's_lshl_b32 s{sT2}, s{sRB}, 17', f's_add_u32 s{sWoff}, s{sWoff}, s{sT2}')
    srd(S_WOA, 0x80000); srd(S_WOB, 0x80000)
    E(f's_getreg_b32 s{sXcc}, hwreg(HW_REG_XCC_ID, 0, 4)', f's_lshl_b32 s{sXcc}, s{sXcc}, 1')
def wcoop(srd_, n, lds, ldstep, tag):
    for j in range(n):
        E(f's_add_u32 m0, s{sW2k}, {lds+j*ldstep}', f's_and_b32 s{sT0}, s{sT0}, 0x7ffff')
        dma(vW, srd_, f's{sT0}', 0, '', tag); dma(vW2, srd_, f's{sT0}', 1024, '', tag)
        if j < n - 1: e(f's_add_u32 s{sT0}, s{sT0}, 65536')
if opt('wqc', 1):
    E(f's_lshl_b32 s{sT0}, s{sRot}, 16', f's_lshl_b32 s{sT2}, s{sW}, 14', f's_add_u32 s{sT0}, s{sT0}, s{sT2}', f's_add_u32 s{sT0}, s{sT0}, s{sHG128}',
      's_waitcnt lgkmcnt(0)', 's_barrier')
    if STG:
        NS1 = opt('ns', 6)
        wcoop(S_WQ, NS1, 8192, 16384, 'B')
        E(f's_waitcnt vmcnt({2*(NS1-4)})', 's_barrier', f's_add_u32 s{sT0}, s{sT0}, 65536')
        stamp(4, 'head')
        wcoop(S_WQ, 8-NS1, 8192+NS1*16384, 16384, 'B')
    else:
        wcoop(S_WQ, 8, 8192, 16384, 'B')
else:
    E(f's_add_u32 s{sT0}, s{sW}, s{sRot}', f's_lshl_b32 s{sT0}, s{sT0}, 16', f's_add_u32 s{sT0}, s{sT0}, s{sHG128}', f's_lshl_b32 s{sT2}, s{sW}, 14',
      f's_and_b32 s{sT0}, s{sT0}, 0x7ffff', 's_waitcnt lgkmcnt(0)', 's_barrier')
    w64(S_WQ, sT2, 8192, 'B')
    E(f's_add_u32 s{sT0}, s{sT0}, {4*65536-32768}', f's_and_b32 s{sT0}, s{sT0}, 0x7ffff')
    w64(S_WQ, sT2, 65536+8192, 'B')
stamp(1, 'head')
x_setup1(); setup_b(); local_setup()
E('s_waitcnt vmcnt(0)', 's_barrier')
stamp(5, 'head'); stamp(1, 'all', 'x')
PE = opt('pe', 0)
if PE == 1: poll_issue(vBW, ['0'], [vFl])
if not STG:
    tail_setup()
    if PE == 2: poll_issue(vBW, ['0'], [vFl])
    e('s_barrier')
if opt('psl', 0): e(f's_sleep {opt("psl", 0)}')
if not PE: poll_issue(vBW, ['0'], [vFl])
A0P = opt('a0p', 0)
if A0P == 1: a_fill(0)
if STG: tail_setup()
if not PE: masks()
poll_check('kv', vBW, ['0'], [vFl], 8 if A0P == 1 else 0)
stamp(6, 'head')
kv_fill(0)
poll_issue(vB0, ['0'], [vFl]); VMQ += ['p', 'p']
if A0P == 0: a_fill(0)
if PE: masks()
for j in range(16): E(f'v_mov_b32 v{208+j}, 0', f'v_mov_b32 v{16+j}, 0')
E(f's_setprio {XV}', f's_waitcnt vmcnt({vmn("KV0")})')
stamp(7, 'head'); stamp(2, 'all', 'x')
e('s_barrier')
stamp(8, 'head'); stamp(3, 'all', 'x')

def a_chunk(cs, side=()):
    side = list(side)
    seq = []
    u = 0
    for c in cs:
        hi, base = (c >> 1) & 1, (c & 1) * SLOT
        for s in range(4):
            x = xFr + 16 * (u % 3); u += 1
            for ty in range(3):
                r = [f'ds_read_b128 {vr(x,4)}, v{qx+4*hi+s} offset:{base}'] if ty == 0 else []
                o = base + ty * 8192 + s * 2048
                r += [f'ds_read_b64_tr_b16 {vr(x+4+4*ty,2)}, v{qw+hi} offset:{o}', f'ds_read_b64_tr_b16 {vr(x+6+4*ty,2)}, v{qw+hi} offset:{o+512}']
                a = xAcc + 16 * ty
                seq.append((r, f'v_mfma_f32_32x32x16_bf16 {vr(a,16)}, {vr(x+4+4*ty,4)}, {vr(x,4)}, {"0" if (c == 0 and s == 0) else vr(a,16)}'))
    if XM != XV: e(f's_setprio {XM}')
    LA = opt('la', 1)
    for k_ in range(LA): E(*seq[k_][0])
    for k_, (r, m) in enumerate(seq):
        if k_ + LA < len(seq): E(*seq[k_+LA][0])
        e(f's_waitcnt lgkmcnt({sum(len(seq[j][0]) for j in range(k_+1, min(len(seq), k_+LA+1)))})')
        e(m)
        take = -(-len(side) // (len(seq) - k_))
        for g in side[:take]:
            for s_, t_ in g: e(s_, t_)
        side = side[take:]
    if XM != XV: e(f's_setprio {XV}')
def write_frags():
    e('s_nop 6')
    for ty in range(3):
        for hd in range(2):
            a = xAcc + 16 * ty + 8 * hd
            for i in range(4): e(f'v_cvt_pk_bf16_f32 v{a+i}, v{a+2*i}, v{a+2*i+1}')
            e(f'ds_write_b128 v{xFw}, {vr(a,4)} offset:{ty*8192+hd*1024}')
    E(f's_bitcmp1_b32 s{sW}, 0', 's_cbranch_scc0 L_nopub', f's_add_u32 s{sT0}, s{sStepA}, 4096',
      f'buffer_store_dwordx4 {vr(xAcc+16,4)}, v{vL16}, {sr(S_WS,4)}, s{sStepA} offen sc1',
      f'buffer_store_dwordx4 {vr(xAcc+24,4)}, v{vL16}, {sr(S_WS,4)}, s{sStepA} offen offset:1024 sc1',
      f'buffer_store_dwordx4 {vr(xAcc+32,4)}, v{vL16}, {sr(S_WS,4)}, s{sT0} offen sc1',
      f'buffer_store_dwordx4 {vr(xAcc+40,4)}, v{vL16}, {sr(S_WS,4)}, s{sT0} offen offset:1024 sc1')
    lab('L_nopub')
PUB = [0]
def halo_flag():
    E(f's_bitcmp1_b32 s{sW}, 0', 's_cbranch_scc0 L_nohf')
    flag_store('hx', f's{sStepB}', f's_waitcnt vmcnt({len(VMQ)-PUB[0]})')
    lab('L_nohf')
def halo_get():
    poll_check('hx', vB1, ['0'], [vFl], None)
    E(f's_lshl_b32 s{sT0}, s{sW}, 10', f's_add_u32 m0, s{sT0}, {SC+6*4096}', f's_add_u32 s{sT1}, s{sStepH}, 4096')
    dma(vL16, S_WS, f's{sStepH}', 0, ' sc1', 'hx')
    E(f's_add_u32 m0, s{sT0}, {SC+7*4096}', 's_nop 0')
    dma(vL16, S_WS, f's{sT1}', 0, ' sc1', 'hx')
def local_task(t):
    lq, lk, lp, lv = xFr, xFr+4, xFr+8, xFr+12
    lS, lP, lO = xAcc, xAcc+16, (16 if t else 208)
    kp = 6 if t == 0 else 2
    vc, vp = (78, 80) if t == 0 else (79, 78)
    E(f'ds_read_b128 {vr(lq,4)}, v{xLq} offset:{t*4096}', f'ds_read_b128 {vr(lk,4)}, v{xLq} offset:{(2+t)*4096}', f'ds_read_b128 {vr(lp,4)}, v{xLq} offset:{kp*4096}',
      f'ds_read_b64_tr_b16 {vr(lv,2)}, v{vc}', f'ds_read_b64_tr_b16 {vr(lv+2,2)}, v{vc} offset:64',
      f'ds_read_b64_tr_b16 {vr(lv+4,2)}, v{vc} offset:256', f'ds_read_b64_tr_b16 {vr(lv+6,2)}, v{vc} offset:320',
      f'ds_read_b64_tr_b16 {vr(lv+8,2)}, v{vp} offset:256', f'ds_read_b64_tr_b16 {vr(lv+10,2)}, v{vp} offset:320')
    if t == 0:
        E(f's_cmp_lg_u32 s{sRB}, 0', 's_cbranch_scc1 L_m0')
        for r in range(8): e(f'v_mov_b32 v{xMask+16+r}, 0xff800000')
        lab('L_m0')
    E('s_waitcnt lgkmcnt(6)', 's_nop 0',
      f'v_mfma_f32_32x32x16_bf16 {vr(lS,16)}, {vr(lk,4)}, {vr(lq,4)}, {vr(xMask,16)}',
      f'v_mfma_f32_32x32x16_bf16 {vr(lP,16)}, {vr(lp,4)}, {vr(lq,4)}, {vr(xMask+8,16)}')
    e('s_nop 10')
    regs = [lS+i for i in range(16)] + [lP+8+i for i in range(8)]
    maxtree(regs, vT0, vT1)
    E('s_nop 1', f'v_permlane32_swap_b32 v{vT0}, v{vT1}', f'v_max_f32 v{vT0}, v{vT0}, v{vT1}', f'v_mul_f32 v{vT0}, {f32(-CSCALE)}, v{vT0}')
    for k in range(0, 24, 2): e(f'v_pk_fma_f32 {vr(regs[k],2)}, {vr(regs[k],2)}, {sr(sCS,2)}, {vr(vT0,2)} op_sel_hi:[1,0,0]')
    e('s_waitcnt lgkmcnt(0)')
    for k in range(24):
        e(f'v_exp_f32 v{regs[k]}, v{regs[k]}')
        if k == 9: e(f'v_smfmac_f32_32x32x32_bf16 {vr(lO,16)}, {vr(lv,4)}, {vr(lS,8)}, v{vIdx}')
        if k == 17: e(f'v_smfmac_f32_32x32x32_bf16 {vr(lO,16)}, {vr(lv+4,4)}, {vr(lS+8,8)}, v{vIdx}')
    E('s_nop 1', f'v_smfmac_f32_32x32x32_bf16 {vr(lO,16)}, {vr(lv+8,4)}, {vr(lP+8,8)}, v{vIdx}', 's_nop 11',
      f'v_rcp_f32 v{vT2}, v{lO+8}', 's_nop 0')
    for i in range(0, 8, 2): e(f'v_pk_mul_f32 {vr(lO+i,2)}, {vr(lO+i,2)}, {vr(vT2,2)} op_sel_hi:[1,0]')
    d = xAcc + 48 + 4 * t
    for i in range(4): e(f'v_cvt_pk_bf16_f32 v{d+i}, v{lO+2*i}, v{lO+2*i+1}')
    e(f'buffer_store_dwordx4 {vr(d,4)}, v{vL16}, {sr(S_WS,4)}, s{sOslot2 if t else sOslot} offen sc1', 'oa')

def oa_mfma(rt, wr=False):
    for s_ in range(8):
        for ct in range(2):
            a_ = oAcc + 32 * rt + 16 * ct
            e(f'v_mfma_f32_32x32x16_bf16 {vr(a_,16)}, {vr(oW+8*s_+4*ct,4)}, {vr(oOf+32*rt+4*s_,4)}, {"0" if s_ == 0 else vr(a_,16)}')
            m_ = 2 * s_ + ct
            if wr and wr <= m_ < wr + 4:
                for q in (2*(m_-wr), 2*(m_-wr)+1): e(f'ds_write_b128 v{80+q if q else vTp}, {vr(oAcc+4*q,4)}')
PAT = opt('pat', 3)
if PAT == 3:
    CH = {n: [n-2] for n in range(2, 10)}; FILL = {n: [n] for n in range(8)}
else:
    CH = {2: [0], 3: [1], 4: [2], 5: [3, 4], 6: [5], 7: [6], 8: [7]}; FILL = {0: [0], 1: [1], 2: [2, 3], 3: [4], 4: [5], 5: [6], 6: [7]}
if EA:
    CH = {n: [n-1] for n in range(1, 9)}; FILL = {n: [n+1] for n in range(7)}
NG = max(CH)
LATE = opt('xlate', 1 if NG < 9 else 0)
AE = opt('aearly', 0)
for n in range(16):
    cm(f'X interval {n}')
    if n < 9: stamp(n + 1, 'i0')
    if n >= 8: stamp(n - 7, 'i1')
    if n in (opt('dn', 2), opt('dn', 2)+1, opt('dn', 2)+2): stamp(1 + 4*(n-opt('dn', 2)), 'd')
    if n in (1, 2, 4, 10, 12, 14): stamp({1: 4, 2: 5, 4: 6, 10: 7, 12: 8, 14: 9}[n], 'x')
    if STAMPS and STMODE == 'xc' and n in (4, 8, 10, 12, 14, 15):
        i_ = (4, 8, 10, 12, 14, 15).index(n)
        E(f's_memrealtime {sr(sST+4*i_,2)}', f's_memtime {sr(sST+4*i_+2,2)}')
    waits = []
    k = n // 2
    if n == 0:
        if A0P == 2: a_fill(0)
        poll_check('kv1', vB0, ['0'], [vFl], vmn('p'))
        kv_fill(1)
    ILV = opt('ilv', 1) and n in CH
    if n == 3:
        E(f's_cmp_lg_u32 s{sW}, 0', 's_cbranch_scc1 L_np3')
        poll_issue(vPa, SH4, RG4)
        lab('L_np3')
        NP3 = len(VMQ)
    if ILV: CAP[0] = []
    if n % 2 == 0 and 1 <= k <= 6: kv_fill(k + 1)
    for c in FILL.get(n, []): a_fill(c)
    WS_ = opt('wos', 3)
    if n == NG - 1: sentinels()
    if WS_ == 0:
        if n == NG - 1: wo_fill(S_WOA, 0, 0, 'woA')
        if n == NG: wo_fill(S_WOA, 1, SLOT, 'woA')
    if WS_ == 3 and n == NG - 1: wo_fill(S_WOA, 0, 0, 'woA')
    if WS_ == 2:
        if n == NG - 2: wo_fill(S_WOA, 0, 0, 'woA')
        if n == NG - 1: wo_fill(S_WOA, 1, SLOT, 'woA')
    if TC & 1 and n == 0: touch_x(); touch_w(0)
    if TC & 2 and n == 2: touch_w(1)
    if TC & 4 and n == 3: touch_wo(S_WOA)
    if TC & 4 and n == 5: touch_wo(S_WOB)
    DN = opt('dn', 2)
    side = []
    if ILV:
        cap = CAP[0]; CAP[0] = None
        g = []
        for it in cap:
            g.append(it)
            if it[1] is not None: side.append(g); g = []
        if g: side[-1] += g
    if n in (DN, DN+1): stamp(2 + 4*(n-DN), 'd')
    if n in CH: a_chunk(CH[n], side)
    if n in (DN, DN+1): stamp(3 + 4*(n-DN), 'd')
    for c in CH.get(n + 1, []): waits.append(f'A{c}')
    if n == NG: write_frags(); PUB[0] = len(VMQ)
    if n == NG + 1:
        e(f'ds_write_b64 v{vOw}, {vr(xOne,2)}')
        if opt('hfe', 1): halo_flag()
        local_task(1)
        if not opt('hfe', 1): halo_flag()
    if n == NG + 2:
        halo_get()
        if WS_ == 1: wo_fill(S_WOA, 0, 0, 'woA')
        if WS_ == 3: wo_fill(S_WOA, 1, SLOT, 'woA')
    if n == NG + 3:
        e(f's_waitcnt vmcnt({vmn("hx")})')
        local_task(0)
        if WS_ == 3: waits.append('woA')
        if WS_ == 1: wo_fill(S_WOA, 1, SLOT, 'woA')
    if n == NG + 4:
        if LATE: wo_fill(S_WOB, 0, 2*SLOT, 'woB')
        flag_store('oa', f's{sK1}', f's_waitcnt vmcnt({vmn("oa")})', xcc=True)
        VMQ.append('fl')
        if WS_ != 1 and not LATE: w_reads()
    if WS_ != 1 and LATE and n == NG + 5: w_reads()
    if LATE and n == NG + 5 and WS_ != 1: wo_fill(S_WOB, 1, 3*SLOT, 'woB')
    if WS_ == 1 and n == NG + 5: waits.append('woA')
    if n == NG + 5 + LATE:
        E(f's_cmp_lg_u32 s{sW}, 0', 's_cbranch_scc1 L_skip_oa')
        poll_check('oa', vPa2, ['0'], [vFl], None, xcc=True)
        E(f'v_or_b32 v{vFl}, s{sXcc}, v{vNon}', f'v_cmp_ne_u32 vcc, v{vFl}, v{vFl+2}', 's_nop 1', 's_cmp_eq_u64 vcc, 0', f's_cselect_b32 s{sT0}, {opt("fast", 1)}, 0',
          f'v_mov_b32 v{vFl}, s{sT0}')
        lab('L_skip_oa')
        if not LATE: wo_fill(S_WOB, 0, 2*SLOT, 'woB'); wo_fill(S_WOB, 1, 3*SLOT, 'woB')
        if WS_ == 1: wo_fill(S_WOB, 1, 3*SLOT, 'woB'); w_reads()
    if n == NG + 6 + LATE:
        E(f's_cmp_lg_u32 s{sW}, 0', 's_cbranch_scc1 L_skip_same', f'v_mov_b32 v{vFl+1}, {R+16384}', f'ds_write_b32 v{vFl+1}, v{vFl}')
        lab('L_skip_same')
        o_loads('oal')
    if n == 13 and opt('pad', 0):
        E('s_mov_b64 exec, 0', 's_branch L_pad0')
        lab(f'L_pad{PADS[0]}')
        e('s_mov_b64 exec, -1')
    if n == 15 and AE:
        E('s_waitcnt vmcnt(8)', f's_setprio {XM}')
        oa_mfma(0)
        e(f's_setprio {XV}')
    if n % 2 == 1 and k + 1 <= 7: waits.append(f'KV{k+1}')
    if n == 15: waits.append('woB')
    if waits: e(f's_waitcnt vmcnt({min(vmn(t) for t in waits)}) lgkmcnt(0)')
    else: e('s_waitcnt lgkmcnt(0)')
    if n == 3:
        E(f's_cmp_lg_u32 s{sW}, 0', 's_cbranch_scc1 L_nochk_kv2')
        poll_check('kv2', vPa, SH4, RG4, len(VMQ) - NP3)
    if n < 9: stamp(n + 1, 'j0')
    if n >= 8: stamp(n - 7, 'j1')
    if n in (DN, DN+1): stamp(4 + 4*(n-DN), 'd')
    if opt('nomid', 0) and n % 2 == 0: NBAR[0] += 1
    else: e('s_barrier')
assert NBAR[0] == NBAR_Y, (NBAR[0], NBAR_Y)
E('s_setprio 0', f's_mov_b32 s{sSpin}, 0', f's_mov_b32 s{sC}, 0')
stamp(9, 'i1')
e('s_waitcnt vmcnt(0)')
stamp(5, 'tail')
if not AE: oa_mfma(0)
oa_mfma(1, 10)
E('s_nop 9', 's_branch L_tail_wr')

cm('---- fallback (Y waves): true max, K/V from global ----')
lab('L_fallback')
E(f's_cmp_eq_u32 s{sFB}, 0', 's_cbranch_scc1 L_fb_go', f's_cmp_eq_u32 s{sT1}, 1', 's_branch L_att_ok')
lab('L_fb_go')
E(f's_mov_b32 s{sFB}, 1', f'v_mov_b32 v{vT0}, 0xff800000', f'v_mov_b32 v{vT2}, 0xff800000', f's_mov_b32 s{sT2}, 0')
lab('L_fb_max')
E(f'buffer_load_dwordx4 {vr(aK,4)}, v{vL16}, {sr(S_WS,4)}, s{sT2} offen sc1', 's_waitcnt vmcnt(0)',
  f'v_mfma_f32_32x32x16_bf16 {vr(aSa,16)}, {vr(aK,4)}, {vr(vQa,4)}, 0', f'v_mfma_f32_32x32x16_bf16 {vr(aSb,16)}, {vr(aK,4)}, {vr(vQb,4)}, 0', 's_nop 15')
for k in range(0, 16, 2): e(f'v_max3_f32 v{vT0}, v{vT0}, v{aSa+k}, v{aSa+k+1}')
for k in range(0, 16, 2): e(f'v_max3_f32 v{vT2}, v{vT2}, v{aSb+k}, v{aSb+k+1}')
E(f's_add_u32 s{sT2}, s{sT2}, 2048', f's_cmp_lt_u32 s{sT2}, {64*2048}', 's_cbranch_scc1 L_fb_max',
  f'v_mov_b32 v{vT1}, v{vT0}', f'v_mov_b32 v{vT3}, v{vT2}', 's_nop 1',
  f'v_permlane32_swap_b32 v{vT0}, v{vT1}', f'v_permlane32_swap_b32 v{vT2}, v{vT3}', f'v_max_f32 v{vT0}, v{vT0}, v{vT1}', f'v_max_f32 v{vT2}, v{vT2}, v{vT3}')
for i in range(16): e(f'v_sub_f32 v{aCa+i}, 0, v{vT0}')
for i in range(16): e(f'v_sub_f32 v{aCb+i}, 0, v{vT2}')
for i in range(32): e(f'v_mov_b32 v{aOa+i}, 0')
E(f'v_lshlrev_b32 v{vT2}, 4, v{vI}', f'v_lshl_add_u32 v{vT2}, v{vH}, 8, v{vT2}', f's_mov_b32 s{sT2}, 0')
lab('L_fb_pv')
E(f'buffer_load_dwordx4 {vr(aK,4)}, v{vL16}, {sr(S_WS,4)}, s{sT2} offen sc1', f's_mov_b64 exec, {sr(sVM,2)}',
  f'buffer_load_dwordx4 {vr(aV,4)}, v{vT2}, {sr(S_WS,4)}, s{sT2} offen offset:1024 sc1',
  f'buffer_load_dwordx4 {vr(aV+4,4)}, v{vT2}, {sr(S_WS,4)}, s{sT2} offen offset:1536 sc1', 's_mov_b64 exec, -1', 's_waitcnt vmcnt(0)',
  f'v_mfma_f32_32x32x16_bf16 {vr(aSa,16)}, {vr(aK,4)}, {vr(vQa,4)}, {vr(aCa,16)}',
  f'v_mfma_f32_32x32x16_bf16 {vr(aSb,16)}, {vr(aK,4)}, {vr(vQb,4)}, {vr(aCb,16)}', 's_nop 15')
for i in range(32): e(f'v_exp_f32 v{aSa+i}, v{aSa+i}')
E('s_nop 1',
  f'v_smfmac_f32_32x32x32_bf16 {vr(aOa,16)}, {vr(aV,4)}, {vr(aSa,8)}, v{vIdx}', f'v_smfmac_f32_32x32x32_bf16 {vr(aOa,16)}, {vr(aV+4,4)}, {vr(aSa+8,8)}, v{vIdx}',
  f'v_smfmac_f32_32x32x32_bf16 {vr(aOb,16)}, {vr(aV,4)}, {vr(aSb,8)}, v{vIdx}', f'v_smfmac_f32_32x32x32_bf16 {vr(aOb,16)}, {vr(aV+4,4)}, {vr(aSb+8,8)}, v{vIdx}',
  f's_add_u32 s{sT2}, s{sT2}, 2048', f's_cmp_lt_u32 s{sT2}, {64*2048}', 's_cbranch_scc1 L_fb_pv', 's_nop 15', 's_branch L_att_fin')
for g, so in enumerate((sOoff, sT1, sT2, sT3)):
    lab(f'L_tr{g}')
    E(f's_sub_u32 s{sSpin}, s{sSpin}, 1', f's_cbranch_scc1 L_tk{g}')
    for j in range(4):
        o = f' offset:{j*1024}' if j else ''
        e(f'buffer_load_dwordx4 {vr(oOf+16*g+4*j,4)}, v{vL16}, {sr(S_WS,4)}, s{so} offen{o} sc1')
    E('s_waitcnt vmcnt(0)', f's_branch L_tg{g}')
lab('L_st_slow')
E(f'buffer_store_dwordx4 {vr(16,4)}, v{vL16}, {sr(S_WS,4)}, s{sOslot} offen sc1',
  f'buffer_store_dwordx4 {vr(28,4)}, v{vL16}, {sr(S_WS,4)}, s{sOslot} offen offset:1024 sc1', 's_branch L_st_j')
lab('L_code_end')

HDR = open(f'cdna_kernels/{NAME}.s.ref').read().split('\n')
hdr = []
for line in HDR:
    if line.startswith('; @launch'): break
    hdr.append(line)
txt = '\n'.join(hdr) + '\n; @launch grid=(256,1,1) block=(512,1,1) lds=163840\n'
txt += '''; ---------------------------------------------------------------------------------------------
; Design (generated by a hand-written generator script; one fused launch, 256 workgroups, one per CU)
;    (non-finite / too large accumulators) falls back to a two-pass path that uses the true row max.
;  logical waves 0-3 ("X"): q projection, all of branch A (qkv GEMM, banded softmax with true max, out projection)
;    and all LDS-DMA traffic, running beside the attention waves.
; ---------------------------------------------------------------------------------------------
'''
txt += f'''.amdgcn_target "amdgcn-amd-amdhsa--gfx950"
.text
.globl {NAME}_kernel
.p2align 8
.type {NAME}_kernel,@function
'''
txt += '\n'.join(L) + '\n'
txt += f'''.section .rodata,"a"
.p2align 6
.amdhsa_kernel {NAME}_kernel
  .amdhsa_next_free_vgpr {NVGPR}
  .amdhsa_next_free_sgpr 102
  .amdhsa_accum_offset {NVGPR}
  .amdhsa_group_segment_fixed_size 0
  .amdhsa_kernarg_size 88
  .amdhsa_user_sgpr_count 2
  .amdhsa_user_sgpr_kernarg_segment_ptr 1
  .amdhsa_system_sgpr_workgroup_id_x 1
.end_amdhsa_kernel
'''
open(OUT, 'w').write(txt)
print('wrote', OUT, len(L), 'lines; barriers', NBAR_Y)
```

```python
import sys, struct

NAME = 'concat_heads__sliding_local_dilated__grouped_kv_mqa__prompt'
STAMPS = '--stamps' in sys.argv
STMODE = ([a[5:] for a in sys.argv if a.startswith('--st=')] + ['all'])[0]
XP = [a[4:] for a in sys.argv if a.startswith('--x=')]
args = [a for a in sys.argv[1:] if not a.startswith('--')]
OUT = args[0] if args else f'cdna_kernels/{NAME}.s'
def opt(name, default):
    for a in XP:
        if a.startswith(name): return type(default)(a[len(name):])
    return default

L = []
VMQ = []
NBAR = [0]
CAP = [None]
def e(s, tag=None):
    if CAP[0] is not None:
        CAP[0].append((s, tag)); return
    if tag is not None: VMQ.append(tag)
    if s == 's_barrier': NBAR[0] += 1
    L.append('    ' + s.strip())
    if PADON[0]:
        PADCNT[0] += 4 if (s.startswith('s_') and '0x' not in s) else 8
        if PADCNT[0] >= PADON[0] and not s.startswith('v_cmp') and 'abs' not in s:
            PADCNT[0] = 0; pad()
PADS = [0]
PADON = [False]
PADCNT = [0]
def lab(s): L.append(s + ':')
def pad():
    i = PADS[0]; PADS[0] += 1
    L.append(f'L_pad{i}:'); L.append(f'    s_cbranch_execz L_pad{i+1}')
def cm(s): L.append('    ; ' + s)
def vr(i, n): return f'v[{i}:{i+n-1}]'
def sr(i, n): return f's[{i}:{i+n-1}]'
def f32(x): return '0x%08x' % struct.unpack('<I', struct.pack('<f', x))[0]
def vmn(tag):
    idx = max(i for i, t in enumerate(VMQ) if t == tag)
    n = len(VMQ) - 1 - idx
    assert n <= 63
    return n
def E(*lines):
    for s in lines: e(s)

SLOT = 32768
R = 131072
HALO = 3 * SLOT
ONES = 3 * SLOT
SC = 2 * SLOT
WS_FHX = 0x60000
WS_HX = 0x600000
WS_FKV = 0x40000
WS_FOA = 0x48000
WS_FD = 0x44000
WS_OA = 0x100000
WS_OB = 0x300000
WS_STAMP = 0x500000
WS_SIZE = 0x800000
CSCALE = 0.25 * 1.4426950408889634
MOFF = float(opt('moff', 100))
VSC = 2.0 ** 40
ONEB = 0x53805380
SPIN = 200000
NT = '' if 'nont' in XP else ' nt'
WNT = ' nt' if 'wnt' in XP else ''

S_XA, S_WQKV, S_WOA, S_XB, S_WQ, S_WKV, S_WOB, S_OUT, S_WS = 8, 12, 16, 20, 24, 28, 32, 36, 40
S_DBG = 44
S_WV = 46
sP = 46
sW = 48
sRB, sHG = 49, 50
sT0, sT1, sT2, sT3 = 51, 52, 53, 54
sC = 55
sStepA, sStepB = 56, 57
sXo, sWo = 58, 59
sKVo = 60
sW4k, sW8k, sW2k = 61, 62, 63
sVM = 64
sOoff, sOutOff, sWoff, sSpin = 66, 67, 68, 69
sOslot, sOslot2 = 70, 71
sFB, sHG128, sCS, sQ = 72, 73, 74, 75
sRot, sK1 = 4, 5
sF0, sF1, sF2 = 3, 6, 7
sST = 76
sNon = 100
sStepH = 31
sXcc = 30

vL16, vW, vWA, vXA = 1, 2, 3, 4
vN, vH, vI = 5, 6, 7
vT0, vT1, vT2, vT3 = 8, 9, 10, 11
vP0, vP1, vXx, vG = 12, 13, 14, 15
vQacc = 16
vFr = 96
(vB0, vB1, vBW, vWl, vIdx, vPa, vQx, vW2, vTw0, vTw1, vTp, vTr0, vTo, vPa2, vZero, vOw,
 vF0, vF1, vF2, vF3, vWA2, vXA2) = range(232, 254)
vNon, vFl = 90, 92
NVGPR = 256

def stamp(i, *modes):
    if STAMPS and STMODE in modes: e(f's_memrealtime {sr(sST+2*i,2)}')
def cstamp(i):
    if STAMPS and STMODE != 'xc': e(f's_memtime {sr(sST+2*i,2)}')
def dma(voff, srd_, soff, off=0, fl='', tag='x'):
    o = f' offset:{off}' if off else ''
    e(f'buffer_load_dwordx4 v{voff}, {sr(srd_,4)}, {soff} offen{o}{fl} lds', tag)
def srd(reg, size): E(f's_mov_b32 s{reg+2}, {hex(size)}', f's_mov_b32 s{reg+3}, 0x20000')
def nonce_load(tag=None): e(f'global_load_dwordx2 {vr(vNon,2)}, v{vZero}, {sr(S_DBG,2)} sc1', tag)
def poll_issue(vaddr, soffs, regs, non=True):
    if non: nonce_load()
    for so, r in zip(soffs, regs):
        e(f'buffer_load_dwordx2 {vr(r,2)}, v{vaddr}, {sr(S_WS,4)}, {so} offen sc1')
def poll_check(tag, vaddr, soffs, regs, issued, xcc=False):
    e(f's_mov_b32 s{sSpin}, {SPIN}')
    if issued is not None: E(f's_waitcnt vmcnt({issued})', f's_branch L_chk_{tag}')
    lab(f'L_rep_{tag}')
    poll_issue(vaddr, soffs, regs)
    e('s_waitcnt vmcnt(0)')
    lab(f'L_chk_{tag}')
    e(f'v_cmp_eq_u32 vcc, 0, v{vNon}')
    if xcc: E(f'v_mov_b32 v{vFl+2}, v{vFl}', f'v_and_b32 v{vFl}, 0xffffffe1, v{vFl}')
    for r in regs:
        E(f'v_cmp_ne_u64 {sr(sP,2)}, {vr(vNon,2)}, {vr(r,2)}', 's_nop 1', f's_or_b64 vcc, vcc, {sr(sP,2)}')
    E(f's_cbranch_scc0 L_nochk_{tag}', f's_sub_u32 s{sSpin}, s{sSpin}, 1', f's_cbranch_scc0 L_rep_{tag}')
    lab(f'L_nochk_{tag}')
def flag_store(tag, soff, first_wait='s_waitcnt vmcnt(0)', xcc=False, soff2=None):
    e(f's_mov_b32 s{sSpin}, {SPIN}')
    e(first_wait)
    lab(f'L_fw_{tag}')
    E(f'v_cmp_eq_u32 vcc, 0, v{vNon}', f's_cbranch_vccz L_fs_{tag}')
    nonce_load()
    E('s_waitcnt vmcnt(0)', f's_sub_u32 s{sSpin}, s{sSpin}, 1', f's_cbranch_scc0 L_fw_{tag}')
    lab(f'L_fs_{tag}')
    if xcc: e(f'v_or_b32 v{vNon}, s{sXcc}, v{vNon}')
    E('s_mov_b64 exec, 1', f'buffer_store_dwordx2 {vr(vNon,2)}, v{vZero}, {sr(S_WS,4)}, {soff} offen sc1')
    if soff2: e(f'buffer_store_dwordx2 {vr(vNon,2)}, v{vZero}, {sr(S_WS,4)}, {soff2} offen sc1')
    e('s_mov_b64 exec, -1')
def maxtree(rs, t0, t1):
    e(f'v_max3_f32 v{t0}, v{rs[0]}, v{rs[1]}, v{rs[2]}')
    e(f'v_max3_f32 v{t1}, v{rs[3]}, v{rs[4]}, v{rs[5]}')
    for k in range(6, len(rs), 4):
        e(f'v_max3_f32 v{t0}, v{t0}, v{rs[k]}, v{rs[k+1]}')
        if k + 3 < len(rs): e(f'v_max3_f32 v{t1}, v{t1}, v{rs[k+2]}, v{rs[k+3]}')
    e(f'v_max_f32 v{t0}, v{t0}, v{t1}')
    e(f'v_mov_b32 v{t1}, v{t0}')
def lane_setup():
    E(f'v_and_b32 v{vN}, 31, v0', f'v_lshrrev_b32 v{vH}, 5, v0', f'v_and_b32 v{vI}, 15, v0',
      f'v_lshrrev_b32 v{vWl}, 2, v{vI}', f'v_lshl_add_u32 v{vWl}, v{vH}, 3, v{vWl}', f'v_lshlrev_b32 v{vWl}, 7, v{vWl}',
      f'v_and_b32 v{vF0}, 8, v{vI}', f'v_lshl_add_u32 v{vWl}, v{vF0}, 3, v{vWl}', f'v_and_b32 v{vF0}, 16, v0',
      f'v_lshl_add_u32 v{vWl}, v{vF0}, 1, v{vWl}', f'v_and_b32 v{vF0}, 3, v0', f'v_lshl_add_u32 v{vWl}, v{vF0}, 3, v{vWl}',
      f's_lshl_b32 s{sW4k}, s{sQ}, 12', f's_add_u32 s{sF0}, s{sW4k}, {R}', f'v_add_u32 v{vQx}, s{sF0}, v{vL16}',
      f'v_mov_b32 v{vIdx}, 0xdddddddd', f's_mov_b32 s{sFB}, 0')
def q_addr(qx, qw):
    E(f'v_bfe_u32 v{vXx}, v{vN}, 1, 3', f'v_xor_b32 v{vXx}, v{vXx}, v{vH}', f'v_lshlrev_b32 v{vXx}, 4, v{vXx}',
      f's_and_b32 s{sF0}, s{sW}, 1', f's_lshl_b32 s{sF0}, s{sF0}, 12', f'v_lshl_add_u32 v{qx}, v{vN}, 7, v{vXx}', f'v_add_u32 v{qx}, s{sF0}, v{qx}',
      f'v_xor_b32 v{qx+1}, 32, v{qx}', f'v_xor_b32 v{qx+2}, 64, v{qx}', f'v_xor_b32 v{qx+3}, 96, v{qx}',
      f's_and_b32 s{sF2}, s{sW}, 2', f's_lshl_b32 s{sF2}, s{sF2}, 5', f'v_xor_b32 v{qw}, s{sF2}, v{vWl}', f'v_add_u32 v{qw}, 8192, v{qw}', f'v_add_u32 v{qw+1}, 65536, v{qw}',
      f's_mov_b32 s{sCS}, {f32(CSCALE)}')
    for j in range(4): e(f'v_add_u32 v{qx+4+j}, 65536, v{qx+j}')
oOf, oW, oAcc = 16, 96, 160
def tail_setup():
    E(f's_mov_b32 s{S_OUT+2}, 0x400000', f's_mov_b32 s{S_OUT+3}, 0x20000',
      f's_lshr_b32 s{sF2}, s{sW}, 2', f's_lshl_b32 s{sF1}, s{sW}, 14',
      f'v_lshlrev_b32 v{vT0}, 9, v{vH}', f'v_sub_u32 v{vTw0}, v{vWl}, v{vT0}', f'v_add_u32 v{vTw0}, s{sF1}, v{vTw0}', f'v_xor_b32 v{vTw1}, 64, v{vTw0}',
      f'v_xor_b32 v{vT0}, v{vH}, v{vI}', f'v_lshlrev_b32 v{vT0}, 4, v{vT0}', f'v_lshl_add_u32 v{vT0}, v{vN}, 8, v{vT0}', f'v_add_u32 v{vTp}, s{sF1}, v{vT0}',
      f'v_lshrrev_b32 v{vT0}, 3, v0', f's_lshl_b32 s{sF1}, s{sQ}, 3', f'v_add_u32 v{vT0}, s{sF1}, v{vT0}', f'v_and_b32 v{vT1}, 7, v0', f'v_lshlrev_b32 v{vT2}, 1, v{vT1}',
      f'v_and_b32 v{vT3}, 15, v{vT0}', f'v_xor_b32 v{vT2}, v{vT2}, v{vT3}', f'v_lshlrev_b32 v{vT2}, 4, v{vT2}', f'v_lshl_add_u32 v{vT2}, v{vT0}, 8, v{vT2}',
      f's_lshl_b32 s{sF1}, s{sF2}, 16', f'v_add_u32 v{vTr0}, s{sF1}, v{vT2}',
      f'v_lshlrev_b32 v{vT1}, 4, v{vT1}', f'v_lshl_add_u32 v{vTo}, v{vT0}, 11, v{vT1}',
      f's_lshl_b32 s{sOutOff}, s{sRB}, 17', f's_lshl_b32 s{sF1}, s{sF2}, 10', f's_add_u32 s{sOutOff}, s{sOutOff}, s{sF1}', f's_add_u32 s{sOutOff}, s{sOutOff}, s{sHG128}',
      f's_lshl_b32 s{sOoff}, s{sRB}, 16', f's_add_u32 s{sF1}, s{sQ}, s{sRB}' if opt('worot', 1) else f's_mov_b32 s{sF1}, s{sQ}', f's_and_b32 s{sF1}, s{sF1}, 3', f's_lshl_b32 s{sF1}, s{sF1}, 13', f's_add_u32 s{sOoff}, s{sOoff}, s{sF1}',
      f's_lshl_b32 s{sF1}, s{sF2}, 21', f's_add_u32 s{sOoff}, s{sOoff}, s{sF1}', f's_add_u32 s{sOoff}, s{sOoff}, {hex(WS_OA)}')
assert WS_OB - WS_OA == 1 << 21
def w_reads():
    for s in range(8):
        x = oW + 8 * s
        E(f'ds_read_b64_tr_b16 {vr(x,2)}, v{vTw0} offset:{s*2048}', f'ds_read_b64_tr_b16 {vr(x+2,2)}, v{vTw0} offset:{s*2048+1024}',
          f'ds_read_b64_tr_b16 {vr(x+4,2)}, v{vTw1} offset:{s*2048}', f'ds_read_b64_tr_b16 {vr(x+6,2)}, v{vTw1} offset:{s*2048+1024}')
    for q in range(1, 8): e(f'v_xor_b32 v{80+q}, {(2*q)<<4}, v{vTp}')
    e(f'v_xor_b32 v88, 16, v{vTr0}')
def o_loads(tag=None, gs=(0, 1, 2, 3)):
    if 0 in gs: E(f's_add_u32 s{sT1}, s{sOoff}, 4096', f's_add_u32 s{sT2}, s{sOoff}, 32768', f's_add_u32 s{sT3}, s{sOoff}, {32768+4096}')
    for g, so in enumerate((sOoff, sT1, sT2, sT3)):
        if g not in gs: continue
        for j in range(4):
            o = f' offset:{j*1024}' if j else ''
            e(f'buffer_load_dwordx4 {vr(oOf+16*g+4*j,4)}, v{vL16}, {sr(S_WS,4)}, s{so} offen{o} sc1', tag)

lab(f'{NAME}_kernel')
if STAMPS:
    for i in range(12): e(f's_mov_b32 s{sST+2*i}, 0')
stamp(0, 'all', 'head', 'tail', 'x', 'i0', 'i1', 'j0', 'j1', 'd')
for reg, off in ((S_XB,24),(S_WKV,40),(S_WV,48),(S_WQ,32),(S_DBG,72),(S_WS,80),(S_XA,0),(S_WQKV,8),(S_WOA,16),(S_WOB,56),(S_OUT,64)):
    e(f's_load_dwordx2 {sr(reg,2)}, s[0:1], {off}')
e(f's_memrealtime {sr(sNon,2)}')
E('s_cmp_ge_u32 s2, 256', 's_cbranch_scc1 L_end')
if opt('cpf', 1) == 2:
    e(f's_getpc_b64 {sr(sOoff,2)}')
    lab('L_pc')
    E(f'v_subrev_u32 v{vF0}, 64, v0', f'v_cmp_gt_u32 vcc, 6, v{vF0}', f's_and_saveexec_b64 {sr(sVM,2)}, vcc', 's_cbranch_execz L_nopf',
      f's_lshr_b32 s{sT0}, s2, 3', f's_mul_i32 s{sT0}, s{sT0}, 768', f'v_lshl_add_u32 v{vF0}, v{vF0}, 7, s{sT0}',
      f'v_min_u32 v{vF0}, L_code_end-L_pc-4, v{vF0}', f'global_load_dword v{vF1}, v{vF0}, {sr(sOoff,2)}')
    lab('L_nopf')
    e('s_mov_b64 exec, -1')
E(
  f'v_lshrrev_b32 v{vT0}, 6, v0', 'v_and_b32 v0, 63, v0', f'v_readfirstlane_b32 s{sW}, v{vT0}',
  f's_and_b32 s{sT0}, s2, 7', f's_bfe_u32 s{sRot}, s2, 0x20003', f's_lshl_b32 s{sRB}, s{sT0}, 2',
  f's_add_u32 s{sRB}, s{sRB}, s{sRot}', f's_lshr_b32 s{sHG}, s2, 5',
  f'v_lshlrev_b32 v{vL16}, 4, v0', f'v_lshrrev_b32 v{vG}, 4, v0', f'v_lshrrev_b32 v{vT1}, 3, v0', f'v_and_b32 v{vT2}, 7, v0',
  f'v_xor_b32 v{vT3}, v{vT2}, v{vG}', f'v_lshlrev_b32 v{vT3}, 4, v{vT3}', f'v_lshl_add_u32 v{vP0}, v{vT1}, 10, v{vT3}',
  f'v_xor_b32 v{vP1}, 64, v{vP0}', f'v_add_u32 v{vP1}, {8192-1024}, v{vP1}', f'v_mov_b32 v{vZero}, 0',
  f's_xor_b32 s{sW}, s{sW}, 7', f's_lshl_b32 s{sRot}, s{sRot}, 1', f's_lshl_b32 s{sHG128}, s{sHG}, 7', f's_and_b32 s{sQ}, s{sW}, 3')
if opt('brx', 0): E(f's_lshr_b32 s{sT0}, s{sRB}, 2', f's_add_u32 s{sRot}, s{sRot}, s{sT0}', f's_and_b32 s{sRot}, s{sRot}, 7')
if opt('brh', 1): E(f's_add_u32 s{sRot}, s{sRot}, s{sHG}', f's_and_b32 s{sRot}, s{sRot}, 7')
if opt('hgx', 0): E(f's_xor_b32 s{sHG}, s{sHG}, {opt("hgx", 0)}', f's_lshl_b32 s{sHG128}, s{sHG}, 7')
srd(S_WS, WS_SIZE)
E(f's_cmp_lt_u32 s{sW}, 4', 's_cbranch_scc1 L_X')

cm('================ Y program (waves 4-7) ================')
aSa, aSb, aCa, aCb, aOa, aOb = 96, 112, 128, 144, 160, 176
aK, aV = 192, 56
vQa, vQb = 208, 212
vKa, vVa = 216, 217
srd(S_XB, 0x200000); srd(S_WKV, 0x4000)
vD0, vD1 = 218, 219
E(f's_lshr_b32 s{sT1}, s{sHG}, 1', f's_add_u32 s{sT1}, s{sT1}, s{sW}', f's_add_u32 s{sT1}, s{sT1}, 1', f's_and_b32 s{sT1}, s{sT1}, 3',
  f's_lshl_b32 s{sT2}, s{sT1}, 11',
  f's_lshl_b32 s{sT3}, s{sRB}, 2', f's_add_u32 s{sT3}, s{sT3}, s{sT1}', f's_lshl_b32 s{sT3}, s{sT3}, 14',
  f'v_add_u32 v{vD0}, s{sT3}, v{vP0}', f'v_add_u32 v{vD1}, s{sT3}, v{vP1}',
  f's_lshl_b32 s{sXo}, s{sRot}, 7',
  f's_cmp_lg_u32 s{sW}, 7', 's_cbranch_scc1 L_Yset')
def x_sub(s, tag):
    E(f's_add_u32 m0, s{sT2}, {s*16384}', f's_and_b32 s{sXo}, s{sXo}, 1023')
    dma(vD0, S_XB, f's{sXo}', 0, NT, tag); dma(vD1, S_XB, f's{sXo}', 1024, NT, tag)
E(f's_bitcmp1_b32 s{sHG}, 0', 's_waitcnt lgkmcnt(0)',
  f's_cselect_b32 s{S_WKV}, s{S_WV}, s{S_WKV}', f's_cselect_b32 s{S_WKV+1}, s{S_WV+1}, s{S_WKV+1}')
if opt('kvl', 1):
    E(f's_mov_b32 s{sT0}, s{sT2}', f's_mov_b32 s{sT1}, {R}')
    lab('L_kvl')
    E(f's_mov_b32 m0, s{sT0}', f's_and_b32 s{sXo}, s{sXo}, 1023')
    dma(vD0, S_XB, f's{sXo}', 0, NT, None); dma(vD1, S_XB, f's{sXo}', 1024, NT, None)
    E(f's_mov_b32 m0, s{sT1}', f's_lshl_b32 s{sWo}, s{sXo}, 4')
    dma(vL16, S_WKV, f's{sWo}', 0, '', None); dma(vL16, S_WKV, f's{sWo}', 1024, '', None)
    E(f's_add_u32 s{sXo}, s{sXo}, 128', f's_add_u32 s{sT0}, s{sT0}, 16384', f's_add_u32 s{sT1}, s{sT1}, 2048', f's_cmp_lt_u32 s{sT1}, {R+16384}', 's_cbranch_scc1 L_kvl')
else:
    for s_ in range(8):
        x_sub(s_, None)
        E(f's_mov_b32 m0, {R+s_*2048}', f's_lshl_b32 s{sWo}, s{sXo}, 4')
        dma(vL16, S_WKV, f's{sWo}', 0, '', None); dma(vL16, S_WKV, f's{sWo}', 1024, '', None)
        if s_ < 7: e(f's_add_u32 s{sXo}, s{sXo}, 128')
e('s_barrier'); NBAR[0] -= 1
stamp(1, 'head')
e('s_branch L_Yset2')
lab('L_Yset')
e('s_waitcnt lgkmcnt(0)')
if opt('cpf', 1) == 1:
    e('s_getpc_b64 s[0:1]')
    lab('L_pc')
    E(f's_sub_u32 s0, s0, L_pc-{NAME}_kernel', 's_subb_u32 s1, s1, 0',
      f's_lshr_b32 s{sT0}, s2, 3', f's_mul_i32 s{sT0}, s{sT0}, 3', f's_add_u32 s{sT0}, s{sT0}, s{sQ}', f's_lshl_b32 s{sT0}, s{sT0}, 8',
      f'v_lshlrev_b32 v{vF0}, 7, v0', f'v_add_u32 v{vF0}, s{sT0}, v{vF0}', f'v_min_u32 v{vF0}, L_code_end-{NAME}_kernel-4, v{vF0}', 's_mov_b64 exec, 3',
      f'global_load_dword v{vF1}, v{vF0}, s[0:1]', 's_mov_b64 exec, -1')
e('s_barrier')
for s_ in range(8):
    x_sub(s_, 'xb')
    if s_ < 7: e(f's_add_u32 s{sXo}, s{sXo}, 128')
stamp(1, 'head')
lab('L_Yset2')
lane_setup()
tail_setup()
q_addr(32, 40)
E(f's_mov_b32 s{sVM}, 0xffff', f's_mov_b32 s{sVM+1}, 0xffff',
  f's_and_b32 s{sT0}, s{sW}, 1', f's_lshl_b32 s{sT1}, s{sRB}, 1', f's_add_u32 s{sT0}, s{sT0}, s{sT1}', f's_lshl_b32 s{sT0}, s{sT0}, 5',
  f's_lshl_b32 s{sT1}, s{sHG}, 2', f's_add_u32 s{sT0}, s{sT0}, s{sT1}', f's_and_b32 s{sT1}, s{sW}, 2', f's_add_u32 s{sT0}, s{sT0}, s{sT1}',
  f's_lshl_b32 s{sT0}, s{sT0}, 10', f's_add_u32 s{sOslot}, s{sT0}, {hex(WS_OB)}',
  f'v_add_u32 v{vKa}, {R+16384}, v{vL16}', f'v_lshlrev_b32 v{vVa}, 4, v{vI}', f'v_lshl_add_u32 v{vVa}, v{vH}, 8, v{vVa}', f'v_add_u32 v{vVa}, {R+16384}, v{vVa}',
  f'v_and_b32 v{vT1}, 27, v0', f'v_cmp_eq_u32 vcc, 16, v{vT1}', f'v_mov_b32 v{vT1}, {hex(ONEB)}', f's_cmp_lg_u32 s{sW}, 7', f'v_cndmask_b32 v{aV}, 0, v{vT1}, vcc',
  's_cbranch_scc1 L_Yj')
lab('L_Y7')
E(f'v_lshrrev_b32 v{vT1}, 1, v{vI}', f'v_xor_b32 v{vT1}, v{vT1}, v{vG}', f'v_lshlrev_b32 v{vT1}, 4, v{vT1}', f'v_lshl_add_u32 v{vT1}, v{vI}, 7, v{vT1}',
  f'v_add_u32 v{vT0}, s{sT2}, v{vT1}', f'v_xor_b32 v{vT1}, 64, v{vT0}', f'v_add_u32 v{vT2}, 65536, v{vT0}', f'v_add_u32 v{vT3}, 65536, v{vT1}',
  f'v_lshlrev_b32 v{vF0}, 8, v{vG}', f'v_lshl_add_u32 v{vF0}, v{vI}, 3, v{vF0}', f'v_add_u32 v{vF0}, {R}, v{vF0}',
  f'v_and_b32 v{vF1}, 1, v{vG}', f'v_lshrrev_b32 v{vF2}, 1, v{vG}',
  f's_lshr_b32 s{sT0}, s{sHG}, 2', f's_lshl_b32 s{sC}, s{sRB}, 1', f's_add_u32 s{sT0}, s{sT0}, s{sC}', f's_lshl_b32 s{sT0}, s{sT0}, 11',
  f's_bfe_u32 s{sC}, s{sHG}, 0x10001',
  f's_lshl_b32 s{sT1}, s{sRB}, 3', f's_add_u32 s{sT1}, s{sT1}, s{sHG}', f's_lshl_b32 s{sOslot2}, s{sT1}, 3', f's_add_u32 s{sOslot2}, s{sOslot2}, {hex(WS_FD)}', f's_lshl_b32 s{sT1}, s{sT1}, 6', f's_add_u32 s{sK1}, s{sT1}, {hex(WS_FKV)}')
kd = 16
KF = 88
KF = 96 - 8
def kfr(u): return (96 + 8 * u) if u < 15 else 24
def kv_reads(s):
    a0, a1 = (vT0, vT1) if s < 4 else (vT2, vT3)
    o = (s & 3) * 16384
    x, y = kfr(2*s), kfr(2*s+1)
    E(f's_waitcnt vmcnt({28-4*s})',
      f'ds_read_b128 {vr(x,4)}, v{a0} offset:{o}', f'ds_read_b64_tr_b16 {vr(x+4,2)}, v{vF0} offset:{s*2048}', f'ds_read_b64_tr_b16 {vr(x+6,2)}, v{vF0} offset:{s*2048+128}',
      f'ds_read_b128 {vr(y,4)}, v{a1} offset:{o}', f'ds_read_b64_tr_b16 {vr(y+4,2)}, v{vF0} offset:{s*2048+1024}', f'ds_read_b64_tr_b16 {vr(y+6,2)}, v{vF0} offset:{s*2048+1152}')
for s_ in range(8): kv_reads(s_)
nonce_load()
stamp(2, 'head')
E(f's_bitcmp1_b32 s{sHG}, 0', f's_cselect_b32 s{sWo}, {f32(VSC) if "zv" not in XP else 0}, {"1.0" if "zk" not in XP else 0}', 's_cbranch_scc1 L_kv_v',
  f'v_lshlrev_b32 v{vF1}, 9, v{vF1}', f'v_lshl_add_u32 v{vF1}, v{vF2}, 3, v{vF1}', f's_lshl_b32 s{sC}, s{sC}, 8')
def kv_chain(swap):
    for u in range(16):
        x = kfr(u)
        if u == 0: e('s_waitcnt lgkmcnt(12)')
        if u == 12: e('s_waitcnt lgkmcnt(0)')
        a, b = (vr(x+4,4), vr(x,4))
        if swap: a, b = b, a
        d = kd + 4 * (u & 1)
        e(f'v_mfma_f32_16x16x32_bf16 {vr(d,4)}, {a}, {b}, {"0" if u < 2 else vr(d,4)}')
kv_chain(False)
e('s_branch L_kv_j')
lab('L_kv_v')
E(f'v_lshlrev_b32 v{vF1}, 3, v{vF1}', f'v_lshl_add_u32 v{vF1}, v{vF2}, 8, v{vF1}', f's_lshl_b32 s{sC}, s{sC}, 9', f's_add_u32 s{sC}, s{sC}, 1024')
kv_chain(True)
lab('L_kv_j')
E(f'v_lshl_add_u32 v{vF1}, v{vI}, 4, v{vF1}', f's_add_u32 s{sT0}, s{sT0}, s{sC}', 's_nop 5',
  f'v_pk_add_f32 {vr(kd,2)}, {vr(kd,2)}, {vr(kd+4,2)}', f'v_pk_add_f32 {vr(kd+2,2)}, {vr(kd+2,2)}, {vr(kd+6,2)}',
  f'v_mul_f32 v{kd}, s{sWo}, v{kd}', f'v_mul_f32 v{kd+1}, s{sWo}, v{kd+1}', f'v_mul_f32 v{kd+2}, s{sWo}, v{kd+2}', f'v_mul_f32 v{kd+3}, s{sWo}, v{kd+3}',
  f'v_cvt_pk_bf16_f32 v{vF2}, v{kd}, v{kd+1}', f'v_cvt_pk_bf16_f32 v{vF3}, v{kd+2}, v{kd+3}',
  f'buffer_store_dwordx2 {vr(vF2,2)}, v{vF1}, {sr(S_WS,4)}, s{sT0} offen sc1')
stamp(3, 'head')
lab('L_Yj')
if opt('ytc', 0):
    E(f's_bitcmp1_b32 s{sW}, 1', f's_cselect_b32 s{S_WOA}, s{S_WOB}, s{S_WOA}', f's_cselect_b32 s{S_WOA+1}, s{S_WOB+1}, s{S_WOA+1}',
      f's_mov_b32 s{S_WOA+2}, 0x80000', f's_mov_b32 s{S_WOA+3}, 0x20000',
      f's_lshr_b32 s{sT0}, s2, 3', f's_lshl_b32 s{sT0}, s{sT0}, 1', f's_and_b32 s{sT1}, s{sW}, 1', f's_add_u32 s{sT0}, s{sT0}, s{sT1}', f's_lshl_b32 s{sWoff}, s{sT0}, 13',
      f'v_lshlrev_b32 v{vD0}, 7, v0')
for i in range(1, 32): e(f'v_mov_b32 v{aV+i}, v{aV}')
for j in range(32): e(f'v_mov_b32 v{aOa+j}, 0')
EA = 1
STG = opt('stg', 0)
B2U = opt('b2u', 7)
def y_flag():
    E(f's_cmp_lg_u32 s{sW}, 7', 's_cbranch_scc1 L_flag_done')
    flag_store('kv', f's{sK1}')
    stamp(4, 'head')
    lab('L_flag_done')
if STG and opt('fu', 99) < 32:
    E(f's_cmp_eq_u32 s{sW}, 7', 's_cbranch_scc1 L_y7b', 's_waitcnt vmcnt(0)')
    lab('L_y7b')
else:
    e('s_waitcnt vmcnt(0)')
    y_flag()
e('s_barrier')
stamp(5, 'head'); stamp(1, 'all', 'x')
def qrd(u, qx=32, qw=40):
    sc, st = u >> 2, u & 3
    x = vFr + 8 * (u % 8)
    hi = sc >> 2
    o = (sc & 3) * 16384
    E(f'ds_read_b128 {vr(x,4)}, v{qx+4*hi+st} offset:{o}',
      f'ds_read_b64_tr_b16 {vr(x+4,2)}, v{qw+hi} offset:{o+st*2048}', f'ds_read_b64_tr_b16 {vr(x+6,2)}, v{qw+hi} offset:{o+st*2048+512}')
for u in range(5): qrd(u)
for u in range(32):
    x = vFr + 8 * (u % 8)
    lim = 16 if (STG and u < 16) else 32
    if STG and u == 16:
        e('s_barrier')
        for v_ in range(16, 21): qrd(v_)
    issued = min(lim, 5 + u)
    e(f's_waitcnt lgkmcnt({3*(issued-u-1)})')
    e(f'v_mfma_f32_32x32x16_bf16 {vr(vQacc,16)}, {vr(x+4,4)}, {vr(x,4)}, {"0" if u == 0 else vr(vQacc,16)}')
    if 5 + u < lim: qrd(5 + u)
    if STG and u == opt('fu', 99): y_flag()
    if not STG and u == B2U: e('s_barrier')
stamp(6, 'head')
E(f's_mov_b32 s{sC}, 0', f's_setprio {opt("yp", 1)}', f's_cmp_lg_u32 s{sW}, 7', 's_cbranch_scc1 L_nodense', 's_mov_b64 exec, 1',
  f'buffer_store_dwordx2 {vr(vNon,2)}, v{vZero}, {sr(S_WS,4)}, s{sOslot2} offen sc1', 's_mov_b64 exec, -1')
lab('L_nodense')
e('s_nop 7')
for j in range(0, 16, 2): e(f'v_pk_mul_f32 {vr(vQacc+j,2)}, {vr(vQacc+j,2)}, {sr(sCS,2)} op_sel_hi:[1,0]')
for j in range(8): e(f'v_cvt_pk_bf16_f32 v{vQa+j}, v{vQacc+2*j}, v{vQacc+2*j+1}')
stamp(7, 'head'); stamp(2, 'all', 'x')
e('s_barrier')
stamp(8, 'head'); stamp(3, 'all', 'x'); stamp(1, 'tail')
cstamp(10)
E(f'ds_read_b128 {vr(aK,4)}, v{vKa}', f'ds_read_b128 {vr(aK+4,4)}, v{vKa} offset:2048', f's_mov_b64 exec, {sr(sVM,2)}')
for j in range(4): e(f'ds_read_b128 {vr(aV+4*j,4)}, v{vVa} offset:{(j>>1)*2048+1024+(j&1)*512}')
E('s_mov_b64 exec, -1', 's_waitcnt lgkmcnt(5)',
  f'v_mfma_f32_32x32x16_bf16 {vr(aSa,16)}, {vr(aK,4)}, {vr(vQa,4)}, 0',
  f'v_mfma_f32_32x32x16_bf16 {vr(aSb,16)}, {vr(aK,4)}, {vr(vQb,4)}, 0', 's_nop 10')
def bcast(C, t):
    e(f'v_sub_f32 v{t}, {f32(-MOFF)}, v{t}')
    for i in range(0, 16, 2): e(f'v_pk_mov_b32 {vr(C+i,2)}, {vr(t,2)}, {vr(t,2)} op_sel:[0,0]')
maxtree([aSa+i for i in range(16)], vT0, vT1)
E('s_nop 1', f'v_permlane32_swap_b32 v{vT0}, v{vT1}', f'v_max_f32 v{vT0}, v{vT0}, v{vT1}')
bcast(aCa, vT0)
E(f'v_max3_f32 v{vT2}, v{aSb}, v{aSb+1}, v{aSb+2}', f'v_max3_f32 v{vT3}, v{aSb+3}, v{aSb+4}, v{aSb+5}',
  f'v_mfma_f32_32x32x16_bf16 {vr(aSa,16)}, {vr(aK,4)}, {vr(vQa,4)}, {vr(aCa,16)}')
for k in range(6, 16, 2): e(f'v_max3_f32 v{vT2 + ((k>>1)&1)}, v{vT2 + ((k>>1)&1)}, v{aSb+k}, v{aSb+k+1}')
E(f'v_max_f32 v{vT2}, v{vT2}, v{vT3}', f'v_mov_b32 v{vT3}, v{vT2}', 's_nop 1', f'v_permlane32_swap_b32 v{vT2}, v{vT3}', f'v_max_f32 v{vT2}, v{vT2}, v{vT3}')
bcast(aCb, vT2)
if opt('ytc', 0): e(f'buffer_load_dword v{vD1}, v{vD0}, {sr(S_WOA,4)}, s{sWoff} offen')
E('s_waitcnt lgkmcnt(0)', f'v_exp_f32 v{aSa}, v{aSa}', f'v_exp_f32 v{aSa+1}, v{aSa+1}', 's_branch L_att_entry')

def dtile(par, ld_off, entry=False):
    K = aK + 8 * par; Kn = aK + 8 * (par ^ 1)
    V = aV + 16 * par; Vn = aV + 16 * (par ^ 1)
    def ex(S, a, b):
        for i in range(a, b): e(f'v_exp_f32 v{S+i}, v{S+i}')
    def pv(O, Vr, P):
        if 'nopv' in XP: return
        if 'pvhalf' in XP and (P in (aSa, aSb)): return
        e(f'v_smfmac_f32_32x32x32_bf16 {vr(O,16)}, {vr(Vr,4)}, {vr(P,8)}, v{vIdx}')
    def qk(S, Kr, Q, C): e(f'v_mfma_f32_32x32x16_bf16 {vr(S,16)}, {vr(Kr,4)}, {vr(Q,4)}, {vr(C,16)}')
    P1, P2, P3 = [int(c, 16) for c in opt('pos', '25a')]
    LDV = opt('ldv', 0)
    ex(aSa, 0, 2)
    if entry and P1 > 2: pass
    pv(aOb, Vn+12, aSb+8)
    if entry: lab('L_att_entry')
    def vld(js):
        e(f's_mov_b64 exec, {sr(sVM,2)}')
        for j in js: e(f'ds_read_b128 {vr(Vn+4*j,4)}, v{vVa} offset:{ld_off+(j>>1)*2048+1024+(j&1)*512}')
        e('s_mov_b64 exec, -1')
    def kld(j): e(f'ds_read_b128 {vr(Kn+4*j,4)}, v{vKa} offset:{ld_off+2048*j}')
    if LDV == 0: vld(range(4))
    ex(aSa, 2, P2); qk(aSb, K, vQb, aCb)
    if LDV == 0: kld(0); kld(1)
    if LDV == 1: kld(0)
    ex(aSa, P2, P3); pv(aOa, V, aSa)
    if LDV == 1: vld(range(4))
    if LDV == 2: vld(range(4)); kld(0); kld(1)
    ex(aSa, P3, 16)
    ex(aSb, 0, P1); pv(aOa, V+4, aSa+8); ex(aSb, P1, P2); qk(aSa, K+4, vQa, aCa); ex(aSb, P2, P3); pv(aOb, V, aSb)
    if LDV == 1: kld(1)
    ex(aSb, P3, 16)
    ex(aSa, 0, P1); pv(aOb, V+4, aSb+8); ex(aSa, P1, P2); qk(aSb, K+4, vQb, aCb); ex(aSa, P2, P3); pv(aOa, V+8, aSa); ex(aSa, P3, 16)
    ex(aSb, 0, P1); pv(aOa, V+12, aSa+8); e('s_waitcnt lgkmcnt(0)'); ex(aSb, P1, P2); qk(aSa, Kn, vQa, aCa); ex(aSb, P2, P3); pv(aOb, V+8, aSb); ex(aSb, P3, 16)

e('.p2align 6')
lab('L_att_top')
E(f'v_xor_b32 v{vKa}, 16384, v{vKa}', f'v_xor_b32 v{vVa}, 16384, v{vVa}', f's_cmp_eq_u32 s{sC}, 8', 's_barrier')
dtile(1, 0)
e('s_cbranch_scc1 L_att_done')
dtile(0, 4096, entry=True)
if opt('nomid', 0): NBAR[0] += 1
else: e('s_barrier')
dtile(1, 8192)
dtile(0, 12288)
E(f's_add_u32 s{sC}, s{sC}, 1', 's_branch L_att_top')
NBAR_Y = NBAR[0] - 2 + 16
lab('L_att_done')
E(f'ds_read_b32 v{vFl}, v{vKa}', f'v_smfmac_f32_32x32x32_bf16 {vr(aOb,16)}, {vr(aV+16+12,4)}, {vr(aSb+8,8)}, v{vIdx}')
stamp(4, 'all'); stamp(2, 'tail')
cstamp(11)
def chk(O, t):
    E(f'v_maximum3_f32 v{t}, abs(v{O}), abs(v{O+1}), abs(v{O+2})', f'v_maximum3_f32 v{t}, v{t}, abs(v{O+3}), abs(v{O+4})',
      f'v_maximum3_f32 v{t}, v{t}, abs(v{O+5}), abs(v{O+6})', f'v_maximum3_f32 v{t}, v{t}, abs(v{O+7}), v{O+8}')
def fin(O, t, d):
    for i in range(0, 8, 2): e(f'v_pk_mul_f32 {vr(O+i,2)}, {vr(O+i,2)}, {vr(t,2)} op_sel_hi:[1,0]')
    for i in range(4): e(f'v_cvt_pk_bf16_f32 v{d+i}, v{O+2*i}, v{O+2*i+1}')
lab('L_att_fin')
PADON[0] = opt('pad', 0); PADCNT[0] = 1000
E(f'v_rcp_f32 v{vT0}, v{aOa+8}', f's_mov_b32 s{sT0}, 0x7e000000')
chk(aOa, vT1)
fin(aOa, vT0, 224)
E(f'v_rcp_f32 v{vT2}, v{aOb+8}', 's_waitcnt lgkmcnt(0)', f'v_readfirstlane_b32 s{sT1}, v{vFl}')
chk(aOb, vT3)
fin(aOb, vT2, 228)
E(f'v_maximum3_f32 v{vT1}, v{vT1}, v{vT3}, v{vT3}', f'v_cmp_nle_f32 vcc, v{vT1}, s{sT0}'.replace('vcc, v', 'vcc, v'), f's_cmp_eq_u32 s{sT1}, 1', 's_cbranch_vccnz L_fallback' if 'nofb' not in XP else 's_nop 0')
lab('L_att_ok')
E('s_cbranch_scc0 L_st_slow',
  f'buffer_store_dwordx4 {vr(224,4)}, v{vL16}, {sr(S_WS,4)}, s{sOslot} offen',
  f'buffer_store_dwordx4 {vr(228,4)}, v{vL16}, {sr(S_WS,4)}, s{sOslot} offen offset:1024')
lab('L_st_j')
stamp(3, 'tail')
OE = opt('oe', 0)
CAP[0] = []; w_reads(); WR = CAP[0]; CAP[0] = None
for s_, t_ in (WR[:OE] if OE else WR): e(s_, t_)
e(f's_mov_b32 s{sSpin}, {SPIN//10}')
if opt('tslp', 0): e(f's_sleep {opt("tslp", 0)}')
stamp(4, 'tail')
NPRE = opt('npre', 2)
o_loads(None, range(NPRE))
if OE:
    for s_, t_ in WR[OE:]: e(s_, t_)
e(f's_mov_b32 s{sC}, 2')

cm('================ tail: out projections (X: branch A, Y: branch B) ================')
lab('L_tail_go')
e('s_waitcnt lgkmcnt(0)')
for g in range(4):
    rt = g >> 1
    b_ = oOf + 16 * g
    e(f's_waitcnt vmcnt({4*(min(4, NPRE+g)-g-1)})')
    lab(f'L_tg{g}')
    E(f'v_max3_u32 v{vT0}, v{b_}, v{b_+1}, v{b_+2}', f'v_max3_u32 v{vT1}, v{b_+3}, v{b_+4}, v{b_+5}')
    for k in range(6, 16, 2):
        t = vT0 if (k >> 1) & 1 else vT1
        e(f'v_max3_u32 v{t}, v{t}, v{b_+k}, v{b_+k+1}')
    E(f'v_max_u32 v{vT0}, v{vT0}, v{vT1}', f'v_cmp_eq_u32 vcc, -1, v{vT0}', f's_cbranch_vccnz L_tr{g}')
    lab(f'L_tk{g}')
    if g == 0: stamp(5, 'tail', 'all')
    if NPRE + g < 4: o_loads(None, [NPRE + g])
    if g == 2: e('s_barrier')
    order = [(s_, ct) for s_ in range(4*(g&1), 4*(g&1)+4) for ct in range(2)]
    if g == 3: order = sorted(order, key=lambda z: z[1])
    for m_, (s_, ct) in enumerate(order):
        a_ = oAcc + 32 * rt + 16 * ct
        e(f'v_mfma_f32_32x32x16_bf16 {vr(a_,16)}, {vr(oW+8*s_+4*ct,4)}, {vr(oOf+32*rt+4*s_,4)}, {"0" if s_ == 0 else vr(a_,16)}')
        if g == 2:
            e(f'ds_write_b128 v{80+m_ if m_ else vTp}, {vr(oAcc+4*m_,4)}')
e('s_nop 7')
PADON[0] = False
lab('L_tail_wr')
stamp(6, 'tail')
for q in range(8):
    e(f'ds_write_b128 v{80+q if q else vTp}, {vr(oAcc+32+4*q,4)} offset:8192')
E('s_waitcnt lgkmcnt(0)', 's_barrier')
stamp(7, 'tail')
lab('L_red')
tR = 96
for kq in range(4):
    E(f'ds_read_b128 {vr(tR+8*kq,4)}, v{vTr0} offset:{kq*16384}', f'ds_read_b128 {vr(tR+8*kq+4,4)}, v88 offset:{kq*16384}')
e('s_waitcnt lgkmcnt(4)')
for i in range(0, 8, 2): e(f'v_pk_add_f32 {vr(tR+i,2)}, {vr(tR+i,2)}, {vr(tR+8+i,2)}')
e('s_waitcnt lgkmcnt(0)')
for a_, b_ in ((16, 24), (0, 16)):
    for i in range(0, 8, 2): e(f'v_pk_add_f32 {vr(tR+a_+i,2)}, {vr(tR+a_+i,2)}, {vr(tR+b_+i,2)}')
for i in range(4): e(f'v_cvt_pk_bf16_f32 v{16+i}, v{tR+2*i}, v{tR+2*i+1}')
e(f'buffer_store_dwordx4 {vr(16,4)}, v{vTo}, {sr(S_OUT,4)}, s{sOutOff} offen{opt("of", "_nt").replace("_", " ")}')
E(f's_cmp_eq_u32 s{sC}, 2', 's_cbranch_scc1 L_fin',
  f's_add_u32 s{sC}, s{sC}, 1', f's_cmp_eq_u32 s{sC}, 1', f's_cselect_b32 s{sT0}, 1, 8', f's_cselect_b32 s{sT1}, 64, 1', f's_lshl_b32 s{sT1}, s{sT1}, 10', f's_lshl_b32 s{sT0}, s{sT0}, 13',
  f'v_add_u32 v{vTr0}, s{sT0}, v{vTr0}', f'v_add_u32 v88, s{sT0}, v88', f's_add_u32 s{sOutOff}, s{sOutOff}, s{sT1}',
  f's_cmp_eq_u32 s{sC}, 1', 's_cbranch_scc1 L_red', 's_barrier', 's_branch L_red')
lab('L_fin')
if STAMPS:
    stamp(8, 'tail')
    e('s_waitcnt vmcnt(0)')
    stamp(9, 'tail', 'head'); stamp(6, 'all')
    E('s_waitcnt lgkmcnt(0)', 's_nop 1')
    ECHO = [a[7:] for a in sys.argv if a.startswith('--echo=')]
    if ECHO:
        a_, b_, mul = map(int, ECHO[0].split(','))
        E(f's_sub_u32 s{sT0}, s{sST+2*b_}, s{sST+2*a_}', f's_mul_i32 s{sT0}, s{sT0}, {mul}')
        if opt('ehg', -1) >= 0:
            E(f's_cmp_eq_u32 s{sHG}, {opt("ehg", -1)}', f's_cselect_b32 s{sT0}, s{sT0}, 0', f's_cmp_ge_u32 s{sW}, 4' if STMODE == 'all' else f's_cmp_lt_u32 s{sW}, 4', f's_cselect_b32 s{sT0}, s{sT0}, 0')
        if opt('erole', ''):
            E({'x': f's_cmp_lt_u32 s{sW}, 4', 'y': f's_cmp_ge_u32 s{sW}, 4', 'k': f's_cmp_eq_u32 s{sW}, 7'}[opt('erole', '')], f's_cselect_b32 s{sT0}, s{sT0}, 0')
        E(f's_memrealtime {sr(6,2)}', 's_waitcnt lgkmcnt(0)')
        lab('L_echo')
        E(f's_memrealtime {sr(4,2)}', 's_waitcnt lgkmcnt(0)', f's_sub_u32 s{sT1}, s4, s6', f's_cmp_lt_u32 s{sT1}, s{sT0}', 's_cbranch_scc1 L_echo')
    for i in range(12): e(f'v_mov_b32 v{16+i}, s{sST+2*i}')
    E(f's_getreg_b32 s{sT0}, hwreg(HW_REG_XCC_ID)', f'v_mov_b32 v28, s{sT0}', f'v_mov_b32 v29, s{sSpin}', f'v_mov_b32 v30, s{sFB}', 'v_mov_b32 v31, 0',
      f's_lshl_b32 s{sT0}, s2, 3', f's_add_u32 s{sT0}, s{sT0}, s{sW}', f's_lshl_b32 s{sT0}, s{sT0}, 6', f's_add_u32 s{sT0}, s{sT0}, {hex(WS_STAMP)}',
      'v_mov_b32 v0, 0', 's_mov_b64 exec, 1')
    for i in range(4):
        e(f'buffer_store_dwordx4 {vr(16+4*i,4)}, v0, {sr(S_WS,4)}, s{sT0} offen offset:{16*i}')
lab('L_end')
e('s_endpgm')

cm('================ X program (waves 0-3) ================')
VMQ[:] = []; NBAR[0] = 0
xAcc, xFr, xMask = 96, 160, 32
xa, xb, xw = 56, 60, 64
(xFw, xLq, xLv, xLvp, xOne) = (72, 73, 74, 75, 76)
XV, XM, PACE = opt('xv', 2), opt('xm', 0), opt('pace', 2)
e('.p2align 6')
lab('L_X')
srd(S_WQ, 0x80000); srd(S_XA, 0x200000); srd(S_WQKV, 0x180000)
E(f's_or_b32 s{sT1}, s2, s{sW}', 's_cbranch_scc1 L_nonon', 's_waitcnt lgkmcnt(0)',
  f's_lshl_b64 {sr(sNon,2)}, {sr(sNon,2)}, 5', f's_or_b32 s{sNon}, s{sNon}, 1', f'v_mov_b32 v{vNon}, s{sNon}', f'v_mov_b32 v{vNon+1}, s{sNon+1}', 's_mov_b64 exec, 1',
  f'global_store_dwordx2 v{vZero}, {vr(vNon,2)}, {sr(S_DBG,2)} sc1', 's_mov_b64 exec, -1')
lab('L_nonon')
E(f'v_and_b32 v{vT3}, 1, v{vG}', f'v_lshlrev_b32 v{vT3}, 2, v{vT3}', f'v_xor_b32 v{vT3}, v{vT3}, v{vT2}', f'v_lshlrev_b32 v{vT3}, 4, v{vT3}',
  f'v_lshl_add_u32 v{vW}, v{vT1}, 10, v{vT3}', f'v_add_u32 v{vW2}, {8192-1024}, v{vW}',
  f'v_mul_u32_u24 v{vWA}, 3072, v{vT1}', f'v_add_u32 v{vWA}, v{vWA}, v{vT3}')
e(f's_lshl_b32 s{sW2k}, s{sW}, 11')
def x_setup1():
    global SH4, RG4, qx, qw, AR
    lane_setup()
    SH4 = ['0', f's{sVM}', f's{sVM+1}', f's{sC}']; RG4 = [82, 84, 86, 88]
    qx, qw = 56, 64
    q_addr(qx, qw)
    AR = opt('arot', 0)
    if AR == 1: E(f's_add_u32 s{sXo}, s{sRot}, s{sHG}', f's_and_b32 s{sXo}, s{sXo}, 7', f's_lshl_b32 s{sXo}, s{sXo}, 7')
    elif AR == 2: E(f's_lshr_b32 s{sXo}, s{sRB}, 2', f's_lshl_b32 s{sXo}, s{sXo}, 7')
    elif AR == 3: E(f's_lshr_b32 s{sXo}, s{sRB}, 2', f's_lshl_b32 s{sT0}, s{sRB}, 2', f's_add_u32 s{sXo}, s{sXo}, s{sT0}', f's_and_b32 s{sXo}, s{sXo}, 7', f's_lshl_b32 s{sXo}, s{sXo}, 7')
    elif AR == 4: E(f's_and_b32 s{sXo}, s{sRB}, 1', f's_lshl_b32 s{sXo}, s{sXo}, 9')
    else: e(f's_mov_b32 s{sXo}, 0')
    E(f's_lshl_b32 s{sW2k}, s{sW}, 11',
      f's_lshl_b32 s{sT3}, s{sRB}, 2', f's_add_u32 s{sT0}, s{sT3}, s{sW}', f's_lshl_b32 s{sT0}, s{sT0}, 14', f'v_add_u32 v{vXA}, s{sT0}, v{vP0}', f'v_add_u32 v{vXA2}, s{sT0}, v{vP1}',
      f's_mul_i32 s{sT0}, s{sW}, {16*3072}', f's_add_u32 s{sT0}, s{sT0}, s{sHG128}', f'v_add_u32 v{vWA}, s{sT0}, v{vWA}', f'v_add_u32 v{vWA2}, {8*3072-1024}, v{vWA}')
def w64(srd_, lds_base_sgpr, lds, tag):
    for hf in range(2):
        E(f's_add_u32 m0, s{lds_base_sgpr}, {lds+hf*4096}', f's_add_u32 s{sT1}, s{sT0}, {2*7168}')
        dma(vW, srd_, f's{sT0}', 0, '', tag); dma(vW2, srd_, f's{sT0}', 1024, '', tag)
        dma(vW, srd_, f's{sT1}', 2048, '', tag); dma(vW2, srd_, f's{sT1}', 3072, '', tag)
        if hf == 0: e(f's_add_u32 s{sT0}, s{sT0}, 32768')
vTc = 68
def touch_setup():
    E(f's_lshr_b32 s{sT0}, s2, 3', f's_lshl_b32 s{sT0}, s{sT0}, 2', f's_add_u32 s{sT0}, s{sT0}, s{sW}',
      f's_mul_i32 s{sT1}, s{sT0}, {12*128}', f'v_mul_u32_u24 v{vTc}, {196608}, v{vG}', f'v_lshl_add_u32 v{vTc}, v{vI}, 7, v{vTc}', f'v_add_u32 v{vTc}, s{sT1}, v{vTc}',
      f's_lshl_b32 s{sT1}, s{sT0}, 12', f'v_lshlrev_b32 v{vTc+1}, 7, v{vN}', f'v_add_u32 v{vTc+1}, s{sT1}, v{vTc+1}',
      f's_lshl_b32 s{sT1}, s{sHG}, 2', f's_add_u32 s{sT1}, s{sT1}, s{sW}', f's_lshl_b32 s{sT1}, s{sT1}, 11', f's_lshl_b32 s{sT2}, s{sRB}, 16', f's_add_u32 s{sT1}, s{sT1}, s{sT2}',
      f'v_lshlrev_b32 v{vTc+2}, 7, v{vI}', f'v_add_u32 v{vTc+2}, s{sT1}, v{vTc+2}')
def touch_w(j):
    E(f's_mov_b32 s{sT0}, {j*4*196608}', 's_mov_b32 exec_lo, 0x0fff0fff', 's_mov_b32 exec_hi, 0x0fff0fff')
    e(f'buffer_load_dword v{vTc+3}, v{vTc}, {sr(S_WQKV,4)}, s{sT0} offen', 'tc')
    e('s_mov_b64 exec, -1')
def touch_x():
    e('s_mov_b64 exec, 0xffff')
    e(f'buffer_load_dword v{vTc+3}, v{vTc+2}, {sr(S_XA,4)}, 0 offen{NT}', 'tc')
    e('s_mov_b64 exec, -1')
def touch_wo(srd_):
    e('s_mov_b32 exec_hi, 0')
    e(f'buffer_load_dword v{vTc+3}, v{vTc+1}, {sr(srd_,4)}, 0 offen', 'tc')
    e('s_mov_b64 exec, -1')
TC = opt('tc', 0)
def halo_fill():
    E(f's_lshl_b32 s{sT3}, s{sRB}, 16', f's_sub_u32 s{sT2}, s{sT3}, 16384', f's_max_i32 s{sT2}, s{sT2}, 0',
      f's_lshl_b32 s{sT0}, s{sW}, 7', f's_add_u32 s{sT0}, s{sT0}, s{sStepH}')
    for j in range(2):
        E(f's_and_b32 s{sT0}, s{sT0}, 1023', f's_add_u32 m0, s{sW2k}, {HALO+j*8192}', f's_add_u32 s{sT1}, s{sT2}, s{sT0}')
        dma(vP0, S_XA, f's{sT1}', 0, '', 'halo'); dma(vP1, S_XA, f's{sT1}', 1024, '', 'halo')
        if j == 0: e(f's_add_u32 s{sT0}, s{sT0}, 512')
def a_fill(c):
    slot = (c & 3) * SLOT
    t = f'A{c}'
    E(f's_add_u32 m0, s{sW2k}, {slot}', f's_mul_i32 s{sWo}, s{sXo}, 1536')
    dma(vXA, S_XA, f's{sXo}', 0, NT, t); dma(vXA2, S_XA, f's{sXo}', 1024, NT, t)
    for ty in range(3):
        E(f's_add_u32 m0, s{sW2k}, {slot+8192+ty*8192}', [f's_add_u32 s{sXo}, s{sXo}, 128', f's_add_u32 s{sWo}, s{sWo}, 1024', f's_add_u32 s{sWo}, s{sWo}, 1024'][ty])
        dma(vWA, S_WQKV, f's{sWo}', 0, WNT, t); dma(vWA2, S_WQKV, f's{sWo}', 1024, WNT, t)
    e(f's_and_b32 s{sXo}, s{sXo}, 1023')
def kv_fill(k):
    E(f's_add_u32 m0, s{sW4k}, {R+((k&1)^1)*16384}', f's_and_b32 s{sKVo}, s{sKVo}, 0x1ffff')
    for j in range(4): dma(vL16, S_WS, f's{sKVo}', 1024*j, ' sc1', f'KV{k}')
    e(f's_add_u32 s{sKVo}, s{sKVo}, 16384')
def wo_fill(srd_, half, lds, tag):
    e(f's_add_u32 s{sT0}, s{sWoff}, {half*256*1024}')
    if opt('woc', 1): return wcoop(srd_, 4, lds, 8192, tag)
    if opt('worot', 1): e(f's_and_b32 s{sT0}, s{sT0}, 0x7ffff')
    w64(srd_, sW8k, lds, tag)
def masks():
    E(f'v_lshlrev_b32 v{vT0}, 2, v{vH}', f'v_sub_u32 v{vT0}, v{vN}, v{vT0}', f'v_add_u32 v{vT0}, 18, v{vT0}',
      f'v_mov_b32 v{vT2}, 0x5555', f'v_mov_b32 v{vT3}, 0', f'v_lshlrev_b64 {vr(vT2,2)}, v{vT0}, {vr(vT2,2)}',
      f'v_not_b32 v{vT2}, v{vT2}', f'v_not_b32 v{vT3}, v{vT3}', f's_mov_b32 s{sF1}, 0xff800000')
    for r in range(16): E(f'v_bfe_i32 v{xMask+r}, v{vT3}, {8*(r>>2)+(r&3)}, 1', f'v_and_b32 v{xMask+r}, s{sF1}, v{xMask+r}')
    for r in range(8, 16): E(f'v_bfe_i32 v{xMask+8+r}, v{vT2}, {8*(r>>2)+(r&3)}, 1', f'v_and_b32 v{xMask+8+r}, s{sF1}, v{xMask+8+r}')
def local_setup():
    E(f's_and_b32 s{sT0}, s{sW}, 1', f's_lshl_b32 s{sT0}, s{sT0}, 12', f's_lshr_b32 s{sT1}, s{sW}, 1', f's_lshl_b32 s{sT2}, s{sT1}, 11', f's_add_u32 s{sT0}, s{sT0}, s{sT2}', f's_add_u32 s{sT0}, s{sT0}, {SC}', f'v_add_u32 v{xFw}, s{sT0}, v{vL16}',
      f's_lshl_b32 s{sT0}, s{sRB}, 3', f's_add_u32 s{sT0}, s{sT0}, s{sHG}', f's_lshl_b32 s{sStepA}, s{sT0}, 13', f's_add_u32 s{sStepA}, s{sStepA}, s{sT2}', f's_add_u32 s{sStepA}, s{sStepA}, {hex(WS_HX)}',
      f's_lshl_b32 s{sStepB}, s{sT0}, 1', f's_add_u32 s{sStepB}, s{sStepB}, s{sT1}', f's_lshl_b32 s{sStepB}, s{sStepB}, 6', f's_add_u32 s{sStepB}, s{sStepB}, {hex(WS_FHX)}',
      f's_cmp_eq_u32 s{sRB}, 0', f's_cselect_b32 s{sT2}, 0, 8', f's_sub_u32 s{sT0}, s{sT0}, s{sT2}', f's_lshl_b32 s{sT2}, s{sT2}, 7', f's_sub_u32 s{sT2}, s{sStepB}, s{sT2}', f'v_mov_b32 v{vB1}, s{sT2}',
      f's_lshl_b32 s{sStepH}, s{sT0}, 13', f's_lshl_b32 s{sT2}, s{sW}, 10', f's_add_u32 s{sStepH}, s{sStepH}, s{sT2}', f's_add_u32 s{sStepH}, s{sStepH}, {hex(WS_HX)}',
      f'v_mov_b32 v{xOne}, 0x3f803f80', f'v_mov_b32 v{xOne+1}, 0x3f803f80',
      f's_lshl_b32 s{sT1}, s{sW}, 10', f's_add_u32 s{sT2}, s{sT1}, {ONES}', f's_add_u32 s{sT1}, s{sT1}, {SC}', f'v_add_u32 v{xLq}, s{sT1}, v{vL16}',
      f'v_and_b32 v{vT0}, 1, v0', f'v_lshlrev_b32 v{vT0}, 5, v{vT0}', f'v_lshl_add_u32 v{vT0}, v{vH}, 3, v{vT0}',
      f'v_lshrrev_b32 v{vT1}, 2, v{vI}', f'v_add_u32 v{vT0}, v{vT0}, v{vT1}', f'v_lshlrev_b32 v{vT0}, 4, v{vT0}', f'v_and_b32 v{vT1}, 2, v0', f'v_lshl_add_u32 v{vT0}, v{vT1}, 2, v{vT0}',
      f'v_add_u32 v{xLv}, s{sT1}, v{vT0}', f'v_mov_b32 v{xLvp}, s{sT2}', f'v_lshl_add_u32 v{vOw}, v0, 3, v{xLvp}',
      f'v_and_b32 v{vT0}, 16, v0', f'v_cmp_ne_u32 vcc, 0, v{vT0}',
      f'v_add_u32 v78, {4*4096}, v{xLv}', f'v_add_u32 v79, {5*4096}, v{xLv}', f'v_add_u32 v80, {7*4096}, v{xLv}',
      f'v_cndmask_b32 v78, v78, v{xLvp}, vcc', f'v_cndmask_b32 v79, v79, v{xLvp}, vcc', f'v_cndmask_b32 v80, v80, v{xLvp}, vcc',
      f's_lshl_b32 s{sT0}, s{sRB}, 6', f's_lshl_b32 s{sT1}, s{sHG}, 2', f's_add_u32 s{sT1}, s{sT1}, s{sW}', f's_add_u32 s{sT0}, s{sT0}, s{sT1}',
      f's_lshl_b32 s{sT0}, s{sT0}, 10', f's_add_u32 s{sOslot}, s{sT0}, {hex(WS_OA)}', f's_add_u32 s{sOslot2}, s{sOslot}, 32768',
      f's_lshl_b32 s{sT0}, s{sRB}, 5', f's_add_u32 s{sT0}, s{sT0}, s{sT1}', f's_lshl_b32 s{sT0}, s{sT0}, 6', f's_add_u32 s{sK1}, s{sT0}, {hex(WS_FOA)}')
    for i in range(4): e(f'v_mov_b32 v{vF0+i}, -1')
def sentinels():
    E(f's_add_u32 s{sT0}, s{sOslot}, {hex(WS_OB-WS_OA)}', f's_add_u32 s{sT1}, s{sT0}, 32768')
    e(f'buffer_store_dwordx4 {vr(vF0,4)}, v{vL16}, {sr(S_WS,4)}, s{sT0} offen sc1', 'sent')
    e(f'buffer_store_dwordx4 {vr(vF0,4)}, v{vL16}, {sr(S_WS,4)}, s{sT1} offen sc1', 'sent')
    nonce_load('sent')
def setup_a():
    E(f's_cmp_eq_u32 s{sW}, 3', f's_cselect_b32 s{sT1}, 15, 31', f'v_and_b32 v{vT0}, s{sT1}, v{vN}', f'v_lshl_add_u32 v{xa}, v{vT0}, 7, v{vXx}',
      f's_cselect_b32 s{sT1}, {HALO}, 0', f'v_add_u32 v{xa}, s{sT1}, v{xa}', f's_cselect_b32 s{sT1}, 0, 4096', f'v_add_u32 v{xb}, s{sT1}, v{xa}',
      f's_cselect_b32 s{sStepA}, 1, 16', f's_cselect_b32 s{sStepB}, 1, -32', f's_cselect_b32 s{sT1}, 1, s{sW}', f's_cselect_b32 s{sT2}, 2, s{sW}',
      f's_lshl_b32 s{sStepA}, s{sStepA}, 11', f's_lshl_b32 s{sStepB}, s{sStepB}, 11',
      f's_lshl_b32 s{sT1}, s{sT1}, 13', f's_add_u32 s{sT1}, s{sT1}, 8192', f'v_add_u32 v{xw}, s{sT1}, v{vWl}', f'v_xor_b32 v{xw+1}, 64, v{xw}',
      f's_lshl_b32 s{sT2}, s{sT2}, 13', f's_add_u32 s{sT2}, s{sT2}, 8192', f'v_add_u32 v{xw+2}, s{sT2}, v{vWl}', f'v_xor_b32 v{xw+3}, 64, v{xw+2}')
    for j in range(4): e(f'v_add_u32 v{xw+4+j}, 65536, v{xw+j}')
    for s_ in range(1, 4): E(f'v_xor_b32 v{xa+s_}, {32*s_}, v{xa}', f'v_xor_b32 v{xb+s_}, {32*s_}, v{xb}')
def setup_b():
    E(f's_lshr_b32 s{sT1}, s{sRB}, 2', f's_lshl_b32 s{sKVo}, s{sT1}, 14', f's_add_u32 s{sKVo}, s{sKVo}, s{sW4k}',
      f'v_lshlrev_b32 v{vPa}, 3, v0', f'v_add_u32 v{vPa}, {hex(WS_FD)}, v{vPa}',
      f'v_lshlrev_b32 v{vPa2}, 6, v{vN}', f's_lshl_b32 s{sT2}, s{sRB}, 11', f's_add_u32 s{sT2}, s{sT2}, {hex(WS_FOA)}', f'v_add_u32 v{vPa2}, s{sT2}, v{vPa2}',
      f's_lshl_b32 s{sT2}, s{sT1}, 2', f's_add_u32 s{sT2}, s{sT2}, s{sW}', f's_lshl_b32 s{sT2}, s{sT2}, 3',
      f'v_and_b32 v{vBW}, 7, v0', f'v_add_u32 v{vBW}, s{sT2}, v{vBW}',
      f'v_and_b32 v{vB0}, 8, v0', f'v_lshlrev_b32 v{vB0}, 2, v{vB0}', f'v_add3_u32 v{vB0}, v{vB0}, v{vBW}, 32', f'v_and_b32 v{vB0}, 255, v{vB0}',
      f'v_lshlrev_b32 v{vB0}, 6, v{vB0}', f'v_add_u32 v{vB0}, {hex(WS_FKV)}, v{vB0}',
      f'v_lshlrev_b32 v{vBW}, 6, v{vBW}', f'v_add_u32 v{vBW}, {hex(WS_FKV)}, v{vBW}',
      f's_mov_b32 s{sVM}, 512', f's_mov_b32 s{sVM+1}, 1024', f's_mov_b32 s{sC}, 1536',
      f's_lshl_b32 s{sW8k}, s{sW}, 13', f's_lshl_b32 s{sWoff}, s{sW}, {14 if opt("woc", 1) else 16}', f's_add_u32 s{sWoff}, s{sWoff}, s{sHG128}')
    if opt('worot', 1): E(f's_lshl_b32 s{sT2}, s{sRB}, 17', f's_add_u32 s{sWoff}, s{sWoff}, s{sT2}')
    srd(S_WOA, 0x80000); srd(S_WOB, 0x80000)
    E(f's_getreg_b32 s{sXcc}, hwreg(HW_REG_XCC_ID, 0, 4)', f's_lshl_b32 s{sXcc}, s{sXcc}, 1')
def wcoop(srd_, n, lds, ldstep, tag):
    for j in range(n):
        E(f's_add_u32 m0, s{sW2k}, {lds+j*ldstep}', f's_and_b32 s{sT0}, s{sT0}, 0x7ffff')
        dma(vW, srd_, f's{sT0}', 0, '', tag); dma(vW2, srd_, f's{sT0}', 1024, '', tag)
        if j < n - 1: e(f's_add_u32 s{sT0}, s{sT0}, 65536')
if opt('wqc', 1):
    E(f's_lshl_b32 s{sT0}, s{sRot}, 16', f's_lshl_b32 s{sT2}, s{sW}, 14', f's_add_u32 s{sT0}, s{sT0}, s{sT2}', f's_add_u32 s{sT0}, s{sT0}, s{sHG128}',
      's_waitcnt lgkmcnt(0)', 's_barrier')
    if STG:
        NS1 = opt('ns', 6)
        wcoop(S_WQ, NS1, 8192, 16384, 'B')
        E(f's_waitcnt vmcnt({2*(NS1-4)})', 's_barrier', f's_add_u32 s{sT0}, s{sT0}, 65536')
        stamp(4, 'head')
        wcoop(S_WQ, 8-NS1, 8192+NS1*16384, 16384, 'B')
    else:
        wcoop(S_WQ, 8, 8192, 16384, 'B')
else:
    E(f's_add_u32 s{sT0}, s{sW}, s{sRot}', f's_lshl_b32 s{sT0}, s{sT0}, 16', f's_add_u32 s{sT0}, s{sT0}, s{sHG128}', f's_lshl_b32 s{sT2}, s{sW}, 14',
      f's_and_b32 s{sT0}, s{sT0}, 0x7ffff', 's_waitcnt lgkmcnt(0)', 's_barrier')
    w64(S_WQ, sT2, 8192, 'B')
    E(f's_add_u32 s{sT0}, s{sT0}, {4*65536-32768}', f's_and_b32 s{sT0}, s{sT0}, 0x7ffff')
    w64(S_WQ, sT2, 65536+8192, 'B')
stamp(1, 'head')
x_setup1(); setup_b(); local_setup()
E('s_waitcnt vmcnt(0)', 's_barrier')
stamp(5, 'head'); stamp(1, 'all', 'x')
PE = opt('pe', 0)
if PE == 1: poll_issue(vBW, ['0'], [vFl])
if not STG:
    tail_setup()
    if PE == 2: poll_issue(vBW, ['0'], [vFl])
    e('s_barrier')
if opt('psl', 0): e(f's_sleep {opt("psl", 0)}')
if not PE: poll_issue(vBW, ['0'], [vFl])
A0P = opt('a0p', 0)
if A0P == 1: a_fill(0)
if STG: tail_setup()
if not PE: masks()
poll_check('kv', vBW, ['0'], [vFl], 8 if A0P == 1 else 0)
stamp(6, 'head')
kv_fill(0)
poll_issue(vB0, ['0'], [vFl]); VMQ += ['p', 'p']
if A0P == 0: a_fill(0)
if PE: masks()
for j in range(16): E(f'v_mov_b32 v{208+j}, 0', f'v_mov_b32 v{16+j}, 0')
E(f's_setprio {XV}', f's_waitcnt vmcnt({vmn("KV0")})')
stamp(7, 'head'); stamp(2, 'all', 'x')
e('s_barrier')
stamp(8, 'head'); stamp(3, 'all', 'x')

def a_chunk(cs, side=()):
    side = list(side)
    seq = []
    u = 0
    for c in cs:
        hi, base = (c >> 1) & 1, (c & 1) * SLOT
        for s in range(4):
            x = xFr + 16 * (u % 3); u += 1
            for ty in range(3):
                r = [f'ds_read_b128 {vr(x,4)}, v{qx+4*hi+s} offset:{base}'] if ty == 0 else []
                o = base + ty * 8192 + s * 2048
                r += [f'ds_read_b64_tr_b16 {vr(x+4+4*ty,2)}, v{qw+hi} offset:{o}', f'ds_read_b64_tr_b16 {vr(x+6+4*ty,2)}, v{qw+hi} offset:{o+512}']
                a = xAcc + 16 * ty
                seq.append((r, f'v_mfma_f32_32x32x16_bf16 {vr(a,16)}, {vr(x+4+4*ty,4)}, {vr(x,4)}, {"0" if (c == 0 and s == 0) else vr(a,16)}'))
    if XM != XV: e(f's_setprio {XM}')
    LA = opt('la', 1)
    for k_ in range(LA): E(*seq[k_][0])
    for k_, (r, m) in enumerate(seq):
        if k_ + LA < len(seq): E(*seq[k_+LA][0])
        e(f's_waitcnt lgkmcnt({sum(len(seq[j][0]) for j in range(k_+1, min(len(seq), k_+LA+1)))})')
        e(m)
        take = -(-len(side) // (len(seq) - k_))
        for g in side[:take]:
            for s_, t_ in g: e(s_, t_)
        side = side[take:]
    if XM != XV: e(f's_setprio {XV}')
def write_frags():
    e('s_nop 6')
    for ty in range(3):
        for hd in range(2):
            a = xAcc + 16 * ty + 8 * hd
            for i in range(4): e(f'v_cvt_pk_bf16_f32 v{a+i}, v{a+2*i}, v{a+2*i+1}')
            e(f'ds_write_b128 v{xFw}, {vr(a,4)} offset:{ty*8192+hd*1024}')
    E(f's_bitcmp1_b32 s{sW}, 0', 's_cbranch_scc0 L_nopub', f's_add_u32 s{sT0}, s{sStepA}, 4096',
      f'buffer_store_dwordx4 {vr(xAcc+16,4)}, v{vL16}, {sr(S_WS,4)}, s{sStepA} offen sc1',
      f'buffer_store_dwordx4 {vr(xAcc+24,4)}, v{vL16}, {sr(S_WS,4)}, s{sStepA} offen offset:1024 sc1',
      f'buffer_store_dwordx4 {vr(xAcc+32,4)}, v{vL16}, {sr(S_WS,4)}, s{sT0} offen sc1',
      f'buffer_store_dwordx4 {vr(xAcc+40,4)}, v{vL16}, {sr(S_WS,4)}, s{sT0} offen offset:1024 sc1')
    lab('L_nopub')
PUB = [0]
def halo_flag():
    E(f's_bitcmp1_b32 s{sW}, 0', 's_cbranch_scc0 L_nohf')
    flag_store('hx', f's{sStepB}', f's_waitcnt vmcnt({len(VMQ)-PUB[0]})')
    lab('L_nohf')
def halo_get():
    poll_check('hx', vB1, ['0'], [vFl], None)
    E(f's_lshl_b32 s{sT0}, s{sW}, 10', f's_add_u32 m0, s{sT0}, {SC+6*4096}', f's_add_u32 s{sT1}, s{sStepH}, 4096')
    dma(vL16, S_WS, f's{sStepH}', 0, ' sc1', 'hx')
    E(f's_add_u32 m0, s{sT0}, {SC+7*4096}', 's_nop 0')
    dma(vL16, S_WS, f's{sT1}', 0, ' sc1', 'hx')
def local_task(t):
    lq, lk, lp, lv = xFr, xFr+4, xFr+8, xFr+12
    lS, lP, lO = xAcc, xAcc+16, (16 if t else 208)
    kp = 6 if t == 0 else 2
    vc, vp = (78, 80) if t == 0 else (79, 78)
    E(f'ds_read_b128 {vr(lq,4)}, v{xLq} offset:{t*4096}', f'ds_read_b128 {vr(lk,4)}, v{xLq} offset:{(2+t)*4096}', f'ds_read_b128 {vr(lp,4)}, v{xLq} offset:{kp*4096}',
      f'ds_read_b64_tr_b16 {vr(lv,2)}, v{vc}', f'ds_read_b64_tr_b16 {vr(lv+2,2)}, v{vc} offset:64',
      f'ds_read_b64_tr_b16 {vr(lv+4,2)}, v{vc} offset:256', f'ds_read_b64_tr_b16 {vr(lv+6,2)}, v{vc} offset:320',
      f'ds_read_b64_tr_b16 {vr(lv+8,2)}, v{vp} offset:256', f'ds_read_b64_tr_b16 {vr(lv+10,2)}, v{vp} offset:320')
    if t == 0:
        E(f's_cmp_lg_u32 s{sRB}, 0', 's_cbranch_scc1 L_m0')
        for r in range(8): e(f'v_mov_b32 v{xMask+16+r}, 0xff800000')
        lab('L_m0')
    E('s_waitcnt lgkmcnt(6)', 's_nop 0',
      f'v_mfma_f32_32x32x16_bf16 {vr(lS,16)}, {vr(lk,4)}, {vr(lq,4)}, {vr(xMask,16)}',
      f'v_mfma_f32_32x32x16_bf16 {vr(lP,16)}, {vr(lp,4)}, {vr(lq,4)}, {vr(xMask+8,16)}')
    e('s_nop 10')
    regs = [lS+i for i in range(16)] + [lP+8+i for i in range(8)]
    maxtree(regs, vT0, vT1)
    E('s_nop 1', f'v_permlane32_swap_b32 v{vT0}, v{vT1}', f'v_max_f32 v{vT0}, v{vT0}, v{vT1}', f'v_mul_f32 v{vT0}, {f32(-CSCALE)}, v{vT0}')
    for k in range(0, 24, 2): e(f'v_pk_fma_f32 {vr(regs[k],2)}, {vr(regs[k],2)}, {sr(sCS,2)}, {vr(vT0,2)} op_sel_hi:[1,0,0]')
    e('s_waitcnt lgkmcnt(0)')
    for k in range(24):
        e(f'v_exp_f32 v{regs[k]}, v{regs[k]}')
        if k == 9: e(f'v_smfmac_f32_32x32x32_bf16 {vr(lO,16)}, {vr(lv,4)}, {vr(lS,8)}, v{vIdx}')
        if k == 17: e(f'v_smfmac_f32_32x32x32_bf16 {vr(lO,16)}, {vr(lv+4,4)}, {vr(lS+8,8)}, v{vIdx}')
    E('s_nop 1', f'v_smfmac_f32_32x32x32_bf16 {vr(lO,16)}, {vr(lv+8,4)}, {vr(lP+8,8)}, v{vIdx}', 's_nop 11',
      f'v_rcp_f32 v{vT2}, v{lO+8}', 's_nop 0')
    for i in range(0, 8, 2): e(f'v_pk_mul_f32 {vr(lO+i,2)}, {vr(lO+i,2)}, {vr(vT2,2)} op_sel_hi:[1,0]')
    d = xAcc + 48 + 4 * t
    for i in range(4): e(f'v_cvt_pk_bf16_f32 v{d+i}, v{lO+2*i}, v{lO+2*i+1}')
    e(f'buffer_store_dwordx4 {vr(d,4)}, v{vL16}, {sr(S_WS,4)}, s{sOslot2 if t else sOslot} offen sc1', 'oa')

def oa_mfma(rt, wr=False):
    for s_ in range(8):
        for ct in range(2):
            a_ = oAcc + 32 * rt + 16 * ct
            e(f'v_mfma_f32_32x32x16_bf16 {vr(a_,16)}, {vr(oW+8*s_+4*ct,4)}, {vr(oOf+32*rt+4*s_,4)}, {"0" if s_ == 0 else vr(a_,16)}')
            m_ = 2 * s_ + ct
            if wr and wr <= m_ < wr + 4:
                for q in (2*(m_-wr), 2*(m_-wr)+1): e(f'ds_write_b128 v{80+q if q else vTp}, {vr(oAcc+4*q,4)}')
PAT = opt('pat', 3)
if PAT == 3:
    CH = {n: [n-2] for n in range(2, 10)}; FILL = {n: [n] for n in range(8)}
else:
    CH = {2: [0], 3: [1], 4: [2], 5: [3, 4], 6: [5], 7: [6], 8: [7]}; FILL = {0: [0], 1: [1], 2: [2, 3], 3: [4], 4: [5], 5: [6], 6: [7]}
if EA:
    CH = {n: [n-1] for n in range(1, 9)}; FILL = {n: [n+1] for n in range(7)}
NG = max(CH)
LATE = opt('xlate', 1 if NG < 9 else 0)
AE = opt('aearly', 0)
for n in range(16):
    cm(f'X interval {n}')
    if n < 9: stamp(n + 1, 'i0')
    if n >= 8: stamp(n - 7, 'i1')
    if n in (opt('dn', 2), opt('dn', 2)+1, opt('dn', 2)+2): stamp(1 + 4*(n-opt('dn', 2)), 'd')
    if n in (1, 2, 4, 10, 12, 14): stamp({1: 4, 2: 5, 4: 6, 10: 7, 12: 8, 14: 9}[n], 'x')
    if STAMPS and STMODE == 'xc' and n in (4, 8, 10, 12, 14, 15):
        i_ = (4, 8, 10, 12, 14, 15).index(n)
        E(f's_memrealtime {sr(sST+4*i_,2)}', f's_memtime {sr(sST+4*i_+2,2)}')
    waits = []
    k = n // 2
    if n == 0:
        if A0P == 2: a_fill(0)
        poll_check('kv1', vB0, ['0'], [vFl], vmn('p'))
        kv_fill(1)
    ILV = opt('ilv', 1) and n in CH
    if n == 3:
        E(f's_cmp_lg_u32 s{sW}, 0', 's_cbranch_scc1 L_np3')
        poll_issue(vPa, SH4, RG4)
        lab('L_np3')
        NP3 = len(VMQ)
    if ILV: CAP[0] = []
    if n % 2 == 0 and 1 <= k <= 6: kv_fill(k + 1)
    for c in FILL.get(n, []): a_fill(c)
    WS_ = opt('wos', 3)
    if n == NG - 1: sentinels()
    if WS_ == 0:
        if n == NG - 1: wo_fill(S_WOA, 0, 0, 'woA')
        if n == NG: wo_fill(S_WOA, 1, SLOT, 'woA')
    if WS_ == 3 and n == NG - 1: wo_fill(S_WOA, 0, 0, 'woA')
    if WS_ == 2:
        if n == NG - 2: wo_fill(S_WOA, 0, 0, 'woA')
        if n == NG - 1: wo_fill(S_WOA, 1, SLOT, 'woA')
    if TC & 1 and n == 0: touch_x(); touch_w(0)
    if TC & 2 and n == 2: touch_w(1)
    if TC & 4 and n == 3: touch_wo(S_WOA)
    if TC & 4 and n == 5: touch_wo(S_WOB)
    DN = opt('dn', 2)
    side = []
    if ILV:
        cap = CAP[0]; CAP[0] = None
        g = []
        for it in cap:
            g.append(it)
            if it[1] is not None: side.append(g); g = []
        if g: side[-1] += g
    if n in (DN, DN+1): stamp(2 + 4*(n-DN), 'd')
    if n in CH: a_chunk(CH[n], side)
    if n in (DN, DN+1): stamp(3 + 4*(n-DN), 'd')
    for c in CH.get(n + 1, []): waits.append(f'A{c}')
    if n == NG: write_frags(); PUB[0] = len(VMQ)
    if n == NG + 1:
        e(f'ds_write_b64 v{vOw}, {vr(xOne,2)}')
        if opt('hfe', 1): halo_flag()
        local_task(1)
        if not opt('hfe', 1): halo_flag()
    if n == NG + 2:
        halo_get()
        if WS_ == 1: wo_fill(S_WOA, 0, 0, 'woA')
        if WS_ == 3: wo_fill(S_WOA, 1, SLOT, 'woA')
    if n == NG + 3:
        e(f's_waitcnt vmcnt({vmn("hx")})')
        local_task(0)
        if WS_ == 3: waits.append('woA')
        if WS_ == 1: wo_fill(S_WOA, 1, SLOT, 'woA')
    if n == NG + 4:
        if LATE: wo_fill(S_WOB, 0, 2*SLOT, 'woB')
        flag_store('oa', f's{sK1}', f's_waitcnt vmcnt({vmn("oa")})', xcc=True)
        VMQ.append('fl')
        if WS_ != 1 and not LATE: w_reads()
    if WS_ != 1 and LATE and n == NG + 5: w_reads()
    if LATE and n == NG + 5 and WS_ != 1: wo_fill(S_WOB, 1, 3*SLOT, 'woB')
    if WS_ == 1 and n == NG + 5: waits.append('woA')
    if n == NG + 5 + LATE:
        E(f's_cmp_lg_u32 s{sW}, 0', 's_cbranch_scc1 L_skip_oa')
        poll_check('oa', vPa2, ['0'], [vFl], None, xcc=True)
        E(f'v_or_b32 v{vFl}, s{sXcc}, v{vNon}', f'v_cmp_ne_u32 vcc, v{vFl}, v{vFl+2}', 's_nop 1', 's_cmp_eq_u64 vcc, 0', f's_cselect_b32 s{sT0}, {opt("fast", 1)}, 0',
          f'v_mov_b32 v{vFl}, s{sT0}')
        lab('L_skip_oa')
        if not LATE: wo_fill(S_WOB, 0, 2*SLOT, 'woB'); wo_fill(S_WOB, 1, 3*SLOT, 'woB')
        if WS_ == 1: wo_fill(S_WOB, 1, 3*SLOT, 'woB'); w_reads()
    if n == NG + 6 + LATE:
        E(f's_cmp_lg_u32 s{sW}, 0', 's_cbranch_scc1 L_skip_same', f'v_mov_b32 v{vFl+1}, {R+16384}', f'ds_write_b32 v{vFl+1}, v{vFl}')
        lab('L_skip_same')
        o_loads('oal')
    if n == 13 and opt('pad', 0):
        E('s_mov_b64 exec, 0', 's_branch L_pad0')
        lab(f'L_pad{PADS[0]}')
        e('s_mov_b64 exec, -1')
    if n == 15 and AE:
        E('s_waitcnt vmcnt(8)', f's_setprio {XM}')
        oa_mfma(0)
        e(f's_setprio {XV}')
    if n % 2 == 1 and k + 1 <= 7: waits.append(f'KV{k+1}')
    if n == 15: waits.append('woB')
    if waits: e(f's_waitcnt vmcnt({min(vmn(t) for t in waits)}) lgkmcnt(0)')
    else: e('s_waitcnt lgkmcnt(0)')
    if n == 3:
        E(f's_cmp_lg_u32 s{sW}, 0', 's_cbranch_scc1 L_nochk_kv2')
        poll_check('kv2', vPa, SH4, RG4, len(VMQ) - NP3)
    if n < 9: stamp(n + 1, 'j0')
    if n >= 8: stamp(n - 7, 'j1')
    if n in (DN, DN+1): stamp(4 + 4*(n-DN), 'd')
    if opt('nomid', 0) and n % 2 == 0: NBAR[0] += 1
    else: e('s_barrier')
assert NBAR[0] == NBAR_Y, (NBAR[0], NBAR_Y)
E('s_setprio 0', f's_mov_b32 s{sSpin}, 0', f's_mov_b32 s{sC}, 0')
stamp(9, 'i1')
e('s_waitcnt vmcnt(0)')
stamp(5, 'tail')
if not AE: oa_mfma(0)
oa_mfma(1, 10)
E('s_nop 9', 's_branch L_tail_wr')

cm('---- fallback (Y waves): true max, K/V from global ----')
lab('L_fallback')
E(f's_cmp_eq_u32 s{sFB}, 0', 's_cbranch_scc1 L_fb_go', f's_cmp_eq_u32 s{sT1}, 1', 's_branch L_att_ok')
lab('L_fb_go')
E(f's_mov_b32 s{sFB}, 1', f'v_mov_b32 v{vT0}, 0xff800000', f'v_mov_b32 v{vT2}, 0xff800000', f's_mov_b32 s{sT2}, 0')
lab('L_fb_max')
E(f'buffer_load_dwordx4 {vr(aK,4)}, v{vL16}, {sr(S_WS,4)}, s{sT2} offen sc1', 's_waitcnt vmcnt(0)',
  f'v_mfma_f32_32x32x16_bf16 {vr(aSa,16)}, {vr(aK,4)}, {vr(vQa,4)}, 0', f'v_mfma_f32_32x32x16_bf16 {vr(aSb,16)}, {vr(aK,4)}, {vr(vQb,4)}, 0', 's_nop 15')
for k in range(0, 16, 2): e(f'v_max3_f32 v{vT0}, v{vT0}, v{aSa+k}, v{aSa+k+1}')
for k in range(0, 16, 2): e(f'v_max3_f32 v{vT2}, v{vT2}, v{aSb+k}, v{aSb+k+1}')
E(f's_add_u32 s{sT2}, s{sT2}, 2048', f's_cmp_lt_u32 s{sT2}, {64*2048}', 's_cbranch_scc1 L_fb_max',
  f'v_mov_b32 v{vT1}, v{vT0}', f'v_mov_b32 v{vT3}, v{vT2}', 's_nop 1',
  f'v_permlane32_swap_b32 v{vT0}, v{vT1}', f'v_permlane32_swap_b32 v{vT2}, v{vT3}', f'v_max_f32 v{vT0}, v{vT0}, v{vT1}', f'v_max_f32 v{vT2}, v{vT2}, v{vT3}')
for i in range(16): e(f'v_sub_f32 v{aCa+i}, 0, v{vT0}')
for i in range(16): e(f'v_sub_f32 v{aCb+i}, 0, v{vT2}')
for i in range(32): e(f'v_mov_b32 v{aOa+i}, 0')
E(f'v_lshlrev_b32 v{vT2}, 4, v{vI}', f'v_lshl_add_u32 v{vT2}, v{vH}, 8, v{vT2}', f's_mov_b32 s{sT2}, 0')
lab('L_fb_pv')
E(f'buffer_load_dwordx4 {vr(aK,4)}, v{vL16}, {sr(S_WS,4)}, s{sT2} offen sc1', f's_mov_b64 exec, {sr(sVM,2)}',
  f'buffer_load_dwordx4 {vr(aV,4)}, v{vT2}, {sr(S_WS,4)}, s{sT2} offen offset:1024 sc1',
  f'buffer_load_dwordx4 {vr(aV+4,4)}, v{vT2}, {sr(S_WS,4)}, s{sT2} offen offset:1536 sc1', 's_mov_b64 exec, -1', 's_waitcnt vmcnt(0)',
  f'v_mfma_f32_32x32x16_bf16 {vr(aSa,16)}, {vr(aK,4)}, {vr(vQa,4)}, {vr(aCa,16)}',
  f'v_mfma_f32_32x32x16_bf16 {vr(aSb,16)}, {vr(aK,4)}, {vr(vQb,4)}, {vr(aCb,16)}', 's_nop 15')
for i in range(32): e(f'v_exp_f32 v{aSa+i}, v{aSa+i}')
E('s_nop 1',
  f'v_smfmac_f32_32x32x32_bf16 {vr(aOa,16)}, {vr(aV,4)}, {vr(aSa,8)}, v{vIdx}', f'v_smfmac_f32_32x32x32_bf16 {vr(aOa,16)}, {vr(aV+4,4)}, {vr(aSa+8,8)}, v{vIdx}',
  f'v_smfmac_f32_32x32x32_bf16 {vr(aOb,16)}, {vr(aV,4)}, {vr(aSb,8)}, v{vIdx}', f'v_smfmac_f32_32x32x32_bf16 {vr(aOb,16)}, {vr(aV+4,4)}, {vr(aSb+8,8)}, v{vIdx}',
  f's_add_u32 s{sT2}, s{sT2}, 2048', f's_cmp_lt_u32 s{sT2}, {64*2048}', 's_cbranch_scc1 L_fb_pv', 's_nop 15', 's_branch L_att_fin')
for g, so in enumerate((sOoff, sT1, sT2, sT3)):
    lab(f'L_tr{g}')
    E(f's_sub_u32 s{sSpin}, s{sSpin}, 1', f's_cbranch_scc1 L_tk{g}')
    for j in range(4):
        o = f' offset:{j*1024}' if j else ''
        e(f'buffer_load_dwordx4 {vr(oOf+16*g+4*j,4)}, v{vL16}, {sr(S_WS,4)}, s{so} offen{o} sc1')
    E('s_waitcnt vmcnt(0)', f's_branch L_tg{g}')
lab('L_st_slow')
E(f'buffer_store_dwordx4 {vr(224,4)}, v{vL16}, {sr(S_WS,4)}, s{sOslot} offen sc1',
  f'buffer_store_dwordx4 {vr(228,4)}, v{vL16}, {sr(S_WS,4)}, s{sOslot} offen offset:1024 sc1', 's_branch L_st_j')
lab('L_code_end')

HDR = open(f'cdna_kernels/{NAME}.s.ref').read().split('\n')
hdr = []
for line in HDR:
    if line.startswith('; @launch'): break
    hdr.append(line)
txt = '\n'.join(hdr) + '\n; @launch grid=(256,1,1) block=(512,1,1) lds=163840\n'
txt += '''; ---------------------------------------------------------------------------------------------
; Design (generated by a hand-written generator script; one fused launch, 256 workgroups, one per CU)
;    (non-finite / too large accumulators) falls back to a two-pass path that uses the true row max.
;  logical waves 0-3 ("X"): q projection, all of branch A (qkv GEMM, banded softmax with true max, out projection)
;    and all LDS-DMA traffic, running beside the attention waves.
; ---------------------------------------------------------------------------------------------
'''
txt += f'''.amdgcn_target "amdgcn-amd-amdhsa--gfx950"
.text
.globl {NAME}_kernel
.p2align 8
.type {NAME}_kernel,@function
'''
txt += '\n'.join(L) + '\n'
txt += f'''.section .rodata,"a"
.p2align 6
.amdhsa_kernel {NAME}_kernel
  .amdhsa_next_free_vgpr {NVGPR}
  .amdhsa_next_free_sgpr 102
  .amdhsa_accum_offset {NVGPR}
  .amdhsa_group_segment_fixed_size 0
  .amdhsa_kernarg_size 88
  .amdhsa_user_sgpr_count 2
  .amdhsa_user_sgpr_kernarg_segment_ptr 1
  .amdhsa_system_sgpr_workgroup_id_x 1
.end_amdhsa_kernel
'''
open(OUT, 'w').write(txt)
print('wrote', OUT, len(L), 'lines; barriers', NBAR_Y)
```
